```python
import torch

def _softmax(x, axis=-1):
    return torch.softmax(x, dim=axis)
def _gelu(x):
    return torch.nn.functional.gelu(x, approximate="tanh")
def _silu(x):
    return torch.nn.functional.silu(x)
def _sigmoid(x):
    return torch.sigmoid(x)
def _layernorm(x, axis=-1, eps=1e-5):
    m = x.mean(dim=axis, keepdim=True)
    v = x.var(dim=axis, keepdim=True, unbiased=False)
    return (x - m) / torch.sqrt(v + eps)
def _scatter_add(tgt, idx, src, axis=0):
    return tgt.clone().index_add_(axis, idx, src)
def _segment_sum(src, seg, n):
    out = torch.zeros((n,) + src.shape[1:], dtype=src.dtype)
    return out.index_add_(0, seg, src)
def _pad(x, pw):
    flat = tuple(v for pair in reversed(pw) for v in pair)
    return torch.nn.functional.pad(x, flat)

kernel_name = 'standalone__fused_io_aware_attn__prompt'

def setup_inputs():

    _w = (lambda a: (lambda t: t.to(torch.bfloat16) if t.is_floating_point() else t)(torch.as_tensor(a)))
    B, H, S = 2, 32, 2048
    Dh = max(1, 576 // 32)
    return {
        "q": _w((lambda *s: torch.randn(*s, dtype=torch.bfloat16) * 0.8)(B, H, S, Dh)),
        "k": _w((lambda *s: torch.randn(*s, dtype=torch.bfloat16) * 0.8)(B, H, S, Dh)),
        "v": _w((lambda *s: torch.randn(*s, dtype=torch.bfloat16) * 0.05)(B, H, S, Dh)),
    }

def reference(q, k, v):
    scale = q.shape[-1] ** -0.5
    s = torch.einsum('bhqd,bhkd->bhqk', q, k) * scale
    p = _softmax(s, axis=-1)
    return torch.einsum('bhqk,bhkd->bhqd', p, v)
```

```python
import sys, struct, math, argparse

NAME = "standalone__fused_io_aware_attn__prompt"
HB = 73728
ST = 2304
VBASE = HB
CBASE = 2 * HB

def f2u(x): return struct.unpack('<I', struct.pack('<f', x))[0]
CSCALE = f2u(math.log2(math.e) / math.sqrt(18.0))

vK, vV, vVinc, vIdx, vQo, vT0, vT1 = 1, 2, 3, 4, 5, 6, 7
KX = 8
QX = {'E': 10, 'O': 12}
vDma = 14
vT2 = 15
Kr = {'E': 16, 'O': 20}
Qr = {('A', 'E'): 24, ('B', 'E'): 28, ('A', 'O'): 32, ('B', 'O'): 36}
Vr = {('E', 0): 40, ('E', 1): 44, ('O', 0): 48, ('O', 1): 52}
Sr = {'E': 56, 'O': 88}
Or = {('A', 'E'): 120, ('B', 'E'): 136, ('A', 'O'): 152, ('B', 'O'): 168}
NV = 184

def vr(b, n): return f"v[{b}:{b+n-1}]"

class Asm:
    def __init__(self): self.l = []
    def __call__(self, s): self.l.append("    " + s)
    def lab(self, s): self.l.append(s + ":")
    def raw(self, s): self.l.append(s)
    def text(self): return "\n".join(self.l) + "\n"

def mf_x(par):
    return f"v_mfma_f32_32x32x4_2b_bf16 {vr(Sr[par],32)}, {vr(KX,2)}, {vr(QX[par],2)}, 0 cbsz:1 abid:0"
def mf_q(t, par):
    s = Sr[par] + (16 if t == 'B' else 0)
    return f"v_mfma_f32_32x32x16_bf16 {vr(s,16)}, {vr(Kr[par],4)}, {vr(Qr[(t,par)],4)}, {vr(s,16)}"
def mf_pv(t, par, j):
    s = Sr[par] + (16 if t == 'B' else 0) + 8 * j
    return f"v_smfmac_f32_32x32x32_bf16 {vr(Or[(t,par)],16)}, {vr(Vr[(par,j)],4)}, {vr(s,8)}, v{vIdx}"
def ex(par, i): return f"v_exp_f32 v{Sr[par]+i}, v{Sr[par]+i}"
def rd_kx(u): return [f"ds_read_b64 {vr(KX,2)}, v{vK} offset:{u*ST+32}"]
def rd_k(par, u):
    o = u * ST + (40 if par == 'O' else 0)
    return [f"ds_read_b64 {vr(Kr[par],2)}, v{vK} offset:{o}", f"ds_read_b64 {vr(Kr[par]+2,2)}, v{vK} offset:{o+8}"]
def rd_v(par, j, u):
    o = u * ST + (32 if par == 'O' else 0) + 16 * j * 72
    return [f"ds_read_b64_tr_b16 {vr(Vr[(par,j)],2)}, v{vV} offset:{o}", f"ds_read_b64_tr_b16 {vr(Vr[(par,j)]+2,2)}, v{vV} offset:{o+4*72}"]

def phase(a, par, u, opt, extra=None):
    oth = 'O' if par == 'E' else 'E'
    mf = {2: mf_pv('B', oth, 1), 5: mf_x(oth), 13: mf_pv('A', par, 0), 18: mf_pv('A', par, 1),
          21: mf_q('A', oth), 26: mf_pv('B', par, 0), 29: mf_q('B', oth)}
    if par == 'E':
        loads = rd_v('O', 0, u) + rd_v('O', 1, u) + rd_kx(u + 1) + rd_k('E', u + 1)
    else:
        loads = rd_v('E', 0, u + 1) + rd_v('E', 1, u + 1) + rd_k('O', u + 1)
    place = opt.place
    fill = {}
    if place == 'pre':
        groups = [(5, 2), (13, 3), (18, 2)]
        i = 0
        for pos, n in groups:
            fill[pos] = loads[i:i + n]; i += n
        assert i >= len(loads)
    elif place == 'spread':
        poss = [4, 7, 9, 11, 15, 17, 20]
        for p, ld in zip(poss, loads): fill[p] = [ld]
    elif place == 'burst':
        fill[13] = loads
    for i in range(32):
        if i == 2: a("s_waitcnt lgkmcnt(0)")
        for f in fill.get(i, []): a(f)
        if extra and i in extra:
            for f in extra[i]: a(f)
        if i in mf: a(mf[i])
        a(ex(par, i))

def gen(opt):
    U = opt.U
    NIT = 32 // U
    LDS = CBASE + (8192 if U <= 2 else 16384)
    a = Asm()
    a.raw(f"""; Fused attention forward, B=2 H=32 S=2048 D=18, bf16 in/out (generated by gen/gen.py).
; @launch grid=(256,1,1) block=(512,1,1) lds={LDS}
.amdgcn_target "amdgcn-amd-amdhsa--gfx950"
.text
.globl {NAME}_kernel
.p2align 8
.type {NAME}_kernel,@function
{NAME}_kernel:""")
    a("s_cmp_ge_u32 s2, 256")
    a("s_cbranch_scc1 L_end")
    a("s_load_dwordx4 s[4:7], s[0:1], 0")
    a("s_load_dwordx4 s[8:11], s[0:1], 16")
    if opt.stamp:
        a("s_load_dwordx2 s[40:41], s[0:1], 40")
        a("s_memtime s[42:43]")
        a("s_memrealtime s[56:57]")
    a(f"v_lshrrev_b32 v{vT0}, 6, v0")
    a(f"v_lshlrev_b32 v{vT2}, 4, v0")
    a(f"v_readfirstlane_b32 s24, v{vT0}")
    a("v_and_b32 v0, 63, v0")
    a("s_and_b32 s25, s2, 7")
    a("s_lshl_b32 s25, s25, 3")
    a("s_lshr_b32 s26, s2, 5")
    a("s_add_u32 s25, s25, s26")
    a(f"s_mul_i32 s25, s25, {HB}")
    a("s_bfe_u32 s26, s2, 0x20003")
    a("s_lshl_b32 s26, s26, 3")
    a("s_add_u32 s26, s26, s24")
    a(f"s_mul_i32 s26, s26, {ST}")
    a("s_add_u32 s26, s26, s25")
    a(f"v_lshlrev_b32 v{vDma}, 4, v0")
    a("s_and_b32 s27, s24, 3")
    a("s_lshl_b32 s27, s27, 10")
    a(f"s_mov_b32 s18, {HB}")
    a("s_mov_b32 s19, 0x00020000")
    a(f"s_mov_b32 s14, {ST}")
    a("s_mov_b32 s15, 0x00020000")
    a(f"s_mov_b32 s22, {ST}")
    a("s_mov_b32 s23, 0x00020000")
    a(f"v_and_b32 v{vT0}, 31, v0")
    a(f"v_lshrrev_b32 v{vT1}, 5, v0")
    a(f"v_mul_u32_u24 v{vQo}, 36, v{vT0}")
    a(f"v_lshl_add_u32 v{vQo}, v{vT1}, 4, v{vQo}")
    a(f"v_mul_u32_u24 v{vV}, 36, v0")
    a("s_cmp_ge_u32 s24, 4")
    a(f"s_cselect_b32 s28, {VBASE}, 0")
    a("s_waitcnt lgkmcnt(0)")
    a("s_cselect_b32 s16, s8, s6")
    a("s_cselect_b32 s17, s9, s7")
    a("s_add_u32 s16, s16, s25")
    a("s_addc_u32 s17, s17, 0")
    a("s_add_u32 s28, s28, s27")
    a("s_mov_b32 m0, s28")
    a("s_add_u32 s12, s4, s26")
    a("s_addc_u32 s13, s5, 0")
    def dma():
        a(f"buffer_load_dwordx4 v{vDma}, s[16:19], s27 offen lds")
        a("s_add_u32 m0, m0, 4096")
        a("s_add_u32 s27, s27, 4096")
    T = Sr['E']
    dma()
    a(f"buffer_load_dwordx4 {vr(T,4)}, v{vQo}, s[12:15], 0 offen")
    a(f"buffer_load_dword v{T+4}, v{vQo}, s[12:15], 0 offen offset:16")
    a(f"buffer_load_dwordx4 {vr(T+6,4)}, v{vQo}, s[12:15], 0 offen offset:1152")
    a(f"buffer_load_dword v{T+10}, v{vQo}, s[12:15], 0 offen offset:1168")
    a(f"buffer_load_dword v{T+12}, v{vV}, s[12:15], 0 offen offset:32")
    a(f"buffer_load_dword v{T+13}, v{vV}, s[12:15], 0 offen")
    NPRE = opt.npre
    for r in range(1, NPRE): dma()
    a("s_add_u32 s20, s10, s26")
    a("s_addc_u32 s21, s11, 0")
    C = Sr['O']
    a(f"v_mov_b32 v{C}, 0x3f80"); a(f"v_mov_b32 v{C+1}, 0"); a(f"v_mov_b32 v{C+2}, 0x3f80"); a(f"v_mov_b32 v{C+3}, 0")
    a(f"v_add_u32 v{vT2}, {CBASE}, v{vT2}")
    a(f"ds_write_b128 v{vT2}, {vr(C,4)}")
    if U > 2: a(f"ds_write_b128 v{vT2}, {vr(C,4)} offset:8192")
    a(f"v_mul_u32_u24 v{vK}, 72, v{vT0}")
    a(f"v_lshl_add_u32 v{vK}, v{vT1}, 4, v{vK}")
    t3, t4, t5 = C + 4, C + 5, C + 6
    a(f"v_bfe_u32 v{t3}, v0, 2, 2")
    a(f"v_lshl_add_u32 v{t3}, v{vT1}, 3, v{t3}")
    a(f"v_mul_u32_u24 v{t3}, 72, v{t3}")
    a(f"v_and_b32 v{t4}, 1, v0")
    a(f"v_lshl_add_u32 v{t3}, v{t4}, 4, v{t3}")
    a(f"v_and_b32 v{t4}, 2, v0")
    a(f"v_lshl_add_u32 v{t3}, v{t4}, 2, v{t3}")
    a(f"v_and_b32 v{t4}, 16, v0")
    a(f"v_add_u32 v{t3}, v{t4}, v{t3}")
    a(f"v_add_u32 v{t3}, {VBASE}, v{t3}")
    a(f"v_lshlrev_b32 v{t5}, 6, v{vT1}")
    a(f"v_add_u32 v{t5}, {CBASE+48}, v{t5}")
    a(f"v_and_b32 v{t4}, 18, v0")
    a(f"v_cmp_eq_u32 vcc, 18, v{t4}")
    a(f"v_mov_b32 v{vIdx}, 0xdddd")
    a(f"v_mov_b32 v{t4}, {U*ST}")
    a(f"v_cndmask_b32 v{vVinc}, v{t4}, 0, vcc")
    vVsave = C + 7
    a(f"v_cndmask_b32 v{vVsave}, v{t3}, v{t5}, vcc")
    for r in range(120, 184): a(f"v_mov_b32 v{r}, 0")
    for r in range(Sr['O'] + 24, Sr['O'] + 32): a(f"v_mov_b32 v{r}, 0")
    for r in range(Vr[('O', 1)], Vr[('O', 1)] + 4): a(f"v_mov_b32 v{r}, 0")
    a(f"v_mov_b32 v{QX['E']+1}, 0"); a(f"v_mov_b32 v{QX['O']}, 0")
    a(f"s_mov_b32 s30, {CSCALE:#x}"); a(f"s_mov_b32 s31, {CSCALE:#x}")
    a("s_mov_b32 s29, 0")
    a(f"s_waitcnt vmcnt({NPRE-1})")
    if opt.stamp: a("s_memtime s[44:45]")
    a(f"v_mov_b32 v{vV}, v{vVsave}")
    W = Sr['E'] + 16
    def scale(src, dsts, k):
        w = W + 2 * (k % 4)
        a(f"v_lshlrev_b32 v{w}, 16, v{src}")
        a(f"v_and_b32 v{w+1}, 0xffff0000, v{src}")
        a(f"v_pk_mul_f32 {vr(w,2)}, {vr(w,2)}, s[30:31]")
        for d in dsts: a(f"v_cvt_pk_bf16_f32 v{d}, v{w}, v{w+1}")
    k = 0
    scale(T + 12, [QX['E']], k); k += 1
    scale(T + 13, [QX['O'] + 1], k); k += 1
    for t, base in (('A', T), ('B', T + 6)):
        for j in range(5):
            d = []
            if j < 4: d.append(Qr[(t, 'E')] + j)
            if j > 0: d.append(Qr[(t, 'O')] + j - 1)
            scale(base + j, d, k); k += 1
    a(f"s_waitcnt vmcnt({NPRE-2}) lgkmcnt(0)")
    a("s_barrier")
    if opt.stamp: a("s_memtime s[46:47]"); a("s_waitcnt lgkmcnt(0)")
    for f in rd_kx(0) + rd_k('E', 0) + rd_k('O', 0) + rd_v('E', 0, 0) + rd_v('E', 1, 0): a(f)
    if opt.prio:
        a("s_cmp_ge_u32 s24, 4")
        a("s_cbranch_scc1 L_p1")
        a("s_setprio 2")
        a("s_branch L_p2")
        a.lab("L_p1")
        a("s_setprio 1")
        a.lab("L_p2")
    a("s_waitcnt lgkmcnt(8)")
    a(mf_x('E'))
    a("s_nop 15")
    a("s_waitcnt lgkmcnt(6)")
    a("s_nop 0")
    a(mf_q('A', 'E'))
    a(mf_q('B', 'E'))
    a("s_nop 7")
    a.raw("    .p2align 6")
    a.lab("L_loop")
    b1, b2 = opt.b1, opt.b2
    per = opt.per
    ndma_it = (18 - NPRE + per - 1) // per
    assert (18 - NPRE) % per == 0 and ndma_it <= b2
    a(f"s_cmp_gt_u32 s29, {b2}")
    a("s_cbranch_scc1 L_body")
    a(f"s_cmp_eq_u32 s29, {b1}")
    a("s_cbranch_scc0 L_nb1")
    a(f"s_waitcnt vmcnt({per*min(b1, ndma_it)})")
    a("s_barrier")
    a.lab("L_nb1")
    a(f"s_cmp_eq_u32 s29, {b2}")
    a("s_cbranch_scc0 L_nb2")
    a("s_waitcnt vmcnt(0)")
    a("s_barrier")
    if opt.stamp: a("s_memtime s[48:49]"); a("s_waitcnt lgkmcnt(0)")
    a.lab("L_nb2")
    a(f"s_cmp_ge_u32 s29, {ndma_it}")
    a("s_cbranch_scc1 L_body")
    for r in range(per): dma()
    a.lab("L_body")
    for u in range(U):
        phase(a, 'E', u, opt)
        extra = None
        if u == U - 1:
            extra = {21: [f"v_add_u32 v{vK}, {U*ST}, v{vK}", f"v_add_u32 v{vV}, v{vVinc}, v{vV}"],
                     26: ["s_add_u32 s29, s29, 1"]}
            if opt.prio:
                extra[26] += [f"s_cmp_lg_u32 s29, {opt.swit}", "s_cbranch_scc1 L_ns", "s_cmp_ge_u32 s24, 4", "s_cbranch_scc1 L_ns", "s_setprio 0", "L_ns:"]
            extra[29] = [f"s_cmp_lg_u32 s29, {NIT}"]
        phase(a, 'O', u, opt, extra)
    a("s_cbranch_scc1 L_loop")
    a("s_nop 0")
    a(mf_pv('B', 'O', 1))
    a("s_mov_b32 s33, 0")
    if opt.stamp: a("s_memtime s[50:51]")
    a.lab("L_epi")
    R = Sr['E']
    a("s_mov_b32 s34, 0x30800000")
    a("s_mov_b32 s35, 0x6c800000")
    PK = {'A': Sr['O'], 'B': Sr['O'] + 8}
    for t in ('A', 'B'):
        E, O = Or[(t, 'E')], Or[(t, 'O')]
        l, rc, chk = R, R + 1, R + 2
        if t == 'B': l, rc, chk = R + 3, R + 4, R + 5
        a(f"v_add_f32 v{l}, v{E+12}, v{O+12}")
        a(f"v_rcp_f32 v{rc}, v{l}")
        for j in range(0, 10, 2):
            a(f"v_pk_add_f32 {vr(E+j,2)}, {vr(E+j,2)}, {vr(O+j+2,2)}")
        a(f"v_mov_b32 v{chk}, v{l}")
        for j in range(0, 10):
            a(f"v_mul_f32 v{E+j}, v{E+j}, v{rc}")
        for j in range(5):
            a(f"v_cvt_pk_bf16_f32 v{PK[t]+j}, v{E+2*j}, v{E+2*j+1}")
        for j in range(5):
            a(f"v_dot2c_f32_bf16 v{chk}, 0, v{PK[t]+j}")
    a("s_nop 2")
    a(f"v_cmp_nge_f32 s[36:37], v{R+2}, s34")
    a(f"v_cmp_nle_f32 vcc, v{R+2}, s35")
    a(f"v_cmp_nge_f32 s[38:39], v{R+5}, s34")
    a("s_or_b64 s[36:37], s[36:37], vcc")
    a(f"v_cmp_nle_f32 vcc, v{R+5}, s35")
    a("s_or_b64 s[36:37], s[36:37], s[38:39]")
    a("s_or_b64 s[36:37], s[36:37], vcc")
    a("s_cbranch_scc0 L_store")
    a("s_cmp_eq_u32 s33, 0")
    a("s_cbranch_scc1 L_slow")
    a.lab("L_store")
    a(f"buffer_store_dwordx4 {vr(PK['A'],4)}, v{vQo}, s[20:23], 0 offen")
    a(f"buffer_store_dwordx4 {vr(PK['B'],4)}, v{vQo}, s[20:23], 0 offen offset:1152")
    a("s_mov_b32 exec_lo, 0")
    a(f"buffer_store_dword v{PK['A']+4}, v{vQo}, s[20:23], 0 offen offset:16")
    a(f"buffer_store_dword v{PK['B']+4}, v{vQo}, s[20:23], 0 offen offset:1168")
    if opt.stamp:
        a("s_mov_b64 exec, 1")
        a("s_memtime s[52:53]")
        a("s_waitcnt vmcnt(0)")
        a("s_memtime s[54:55]")
        a("s_memrealtime s[58:59]")
        a("s_waitcnt lgkmcnt(0)")
        for i, sr in enumerate((42, 44, 46, 48, 50, 52, 54, 56, 58)):
            a(f"v_mov_b32 v{16+i}, s{sr}")
        a("s_getreg_b32 s60, hwreg(HW_REG_HW_ID)")
        a("s_getreg_b32 s61, hwreg(HW_REG_XCC_ID)")
        a("v_mov_b32 v25, s60"); a("v_mov_b32 v26, s61"); a("v_mov_b32 v27, 0")
        a("s_lshl_b32 s60, s2, 3"); a("s_add_u32 s60, s60, s24"); a("s_lshl_b32 s60, s60, 6")
        a("v_mov_b32 v1, s60")
        a("global_store_dwordx4 v1, v[16:19], s[40:41]")
        a("global_store_dwordx4 v1, v[20:23], s[40:41] offset:16")
        a("global_store_dwordx4 v1, v[24:27], s[40:41] offset:32")
    a.lab("L_end")
    a("s_endpgm")
    a.lab("L_slow")
    mA, mB = vT0, vT1
    def rewind():
        a(f"v_subrev_u32 v{vK}, {HB}, v{vK}")
        a(f"v_mul_u32_u24 v{vT2}, {NIT}, v{vVinc}")
        a(f"v_sub_u32 v{vV}, v{vV}, v{vT2}")
        a("s_mov_b32 s29, 0")
    def scores(u):
        for f in rd_kx(u) + rd_k('E', u) + rd_k('O', u): a(f)
        a("s_waitcnt lgkmcnt(0)")
        a(mf_x('E')); a(mf_x('O'))
        a("s_nop 15"); a("s_nop 3")
        for par in 'EO':
            for t in 'AB': a(mf_q(t, par))
        a("s_nop 15")
    def step(lab):
        a(f"v_add_u32 v{vK}, {U*ST}, v{vK}")
        a(f"v_add_u32 v{vV}, v{vVinc}, v{vV}")
        a("s_add_u32 s29, s29, 1")
        a(f"s_cmp_lg_u32 s29, {NIT}")
        a(f"s_cbranch_scc1 {lab}")
    a("s_waitcnt lgkmcnt(0)")
    rewind()
    a(f"v_mov_b32 v{mA}, 0xff800000"); a(f"v_mov_b32 v{mB}, 0xff800000")
    a.lab("L_max")
    for u in range(U):
        scores(u)
        for par in 'EO':
            for t, m in (('A', mA), ('B', mB)):
                s = Sr[par] + (16 if t == 'B' else 0)
                for j in range(0, 16, 2): a(f"v_max3_f32 v{m}, v{m}, v{s+j}, v{s+j+1}")
    step("L_max")
    for m in (mA, mB):
        a(f"v_mov_b32 v{vT2}, v{m}")
        a("s_nop 1")
        a(f"v_permlane32_swap_b32 v{vT2}, v{m}")
        a("s_nop 1")
        a(f"v_max_f32 v{m}, v{m}, v{vT2}")
    rewind()
    for r in range(120, 184): a(f"v_mov_b32 v{r}, 0")
    a.lab("L_acc")
    for u in range(U):
        for par in 'EO':
            for j in range(2):
                for f in rd_v(par, j, u): a(f)
        scores(u)
        for par in 'EO':
            for t, m in (('A', mA), ('B', mB)):
                s = Sr[par] + (16 if t == 'B' else 0)
                for j in range(16): a(f"v_sub_f32 v{s+j}, v{s+j}, v{m}")
                for j in range(16): a(f"v_exp_f32 v{s+j}, v{s+j}")
        a("s_nop 1")
        for par in 'EO':
            for t in 'AB':
                for j in range(2): a(mf_pv(t, par, j))
    step("L_acc")
    a("s_nop 15")
    a("s_mov_b32 s33, 1")
    a("s_branch L_epi")
    a.raw(f""".section .rodata,"a"
.p2align 6
.amdhsa_kernel {NAME}_kernel
  .amdhsa_next_free_vgpr {NV}
  .amdhsa_next_free_sgpr 64
  .amdhsa_accum_offset {NV}
  .amdhsa_group_segment_fixed_size 0
  .amdhsa_kernarg_size 48
  .amdhsa_user_sgpr_count 2
  .amdhsa_user_sgpr_kernarg_segment_ptr 1
  .amdhsa_system_sgpr_workgroup_id_x 1
.end_amdhsa_kernel""")
    return a.text()

def parse(argv):
    p = argparse.ArgumentParser()
    p.add_argument('-o', default=f"cdna_kernels/{NAME}.s")
    p.add_argument('--U', type=int, default=2)
    p.add_argument('--place', default='pre')
    p.add_argument('--npre', type=int, default=6)
    p.add_argument('--per', type=int, default=4)
    p.add_argument('--b1', type=int, default=1)
    p.add_argument('--b2', type=int, default=4)
    p.add_argument('--prio', type=int, default=0)
    p.add_argument('--swit', type=int, default=13)
    p.add_argument('--stamp', type=int, default=0)
    return p.parse_args(argv)

if __name__ == '__main__':
    opt = parse(sys.argv[1:])
    open(opt.o, 'w').write(gen(opt))
```

```python
import sys, struct, math, argparse

NAME = "standalone__fused_io_aware_attn__prompt"
HB = 73728
ST = 2304
VBASE = HB
CBASE = 2 * HB

def f2u(x): return struct.unpack('<I', struct.pack('<f', x))[0]
CSCALE = f2u(math.log2(math.e) / math.sqrt(18.0))

vK, vV, vVinc, vIdx, vQo, vT0, vT1 = 1, 2, 3, 4, 5, 6, 7
KX = 8
QX = {'E': 10, 'O': 12}
vDma = 14
vT2 = 15
Kr = {'E': 16, 'O': 20}
Qr = {('A', 'E'): 24, ('B', 'E'): 28, ('A', 'O'): 32, ('B', 'O'): 36}
Vr = {('E', 0): 40, ('E', 1): 44, ('O', 0): 48, ('O', 1): 52}
Sr = {'E': 56, 'O': 88}
Or = {('A', 'E'): 120, ('B', 'E'): 136, ('A', 'O'): 152, ('B', 'O'): 168}
NV = 184

def vr(b, n): return f"v[{b}:{b+n-1}]"

class Asm:
    def __init__(self): self.l = []
    def __call__(self, s): self.l.append("    " + s)
    def lab(self, s): self.l.append(s + ":")
    def raw(self, s): self.l.append(s)
    def text(self): return "\n".join(self.l) + "\n"

def mf_x(par):
    return f"v_mfma_f32_32x32x4_2b_bf16 {vr(Sr[par],32)}, {vr(KX,2)}, {vr(QX[par],2)}, 0 cbsz:1 abid:0"
def mf_q(t, par):
    s = Sr[par] + (16 if t == 'B' else 0)
    return f"v_mfma_f32_32x32x16_bf16 {vr(s,16)}, {vr(Kr[par],4)}, {vr(Qr[(t,par)],4)}, {vr(s,16)}"
def mf_pv(t, par, j):
    s = Sr[par] + (16 if t == 'B' else 0) + 8 * j
    return f"v_smfmac_f32_32x32x32_bf16 {vr(Or[(t,par)],16)}, {vr(Vr[(par,j)],4)}, {vr(s,8)}, v{vIdx}"
def ex(par, i): return f"v_exp_f32 v{Sr[par]+i}, v{Sr[par]+i}"
def rd_kx(u): return [f"ds_read_b64 {vr(KX,2)}, v{vK} offset:{u*ST+32}"]
def rd_k(par, u):
    o = u * ST + (40 if par == 'O' else 0)
    return [f"ds_read_b64 {vr(Kr[par],2)}, v{vK} offset:{o}", f"ds_read_b64 {vr(Kr[par]+2,2)}, v{vK} offset:{o+8}"]
def rd_v(par, j, u):
    o = u * ST + (32 if par == 'O' else 0) + 16 * j * 72
    return [f"ds_read_b64_tr_b16 {vr(Vr[(par,j)],2)}, v{vV} offset:{o}", f"ds_read_b64_tr_b16 {vr(Vr[(par,j)]+2,2)}, v{vV} offset:{o+4*72}"]

def phase(a, par, u, opt, extra=None):
    oth = 'O' if par == 'E' else 'E'
    mf = {2: mf_pv('B', oth, 1), 5: mf_x(oth), 13: mf_pv('A', par, 0), 18: mf_pv('A', par, 1),
          21: mf_q('A', oth), 26: mf_pv('B', par, 0), 29: mf_q('B', oth)}
    if par == 'E':
        loads = rd_v('O', 0, u) + rd_v('O', 1, u) + rd_kx(u + 1) + rd_k('E', u + 1)
    else:
        loads = rd_v('E', 0, u + 1) + rd_v('E', 1, u + 1) + rd_k('O', u + 1)
    place = opt.place
    fill = {}
    if place == 'pre':
        groups = [(5, 2), (13, 3), (18, 2)]
        i = 0
        for pos, n in groups:
            fill[pos] = loads[i:i + n]; i += n
        assert i >= len(loads)
    elif place == 'spread':
        poss = [4, 7, 9, 11, 15, 17, 20]
        for p, ld in zip(poss, loads): fill[p] = [ld]
    elif place == 'burst':
        fill[13] = loads
    for i in range(32):
        if i == 2: a("s_waitcnt lgkmcnt(0)")
        for f in fill.get(i, []): a(f)
        if extra and i in extra:
            for f in extra[i]: a(f)
        if i in mf: a(mf[i])
        a(ex(par, i))

def gen(opt):
    U = opt.U
    NIT = 32 // U
    LDS = CBASE + (8192 if U <= 2 else 16384)
    a = Asm()
    a.raw(f"""; Fused attention forward, B=2 H=32 S=2048 D=18, bf16 in/out (generated by gen/gen.py).
; @launch grid=(256,1,1) block=(512,1,1) lds={LDS}
.amdgcn_target "amdgcn-amd-amdhsa--gfx950"
.text
.globl {NAME}_kernel
.p2align 8
.type {NAME}_kernel,@function
{NAME}_kernel:""")
    a("s_cmp_ge_u32 s2, 256")
    a("s_cbranch_scc1 L_end")
    a("s_load_dwordx4 s[4:7], s[0:1], 0")
    a("s_load_dwordx4 s[8:11], s[0:1], 16")
    if opt.stamp:
        a("s_load_dwordx2 s[40:41], s[0:1], 40")
        a("s_memtime s[42:43]")
        a("s_memrealtime s[56:57]")
    a(f"v_lshrrev_b32 v{vT0}, 6, v0")
    a(f"v_lshlrev_b32 v{vT2}, 4, v0")
    a(f"v_readfirstlane_b32 s24, v{vT0}")
    a("v_and_b32 v0, 63, v0")
    a("s_and_b32 s25, s2, 7")
    a("s_lshl_b32 s25, s25, 3")
    a("s_lshr_b32 s26, s2, 5")
    a("s_add_u32 s25, s25, s26")
    a(f"s_mul_i32 s25, s25, {HB}")
    a("s_bfe_u32 s26, s2, 0x20003")
    a("s_lshl_b32 s26, s26, 3")
    a("s_add_u32 s26, s26, s24")
    a(f"s_mul_i32 s26, s26, {ST}")
    a("s_add_u32 s26, s26, s25")
    a(f"v_lshlrev_b32 v{vDma}, 4, v0")
    a("s_and_b32 s27, s24, 3")
    a("s_lshl_b32 s27, s27, 10")
    a(f"s_mov_b32 s18, {HB}")
    a("s_mov_b32 s19, 0x00020000")
    a(f"s_mov_b32 s14, {ST}")
    a("s_mov_b32 s15, 0x00020000")
    a(f"s_mov_b32 s22, {ST}")
    a("s_mov_b32 s23, 0x00020000")
    a(f"v_and_b32 v{vT0}, 31, v0")
    a(f"v_lshrrev_b32 v{vT1}, 5, v0")
    a(f"v_mul_u32_u24 v{vQo}, 36, v{vT0}")
    a(f"v_lshl_add_u32 v{vQo}, v{vT1}, 4, v{vQo}")
    a(f"v_mul_u32_u24 v{vV}, 36, v0")
    a("s_cmp_ge_u32 s24, 4")
    a(f"s_cselect_b32 s28, {VBASE}, 0")
    a("s_waitcnt lgkmcnt(0)")
    a("s_cselect_b32 s16, s8, s6")
    a("s_cselect_b32 s17, s9, s7")
    a("s_add_u32 s16, s16, s25")
    a("s_addc_u32 s17, s17, 0")
    a("s_add_u32 s28, s28, s27")
    a("s_mov_b32 m0, s28")
    a("s_add_u32 s12, s4, s26")
    a("s_addc_u32 s13, s5, 0")
    def dma():
        a(f"buffer_load_dwordx4 v{vDma}, s[16:19], s27 offen lds")
        a("s_add_u32 m0, m0, 4096")
        a("s_add_u32 s27, s27, 4096")
    T = Sr['E']
    dma()
    a(f"buffer_load_dwordx4 {vr(T,4)}, v{vQo}, s[12:15], 0 offen")
    a(f"buffer_load_dword v{T+4}, v{vQo}, s[12:15], 0 offen offset:16")
    a(f"buffer_load_dwordx4 {vr(T+6,4)}, v{vQo}, s[12:15], 0 offen offset:1152")
    a(f"buffer_load_dword v{T+10}, v{vQo}, s[12:15], 0 offen offset:1168")
    a(f"buffer_load_dword v{T+12}, v{vV}, s[12:15], 0 offen offset:32")
    a(f"buffer_load_dword v{T+13}, v{vV}, s[12:15], 0 offen")
    NPRE = opt.npre
    for r in range(1, NPRE): dma()
    a("s_add_u32 s20, s10, s26")
    a("s_addc_u32 s21, s11, 0")
    C = Sr['O']
    a(f"v_mov_b32 v{C}, 0x3f80"); a(f"v_mov_b32 v{C+1}, 0"); a(f"v_mov_b32 v{C+2}, 0x3f80"); a(f"v_mov_b32 v{C+3}, 0")
    a(f"v_add_u32 v{vT2}, {CBASE}, v{vT2}")
    a(f"ds_write_b128 v{vT2}, {vr(C,4)}")
    if U > 2: a(f"ds_write_b128 v{vT2}, {vr(C,4)} offset:8192")
    a(f"v_mul_u32_u24 v{vK}, 72, v{vT0}")
    a(f"v_lshl_add_u32 v{vK}, v{vT1}, 4, v{vK}")
    t3, t4, t5 = C + 4, C + 5, C + 6
    a(f"v_bfe_u32 v{t3}, v0, 2, 2")
    a(f"v_lshl_add_u32 v{t3}, v{vT1}, 3, v{t3}")
    a(f"v_mul_u32_u24 v{t3}, 72, v{t3}")
    a(f"v_and_b32 v{t4}, 1, v0")
    a(f"v_lshl_add_u32 v{t3}, v{t4}, 4, v{t3}")
    a(f"v_and_b32 v{t4}, 2, v0")
    a(f"v_lshl_add_u32 v{t3}, v{t4}, 2, v{t3}")
    a(f"v_and_b32 v{t4}, 16, v0")
    a(f"v_add_u32 v{t3}, v{t4}, v{t3}")
    a(f"v_add_u32 v{t3}, {VBASE}, v{t3}")
    a(f"v_lshlrev_b32 v{t5}, 6, v{vT1}")
    a(f"v_add_u32 v{t5}, {CBASE+48}, v{t5}")
    a(f"v_and_b32 v{t4}, 18, v0")
    a(f"v_cmp_eq_u32 vcc, 18, v{t4}")
    a(f"v_mov_b32 v{vIdx}, 0xdddd")
    a(f"v_mov_b32 v{t4}, {U*ST}")
    a(f"v_cndmask_b32 v{vVinc}, v{t4}, 0, vcc")
    vVsave = C + 7
    a(f"v_cndmask_b32 v{vVsave}, v{t3}, v{t5}, vcc")
    for r in range(120, 184): a(f"v_mov_b32 v{r}, 0")
    for r in range(Sr['O'] + 24, Sr['O'] + 32): a(f"v_mov_b32 v{r}, 0")
    for r in range(Vr[('O', 1)], Vr[('O', 1)] + 4): a(f"v_mov_b32 v{r}, 0")
    a(f"v_mov_b32 v{QX['E']+1}, 0"); a(f"v_mov_b32 v{QX['O']}, 0")
    a(f"s_mov_b32 s30, {CSCALE:#x}"); a(f"s_mov_b32 s31, {CSCALE:#x}")
    a("s_mov_b32 s29, 0")
    a(f"s_waitcnt vmcnt({NPRE-1})")
    if opt.stamp: a("s_memtime s[44:45]")
    a(f"v_mov_b32 v{vV}, v{vVsave}")
    W = Sr['E'] + 16
    def scale(src, dsts, k):
        w = W + 2 * (k % 4)
        a(f"v_lshlrev_b32 v{w}, 16, v{src}")
        a(f"v_and_b32 v{w+1}, 0xffff0000, v{src}")
        a(f"v_pk_mul_f32 {vr(w,2)}, {vr(w,2)}, s[30:31]")
        for d in dsts: a(f"v_cvt_pk_bf16_f32 v{d}, v{w}, v{w+1}")
    k = 0
    scale(T + 12, [QX['E']], k); k += 1
    scale(T + 13, [QX['O'] + 1], k); k += 1
    for t, base in (('A', T), ('B', T + 6)):
        for j in range(5):
            d = []
            if j < 4: d.append(Qr[(t, 'E')] + j)
            if j > 0: d.append(Qr[(t, 'O')] + j - 1)
            scale(base + j, d, k); k += 1
    a(f"s_waitcnt vmcnt({NPRE-2}) lgkmcnt(0)")
    a("s_barrier")
    if opt.stamp: a("s_memtime s[46:47]"); a("s_waitcnt lgkmcnt(0)")
    if opt.repeat > 1:
        a(f"s_mov_b32 s32, {NIT}")
        a.lab("L_pre")
    for f in rd_kx(0) + rd_k('E', 0) + rd_k('O', 0) + rd_v('E', 0, 0) + rd_v('E', 1, 0): a(f)
    if opt.prio:
        a("s_cmp_ge_u32 s24, 4")
        a("s_cbranch_scc1 L_p1")
        a("s_setprio 2")
        a("s_branch L_p2")
        a.lab("L_p1")
        a("s_setprio 1")
        a.lab("L_p2")
    a("s_waitcnt lgkmcnt(8)")
    a(mf_x('E'))
    a("s_nop 15")
    a("s_waitcnt lgkmcnt(6)")
    a("s_nop 0")
    a(mf_q('A', 'E'))
    a(mf_q('B', 'E'))
    a("s_nop 7")
    a.raw("    .p2align 6")
    a.lab("L_loop")
    b1, b2 = opt.b1, opt.b2
    per = opt.per
    ndma_it = (18 - NPRE + per - 1) // per
    assert (18 - NPRE) % per == 0 and ndma_it <= b2
    a(f"s_cmp_gt_u32 s29, {b2}")
    a("s_cbranch_scc1 L_body")
    a(f"s_cmp_eq_u32 s29, {b1}")
    a("s_cbranch_scc0 L_nb1")
    a(f"s_waitcnt vmcnt({per*min(b1, ndma_it)})")
    a("s_barrier")
    a.lab("L_nb1")
    a(f"s_cmp_eq_u32 s29, {b2}")
    a("s_cbranch_scc0 L_nb2")
    a("s_waitcnt vmcnt(0)")
    a("s_barrier")
    if opt.stamp: a("s_memtime s[48:49]"); a("s_waitcnt lgkmcnt(0)")
    a.lab("L_nb2")
    a(f"s_cmp_ge_u32 s29, {ndma_it}")
    a("s_cbranch_scc1 L_body")
    for r in range(per): dma()
    a.lab("L_body")
    for u in range(U):
        phase(a, 'E', u, opt)
        extra = None
        if u == U - 1:
            extra = {21: [f"v_add_u32 v{vK}, {U*ST}, v{vK}", f"v_add_u32 v{vV}, v{vVinc}, v{vV}"],
                     26: ["s_add_u32 s29, s29, 1"]}
            if opt.prio:
                extra[26] += [f"s_cmp_lg_u32 s29, {opt.swit}", "s_cbranch_scc1 L_ns", "s_cmp_ge_u32 s24, 4", "s_cbranch_scc1 L_ns", "s_setprio 0", "L_ns:"]
            extra[29] = [f"s_cmp_lg_u32 s29, {NIT}" if opt.repeat == 1 else "s_cmp_lg_u32 s29, s32"]
        phase(a, 'O', u, opt, extra)
    a("s_cbranch_scc1 L_loop")
    a("s_nop 0")
    a(mf_pv('B', 'O', 1))
    if opt.repeat > 1:
        a(f"s_cmp_eq_u32 s32, {NIT*opt.repeat}")
        a("s_cbranch_scc1 L_fin")
        a(f"s_add_u32 s32, s32, {NIT}")
        a(f"v_subrev_u32 v{vK}, {HB}, v{vK}")
        a(f"v_mul_u32_u24 v{vT2}, {NIT}, v{vVinc}")
        a(f"v_sub_u32 v{vV}, v{vV}, v{vT2}")
        a("s_waitcnt lgkmcnt(0)")
        for r in range(Vr[('O', 1)], Vr[('O', 1)] + 4): a(f"v_mov_b32 v{r}, 0")
        a("s_nop 15")
        a("s_branch L_pre")
        a.lab("L_fin")
    a("s_mov_b32 s33, 0")
    if opt.stamp: a("s_memtime s[50:51]")
    a.lab("L_epi")
    R = Sr['E']
    a("s_mov_b32 s34, 0x30800000")
    a("s_mov_b32 s35, 0x6c800000")
    PK = {'A': Sr['O'], 'B': Sr['O'] + 8}
    for t in ('A', 'B'):
        E, O = Or[(t, 'E')], Or[(t, 'O')]
        l, rc, chk = R, R + 1, R + 2
        if t == 'B': l, rc, chk = R + 3, R + 4, R + 5
        a(f"v_add_f32 v{l}, v{E+12}, v{O+12}")
        a(f"v_rcp_f32 v{rc}, v{l}")
        for j in range(0, 10, 2):
            a(f"v_pk_add_f32 {vr(E+j,2)}, {vr(E+j,2)}, {vr(O+j+2,2)}")
        a(f"v_mov_b32 v{chk}, v{l}")
        for j in range(0, 10):
            a(f"v_mul_f32 v{E+j}, v{E+j}, v{rc}")
        for j in range(5):
            a(f"v_cvt_pk_bf16_f32 v{PK[t]+j}, v{E+2*j}, v{E+2*j+1}")
        for j in range(5):
            a(f"v_dot2c_f32_bf16 v{chk}, 0, v{PK[t]+j}")
    a("s_nop 2")
    a(f"v_cmp_nge_f32 s[36:37], v{R+2}, s34")
    a(f"v_cmp_nle_f32 vcc, v{R+2}, s35")
    a(f"v_cmp_nge_f32 s[38:39], v{R+5}, s34")
    a("s_or_b64 s[36:37], s[36:37], vcc")
    a(f"v_cmp_nle_f32 vcc, v{R+5}, s35")
    a("s_or_b64 s[36:37], s[36:37], s[38:39]")
    a("s_or_b64 s[36:37], s[36:37], vcc")
    a("s_cbranch_scc0 L_store")
    a("s_cmp_eq_u32 s33, 0")
    a("s_cbranch_scc1 L_slow")
    a.lab("L_store")
    a(f"buffer_store_dwordx4 {vr(PK['A'],4)}, v{vQo}, s[20:23], 0 offen")
    a(f"buffer_store_dwordx4 {vr(PK['B'],4)}, v{vQo}, s[20:23], 0 offen offset:1152")
    a("s_mov_b32 exec_lo, 0")
    a(f"buffer_store_dword v{PK['A']+4}, v{vQo}, s[20:23], 0 offen offset:16")
    a(f"buffer_store_dword v{PK['B']+4}, v{vQo}, s[20:23], 0 offen offset:1168")
    if opt.stamp:
        a("s_mov_b64 exec, 1")
        a("s_memtime s[52:53]")
        a("s_waitcnt vmcnt(0)")
        a("s_memtime s[54:55]")
        a("s_memrealtime s[58:59]")
        a("s_waitcnt lgkmcnt(0)")
        for i, sr in enumerate((42, 44, 46, 48, 50, 52, 54, 56, 58)):
            a(f"v_mov_b32 v{16+i}, s{sr}")
        a("s_getreg_b32 s60, hwreg(HW_REG_HW_ID)")
        a("s_getreg_b32 s61, hwreg(HW_REG_XCC_ID)")
        a("v_mov_b32 v25, s60"); a("v_mov_b32 v26, s61"); a("v_mov_b32 v27, 0")
        a("s_lshl_b32 s60, s2, 3"); a("s_add_u32 s60, s60, s24"); a("s_lshl_b32 s60, s60, 6")
        a("v_mov_b32 v1, s60")
        a("global_store_dwordx4 v1, v[16:19], s[40:41]")
        a("global_store_dwordx4 v1, v[20:23], s[40:41] offset:16")
        a("global_store_dwordx4 v1, v[24:27], s[40:41] offset:32")
    a.lab("L_end")
    a("s_endpgm")
    a.lab("L_slow")
    mA, mB = vT0, vT1
    def rewind():
        a(f"v_subrev_u32 v{vK}, {HB}, v{vK}")
        a(f"v_mul_u32_u24 v{vT2}, {NIT}, v{vVinc}")
        a(f"v_sub_u32 v{vV}, v{vV}, v{vT2}")
        a("s_mov_b32 s29, 0")
    def scores(u):
        for f in rd_kx(u) + rd_k('E', u) + rd_k('O', u): a(f)
        a("s_waitcnt lgkmcnt(0)")
        a(mf_x('E')); a(mf_x('O'))
        a("s_nop 15"); a("s_nop 3")
        for par in 'EO':
            for t in 'AB': a(mf_q(t, par))
        a("s_nop 15")
    def step(lab):
        a(f"v_add_u32 v{vK}, {U*ST}, v{vK}")
        a(f"v_add_u32 v{vV}, v{vVinc}, v{vV}")
        a("s_add_u32 s29, s29, 1")
        a(f"s_cmp_lg_u32 s29, {NIT}")
        a(f"s_cbranch_scc1 {lab}")
    a("s_waitcnt lgkmcnt(0)")
    rewind()
    a(f"v_mov_b32 v{mA}, 0xff800000"); a(f"v_mov_b32 v{mB}, 0xff800000")
    a.lab("L_max")
    for u in range(U):
        scores(u)
        for par in 'EO':
            for t, m in (('A', mA), ('B', mB)):
                s = Sr[par] + (16 if t == 'B' else 0)
                for j in range(0, 16, 2): a(f"v_max3_f32 v{m}, v{m}, v{s+j}, v{s+j+1}")
    step("L_max")
    for m in (mA, mB):
        a(f"v_mov_b32 v{vT2}, v{m}")
        a("s_nop 1")
        a(f"v_permlane32_swap_b32 v{vT2}, v{m}")
        a("s_nop 1")
        a(f"v_max_f32 v{m}, v{m}, v{vT2}")
    rewind()
    for r in range(120, 184): a(f"v_mov_b32 v{r}, 0")
    a.lab("L_acc")
    for u in range(U):
        for par in 'EO':
            for j in range(2):
                for f in rd_v(par, j, u): a(f)
        scores(u)
        for par in 'EO':
            for t, m in (('A', mA), ('B', mB)):
                s = Sr[par] + (16 if t == 'B' else 0)
                for j in range(16): a(f"v_sub_f32 v{s+j}, v{s+j}, v{m}")
                for j in range(16): a(f"v_exp_f32 v{s+j}, v{s+j}")
        a("s_nop 1")
        for par in 'EO':
            for t in 'AB':
                for j in range(2): a(mf_pv(t, par, j))
    step("L_acc")
    a("s_nop 15")
    a("s_mov_b32 s33, 1")
    a("s_branch L_epi")
    a.raw(f""".section .rodata,"a"
.p2align 6
.amdhsa_kernel {NAME}_kernel
  .amdhsa_next_free_vgpr {NV}
  .amdhsa_next_free_sgpr 64
  .amdhsa_accum_offset {NV}
  .amdhsa_group_segment_fixed_size 0
  .amdhsa_kernarg_size 48
  .amdhsa_user_sgpr_count 2
  .amdhsa_user_sgpr_kernarg_segment_ptr 1
  .amdhsa_system_sgpr_workgroup_id_x 1
.end_amdhsa_kernel""")
    return a.text()

def parse(argv):
    p = argparse.ArgumentParser()
    p.add_argument('-o', default=f"cdna_kernels/{NAME}.s")
    p.add_argument('--U', type=int, default=2)
    p.add_argument('--place', default='pre')
    p.add_argument('--npre', type=int, default=6)
    p.add_argument('--per', type=int, default=4)
    p.add_argument('--b1', type=int, default=1)
    p.add_argument('--b2', type=int, default=4)
    p.add_argument('--prio', type=int, default=0)
    p.add_argument('--swit', type=int, default=13)
    p.add_argument('--stamp', type=int, default=0)
    p.add_argument('--repeat', type=int, default=1)
    return p.parse_args(argv)

if __name__ == '__main__':
    opt = parse(sys.argv[1:])
    open(opt.o, 'w').write(gen(opt))
```

```python
import sys, struct, math, argparse

NAME = "standalone__fused_io_aware_attn__prompt"
HB = 73728
ST = 2304
VBASE = HB
CBASE = 2 * HB
ABASE = CBASE + 4096
LDS = ABASE + 4096

def f2u(x): return struct.unpack('<I', struct.pack('<f', x))[0]
CSCALE = f2u(math.log2(math.e) / math.sqrt(18.0))

vK, vV = 2, 3
vIncK, vIncV = 4, 5
vSlot, vIdx, vQo, vDma = 1, 6, 7, 14
vT2 = 15
KX = 8
QX = {'E': 10, 'O': 12}
Kr = {'E': 16, 'O': 20}
Qr = {('A', 'E'): 24, ('B', 'E'): 28, ('A', 'O'): 32, ('B', 'O'): 36}
Vr = {('E', 0): 40, ('E', 1): 44, ('O', 0): 48, ('O', 1): 52}
Sr = {'E': 56, 'O': 88}
Or = {('A', 'E'): 120, ('B', 'E'): 136, ('A', 'O'): 152, ('B', 'O'): 168}
NV = 184

def vr(b, n): return f"v[{b}:{b+n-1}]"

class Asm:
    def __init__(self): self.l = []
    def __call__(self, s): self.l.append("    " + s)
    def lab(self, s): self.l.append(s + ":")
    def raw(self, s): self.l.append(s)
    def text(self): return "\n".join(self.l) + "\n"

def mf_x(par):
    return f"v_mfma_f32_32x32x4_2b_bf16 {vr(Sr[par],32)}, {vr(KX,2)}, {vr(QX[par],2)}, 0 cbsz:1 abid:0"
def mf_q(t, par):
    s = Sr[par] + (16 if t == 'B' else 0)
    return f"v_mfma_f32_32x32x16_bf16 {vr(s,16)}, {vr(Kr[par],4)}, {vr(Qr[(t,par)],4)}, {vr(s,16)}"
def mf_pv(t, par, j):
    s = Sr[par] + (16 if t == 'B' else 0) + 8 * j
    return f"v_smfmac_f32_32x32x32_bf16 {vr(Or[(t,par)],16)}, {vr(Vr[(par,j)],4)}, {vr(s,8)}, v{vIdx}"
def ex(par, i): return f"v_exp_f32 v{Sr[par]+i}, v{Sr[par]+i}"
def rd_kx(u): return [f"ds_read_b64 {vr(KX,2)}, v{vK} offset:{u*ST+32}"]
def rd_k(par, u):
    o = u * ST + (40 if par == 'O' else 0)
    return [f"ds_read_b64 {vr(Kr[par],2)}, v{vK} offset:{o}", f"ds_read_b64 {vr(Kr[par]+2,2)}, v{vK} offset:{o+8}"]
def rd_v(par, j, u):
    o = u * ST + (32 if par == 'O' else 0) + 16 * j * 72
    return [f"ds_read_b64_tr_b16 {vr(Vr[(par,j)],2)}, v{vV} offset:{o}", f"ds_read_b64_tr_b16 {vr(Vr[(par,j)]+2,2)}, v{vV} offset:{o+4*72}"]

def phase_list(par, opt, look=True):
    oth = 'O' if par == 'E' else 'E'
    pos = [int(x) for x in opt.pos.split(',')]
    mf = {pos[0]: mf_pv('B', oth, 1), pos[2]: mf_pv('A', par, 0), pos[3]: mf_pv('A', par, 1), pos[5]: mf_pv('B', par, 0)}
    if look:
        mf.update({pos[1]: mf_x(oth), pos[4]: mf_q('A', oth), pos[6]: mf_q('B', oth)})
    out = []
    for i in range(32):
        if i in mf:
            m = mf[i]
            if not (('smfmac' in m and 'p' in opt.drop) or ('x16_bf16' in m and 'q' in opt.drop) or ('2b' in m and 'x' in opt.drop)):
                out.append((i, 'm', m))
        out.append((i, 'e', ex(par, i)))
    return out

def gen(opt):
    a = Asm()
    nst = [0]
    def stamp(i):
        if opt.stamp: a(f"s_memtime s[{60+2*i}:{61+2*i}]")
    a.raw(f"""; Fused attention forward, B=2 H=32 S=2048 D=18, bf16 in/out (written by my generator gen/gen2.py).
; S^T = K.Q^T (32x32x16 + 32x32x4_2b MFMA, log2(e)/sqrt(18) folded into Q), P = exp2(S^T) in fp32,
; @launch grid=(256,1,1) block=(512,1,1) lds={LDS}
.amdgcn_target "amdgcn-amd-amdhsa--gfx950"
.text
.globl {NAME}_kernel
.p2align 8
.type {NAME}_kernel,@function
{NAME}_kernel:""")
    a("s_load_dwordx4 s[4:7], s[0:1], 0")
    a("s_load_dwordx4 s[8:11], s[0:1], 16")
    if opt.stamp:
        a("s_load_dwordx2 s[40:41], s[0:1], 40")
        a("s_memrealtime s[56:57]")
    stamp(0)
    a("s_cmp_ge_u32 s2, 256")
    a("s_cbranch_scc1 L_end")
    t0, t1 = Sr['O'] + 8, Sr['O'] + 9
    a(f"v_lshrrev_b32 v{t0}, 6, v0")
    a(f"v_lshlrev_b32 v{vSlot}, 3, v0")
    a(f"v_readfirstlane_b32 s24, v{t0}")
    a("v_and_b32 v0, 63, v0")
    a("s_and_b32 s25, s2, 7")
    a("s_lshl_b32 s25, s25, 3")
    a("s_lshr_b32 s26, s2, 5")
    a("s_add_u32 s25, s25, s26")
    a(f"s_mul_i32 s25, s25, {HB}")
    a("s_bfe_u32 s26, s2, 0x20003")
    a("s_lshl3_add_u32 s26, s26, s24")
    a(f"s_mul_i32 s26, s26, {ST}")
    a("s_add_u32 s26, s26, s25")
    a(f"v_lshlrev_b32 v{vDma}, 4, v0")
    a("s_and_b32 s27, s24, 3")
    a("s_lshl_b32 s27, s27, 10")
    a(f"s_mov_b32 s18, {HB}")
    a("s_mov_b32 s19, 0x00020000")
    a(f"s_movk_i32 s14, {ST}")
    a("s_mov_b32 s15, 0x00020000")
    a(f"v_and_b32 v{t0}, 31, v0")
    a(f"v_lshrrev_b32 v{t1}, 5, v0")
    a(f"v_mul_u32_u24 v{vQo}, 36, v{t0}")
    a(f"v_lshl_add_u32 v{vQo}, v{t1}, 4, v{vQo}")
    a("s_cmp_ge_u32 s24, 4")
    a(f"s_cselect_b32 s28, {VBASE}, 0")
    a("s_add_u32 m0, s28, s27")
    a("s_cmp_ge_u32 s24, 4")
    a("s_waitcnt lgkmcnt(0)")
    stamp(1)
    a("s_cselect_b32 s16, s8, s6")
    a("s_cselect_b32 s17, s9, s7")
    a("s_add_u32 s16, s16, s25")
    a("s_addc_u32 s17, s17, 0")
    def dma():
        a(f"buffer_load_dwordx4 v{vDma}, s[16:19], s27 offen lds")
        a("s_add_u32 m0, m0, 4096")
        a("s_add_u32 s27, s27, 4096")
    T = Sr['E']
    R0 = opt.r0
    for r in range(R0): dma()
    a("s_add_u32 s12, s4, s26")
    a("s_addc_u32 s13, s5, 0")
    a(f"buffer_load_dwordx4 {vr(T,4)}, v{vQo}, s[12:15], 0 offen")
    a(f"buffer_load_dwordx4 {vr(T+6,4)}, v{vQo}, s[12:15], 0 offen offset:1152")
    a(f"buffer_load_dword v{T+4}, v{vQo}, s[12:15], 0 offen offset:16")
    a(f"buffer_load_dword v{T+10}, v{vQo}, s[12:15], 0 offen offset:1168")
    a("s_add_u32 s20, s10, s26")
    a("s_addc_u32 s21, s11, 0")
    a(f"s_movk_i32 s22, {ST}")
    a("s_mov_b32 s23, 0x00020000")
    C = Sr['O']
    a(f"v_and_b32 v{C}, 1, v0")
    a(f"v_subrev_u32 v{C}, 1, v{C}")
    a(f"v_and_b32 v{C}, 0x3f80, v{C}")
    a(f"v_mov_b32 v{C+1}, 0")
    a(f"v_add_u32 v{vSlot}, {CBASE}, v{vSlot}")
    a(f"ds_write_b64 v{vSlot}, {vr(C,2)}")
    a(f"v_mov_b32 v{QX['E']}, 0"); a(f"v_mov_b32 v{QX['E']+1}, 0"); a(f"v_mov_b32 v{QX['O']}, 0")
    a(f"v_mul_u32_u24 v{vK}, 72, v{t0}")
    a(f"v_lshl_add_u32 v{vK}, v{t1}, 4, v{vK}")
    a(f"v_mfma_f32_32x32x4_2b_bf16 {vr(120,32)}, {vr(QX['E'],2)}, {vr(QX['E'],2)}, 0")
    a(f"v_mfma_f32_32x32x4_2b_bf16 {vr(152,32)}, {vr(QX['E'],2)}, {vr(QX['E'],2)}, 0")
    t3, t4, t5 = C + 4, C + 5, C + 6
    a(f"v_bfe_u32 v{t3}, v0, 2, 2")
    a(f"v_lshl_add_u32 v{t3}, v{t1}, 3, v{t3}")
    a(f"v_mul_u32_u24 v{t3}, 72, v{t3}")
    a(f"v_and_b32 v{t4}, 1, v0")
    a(f"v_lshl_add_u32 v{t3}, v{t4}, 4, v{t3}")
    a(f"v_and_b32 v{t4}, 2, v0")
    a(f"v_lshl_add_u32 v{t3}, v{t4}, 2, v{t3}")
    a(f"v_lshlrev_b32 v{t5}, 6, v{t1}")
    a(f"v_lshlrev_b32 v{t4}, 2, v{t4}")
    a(f"v_sub_u32 v{t5}, v{t5}, v{t4}")
    a(f"v_add_u32 v{t5}, {CBASE+56}, v{t5}")
    a(f"v_and_b32 v{t4}, 16, v0")
    a(f"v_add3_u32 v{t3}, v{t4}, v{t3}, s18")
    if opt.dup:
        a("s_mov_b32 vcc_lo, 0xcccc0000"); a("s_mov_b32 vcc_hi, 0xcccc0000")
    else:
        a("s_mov_b32 vcc_lo, 0xdddd0000"); a("s_mov_b32 vcc_hi, 0xdddd0000")
    a(f"v_mov_b32 v{vIdx}, 0xdddd")
    a(f"v_mov_b32 v{vIncK}, {ST}")
    a(f"v_cndmask_b32 v{vIncV}, v{vIncK}, 0, vcc")
    a(f"v_cndmask_b32 v{vV}, v{t3}, v{t5}, vcc")
    a(f"v_add_u32 v{C+2}, v{vK}, v{vIncK}")
    a(f"v_add_u32 v{C+3}, v{vV}, v{vIncV}")
    a(f"ds_write_b64 v{vSlot}, {vr(C+2,2)} offset:4096")
    a(f"s_mov_b32 s30, {CSCALE:#x}"); a(f"s_mov_b32 s31, {CSCALE:#x}")
    a("s_mov_b32 s29, 0")
    a("s_waitcnt vmcnt(4) lgkmcnt(0)")
    stamp(2)
    a("s_barrier")
    for f in rd_kx(0) + rd_k('E', 0) + rd_k('O', 0) + rd_v('E', 0, 0) + rd_v('E', 1, 0): a(f)
    a("s_setprio 3")
    stamp(3)
    W = Sr['E'] + 16
    def scale(src, dsts, k):
        w = W + 2 * (k % 4)
        a(f"v_lshlrev_b32 v{w}, 16, v{src}")
        a(f"v_and_b32 v{w+1}, 0xffff0000, v{src}")
        a(f"v_pk_mul_f32 {vr(w,2)}, {vr(w,2)}, s[30:31]")
        for d in dsts: a(f"v_cvt_pk_bf16_f32 v{d}, v{w}, v{w+1}")
    a("s_waitcnt vmcnt(0)")
    stamp(4)
    xa, xb = C + 4, C + 5
    scale(T + 4, [xa, Qr[('A', 'O')] + 3], 0)
    scale(T + 10, [QX['E'], Qr[('B', 'O')] + 3], 1)
    scale(T + 0, [Qr[('A', 'E')], QX['O'] + 1], 2)
    a(f"v_permlane32_swap_b32 v{xa}, v{QX['E']}")
    scale(T + 6, [xb, Qr[('B', 'E')]], 3)
    k = 0
    for j in range(1, 4):
        for t, base in (('A', T), ('B', T + 6)):
            scale(base + j, [Qr[(t, 'E')] + j, Qr[(t, 'O')] + j - 1], k); k += 1
    a(f"v_permlane32_swap_b32 v{QX['O']+1}, v{xb}")
    a("s_waitcnt lgkmcnt(0)")
    a(mf_x('E'))
    a("s_nop 15")
    a("s_cmp_ge_u32 s24, 4")
    a("s_nop 0")
    a(mf_q('A', 'E'))
    a(mf_q('B', 'E'))
    a("s_cbranch_scc1 L_startB")
    pE, pO, pT = phase_list('E', opt), phase_list('O', opt), phase_list('O', opt, look=False)
    cut = opt.cut
    pos0 = int(opt.pos.split(',')[0])
    assert cut > pos0
    per, b1, b2 = opt.per, opt.b1, opt.b2
    nd = (18 - R0) // per
    assert (18 - R0) % per == 0
    for role in 'AB':
        if role == 'B': a.lab("L_startB")
        if role == 'A':
            a("s_setprio 2")
            a("s_nop 8")
        else:
            a("s_setprio 1")
            for r in range(per): dma()
        stamp(5)
        for i in range(pos0): a(ex('E', i))
        a(f"s_branch L_entry{role}")
        a.raw("    .p2align 6")
        a.lab(f"L_top{role}")
        if role == 'A':
            a(f"s_cmp_lg_u32 s29, {b1}")
            a("s_cbranch_scc1 L_nb1A")
            a(f"s_waitcnt vmcnt({per*(min(b1-1, nd)-1)})")
            a("s_barrier")
            a.lab("L_nb1A")
            a(f"s_cmp_lg_u32 s29, {b2}")
            a("s_cbranch_scc1 L_nb2A")
            a("s_waitcnt vmcnt(0)")
            a("s_barrier")
            a.lab("L_nb2A")
        for f in rd_kx(1) + rd_v('O', 0, 0) + rd_k('E', 1) + rd_v('O', 1, 0) + rd_v('E', 0, 1) + rd_v('E', 1, 1) + rd_k('O', 1): a(f)
        a(f"ds_add_rtn_u64 {vr(vK,2)}, v{vSlot}, {vr(vIncK,2)} offset:4096")
        if opt.stamp == 2:
            a("s_memtime s[80:81]"); a("s_memrealtime s[82:83]")
        a(f"s_cmp_gt_u32 s29, {nd if role == 'A' else nd-1}")
        a(f"s_cbranch_scc1 L_nd{role}")
        for r in range(per): dma()
        a.lab(f"L_nd{role}")
        if role == 'B':
            a(f"s_cmp_lg_u32 s29, {b1-1}")
            a("s_cbranch_scc1 L_nb1B")
            a(f"s_waitcnt vmcnt({per*min(b1-1, nd-1)})")
            a("s_barrier")
            a.lab("L_nb1B")
            a(f"s_cmp_lg_u32 s29, {b2-1}")
            a("s_cbranch_scc1 L_nb2B")
            a("s_waitcnt vmcnt(0)")
            a("s_barrier")
            a.lab("L_nb2B")
        a("s_waitcnt lgkmcnt(0)")
        if opt.stamp == 2:
            a("s_mov_b32 s84, m0"); a("s_mov_b32 m0, s29")
            a("v_writelane_b32 v184, s80, m0"); a("v_writelane_b32 v185, s82, m0"); a("s_mov_b32 m0, s84")
        first = True
        for (i, k_, s) in pO:
            if i < cut: continue
            a(s)
            if first and role == 'A': a("s_setprio 2")
            first = False
        for (i, k_, s) in pE:
            if i == pos0 and k_ == 'e': a.lab(f"L_entry{role}")
            a(s)
        for (i, k_, s) in pO:
            if i < cut: a(s)
        if role == 'A': a("s_setprio 0")
        a("s_add_u32 s29, s29, 1")
        a("s_cmp_lg_u32 s29, 32")
        a(f"s_cbranch_scc1 L_top{role}")
        if role == 'A': a("s_branch L_tail")
    a.lab("L_tail")
    for f in rd_v('O', 0, 0) + rd_v('O', 1, 0): a(f)
    a("s_mov_b32 s33, 0")
    a("s_mov_b32 s34, 0x30800000")
    a("s_mov_b32 s35, 0x6c800000")
    a("s_waitcnt lgkmcnt(0)")
    first = True
    for (i, k_, s) in pT:
        if i < cut: continue
        a(s)
        if first: a("s_setprio 2")
        first = False
    stamp(6)
    R = Sr['E']
    PK = {'A': Sr['O'], 'B': Sr['O'] + 8}
    for t in ('A', 'B'):
        E, O = Or[(t, 'E')], Or[(t, 'O')]
        l, rc = (R, R + 2) if t == 'A' else (R + 1, R + 4)
        if t == 'A':
            a(f"v_add_f32 v{l}, v{E+12}, v{O+12}")
            a(f"v_rcp_f32 v{rc}, v{l}")
            a(mf_pv('B', 'O', 1))
            a.lab("L_epi")
        else:
            a(f"v_add_f32 v{l}, v{E+12}, v{O+12}")
            a(f"v_rcp_f32 v{rc}, v{l}")
        if not opt.dup:
            a(f"v_permlane32_swap_b32 v{O}, v{O+8}")
            a(f"v_permlane32_swap_b32 v{O+1}, v{O+9}")
        for j in (0, 2, 4, 8, 6):
            a(f"v_pk_add_f32 {vr(E+j,2)}, {vr(E+j,2)}, {vr(O+j+2,2)}")
        for j in range(0, 10, 2):
            a(f"v_pk_mul_f32 {vr(E+j,2)}, {vr(E+j,2)}, {vr(rc,2)} op_sel_hi:[1,0]")
        for j in range(5):
            a(f"v_cvt_pk_bf16_f32 v{PK[t]+j}, v{E+2*j}, v{E+2*j+1}")
        for j in range(5):
            a(f"v_dot2c_f32_bf16 v{l}, 0, v{PK[t]+j}")
    a(f"v_cmp_nge_f32 s[36:37], v{R}, s34")
    a(f"v_cmp_nle_f32 vcc, v{R}, s35")
    a("s_or_b64 s[36:37], s[36:37], vcc")
    a(f"v_cmp_nge_f32 s[38:39], v{R+1}, s34")
    a(f"v_cmp_nle_f32 vcc, v{R+1}, s35")
    a("s_or_b64 s[36:37], s[36:37], s[38:39]")
    a("s_or_b64 s[36:37], s[36:37], vcc")
    if not opt.drop: a("s_cbranch_scc1 L_check")
    a.lab("L_store")
    fl = opt.stfl.replace('_', ' ')
    a(f"buffer_store_dwordx4 {vr(PK['A'],4)}, v{vQo}, s[20:23], 0 offen {fl}")
    a(f"buffer_store_dwordx4 {vr(PK['B'],4)}, v{vQo}, s[20:23], 0 offen offset:1152 {fl}")
    a("s_mov_b32 exec_lo, 0")
    a(f"buffer_store_dword v{PK['A']+4}, v{vQo}, s[20:23], 0 offen offset:16 {fl}")
    a(f"buffer_store_dword v{PK['B']+4}, v{vQo}, s[20:23], 0 offen offset:1168 {fl}")
    if opt.stamp:
        a("s_mov_b64 exec, 1")
        stamp(7)
        a("s_waitcnt vmcnt(0)")
        stamp(8)
        a("s_memrealtime s[58:59]")
        a("s_getreg_b32 s42, hwreg(HW_REG_HW_ID)")
        a("s_getreg_b32 s43, hwreg(HW_REG_XCC_ID)")
        a("s_waitcnt lgkmcnt(0)")
        for i, sr in enumerate((56, 58, 42, 43, 60, 62, 64, 66, 68, 70, 72, 74, 76)):
            a(f"v_mov_b32 v{16+i}, s{sr}")
        a("s_lshl_b32 s44, s2, 3"); a("s_add_u32 s44, s44, s24"); a("s_lshl_b32 s44, s44, 6")
        a("v_mov_b32 v1, s44")
        for i in range(4): a(f"global_store_dwordx4 v1, v[{16+4*i}:{19+4*i}], s[40:41] offset:{16*i}")
        if opt.stamp == 2:
            a("s_mov_b64 exec, -1")
            a("s_lshl_b32 s44, s44, 3"); a("s_add_u32 s44, s44, 0x100000")
            a("v_lshl_add_u32 v1, v0, 3, s44")
            a("global_store_dwordx2 v1, v[184:185], s[40:41]")
    a.lab("L_end")
    a("s_endpgm")
    a.lab("L_check")
    a("s_cmp_lg_u32 s33, 0")
    a("s_cbranch_scc1 L_store")
    mA, mB = vDma, vSlot
    def rewind(n):
        a(f"v_subrev_u32 v{vK}, {n*ST}, v{vK}")
        a(f"v_mul_u32_u24 v{vT2}, {n}, v{vIncV}")
        a(f"v_sub_u32 v{vV}, v{vV}, v{vT2}")
        a("s_mov_b32 s29, 0")
    def scores():
        for f in rd_kx(0) + rd_k('E', 0) + rd_k('O', 0): a(f)
        a("s_waitcnt lgkmcnt(0)")
        a(mf_x('E')); a(mf_x('O'))
        a("s_nop 15"); a("s_nop 3")
        for par in 'EO':
            for t in 'AB': a(mf_q(t, par))
        a("s_nop 15")
    def step(lab):
        a(f"v_add_u32 v{vK}, v{vIncK}, v{vK}")
        a(f"v_add_u32 v{vV}, v{vIncV}, v{vV}")
        a("s_add_u32 s29, s29, 1")
        a("s_cmp_lg_u32 s29, 32")
        a(f"s_cbranch_scc1 {lab}")
    rewind(31)
    a(f"v_mov_b32 v{mA}, 0xff800000"); a(f"v_mov_b32 v{mB}, 0xff800000")
    a.lab("L_max")
    scores()
    for par in 'EO':
        for t, m in (('A', mA), ('B', mB)):
            s = Sr[par] + (16 if t == 'B' else 0)
            for j in range(0, 16, 2): a(f"v_max3_f32 v{m}, v{m}, v{s+j}, v{s+j+1}")
    step("L_max")
    for m in (mA, mB):
        a(f"v_mov_b32 v{vT2}, v{m}")
        a("s_nop 1")
        a(f"v_permlane32_swap_b32 v{vT2}, v{m}")
        a("s_nop 1")
        a(f"v_max_f32 v{m}, v{m}, v{vT2}")
    rewind(32)
    for r in range(120, 184): a(f"v_mov_b32 v{r}, 0")
    a.lab("L_acc")
    for par in 'EO':
        for j in range(2):
            for f in rd_v(par, j, 0): a(f)
    scores()
    for par in 'EO':
        for t, m in (('A', mA), ('B', mB)):
            s = Sr[par] + (16 if t == 'B' else 0)
            for j in range(16): a(f"v_sub_f32 v{s+j}, v{s+j}, v{m}")
            for j in range(16): a(f"v_exp_f32 v{s+j}, v{s+j}")
    a("s_nop 1")
    for par in 'EO':
        for t in 'AB':
            for j in range(2): a(mf_pv(t, par, j))
    step("L_acc")
    a("s_nop 15")
    a("s_mov_b32 s33, 1")
    a(f"v_add_f32 v{R}, v{Or[('A','E')]+12}, v{Or[('A','O')]+12}")
    a(f"v_rcp_f32 v{R+2}, v{R}")
    a("s_branch L_epi")
    nv = 192 if opt.stamp == 2 else NV
    a.raw(f""".section .rodata,"a"
.p2align 6
.amdhsa_kernel {NAME}_kernel
  .amdhsa_next_free_vgpr {nv}
  .amdhsa_next_free_sgpr {90 if opt.stamp else 48}
  .amdhsa_accum_offset {nv}
  .amdhsa_group_segment_fixed_size 0
  .amdhsa_kernarg_size 48
  .amdhsa_user_sgpr_count 2
  .amdhsa_user_sgpr_kernarg_segment_ptr 1
  .amdhsa_system_sgpr_workgroup_id_x 1
.end_amdhsa_kernel""")
    return a.text()

def parse(argv):
    p = argparse.ArgumentParser()
    p.add_argument('-o', default=f"cdna_kernels/{NAME}.s")
    p.add_argument('--r0', type=int, default=2)
    p.add_argument('--per', type=int, default=4)
    p.add_argument('--b1', type=int, default=3)
    p.add_argument('--b2', type=int, default=10)
    p.add_argument('--cut', type=int, default=4)
    p.add_argument('--pos', default='2,5,13,18,21,26,29')
    p.add_argument('--dup', type=int, default=0)
    p.add_argument('--stfl', default='')
    p.add_argument('--stamp', type=int, default=0)
    p.add_argument('--drop', default='')
    return p.parse_args(argv)

if __name__ == '__main__':
    opt = parse(sys.argv[1:])
    open(opt.o, 'w').write(gen(opt))
```

```python
import sys, struct, math, argparse

NAME = "standalone__fused_io_aware_attn__prompt"
HB = 73728
ST = 2304
VBASE = HB
CBASE = 2 * HB
ABASE = CBASE + 4096
LDS = ABASE + 4096

def f2u(x): return struct.unpack('<I', struct.pack('<f', x))[0]
CSCALE = f2u(math.log2(math.e) / math.sqrt(18.0))

vK, vV = 2, 3
vIncK, vIncV = 4, 5
vSlot, vIdx, vQo, vDma = 1, 6, 7, 14
vT2 = 15
KX = 8
QX = {'E': 10, 'O': 12}
Kr = {'E': 16, 'O': 20}
Qr = {('A', 'E'): 24, ('B', 'E'): 28, ('A', 'O'): 32, ('B', 'O'): 36}
Vr = {('E', 0): 40, ('E', 1): 44, ('O', 0): 48, ('O', 1): 52}
Sr = {'E': 56, 'O': 88}
Or = {('A', 'E'): 120, ('B', 'E'): 136, ('A', 'O'): 152, ('B', 'O'): 168}
vStA, vStB, vStR = 184, 185, 186
NV = 188

def vr(b, n): return f"v[{b}:{b+n-1}]"

class Asm:
    def __init__(self): self.l = []
    def __call__(self, s): self.l.append("    " + s)
    def lab(self, s): self.l.append(s + ":")
    def raw(self, s): self.l.append(s)
    def text(self): return "\n".join(self.l) + "\n"

def mf_x(par):
    return f"v_mfma_f32_32x32x4_2b_bf16 {vr(Sr[par],32)}, {vr(KX,2)}, {vr(QX[par],2)}, 0 cbsz:1 abid:0"
def mf_q(t, par):
    s = Sr[par] + (16 if t == 'B' else 0)
    return f"v_mfma_f32_32x32x16_bf16 {vr(s,16)}, {vr(Kr[par],4)}, {vr(Qr[(t,par)],4)}, {vr(s,16)}"
def mf_pv(t, par, j):
    s = Sr[par] + (16 if t == 'B' else 0) + 8 * j
    return f"v_smfmac_f32_32x32x32_bf16 {vr(Or[(t,par)],16)}, {vr(Vr[(par,j)],4)}, {vr(s,8)}, v{vIdx}"
def ex(par, i): return f"v_exp_f32 v{Sr[par]+i}, v{Sr[par]+i}"
def rd_kx(u): return [f"ds_read_b64 {vr(KX,2)}, v{vK} offset:{u*ST+32}"]
def rd_k(par, u):
    o = u * ST + (40 if par == 'O' else 0)
    return [f"ds_read_b64 {vr(Kr[par],2)}, v{vK} offset:{o}", f"ds_read_b64 {vr(Kr[par]+2,2)}, v{vK} offset:{o+8}"]
def rd_v(par, j, u):
    o = u * ST + (32 if par == 'O' else 0) + 16 * j * 72
    return [f"ds_read_b64_tr_b16 {vr(Vr[(par,j)],2)}, v{vV} offset:{o}", f"ds_read_b64_tr_b16 {vr(Vr[(par,j)]+2,2)}, v{vV} offset:{o+4*72}"]

def phase_list(par, opt, look=True):
    oth = 'O' if par == 'E' else 'E'
    pos = [int(x) for x in (opt.pos if look else opt.tpos).split(',')]
    mf = {pos[0]: mf_pv('B', oth, 1), pos[2]: mf_pv('A', par, 0), pos[3]: mf_pv('A', par, 1), pos[5]: mf_pv('B', par, 0)}
    if look:
        mf.update({pos[1]: mf_x(oth), pos[4]: mf_q('A', oth), pos[6]: mf_q('B', oth)})
    out = []
    for i in range(32):
        if i in mf: out.append((i, 'm', mf[i]))
        out.append((i, 'e', ex(par, i)))
    return out

def gen(opt):
    a = Asm()
    def stamp(i):
        if opt.stamp: a(f"s_memtime s[{60+2*i}:{61+2*i}]")
        if opt.amp and i in (opt.ampa, opt.ampb): a(f"s_memrealtime s[{60+2*i}:{61+2*i}]")
    smem = opt.stamp or opt.amp
    def lgkm(n): a(f"s_waitcnt lgkmcnt({0 if smem else n})")
    a.raw(f"""; Fused attention forward, B=2 H=32 S=2048 D=18, bf16 in/out (written by my generator gen/gen3.py).
; @launch grid=(256,1,1) block=(512,1,1) lds={LDS}
.amdgcn_target "amdgcn-amd-amdhsa--gfx950"
.text
.globl {NAME}_kernel
.p2align 8
.type {NAME}_kernel,@function
{NAME}_kernel:""")
    a("s_load_dwordx4 s[4:7], s[0:1], 0")
    a("s_load_dwordx4 s[8:11], s[0:1], 16")
    if opt.stamp:
        a("s_load_dwordx2 s[40:41], s[0:1], 40")
        a("s_memrealtime s[56:57]")
    stamp(0)
    a("s_cmp_ge_u32 s2, 256")
    a("s_cbranch_scc1 L_end")
    t0, t1 = Sr['E'] + 8, Sr['E'] + 9
    a(f"v_lshrrev_b32 v{t0}, 6, v0")
    a(f"v_lshlrev_b32 v{vSlot}, 3, v0")
    a(f"v_readfirstlane_b32 s24, v{t0}")
    a("v_and_b32 v0, 63, v0")
    a("s_and_b32 s25, s2, 7")
    a("s_lshr_b32 s26, s2, 5")
    a("s_lshl3_add_u32 s25, s25, s26")
    a(f"s_mul_i32 s25, s25, {HB}")
    a("s_bfe_u32 s26, s2, 0x20003")
    a("s_lshl3_add_u32 s26, s26, s24")
    a(f"s_mul_i32 s26, s26, {ST}")
    a("s_add_u32 s26, s26, s25")
    a(f"v_lshlrev_b32 v{vDma}, 4, v0")
    a("s_lshl_b32 s27, s24, 10")
    a("s_mov_b32 m0, s27")
    a(f"s_mov_b32 s18, {HB}")
    a("s_mov_b32 s19, 0x00020000")
    a(f"s_mov_b32 s46, {HB}")
    a("s_mov_b32 s47, 0x00020000")
    a(f"s_movk_i32 s14, {ST}")
    a("s_mov_b32 s15, 0x00020000")
    a(f"v_and_b32 v{t0}, 31, v0")
    a(f"v_lshrrev_b32 v{t1}, 5, v0")
    a(f"v_mul_u32_u24 v{vQo}, 36, v{t0}")
    a(f"v_lshl_add_u32 v{vQo}, v{t1}, 4, v{vQo}")
    a("s_waitcnt lgkmcnt(0)")
    stamp(1)
    a("s_add_u32 s16, s6, s25")
    a("s_addc_u32 s17, s7, 0")
    ldf = opt.ldfl.replace('_', ' ')
    a(f"buffer_load_dwordx4 v{vDma}, s[16:19], s27 offen lds {ldf}")
    a("s_add_u32 m0, s27, s18")
    a("s_add_u32 s44, s8, s25")
    a("s_addc_u32 s45, s9, 0")
    a(f"buffer_load_dwordx4 v{vDma}, s[44:47], s27 offen lds {ldf}")
    def dma2():
        a("s_add_u32 m0, s27, 8192")
        a("s_add_u32 s27, s27, 8192")
        a(f"buffer_load_dwordx4 v{vDma}, s[16:19], s27 offen lds {ldf}")
        a("s_add_u32 m0, s27, s18")
        a("s_nop 0")
        a(f"buffer_load_dwordx4 v{vDma}, s[44:47], s27 offen lds {ldf}")
    T = Sr['O']
    a("s_add_u32 s12, s4, s26")
    a("s_addc_u32 s13, s5, 0")
    qf = opt.qfl.replace('_', ' ')
    a(f"buffer_load_dword v{T+4}, v{vQo}, s[12:15], 0 offen offset:16 {qf}")
    a(f"buffer_load_dword v{T+10}, v{vQo}, s[12:15], 0 offen offset:1168 {qf}")
    a(f"buffer_load_dwordx4 {vr(T,4)}, v{vQo}, s[12:15], 0 offen {qf}")
    a(f"buffer_load_dwordx4 {vr(T+6,4)}, v{vQo}, s[12:15], 0 offen offset:1152 {qf}")
    a("s_add_u32 s20, s10, s26")
    a("s_addc_u32 s21, s11, 0")
    a(f"s_movk_i32 s22, {ST}")
    a("s_mov_b32 s23, 0x00020000")
    C = Sr['E']
    a(f"v_and_b32 v{C}, 1, v0")
    a(f"v_subrev_u32 v{C}, 1, v{C}")
    a(f"v_and_b32 v{C}, 0x3f80, v{C}")
    a(f"v_mov_b32 v{C+1}, 0")
    a(f"v_add_u32 v{vSlot}, {CBASE}, v{vSlot}")
    a(f"ds_write_b64 v{vSlot}, {vr(C,2)}")
    a(f"v_mov_b32 v{QX['E']}, 0"); a(f"v_mov_b32 v{QX['E']+1}, 0"); a(f"v_mov_b32 v{QX['O']}, 0")
    a(f"v_mul_u32_u24 v{vK}, 72, v{t0}")
    a(f"v_lshl_add_u32 v{vK}, v{t1}, 4, v{vK}")
    a(f"v_mfma_f32_32x32x4_2b_bf16 {vr(120,32)}, {vr(QX['E'],2)}, {vr(QX['E'],2)}, 0")
    a(f"v_mfma_f32_32x32x4_2b_bf16 {vr(152,32)}, {vr(QX['E'],2)}, {vr(QX['E'],2)}, 0")
    t3, t4, t5 = C + 4, C + 5, C + 6
    a(f"v_bfe_u32 v{t3}, v0, 2, 2")
    a(f"v_lshl_add_u32 v{t3}, v{t1}, 3, v{t3}")
    a(f"v_mul_u32_u24 v{t3}, 72, v{t3}")
    a(f"v_and_b32 v{t4}, 1, v0")
    a(f"v_lshl_add_u32 v{t3}, v{t4}, 4, v{t3}")
    a(f"v_and_b32 v{t4}, 2, v0")
    a(f"v_lshl_add_u32 v{t3}, v{t4}, 2, v{t3}")
    a(f"v_lshlrev_b32 v{t5}, 6, v{t1}")
    a(f"v_lshlrev_b32 v{t4}, 2, v{t4}")
    a(f"v_sub_u32 v{t5}, v{t5}, v{t4}")
    a(f"v_add_u32 v{t5}, {CBASE+56}, v{t5}")
    a(f"v_and_b32 v{t4}, 16, v0")
    a(f"v_add3_u32 v{t3}, v{t4}, v{t3}, s18")
    a("s_mov_b32 vcc_lo, 0xdddd0000"); a("s_mov_b32 vcc_hi, 0xdddd0000")
    a(f"v_mov_b32 v{vIdx}, 0xdddd")
    a(f"v_mov_b32 v{vIncK}, {ST}")
    a(f"v_cndmask_b32 v{vIncV}, v{vIncK}, 0, vcc")
    a(f"v_cndmask_b32 v{vV}, v{t3}, v{t5}, vcc")
    a(f"v_add_u32 v{C+2}, v{vK}, v{vIncK}")
    a(f"v_add_u32 v{C+3}, v{vV}, v{vIncV}")
    a(f"ds_write_b64 v{vSlot}, {vr(C+2,2)} offset:4096")
    a(f"s_mul_i32 s28, s24, {ST}")
    a(f"v_add_u32 v{vStA}, s28, v{vQo}")
    a(f"v_add_u32 v{vStB}, 1152, v{vStA}")
    a(f"v_add_u32 v{vStR}, s28, v{vDma}")
    a(f"s_mov_b32 s30, {CSCALE:#x}"); a(f"s_mov_b32 s31, {CSCALE:#x}")
    a("s_mov_b32 s29, 0")
    b1, b2, per = opt.b1, opt.b2, opt.per
    nd = 8 // per
    assert 8 % per == 0 and b2 >= 9
    a(f"s_mov_b32 s32, {(1 << (b1-1)) | (1 << (b2-1)):#x}")
    a("s_cmp_lt_u32 s24, 4")
    a("s_cbranch_scc0 L_nowait")
    a("s_waitcnt vmcnt(4)")
    a.lab("L_nowait")
    a("s_waitcnt lgkmcnt(0)")
    stamp(2)
    a("s_barrier")
    for f in rd_kx(0) + rd_k('E', 0) + rd_k('O', 0) + rd_v('E', 0, 0) + rd_v('E', 1, 0): a(f)
    a("s_setprio 3")
    stamp(3)
    W = T + 12
    wof = {}
    def unpack(src, k):
        w = W + 2 * k; wof[src] = w
        a(f"v_lshlrev_b32 v{w}, 16, v{src}")
        a(f"v_and_b32 v{w+1}, 0xffff0000, v{src}")
        a(f"v_pk_mul_f32 {vr(w,2)}, {vr(w,2)}, s[30:31]")
    def pack(src, d): a(f"v_cvt_pk_bf16_f32 v{d}, v{wof[src]}, v{wof[src]+1}")
    xa, xb = T + 5, T + 11
    a("s_waitcnt vmcnt(2)")
    unpack(T + 4, 0); unpack(T + 10, 1)
    pack(T + 4, xa); pack(T + 10, QX['E'])
    pack(T + 4, Qr[('A', 'O')] + 3); pack(T + 10, Qr[('B', 'O')] + 3)
    a(f"v_permlane32_swap_b32 v{xa}, v{QX['E']}")
    a("s_waitcnt vmcnt(1)")
    lgkm(8)
    stamp(4)
    a(mf_x('E'))
    for j in range(4): unpack(T + j, 2 + j)
    for j in range(4): pack(T + j, Qr[('A', 'E')] + j)
    pack(T, QX['O'] + 1)
    a(f"s_waitcnt vmcnt(0) lgkmcnt({0 if smem else 6})")
    a(mf_q('A', 'E'))
    for j in range(4): unpack(T + 6 + j, 6 + j)
    pack(T + 6, xb)
    for j in range(4): pack(T + 6 + j, Qr[('B', 'E')] + j)
    a(f"v_permlane32_swap_b32 v{QX['O']+1}, v{xb}")
    pack(T + 1, Qr[('A', 'O')])
    a(mf_q('B', 'E'))
    for j in range(2, 4): pack(T + j, Qr[('A', 'O')] + j - 1)
    for j in range(1, 4): pack(T + 6 + j, Qr[('B', 'O')] + j - 1)
    a("s_waitcnt lgkmcnt(0)")
    a("s_cbranch_scc0 L_startB")
    pE, pO, pT = phase_list('E', opt), phase_list('O', opt), phase_list('O', opt, look=False)
    cut = opt.cut
    pos0 = int(opt.pos.split(',')[0])
    assert cut > pos0
    burst = rd_kx(1) + rd_v('O', 0, 0) + rd_k('E', 1) + rd_v('O', 1, 0) + rd_v('E', 0, 1) + rd_v('E', 1, 1) + rd_k('O', 1)
    for role in 'AB':
        if role == 'A':
            a("s_setprio 2")
        else:
            a.lab("L_startB")
            a("s_setprio 1")
            for r in range(per): dma2()
            a("s_barrier")
        stamp(5)
        for i in range(pos0): a(ex('E', i))
        a(f"s_branch L_entry{role}")
        a.raw("    .p2align 6")
        a.lab(f"L_top{role}")
        if role == 'A':
            a("s_setprio 0")
            a("s_add_u32 s29, s29, 1")
            a("s_cmp_eq_u32 s29, 32")
            a("s_cbranch_scc1 L_tail")
        for f in burst: a(f)
        a(f"ds_add_rtn_u64 {vr(vK,2)}, v{vSlot}, {vr(vIncK,2)} offset:4096")
        if opt.stamp == 2:
            a("s_memtime s[80:81]"); a("s_memrealtime s[82:83]")
        a(f"s_cmp_gt_u32 s29, {nd if role == 'A' else nd-1}")
        a(f"s_cbranch_scc1 L_nd{role}")
        for r in range(per): dma2()
        a.lab(f"L_nd{role}")
        a(f"s_cmp_lg_u32 s29, {b2-1}")
        a(f"s_cbranch_scc1 L_nw{role}")
        a("s_waitcnt vmcnt(0)")
        a.lab(f"L_nw{role}")
        a("s_bitcmp1_b32 s32, s29")
        a("s_waitcnt lgkmcnt(0)")
        if opt.stamp == 2:
            a("s_mov_b32 s84, m0"); a("s_mov_b32 m0, s29")
            a("v_writelane_b32 v188, s80, m0"); a("v_writelane_b32 v189, s82, m0"); a("s_mov_b32 m0, s84")
        if role == 'B':
            a("s_cbranch_scc0 L_goB")
            a(f"s_waitcnt vmcnt({2*per*min(b1-1, nd-1) - 2*(2-per) if per <= 2 else 2*per*min(b1-1, nd-1)})")
            a("s_barrier")
            a.lab("L_goB")
        first = True
        for (i, k_, s) in pO:
            if i < cut: continue
            a(s)
            if first and role == 'A': a("s_setprio 2")
            first = False
        for (i, k_, s) in pE:
            if i == pos0 and k_ == 'e': a.lab(f"L_entry{role}")
            a(s)
        for (i, k_, s) in pO:
            if i < cut: a(s)
        if role == 'A':
            a("s_cbranch_scc0 L_topA")
            a(f"s_waitcnt vmcnt({2*per*min(b1-1, nd) - max(4, 2*per)})")
            a("s_barrier")
            a("s_branch L_topA")
        else:
            a("s_add_u32 s29, s29, 1")
            a("s_cmp_lg_u32 s29, 32")
            a("s_cbranch_scc1 L_topB")
    a.lab("L_tail")
    for f in rd_v('O', 0, 0) + rd_v('O', 1, 0): a(f)
    a("s_mov_b32 s33, 0")
    a("s_mov_b32 s34, 0x30800000")
    a("s_mov_b32 s35, 0x6c800000")
    a("s_waitcnt lgkmcnt(0)")
    first = True
    for (i, k_, s) in pT:
        if i < cut: continue
        a(s)
        if first: a("s_setprio 2")
        first = False
    stamp(6)
    R = Sr['E']
    PK = {'A': Sr['E'] + 8, 'B': Sr['E'] + 14}
    OB = Sr['E'] + 20
    fl = opt.stfl.replace('_', ' ')
    for t in ('A', 'B'):
        E, O = Or[(t, 'E')], Or[(t, 'O')]
        l, rc = (R, R + 2) if t == 'A' else (R + 1, R + 4)
        a(f"v_add_f32 v{l}, v{E+12}, v{O+12}")
        a(f"v_rcp_f32 v{rc}, v{l}")
        if t == 'A':
            a(mf_pv('B', 'O', 1))
            a.lab("L_epi")
        a(f"v_permlane32_swap_b32 v{O}, v{O+8}")
        a(f"v_permlane32_swap_b32 v{O+1}, v{O+9}")
        for j in (8, 0, 2, 4, 6):
            a(f"v_pk_add_f32 {vr(E+j,2)}, {vr(E+j,2)}, {vr(O+j+2,2)}")
        for j in (8, 0, 2, 4, 6):
            a(f"v_pk_mul_f32 {vr(E+j,2)}, {vr(E+j,2)}, {vr(rc,2)} op_sel_hi:[1,0]")
        st = vStA if t == 'A' else vStB
        for j in (4, 0, 1, 2, 3):
            a(f"v_cvt_pk_bf16_f32 v{PK[t]+j}, v{E+2*j}, v{E+2*j+1}")
        a(f"ds_write_b32 v{st}, v{PK[t]+4} offset:16")
        a(f"ds_write2_b32 v{st}, v{PK[t]}, v{PK[t]+1} offset0:0 offset1:1")
        a(f"ds_write2_b32 v{st}, v{PK[t]+2}, v{PK[t]+3} offset0:2 offset1:3")
        if t == 'A':
            a(f"ds_read_b128 {vr(OB,4)}, v{vStR}")
        else:
            a(f"ds_read_b128 {vr(OB+4,4)}, v{vStR} offset:1024")
            a(f"ds_read_b128 {vr(OB+8,4)}, v{vStR} offset:2048")
            lgkm(5)
            a(f"buffer_store_dwordx4 {vr(OB,4)}, v{vDma}, s[20:23], 0 offen {fl}")
    for t, l in (('A', R), ('B', R + 1)):
        for j in range(5):
            a(f"v_dot2c_f32_bf16 v{l}, 0, v{PK[t]+j}")
    lgkm(1)
    a(f"buffer_store_dwordx4 {vr(OB+4,4)}, v{vDma}, s[20:23], 0 offen offset:1024 {fl}")
    lgkm(0)
    a(f"buffer_store_dwordx4 {vr(OB+8,4)}, v{vDma}, s[20:23], 0 offen offset:2048 {fl}")
    a(f"v_cmp_nge_f32 s[36:37], v{R}, s34")
    a(f"v_cmp_nle_f32 vcc, v{R}, s35")
    a("s_or_b64 s[36:37], s[36:37], vcc")
    a(f"v_cmp_nge_f32 s[38:39], v{R+1}, s34")
    a(f"v_cmp_nle_f32 vcc, v{R+1}, s35")
    a("s_or_b64 s[36:37], s[36:37], s[38:39]")
    a("s_or_b64 s[36:37], s[36:37], vcc")
    a("s_cbranch_scc1 L_check")
    a.lab("L_done")
    if opt.amp:
        stamp(7)
        a("s_waitcnt vmcnt(0)")
        stamp(8)
        a("s_memrealtime s[42:43]")
        a("s_waitcnt lgkmcnt(0)")
        a(f"s_sub_u32 s50, s{60+2*opt.ampb}, s{60+2*opt.ampa}")
        a(f"s_mul_i32 s50, s50, {opt.amp}")
        a("s_min_u32 s50, s50, 20000")
        if opt.ampr:
            a("s_cmp_lt_u32 s24, 4")
            a("s_cselect_b32 s50, s50, 0" if opt.ampr == 'A' else "s_cselect_b32 s50, 0, s50")
        a.lab("L_spin")
        a("s_sleep 2")
        a("s_memrealtime s[52:53]")
        a("s_waitcnt lgkmcnt(0)")
        a("s_sub_u32 s51, s52, s42")
        a("s_cmp_lt_u32 s51, s50")
        a("s_cbranch_scc1 L_spin")
    if opt.stamp:
        a("s_mov_b64 exec, 1")
        stamp(7)
        a("s_waitcnt vmcnt(0)")
        stamp(8)
        a("s_memrealtime s[58:59]")
        a("s_getreg_b32 s42, hwreg(HW_REG_HW_ID)")
        a("s_getreg_b32 s43, hwreg(HW_REG_XCC_ID)")
        a("s_waitcnt lgkmcnt(0)")
        for i, sr in enumerate((56, 58, 42, 43, 60, 62, 64, 66, 68, 70, 72, 74, 76)):
            a(f"v_mov_b32 v{16+i}, s{sr}")
        a("s_lshl_b32 s50, s2, 3"); a("s_add_u32 s50, s50, s24"); a("s_lshl_b32 s50, s50, 6")
        a("v_mov_b32 v1, s50")
        for i in range(4): a(f"global_store_dwordx4 v1, v[{16+4*i}:{19+4*i}], s[40:41] offset:{16*i}")
        if opt.stamp == 2:
            a("s_mov_b64 exec, -1")
            a("s_lshl_b32 s50, s50, 3"); a("s_add_u32 s50, s50, 0x100000")
            a("v_lshl_add_u32 v1, v0, 3, s50")
            a("global_store_dwordx2 v1, v[188:189], s[40:41]")
    a.lab("L_end")
    a("s_endpgm")
    a.lab("L_check")
    a("s_cmp_lg_u32 s33, 0")
    a("s_cbranch_scc1 L_done")
    a("s_waitcnt vmcnt(0)")
    mA, mB = 0, vSlot
    if opt.stamp == 2: mA = 187
    def rewind(n):
        a(f"v_subrev_u32 v{vK}, {n*ST}, v{vK}")
        a(f"v_mul_u32_u24 v{vT2}, {n}, v{vIncV}")
        a(f"v_sub_u32 v{vV}, v{vV}, v{vT2}")
        a("s_mov_b32 s29, 0")
    def scores():
        a(f"buffer_load_dwordx2 {vr(KX,2)}, v{vK}, s[16:19], 0 offen offset:32")
        a(f"buffer_load_dwordx4 {vr(Kr['E'],4)}, v{vK}, s[16:19], 0 offen")
        a(f"buffer_load_dwordx4 {vr(Kr['O'],4)}, v{vK}, s[16:19], 0 offen offset:40")
        a("s_waitcnt vmcnt(0) lgkmcnt(0)")
        a(mf_x('E')); a(mf_x('O'))
        a("s_nop 15"); a("s_nop 3")
        for par in 'EO':
            for t in 'AB': a(mf_q(t, par))
        a("s_nop 15")
    def step(lab):
        a(f"v_add_u32 v{vK}, v{vIncK}, v{vK}")
        a(f"v_add_u32 v{vV}, v{vIncV}, v{vV}")
        a("s_add_u32 s29, s29, 1")
        a("s_cmp_lg_u32 s29, 32")
        a(f"s_cbranch_scc1 {lab}")
    rewind(31)
    a(f"v_mov_b32 v{mA}, 0xff800000"); a(f"v_mov_b32 v{mB}, 0xff800000")
    a.lab("L_max")
    scores()
    for par in 'EO':
        for t, m in (('A', mA), ('B', mB)):
            s = Sr[par] + (16 if t == 'B' else 0)
            for j in range(0, 16, 2): a(f"v_max3_f32 v{m}, v{m}, v{s+j}, v{s+j+1}")
    step("L_max")
    for m in (mA, mB):
        a(f"v_mov_b32 v{vT2}, v{m}")
        a("s_nop 1")
        a(f"v_permlane32_swap_b32 v{vT2}, v{m}")
        a("s_nop 1")
        a(f"v_max_f32 v{m}, v{m}, v{vT2}")
    rewind(32)
    for r in range(120, 184): a(f"v_mov_b32 v{r}, 0")
    a.lab("L_acc")
    for par in 'EO':
        for j in range(2):
            for f in rd_v(par, j, 0): a(f)
    scores()
    for par in 'EO':
        for t, m in (('A', mA), ('B', mB)):
            s = Sr[par] + (16 if t == 'B' else 0)
            for j in range(16): a(f"v_sub_f32 v{s+j}, v{s+j}, v{m}")
            for j in range(16): a(f"v_exp_f32 v{s+j}, v{s+j}")
    a("s_nop 1")
    for par in 'EO':
        for t in 'AB':
            for j in range(2): a(mf_pv(t, par, j))
    step("L_acc")
    a("s_nop 15")
    a("s_mov_b32 s33, 1")
    a(f"v_add_f32 v{R}, v{Or[('A','E')]+12}, v{Or[('A','O')]+12}")
    a(f"v_rcp_f32 v{R+2}, v{R}")
    a("s_branch L_epi")
    nv = 192 if opt.stamp == 2 else NV
    a.raw(f""".section .rodata,"a"
.p2align 6
.amdhsa_kernel {NAME}_kernel
  .amdhsa_next_free_vgpr {nv}
  .amdhsa_next_free_sgpr {90 if smem else 48}
  .amdhsa_accum_offset {nv}
  .amdhsa_group_segment_fixed_size 0
  .amdhsa_kernarg_size 48
  .amdhsa_user_sgpr_count 2
  .amdhsa_user_sgpr_kernarg_segment_ptr 1
  .amdhsa_system_sgpr_workgroup_id_x 1
.end_amdhsa_kernel""")
    return a.text()

def parse(argv):
    p = argparse.ArgumentParser()
    p.add_argument('-o', default=f"cdna_kernels/{NAME}.s")
    p.add_argument('--per', type=int, default=2)
    p.add_argument('--b1', type=int, default=3)
    p.add_argument('--b2', type=int, default=10)
    p.add_argument('--cut', type=int, default=4)
    p.add_argument('--pos', default='2,5,15,18,21,31,25')
    p.add_argument('--tpos', default='2,5,13,18,21,26,29')
    p.add_argument('--stfl', default='')
    p.add_argument('--ldfl', default='')
    p.add_argument('--qfl', default='')
    p.add_argument('--stamp', type=int, default=0)
    p.add_argument('--amp', type=int, default=0)
    p.add_argument('--ampa', type=int, default=0)
    p.add_argument('--ampb', type=int, default=8)
    p.add_argument('--ampr', default='')
    return p.parse_args(argv)

if __name__ == '__main__':
    opt = parse(sys.argv[1:])
    open(opt.o, 'w').write(gen(opt))
```

```python
import sys, struct, math, argparse

NAME = "standalone__fused_io_aware_attn__prompt"
HB = 73728
ST = 2304
VBASE = HB
CBASE = 2 * HB
ABASE = CBASE + 4096
LDS = ABASE + 4096

def f2u(x): return struct.unpack('<I', struct.pack('<f', x))[0]
CSCALE = f2u(math.log2(math.e) / math.sqrt(18.0))

vK, vV = 2, 3
vIncK, vIncV = 4, 5
vSlot, vIdx, vQo, vDma = 1, 6, 7, 14
vT2 = 15
KX = 8
QX = {'E': 10, 'O': 12}
Kr = {'E': 16, 'O': 20}
Qr = {('A', 'E'): 24, ('B', 'E'): 28, ('A', 'O'): 32, ('B', 'O'): 36}
Vr = {('E', 0): 40, ('E', 1): 44, ('O', 0): 48, ('O', 1): 52}
Sr = {'E': 56, 'O': 88}
Or = {('A', 'E'): 120, ('B', 'E'): 136, ('A', 'O'): 152, ('B', 'O'): 168}
vStA, vStB, vStR = 184, 185, 186
NV = 188

def vr(b, n): return f"v[{b}:{b+n-1}]"

class Asm:
    def __init__(self): self.l = []
    def __call__(self, s): self.l.append("    " + s)
    def lab(self, s): self.l.append(s + ":")
    def raw(self, s): self.l.append(s)
    def text(self): return "\n".join(self.l) + "\n"

def mf_x(par):
    return f"v_mfma_f32_32x32x4_2b_bf16 {vr(Sr[par],32)}, {vr(KX,2)}, {vr(QX[par],2)}, 0 cbsz:1 abid:0"
def mf_q(t, par):
    s = Sr[par] + (16 if t == 'B' else 0)
    return f"v_mfma_f32_32x32x16_bf16 {vr(s,16)}, {vr(Kr[par],4)}, {vr(Qr[(t,par)],4)}, {vr(s,16)}"
def mf_pv(t, par, j):
    s = Sr[par] + (16 if t == 'B' else 0) + 8 * j
    return f"v_smfmac_f32_32x32x32_bf16 {vr(Or[(t,par)],16)}, {vr(Vr[(par,j)],4)}, {vr(s,8)}, v{vIdx}"
def ex(par, i): return f"v_exp_f32 v{Sr[par]+i}, v{Sr[par]+i}"
def rd_kx(u): return [f"ds_read_b64 {vr(KX,2)}, v{vK} offset:{u*ST+32}"]
def rd_k(par, u):
    o = u * ST + (40 if par == 'O' else 0)
    return [f"ds_read_b64 {vr(Kr[par],2)}, v{vK} offset:{o}", f"ds_read_b64 {vr(Kr[par]+2,2)}, v{vK} offset:{o+8}"]
def rd_v(par, j, u):
    o = u * ST + (32 if par == 'O' else 0) + 16 * j * 72
    return [f"ds_read_b64_tr_b16 {vr(Vr[(par,j)],2)}, v{vV} offset:{o}", f"ds_read_b64_tr_b16 {vr(Vr[(par,j)]+2,2)}, v{vV} offset:{o+4*72}"]

def phase_list(par, opt, look=True):
    oth = 'O' if par == 'E' else 'E'
    pos = [int(x) for x in (opt.pos if look else opt.tpos).split(',')]
    mf = {pos[0]: mf_pv('B', oth, 1), pos[2]: mf_pv('A', par, 0), pos[3]: mf_pv('A', par, 1), pos[5]: mf_pv('B', par, 0)}
    if look:
        mf.update({pos[1]: mf_x(oth), pos[4]: mf_q('A', oth), pos[6]: mf_q('B', oth)})
    out = []
    for i in range(32):
        if i in mf: out.append((i, 'm', mf[i]))
        out.append((i, 'e', ex(par, i)))
    return out

def gen(opt):
    a = Asm()
    def stamp(i):
        if opt.stamp: a(f"s_memtime s[{60+2*i}:{61+2*i}]")
        if opt.amp and i in (opt.ampa, opt.ampb): a(f"s_memrealtime s[{60+2*i}:{61+2*i}]")
    smem = opt.stamp or opt.amp
    def lgkm(n): a(f"s_waitcnt lgkmcnt({0 if smem else n})")
    a.raw(f"""; Fused attention forward, B=2 H=32 S=2048 D=18, bf16 in/out (written by my generator gen/gen4.py).
; @launch grid=(256,1,1) block=(512,1,1) lds={LDS}
.amdgcn_target "amdgcn-amd-amdhsa--gfx950"
.text
.globl {NAME}_kernel
.p2align 8
.type {NAME}_kernel,@function
{NAME}_kernel:""")
    a("s_load_dwordx4 s[4:7], s[0:1], 0")
    a("s_load_dwordx4 s[8:11], s[0:1], 16")
    if opt.stamp:
        a("s_load_dwordx2 s[40:41], s[0:1], 40")
        a("s_memrealtime s[56:57]")
    stamp(0)
    a("s_cmp_ge_u32 s2, 256")
    a("s_cbranch_scc1 L_end")
    t0, t1 = Sr['E'] + 8, Sr['E'] + 9
    a(f"v_lshrrev_b32 v{t0}, 6, v0")
    a(f"v_lshlrev_b32 v{vSlot}, 3, v0")
    a(f"v_readfirstlane_b32 s24, v{t0}")
    a("v_and_b32 v0, 63, v0")
    if opt.pf:
        a("s_getpc_b64 s[36:37]")
        a(f"v_lshlrev_b32 v{vT2}, 6, v0")
        a("s_cmp_lg_u32 s24, 7")
        a("s_cbranch_scc1 L_nopf")
        a(f"global_load_dword v{vT2}, v{vT2}, s[36:37]")
        a.lab("L_nopf")
    a("s_and_b32 s25, s2, 7")
    a("s_lshr_b32 s26, s2, 5")
    a("s_lshl3_add_u32 s25, s25, s26")
    a(f"s_mul_i32 s25, s25, {HB}")
    a("s_bfe_u32 s26, s2, 0x20003")
    a("s_lshl3_add_u32 s26, s26, s24")
    a(f"s_mul_i32 s26, s26, {ST}")
    a("s_add_u32 s26, s26, s25")
    a(f"v_lshlrev_b32 v{vDma}, 4, v0")
    a("s_lshl_b32 s27, s24, 10")
    a("s_mov_b32 m0, s27")
    a(f"s_mov_b32 s18, {HB}")
    a("s_mov_b32 s19, 0x00020000")
    a(f"s_mov_b32 s46, {HB}")
    a("s_mov_b32 s47, 0x00020000")
    a(f"s_movk_i32 s14, {ST}")
    a("s_mov_b32 s15, 0x00020000")
    a(f"v_mul_u32_u24 v{vQo}, 36, v0")
    a("s_waitcnt lgkmcnt(0)")
    stamp(1)
    a("s_add_u32 s16, s6, s25")
    a("s_addc_u32 s17, s7, 0")
    ldf = opt.ldfl.replace('_', ' ')
    a(f"buffer_load_dwordx4 v{vDma}, s[16:19], s27 offen lds {ldf}")
    a("s_add_u32 m0, s27, s18")
    a("s_add_u32 s44, s8, s25")
    a("s_addc_u32 s45, s9, 0")
    a(f"buffer_load_dwordx4 v{vDma}, s[44:47], s27 offen lds {ldf}")
    def dma2():
        a("s_add_u32 m0, s27, 8192")
        a("s_add_u32 s27, s27, 8192")
        a(f"buffer_load_dwordx4 v{vDma}, s[16:19], s27 offen lds {ldf}")
        a("s_add_u32 m0, s27, s18")
        a("s_nop 0")
        a(f"buffer_load_dwordx4 v{vDma}, s[44:47], s27 offen lds {ldf}")
    T = Sr['O']
    a("s_add_u32 s12, s4, s26")
    a("s_addc_u32 s13, s5, 0")
    qf = opt.qfl.replace('_', ' ')
    a(f"buffer_load_dword v{T+8}, v{vQo}, s[12:15], 0 offen offset:32 {qf}")
    a(f"buffer_load_dwordx4 {vr(T,4)}, v{vQo}, s[12:15], 0 offen {qf}")
    a(f"buffer_load_dwordx4 {vr(T+4,4)}, v{vQo}, s[12:15], 0 offen offset:16 {qf}")
    a(f"v_and_b32 v{t0}, 31, v0")
    a(f"v_lshrrev_b32 v{t1}, 5, v0")
    a("s_add_u32 s20, s10, s26")
    a("s_addc_u32 s21, s11, 0")
    a(f"s_movk_i32 s22, {ST}")
    a("s_mov_b32 s23, 0x00020000")
    C = Sr['E']
    a(f"v_and_b32 v{C}, 1, v0")
    a(f"v_subrev_u32 v{C}, 1, v{C}")
    a(f"v_and_b32 v{C}, 0x3f80, v{C}")
    a(f"v_mov_b32 v{C+1}, 0")
    a(f"v_add_u32 v{vSlot}, {CBASE}, v{vSlot}")
    a(f"ds_write_b64 v{vSlot}, {vr(C,2)}")
    a(f"v_mov_b32 v{QX['E']}, 0"); a(f"v_mov_b32 v{QX['E']+1}, 0"); a(f"v_mov_b32 v{QX['O']}, 0")
    a(f"v_mul_u32_u24 v{vK}, 72, v{t0}")
    a(f"v_lshl_add_u32 v{vK}, v{t1}, 4, v{vK}")
    a(f"v_mfma_f32_32x32x4_2b_bf16 {vr(120,32)}, {vr(QX['E'],2)}, {vr(QX['E'],2)}, 0")
    a(f"v_mfma_f32_32x32x4_2b_bf16 {vr(152,32)}, {vr(QX['E'],2)}, {vr(QX['E'],2)}, 0")
    t3, t4, t5 = C + 4, C + 5, C + 6
    a(f"v_bfe_u32 v{t3}, v0, 2, 2")
    a(f"v_lshl_add_u32 v{t3}, v{t1}, 3, v{t3}")
    a(f"v_mul_u32_u24 v{t3}, 72, v{t3}")
    a(f"v_and_b32 v{t4}, 1, v0")
    a(f"v_lshl_add_u32 v{t3}, v{t4}, 4, v{t3}")
    a(f"v_and_b32 v{t4}, 2, v0")
    a(f"v_lshl_add_u32 v{t3}, v{t4}, 2, v{t3}")
    a(f"v_lshlrev_b32 v{t5}, 6, v{t1}")
    a(f"v_lshlrev_b32 v{t4}, 2, v{t4}")
    a(f"v_sub_u32 v{t5}, v{t5}, v{t4}")
    a(f"v_add_u32 v{t5}, {CBASE+56}, v{t5}")
    a(f"v_and_b32 v{t4}, 16, v0")
    a(f"v_add3_u32 v{t3}, v{t4}, v{t3}, s18")
    a("s_mov_b32 vcc_lo, 0xdddd0000"); a("s_mov_b32 vcc_hi, 0xdddd0000")
    a(f"v_mov_b32 v{vIdx}, 0xdddd")
    a(f"v_mov_b32 v{vIncK}, {ST}")
    a(f"v_cndmask_b32 v{vIncV}, v{vIncK}, 0, vcc")
    a(f"v_cndmask_b32 v{vV}, v{t3}, v{t5}, vcc")
    a(f"v_add_u32 v{C+2}, v{vK}, v{vIncK}")
    a(f"v_add_u32 v{C+3}, v{vV}, v{vIncV}")
    a(f"ds_write_b64 v{vSlot}, {vr(C+2,2)} offset:4096")
    a(f"s_mul_i32 s28, s24, {ST}")
    a(f"v_mul_u32_u24 v{vStA}, 36, v{t0}")
    a(f"v_lshl_add_u32 v{vStA}, v{t1}, 4, v{vStA}")
    a(f"v_add_u32 v{vStA}, s28, v{vStA}")
    a(f"v_add_u32 v{vStB}, 1152, v{vStA}")
    a(f"v_add_u32 v{vStR}, s28, v{vDma}")
    a(f"s_mov_b32 s30, {CSCALE:#x}"); a(f"s_mov_b32 s31, {CSCALE:#x}")
    a("s_mov_b32 s29, 0")
    b1, b2 = opt.b1, opt.b2
    grp = [int(x) for x in opt.grp.split(',')]
    g0, per = grp
    nd = (8 - g0) // per
    assert (8 - g0) % per == 0 and b2 >= 9 and g0 >= 2
    a(f"s_mov_b32 s32, {(1 << (b1-1)) | (1 << (b2-1)):#x}")
    a("s_cmp_ge_u32 s24, 4")
    a("s_cbranch_scc1 L_nowait")
    a("s_waitcnt vmcnt(3)")
    a.lab("L_nowait")
    a("s_waitcnt lgkmcnt(0)")
    stamp(2)
    a("s_barrier")
    for f in rd_kx(0) + rd_k('E', 0) + rd_k('O', 0) + rd_v('E', 0, 0) + rd_v('E', 1, 0): a(f)
    a("s_setprio 3")
    a("s_cbranch_scc0 L_prep")
    a("s_waitcnt vmcnt(3)")
    a("s_barrier")
    a.lab("L_prep")
    stamp(3)
    W = T + 10
    wof = {}
    def unpack(src, k):
        w = W + 2 * k; wof[src] = w
        a(f"v_lshlrev_b32 v{w}, 16, v{src}")
        a(f"v_and_b32 v{w+1}, 0xffff0000, v{src}")
        a(f"v_pk_mul_f32 {vr(w,2)}, {vr(w,2)}, s[30:31]")
    def pack(src, d): a(f"v_cvt_pk_bf16_f32 v{d}, v{wof[src]}, v{wof[src]+1}")
    QAE, QBE, QAO, QBO = Qr[('A','E')], Qr[('B','E')], Qr[('A','O')], Qr[('B','O')]
    a("s_waitcnt vmcnt(2)")
    unpack(T + 8, 8)
    pack(T + 8, QX['E']); pack(T + 8, QBO + 3)
    a(f"s_waitcnt vmcnt(1) lgkmcnt({0 if smem else 8})")
    a(mf_x('E'))
    for j in range(4): unpack(T + j, j)
    for j in range(4): pack(T + j, QAE + j)
    pack(T, QX['O'] + 1)
    a(f"s_waitcnt vmcnt(0) lgkmcnt({0 if smem else 6})")
    stamp(4)
    for j in range(4, 8): unpack(T + j, j)
    for j in range(4): pack(T + 4 + j, QBE + j)
    for j in range(4): a(f"v_permlane32_swap_b32 v{QAE+j}, v{QBE+j}")
    pack(T + 4, QAO + 3)
    a(f"v_mov_b32 v{QAO}, v{QAE+1}")
    a(mf_q('A', 'E'))
    a(f"v_permlane32_swap_b32 v{QAO+3}, v{QBO+3}")
    for j in range(1, 3): a(f"v_mov_b32 v{QAO+j}, v{QAE+j+1}")
    for j in range(0, 3): a(f"v_mov_b32 v{QBO+j}, v{QBE+j+1}")
    a(mf_q('B', 'E'))
    a("s_cbranch_scc1 L_startB")
    a("s_setprio 2")
    a("s_waitcnt lgkmcnt(0)")
    if opt.b05 == 0:
        a("s_nop 0")
        a("s_barrier")
    else:
        a("s_nop 1")
    pE, pO, pT = phase_list('E', opt), phase_list('O', opt), phase_list('O', opt, look=False)
    cut = opt.cut
    pos0 = int(opt.pos.split(',')[0])
    assert cut > pos0
    a.lab("L_first")
    stamp(5)
    for (i, k_, s_) in pE:
        if not (i == pos0 and k_ == 'm'): a(s_)
    for (i, k_, s_) in pO:
        if i < cut: a(s_)
    if opt.b05 == 0:
        a("s_cbranch_scc0 L_topA")
        a("s_branch L_topB")
    else:
        a("s_cbranch_scc1 L_topB")
        a("s_barrier")
        a("s_branch L_topA")
    a.lab("L_startB")
    a("s_setprio 1")
    a("s_mov_b32 s29, 1")
    for r in range(g0): dma2()
    a("s_cmp_ge_u32 s24, 4")
    a("s_waitcnt lgkmcnt(0)")
    a("s_branch L_first")
    burst = rd_kx(1) + rd_v('O', 0, 0) + rd_k('E', 1) + rd_v('O', 1, 0) + rd_v('E', 0, 1) + rd_v('E', 1, 1) + rd_k('O', 1)
    if opt.kxm: burst = ["s_mov_b32 exec_hi, 0", burst[0], "s_mov_b32 exec_hi, -1"] + burst[1:]
    for role in 'AB':
        a.raw("    .p2align 6")
        a.lab(f"L_top{role}")
        if role == 'A':
            a("s_setprio 0")
            a("s_add_u32 s29, s29, 1")
            a("s_cmp_eq_u32 s29, 32")
            a("s_cbranch_scc1 L_tail")
        for f in burst: a(f)
        a(f"ds_add_rtn_u64 {vr(vK,2)}, v{vSlot}, {vr(vIncK,2)} offset:4096")
        if opt.stamp == 2:
            a("s_memtime s[80:81]"); a("s_memrealtime s[82:83]")
        a(f"s_cmp_gt_u32 s29, {nd+1 if role == 'A' else nd}")
        a(f"s_cbranch_scc1 L_nd{role}")
        for r in range(per): dma2()
        if role == 'A' and g0 > per:
            a("s_cmp_lg_u32 s29, 1")
            a("s_cbranch_scc1 L_ndA")
            for r in range(g0 - per): dma2()
        a.lab(f"L_nd{role}")
        a(f"s_cmp_lg_u32 s29, {b2-1}")
        a(f"s_cbranch_scc1 L_nw{role}")
        a("s_waitcnt vmcnt(0)")
        a.lab(f"L_nw{role}")
        a("s_bitcmp1_b32 s32, s29")
        a("s_waitcnt lgkmcnt(0)")
        if opt.stamp == 2:
            a("s_mov_b32 s84, m0"); a("s_mov_b32 m0, s29")
            a("v_writelane_b32 v188, s80, m0"); a("v_writelane_b32 v189, s82, m0"); a("s_mov_b32 m0, s84")
        if role == 'B':
            a("s_cbranch_scc0 L_goB")
            a(f"s_waitcnt vmcnt({2*(g0 + per*min(b1-1, nd) - 2)})")
            a("s_barrier")
            a.lab("L_goB")
        first = True
        for (i, k_, s_) in pO:
            if i < cut: continue
            a(s_)
            if first and role == 'A': a("s_setprio 2")
            first = False
        for (i, k_, s_) in pE: a(s_)
        for (i, k_, s_) in pO:
            if i < cut: a(s_)
        if role == 'A':
            a("s_cbranch_scc0 L_topA")
            a(f"s_waitcnt vmcnt({2*(g0 + per*min(b1-2, nd) - 2)})")
            a("s_barrier")
            a("s_branch L_topA")
        else:
            a("s_add_u32 s29, s29, 1")
            a("s_cmp_lg_u32 s29, 32")
            a("s_cbranch_scc1 L_topB")
    assert nd + 1 <= b2 - 1
    a.lab("L_tail")
    for f in rd_v('O', 0, 0) + rd_v('O', 1, 0): a(f)
    a("s_mov_b32 s33, 0")
    a("s_mov_b32 s34, 0x30800000")
    a("s_mov_b32 s35, 0x6c800000")
    a("s_waitcnt lgkmcnt(0)")
    first = True
    for (i, k_, s) in pT:
        if i < cut: continue
        a(s)
        if first: a("s_setprio 2")
        first = False
    stamp(6)
    R = Sr['E']
    PK = {'A': Sr['E'] + 8, 'B': Sr['E'] + 14}
    OB = Sr['E'] + 20
    fl = opt.stfl.replace('_', ' ')
    for t in ('A', 'B'):
        E, O = Or[(t, 'E')], Or[(t, 'O')]
        l, rc = (R, R + 2) if t == 'A' else (R + 1, R + 4)
        a(f"v_add_f32 v{l}, v{E+12}, v{O+12}")
        a(f"v_rcp_f32 v{rc}, v{l}")
        if t == 'A':
            a(mf_pv('B', 'O', 1))
            a.lab("L_epi")
        a(f"v_permlane32_swap_b32 v{O}, v{O+8}")
        a(f"v_permlane32_swap_b32 v{O+1}, v{O+9}")
        for j in (8, 0, 2, 4, 6):
            a(f"v_pk_add_f32 {vr(E+j,2)}, {vr(E+j,2)}, {vr(O+j+2,2)}")
        for j in (8, 0, 2, 4, 6):
            a(f"v_pk_mul_f32 {vr(E+j,2)}, {vr(E+j,2)}, {vr(rc,2)} op_sel_hi:[1,0]")
        st = vStA if t == 'A' else vStB
        for j in (4, 0, 1, 2, 3):
            a(f"v_cvt_pk_bf16_f32 v{PK[t]+j}, v{E+2*j}, v{E+2*j+1}")
        a(f"ds_write_b32 v{st}, v{PK[t]+4} offset:16")
        a(f"ds_write2_b32 v{st}, v{PK[t]}, v{PK[t]+1} offset0:0 offset1:1")
        a(f"ds_write2_b32 v{st}, v{PK[t]+2}, v{PK[t]+3} offset0:2 offset1:3")
        if t == 'A':
            a(f"ds_read_b128 {vr(OB,4)}, v{vStR}")
        else:
            a(f"ds_read_b128 {vr(OB+4,4)}, v{vStR} offset:1024")
            a(f"ds_read_b128 {vr(OB+8,4)}, v{vStR} offset:2048")
            lgkm(5)
            a(f"buffer_store_dwordx4 {vr(OB,4)}, v{vDma}, s[20:23], 0 offen {fl}")
    for t, l in (('A', R), ('B', R + 1)):
        for j in range(5):
            a(f"v_dot2c_f32_bf16 v{l}, 0, v{PK[t]+j}")
    lgkm(1)
    a(f"buffer_store_dwordx4 {vr(OB+4,4)}, v{vDma}, s[20:23], 0 offen offset:1024 {fl}")
    lgkm(0)
    a(f"buffer_store_dwordx4 {vr(OB+8,4)}, v{vDma}, s[20:23], 0 offen offset:2048 {fl}")
    a(f"v_cmp_nge_f32 s[36:37], v{R}, s34")
    a(f"v_cmp_nle_f32 vcc, v{R}, s35")
    a("s_or_b64 s[36:37], s[36:37], vcc")
    a(f"v_cmp_nge_f32 s[38:39], v{R+1}, s34")
    a(f"v_cmp_nle_f32 vcc, v{R+1}, s35")
    a("s_or_b64 s[36:37], s[36:37], s[38:39]")
    a("s_or_b64 s[36:37], s[36:37], vcc")
    a("s_cbranch_scc1 L_check")
    a.lab("L_done")
    if opt.amp:
        stamp(7)
        a("s_waitcnt vmcnt(0)")
        stamp(8)
        a("s_memrealtime s[42:43]")
        a("s_waitcnt lgkmcnt(0)")
        a(f"s_sub_u32 s50, s{60+2*opt.ampb}, s{60+2*opt.ampa}")
        a(f"s_mul_i32 s50, s50, {opt.amp}")
        a("s_min_u32 s50, s50, 20000")
        if opt.ampr:
            a("s_cmp_lt_u32 s24, 4")
            a("s_cselect_b32 s50, s50, 0" if opt.ampr == 'A' else "s_cselect_b32 s50, 0, s50")
        a.lab("L_spin")
        a("s_sleep 2")
        a("s_memrealtime s[52:53]")
        a("s_waitcnt lgkmcnt(0)")
        a("s_sub_u32 s51, s52, s42")
        a("s_cmp_lt_u32 s51, s50")
        a("s_cbranch_scc1 L_spin")
    if opt.stamp:
        a("s_mov_b64 exec, 1")
        stamp(7)
        a("s_waitcnt vmcnt(0)")
        stamp(8)
        a("s_memrealtime s[58:59]")
        a("s_getreg_b32 s42, hwreg(HW_REG_HW_ID)")
        a("s_getreg_b32 s43, hwreg(HW_REG_XCC_ID)")
        a("s_waitcnt lgkmcnt(0)")
        for i, sr in enumerate((56, 58, 42, 43, 60, 62, 64, 66, 68, 70, 72, 74, 76)):
            a(f"v_mov_b32 v{16+i}, s{sr}")
        a("s_lshl_b32 s50, s2, 3"); a("s_add_u32 s50, s50, s24"); a("s_lshl_b32 s50, s50, 6")
        a("v_mov_b32 v1, s50")
        for i in range(4): a(f"global_store_dwordx4 v1, v[{16+4*i}:{19+4*i}], s[40:41] offset:{16*i}")
        if opt.stamp == 2:
            a("s_mov_b64 exec, -1")
            a("s_lshl_b32 s50, s50, 3"); a("s_add_u32 s50, s50, 0x100000")
            a("v_lshl_add_u32 v1, v0, 3, s50")
            a("global_store_dwordx2 v1, v[188:189], s[40:41]")
    a.lab("L_end")
    a("s_endpgm")
    a.lab("L_check")
    a("s_cmp_lg_u32 s33, 0")
    a("s_cbranch_scc1 L_done")
    a("s_waitcnt vmcnt(0)")
    mA, mB = 0, vSlot
    if opt.stamp == 2: mA = 187
    def rewind(n):
        a(f"v_subrev_u32 v{vK}, {n*ST}, v{vK}")
        a(f"v_mul_u32_u24 v{vT2}, {n}, v{vIncV}")
        a(f"v_sub_u32 v{vV}, v{vV}, v{vT2}")
        a("s_mov_b32 s29, 0")
    def scores():
        a(f"buffer_load_dwordx2 {vr(KX,2)}, v{vK}, s[16:19], 0 offen offset:32")
        a(f"buffer_load_dwordx4 {vr(Kr['E'],4)}, v{vK}, s[16:19], 0 offen")
        a(f"buffer_load_dwordx4 {vr(Kr['O'],4)}, v{vK}, s[16:19], 0 offen offset:40")
        a("s_waitcnt vmcnt(0) lgkmcnt(0)")
        a(mf_x('E')); a(mf_x('O'))
        a("s_nop 15"); a("s_nop 3")
        for par in 'EO':
            for t in 'AB': a(mf_q(t, par))
        a("s_nop 15")
    def step(lab):
        a(f"v_add_u32 v{vK}, v{vIncK}, v{vK}")
        a(f"v_add_u32 v{vV}, v{vIncV}, v{vV}")
        a("s_add_u32 s29, s29, 1")
        a("s_cmp_lg_u32 s29, 32")
        a(f"s_cbranch_scc1 {lab}")
    rewind(31)
    a(f"v_mov_b32 v{mA}, 0xff800000"); a(f"v_mov_b32 v{mB}, 0xff800000")
    a.lab("L_max")
    scores()
    for par in 'EO':
        for t, m in (('A', mA), ('B', mB)):
            s = Sr[par] + (16 if t == 'B' else 0)
            for j in range(0, 16, 2): a(f"v_max3_f32 v{m}, v{m}, v{s+j}, v{s+j+1}")
    step("L_max")
    for m in (mA, mB):
        a(f"v_mov_b32 v{vT2}, v{m}")
        a("s_nop 1")
        a(f"v_permlane32_swap_b32 v{vT2}, v{m}")
        a("s_nop 1")
        a(f"v_max_f32 v{m}, v{m}, v{vT2}")
    rewind(32)
    for r in range(120, 184): a(f"v_mov_b32 v{r}, 0")
    a.lab("L_acc")
    for par in 'EO':
        for j in range(2):
            for f in rd_v(par, j, 0): a(f)
    scores()
    for par in 'EO':
        for t, m in (('A', mA), ('B', mB)):
            s = Sr[par] + (16 if t == 'B' else 0)
            for j in range(16): a(f"v_sub_f32 v{s+j}, v{s+j}, v{m}")
            for j in range(16): a(f"v_exp_f32 v{s+j}, v{s+j}")
    a("s_nop 1")
    for par in 'EO':
        for t in 'AB':
            for j in range(2): a(mf_pv(t, par, j))
    step("L_acc")
    a("s_nop 15")
    a("s_mov_b32 s33, 1")
    a(f"v_add_f32 v{R}, v{Or[('A','E')]+12}, v{Or[('A','O')]+12}")
    a(f"v_rcp_f32 v{R+2}, v{R}")
    a("s_branch L_epi")
    nv = 192 if opt.stamp == 2 else NV
    a.raw(f""".section .rodata,"a"
.p2align 6
.amdhsa_kernel {NAME}_kernel
  .amdhsa_next_free_vgpr {nv}
  .amdhsa_next_free_sgpr {90 if smem else 48}
  .amdhsa_accum_offset {nv}
  .amdhsa_group_segment_fixed_size 0
  .amdhsa_kernarg_size 48
  .amdhsa_user_sgpr_count 2
  .amdhsa_user_sgpr_kernarg_segment_ptr 1
  .amdhsa_system_sgpr_workgroup_id_x 1
.end_amdhsa_kernel""")
    return a.text()

def parse(argv):
    p = argparse.ArgumentParser()
    p.add_argument('-o', default=f"cdna_kernels/{NAME}.s")
    p.add_argument('--grp', default='2,2')
    p.add_argument('--pf', type=int, default=1)
    p.add_argument('--kxm', type=int, default=0)
    p.add_argument('--b05', type=int, default=0)
    p.add_argument('--b1', type=int, default=3)
    p.add_argument('--b2', type=int, default=10)
    p.add_argument('--cut', type=int, default=4)
    p.add_argument('--pos', default='2,5,15,18,21,31,25')
    p.add_argument('--tpos', default='2,5,13,18,21,26,29')
    p.add_argument('--stfl', default='sc1')
    p.add_argument('--ldfl', default='')
    p.add_argument('--qfl', default='')
    p.add_argument('--stamp', type=int, default=0)
    p.add_argument('--amp', type=int, default=0)
    p.add_argument('--ampa', type=int, default=0)
    p.add_argument('--ampb', type=int, default=8)
    p.add_argument('--ampr', default='')
    return p.parse_args(argv)

if __name__ == '__main__':
    opt = parse(sys.argv[1:])
    open(opt.o, 'w').write(gen(opt))
```

```python
import sys, struct, math, argparse

NAME = "standalone__fused_io_aware_attn__prompt"
HB = 73728
ST = 2304
VBASE = HB
CBASE = 2 * HB
ABASE = CBASE + 4096
LDS = ABASE + 4096

def f2u(x): return struct.unpack('<I', struct.pack('<f', x))[0]
CSCALE = f2u(math.log2(math.e) / math.sqrt(18.0))

vK, vV = 2, 3
vIncK, vIncV = 4, 5
vSlot, vIdx, vQo, vDma = 1, 6, 7, 14
vT2 = 15
KX = 8
QX = {'E': 10, 'O': 12}
Kr = {'E': 16, 'O': 20}
Qr = {('A', 'E'): 24, ('B', 'E'): 28, ('A', 'O'): 32, ('B', 'O'): 36}
Vr = {('E', 0): 40, ('E', 1): 44, ('O', 0): 48, ('O', 1): 52}
Sr = {'E': 56, 'O': 88}
Or = {('A', 'E'): 120, ('B', 'E'): 136, ('A', 'O'): 152, ('B', 'O'): 168}
vStA, vStB, vStR = 184, 185, 186
NV = 188

def vr(b, n): return f"v[{b}:{b+n-1}]"

class Asm:
    def __init__(self): self.l = []
    def __call__(self, s): self.l.append("    " + s)
    def lab(self, s): self.l.append(s + ":")
    def raw(self, s): self.l.append(s)
    def text(self): return "\n".join(self.l) + "\n"

def mf_x(par):
    return f"v_mfma_f32_32x32x4_2b_bf16 {vr(Sr[par],32)}, {vr(KX,2)}, {vr(QX[par],2)}, 0 cbsz:1 abid:0"
def mf_q(t, par):
    s = Sr[par] + (16 if t == 'B' else 0)
    return f"v_mfma_f32_32x32x16_bf16 {vr(s,16)}, {vr(Kr[par],4)}, {vr(Qr[(t,par)],4)}, {vr(s,16)}"
def mf_pv(t, par, j):
    s = Sr[par] + (16 if t == 'B' else 0) + 8 * j
    return f"v_smfmac_f32_32x32x32_bf16 {vr(Or[(t,par)],16)}, {vr(Vr[(par,j)],4)}, {vr(s,8)}, v{vIdx}"
def ex(par, i): return f"v_exp_f32 v{Sr[par]+i}, v{Sr[par]+i}"
def rd_kx(u): return [f"ds_read_b64 {vr(KX,2)}, v{vK} offset:{u*ST+32}"]
def rd_k(par, u):
    o = u * ST + (40 if par == 'O' else 0)
    return [f"ds_read_b64 {vr(Kr[par],2)}, v{vK} offset:{o}", f"ds_read_b64 {vr(Kr[par]+2,2)}, v{vK} offset:{o+8}"]
def rd_v(par, j, u):
    o = u * ST + (32 if par == 'O' else 0) + 16 * j * 72
    return [f"ds_read_b64_tr_b16 {vr(Vr[(par,j)],2)}, v{vV} offset:{o}", f"ds_read_b64_tr_b16 {vr(Vr[(par,j)]+2,2)}, v{vV} offset:{o+4*72}"]

def phase_list(par, opt, look=True):
    oth = 'O' if par == 'E' else 'E'
    pos = [int(x) for x in (opt.pos if look else opt.tpos).split(',')]
    mf = {pos[0]: mf_pv('B', oth, 1), pos[2]: mf_pv('A', par, 0), pos[3]: mf_pv('A', par, 1), pos[5]: mf_pv('B', par, 0)}
    if look:
        mf.update({pos[1]: mf_x(oth), pos[4]: mf_q('A', oth), pos[6]: mf_q('B', oth)})
    out = []
    for i in range(32):
        if i in mf: out.append((i, 'm', mf[i]))
        out.append((i, 'e', ex(par, i)))
    return out

def gen(opt):
    a = Asm()
    def stamp(i):
        if opt.stamp: a(f"s_memtime s[{60+2*i}:{61+2*i}]")
        if opt.amp and i in (opt.ampa, opt.ampb): a(f"{'s_memtime' if opt.ampbase >= 0 else 's_memrealtime'} s[{60+2*i}:{61+2*i}]")
    smem = opt.stamp or (opt.amp and not (opt.ampa == 0 and opt.ampb == 8))
    def lgkm(n): a(f"s_waitcnt lgkmcnt({0 if smem else n})")
    a.raw(f"""; Fused attention forward, B=2 H=32 S=2048 D=18, bf16 in/out (written by my generator gen/gen4.py).
; @launch grid=(256,1,1) block=(512,1,1) lds={LDS}
.amdgcn_target "amdgcn-amd-amdhsa--gfx950"
.text
.globl {NAME}_kernel
.p2align 8
.type {NAME}_kernel,@function
{NAME}_kernel:""")
    a("s_load_dwordx4 s[4:7], s[0:1], 0")
    a("s_load_dwordx4 s[8:11], s[0:1], 16")
    if opt.stamp:
        a("s_load_dwordx2 s[40:41], s[0:1], 40")
        a("s_memrealtime s[56:57]")
    stamp(0)
    a("s_cmp_ge_u32 s2, 256")
    a("s_cbranch_scc1 L_end")
    t0, t1 = Sr['E'] + 8, Sr['E'] + 9
    a(f"v_lshrrev_b32 v{t0}, 6, v0")
    a(f"v_lshlrev_b32 v{vSlot}, 3, v0")
    a(f"v_readfirstlane_b32 s24, v{t0}")
    a("v_and_b32 v0, 63, v0")
    if opt.pf:
        a("s_getpc_b64 s[36:37]")
        a(f"v_lshlrev_b32 v{vT2}, 6, v0")
        a("s_cmp_lg_u32 s24, 7")
        a("s_cbranch_scc1 L_nopf")
        a(f"global_load_dword v{vT2}, v{vT2}, s[36:37]")
        a.lab("L_nopf")
    a("s_and_b32 s25, s2, 7")
    a("s_lshr_b32 s26, s2, 5")
    a("s_lshl3_add_u32 s25, s25, s26")
    a(f"s_mul_i32 s25, s25, {HB}")
    a("s_bfe_u32 s26, s2, 0x20003")
    a("s_lshl3_add_u32 s26, s26, s24")
    a(f"s_mul_i32 s26, s26, {ST}")
    a("s_add_u32 s26, s26, s25")
    a(f"v_lshlrev_b32 v{vDma}, 4, v0")
    a("s_lshl_b32 s27, s24, 10")
    a("s_mov_b32 m0, s27")
    a(f"s_mov_b32 s18, {HB}")
    a("s_mov_b32 s19, 0x00020000")
    a(f"s_mov_b32 s46, {HB}")
    a("s_mov_b32 s47, 0x00020000")
    a(f"s_movk_i32 s14, {ST}")
    a("s_mov_b32 s15, 0x00020000")
    a(f"v_mul_u32_u24 v{vQo}, 36, v0")
    a("s_waitcnt lgkmcnt(0)")
    stamp(1)
    a("s_add_u32 s16, s6, s25")
    a("s_addc_u32 s17, s7, 0")
    ldf = opt.ldfl.replace('_', ' ')
    a(f"buffer_load_dwordx4 v{vDma}, s[16:19], s27 offen lds {ldf}")
    a("s_add_u32 m0, s27, s18")
    a("s_add_u32 s44, s8, s25")
    a("s_addc_u32 s45, s9, 0")
    a(f"buffer_load_dwordx4 v{vDma}, s[44:47], s27 offen lds {ldf}")
    def dma2():
        a("s_add_u32 m0, s27, 8192")
        a("s_add_u32 s27, s27, 8192")
        a(f"buffer_load_dwordx4 v{vDma}, s[16:19], s27 offen lds {ldf}")
        a("s_add_u32 m0, s27, s18")
        a("s_nop 0")
        a(f"buffer_load_dwordx4 v{vDma}, s[44:47], s27 offen lds {ldf}")
    T = Sr['O']
    a("s_add_u32 s12, s4, s26")
    a("s_addc_u32 s13, s5, 0")
    qf = opt.qfl.replace('_', ' ')
    a(f"buffer_load_dword v{T+8}, v{vQo}, s[12:15], 0 offen offset:32 {qf}")
    a(f"buffer_load_dwordx4 {vr(T,4)}, v{vQo}, s[12:15], 0 offen {qf}")
    a(f"buffer_load_dwordx4 {vr(T+4,4)}, v{vQo}, s[12:15], 0 offen offset:16 {qf}")
    a(f"v_and_b32 v{t0}, 31, v0")
    a(f"v_lshrrev_b32 v{t1}, 5, v0")
    a("s_add_u32 s20, s10, s26")
    a("s_addc_u32 s21, s11, 0")
    a(f"s_movk_i32 s22, {ST}")
    a("s_mov_b32 s23, 0x00020000")
    C = Sr['E']
    a(f"v_and_b32 v{C}, 1, v0")
    a(f"v_subrev_u32 v{C}, 1, v{C}")
    a(f"v_and_b32 v{C}, 0x3f80, v{C}")
    a(f"v_mov_b32 v{C+1}, 0")
    a(f"v_add_u32 v{vSlot}, {CBASE}, v{vSlot}")
    a(f"ds_write_b64 v{vSlot}, {vr(C,2)}")
    a(f"v_mov_b32 v{QX['E']}, 0"); a(f"v_mov_b32 v{QX['E']+1}, 0"); a(f"v_mov_b32 v{QX['O']}, 0")
    a(f"v_mul_u32_u24 v{vK}, 72, v{t0}")
    a(f"v_lshl_add_u32 v{vK}, v{t1}, 4, v{vK}")
    a(f"v_mfma_f32_32x32x4_2b_bf16 {vr(120,32)}, {vr(QX['E'],2)}, {vr(QX['E'],2)}, 0")
    a(f"v_mfma_f32_32x32x4_2b_bf16 {vr(152,32)}, {vr(QX['E'],2)}, {vr(QX['E'],2)}, 0")
    t3, t4, t5 = C + 4, C + 5, C + 6
    a(f"v_bfe_u32 v{t3}, v0, 2, 2")
    a(f"v_lshl_add_u32 v{t3}, v{t1}, 3, v{t3}")
    a(f"v_mul_u32_u24 v{t3}, 72, v{t3}")
    a(f"v_and_b32 v{t4}, 1, v0")
    a(f"v_lshl_add_u32 v{t3}, v{t4}, 4, v{t3}")
    a(f"v_and_b32 v{t4}, 2, v0")
    a(f"v_lshl_add_u32 v{t3}, v{t4}, 2, v{t3}")
    a(f"v_lshlrev_b32 v{t5}, 6, v{t1}")
    a(f"v_lshlrev_b32 v{t4}, 2, v{t4}")
    a(f"v_sub_u32 v{t5}, v{t5}, v{t4}")
    a(f"v_add_u32 v{t5}, {CBASE+56}, v{t5}")
    a(f"v_and_b32 v{t4}, 16, v0")
    a(f"v_add3_u32 v{t3}, v{t4}, v{t3}, s18")
    a("s_mov_b32 vcc_lo, 0xdddd0000"); a("s_mov_b32 vcc_hi, 0xdddd0000")
    a(f"v_mov_b32 v{vIdx}, 0xdddd")
    a(f"v_mov_b32 v{vIncK}, {ST}")
    a(f"v_cndmask_b32 v{vIncV}, v{vIncK}, 0, vcc")
    a(f"v_cndmask_b32 v{vV}, v{t3}, v{t5}, vcc")
    a(f"v_add_u32 v{C+2}, v{vK}, v{vIncK}")
    a(f"v_add_u32 v{C+3}, v{vV}, v{vIncV}")
    a(f"ds_write_b64 v{vSlot}, {vr(C+2,2)} offset:4096")
    a(f"s_mul_i32 s28, s24, {ST}")
    a(f"v_mul_u32_u24 v{vStA}, 36, v{t0}")
    a(f"v_lshl_add_u32 v{vStA}, v{t1}, 4, v{vStA}")
    a(f"v_add_u32 v{vStA}, s28, v{vStA}")
    a(f"v_add_u32 v{vStB}, 1152, v{vStA}")
    a(f"v_add_u32 v{vStR}, s28, v{vDma}")
    a(f"s_mov_b32 s30, {CSCALE:#x}"); a(f"s_mov_b32 s31, {CSCALE:#x}")
    a("s_mov_b32 s29, 0")
    b1, b2 = opt.b1, opt.b2
    grp = [int(x) for x in opt.grp.split(',')]
    g0, per = grp
    nd = (8 - g0) // per
    assert (8 - g0) % per == 0 and b2 >= 9 and g0 >= 2
    a(f"s_mov_b32 s32, {(1 << (b1-1)) | (1 << (b2-1)):#x}")
    a("s_cmp_ge_u32 s24, 4")
    a("s_cbranch_scc1 L_nowait")
    a("s_waitcnt vmcnt(3)")
    a.lab("L_nowait")
    a("s_waitcnt lgkmcnt(0)")
    stamp(2)
    a("s_barrier")
    for f in rd_kx(0) + rd_k('E', 0) + rd_k('O', 0) + rd_v('E', 0, 0) + rd_v('E', 1, 0): a(f)
    a("s_setprio 3")
    a("s_cbranch_scc0 L_prep")
    a("s_waitcnt vmcnt(3)")
    a("s_barrier")
    a.lab("L_prep")
    stamp(3)
    W = T + 10
    wof = {}
    def unpack(src, k):
        w = W + 2 * k; wof[src] = w
        a(f"v_lshlrev_b32 v{w}, 16, v{src}")
        a(f"v_and_b32 v{w+1}, 0xffff0000, v{src}")
        a(f"v_pk_mul_f32 {vr(w,2)}, {vr(w,2)}, s[30:31]")
    def pack(src, d): a(f"v_cvt_pk_bf16_f32 v{d}, v{wof[src]}, v{wof[src]+1}")
    QAE, QBE, QAO, QBO = Qr[('A','E')], Qr[('B','E')], Qr[('A','O')], Qr[('B','O')]
    a("s_waitcnt vmcnt(2)")
    unpack(T + 8, 8)
    pack(T + 8, QX['E']); pack(T + 8, QBO + 3)
    a(f"s_waitcnt vmcnt(1) lgkmcnt({0 if smem else 8})")
    a(mf_x('E'))
    for j in range(4): unpack(T + j, j)
    for j in range(4): pack(T + j, QAE + j)
    pack(T, QX['O'] + 1)
    a(f"s_waitcnt vmcnt(0) lgkmcnt({0 if smem else 6})")
    stamp(4)
    for j in range(4, 8): unpack(T + j, j)
    for j in range(4): pack(T + 4 + j, QBE + j)
    for j in range(4): a(f"v_permlane32_swap_b32 v{QAE+j}, v{QBE+j}")
    pack(T + 4, QAO + 3)
    a(f"v_mov_b32 v{QAO}, v{QAE+1}")
    a(mf_q('A', 'E'))
    a(f"v_permlane32_swap_b32 v{QAO+3}, v{QBO+3}")
    for j in range(1, 3): a(f"v_mov_b32 v{QAO+j}, v{QAE+j+1}")
    for j in range(0, 3): a(f"v_mov_b32 v{QBO+j}, v{QBE+j+1}")
    a(mf_q('B', 'E'))
    a("s_cbranch_scc1 L_startB")
    a("s_setprio 2")
    a("s_waitcnt lgkmcnt(0)")
    if opt.b05 == 0:
        a("s_nop 0")
        a("s_barrier")
    else:
        a("s_nop 1")
    pE, pO, pT = phase_list('E', opt), phase_list('O', opt), phase_list('O', opt, look=False)
    cut = opt.cut
    pos0 = int(opt.pos.split(',')[0])
    assert cut > pos0
    a.lab("L_first")
    stamp(5)
    for (i, k_, s_) in pE:
        if not (i == pos0 and k_ == 'm'): a(s_)
    for (i, k_, s_) in pO:
        if i < cut: a(s_)
    if opt.b05 == 0:
        a("s_cbranch_scc0 L_topA")
        a("s_branch L_topB")
    else:
        a("s_cbranch_scc1 L_topB")
        a("s_barrier")
        a("s_branch L_topA")
    a.lab("L_startB")
    a("s_setprio 1")
    a("s_mov_b32 s29, 1")
    for r in range(g0): dma2()
    a("s_cmp_ge_u32 s24, 4")
    a("s_waitcnt lgkmcnt(0)")
    a("s_branch L_first")
    burst = rd_kx(1) + rd_v('O', 0, 0) + rd_k('E', 1) + rd_v('O', 1, 0) + rd_v('E', 0, 1) + rd_v('E', 1, 1) + rd_k('O', 1)
    if opt.kxm: burst = ["s_mov_b32 exec_hi, 0", burst[0], "s_mov_b32 exec_hi, -1"] + burst[1:]
    for role in 'AB':
        a.raw("    .p2align 6")
        a.lab(f"L_top{role}")
        if role == 'A':
            a("s_setprio 0")
            a("s_add_u32 s29, s29, 1")
            a("s_cmp_eq_u32 s29, 32")
            a("s_cbranch_scc1 L_tail")
        for f in burst: a(f)
        a(f"ds_add_rtn_u64 {vr(vK,2)}, v{vSlot}, {vr(vIncK,2)} offset:4096")
        if opt.stamp == 2:
            a("s_memtime s[80:81]"); a("s_memrealtime s[82:83]")
        a(f"s_cmp_gt_u32 s29, {nd+1 if role == 'A' else nd}")
        a(f"s_cbranch_scc1 L_nd{role}")
        for r in range(per): dma2()
        if role == 'A' and g0 > per:
            a("s_cmp_lg_u32 s29, 1")
            a("s_cbranch_scc1 L_ndA")
            for r in range(g0 - per): dma2()
        a.lab(f"L_nd{role}")
        a(f"s_cmp_lg_u32 s29, {b2-1}")
        a(f"s_cbranch_scc1 L_nw{role}")
        a("s_waitcnt vmcnt(0)")
        a.lab(f"L_nw{role}")
        a("s_bitcmp1_b32 s32, s29")
        a("s_waitcnt lgkmcnt(0)")
        if opt.stamp == 2:
            a("s_mov_b32 s84, m0"); a("s_mov_b32 m0, s29")
            a("v_writelane_b32 v188, s80, m0"); a("v_writelane_b32 v189, s82, m0"); a("s_mov_b32 m0, s84")
        if role == 'B':
            a("s_cbranch_scc0 L_goB")
            a(f"s_waitcnt vmcnt({2*(g0 + per*min(b1-1, nd) - 2)})")
            a("s_barrier")
            a.lab("L_goB")
        first = True
        for (i, k_, s_) in pO:
            if i < cut: continue
            a(s_)
            if first and role == 'A': a("s_setprio 2")
            first = False
        for (i, k_, s_) in pE: a(s_)
        for (i, k_, s_) in pO:
            if i < cut: a(s_)
        if role == 'A':
            a("s_cbranch_scc0 L_topA")
            a(f"s_waitcnt vmcnt({2*(g0 + per*min(b1-2, nd) - 2)})")
            a("s_barrier")
            a("s_branch L_topA")
        else:
            a("s_add_u32 s29, s29, 1")
            a("s_cmp_lg_u32 s29, 32")
            a("s_cbranch_scc1 L_topB")
    assert nd + 1 <= b2 - 1
    a.lab("L_tail")
    for f in rd_v('O', 0, 0) + rd_v('O', 1, 0): a(f)
    a("s_mov_b32 s33, 0")
    a("s_mov_b32 s34, 0x30800000")
    a("s_mov_b32 s35, 0x6c800000")
    a("s_waitcnt lgkmcnt(0)")
    first = True
    for (i, k_, s) in pT:
        if i < cut: continue
        a(s)
        if first: a("s_setprio 2")
        first = False
    stamp(6)
    R = Sr['E']
    PK = {'A': Sr['E'] + 8, 'B': Sr['E'] + 14}
    OB = Sr['E'] + 20
    fl = opt.stfl.replace('_', ' ')
    for t in ('A', 'B'):
        E, O = Or[(t, 'E')], Or[(t, 'O')]
        l, rc = (R, R + 2) if t == 'A' else (R + 1, R + 4)
        a(f"v_add_f32 v{l}, v{E+12}, v{O+12}")
        a(f"v_rcp_f32 v{rc}, v{l}")
        if t == 'A':
            a(mf_pv('B', 'O', 1))
            a.lab("L_epi")
        a(f"v_permlane32_swap_b32 v{O}, v{O+8}")
        a(f"v_permlane32_swap_b32 v{O+1}, v{O+9}")
        for j in (8, 0, 2, 4, 6):
            a(f"v_pk_add_f32 {vr(E+j,2)}, {vr(E+j,2)}, {vr(O+j+2,2)}")
        for j in (8, 0, 2, 4, 6):
            a(f"v_pk_mul_f32 {vr(E+j,2)}, {vr(E+j,2)}, {vr(rc,2)} op_sel_hi:[1,0]")
        st = vStA if t == 'A' else vStB
        for j in (4, 0, 1, 2, 3):
            a(f"v_cvt_pk_bf16_f32 v{PK[t]+j}, v{E+2*j}, v{E+2*j+1}")
        a(f"ds_write_b32 v{st}, v{PK[t]+4} offset:16")
        a(f"ds_write2_b32 v{st}, v{PK[t]}, v{PK[t]+1} offset0:0 offset1:1")
        a(f"ds_write2_b32 v{st}, v{PK[t]+2}, v{PK[t]+3} offset0:2 offset1:3")
        if t == 'A':
            a(f"ds_read_b128 {vr(OB,4)}, v{vStR}")
        else:
            a(f"ds_read_b128 {vr(OB+4,4)}, v{vStR} offset:1024")
            a(f"ds_read_b128 {vr(OB+8,4)}, v{vStR} offset:2048")
            lgkm(5)
            a(f"buffer_store_dwordx4 {vr(OB,4)}, v{vDma}, s[20:23], 0 offen {fl}")
    for t, l in (('A', R), ('B', R + 1)):
        for j in range(5):
            a(f"v_dot2c_f32_bf16 v{l}, 0, v{PK[t]+j}")
    lgkm(1)
    a(f"buffer_store_dwordx4 {vr(OB+4,4)}, v{vDma}, s[20:23], 0 offen offset:1024 {fl}")
    lgkm(0)
    a(f"buffer_store_dwordx4 {vr(OB+8,4)}, v{vDma}, s[20:23], 0 offen offset:2048 {fl}")
    a(f"v_cmp_nge_f32 s[36:37], v{R}, s34")
    a(f"v_cmp_nle_f32 vcc, v{R}, s35")
    a("s_or_b64 s[36:37], s[36:37], vcc")
    a(f"v_cmp_nge_f32 s[38:39], v{R+1}, s34")
    a(f"v_cmp_nle_f32 vcc, v{R+1}, s35")
    a("s_or_b64 s[36:37], s[36:37], s[38:39]")
    a("s_or_b64 s[36:37], s[36:37], vcc")
    a("s_cbranch_scc1 L_check")
    a.lab("L_done")
    if opt.amp:
        stamp(7)
        a("s_waitcnt vmcnt(0)")
        stamp(8)
        a("s_memrealtime s[42:43]")
        a("s_waitcnt lgkmcnt(0)")
        a(f"s_sub_u32 s50, s{60+2*opt.ampb}, s{60+2*opt.ampa}")
        if opt.ampbase >= 0:
            a(f"s_max_u32 s50, s50, {opt.ampbase}")
            a(f"s_sub_u32 s50, s50, {opt.ampbase}")
            a("s_and_b32 s51, s2, 7")
            a("s_cselect_b32 s50, 0, s50")
        a(f"s_mul_i32 s50, s50, {opt.amp}")
        a("s_min_u32 s50, s50, 20000")
        if opt.ampr:
            a("s_cmp_lt_u32 s24, 4")
            a("s_cselect_b32 s50, s50, 0" if opt.ampr == 'A' else "s_cselect_b32 s50, 0, s50")
        a.lab("L_spin")
        a("s_sleep 2")
        a("s_memrealtime s[52:53]")
        a("s_waitcnt lgkmcnt(0)")
        a("s_sub_u32 s51, s52, s42")
        a("s_cmp_lt_u32 s51, s50")
        a("s_cbranch_scc1 L_spin")
    if opt.stamp:
        a("s_mov_b64 exec, 1")
        stamp(7)
        a("s_waitcnt vmcnt(0)")
        stamp(8)
        a("s_memrealtime s[58:59]")
        a("s_getreg_b32 s42, hwreg(HW_REG_HW_ID)")
        a("s_getreg_b32 s43, hwreg(HW_REG_XCC_ID)")
        a("s_waitcnt lgkmcnt(0)")
        for i, sr in enumerate((56, 58, 42, 43, 60, 62, 64, 66, 68, 70, 72, 74, 76)):
            a(f"v_mov_b32 v{16+i}, s{sr}")
        a("s_lshl_b32 s50, s2, 3"); a("s_add_u32 s50, s50, s24"); a("s_lshl_b32 s50, s50, 6")
        a("v_mov_b32 v1, s50")
        for i in range(4): a(f"global_store_dwordx4 v1, v[{16+4*i}:{19+4*i}], s[40:41] offset:{16*i}")
        if opt.stamp == 2:
            a("s_mov_b64 exec, -1")
            a("s_lshl_b32 s50, s50, 3"); a("s_add_u32 s50, s50, 0x100000")
            a("v_lshl_add_u32 v1, v0, 3, s50")
            a("global_store_dwordx2 v1, v[188:189], s[40:41]")
    a.lab("L_end")
    a("s_endpgm")
    a.lab("L_check")
    a("s_cmp_lg_u32 s33, 0")
    a("s_cbranch_scc1 L_done")
    a("s_waitcnt vmcnt(0)")
    mA, mB = 0, vSlot
    if opt.stamp == 2: mA = 187
    def rewind(n):
        a(f"v_subrev_u32 v{vK}, {n*ST}, v{vK}")
        a(f"v_mul_u32_u24 v{vT2}, {n}, v{vIncV}")
        a(f"v_sub_u32 v{vV}, v{vV}, v{vT2}")
        a("s_mov_b32 s29, 0")
    def scores():
        a(f"buffer_load_dwordx2 {vr(KX,2)}, v{vK}, s[16:19], 0 offen offset:32")
        a(f"buffer_load_dwordx4 {vr(Kr['E'],4)}, v{vK}, s[16:19], 0 offen")
        a(f"buffer_load_dwordx4 {vr(Kr['O'],4)}, v{vK}, s[16:19], 0 offen offset:40")
        a("s_waitcnt vmcnt(0) lgkmcnt(0)")
        a(mf_x('E')); a(mf_x('O'))
        a("s_nop 15"); a("s_nop 3")
        for par in 'EO':
            for t in 'AB': a(mf_q(t, par))
        a("s_nop 15")
    def step(lab):
        a(f"v_add_u32 v{vK}, v{vIncK}, v{vK}")
        a(f"v_add_u32 v{vV}, v{vIncV}, v{vV}")
        a("s_add_u32 s29, s29, 1")
        a("s_cmp_lg_u32 s29, 32")
        a(f"s_cbranch_scc1 {lab}")
    rewind(31)
    a(f"v_mov_b32 v{mA}, 0xff800000"); a(f"v_mov_b32 v{mB}, 0xff800000")
    a.lab("L_max")
    scores()
    for par in 'EO':
        for t, m in (('A', mA), ('B', mB)):
            s = Sr[par] + (16 if t == 'B' else 0)
            for j in range(0, 16, 2): a(f"v_max3_f32 v{m}, v{m}, v{s+j}, v{s+j+1}")
    step("L_max")
    for m in (mA, mB):
        a(f"v_mov_b32 v{vT2}, v{m}")
        a("s_nop 1")
        a(f"v_permlane32_swap_b32 v{vT2}, v{m}")
        a("s_nop 1")
        a(f"v_max_f32 v{m}, v{m}, v{vT2}")
    rewind(32)
    for r in range(120, 184): a(f"v_mov_b32 v{r}, 0")
    a.lab("L_acc")
    for par in 'EO':
        for j in range(2):
            for f in rd_v(par, j, 0): a(f)
    scores()
    for par in 'EO':
        for t, m in (('A', mA), ('B', mB)):
            s = Sr[par] + (16 if t == 'B' else 0)
            for j in range(16): a(f"v_sub_f32 v{s+j}, v{s+j}, v{m}")
            for j in range(16): a(f"v_exp_f32 v{s+j}, v{s+j}")
    a("s_nop 1")
    for par in 'EO':
        for t in 'AB':
            for j in range(2): a(mf_pv(t, par, j))
    step("L_acc")
    a("s_nop 15")
    a("s_mov_b32 s33, 1")
    a(f"v_add_f32 v{R}, v{Or[('A','E')]+12}, v{Or[('A','O')]+12}")
    a(f"v_rcp_f32 v{R+2}, v{R}")
    a("s_branch L_epi")
    nv = 192 if opt.stamp == 2 else NV
    a.raw(f""".section .rodata,"a"
.p2align 6
.amdhsa_kernel {NAME}_kernel
  .amdhsa_next_free_vgpr {nv}
  .amdhsa_next_free_sgpr {90 if (opt.stamp or opt.amp) else 48}
  .amdhsa_accum_offset {nv}
  .amdhsa_group_segment_fixed_size 0
  .amdhsa_kernarg_size 48
  .amdhsa_user_sgpr_count 2
  .amdhsa_user_sgpr_kernarg_segment_ptr 1
  .amdhsa_system_sgpr_workgroup_id_x 1
.end_amdhsa_kernel""")
    return a.text()

def parse(argv):
    p = argparse.ArgumentParser()
    p.add_argument('-o', default=f"cdna_kernels/{NAME}.s")
    p.add_argument('--grp', default='2,2')
    p.add_argument('--pf', type=int, default=1)
    p.add_argument('--kxm', type=int, default=0)
    p.add_argument('--b05', type=int, default=0)
    p.add_argument('--b1', type=int, default=3)
    p.add_argument('--b2', type=int, default=10)
    p.add_argument('--cut', type=int, default=4)
    p.add_argument('--pos', default='2,5,15,18,21,31,25')
    p.add_argument('--tpos', default='2,5,13,18,21,26,29')
    p.add_argument('--stfl', default='sc1')
    p.add_argument('--ldfl', default='')
    p.add_argument('--qfl', default='')
    p.add_argument('--stamp', type=int, default=0)
    p.add_argument('--amp', type=int, default=0)
    p.add_argument('--ampa', type=int, default=0)
    p.add_argument('--ampb', type=int, default=8)
    p.add_argument('--ampr', default='')
    p.add_argument('--ampbase', type=int, default=-1)
    return p.parse_args(argv)

if __name__ == '__main__':
    opt = parse(sys.argv[1:])
    open(opt.o, 'w').write(gen(opt))
```

```python
import sys, struct, math, argparse

NAME = "standalone__fused_io_aware_attn__prompt"
HB = 73728
ST = 2304
VBASE = HB
CBASE = 2 * HB
ABASE = CBASE + 4096
LDS = ABASE + 4096

def f2u(x): return struct.unpack('<I', struct.pack('<f', x))[0]
CSCALE = f2u(math.log2(math.e) / math.sqrt(18.0))

vK, vV = 2, 3
vIncK, vIncV = 4, 5
vSlot, vIdx, vQo, vDma = 1, 6, 7, 14
vT2 = 15
KX = 8
QX = {'E': 10, 'O': 12}
Kr = {'E': 16, 'O': 20}
Qr = {('A', 'E'): 24, ('B', 'E'): 28, ('A', 'O'): 32, ('B', 'O'): 36}
Vr = {('E', 0): 40, ('E', 1): 44, ('O', 0): 48, ('O', 1): 52}
Sr = {'E': 56, 'O': 88}
Or = {('A', 'E'): 120, ('B', 'E'): 136, ('A', 'O'): 152, ('B', 'O'): 168}
vStA, vStB, vStR = 184, 185, 186
NV = 188

def vr(b, n): return f"v[{b}:{b+n-1}]"

class Asm:
    def __init__(self): self.l = []
    def __call__(self, s): self.l.append("    " + s)
    def lab(self, s): self.l.append(s + ":")
    def raw(self, s): self.l.append(s)
    def text(self): return "\n".join(self.l) + "\n"

def mf_x(par):
    return f"v_mfma_f32_32x32x4_2b_bf16 {vr(Sr[par],32)}, {vr(KX,2)}, {vr(QX[par],2)}, 0 cbsz:1 abid:0"
def mf_q(t, par):
    s = Sr[par] + (16 if t == 'B' else 0)
    return f"v_mfma_f32_32x32x16_bf16 {vr(s,16)}, {vr(Kr[par],4)}, {vr(Qr[(t,par)],4)}, {vr(s,16)}"
def mf_pv(t, par, j):
    s = Sr[par] + (16 if t == 'B' else 0) + 8 * j
    return f"v_smfmac_f32_32x32x32_bf16 {vr(Or[(t,par)],16)}, {vr(Vr[(par,j)],4)}, {vr(s,8)}, v{vIdx}"
def ex(par, i): return f"v_exp_f32 v{Sr[par]+i}, v{Sr[par]+i}"
def rd_kx(u): return [f"ds_read_b64 {vr(KX,2)}, v{vK} offset:{u*ST+32}"]
def rd_k(par, u):
    o = u * ST + (40 if par == 'O' else 0)
    return [f"ds_read_b64 {vr(Kr[par],2)}, v{vK} offset:{o}", f"ds_read_b64 {vr(Kr[par]+2,2)}, v{vK} offset:{o+8}"]
def rd_v(par, j, u):
    o = u * ST + (32 if par == 'O' else 0) + 16 * j * 72
    return [f"ds_read_b64_tr_b16 {vr(Vr[(par,j)],2)}, v{vV} offset:{o}", f"ds_read_b64_tr_b16 {vr(Vr[(par,j)]+2,2)}, v{vV} offset:{o+4*72}"]

def phase_list(par, opt, look=True):
    oth = 'O' if par == 'E' else 'E'
    pos = [int(x) for x in (opt.pos if look else opt.tpos).split(',')]
    mf = {pos[0]: mf_pv('B', oth, 1), pos[2]: mf_pv('A', par, 0), pos[3]: mf_pv('A', par, 1), pos[5]: mf_pv('B', par, 0)}
    if look:
        mf.update({pos[1]: mf_x(oth), pos[4]: mf_q('A', oth), pos[6]: mf_q('B', oth)})
    out = []
    for i in range(32):
        if i in mf: out.append((i, 'm', mf[i]))
        out.append((i, 'e', ex(par, i)))
    return out

def gen(opt):
    a = Asm()
    def stamp(i):
        if opt.stamp: a(f"s_memtime s[{60+2*i}:{61+2*i}]")
        if opt.amp and i in (opt.ampa, opt.ampb): a(f"{'s_memtime' if opt.ampbase >= 0 else 's_memrealtime'} s[{60+2*i}:{61+2*i}]")
    smem = opt.stamp or (opt.amp and not (opt.ampa in (0, 7) and opt.ampb in (7, 8)))
    def lgkm(n): a(f"s_waitcnt lgkmcnt({0 if smem else n})")
    a.raw(f"""; Fused attention forward, B=2 H=32 S=2048 D=18, bf16 in/out (written by my generator gen/gen4.py).
; @launch grid=(256,1,1) block=(512,1,1) lds={LDS}
.amdgcn_target "amdgcn-amd-amdhsa--gfx950"
.text
.globl {NAME}_kernel
.p2align 8
.type {NAME}_kernel,@function
{NAME}_kernel:""")
    a("s_load_dwordx4 s[4:7], s[0:1], 0")
    a("s_load_dwordx4 s[8:11], s[0:1], 16")
    if opt.stamp:
        a("s_load_dwordx2 s[40:41], s[0:1], 40")
        a("s_memrealtime s[56:57]")
    stamp(0)
    a("s_cmp_ge_u32 s2, 256")
    a("s_cbranch_scc1 L_end")
    t0, t1 = Sr['E'] + 8, Sr['E'] + 9
    a(f"v_lshrrev_b32 v{t0}, 6, v0")
    a(f"v_lshlrev_b32 v{vSlot}, 3, v0")
    a(f"v_readfirstlane_b32 s24, v{t0}")
    a("v_and_b32 v0, 63, v0")
    if opt.pf:
        a("s_getpc_b64 s[36:37]")
        a(f"v_lshlrev_b32 v{vT2}, 6, v0")
        a("s_cmp_lg_u32 s24, 7")
        a("s_cbranch_scc1 L_nopf")
        a(f"global_load_dword v{vT2}, v{vT2}, s[36:37]")
        a.lab("L_nopf")
    a("s_and_b32 s25, s2, 7")
    a("s_lshr_b32 s26, s2, 5")
    a("s_lshl3_add_u32 s25, s25, s26")
    a(f"s_mul_i32 s25, s25, {HB}")
    a("s_bfe_u32 s26, s2, 0x20003")
    a("s_lshl3_add_u32 s26, s26, s24")
    a(f"s_mul_i32 s26, s26, {ST}")
    a("s_add_u32 s26, s26, s25")
    a(f"v_lshlrev_b32 v{vDma}, 4, v0")
    a("s_lshl_b32 s27, s24, 10")
    a("s_mov_b32 m0, s27")
    a(f"s_mov_b32 s18, {HB}")
    a("s_mov_b32 s19, 0x00020000")
    a(f"s_mov_b32 s46, {HB}")
    a("s_mov_b32 s47, 0x00020000")
    a(f"s_movk_i32 s14, {ST}")
    a("s_mov_b32 s15, 0x00020000")
    a(f"v_mul_u32_u24 v{vQo}, 36, v0")
    a("s_waitcnt lgkmcnt(0)")
    stamp(1)
    a("s_add_u32 s16, s6, s25")
    a("s_addc_u32 s17, s7, 0")
    ldf = opt.ldfl.replace('_', ' ')
    a(f"buffer_load_dwordx4 v{vDma}, s[16:19], s27 offen lds {ldf}")
    a("s_add_u32 m0, s27, s18")
    a("s_add_u32 s44, s8, s25")
    a("s_addc_u32 s45, s9, 0")
    a(f"buffer_load_dwordx4 v{vDma}, s[44:47], s27 offen lds {ldf}")
    def dma2():
        a("s_add_u32 m0, s27, 8192")
        a("s_add_u32 s27, s27, 8192")
        a(f"buffer_load_dwordx4 v{vDma}, s[16:19], s27 offen lds {ldf}")
        a("s_add_u32 m0, s27, s18")
        a("s_nop 0")
        a(f"buffer_load_dwordx4 v{vDma}, s[44:47], s27 offen lds {ldf}")
    T = Sr['O']
    a("s_add_u32 s12, s4, s26")
    a("s_addc_u32 s13, s5, 0")
    qf = opt.qfl.replace('_', ' ')
    a(f"buffer_load_dword v{T+8}, v{vQo}, s[12:15], 0 offen offset:32 {qf}")
    a(f"buffer_load_dwordx4 {vr(T,4)}, v{vQo}, s[12:15], 0 offen {qf}")
    a(f"buffer_load_dwordx4 {vr(T+4,4)}, v{vQo}, s[12:15], 0 offen offset:16 {qf}")
    a(f"v_and_b32 v{t0}, 31, v0")
    a(f"v_lshrrev_b32 v{t1}, 5, v0")
    a("s_add_u32 s20, s10, s26")
    a("s_addc_u32 s21, s11, 0")
    a(f"s_movk_i32 s22, {ST}")
    a("s_mov_b32 s23, 0x00020000")
    C = Sr['E']
    a(f"v_and_b32 v{C}, 1, v0")
    a(f"v_subrev_u32 v{C}, 1, v{C}")
    a(f"v_and_b32 v{C}, 0x3f80, v{C}")
    a(f"v_mov_b32 v{C+1}, 0")
    a(f"v_add_u32 v{vSlot}, {CBASE}, v{vSlot}")
    a(f"ds_write_b64 v{vSlot}, {vr(C,2)}")
    a(f"v_mov_b32 v{QX['E']}, 0"); a(f"v_mov_b32 v{QX['E']+1}, 0"); a(f"v_mov_b32 v{QX['O']}, 0")
    a(f"v_mul_u32_u24 v{vK}, 72, v{t0}")
    a(f"v_lshl_add_u32 v{vK}, v{t1}, 4, v{vK}")
    a(f"v_mfma_f32_32x32x4_2b_bf16 {vr(120,32)}, {vr(QX['E'],2)}, {vr(QX['E'],2)}, 0")
    a(f"v_mfma_f32_32x32x4_2b_bf16 {vr(152,32)}, {vr(QX['E'],2)}, {vr(QX['E'],2)}, 0")
    t3, t4, t5 = C + 4, C + 5, C + 6
    a(f"v_bfe_u32 v{t3}, v0, 2, 2")
    a(f"v_lshl_add_u32 v{t3}, v{t1}, 3, v{t3}")
    a(f"v_mul_u32_u24 v{t3}, 72, v{t3}")
    a(f"v_and_b32 v{t4}, 1, v0")
    a(f"v_lshl_add_u32 v{t3}, v{t4}, 4, v{t3}")
    a(f"v_and_b32 v{t4}, 2, v0")
    a(f"v_lshl_add_u32 v{t3}, v{t4}, 2, v{t3}")
    a(f"v_lshlrev_b32 v{t5}, 6, v{t1}")
    a(f"v_lshlrev_b32 v{t4}, 2, v{t4}")
    a(f"v_sub_u32 v{t5}, v{t5}, v{t4}")
    a(f"v_add_u32 v{t5}, {CBASE+56}, v{t5}")
    a(f"v_and_b32 v{t4}, 16, v0")
    a(f"v_add3_u32 v{t3}, v{t4}, v{t3}, s18")
    a("s_mov_b32 vcc_lo, 0xdddd0000"); a("s_mov_b32 vcc_hi, 0xdddd0000")
    a(f"v_mov_b32 v{vIdx}, 0xdddd")
    a(f"v_mov_b32 v{vIncK}, {ST}")
    a(f"v_cndmask_b32 v{vIncV}, v{vIncK}, 0, vcc")
    a(f"v_cndmask_b32 v{vV}, v{t3}, v{t5}, vcc")
    a(f"v_add_u32 v{C+2}, v{vK}, v{vIncK}")
    a(f"v_add_u32 v{C+3}, v{vV}, v{vIncV}")
    a(f"ds_write_b64 v{vSlot}, {vr(C+2,2)} offset:4096")
    a(f"s_mul_i32 s28, s24, {ST}")
    a(f"v_mul_u32_u24 v{vStA}, 36, v{t0}")
    a(f"v_lshl_add_u32 v{vStA}, v{t1}, 4, v{vStA}")
    a(f"v_add_u32 v{vStA}, s28, v{vStA}")
    a(f"v_add_u32 v{vStB}, 1152, v{vStA}")
    a(f"v_add_u32 v{vStR}, s28, v{vDma}")
    a(f"s_mov_b32 s30, {CSCALE:#x}"); a(f"s_mov_b32 s31, {CSCALE:#x}")
    a("s_mov_b32 s29, 0")
    b1, b2 = opt.b1, opt.b2
    grp = [int(x) for x in opt.grp.split(',')]
    g0, per = grp
    nd = (8 - g0) // per
    assert (8 - g0) % per == 0 and b2 >= 9 and g0 >= 2
    a(f"s_mov_b32 s32, {(1 << (b1-1)) | (1 << (b2-1)):#x}")
    a("s_cmp_ge_u32 s24, 4")
    a("s_cbranch_scc1 L_nowait")
    a("s_waitcnt vmcnt(3)")
    a.lab("L_nowait")
    a("s_waitcnt lgkmcnt(0)")
    stamp(2)
    a("s_barrier")
    for f in rd_kx(0) + rd_k('E', 0) + rd_k('O', 0) + rd_v('E', 0, 0) + rd_v('E', 1, 0): a(f)
    a("s_setprio 3")
    a("s_cbranch_scc0 L_prep")
    a("s_waitcnt vmcnt(3)")
    a("s_barrier")
    a.lab("L_prep")
    stamp(3)
    W = T + 10
    wof = {}
    def unpack(src, k):
        w = W + 2 * k; wof[src] = w
        a(f"v_lshlrev_b32 v{w}, 16, v{src}")
        a(f"v_and_b32 v{w+1}, 0xffff0000, v{src}")
        a(f"v_pk_mul_f32 {vr(w,2)}, {vr(w,2)}, s[30:31]")
    def pack(src, d): a(f"v_cvt_pk_bf16_f32 v{d}, v{wof[src]}, v{wof[src]+1}")
    QAE, QBE, QAO, QBO = Qr[('A','E')], Qr[('B','E')], Qr[('A','O')], Qr[('B','O')]
    a("s_waitcnt vmcnt(2)")
    unpack(T + 8, 8)
    pack(T + 8, QX['E']); pack(T + 8, QBO + 3)
    a(f"s_waitcnt vmcnt(1) lgkmcnt({0 if smem else 8})")
    a(mf_x('E'))
    for j in range(4): unpack(T + j, j)
    for j in range(4): pack(T + j, QAE + j)
    pack(T, QX['O'] + 1)
    a(f"s_waitcnt vmcnt(0) lgkmcnt({0 if smem else 6})")
    stamp(4)
    for j in range(4, 8): unpack(T + j, j)
    for j in range(4): pack(T + 4 + j, QBE + j)
    for j in range(4): a(f"v_permlane32_swap_b32 v{QAE+j}, v{QBE+j}")
    pack(T + 4, QAO + 3)
    a(f"v_mov_b32 v{QAO}, v{QAE+1}")
    a(mf_q('A', 'E'))
    a(f"v_permlane32_swap_b32 v{QAO+3}, v{QBO+3}")
    for j in range(1, 3): a(f"v_mov_b32 v{QAO+j}, v{QAE+j+1}")
    for j in range(0, 3): a(f"v_mov_b32 v{QBO+j}, v{QBE+j+1}")
    a(mf_q('B', 'E'))
    a("s_cbranch_scc1 L_startB")
    a("s_setprio 2")
    a("s_waitcnt lgkmcnt(0)")
    if opt.b05 == 0:
        a("s_nop 0")
        a("s_barrier")
    else:
        a("s_nop 1")
    pE, pO, pT = phase_list('E', opt), phase_list('O', opt), phase_list('O', opt, look=False)
    cut = opt.cut
    pos0 = int(opt.pos.split(',')[0])
    assert cut > pos0
    a.lab("L_first")
    stamp(5)
    for (i, k_, s_) in pE:
        if not (i == pos0 and k_ == 'm'): a(s_)
    for (i, k_, s_) in pO:
        if i < cut: a(s_)
    if opt.b05 == 0:
        a("s_cbranch_scc0 L_topA")
        a("s_branch L_topB")
    else:
        a("s_cbranch_scc1 L_topB")
        a("s_barrier")
        a("s_branch L_topA")
    a.lab("L_startB")
    a("s_setprio 1")
    a("s_mov_b32 s29, 1")
    for r in range(g0): dma2()
    a("s_cmp_ge_u32 s24, 4")
    a("s_waitcnt lgkmcnt(0)")
    a("s_branch L_first")
    burst = rd_kx(1) + rd_v('O', 0, 0) + rd_k('E', 1) + rd_v('O', 1, 0) + rd_v('E', 0, 1) + rd_v('E', 1, 1) + rd_k('O', 1)
    if opt.kxm: burst = ["s_mov_b32 exec_hi, 0", burst[0], "s_mov_b32 exec_hi, -1"] + burst[1:]
    for role in 'AB':
        a.raw("    .p2align 6")
        a.lab(f"L_top{role}")
        if role == 'A':
            a("s_setprio 0")
            a("s_add_u32 s29, s29, 1")
            a("s_cmp_eq_u32 s29, 32")
            a("s_cbranch_scc1 L_tail")
        for f in burst: a(f)
        a(f"ds_add_rtn_u64 {vr(vK,2)}, v{vSlot}, {vr(vIncK,2)} offset:4096")
        if opt.stamp == 2:
            a("s_memtime s[80:81]"); a("s_memrealtime s[82:83]")
        a(f"s_cmp_gt_u32 s29, {nd+1 if role == 'A' else nd}")
        a(f"s_cbranch_scc1 L_nd{role}")
        for r in range(per): dma2()
        if role == 'A' and g0 > per:
            a("s_cmp_lg_u32 s29, 1")
            a("s_cbranch_scc1 L_ndA")
            for r in range(g0 - per): dma2()
        a.lab(f"L_nd{role}")
        a(f"s_cmp_lg_u32 s29, {b2-1}")
        a(f"s_cbranch_scc1 L_nw{role}")
        a("s_waitcnt vmcnt(0)")
        if opt.touch and role == 'A':
            a(f"buffer_load_dword v{vT2}, off, s[20:23], 0")
        a.lab(f"L_nw{role}")
        a("s_bitcmp1_b32 s32, s29")
        a("s_waitcnt lgkmcnt(0)")
        if opt.stamp == 2:
            a("s_mov_b32 s84, m0"); a("s_mov_b32 m0, s29")
            a("v_writelane_b32 v188, s80, m0"); a("v_writelane_b32 v189, s82, m0"); a("s_mov_b32 m0, s84")
        if role == 'B':
            a("s_cbranch_scc0 L_goB")
            a(f"s_waitcnt vmcnt({2*(g0 + per*min(b1-1, nd) - 2)})")
            a("s_barrier")
            a.lab("L_goB")
        first = True
        for (i, k_, s_) in pO:
            if i < cut: continue
            a(s_)
            if first and role == 'A': a("s_setprio 2")
            first = False
        for (i, k_, s_) in pE: a(s_)
        for (i, k_, s_) in pO:
            if i < cut: a(s_)
        if role == 'A':
            a("s_cbranch_scc0 L_topA")
            a(f"s_waitcnt vmcnt({2*(g0 + per*min(b1-2, nd) - 2)})")
            a("s_barrier")
            a("s_branch L_topA")
        else:
            a("s_add_u32 s29, s29, 1")
            a("s_cmp_lg_u32 s29, 32")
            a("s_cbranch_scc1 L_topB")
    assert nd + 1 <= b2 - 1
    a.lab("L_tail")
    for f in rd_v('O', 0, 0) + rd_v('O', 1, 0): a(f)
    a("s_mov_b32 s33, 0")
    a("s_mov_b32 s34, 0x30800000")
    a("s_mov_b32 s35, 0x6c800000")
    a("s_waitcnt lgkmcnt(0)")
    first = True
    for (i, k_, s) in pT:
        if i < cut: continue
        a(s)
        if first: a("s_setprio 2")
        first = False
    stamp(6)
    R = Sr['E']
    PK = {'A': Sr['E'] + 8, 'B': Sr['E'] + 14}
    OB = Sr['E'] + 20
    fl = opt.stfl.replace('_', ' ')
    for t in ('A', 'B'):
        E, O = Or[(t, 'E')], Or[(t, 'O')]
        l, rc = (R, R + 2) if t == 'A' else (R + 1, R + 4)
        a(f"v_add_f32 v{l}, v{E+12}, v{O+12}")
        a(f"v_rcp_f32 v{rc}, v{l}")
        if t == 'A':
            a(mf_pv('B', 'O', 1))
            a.lab("L_epi")
        a(f"v_permlane32_swap_b32 v{O}, v{O+8}")
        a(f"v_permlane32_swap_b32 v{O+1}, v{O+9}")
        for j in (8, 0, 2, 4, 6):
            a(f"v_pk_add_f32 {vr(E+j,2)}, {vr(E+j,2)}, {vr(O+j+2,2)}")
        for j in (8, 0, 2, 4, 6):
            a(f"v_pk_mul_f32 {vr(E+j,2)}, {vr(E+j,2)}, {vr(rc,2)} op_sel_hi:[1,0]")
        st = vStA if t == 'A' else vStB
        for j in (4, 0, 1, 2, 3):
            a(f"v_cvt_pk_bf16_f32 v{PK[t]+j}, v{E+2*j}, v{E+2*j+1}")
        a(f"ds_write_b32 v{st}, v{PK[t]+4} offset:16")
        a(f"ds_write2_b32 v{st}, v{PK[t]}, v{PK[t]+1} offset0:0 offset1:1")
        a(f"ds_write2_b32 v{st}, v{PK[t]+2}, v{PK[t]+3} offset0:2 offset1:3")
        if t == 'A':
            a(f"ds_read_b128 {vr(OB,4)}, v{vStR}")
        else:
            a(f"ds_read_b128 {vr(OB+4,4)}, v{vStR} offset:1024")
            a(f"ds_read_b128 {vr(OB+8,4)}, v{vStR} offset:2048")
            lgkm(5)
            a(f"buffer_store_dwordx4 {vr(OB,4)}, v{vDma}, s[20:23], 0 offen {fl}")
    lgkm(1)
    a(f"buffer_store_dwordx4 {vr(OB+4,4)}, v{vDma}, s[20:23], 0 offen offset:1024 {fl}")
    lgkm(0)
    a(f"buffer_store_dwordx4 {vr(OB+8,4)}, v{vDma}, s[20:23], 0 offen offset:2048 {fl}")
    stamp(7)
    a("s_setprio 0")
    for t, l in (('A', R), ('B', R + 1)):
        for j in range(5):
            a(f"v_dot2c_f32_bf16 v{l}, 0, v{PK[t]+j}")
    a(f"v_cmp_nge_f32 s[36:37], v{R}, s34")
    a(f"v_cmp_nle_f32 vcc, v{R}, s35")
    a("s_or_b64 s[36:37], s[36:37], vcc")
    a(f"v_cmp_nge_f32 s[38:39], v{R+1}, s34")
    a(f"v_cmp_nle_f32 vcc, v{R+1}, s35")
    a("s_or_b64 s[36:37], s[36:37], s[38:39]")
    a("s_or_b64 s[36:37], s[36:37], vcc")
    a("s_cbranch_scc1 L_check")
    a.lab("L_done")
    if opt.amp:
        a("s_waitcnt vmcnt(0)")
        stamp(8)
        a("s_memrealtime s[42:43]")
        a("s_waitcnt lgkmcnt(0)")
        a(f"s_sub_u32 s50, s{60+2*opt.ampb}, s{60+2*opt.ampa}")
        if opt.ampbase >= 0:
            a(f"s_max_u32 s50, s50, {opt.ampbase}")
            a(f"s_sub_u32 s50, s50, {opt.ampbase}")
            a("s_and_b32 s51, s2, 7")
            a("s_cselect_b32 s50, 0, s50")
        a(f"s_mul_i32 s50, s50, {opt.amp}")
        a("s_min_u32 s50, s50, 20000")
        if opt.ampr:
            a("s_cmp_lt_u32 s24, 4")
            a("s_cselect_b32 s50, s50, 0" if opt.ampr == 'A' else "s_cselect_b32 s50, 0, s50")
        a.lab("L_spin")
        a("s_sleep 2")
        a("s_memrealtime s[52:53]")
        a("s_waitcnt lgkmcnt(0)")
        a("s_sub_u32 s51, s52, s42")
        a("s_cmp_lt_u32 s51, s50")
        a("s_cbranch_scc1 L_spin")
    if opt.stamp:
        a("s_mov_b64 exec, 1")
        a("s_waitcnt vmcnt(0)")
        stamp(8)
        a("s_memrealtime s[58:59]")
        a("s_getreg_b32 s42, hwreg(HW_REG_HW_ID)")
        a("s_getreg_b32 s43, hwreg(HW_REG_XCC_ID)")
        a("s_waitcnt lgkmcnt(0)")
        for i, sr in enumerate((56, 58, 42, 43, 60, 62, 64, 66, 68, 70, 72, 74, 76)):
            a(f"v_mov_b32 v{16+i}, s{sr}")
        a("s_lshl_b32 s50, s2, 3"); a("s_add_u32 s50, s50, s24"); a("s_lshl_b32 s50, s50, 6")
        a("v_mov_b32 v1, s50")
        for i in range(4): a(f"global_store_dwordx4 v1, v[{16+4*i}:{19+4*i}], s[40:41] offset:{16*i}")
        if opt.stamp == 2:
            a("s_mov_b64 exec, -1")
            a("s_lshl_b32 s50, s50, 3"); a("s_add_u32 s50, s50, 0x100000")
            a("v_lshl_add_u32 v1, v0, 3, s50")
            a("global_store_dwordx2 v1, v[188:189], s[40:41]")
    a.lab("L_end")
    a("s_endpgm")
    a.lab("L_check")
    a("s_cmp_lg_u32 s33, 0")
    a("s_cbranch_scc1 L_done")
    a("s_waitcnt vmcnt(0)")
    mA, mB = 0, vSlot
    if opt.stamp == 2: mA = 187
    def rewind(n):
        a(f"v_subrev_u32 v{vK}, {n*ST}, v{vK}")
        a(f"v_mul_u32_u24 v{vT2}, {n}, v{vIncV}")
        a(f"v_sub_u32 v{vV}, v{vV}, v{vT2}")
        a("s_mov_b32 s29, 0")
    def scores():
        a(f"buffer_load_dwordx2 {vr(KX,2)}, v{vK}, s[16:19], 0 offen offset:32")
        a(f"buffer_load_dwordx4 {vr(Kr['E'],4)}, v{vK}, s[16:19], 0 offen")
        a(f"buffer_load_dwordx4 {vr(Kr['O'],4)}, v{vK}, s[16:19], 0 offen offset:40")
        a("s_waitcnt vmcnt(0) lgkmcnt(0)")
        a(mf_x('E')); a(mf_x('O'))
        a("s_nop 15"); a("s_nop 3")
        for par in 'EO':
            for t in 'AB': a(mf_q(t, par))
        a("s_nop 15")
    def step(lab):
        a(f"v_add_u32 v{vK}, v{vIncK}, v{vK}")
        a(f"v_add_u32 v{vV}, v{vIncV}, v{vV}")
        a("s_add_u32 s29, s29, 1")
        a("s_cmp_lg_u32 s29, 32")
        a(f"s_cbranch_scc1 {lab}")
    rewind(31)
    a(f"v_mov_b32 v{mA}, 0xff800000"); a(f"v_mov_b32 v{mB}, 0xff800000")
    a.lab("L_max")
    scores()
    for par in 'EO':
        for t, m in (('A', mA), ('B', mB)):
            s = Sr[par] + (16 if t == 'B' else 0)
            for j in range(0, 16, 2): a(f"v_max3_f32 v{m}, v{m}, v{s+j}, v{s+j+1}")
    step("L_max")
    for m in (mA, mB):
        a(f"v_mov_b32 v{vT2}, v{m}")
        a("s_nop 1")
        a(f"v_permlane32_swap_b32 v{vT2}, v{m}")
        a("s_nop 1")
        a(f"v_max_f32 v{m}, v{m}, v{vT2}")
    rewind(32)
    for r in range(120, 184): a(f"v_mov_b32 v{r}, 0")
    a.lab("L_acc")
    for par in 'EO':
        for j in range(2):
            for f in rd_v(par, j, 0): a(f)
    scores()
    for par in 'EO':
        for t, m in (('A', mA), ('B', mB)):
            s = Sr[par] + (16 if t == 'B' else 0)
            for j in range(16): a(f"v_sub_f32 v{s+j}, v{s+j}, v{m}")
            for j in range(16): a(f"v_exp_f32 v{s+j}, v{s+j}")
    a("s_nop 1")
    for par in 'EO':
        for t in 'AB':
            for j in range(2): a(mf_pv(t, par, j))
    step("L_acc")
    a("s_nop 15")
    a("s_mov_b32 s33, 1")
    a(f"v_add_f32 v{R}, v{Or[('A','E')]+12}, v{Or[('A','O')]+12}")
    a(f"v_rcp_f32 v{R+2}, v{R}")
    a("s_branch L_epi")
    nv = 192 if opt.stamp == 2 else NV
    a.raw(f""".section .rodata,"a"
.p2align 6
.amdhsa_kernel {NAME}_kernel
  .amdhsa_next_free_vgpr {nv}
  .amdhsa_next_free_sgpr {90 if (opt.stamp or opt.amp) else 48}
  .amdhsa_accum_offset {nv}
  .amdhsa_group_segment_fixed_size 0
  .amdhsa_kernarg_size 48
  .amdhsa_user_sgpr_count 2
  .amdhsa_user_sgpr_kernarg_segment_ptr 1
  .amdhsa_system_sgpr_workgroup_id_x 1
.end_amdhsa_kernel""")
    return a.text()

def parse(argv):
    p = argparse.ArgumentParser()
    p.add_argument('-o', default=f"cdna_kernels/{NAME}.s")
    p.add_argument('--grp', default='2,2')
    p.add_argument('--pf', type=int, default=0)
    p.add_argument('--kxm', type=int, default=0)
    p.add_argument('--touch', type=int, default=0)
    p.add_argument('--b05', type=int, default=0)
    p.add_argument('--b1', type=int, default=3)
    p.add_argument('--b2', type=int, default=10)
    p.add_argument('--cut', type=int, default=4)
    p.add_argument('--pos', default='2,5,15,18,21,31,25')
    p.add_argument('--tpos', default='2,5,13,18,21,26,29')
    p.add_argument('--stfl', default='sc1')
    p.add_argument('--ldfl', default='')
    p.add_argument('--qfl', default='')
    p.add_argument('--stamp', type=int, default=0)
    p.add_argument('--amp', type=int, default=0)
    p.add_argument('--ampa', type=int, default=0)
    p.add_argument('--ampb', type=int, default=8)
    p.add_argument('--ampr', default='')
    p.add_argument('--ampbase', type=int, default=-1)
    return p.parse_args(argv)

if __name__ == '__main__':
    opt = parse(sys.argv[1:])
    open(opt.o, 'w').write(gen(opt))
```

```python
import sys, struct, math, argparse

NAME = "standalone__fused_io_aware_attn__prompt"
HB = 73728
ST = 2304
VBASE = HB
CBASE = 2 * HB
ABASE = CBASE + 4096
LDS = ABASE + 4096

def f2u(x): return struct.unpack('<I', struct.pack('<f', x))[0]
CSCALE = f2u(math.log2(math.e) / math.sqrt(18.0))

vK, vV = 2, 3
vIncK, vIncV = 4, 5
vSlot, vIdx, vQo, vDma = 1, 6, 7, 14
vT2 = 15
KX = 8
QX = {'E': 10, 'O': 12}
Kr = {'E': 16, 'O': 20}
Qr = {('A', 'E'): 24, ('B', 'E'): 28, ('A', 'O'): 32, ('B', 'O'): 36}
Vr = {('E', 0): 40, ('E', 1): 44, ('O', 0): 48, ('O', 1): 52}
Sr = {'E': 56, 'O': 88}
Or = {('A', 'E'): 120, ('B', 'E'): 136, ('A', 'O'): 152, ('B', 'O'): 168}
vStA, vStB, vStR = 184, 185, 186
Vr[('T', 0)] = 188; Vr[('T', 1)] = 192
NV = 196

def vr(b, n): return f"v[{b}:{b+n-1}]"

class Asm:
    def __init__(self): self.l = []
    def __call__(self, s): self.l.append("    " + s)
    def lab(self, s): self.l.append(s + ":")
    def raw(self, s): self.l.append(s)
    def text(self): return "\n".join(self.l) + "\n"

def mf_x(par):
    return f"v_mfma_f32_32x32x4_2b_bf16 {vr(Sr[par],32)}, {vr(KX,2)}, {vr(QX[par],2)}, 0 cbsz:1 abid:0"
def mf_q(t, par):
    s = Sr[par] + (16 if t == 'B' else 0)
    return f"v_mfma_f32_32x32x16_bf16 {vr(s,16)}, {vr(Kr[par],4)}, {vr(Qr[(t,par)],4)}, {vr(s,16)}"
def mf_pv(t, par, j, vs=None):
    s = Sr[par] + (16 if t == 'B' else 0) + 8 * j
    return f"v_smfmac_f32_32x32x32_bf16 {vr(Or[(t,par)],16)}, {vr(Vr[(vs or par,j)],4)}, {vr(s,8)}, v{vIdx}"
def ex(par, i): return f"v_exp_f32 v{Sr[par]+i}, v{Sr[par]+i}"
def rd_kx(u): return [f"ds_read_b64 {vr(KX,2)}, v{vK} offset:{u*ST+32}"]
def rd_k(par, u):
    o = u * ST + (40 if par == 'O' else 0)
    return [f"ds_read_b64 {vr(Kr[par],2)}, v{vK} offset:{o}", f"ds_read_b64 {vr(Kr[par]+2,2)}, v{vK} offset:{o+8}"]
def rd_v(par, j, u):
    o = u * ST + (32 if par != 'E' else 0) + 16 * j * 72
    return [f"ds_read_b64_tr_b16 {vr(Vr[(par,j)],2)}, v{vV} offset:{o}", f"ds_read_b64_tr_b16 {vr(Vr[(par,j)]+2,2)}, v{vV} offset:{o+4*72}"]

def phase_list(par, opt, look=True):
    oth = 'O' if par == 'E' else 'E'
    pos = [int(x) for x in (opt.pos if look else opt.tpos).split(',')]
    mf = {pos[0]: mf_pv('B', oth, 1), pos[2]: mf_pv('A', par, 0), pos[3]: mf_pv('A', par, 1), pos[5]: mf_pv('B', par, 0)}
    if look:
        mf.update({pos[1]: mf_x(oth), pos[4]: mf_q('A', oth), pos[6]: mf_q('B', oth)})
    out = []
    for i in range(32):
        if i in mf: out.append((i, 'm', mf[i]))
        out.append((i, 'e', ex(par, i)))
    return out

def gen(opt):
    a = Asm()
    def stamp(i):
        if opt.stamp and (opt.stamp != 3 or i in (0, 7, 8)): a(f"s_memtime s[{60+2*i}:{61+2*i}]")
        if opt.amp and i in (opt.ampa, opt.ampb): a(f"{'s_memtime' if opt.ampbase >= 0 else 's_memrealtime'} s[{60+2*i}:{61+2*i}]")
    smem = opt.stamp in (1, 2) or (opt.amp and not (opt.ampa in (0, 7) and opt.ampb in (7, 8)))
    def lgkm(n): a(f"s_waitcnt lgkmcnt({0 if smem else n})")
    a.raw(f"""; Fused attention forward, B=2 H=32 S=2048 D=18, bf16 in/out (written by my generator gen/gen5.py).
; @launch grid=(256,1,1) block=(512,1,1) lds={LDS}
.amdgcn_target "amdgcn-amd-amdhsa--gfx950"
.text
.globl {NAME}_kernel
.p2align 8
.type {NAME}_kernel,@function
{NAME}_kernel:""")
    a("s_load_dwordx4 s[4:7], s[0:1], 0")
    a("s_load_dwordx4 s[8:11], s[0:1], 16")
    if opt.stamp:
        a("s_load_dwordx2 s[40:41], s[0:1], 40")
        if opt.stamp == 3:
            for i in range(62, 74): a(f"s_mov_b32 s{i}, 0")
        a("s_memrealtime s[56:57]")
    stamp(0)
    a("s_cmp_ge_u32 s2, 256")
    a("s_cbranch_scc1 L_end")
    t0, t1 = Sr['E'] + 8, Sr['E'] + 9
    a(f"v_lshrrev_b32 v{t0}, 6, v0")
    a(f"v_lshlrev_b32 v{vSlot}, 3, v0")
    a(f"v_readfirstlane_b32 s24, v{t0}")
    a("v_and_b32 v0, 63, v0")
    if opt.pf:
        a("s_getpc_b64 s[36:37]")
        a(f"v_lshlrev_b32 v{vT2}, 6, v0")
        a("s_cmp_lg_u32 s24, 7")
        a("s_cbranch_scc1 L_nopf")
        a(f"global_load_dword v{vT2}, v{vT2}, s[36:37]")
        a.lab("L_nopf")
    a("s_and_b32 s25, s2, 7")
    a("s_lshr_b32 s26, s2, 5")
    a("s_lshl3_add_u32 s25, s25, s26")
    a(f"s_mul_i32 s25, s25, {HB}")
    a("s_bfe_u32 s26, s2, 0x20003")
    a("s_lshl3_add_u32 s26, s26, s24")
    a(f"s_mul_i32 s26, s26, {ST}")
    a("s_add_u32 s26, s26, s25")
    a(f"v_lshlrev_b32 v{vDma}, 4, v0")
    a("s_lshl_b32 s27, s24, 10")
    a("s_mov_b32 m0, s27")
    a(f"s_mov_b32 s18, {HB}")
    a("s_mov_b32 s19, 0x00020000")
    a(f"s_mov_b32 s46, {HB}")
    a("s_mov_b32 s47, 0x00020000")
    a(f"s_movk_i32 s14, {ST}")
    a("s_mov_b32 s15, 0x00020000")
    a(f"v_mul_u32_u24 v{vQo}, 36, v0")
    a("s_waitcnt lgkmcnt(0)")
    stamp(1)
    a("s_add_u32 s16, s6, s25")
    a("s_addc_u32 s17, s7, 0")
    ldf = opt.ldfl.replace('_', ' ')
    a(f"buffer_load_dwordx4 v{vDma}, s[16:19], s27 offen lds {ldf}")
    a("s_add_u32 m0, s27, s18")
    a("s_add_u32 s44, s8, s25")
    a("s_addc_u32 s45, s9, 0")
    a(f"buffer_load_dwordx4 v{vDma}, s[44:47], s27 offen lds {ldf}")
    def dma2():
        a("s_add_u32 m0, s27, 8192")
        a("s_add_u32 s27, s27, 8192")
        a(f"buffer_load_dwordx4 v{vDma}, s[16:19], s27 offen lds {ldf}")
        a("s_add_u32 m0, s27, s18")
        a("s_nop 0")
        a(f"buffer_load_dwordx4 v{vDma}, s[44:47], s27 offen lds {ldf}")
    T = Sr['O']
    a("s_add_u32 s12, s4, s26")
    a("s_addc_u32 s13, s5, 0")
    qf = opt.qfl.replace('_', ' ')
    a(f"buffer_load_dword v{T+8}, v{vQo}, s[12:15], 0 offen offset:32 {qf}")
    a(f"buffer_load_dwordx4 {vr(T,4)}, v{vQo}, s[12:15], 0 offen {qf}")
    a(f"buffer_load_dwordx4 {vr(T+4,4)}, v{vQo}, s[12:15], 0 offen offset:16 {qf}")
    a(f"v_and_b32 v{t0}, 31, v0")
    a(f"v_lshrrev_b32 v{t1}, 5, v0")
    a("s_add_u32 s20, s10, s26")
    a("s_addc_u32 s21, s11, 0")
    a(f"s_movk_i32 s22, {ST}")
    a("s_mov_b32 s23, 0x00020000")
    C = Sr['E']
    a(f"v_and_b32 v{C}, 1, v0")
    a(f"v_subrev_u32 v{C}, 1, v{C}")
    a(f"v_and_b32 v{C}, 0x3f80, v{C}")
    a(f"v_mov_b32 v{C+1}, 0")
    a(f"v_add_u32 v{vSlot}, {CBASE}, v{vSlot}")
    a(f"ds_write_b64 v{vSlot}, {vr(C,2)}")
    a(f"v_mov_b32 v{QX['E']}, 0"); a(f"v_mov_b32 v{QX['E']+1}, 0"); a(f"v_mov_b32 v{QX['O']}, 0")
    a(f"v_mul_u32_u24 v{vK}, 72, v{t0}")
    a(f"v_lshl_add_u32 v{vK}, v{t1}, 4, v{vK}")
    a(f"v_mfma_f32_32x32x4_2b_bf16 {vr(120,32)}, {vr(QX['E'],2)}, {vr(QX['E'],2)}, 0")
    a(f"v_mfma_f32_32x32x4_2b_bf16 {vr(152,32)}, {vr(QX['E'],2)}, {vr(QX['E'],2)}, 0")
    t3, t4, t5 = C + 4, C + 5, C + 6
    a(f"v_bfe_u32 v{t3}, v0, 2, 2")
    a(f"v_lshl_add_u32 v{t3}, v{t1}, 3, v{t3}")
    a(f"v_mul_u32_u24 v{t3}, 72, v{t3}")
    a(f"v_and_b32 v{t4}, 1, v0")
    a(f"v_lshl_add_u32 v{t3}, v{t4}, 4, v{t3}")
    a(f"v_and_b32 v{t4}, 2, v0")
    a(f"v_lshl_add_u32 v{t3}, v{t4}, 2, v{t3}")
    a(f"v_lshlrev_b32 v{t5}, 6, v{t1}")
    a(f"v_lshlrev_b32 v{t4}, 2, v{t4}")
    a(f"v_sub_u32 v{t5}, v{t5}, v{t4}")
    a(f"v_add_u32 v{t5}, {CBASE+56}, v{t5}")
    a(f"v_and_b32 v{t4}, 16, v0")
    a(f"v_add3_u32 v{t3}, v{t4}, v{t3}, s18")
    a("s_mov_b32 vcc_lo, 0xdddd0000"); a("s_mov_b32 vcc_hi, 0xdddd0000")
    a(f"v_mov_b32 v{vIdx}, 0xdddd")
    a(f"v_mov_b32 v{vIncK}, {ST}")
    a(f"v_cndmask_b32 v{vIncV}, v{vIncK}, 0, vcc")
    a(f"v_cndmask_b32 v{vV}, v{t3}, v{t5}, vcc")
    a(f"v_add_u32 v{C+2}, v{vK}, v{vIncK}")
    a(f"v_add_u32 v{C+3}, v{vV}, v{vIncV}")
    a(f"ds_write_b64 v{vSlot}, {vr(C+2,2)} offset:4096")
    a(f"s_mul_i32 s28, s24, {ST}")
    a(f"v_mul_u32_u24 v{vStA}, 36, v{t0}")
    a(f"v_lshl_add_u32 v{vStA}, v{t1}, 4, v{vStA}")
    a(f"v_add_u32 v{vStA}, s28, v{vStA}")
    a(f"v_add_u32 v{vStB}, 1152, v{vStA}")
    a(f"v_add_u32 v{vStR}, s28, v{vDma}")
    a(f"s_mov_b32 s30, {CSCALE:#x}"); a(f"s_mov_b32 s31, {CSCALE:#x}")
    a("s_mov_b32 s29, 0")
    b1, b2 = opt.b1, opt.b2
    grp = [int(x) for x in opt.grp.split(',')]
    g0, per = grp
    nd = (8 - g0) // per
    assert (8 - g0) % per == 0 and b2 >= 9 and g0 >= 2
    a(f"s_mov_b32 s32, {(1 << (b1-1)) | (1 << (b2-1)):#x}")
    a(f"s_mov_b32 s33, {(1 << (b1-1)) | (1 << (b2-1)) | (1 << 31):#x}")
    a("s_mov_b32 s35, 0x6c800000")
    a("s_mov_b64 vcc, 0")
    a("s_cmp_ge_u32 s24, 4")
    a("s_cbranch_scc1 L_nowait")
    a("s_waitcnt vmcnt(3)")
    a.lab("L_nowait")
    a("s_waitcnt lgkmcnt(0)")
    stamp(2)
    a("s_barrier")
    for f in rd_kx(0) + rd_k('E', 0) + rd_k('O', 0) + rd_v('E', 0, 0) + rd_v('E', 1, 0): a(f)
    a("s_setprio 3")
    a("s_cbranch_scc0 L_prep")
    a("s_waitcnt vmcnt(3)")
    a("s_barrier")
    a.lab("L_prep")
    stamp(3)
    W = T + 10
    wof = {}
    def unpack(src, k):
        w = W + 2 * k; wof[src] = w
        a(f"v_lshlrev_b32 v{w}, 16, v{src}")
        a(f"v_and_b32 v{w+1}, 0xffff0000, v{src}")
        a(f"v_pk_mul_f32 {vr(w,2)}, {vr(w,2)}, s[30:31]")
    def pack(src, d): a(f"v_cvt_pk_bf16_f32 v{d}, v{wof[src]}, v{wof[src]+1}")
    QAE, QBE, QAO, QBO = Qr[('A','E')], Qr[('B','E')], Qr[('A','O')], Qr[('B','O')]
    a("s_waitcnt vmcnt(2)")
    unpack(T + 8, 8)
    pack(T + 8, QX['E']); pack(T + 8, QBO + 3)
    a(f"s_waitcnt vmcnt(1) lgkmcnt({0 if smem else 8})")
    a(mf_x('E'))
    for j in range(4): unpack(T + j, j)
    for j in range(4): pack(T + j, QAE + j)
    pack(T, QX['O'] + 1)
    a(f"s_waitcnt vmcnt(0) lgkmcnt({0 if smem else 6})")
    stamp(4)
    for j in range(4, 8): unpack(T + j, j)
    for j in range(4): pack(T + 4 + j, QBE + j)
    for j in range(4): a(f"v_permlane32_swap_b32 v{QAE+j}, v{QBE+j}")
    pack(T + 4, QAO + 3)
    a(f"v_mov_b32 v{QAO}, v{QAE+1}")
    a(mf_q('A', 'E'))
    a(f"v_permlane32_swap_b32 v{QAO+3}, v{QBO+3}")
    for j in range(1, 3): a(f"v_mov_b32 v{QAO+j}, v{QAE+j+1}")
    for j in range(0, 3): a(f"v_mov_b32 v{QBO+j}, v{QBE+j+1}")
    a(mf_q('B', 'E'))
    a("s_cbranch_scc1 L_startB")
    a("s_setprio 2")
    a("s_waitcnt lgkmcnt(0)")
    if opt.b05 == 0:
        a("s_nop 0")
        a("s_barrier")
    else:
        a("s_nop 1")
    pE, pO, pT = phase_list('E', opt), phase_list('O', opt), phase_list('O', opt, look=False)
    cut = opt.cut
    pos0 = int(opt.pos.split(',')[0])
    assert cut > pos0
    a.lab("L_first")
    stamp(5)
    for (i, k_, s_) in pE:
        if not (i == pos0 and k_ == 'm'): a(s_)
    for (i, k_, s_) in pO:
        if i < cut: a(s_)
    if opt.b05 == 0:
        a("s_cbranch_scc0 L_topA")
        a("s_branch L_topB")
    else:
        a("s_cbranch_scc1 L_topB")
        a("s_barrier")
        a("s_branch L_topA")
    a.lab("L_startB")
    a("s_setprio 1")
    for r in range(g0): dma2()
    a("s_cmp_ge_u32 s24, 4")
    a("s_waitcnt lgkmcnt(0)")
    a("s_branch L_first")
    burst = rd_kx(1) + rd_v('O', 0, 0) + rd_k('E', 1) + rd_v('O', 1, 0) + rd_v('E', 0, 1) + rd_v('E', 1, 1) + rd_k('O', 1)
    if opt.kxm: burst = ["s_mov_b32 exec_hi, 0", burst[0], "s_mov_b32 exec_hi, -1"] + burst[1:]
    for role in 'AB':
        a.raw("    .p2align 6")
        a.lab(f"L_top{role}")
        if role == 'A': a("s_setprio 0")
        a("s_add_u32 s29, s29, 1")
        for f in burst: a(f)
        a("s_cmp_lg_u32 s29, 31")
        a(f"s_cbranch_scc1 L_nl{role}")
        a("s_mov_b64 vcc, 1")
        a("s_waitcnt lgkmcnt(8)")
        for f in rd_v('T', 0, 1) + rd_v('T', 1, 1): a(f)
        a.lab(f"L_nl{role}")
        a(f"ds_add_rtn_u64 {vr(vK,2)}, v{vSlot}, {vr(vIncK,2)} offset:4096")
        if opt.stamp == 2:
            a("s_memtime s[80:81]"); a("s_memrealtime s[82:83]")
        a(f"s_cmp_gt_u32 s29, {nd+1 if role == 'A' else nd}")
        a(f"s_cbranch_scc1 L_nd{role}")
        for r in range(per): dma2()
        if role == 'A' and g0 > per:
            a("s_cmp_lg_u32 s29, 1")
            a("s_cbranch_scc1 L_ndA")
            for r in range(g0 - per): dma2()
        a.lab(f"L_nd{role}")
        a(f"s_cmp_lg_u32 s29, {b2-1}")
        a(f"s_cbranch_scc1 L_nw{role}")
        a("s_waitcnt vmcnt(0)")
        if opt.touch and role == 'A':
            a(f"buffer_load_dword v{vT2}, off, s[20:23], 0")
        a.lab(f"L_nw{role}")
        a(f"s_bitcmp1_b32 {'s33' if role == 'A' else 's32'}, s29")
        a("s_waitcnt lgkmcnt(0)")
        if opt.stamp == 2:
            a("s_mov_b32 s84, m0"); a("s_mov_b32 m0, s29")
            a("v_writelane_b32 v196, s80, m0"); a("v_writelane_b32 v197, s82, m0"); a("s_mov_b32 m0, s84")
        if role == 'B':
            a("s_cbranch_scc0 L_goB")
            a(f"s_waitcnt vmcnt({2*(g0 + per*min(b1-1, nd) - 2)})")
            a("s_barrier")
            a.lab("L_goB")
        first = True
        for (i, k_, s_) in pO:
            if i < cut: continue
            a(s_)
            if first and role == 'A': a("s_setprio 2")
            first = False
        for (i, k_, s_) in pE: a(s_)
        for (i, k_, s_) in pO:
            if i < cut: a(s_)
        if role == 'A':
            a("s_cbranch_scc0 L_topA")
            a("s_cbranch_vccnz L_tail")
            a(f"s_waitcnt vmcnt({2*(g0 + per*min(b1-2, nd) - 2)})")
            a("s_barrier")
            a("s_branch L_topA")
        else:
            a("s_cbranch_vccz L_topB")
    assert nd + 1 <= b2 - 1
    R = Sr['E']
    PK = {'A': Sr['E'] + 8, 'B': Sr['E'] + 14}
    OB = Sr['E'] + 20
    fl = opt.stfl.replace('_', ' ')
    def finish(t, ds=True):
        E, O = Or[(t, 'E')], Or[(t, 'O')]
        l, rc = (R, R + 2) if t == 'A' else (R + 1, R + 4)
        a(f"v_add_f32 v{l}, v{E+12}, v{O+12}")
        a(f"v_rcp_f32 v{rc}, v{l}")
        a(f"v_permlane32_swap_b32 v{O}, v{O+8}")
        a(f"v_permlane32_swap_b32 v{O+1}, v{O+9}")
        for j in (8, 0, 2, 4, 6):
            a(f"v_pk_add_f32 {vr(E+j,2)}, {vr(E+j,2)}, {vr(O+j+2,2)}")
        for j in (8, 0, 2, 4, 6):
            a(f"v_pk_mul_f32 {vr(E+j,2)}, {vr(E+j,2)}, {vr(rc,2)} op_sel_hi:[1,0]")
        st = vStA if t == 'A' else vStB
        for j in (4, 0, 1, 2, 3):
            a(f"v_cvt_pk_bf16_f32 v{PK[t]+j}, v{E+2*j}, v{E+2*j+1}")
        if not ds: return
        a(f"ds_write_b32 v{st}, v{PK[t]+4} offset:16")
        a(f"ds_write2_b32 v{st}, v{PK[t]}, v{PK[t]+1} offset0:0 offset1:1")
        a(f"ds_write2_b32 v{st}, v{PK[t]+2}, v{PK[t]+3} offset0:2 offset1:3")
        if t == 'A':
            a(f"ds_read_b128 {vr(OB,4)}, v{vStR}")
        else:
            a(f"ds_read_b128 {vr(OB+4,4)}, v{vStR} offset:1024")
            a(f"ds_read_b128 {vr(OB+8,4)}, v{vStR} offset:2048")
    def store(k): a(f"buffer_store_dwordx4 {vr(OB+4*k,4)}, v{vDma}, s[20:23], 0 offen offset:{1024*k} {fl}")
    def dot(t, j): a(f"v_dot2c_f32_bf16 v{R if t == 'A' else R+1}, 0, v{PK[t]+j}")
    a.lab("L_tail")
    tm = {10: mf_pv('A', 'O', 0, 'T'), 18: mf_pv('A', 'O', 1, 'T'), 26: mf_pv('B', 'O', 0, 'T')}
    for i in range(cut, 32):
        if i in tm: a(tm[i])
        if i == 29: finish('A', ds=(opt.tv == 0))
        a(ex('O', i))
    stamp(6)
    if opt.tv == 0:
        a("s_nop 1")
        a(mf_pv('B', 'O', 1, 'T'))
        a("s_nop 9")
        lgkm(0)
        store(0)
        finish('B')
    else:
        a(f"ds_write_b32 v{vStA}, v{PK['A']+4} offset:16")
        a(f"ds_write2_b32 v{vStA}, v{PK['A']}, v{PK['A']+1} offset0:0 offset1:1")
        a(mf_pv('B', 'O', 1, 'T'))
        a(f"ds_write2_b32 v{vStA}, v{PK['A']+2}, v{PK['A']+3} offset0:2 offset1:3")
        a(f"ds_read_b128 {vr(OB,4)}, v{vStR}")
        a("s_nop 9")
        n0 = len(a.l)
        finish('B')
        a.l[n0+opt.tv:n0+opt.tv] = ["    s_waitcnt lgkmcnt(0)", f"    buffer_store_dwordx4 {vr(OB,4)}, v{vDma}, s[20:23], 0 offen {fl}"]
    lgkm(1)
    store(1)
    lgkm(0)
    store(2)
    stamp(7)
    a("s_setprio 0")
    for t in 'AB':
        for j in range(5): dot(t, j)
    a(f"v_cmp_nge_f32 s[36:37], v{R}, 1.0")
    a(f"v_cmp_nle_f32 vcc, v{R}, s35")
    a("s_or_b64 s[36:37], s[36:37], vcc")
    a(f"v_cmp_nge_f32 s[38:39], v{R+1}, 1.0")
    a(f"v_cmp_nle_f32 vcc, v{R+1}, s35")
    a("s_or_b64 s[36:37], s[36:37], s[38:39]")
    a("s_or_b64 s[36:37], s[36:37], vcc")
    a("s_cbranch_scc1 L_check")
    a.lab("L_done")
    if opt.amp:
        a("s_waitcnt vmcnt(0)")
        stamp(8)
        a("s_memrealtime s[42:43]")
        a("s_waitcnt lgkmcnt(0)")
        a(f"s_sub_u32 s50, s{60+2*opt.ampb}, s{60+2*opt.ampa}")
        if opt.ampbase >= 0:
            a(f"s_max_u32 s50, s50, {opt.ampbase}")
            a(f"s_sub_u32 s50, s50, {opt.ampbase}")
            a("s_and_b32 s51, s2, 7")
            a("s_cselect_b32 s50, 0, s50")
        a(f"s_mul_i32 s50, s50, {opt.amp}")
        a("s_min_u32 s50, s50, 20000")
        if opt.ampr:
            a("s_cmp_lt_u32 s24, 4")
            a("s_cselect_b32 s50, s50, 0" if opt.ampr == 'A' else "s_cselect_b32 s50, 0, s50")
        a.lab("L_spin")
        a("s_sleep 2")
        a("s_memrealtime s[52:53]")
        a("s_waitcnt lgkmcnt(0)")
        a("s_sub_u32 s51, s52, s42")
        a("s_cmp_lt_u32 s51, s50")
        a("s_cbranch_scc1 L_spin")
    if opt.stamp:
        a("s_mov_b64 exec, 1")
        a("s_waitcnt vmcnt(0)")
        stamp(8)
        a("s_memrealtime s[58:59]")
        a("s_getreg_b32 s42, hwreg(HW_REG_HW_ID)")
        a("s_getreg_b32 s43, hwreg(HW_REG_XCC_ID)")
        a("s_waitcnt lgkmcnt(0)")
        for i, sr in enumerate((56, 58, 42, 43, 60, 62, 64, 66, 68, 70, 72, 74, 76)):
            a(f"v_mov_b32 v{16+i}, s{sr}")
        a("s_lshl_b32 s50, s2, 3"); a("s_add_u32 s50, s50, s24"); a("s_lshl_b32 s50, s50, 6")
        a("v_mov_b32 v1, s50")
        for i in range(4): a(f"global_store_dwordx4 v1, v[{16+4*i}:{19+4*i}], s[40:41] offset:{16*i}")
        if opt.stamp == 2:
            a("s_mov_b64 exec, -1")
            a("s_lshl_b32 s50, s50, 3"); a("s_add_u32 s50, s50, 0x100000")
            a("v_lshl_add_u32 v1, v0, 3, s50")
            a("global_store_dwordx2 v1, v[196:197], s[40:41]")
    a.lab("L_end")
    a("s_endpgm")
    a.lab("L_check")
    a("s_waitcnt vmcnt(0)")
    mA, mB = 0, vSlot
    if opt.stamp == 2: mA = 187
    def rewind(n):
        a(f"v_subrev_u32 v{vK}, {n*ST}, v{vK}")
        a(f"v_mul_u32_u24 v{vT2}, {n}, v{vIncV}")
        a(f"v_sub_u32 v{vV}, v{vV}, v{vT2}")
        a("s_mov_b32 s29, 0")
    def scores():
        a(f"buffer_load_dwordx2 {vr(KX,2)}, v{vK}, s[16:19], 0 offen offset:32")
        a(f"buffer_load_dwordx4 {vr(Kr['E'],4)}, v{vK}, s[16:19], 0 offen")
        a(f"buffer_load_dwordx4 {vr(Kr['O'],4)}, v{vK}, s[16:19], 0 offen offset:40")
        a("s_waitcnt vmcnt(0) lgkmcnt(0)")
        a(mf_x('E')); a(mf_x('O'))
        a("s_nop 15"); a("s_nop 3")
        for par in 'EO':
            for t in 'AB': a(mf_q(t, par))
        a("s_nop 15")
    def step(lab):
        a(f"v_add_u32 v{vK}, v{vIncK}, v{vK}")
        a(f"v_add_u32 v{vV}, v{vIncV}, v{vV}")
        a("s_add_u32 s29, s29, 1")
        a("s_cmp_lg_u32 s29, 32")
        a(f"s_cbranch_scc1 {lab}")
    rewind(31)
    a(f"v_mov_b32 v{mA}, 0xff800000"); a(f"v_mov_b32 v{mB}, 0xff800000")
    a.lab("L_max")
    scores()
    for par in 'EO':
        for t, m in (('A', mA), ('B', mB)):
            s = Sr[par] + (16 if t == 'B' else 0)
            for j in range(0, 16, 2): a(f"v_max3_f32 v{m}, v{m}, v{s+j}, v{s+j+1}")
    step("L_max")
    for m in (mA, mB):
        a(f"v_mov_b32 v{vT2}, v{m}")
        a("s_nop 1")
        a(f"v_permlane32_swap_b32 v{vT2}, v{m}")
        a("s_nop 1")
        a(f"v_max_f32 v{m}, v{m}, v{vT2}")
    rewind(32)
    for r in range(120, 184): a(f"v_mov_b32 v{r}, 0")
    a.lab("L_acc")
    for par in 'EO':
        for j in range(2):
            for f in rd_v(par, j, 0): a(f)
    scores()
    for par in 'EO':
        for t, m in (('A', mA), ('B', mB)):
            s = Sr[par] + (16 if t == 'B' else 0)
            for j in range(16): a(f"v_sub_f32 v{s+j}, v{s+j}, v{m}")
            for j in range(16): a(f"v_exp_f32 v{s+j}, v{s+j}")
    a("s_nop 1")
    for par in 'EO':
        for t in 'AB':
            for j in range(2): a(mf_pv(t, par, j))
    step("L_acc")
    a("s_nop 15")
    finish('A'); finish('B')
    a("s_waitcnt lgkmcnt(0)")
    for k in range(3): store(k)
    a("s_branch L_done")
    nv = 200 if opt.stamp == 2 else NV
    a.raw(f""".section .rodata,"a"
.p2align 6
.amdhsa_kernel {NAME}_kernel
  .amdhsa_next_free_vgpr {nv}
  .amdhsa_next_free_sgpr {90 if (opt.stamp or opt.amp) else 48}
  .amdhsa_accum_offset {nv}
  .amdhsa_group_segment_fixed_size 0
  .amdhsa_kernarg_size 48
  .amdhsa_user_sgpr_count 2
  .amdhsa_user_sgpr_kernarg_segment_ptr 1
  .amdhsa_system_sgpr_workgroup_id_x 1
.end_amdhsa_kernel""")
    return a.text()

def parse(argv):
    p = argparse.ArgumentParser()
    p.add_argument('-o', default=f"cdna_kernels/{NAME}.s")
    p.add_argument('--grp', default='2,2')
    p.add_argument('--pf', type=int, default=0)
    p.add_argument('--kxm', type=int, default=0)
    p.add_argument('--tv', type=int, default=0)
    p.add_argument('--touch', type=int, default=0)
    p.add_argument('--b05', type=int, default=0)
    p.add_argument('--b1', type=int, default=3)
    p.add_argument('--b2', type=int, default=10)
    p.add_argument('--cut', type=int, default=4)
    p.add_argument('--pos', default='2,5,15,18,21,31,25')
    p.add_argument('--tpos', default='2,5,13,18,21,26,29')
    p.add_argument('--stfl', default='sc1')
    p.add_argument('--ldfl', default='')
    p.add_argument('--qfl', default='')
    p.add_argument('--stamp', type=int, default=0)
    p.add_argument('--amp', type=int, default=0)
    p.add_argument('--ampa', type=int, default=0)
    p.add_argument('--ampb', type=int, default=8)
    p.add_argument('--ampr', default='')
    p.add_argument('--ampbase', type=int, default=-1)
    return p.parse_args(argv)

if __name__ == '__main__':
    opt = parse(sys.argv[1:])
    open(opt.o, 'w').write(gen(opt))
```

```python
import sys, struct, math, argparse

NAME = "standalone__fused_io_aware_attn__prompt"
HB = 73728
ST = 2304
VBASE = HB
CBASE = 2 * HB
ABASE = CBASE + 4096
XBASE = ABASE + 4096
LDS = XBASE + 3 * ST + 1024

def f2u(x): return struct.unpack('<I', struct.pack('<f', x))[0]
CSCALE = f2u(math.log2(math.e) / math.sqrt(18.0))

vK, vV = 2, 3
vIncK, vIncV = 4, 5
vSlot, vIdx, vQo, vDma = 1, 6, 7, 14
vT2 = 15
KX = 8
QX = {'E': 10, 'O': 12}
Kr = {'E': 16, 'O': 20}
Qr = {('A', 'E'): 24, ('B', 'E'): 28, ('A', 'O'): 32, ('B', 'O'): 36}
Vr = {('E', 0): 40, ('E', 1): 44, ('O', 0): 48, ('O', 1): 52}
Sr = {'E': 56, 'O': 88}
Or = {('A', 'E'): 120, ('B', 'E'): 136, ('A', 'O'): 152, ('B', 'O'): 168}
vStA, vStB, vStR = 184, 185, 186
Vr[('T', 0)] = 188; Vr[('T', 1)] = 192
KX0, KE0, KO0 = 196, 198, 202
NV = 208
AL = dict(on=False)
def kx(): return KX0 if AL['on'] else KX
def kr(par): return {'E': KE0, 'O': KO0}[par] if AL['on'] else Kr[par]
def vv(par, j): return Vr[('T', j)] if (AL['on'] and par == 'E') else Vr[(par, j)]

def vr(b, n): return f"v[{b}:{b+n-1}]"

class Asm:
    def __init__(self): self.l = []
    def __call__(self, s): self.l.append("    " + s)
    def lab(self, s): self.l.append(s + ":")
    def raw(self, s): self.l.append(s)
    def text(self): return "\n".join(self.l) + "\n"

def mf_x(par):
    return f"v_mfma_f32_32x32x4_2b_bf16 {vr(Sr[par],32)}, {vr(kx(),2)}, {vr(QX[par],2)}, 0 cbsz:1 abid:0"
def mf_q(t, par):
    s = Sr[par] + (16 if t == 'B' else 0)
    return f"v_mfma_f32_32x32x16_bf16 {vr(s,16)}, {vr(kr(par),4)}, {vr(Qr[(t,par)],4)}, {vr(s,16)}"
def mf_pv(t, par, j, vs=None):
    s = Sr[par] + (16 if t == 'B' else 0) + 8 * j
    return f"v_smfmac_f32_32x32x32_bf16 {vr(Or[(t,par)],16)}, {vr(vv(vs or par,j),4)}, {vr(s,8)}, v{vIdx}"
def ex(par, i): return f"v_exp_f32 v{Sr[par]+i}, v{Sr[par]+i}"
def rd_kx(u): return [f"ds_read_b64 {vr(kx(),2)}, v{vK} offset:{u*ST+32}"]
def rd_k(par, u):
    o = u * ST + (40 if par == 'O' else 0)
    return [f"ds_read_b64 {vr(kr(par),2)}, v{vK} offset:{o}", f"ds_read_b64 {vr(kr(par)+2,2)}, v{vK} offset:{o+8}"]
def rd_v(par, j, u):
    o = u * ST + (32 if par != 'E' else 0) + 16 * j * 72
    return [f"ds_read_b64_tr_b16 {vr(vv(par,j),2)}, v{vV} offset:{o}", f"ds_read_b64_tr_b16 {vr(vv(par,j)+2,2)}, v{vV} offset:{o+4*72}"]

def phase_list(par, opt, look=True):
    oth = 'O' if par == 'E' else 'E'
    pos = [int(x) for x in (opt.pos if look else opt.tpos).split(',')]
    mf = {pos[0]: mf_pv('B', oth, 1), pos[2]: mf_pv('A', par, 0), pos[3]: mf_pv('A', par, 1), pos[5]: mf_pv('B', par, 0)}
    if look:
        mf.update({pos[1]: mf_x(oth), pos[4]: mf_q('A', oth), pos[6]: mf_q('B', oth)})
    out = []
    for i in range(32):
        if i in mf: out.append((i, 'm', mf[i]))
        out.append((i, 'e', ex(par, i)))
    return out

def gen(opt):
    a = Asm()
    def stamp(i):
        if opt.stamp and (opt.stamp != 3 or i in (0, 7, 8)): a(f"s_memtime s[{60+2*i}:{61+2*i}]")
        if opt.amp and i in (opt.ampa, opt.ampb): a(f"{'s_memtime' if opt.ampbase >= 0 else 's_memrealtime'} s[{60+2*i}:{61+2*i}]")
    smem = opt.stamp in (1, 2) or (opt.amp and not (opt.ampa in (0, 7) and opt.ampb in (7, 8)))
    def lgkm(n): a(f"s_waitcnt lgkmcnt({0 if smem else n})")
    a.raw(f"""; Fused attention forward, B=2 H=32 S=2048 D=18, bf16 in/out (written by my generator gen/gen6.py).
; @launch grid=(256,1,1) block=(512,1,1) lds={LDS}
.amdgcn_target "amdgcn-amd-amdhsa--gfx950"
.text
.globl {NAME}_kernel
.p2align 8
.type {NAME}_kernel,@function
{NAME}_kernel:""")
    a("s_load_dwordx4 s[4:7], s[0:1], 0")
    a("s_load_dwordx4 s[8:11], s[0:1], 16")
    if opt.stamp:
        a("s_load_dwordx2 s[40:41], s[0:1], 40")
        if opt.stamp == 3:
            for i in range(62, 74): a(f"s_mov_b32 s{i}, 0")
        a("s_memrealtime s[56:57]")
    stamp(0)
    a("s_cmp_ge_u32 s2, 256")
    a("s_cbranch_scc1 L_end")
    t0, t1 = Sr['E'] + 8, Sr['E'] + 9
    a(f"v_lshrrev_b32 v{t0}, 6, v0")
    a(f"v_lshlrev_b32 v{vSlot}, 3, v0")
    a(f"v_readfirstlane_b32 s24, v{t0}")
    a("v_and_b32 v0, 63, v0")
    if opt.pf:
        a("s_getpc_b64 s[36:37]")
        a(f"v_lshlrev_b32 v{vT2}, 6, v0")
        a("s_cmp_lg_u32 s24, 7")
        a("s_cbranch_scc1 L_nopf")
        a(f"global_load_dword v{vT2}, v{vT2}, s[36:37]")
        a.lab("L_nopf")
    a("s_and_b32 s25, s2, 7")
    a("s_lshr_b32 s26, s2, 5")
    a("s_lshl3_add_u32 s25, s25, s26")
    a(f"s_mul_i32 s25, s25, {HB}")
    a("s_bfe_u32 s26, s2, 0x20003")
    a("s_lshl3_add_u32 s26, s26, s24")
    a(f"s_mul_i32 s26, s26, {ST}")
    a("s_add_u32 s26, s26, s25")
    a(f"v_lshlrev_b32 v{vDma}, 4, v0")
    a("s_lshl_b32 s27, s24, 11")
    a("s_mov_b32 m0, s27")
    a(f"s_mov_b32 s18, {HB}")
    a("s_mov_b32 s19, 0x00020000")
    a(f"s_mov_b32 s46, {HB}")
    a("s_mov_b32 s47, 0x00020000")
    a(f"s_movk_i32 s14, {ST}")
    a("s_mov_b32 s15, 0x00020000")
    a(f"v_mul_u32_u24 v{vQo}, 36, v0")
    a("s_cmp_ge_u32 s24, 4")
    a("s_cselect_b64 vcc, 1, 0")
    a("s_waitcnt lgkmcnt(0)")
    stamp(1)
    ldf = opt.ldfl.replace('_', ' ')
    def quad():
        a(f"buffer_load_dwordx4 v{vDma}, s[16:19], s27 offen lds {ldf}")
        a(f"buffer_load_dwordx4 v{vDma}, s[16:19], s27 offen offset:1024 lds {ldf}")
        a("s_add_u32 m0, s27, s18")
        a("s_nop 0")
        a(f"buffer_load_dwordx4 v{vDma}, s[44:47], s27 offen lds {ldf}")
        a(f"buffer_load_dwordx4 v{vDma}, s[44:47], s27 offen offset:1024 lds {ldf}")
        a("s_add_u32 m0, s27, 16384")
        a("s_add_u32 s27, s27, 16384")
    T = Sr['O']
    qf = opt.qfl.replace('_', ' ')
    def qloads():
        a(f"buffer_load_dword v{T+8}, v{vQo}, s[12:15], 0 offen offset:32 {qf}")
        a(f"buffer_load_dwordx4 {vr(T,4)}, v{vQo}, s[12:15], 0 offen {qf}")
        a(f"buffer_load_dwordx4 {vr(T+4,4)}, v{vQo}, s[12:15], 0 offen offset:16 {qf}")
    a("s_add_u32 s16, s6, s25")
    a("s_addc_u32 s17, s7, 0")
    a("s_add_u32 s44, s8, s25")
    a("s_addc_u32 s45, s9, 0")
    a("s_add_u32 s12, s4, s26")
    a("s_addc_u32 s13, s5, 0")
    a("s_cbranch_vccnz L_setup")
    quad()
    if opt.bdelay: qloads()
    a.lab("L_setup")
    if not opt.bdelay: qloads()
    a(f"v_and_b32 v{t0}, 31, v0")
    a(f"v_lshrrev_b32 v{t1}, 5, v0")
    a("s_add_u32 s20, s10, s26")
    a("s_addc_u32 s21, s11, 0")
    a(f"s_movk_i32 s22, {ST}")
    a("s_mov_b32 s23, 0x00020000")
    C = Sr['E']
    a(f"v_and_b32 v{C}, 1, v0")
    a(f"v_subrev_u32 v{C}, 1, v{C}")
    a(f"v_and_b32 v{C}, 0x3f80, v{C}")
    a(f"v_mov_b32 v{C+1}, 0")
    a(f"v_add_u32 v{vSlot}, {CBASE}, v{vSlot}")
    a(f"ds_write_b64 v{vSlot}, {vr(C,2)}")
    a(f"v_mov_b32 v{QX['E']}, 0"); a(f"v_mov_b32 v{QX['E']+1}, 0"); a(f"v_mov_b32 v{QX['O']}, 0")
    a(f"v_mul_u32_u24 v{vK}, 72, v{t0}")
    a(f"v_lshl_add_u32 v{vK}, v{t1}, 4, v{vK}")
    a(f"v_mfma_f32_32x32x4_2b_bf16 {vr(120,32)}, {vr(QX['E'],2)}, {vr(QX['E'],2)}, 0")
    a(f"v_mfma_f32_32x32x4_2b_bf16 {vr(152,32)}, {vr(QX['E'],2)}, {vr(QX['E'],2)}, 0")
    t3, t4, t5 = C + 4, C + 5, C + 6
    a(f"v_bfe_u32 v{t3}, v0, 2, 2")
    a(f"v_lshl_add_u32 v{t3}, v{t1}, 3, v{t3}")
    a(f"v_mul_u32_u24 v{t3}, 72, v{t3}")
    a(f"v_and_b32 v{t4}, 1, v0")
    a(f"v_lshl_add_u32 v{t3}, v{t4}, 4, v{t3}")
    a(f"v_and_b32 v{t4}, 2, v0")
    a(f"v_lshl_add_u32 v{t3}, v{t4}, 2, v{t3}")
    a(f"v_lshlrev_b32 v{t5}, 6, v{t1}")
    a(f"v_lshlrev_b32 v{t4}, 2, v{t4}")
    a(f"v_sub_u32 v{t5}, v{t5}, v{t4}")
    a(f"v_add_u32 v{t5}, {CBASE+56}, v{t5}")
    a(f"v_and_b32 v{t4}, 16, v0")
    a(f"v_add3_u32 v{t3}, v{t4}, v{t3}, s18")
    a("s_mov_b32 vcc_lo, 0xdddd0000"); a("s_mov_b32 vcc_hi, 0xdddd0000")
    a(f"v_mov_b32 v{vIdx}, 0xdddd")
    a(f"v_mov_b32 v{vIncK}, {ST}")
    a(f"v_cndmask_b32 v{vIncV}, v{vIncK}, 0, vcc")
    a(f"v_cndmask_b32 v{vV}, v{t3}, v{t5}, vcc")
    a(f"v_add_u32 v{C+2}, v{vK}, v{vIncK}")
    a(f"v_add_u32 v{C+3}, v{vV}, v{vIncV}")
    a(f"ds_write_b64 v{vSlot}, {vr(C+2,2)} offset:4096")
    a(f"s_mul_i32 s28, s24, {ST}")
    a("s_cmp_ge_u32 s24, 5")
    a(f"s_cselect_b32 s29, {XBASE - 5*ST}, 0")
    a("s_add_u32 s28, s28, s29")
    a(f"v_mul_u32_u24 v{vStA}, 36, v{t0}")
    a(f"v_lshl_add_u32 v{vStA}, v{t1}, 4, v{vStA}")
    a(f"v_add_u32 v{vStA}, s28, v{vStA}")
    a(f"v_add_u32 v{vStB}, 1152, v{vStA}")
    a(f"v_add_u32 v{vStR}, s28, v{vDma}")
    a(f"s_mov_b32 s30, {CSCALE:#x}"); a(f"s_mov_b32 s31, {CSCALE:#x}")
    a("s_mov_b32 s29, 1")
    b1, b2 = opt.b1, opt.b2
    assert b1 == 3 and 6 <= b2 <= 7
    a(f"s_mov_b32 s32, {(1 << (b1-1)) | (1 << (b2-1)):#x}")
    a(f"s_mov_b32 s33, {(1 << (b1-1)) | (1 << (b2-1)) | (1 << 31):#x}")
    a("s_mov_b32 s35, 0x6c800000")
    a("s_mov_b64 vcc, 0")
    a("s_cmp_ge_u32 s24, 4")
    if opt.bdelay:
        a("s_cbranch_scc0 L_noq")
        qloads()
        a.lab("L_noq")
    a("s_waitcnt vmcnt(3) lgkmcnt(0)")
    stamp(2)
    a("s_barrier")
    burst = rd_kx(1) + rd_v('O', 0, 0) + rd_k('E', 1) + rd_v('O', 1, 0) + rd_v('E', 0, 1) + rd_v('E', 1, 1) + rd_k('O', 1)
    bump = f"ds_add_rtn_u64 {vr(vK,2)}, v{vSlot}, {vr(vIncK,2)} offset:4096"
    AL['on'] = True
    rd0 = rd_kx(0) + rd_k('E', 0) + rd_k('O', 0) + rd_v('E', 0, 0) + rd_v('E', 1, 0) + burst + [bump]
    for f in rd0[:13]: a(f)
    a("s_waitcnt lgkmcnt(4)" if not smem else "s_waitcnt lgkmcnt(0)")
    for f in rd0[13:]: a(f)
    a("s_setprio 3")
    stamp(3)
    W = T + 10
    wof = {}
    def unpack(src, k):
        w = W + 2 * k; wof[src] = w
        a(f"v_lshlrev_b32 v{w}, 16, v{src}")
        a(f"v_and_b32 v{w+1}, 0xffff0000, v{src}")
        a(f"v_pk_mul_f32 {vr(w,2)}, {vr(w,2)}, s[30:31]")
    def pack(src, d): a(f"v_cvt_pk_bf16_f32 v{d}, v{wof[src]}, v{wof[src]+1}")
    QAE, QBE, QAO, QBO = Qr[('A','E')], Qr[('B','E')], Qr[('A','O')], Qr[('B','O')]
    a("s_waitcnt vmcnt(2)")
    unpack(T + 8, 8)
    pack(T + 8, QX['E']); pack(T + 8, QBO + 3)
    a("s_waitcnt vmcnt(1)")
    a(mf_x('E'))
    for j in range(4): unpack(T + j, j)
    for j in range(4): pack(T + j, QAE + j)
    pack(T, QX['O'] + 1)
    a("s_waitcnt vmcnt(0)")
    stamp(4)
    for j in range(4, 8): unpack(T + j, j)
    for j in range(4): pack(T + 4 + j, QBE + j)
    for j in range(4): a(f"v_permlane32_swap_b32 v{QAE+j}, v{QBE+j}")
    pack(T + 4, QAO + 3)
    a(f"v_mov_b32 v{QAO}, v{QAE+1}")
    a(mf_q('A', 'E'))
    a(f"v_permlane32_swap_b32 v{QAO+3}, v{QBO+3}")
    for j in range(1, 3): a(f"v_mov_b32 v{QAO+j}, v{QAE+j+1}")
    for j in range(0, 3): a(f"v_mov_b32 v{QBO+j}, v{QBE+j+1}")
    a(mf_q('B', 'E'))
    a("s_cbranch_scc1 L_startB")
    a("s_setprio 2")
    a("s_waitcnt lgkmcnt(0)")
    a("s_nop 1")
    cut = opt.cut
    pos0 = int(opt.pos.split(',')[0])
    assert cut > pos0
    a.lab("L_first")
    stamp(5)
    for (i, k_, s_) in phase_list('E', opt):
        if not (i == pos0 and k_ == 'm'): a(s_)
    for (i, k_, s_) in phase_list('O', opt):
        if i < cut: a(s_)
    AL['on'] = False
    pE, pO = phase_list('E', opt), phase_list('O', opt)
    for (i, k_, s_) in pO:
        if i >= cut: a(s_)
    for (i, k_, s_) in pE: a(s_)
    for (i, k_, s_) in pO:
        if i < cut: a(s_)
    a("s_cbranch_scc0 L_topA")
    a("s_branch L_topB")
    a.lab("L_startB")
    a("s_setprio 1")
    quad()
    a("s_cmp_ge_u32 s24, 4")
    a("s_waitcnt lgkmcnt(0)")
    a("s_branch L_first")
    if opt.kxm: burst = ["s_mov_b32 exec_hi, 0", burst[0], "s_mov_b32 exec_hi, -1"] + burst[1:]
    for role in 'AB':
        a.raw("    .p2align 6")
        a.lab(f"L_top{role}")
        if role == 'A': a("s_setprio 0")
        a("s_add_u32 s29, s29, 1")
        for f in burst: a(f)
        a("s_cmp_lg_u32 s29, 31")
        a(f"s_cbranch_scc1 L_nl{role}")
        a("s_mov_b64 vcc, 1")
        a("s_waitcnt lgkmcnt(8)")
        for f in rd_v('T', 0, 1) + rd_v('T', 1, 1): a(f)
        a.lab(f"L_nl{role}")
        a(f"ds_add_rtn_u64 {vr(vK,2)}, v{vSlot}, {vr(vIncK,2)} offset:4096")
        if opt.stamp == 2:
            a("s_memtime s[80:81]"); a("s_memrealtime s[82:83]")
        a("s_cmp_gt_u32 s29, 4")
        a(f"s_cbranch_scc1 L_nd{role}")
        quad()
        if role == 'A':
            a("s_cmp_lg_u32 s29, 4")
            a("s_cbranch_scc1 L_ndA")
            quad()
        a.lab(f"L_nd{role}")
        a(f"s_cmp_lg_u32 s29, {b2-1}")
        a(f"s_cbranch_scc1 L_nw{role}")
        a("s_waitcnt vmcnt(0)")
        if opt.touch and role == 'A':
            a(f"buffer_load_dword v{vT2}, off, s[20:23], 0")
        a.lab(f"L_nw{role}")
        a(f"s_bitcmp1_b32 {'s33' if role == 'A' else 's32'}, s29")
        a("s_waitcnt lgkmcnt(0)")
        if opt.stamp == 2:
            a("s_mov_b32 s84, m0"); a("s_mov_b32 m0, s29")
            a("v_writelane_b32 v208, s80, m0"); a("v_writelane_b32 v209, s82, m0"); a("s_mov_b32 m0, s84")
        if role == 'B':
            a("s_cbranch_scc0 L_goB")
            a("s_waitcnt vmcnt(4)")
            a("s_barrier")
            a.lab("L_goB")
        first = True
        for (i, k_, s_) in pO:
            if i < cut: continue
            a(s_)
            if first and role == 'A': a("s_setprio 2")
            first = False
        for (i, k_, s_) in pE: a(s_)
        for (i, k_, s_) in pO:
            if i < cut: a(s_)
        if role == 'A':
            a("s_cbranch_scc0 L_topA")
            a("s_cbranch_vccnz L_tail")
            a("s_barrier")
            a("s_branch L_topA")
        else:
            a("s_cbranch_vccz L_topB")
    R = Sr['E']
    PK = {'A': Sr['E'] + 8, 'B': Sr['E'] + 14}
    OB = Sr['E'] + 20
    fl = opt.stfl.replace('_', ' ')
    def finish(t, ds=True):
        E, O = Or[(t, 'E')], Or[(t, 'O')]
        l, rc = (R, R + 2) if t == 'A' else (R + 1, R + 4)
        a(f"v_add_f32 v{l}, v{E+12}, v{O+12}")
        a(f"v_rcp_f32 v{rc}, v{l}")
        a(f"v_permlane32_swap_b32 v{O}, v{O+8}")
        a(f"v_permlane32_swap_b32 v{O+1}, v{O+9}")
        for j in (8, 0, 2, 4, 6):
            a(f"v_pk_add_f32 {vr(E+j,2)}, {vr(E+j,2)}, {vr(O+j+2,2)}")
        for j in (8, 0, 2, 4, 6):
            a(f"v_pk_mul_f32 {vr(E+j,2)}, {vr(E+j,2)}, {vr(rc,2)} op_sel_hi:[1,0]")
        st = vStA if t == 'A' else vStB
        for j in (4, 0, 1, 2, 3):
            a(f"v_cvt_pk_bf16_f32 v{PK[t]+j}, v{E+2*j}, v{E+2*j+1}")
        if not ds: return
        a(f"ds_write_b32 v{st}, v{PK[t]+4} offset:16")
        a(f"ds_write2_b32 v{st}, v{PK[t]}, v{PK[t]+1} offset0:0 offset1:1")
        a(f"ds_write2_b32 v{st}, v{PK[t]+2}, v{PK[t]+3} offset0:2 offset1:3")
        if t == 'A':
            a(f"ds_read_b128 {vr(OB,4)}, v{vStR}")
        else:
            a(f"ds_read_b128 {vr(OB+4,4)}, v{vStR} offset:1024")
            a(f"ds_read_b128 {vr(OB+8,4)}, v{vStR} offset:2048")
    def store(k): a(f"buffer_store_dwordx4 {vr(OB+4*k,4)}, v{vDma}, s[20:23], 0 offen offset:{1024*k} {fl}")
    def dot(t, j): a(f"v_dot2c_f32_bf16 v{R if t == 'A' else R+1}, 0, v{PK[t]+j}")
    a.lab("L_tail")
    tm = {10: mf_pv('A', 'O', 0, 'T'), 18: mf_pv('A', 'O', 1, 'T'), 26: mf_pv('B', 'O', 0, 'T')}
    for i in range(cut, 32):
        if i in tm: a(tm[i])
        if i == 29: finish('A', ds=(opt.tv == 0))
        a(ex('O', i))
    stamp(6)
    if opt.tv == 0:
        a("s_nop 1")
        a(mf_pv('B', 'O', 1, 'T'))
        a("s_nop 9")
        lgkm(0)
        store(0)
        finish('B')
    else:
        a(f"ds_write_b32 v{vStA}, v{PK['A']+4} offset:16")
        a(f"ds_write2_b32 v{vStA}, v{PK['A']}, v{PK['A']+1} offset0:0 offset1:1")
        a(mf_pv('B', 'O', 1, 'T'))
        a(f"ds_write2_b32 v{vStA}, v{PK['A']+2}, v{PK['A']+3} offset0:2 offset1:3")
        a(f"ds_read_b128 {vr(OB,4)}, v{vStR}")
        a("s_nop 9")
        n0 = len(a.l)
        finish('B')
        a.l[n0+opt.tv:n0+opt.tv] = ["    s_waitcnt lgkmcnt(0)", f"    buffer_store_dwordx4 {vr(OB,4)}, v{vDma}, s[20:23], 0 offen {fl}"]
    lgkm(1)
    store(1)
    lgkm(0)
    store(2)
    stamp(7)
    a("s_setprio 0")
    for t in 'AB':
        for j in range(5): dot(t, j)
    a(f"v_cmp_nge_f32 s[36:37], v{R}, 1.0")
    a(f"v_cmp_nle_f32 vcc, v{R}, s35")
    a("s_or_b64 s[36:37], s[36:37], vcc")
    a(f"v_cmp_nge_f32 s[38:39], v{R+1}, 1.0")
    a(f"v_cmp_nle_f32 vcc, v{R+1}, s35")
    a("s_or_b64 s[36:37], s[36:37], s[38:39]")
    a("s_or_b64 s[36:37], s[36:37], vcc")
    a("s_cbranch_scc1 L_check")
    a.lab("L_done")
    if opt.amp:
        a("s_waitcnt vmcnt(0)")
        stamp(8)
        a("s_memrealtime s[42:43]")
        a("s_waitcnt lgkmcnt(0)")
        a(f"s_sub_u32 s50, s{60+2*opt.ampb}, s{60+2*opt.ampa}")
        if opt.ampbase >= 0:
            a(f"s_max_u32 s50, s50, {opt.ampbase}")
            a(f"s_sub_u32 s50, s50, {opt.ampbase}")
            a("s_and_b32 s51, s2, 7")
            a("s_cselect_b32 s50, 0, s50")
        a(f"s_mul_i32 s50, s50, {opt.amp}")
        a("s_min_u32 s50, s50, 20000")
        if opt.ampr:
            a("s_cmp_lt_u32 s24, 4")
            a("s_cselect_b32 s50, s50, 0" if opt.ampr == 'A' else "s_cselect_b32 s50, 0, s50")
        a.lab("L_spin")
        a("s_sleep 2")
        a("s_memrealtime s[52:53]")
        a("s_waitcnt lgkmcnt(0)")
        a("s_sub_u32 s51, s52, s42")
        a("s_cmp_lt_u32 s51, s50")
        a("s_cbranch_scc1 L_spin")
    if opt.stamp:
        a("s_mov_b64 exec, 1")
        a("s_waitcnt vmcnt(0)")
        stamp(8)
        a("s_memrealtime s[58:59]")
        a("s_getreg_b32 s42, hwreg(HW_REG_HW_ID)")
        a("s_getreg_b32 s43, hwreg(HW_REG_XCC_ID)")
        a("s_waitcnt lgkmcnt(0)")
        for i, sr in enumerate((56, 58, 42, 43, 60, 62, 64, 66, 68, 70, 72, 74, 76)):
            a(f"v_mov_b32 v{16+i}, s{sr}")
        a("s_lshl_b32 s50, s2, 3"); a("s_add_u32 s50, s50, s24"); a("s_lshl_b32 s50, s50, 6")
        a("v_mov_b32 v1, s50")
        for i in range(4): a(f"global_store_dwordx4 v1, v[{16+4*i}:{19+4*i}], s[40:41] offset:{16*i}")
        if opt.stamp == 2:
            a("s_mov_b64 exec, -1")
            a("s_lshl_b32 s50, s50, 3"); a("s_add_u32 s50, s50, 0x100000")
            a("v_lshl_add_u32 v1, v0, 3, s50")
            a("global_store_dwordx2 v1, v[208:209], s[40:41]")
    a.lab("L_end")
    a("s_endpgm")
    a.lab("L_check")
    a("s_waitcnt vmcnt(0)")
    mA, mB = 0, vSlot
    if opt.stamp == 2: mA = 187
    def rewind(n):
        a(f"v_subrev_u32 v{vK}, {n*ST}, v{vK}")
        a(f"v_mul_u32_u24 v{vT2}, {n}, v{vIncV}")
        a(f"v_sub_u32 v{vV}, v{vV}, v{vT2}")
        a("s_mov_b32 s29, 0")
    def scores():
        a(f"buffer_load_dwordx2 {vr(KX,2)}, v{vK}, s[16:19], 0 offen offset:32")
        a(f"buffer_load_dwordx4 {vr(Kr['E'],4)}, v{vK}, s[16:19], 0 offen")
        a(f"buffer_load_dwordx4 {vr(Kr['O'],4)}, v{vK}, s[16:19], 0 offen offset:40")
        a("s_waitcnt vmcnt(0) lgkmcnt(0)")
        a(mf_x('E')); a(mf_x('O'))
        a("s_nop 15"); a("s_nop 3")
        for par in 'EO':
            for t in 'AB': a(mf_q(t, par))
        a("s_nop 15")
    def step(lab):
        a(f"v_add_u32 v{vK}, v{vIncK}, v{vK}")
        a(f"v_add_u32 v{vV}, v{vIncV}, v{vV}")
        a("s_add_u32 s29, s29, 1")
        a("s_cmp_lg_u32 s29, 32")
        a(f"s_cbranch_scc1 {lab}")
    rewind(31)
    a(f"v_mov_b32 v{mA}, 0xff800000"); a(f"v_mov_b32 v{mB}, 0xff800000")
    a.lab("L_max")
    scores()
    for par in 'EO':
        for t, m in (('A', mA), ('B', mB)):
            s = Sr[par] + (16 if t == 'B' else 0)
            for j in range(0, 16, 2): a(f"v_max3_f32 v{m}, v{m}, v{s+j}, v{s+j+1}")
    step("L_max")
    for m in (mA, mB):
        a(f"v_mov_b32 v{vT2}, v{m}")
        a("s_nop 1")
        a(f"v_permlane32_swap_b32 v{vT2}, v{m}")
        a("s_nop 1")
        a(f"v_max_f32 v{m}, v{m}, v{vT2}")
    rewind(32)
    for r in range(120, 184): a(f"v_mov_b32 v{r}, 0")
    a.lab("L_acc")
    for par in 'EO':
        for j in range(2):
            for f in rd_v(par, j, 0): a(f)
    scores()
    for par in 'EO':
        for t, m in (('A', mA), ('B', mB)):
            s = Sr[par] + (16 if t == 'B' else 0)
            for j in range(16): a(f"v_sub_f32 v{s+j}, v{s+j}, v{m}")
            for j in range(16): a(f"v_exp_f32 v{s+j}, v{s+j}")
    a("s_nop 1")
    for par in 'EO':
        for t in 'AB':
            for j in range(2): a(mf_pv(t, par, j))
    step("L_acc")
    a("s_nop 15")
    finish('A'); finish('B')
    a("s_waitcnt lgkmcnt(0)")
    for k in range(3): store(k)
    a("s_branch L_done")
    nv = 212 if opt.stamp == 2 else NV
    a.raw(f""".section .rodata,"a"
.p2align 6
.amdhsa_kernel {NAME}_kernel
  .amdhsa_next_free_vgpr {nv}
  .amdhsa_next_free_sgpr {90 if (opt.stamp or opt.amp) else 48}
  .amdhsa_accum_offset {nv}
  .amdhsa_group_segment_fixed_size 0
  .amdhsa_kernarg_size 48
  .amdhsa_user_sgpr_count 2
  .amdhsa_user_sgpr_kernarg_segment_ptr 1
  .amdhsa_system_sgpr_workgroup_id_x 1
.end_amdhsa_kernel""")
    return a.text()

def parse(argv):
    p = argparse.ArgumentParser()
    p.add_argument('-o', default=f"cdna_kernels/{NAME}.s")
    p.add_argument('--grp', default='2,2')
    p.add_argument('--pf', type=int, default=0)
    p.add_argument('--kxm', type=int, default=0)
    p.add_argument('--tv', type=int, default=0)
    p.add_argument('--touch', type=int, default=0)
    p.add_argument('--b05', type=int, default=0)
    p.add_argument('--b1', type=int, default=3)
    p.add_argument('--b2', type=int, default=7)
    p.add_argument('--bdelay', type=int, default=1)
    p.add_argument('--cut', type=int, default=4)
    p.add_argument('--pos', default='2,5,15,18,21,31,25')
    p.add_argument('--tpos', default='2,5,13,18,21,26,29')
    p.add_argument('--stfl', default='sc1')
    p.add_argument('--ldfl', default='')
    p.add_argument('--qfl', default='')
    p.add_argument('--stamp', type=int, default=0)
    p.add_argument('--amp', type=int, default=0)
    p.add_argument('--ampa', type=int, default=0)
    p.add_argument('--ampb', type=int, default=8)
    p.add_argument('--ampr', default='')
    p.add_argument('--ampbase', type=int, default=-1)
    return p.parse_args(argv)

if __name__ == '__main__':
    opt = parse(sys.argv[1:])
    open(opt.o, 'w').write(gen(opt))
```

```python
import sys, struct, math, argparse

NAME = "standalone__fused_io_aware_attn__prompt"
HB = 73728
ST = 2304
VBASE = HB
CBASE = 2 * HB
ABASE = CBASE + 4096
XBASE = ABASE + 4096
LDS = XBASE + 3 * ST + 1024

def f2u(x): return struct.unpack('<I', struct.pack('<f', x))[0]
CSCALE = f2u(math.log2(math.e) / math.sqrt(18.0))

vK, vV = 2, 3
vIncK, vIncV = 4, 5
vSlot, vIdx, vQo, vDma = 1, 6, 7, 14
vT2 = 15
KX = 8
QX = {'E': 10, 'O': 12}
Kr = {'E': 16, 'O': 20}
Qr = {('A', 'E'): 24, ('B', 'E'): 28, ('A', 'O'): 32, ('B', 'O'): 36}
Vr = {('E', 0): 40, ('E', 1): 44, ('O', 0): 48, ('O', 1): 52}
Sr = {'E': 56, 'O': 88}
Or = {('A', 'E'): 120, ('B', 'E'): 136, ('A', 'O'): 152, ('B', 'O'): 168}
vStA, vStB, vStR = 184, 185, 186
Vr[('T', 0)] = 188; Vr[('T', 1)] = 192
KX0, KE0, KO0 = 196, 198, 202
NV = 208
AL = dict(on=False)
def kx(): return KX0 if AL['on'] else KX
def kr(par): return {'E': KE0, 'O': KO0}[par] if AL['on'] else Kr[par]
def vv(par, j): return Vr[('T', j)] if (AL['on'] and par == 'E') else Vr[(par, j)]

def vr(b, n): return f"v[{b}:{b+n-1}]"

class Asm:
    def __init__(self): self.l = []
    def __call__(self, s): self.l.append("    " + s)
    def lab(self, s): self.l.append(s + ":")
    def raw(self, s): self.l.append(s)
    def text(self): return "\n".join(self.l) + "\n"

def mf_x(par):
    return f"v_mfma_f32_32x32x4_2b_bf16 {vr(Sr[par],32)}, {vr(kx(),2)}, {vr(QX[par],2)}, 0 cbsz:1 abid:0"
def mf_q(t, par):
    s = Sr[par] + (16 if t == 'B' else 0)
    return f"v_mfma_f32_32x32x16_bf16 {vr(s,16)}, {vr(kr(par),4)}, {vr(Qr[(t,par)],4)}, {vr(s,16)}"
def mf_pv(t, par, j, vs=None):
    s = Sr[par] + (16 if t == 'B' else 0) + 8 * j
    return f"v_smfmac_f32_32x32x32_bf16 {vr(Or[(t,par)],16)}, {vr(vv(vs or par,j),4)}, {vr(s,8)}, v{vIdx}"
def ex(par, i): return f"v_exp_f32 v{Sr[par]+i}, v{Sr[par]+i}"
def rd_kx(u): return [f"ds_read_b64 {vr(kx(),2)}, v{vK} offset:{u*ST+32}"]
def rd_k(par, u):
    o = u * ST + (40 if par == 'O' else 0)
    return [f"ds_read_b64 {vr(kr(par),2)}, v{vK} offset:{o}", f"ds_read_b64 {vr(kr(par)+2,2)}, v{vK} offset:{o+8}"]
def rd_v(par, j, u):
    o = u * ST + (32 if par != 'E' else 0) + 16 * j * 72
    return [f"ds_read_b64_tr_b16 {vr(vv(par,j),2)}, v{vV} offset:{o}", f"ds_read_b64_tr_b16 {vr(vv(par,j)+2,2)}, v{vV} offset:{o+4*72}"]

def phase_list(par, opt, look=True):
    oth = 'O' if par == 'E' else 'E'
    pos = [int(x) for x in (opt.pos if look else opt.tpos).split(',')]
    mf = {pos[0]: mf_pv('B', oth, 1), pos[2]: mf_pv('A', par, 0), pos[3]: mf_pv('A', par, 1), pos[5]: mf_pv('B', par, 0)}
    if look:
        mf.update({pos[1]: mf_x(oth), pos[4]: mf_q('A', oth), pos[6]: mf_q('B', oth)})
    out = []
    for i in range(32):
        if i in mf: out.append((i, 'm', mf[i]))
        out.append((i, 'e', ex(par, i)))
    return out

def gen(opt):
    a = Asm()
    def stamp(i):
        if opt.stamp and (opt.stamp != 3 or i in (0, 7, 8)): a(f"s_memtime s[{60+2*i}:{61+2*i}]")
        if opt.amp and i in (opt.ampa, opt.ampb): a(f"{'s_memtime' if opt.ampbase >= 0 else 's_memrealtime'} s[{60+2*i}:{61+2*i}]")
    smem = opt.stamp in (1, 2) or (opt.amp and not (opt.ampa in (0, 7) and opt.ampb in (7, 8)))
    def lgkm(n): a(f"s_waitcnt lgkmcnt({0 if smem else n})")
    a.raw(f"""; Fused attention forward, B=2 H=32 S=2048 D=18, bf16 in/out (written by my generator gen/gen6.py).
; @launch grid=(256,1,1) block=(512,1,1) lds={LDS}
.amdgcn_target "amdgcn-amd-amdhsa--gfx950"
.text
.globl {NAME}_kernel
.p2align 8
.type {NAME}_kernel,@function
{NAME}_kernel:""")
    a("s_load_dwordx4 s[4:7], s[0:1], 0")
    a("s_load_dwordx4 s[8:11], s[0:1], 16")
    if opt.stamp:
        a("s_load_dwordx2 s[40:41], s[0:1], 40")
        if opt.stamp == 3:
            for i in range(62, 74): a(f"s_mov_b32 s{i}, 0")
        a("s_memrealtime s[56:57]")
    stamp(0)
    a("s_cmp_ge_u32 s2, 256")
    a("s_cbranch_scc1 L_end")
    t0, t1 = Sr['E'] + 8, Sr['E'] + 9
    a(f"v_lshrrev_b32 v{t0}, 6, v0")
    a(f"v_lshlrev_b32 v{vSlot}, 3, v0")
    a(f"v_readfirstlane_b32 s24, v{t0}")
    a("v_and_b32 v0, 63, v0")
    if opt.pf:
        a("s_getpc_b64 s[36:37]")
        a(f"v_lshlrev_b32 v{vT2}, 6, v0")
        a("s_cmp_lg_u32 s24, 7")
        a("s_cbranch_scc1 L_nopf")
        a(f"global_load_dword v{vT2}, v{vT2}, s[36:37]")
        a.lab("L_nopf")
    a("s_and_b32 s25, s2, 7")
    a("s_lshr_b32 s26, s2, 5")
    a("s_lshl3_add_u32 s25, s25, s26")
    a(f"s_mul_i32 s25, s25, {HB}")
    a("s_bfe_u32 s26, s2, 0x20003")
    a("s_lshl3_add_u32 s26, s26, s24")
    a(f"s_mul_i32 s26, s26, {ST}")
    a("s_add_u32 s26, s26, s25")
    a(f"v_lshlrev_b32 v{vDma}, 4, v0")
    a("s_lshl_b32 s27, s24, 11")
    a("s_mov_b32 m0, s27")
    a(f"s_mov_b32 s18, {HB}")
    a("s_mov_b32 s19, 0x00020000")
    a(f"s_mov_b32 s46, {HB}")
    a("s_mov_b32 s47, 0x00020000")
    a(f"s_movk_i32 s14, {ST}")
    a("s_mov_b32 s15, 0x00020000")
    a(f"v_mul_u32_u24 v{vQo}, 36, v0")
    a("s_cmp_ge_u32 s24, 4")
    a("s_cselect_b64 vcc, 1, 0")
    a("s_waitcnt lgkmcnt(0)")
    stamp(1)
    ldf = opt.ldfl.replace('_', ' ')
    def quad():
        a(f"buffer_load_dwordx4 v{vDma}, s[16:19], s27 offen lds {ldf}")
        a(f"buffer_load_dwordx4 v{vDma}, s[16:19], s27 offen offset:1024 lds {ldf}")
        a("s_add_u32 m0, s27, s18")
        a("s_nop 0")
        a(f"buffer_load_dwordx4 v{vDma}, s[44:47], s27 offen lds {ldf}")
        a(f"buffer_load_dwordx4 v{vDma}, s[44:47], s27 offen offset:1024 lds {ldf}")
        a("s_add_u32 m0, s27, 16384")
        a("s_add_u32 s27, s27, 16384")
    T = Sr['O']
    qf = opt.qfl.replace('_', ' ')
    def qloads():
        a(f"buffer_load_dword v{T+8}, v{vQo}, s[12:15], 0 offen offset:32 {qf}")
        a(f"buffer_load_dwordx4 {vr(T,4)}, v{vQo}, s[12:15], 0 offen {qf}")
        a(f"buffer_load_dwordx4 {vr(T+4,4)}, v{vQo}, s[12:15], 0 offen offset:16 {qf}")
    a("s_add_u32 s16, s6, s25")
    a("s_addc_u32 s17, s7, 0")
    a("s_add_u32 s44, s8, s25")
    a("s_addc_u32 s45, s9, 0")
    a("s_add_u32 s12, s4, s26")
    a("s_addc_u32 s13, s5, 0")
    a("s_cbranch_vccnz L_setup")
    quad()
    if opt.bdelay: qloads()
    a.lab("L_setup")
    if not opt.bdelay: qloads()
    a(f"v_and_b32 v{t0}, 31, v0")
    a(f"v_lshrrev_b32 v{t1}, 5, v0")
    a("s_add_u32 s20, s10, s26")
    a("s_addc_u32 s21, s11, 0")
    a(f"s_movk_i32 s22, {ST}")
    a("s_mov_b32 s23, 0x00020000")
    C = Sr['E']
    a(f"v_and_b32 v{C}, 1, v0")
    a(f"v_subrev_u32 v{C}, 1, v{C}")
    a(f"v_and_b32 v{C}, 0x3f80, v{C}")
    a(f"v_mov_b32 v{C+1}, 0")
    a(f"v_add_u32 v{vSlot}, {CBASE}, v{vSlot}")
    a(f"ds_write_b64 v{vSlot}, {vr(C,2)}")
    a(f"v_mov_b32 v{QX['E']}, 0"); a(f"v_mov_b32 v{QX['E']+1}, 0"); a(f"v_mov_b32 v{QX['O']}, 0")
    a(f"v_mul_u32_u24 v{vK}, 72, v{t0}")
    a(f"v_lshl_add_u32 v{vK}, v{t1}, 4, v{vK}")
    a(f"v_mfma_f32_32x32x4_2b_bf16 {vr(120,32)}, {vr(QX['E'],2)}, {vr(QX['E'],2)}, 0")
    a(f"v_mfma_f32_32x32x4_2b_bf16 {vr(152,32)}, {vr(QX['E'],2)}, {vr(QX['E'],2)}, 0")
    t3, t4, t5 = C + 4, C + 5, C + 6
    a(f"v_bfe_u32 v{t3}, v0, 2, 2")
    a(f"v_lshl_add_u32 v{t3}, v{t1}, 3, v{t3}")
    a(f"v_mul_u32_u24 v{t3}, 72, v{t3}")
    a(f"v_and_b32 v{t4}, 1, v0")
    a(f"v_lshl_add_u32 v{t3}, v{t4}, 4, v{t3}")
    a(f"v_and_b32 v{t4}, 2, v0")
    a(f"v_lshl_add_u32 v{t3}, v{t4}, 2, v{t3}")
    a(f"v_lshlrev_b32 v{t5}, 6, v{t1}")
    a(f"v_lshlrev_b32 v{t4}, 2, v{t4}")
    a(f"v_sub_u32 v{t5}, v{t5}, v{t4}")
    a(f"v_add_u32 v{t5}, {CBASE+56}, v{t5}")
    a(f"v_and_b32 v{t4}, 16, v0")
    a(f"v_add3_u32 v{t3}, v{t4}, v{t3}, s18")
    a("s_mov_b32 vcc_lo, 0xdddd0000"); a("s_mov_b32 vcc_hi, 0xdddd0000")
    a(f"v_mov_b32 v{vIdx}, 0xdddd")
    a(f"v_mov_b32 v{vIncK}, {ST}")
    a(f"v_cndmask_b32 v{vIncV}, v{vIncK}, 0, vcc")
    a(f"v_cndmask_b32 v{vV}, v{t3}, v{t5}, vcc")
    a(f"v_add_u32 v{C+2}, v{vK}, v{vIncK}")
    a(f"v_add_u32 v{C+3}, v{vV}, v{vIncV}")
    a(f"ds_write_b64 v{vSlot}, {vr(C+2,2)} offset:4096")
    a(f"s_mul_i32 s28, s24, {ST}")
    a("s_cmp_ge_u32 s24, 5")
    a(f"s_cselect_b32 s29, {XBASE - 5*ST}, 0")
    a("s_add_u32 s28, s28, s29")
    a(f"v_mul_u32_u24 v{vStA}, 36, v{t0}")
    a(f"v_lshl_add_u32 v{vStA}, v{t1}, 4, v{vStA}")
    a(f"v_add_u32 v{vStA}, s28, v{vStA}")
    a(f"v_add_u32 v{vStB}, 1152, v{vStA}")
    a(f"v_add_u32 v{vStR}, s28, v{vDma}")
    a(f"s_mov_b32 s30, {CSCALE:#x}"); a(f"s_mov_b32 s31, {CSCALE:#x}")
    a("s_mov_b32 s29, 1")
    b1, b2 = opt.b1, opt.b2
    assert b1 == 3 and 6 <= b2 <= 7
    a(f"s_mov_b32 s32, {(1 << (b1-1)) | (1 << (b2-1)):#x}")
    a(f"s_mov_b32 s33, {(1 << (b1-1)) | (1 << (b2-1)) | (1 << 31):#x}")
    a("s_mov_b32 s35, 0x6c800000")
    a("s_mov_b64 vcc, 0")
    a("s_cmp_ge_u32 s24, 4")
    if opt.bdelay == 1:
        a("s_cbranch_scc0 L_noq")
        qloads()
        a.lab("L_noq")
    if opt.bdelay == 3:
        a("s_waitcnt vmcnt(5)")
        a("s_barrier")
        a("s_cbranch_scc0 L_noq")
        qloads()
        a.lab("L_noq")
    a("s_waitcnt vmcnt(3) lgkmcnt(0)")
    stamp(2)
    a("s_barrier")
    if opt.bdelay == 2:
        a("s_cbranch_scc1 L_qB")
        a.lab("L_qdone")
    burst = rd_kx(1) + rd_v('O', 0, 0) + rd_k('E', 1) + rd_v('O', 1, 0) + rd_v('E', 0, 1) + rd_v('E', 1, 1) + rd_k('O', 1)
    bump = f"ds_add_rtn_u64 {vr(vK,2)}, v{vSlot}, {vr(vIncK,2)} offset:4096"
    AL['on'] = True
    rd0 = rd_kx(0) + rd_k('E', 0) + rd_k('O', 0) + rd_v('E', 0, 0) + rd_v('E', 1, 0) + burst + [bump]
    for f in rd0[:13]: a(f)
    a("s_waitcnt lgkmcnt(4)" if not smem else "s_waitcnt lgkmcnt(0)")
    for f in rd0[13:]: a(f)
    a("s_setprio 3")
    stamp(3)
    W = T + 10
    wof = {}
    def unpack(src, k):
        w = W + 2 * k; wof[src] = w
        a(f"v_lshlrev_b32 v{w}, 16, v{src}")
        a(f"v_and_b32 v{w+1}, 0xffff0000, v{src}")
        a(f"v_pk_mul_f32 {vr(w,2)}, {vr(w,2)}, s[30:31]")
    def pack(src, d): a(f"v_cvt_pk_bf16_f32 v{d}, v{wof[src]}, v{wof[src]+1}")
    QAE, QBE, QAO, QBO = Qr[('A','E')], Qr[('B','E')], Qr[('A','O')], Qr[('B','O')]
    a("s_waitcnt vmcnt(2)")
    unpack(T + 8, 8)
    pack(T + 8, QX['E']); pack(T + 8, QBO + 3)
    a("s_waitcnt vmcnt(1)")
    a(mf_x('E'))
    for j in range(4): unpack(T + j, j)
    for j in range(4): pack(T + j, QAE + j)
    pack(T, QX['O'] + 1)
    a("s_waitcnt vmcnt(0)")
    stamp(4)
    for j in range(4, 8): unpack(T + j, j)
    for j in range(4): pack(T + 4 + j, QBE + j)
    for j in range(4): a(f"v_permlane32_swap_b32 v{QAE+j}, v{QBE+j}")
    pack(T + 4, QAO + 3)
    a(f"v_mov_b32 v{QAO}, v{QAE+1}")
    a(mf_q('A', 'E'))
    a(f"v_permlane32_swap_b32 v{QAO+3}, v{QBO+3}")
    for j in range(1, 3): a(f"v_mov_b32 v{QAO+j}, v{QAE+j+1}")
    for j in range(0, 3): a(f"v_mov_b32 v{QBO+j}, v{QBE+j+1}")
    a(mf_q('B', 'E'))
    a("s_cbranch_scc1 L_startB")
    a("s_setprio 2")
    a("s_waitcnt lgkmcnt(0)")
    a("s_nop 1")
    cut = opt.cut
    pos0 = int(opt.pos.split(',')[0])
    assert cut > pos0
    a.lab("L_first")
    stamp(5)
    for (i, k_, s_) in phase_list('E', opt):
        if not (i == pos0 and k_ == 'm'): a(s_)
    for (i, k_, s_) in phase_list('O', opt):
        if i < cut: a(s_)
    AL['on'] = False
    pE, pO = phase_list('E', opt), phase_list('O', opt)
    for (i, k_, s_) in pO:
        if i >= cut: a(s_)
    for (i, k_, s_) in pE: a(s_)
    for (i, k_, s_) in pO:
        if i < cut: a(s_)
    a("s_cbranch_scc0 L_topA")
    a("s_branch L_topB")
    if opt.bdelay == 2:
        a.lab("L_qB")
        qloads()
        a("s_branch L_qdone")
    a.lab("L_startB")
    a("s_setprio 1")
    quad()
    a("s_cmp_ge_u32 s24, 4")
    a("s_waitcnt lgkmcnt(0)")
    a("s_branch L_first")
    if opt.kxm: burst = ["s_mov_b32 exec_hi, 0", burst[0], "s_mov_b32 exec_hi, -1"] + burst[1:]
    for role in 'AB':
        a.raw("    .p2align 6")
        a.lab(f"L_top{role}")
        if role == 'A': a("s_setprio 0")
        a("s_add_u32 s29, s29, 1")
        for f in burst: a(f)
        a("s_cmp_lg_u32 s29, 31")
        a(f"s_cbranch_scc1 L_nl{role}")
        a("s_mov_b64 vcc, 1")
        a("s_waitcnt lgkmcnt(8)")
        for f in rd_v('T', 0, 1) + rd_v('T', 1, 1): a(f)
        a.lab(f"L_nl{role}")
        a(f"ds_add_rtn_u64 {vr(vK,2)}, v{vSlot}, {vr(vIncK,2)} offset:4096")
        if opt.stamp == 2:
            a("s_memtime s[80:81]"); a("s_memrealtime s[82:83]")
        a("s_cmp_gt_u32 s29, 4")
        a(f"s_cbranch_scc1 L_nd{role}")
        quad()
        if role == 'A':
            a("s_cmp_lg_u32 s29, 4")
            a("s_cbranch_scc1 L_ndA")
            quad()
        a.lab(f"L_nd{role}")
        a(f"s_cmp_lg_u32 s29, {b2-1}")
        a(f"s_cbranch_scc1 L_nw{role}")
        a("s_waitcnt vmcnt(0)")
        if opt.touch and role == 'A':
            a(f"buffer_load_dword v{vT2}, off, s[20:23], 0")
        a.lab(f"L_nw{role}")
        a(f"s_bitcmp1_b32 {'s33' if role == 'A' else 's32'}, s29")
        a("s_waitcnt lgkmcnt(0)")
        if opt.stamp == 2:
            a("s_mov_b32 s84, m0"); a("s_mov_b32 m0, s29")
            a("v_writelane_b32 v208, s80, m0"); a("v_writelane_b32 v209, s82, m0"); a("s_mov_b32 m0, s84")
        if role == 'B':
            a("s_cbranch_scc0 L_goB")
            a("s_waitcnt vmcnt(4)")
            a("s_barrier")
            a.lab("L_goB")
        first = True
        for (i, k_, s_) in pO:
            if i < cut: continue
            a(s_)
            if first and role == 'A': a("s_setprio 2")
            first = False
        for (i, k_, s_) in pE: a(s_)
        for (i, k_, s_) in pO:
            if i < cut: a(s_)
        if role == 'A':
            a("s_cbranch_scc0 L_topA")
            a("s_cbranch_vccnz L_tail")
            a("s_barrier")
            a("s_branch L_topA")
        else:
            a("s_cbranch_vccz L_topB")
    R = Sr['E']
    PK = {'A': Sr['E'] + 8, 'B': Sr['E'] + 14}
    OB = Sr['E'] + 20
    fl = opt.stfl.replace('_', ' ')
    def finish(t, ds=True):
        E, O = Or[(t, 'E')], Or[(t, 'O')]
        l, rc = (R, R + 2) if t == 'A' else (R + 1, R + 4)
        a(f"v_add_f32 v{l}, v{E+12}, v{O+12}")
        a(f"v_rcp_f32 v{rc}, v{l}")
        a(f"v_permlane32_swap_b32 v{O}, v{O+8}")
        a(f"v_permlane32_swap_b32 v{O+1}, v{O+9}")
        for j in (8, 0, 2, 4, 6):
            a(f"v_pk_add_f32 {vr(E+j,2)}, {vr(E+j,2)}, {vr(O+j+2,2)}")
        for j in (8, 0, 2, 4, 6):
            a(f"v_pk_mul_f32 {vr(E+j,2)}, {vr(E+j,2)}, {vr(rc,2)} op_sel_hi:[1,0]")
        st = vStA if t == 'A' else vStB
        for j in (4, 0, 1, 2, 3):
            a(f"v_cvt_pk_bf16_f32 v{PK[t]+j}, v{E+2*j}, v{E+2*j+1}")
        if not ds: return
        a(f"ds_write_b32 v{st}, v{PK[t]+4} offset:16")
        a(f"ds_write2_b32 v{st}, v{PK[t]}, v{PK[t]+1} offset0:0 offset1:1")
        a(f"ds_write2_b32 v{st}, v{PK[t]+2}, v{PK[t]+3} offset0:2 offset1:3")
        if t == 'A':
            a(f"ds_read_b128 {vr(OB,4)}, v{vStR}")
        else:
            a(f"ds_read_b128 {vr(OB+4,4)}, v{vStR} offset:1024")
            a(f"ds_read_b128 {vr(OB+8,4)}, v{vStR} offset:2048")
    def store(k): a(f"buffer_store_dwordx4 {vr(OB+4*k,4)}, v{vDma}, s[20:23], 0 offen offset:{1024*k} {fl}")
    def dot(t, j): a(f"v_dot2c_f32_bf16 v{R if t == 'A' else R+1}, 0, v{PK[t]+j}")
    a.lab("L_tail")
    tm = {10: mf_pv('A', 'O', 0, 'T'), 18: mf_pv('A', 'O', 1, 'T'), 26: mf_pv('B', 'O', 0, 'T')}
    for i in range(cut, 32):
        if i in tm: a(tm[i])
        if i == 29: finish('A', ds=(opt.tv == 0))
        a(ex('O', i))
    stamp(6)
    if opt.tv == 0:
        a("s_nop 1")
        a(mf_pv('B', 'O', 1, 'T'))
        a("s_nop 9")
        lgkm(0)
        store(0)
        finish('B')
    else:
        a(f"ds_write_b32 v{vStA}, v{PK['A']+4} offset:16")
        a(f"ds_write2_b32 v{vStA}, v{PK['A']}, v{PK['A']+1} offset0:0 offset1:1")
        a(mf_pv('B', 'O', 1, 'T'))
        a(f"ds_write2_b32 v{vStA}, v{PK['A']+2}, v{PK['A']+3} offset0:2 offset1:3")
        a(f"ds_read_b128 {vr(OB,4)}, v{vStR}")
        a("s_nop 9")
        n0 = len(a.l)
        finish('B')
        a.l[n0+opt.tv:n0+opt.tv] = ["    s_waitcnt lgkmcnt(0)", f"    buffer_store_dwordx4 {vr(OB,4)}, v{vDma}, s[20:23], 0 offen {fl}"]
    lgkm(1)
    store(1)
    lgkm(0)
    store(2)
    stamp(7)
    a("s_setprio 0")
    for t in 'AB':
        for j in range(5): dot(t, j)
    a(f"v_cmp_nge_f32 s[36:37], v{R}, 1.0")
    a(f"v_cmp_nle_f32 vcc, v{R}, s35")
    a("s_or_b64 s[36:37], s[36:37], vcc")
    a(f"v_cmp_nge_f32 s[38:39], v{R+1}, 1.0")
    a(f"v_cmp_nle_f32 vcc, v{R+1}, s35")
    a("s_or_b64 s[36:37], s[36:37], s[38:39]")
    a("s_or_b64 s[36:37], s[36:37], vcc")
    a("s_cbranch_scc1 L_check")
    a.lab("L_done")
    if opt.amp:
        a("s_waitcnt vmcnt(0)")
        stamp(8)
        a("s_memrealtime s[42:43]")
        a("s_waitcnt lgkmcnt(0)")
        a(f"s_sub_u32 s50, s{60+2*opt.ampb}, s{60+2*opt.ampa}")
        if opt.ampbase >= 0:
            a(f"s_max_u32 s50, s50, {opt.ampbase}")
            a(f"s_sub_u32 s50, s50, {opt.ampbase}")
            a("s_and_b32 s51, s2, 7")
            a("s_cselect_b32 s50, 0, s50")
        a(f"s_mul_i32 s50, s50, {opt.amp}")
        a("s_min_u32 s50, s50, 20000")
        if opt.ampr:
            a("s_cmp_lt_u32 s24, 4")
            a("s_cselect_b32 s50, s50, 0" if opt.ampr == 'A' else "s_cselect_b32 s50, 0, s50")
        a.lab("L_spin")
        a("s_sleep 2")
        a("s_memrealtime s[52:53]")
        a("s_waitcnt lgkmcnt(0)")
        a("s_sub_u32 s51, s52, s42")
        a("s_cmp_lt_u32 s51, s50")
        a("s_cbranch_scc1 L_spin")
    if opt.stamp:
        a("s_mov_b64 exec, 1")
        a("s_waitcnt vmcnt(0)")
        stamp(8)
        a("s_memrealtime s[58:59]")
        a("s_getreg_b32 s42, hwreg(HW_REG_HW_ID)")
        a("s_getreg_b32 s43, hwreg(HW_REG_XCC_ID)")
        a("s_waitcnt lgkmcnt(0)")
        for i, sr in enumerate((56, 58, 42, 43, 60, 62, 64, 66, 68, 70, 72, 74, 76)):
            a(f"v_mov_b32 v{16+i}, s{sr}")
        a("s_lshl_b32 s50, s2, 3"); a("s_add_u32 s50, s50, s24"); a("s_lshl_b32 s50, s50, 6")
        a("v_mov_b32 v1, s50")
        for i in range(4): a(f"global_store_dwordx4 v1, v[{16+4*i}:{19+4*i}], s[40:41] offset:{16*i}")
        if opt.stamp == 2:
            a("s_mov_b64 exec, -1")
            a("s_lshl_b32 s50, s50, 3"); a("s_add_u32 s50, s50, 0x100000")
            a("v_lshl_add_u32 v1, v0, 3, s50")
            a("global_store_dwordx2 v1, v[208:209], s[40:41]")
    a.lab("L_end")
    a("s_endpgm")
    a.lab("L_check")
    a("s_waitcnt vmcnt(0)")
    mA, mB = 0, vSlot
    if opt.stamp == 2: mA = 187
    def rewind(n):
        a(f"v_subrev_u32 v{vK}, {n*ST}, v{vK}")
        a(f"v_mul_u32_u24 v{vT2}, {n}, v{vIncV}")
        a(f"v_sub_u32 v{vV}, v{vV}, v{vT2}")
        a("s_mov_b32 s29, 0")
    def scores():
        a(f"buffer_load_dwordx2 {vr(KX,2)}, v{vK}, s[16:19], 0 offen offset:32")
        a(f"buffer_load_dwordx4 {vr(Kr['E'],4)}, v{vK}, s[16:19], 0 offen")
        a(f"buffer_load_dwordx4 {vr(Kr['O'],4)}, v{vK}, s[16:19], 0 offen offset:40")
        a("s_waitcnt vmcnt(0) lgkmcnt(0)")
        a(mf_x('E')); a(mf_x('O'))
        a("s_nop 15"); a("s_nop 3")
        for par in 'EO':
            for t in 'AB': a(mf_q(t, par))
        a("s_nop 15")
    def step(lab):
        a(f"v_add_u32 v{vK}, v{vIncK}, v{vK}")
        a(f"v_add_u32 v{vV}, v{vIncV}, v{vV}")
        a("s_add_u32 s29, s29, 1")
        a("s_cmp_lg_u32 s29, 32")
        a(f"s_cbranch_scc1 {lab}")
    rewind(31)
    a(f"v_mov_b32 v{mA}, 0xff800000"); a(f"v_mov_b32 v{mB}, 0xff800000")
    a.lab("L_max")
    scores()
    for par in 'EO':
        for t, m in (('A', mA), ('B', mB)):
            s = Sr[par] + (16 if t == 'B' else 0)
            for j in range(0, 16, 2): a(f"v_max3_f32 v{m}, v{m}, v{s+j}, v{s+j+1}")
    step("L_max")
    for m in (mA, mB):
        a(f"v_mov_b32 v{vT2}, v{m}")
        a("s_nop 1")
        a(f"v_permlane32_swap_b32 v{vT2}, v{m}")
        a("s_nop 1")
        a(f"v_max_f32 v{m}, v{m}, v{vT2}")
    rewind(32)
    for r in range(120, 184): a(f"v_mov_b32 v{r}, 0")
    a.lab("L_acc")
    for par in 'EO':
        for j in range(2):
            for f in rd_v(par, j, 0): a(f)
    scores()
    for par in 'EO':
        for t, m in (('A', mA), ('B', mB)):
            s = Sr[par] + (16 if t == 'B' else 0)
            for j in range(16): a(f"v_sub_f32 v{s+j}, v{s+j}, v{m}")
            for j in range(16): a(f"v_exp_f32 v{s+j}, v{s+j}")
    a("s_nop 1")
    for par in 'EO':
        for t in 'AB':
            for j in range(2): a(mf_pv(t, par, j))
    step("L_acc")
    a("s_nop 15")
    finish('A'); finish('B')
    a("s_waitcnt lgkmcnt(0)")
    for k in range(3): store(k)
    a("s_branch L_done")
    nv = 212 if opt.stamp == 2 else NV
    a.raw(f""".section .rodata,"a"
.p2align 6
.amdhsa_kernel {NAME}_kernel
  .amdhsa_next_free_vgpr {nv}
  .amdhsa_next_free_sgpr {90 if (opt.stamp or opt.amp) else 48}
  .amdhsa_accum_offset {nv}
  .amdhsa_group_segment_fixed_size 0
  .amdhsa_kernarg_size 48
  .amdhsa_user_sgpr_count 2
  .amdhsa_user_sgpr_kernarg_segment_ptr 1
  .amdhsa_system_sgpr_workgroup_id_x 1
.end_amdhsa_kernel""")
    return a.text()

def parse(argv):
    p = argparse.ArgumentParser()
    p.add_argument('-o', default=f"cdna_kernels/{NAME}.s")
    p.add_argument('--grp', default='2,2')
    p.add_argument('--pf', type=int, default=0)
    p.add_argument('--kxm', type=int, default=0)
    p.add_argument('--tv', type=int, default=0)
    p.add_argument('--touch', type=int, default=0)
    p.add_argument('--b05', type=int, default=0)
    p.add_argument('--b1', type=int, default=3)
    p.add_argument('--b2', type=int, default=7)
    p.add_argument('--bdelay', type=int, default=1)
    p.add_argument('--cut', type=int, default=4)
    p.add_argument('--pos', default='2,5,15,18,21,31,25')
    p.add_argument('--tpos', default='2,5,13,18,21,26,29')
    p.add_argument('--stfl', default='sc1')
    p.add_argument('--ldfl', default='')
    p.add_argument('--qfl', default='')
    p.add_argument('--stamp', type=int, default=0)
    p.add_argument('--amp', type=int, default=0)
    p.add_argument('--ampa', type=int, default=0)
    p.add_argument('--ampb', type=int, default=8)
    p.add_argument('--ampr', default='')
    p.add_argument('--ampbase', type=int, default=-1)
    return p.parse_args(argv)

if __name__ == '__main__':
    opt = parse(sys.argv[1:])
    open(opt.o, 'w').write(gen(opt))
```

```python
import sys, struct, math, argparse

NAME = "standalone__fused_io_aware_attn__prompt"
HB = 73728
ST = 2304
VBASE = HB
CBASE = 2 * HB
ABASE = CBASE + 4096
XBASE = ABASE + 4096
LDS = XBASE + 3 * ST + 1024

def f2u(x): return struct.unpack('<I', struct.pack('<f', x))[0]
CSCALE = f2u(math.log2(math.e) / math.sqrt(18.0))

vK, vV = 2, 3
vIncK, vIncV = 4, 5
vSlot, vIdx, vQo, vDma = 1, 6, 7, 14
vT2 = 15
KX = 8
QX = {'E': 10, 'O': 12}
Kr = {'E': 16, 'O': 20}
Qr = {('A', 'E'): 24, ('B', 'E'): 28, ('A', 'O'): 32, ('B', 'O'): 36}
Vr = {('E', 0): 40, ('E', 1): 44, ('O', 0): 48, ('O', 1): 52}
Sr = {'E': 56, 'O': 88}
Or = {('A', 'E'): 120, ('B', 'E'): 136, ('A', 'O'): 152, ('B', 'O'): 168}
vStA, vStB, vStR = 184, 185, 186
Vr[('T', 0)] = 188; Vr[('T', 1)] = 192
KX0, KE0, KO0 = 196, 198, 202
NV = 208
AL = dict(on=False)
def kx(): return KX0 if AL['on'] else KX
def kr(par): return {'E': KE0, 'O': KO0}[par] if AL['on'] else Kr[par]
def vv(par, j): return Vr[('T', j)] if (AL['on'] and par == 'E') else Vr[(par, j)]

def vr(b, n): return f"v[{b}:{b+n-1}]"

class Asm:
    def __init__(self): self.l = []
    def __call__(self, s): self.l.append("    " + s)
    def lab(self, s): self.l.append(s + ":")
    def raw(self, s): self.l.append(s)
    def text(self): return "\n".join(self.l) + "\n"

def mf_x(par):
    return f"v_mfma_f32_32x32x4_2b_bf16 {vr(Sr[par],32)}, {vr(kx(),2)}, {vr(QX[par],2)}, 0 cbsz:1 abid:0"
def mf_q(t, par):
    s = Sr[par] + (16 if t == 'B' else 0)
    return f"v_mfma_f32_32x32x16_bf16 {vr(s,16)}, {vr(kr(par),4)}, {vr(Qr[(t,par)],4)}, {vr(s,16)}"
def mf_pv(t, par, j, vs=None):
    s = Sr[par] + (16 if t == 'B' else 0) + 8 * j
    return f"v_smfmac_f32_32x32x32_bf16 {vr(Or[(t,par)],16)}, {vr(vv(vs or par,j),4)}, {vr(s,8)}, v{vIdx}"
def ex(par, i): return f"v_exp_f32 v{Sr[par]+i}, v{Sr[par]+i}"
def rd_kx(u): return [f"ds_read_b64 {vr(kx(),2)}, v{vK} offset:{u*ST+32}"]
def rd_k(par, u):
    o = u * ST + (40 if par == 'O' else 0)
    return [f"ds_read_b64 {vr(kr(par),2)}, v{vK} offset:{o}", f"ds_read_b64 {vr(kr(par)+2,2)}, v{vK} offset:{o+8}"]
def rd_v(par, j, u):
    o = u * ST + (32 if par != 'E' else 0) + 16 * j * 72
    return [f"ds_read_b64_tr_b16 {vr(vv(par,j),2)}, v{vV} offset:{o}", f"ds_read_b64_tr_b16 {vr(vv(par,j)+2,2)}, v{vV} offset:{o+4*72}"]

def phase_list(par, opt, look=True):
    oth = 'O' if par == 'E' else 'E'
    pos = [int(x) for x in (opt.pos if look else opt.tpos).split(',')]
    mf = {pos[0]: mf_pv('B', oth, 1), pos[2]: mf_pv('A', par, 0), pos[3]: mf_pv('A', par, 1), pos[5]: mf_pv('B', par, 0)}
    if look:
        mf.update({pos[1]: mf_x(oth), pos[4]: mf_q('A', oth), pos[6]: mf_q('B', oth)})
    out = []
    for i in range(32):
        if i in mf: out.append((i, 'm', mf[i]))
        out.append((i, 'e', ex(par, i)))
    return out

def gen(opt):
    a = Asm()
    def stamp(i):
        if opt.stamp and (opt.stamp != 3 or i in (0, 7, 8)): a(f"s_memtime s[{60+2*i}:{61+2*i}]")
        if opt.amp and i in (opt.ampa, opt.ampb): a(f"{'s_memtime' if opt.ampbase >= 0 else 's_memrealtime'} s[{60+2*i}:{61+2*i}]")
    smem = opt.stamp in (1, 2) or (opt.amp and not (opt.ampa in (0, 7) and opt.ampb in (7, 8)))
    def lgkm(n): a(f"s_waitcnt lgkmcnt({0 if smem else n})")
    a.raw(f"""; Fused attention forward, B=2 H=32 S=2048 D=18, bf16 in/out (written by my generator gen/gen6.py).
; @launch grid=(256,1,1) block=(512,1,1) lds={LDS}
.amdgcn_target "amdgcn-amd-amdhsa--gfx950"
.text
.globl {NAME}_kernel
.p2align 8
.type {NAME}_kernel,@function
{NAME}_kernel:""")
    a("s_load_dwordx4 s[4:7], s[0:1], 0")
    a("s_load_dwordx4 s[8:11], s[0:1], 16")
    if opt.stamp:
        a("s_load_dwordx2 s[40:41], s[0:1], 40")
        if opt.stamp == 3:
            for i in range(62, 74): a(f"s_mov_b32 s{i}, 0")
        a("s_memrealtime s[56:57]")
    stamp(0)
    a("s_cmp_ge_u32 s2, 256")
    a("s_cbranch_scc1 L_end")
    t0, t1 = Sr['E'] + 8, Sr['E'] + 9
    a(f"v_lshrrev_b32 v{t0}, 6, v0")
    a(f"v_lshlrev_b32 v{vSlot}, 3, v0")
    a(f"v_readfirstlane_b32 s24, v{t0}")
    a("v_and_b32 v0, 63, v0")
    if opt.pf:
        a("s_getpc_b64 s[36:37]")
        a(f"v_lshlrev_b32 v{vT2}, 6, v0")
        a("s_cmp_lg_u32 s24, 7")
        a("s_cbranch_scc1 L_nopf")
        a(f"global_load_dword v{vT2}, v{vT2}, s[36:37]")
        a.lab("L_nopf")
    a("s_and_b32 s25, s2, 7")
    a("s_lshr_b32 s26, s2, 5")
    a("s_lshl3_add_u32 s25, s25, s26")
    a(f"s_mul_i32 s25, s25, {HB}")
    a("s_bfe_u32 s26, s2, 0x20003")
    a("s_lshl3_add_u32 s26, s26, s24")
    a(f"s_mul_i32 s26, s26, {ST}")
    a("s_add_u32 s26, s26, s25")
    a(f"v_lshlrev_b32 v{vDma}, 4, v0")
    a("s_lshl_b32 s27, s24, 11")
    a("s_mov_b32 m0, s27")
    a(f"s_mov_b32 s18, {HB}")
    a("s_mov_b32 s19, 0x00020000")
    a(f"s_mov_b32 s46, {HB}")
    a("s_mov_b32 s47, 0x00020000")
    a(f"s_movk_i32 s14, {ST}")
    a("s_mov_b32 s15, 0x00020000")
    a(f"v_mul_u32_u24 v{vQo}, 36, v0")
    a("s_cmp_ge_u32 s24, 4")
    a("s_cselect_b64 vcc, 1, 0")
    a("s_waitcnt lgkmcnt(0)")
    stamp(1)
    ldf = opt.ldfl.replace('_', ' ')
    def quad():
        a(f"buffer_load_dwordx4 v{vDma}, s[16:19], s27 offen lds {ldf}")
        a(f"buffer_load_dwordx4 v{vDma}, s[16:19], s27 offen offset:1024 lds {ldf}")
        a("s_add_u32 m0, s27, s18")
        a("s_nop 0")
        a(f"buffer_load_dwordx4 v{vDma}, s[44:47], s27 offen lds {ldf}")
        a(f"buffer_load_dwordx4 v{vDma}, s[44:47], s27 offen offset:1024 lds {ldf}")
        a("s_add_u32 m0, s27, 16384")
        a("s_add_u32 s27, s27, 16384")
    T = Sr['O']
    qf = opt.qfl.replace('_', ' ')
    def qloads():
        a(f"buffer_load_dword v{T+8}, v{vQo}, s[12:15], 0 offen offset:32 {qf}")
        a(f"buffer_load_dwordx4 {vr(T,4)}, v{vQo}, s[12:15], 0 offen {qf}")
        a(f"buffer_load_dwordx4 {vr(T+4,4)}, v{vQo}, s[12:15], 0 offen offset:16 {qf}")
    a("s_add_u32 s16, s6, s25")
    a("s_addc_u32 s17, s7, 0")
    a("s_add_u32 s44, s8, s25")
    a("s_addc_u32 s45, s9, 0")
    a("s_add_u32 s12, s4, s26")
    a("s_addc_u32 s13, s5, 0")
    if opt.probe:
        srd = {'q': 's[12:15]', 'k': 's[16:19]', 'v': 's[44:47]'}[opt.probe]
        a("s_mov_b64 exec, 1")
        a(f"buffer_load_dword v{vT2}, off, {srd}, {'0' if opt.probe == 'q' else 's27'}")
        a("s_waitcnt vmcnt(0)")
        a("s_mov_b64 exec, -1")
        stamp(9)
        a("s_waitcnt lgkmcnt(0)")
        a("s_barrier")
    a("s_cbranch_vccnz L_setup")
    quad()
    if opt.bdelay: qloads()
    a.lab("L_setup")
    if not opt.bdelay: qloads()
    a(f"v_and_b32 v{t0}, 31, v0")
    a(f"v_lshrrev_b32 v{t1}, 5, v0")
    a("s_add_u32 s20, s10, s26")
    a("s_addc_u32 s21, s11, 0")
    a(f"s_movk_i32 s22, {ST}")
    a("s_mov_b32 s23, 0x00020000")
    C = Sr['E']
    a(f"v_and_b32 v{C}, 1, v0")
    a(f"v_subrev_u32 v{C}, 1, v{C}")
    a(f"v_and_b32 v{C}, 0x3f80, v{C}")
    a(f"v_mov_b32 v{C+1}, 0")
    a(f"v_add_u32 v{vSlot}, {CBASE}, v{vSlot}")
    a(f"ds_write_b64 v{vSlot}, {vr(C,2)}")
    a(f"v_mov_b32 v{QX['E']}, 0"); a(f"v_mov_b32 v{QX['E']+1}, 0"); a(f"v_mov_b32 v{QX['O']}, 0")
    a(f"v_mul_u32_u24 v{vK}, 72, v{t0}")
    a(f"v_lshl_add_u32 v{vK}, v{t1}, 4, v{vK}")
    a(f"v_mfma_f32_32x32x4_2b_bf16 {vr(120,32)}, {vr(QX['E'],2)}, {vr(QX['E'],2)}, 0")
    a(f"v_mfma_f32_32x32x4_2b_bf16 {vr(152,32)}, {vr(QX['E'],2)}, {vr(QX['E'],2)}, 0")
    t3, t4, t5 = C + 4, C + 5, C + 6
    a(f"v_bfe_u32 v{t3}, v0, 2, 2")
    a(f"v_lshl_add_u32 v{t3}, v{t1}, 3, v{t3}")
    a(f"v_mul_u32_u24 v{t3}, 72, v{t3}")
    a(f"v_and_b32 v{t4}, 1, v0")
    a(f"v_lshl_add_u32 v{t3}, v{t4}, 4, v{t3}")
    a(f"v_and_b32 v{t4}, 2, v0")
    a(f"v_lshl_add_u32 v{t3}, v{t4}, 2, v{t3}")
    a(f"v_lshlrev_b32 v{t5}, 6, v{t1}")
    a(f"v_lshlrev_b32 v{t4}, 2, v{t4}")
    a(f"v_sub_u32 v{t5}, v{t5}, v{t4}")
    a(f"v_add_u32 v{t5}, {CBASE+56}, v{t5}")
    a(f"v_and_b32 v{t4}, 16, v0")
    a(f"v_add3_u32 v{t3}, v{t4}, v{t3}, s18")
    a("s_mov_b32 vcc_lo, 0xdddd0000"); a("s_mov_b32 vcc_hi, 0xdddd0000")
    a(f"v_mov_b32 v{vIdx}, 0xdddd")
    a(f"v_mov_b32 v{vIncK}, {ST}")
    a(f"v_cndmask_b32 v{vIncV}, v{vIncK}, 0, vcc")
    a(f"v_cndmask_b32 v{vV}, v{t3}, v{t5}, vcc")
    a(f"v_add_u32 v{C+2}, v{vK}, v{vIncK}")
    a(f"v_add_u32 v{C+3}, v{vV}, v{vIncV}")
    a(f"ds_write_b64 v{vSlot}, {vr(C+2,2)} offset:4096")
    a(f"s_mul_i32 s28, s24, {ST}")
    a("s_cmp_ge_u32 s24, 5")
    a(f"s_cselect_b32 s29, {XBASE - 5*ST}, 0")
    a("s_add_u32 s28, s28, s29")
    a(f"v_mul_u32_u24 v{vStA}, 36, v{t0}")
    a(f"v_lshl_add_u32 v{vStA}, v{t1}, 4, v{vStA}")
    a(f"v_add_u32 v{vStA}, s28, v{vStA}")
    a(f"v_add_u32 v{vStB}, 1152, v{vStA}")
    a(f"v_add_u32 v{vStR}, s28, v{vDma}")
    a(f"s_mov_b32 s30, {CSCALE:#x}"); a(f"s_mov_b32 s31, {CSCALE:#x}")
    a("s_mov_b32 s29, 1")
    b1, b2 = opt.b1, opt.b2
    assert b1 == 3 and 6 <= b2 <= 7
    a(f"s_mov_b32 s32, {(1 << (b1-1)) | (1 << (b2-1)):#x}")
    a(f"s_mov_b32 s33, {(1 << (b1-1)) | (1 << (b2-1)) | (1 << 31):#x}")
    a("s_mov_b32 s35, 0x6c800000")
    a("s_mov_b64 vcc, 0")
    a("s_cmp_ge_u32 s24, 4")
    if opt.bdelay == 1:
        a("s_cbranch_scc0 L_noq")
        qloads()
        a.lab("L_noq")
    if opt.bdelay == 3:
        a("s_waitcnt vmcnt(5)")
        a("s_barrier")
        a("s_cbranch_scc0 L_noq")
        qloads()
        a.lab("L_noq")
    a("s_waitcnt vmcnt(3) lgkmcnt(0)")
    stamp(2)
    a("s_barrier")
    if opt.bdelay == 2:
        a("s_cbranch_scc1 L_qB")
        a.lab("L_qdone")
    burst = rd_kx(1) + rd_v('O', 0, 0) + rd_k('E', 1) + rd_v('O', 1, 0) + rd_v('E', 0, 1) + rd_v('E', 1, 1) + rd_k('O', 1)
    bump = f"ds_add_rtn_u64 {vr(vK,2)}, v{vSlot}, {vr(vIncK,2)} offset:4096"
    AL['on'] = True
    rd0 = rd_kx(0) + rd_k('E', 0) + rd_k('O', 0) + rd_v('E', 0, 0) + rd_v('E', 1, 0) + burst + [bump]
    for f in rd0[:13]: a(f)
    a("s_waitcnt lgkmcnt(4)" if not smem else "s_waitcnt lgkmcnt(0)")
    for f in rd0[13:]: a(f)
    a("s_setprio 3")
    stamp(3)
    W = T + 10
    wof = {}
    def unpack(src, k):
        w = W + 2 * k; wof[src] = w
        a(f"v_lshlrev_b32 v{w}, 16, v{src}")
        a(f"v_and_b32 v{w+1}, 0xffff0000, v{src}")
        a(f"v_pk_mul_f32 {vr(w,2)}, {vr(w,2)}, s[30:31]")
    def pack(src, d): a(f"v_cvt_pk_bf16_f32 v{d}, v{wof[src]}, v{wof[src]+1}")
    QAE, QBE, QAO, QBO = Qr[('A','E')], Qr[('B','E')], Qr[('A','O')], Qr[('B','O')]
    a("s_waitcnt vmcnt(2)")
    unpack(T + 8, 8)
    pack(T + 8, QX['E']); pack(T + 8, QBO + 3)
    a("s_waitcnt vmcnt(1)")
    a(mf_x('E'))
    for j in range(4): unpack(T + j, j)
    for j in range(4): pack(T + j, QAE + j)
    pack(T, QX['O'] + 1)
    a("s_waitcnt vmcnt(0)")
    stamp(4)
    for j in range(4, 8): unpack(T + j, j)
    for j in range(4): pack(T + 4 + j, QBE + j)
    for j in range(4): a(f"v_permlane32_swap_b32 v{QAE+j}, v{QBE+j}")
    pack(T + 4, QAO + 3)
    a(f"v_mov_b32 v{QAO}, v{QAE+1}")
    a(mf_q('A', 'E'))
    a(f"v_permlane32_swap_b32 v{QAO+3}, v{QBO+3}")
    for j in range(1, 3): a(f"v_mov_b32 v{QAO+j}, v{QAE+j+1}")
    for j in range(0, 3): a(f"v_mov_b32 v{QBO+j}, v{QBE+j+1}")
    a(mf_q('B', 'E'))
    a("s_cbranch_scc1 L_startB")
    a("s_setprio 2")
    a("s_waitcnt lgkmcnt(0)")
    a("s_nop 1")
    cut = opt.cut
    pos0 = int(opt.pos.split(',')[0])
    assert cut > pos0
    a.lab("L_first")
    stamp(5)
    for (i, k_, s_) in phase_list('E', opt):
        if not (i == pos0 and k_ == 'm'): a(s_)
    for (i, k_, s_) in phase_list('O', opt):
        if i < cut: a(s_)
    AL['on'] = False
    pE, pO = phase_list('E', opt), phase_list('O', opt)
    for (i, k_, s_) in pO:
        if i >= cut: a(s_)
    for (i, k_, s_) in pE: a(s_)
    for (i, k_, s_) in pO:
        if i < cut: a(s_)
    a("s_cbranch_scc0 L_topA")
    a("s_branch L_topB")
    if opt.bdelay == 2:
        a.lab("L_qB")
        qloads()
        a("s_branch L_qdone")
    a.lab("L_startB")
    a("s_setprio 1")
    quad()
    a("s_cmp_ge_u32 s24, 4")
    a("s_waitcnt lgkmcnt(0)")
    a("s_branch L_first")
    if opt.kxm: burst = ["s_mov_b32 exec_hi, 0", burst[0], "s_mov_b32 exec_hi, -1"] + burst[1:]
    for role in 'AB':
        a.raw("    .p2align 6")
        a.lab(f"L_top{role}")
        if role == 'A': a("s_setprio 0")
        a("s_add_u32 s29, s29, 1")
        for f in burst: a(f)
        a("s_cmp_lg_u32 s29, 31")
        a(f"s_cbranch_scc1 L_nl{role}")
        a("s_mov_b64 vcc, 1")
        a("s_waitcnt lgkmcnt(8)")
        for f in rd_v('T', 0, 1) + rd_v('T', 1, 1): a(f)
        a.lab(f"L_nl{role}")
        a(f"ds_add_rtn_u64 {vr(vK,2)}, v{vSlot}, {vr(vIncK,2)} offset:4096")
        if opt.stamp == 2:
            a("s_memtime s[80:81]"); a("s_memrealtime s[82:83]")
        a("s_cmp_gt_u32 s29, 4")
        a(f"s_cbranch_scc1 L_nd{role}")
        quad()
        if role == 'A':
            a("s_cmp_lg_u32 s29, 4")
            a("s_cbranch_scc1 L_ndA")
            quad()
        a.lab(f"L_nd{role}")
        a(f"s_cmp_lg_u32 s29, {b2-1}")
        a(f"s_cbranch_scc1 L_nw{role}")
        a("s_waitcnt vmcnt(0)")
        if opt.touch and role == 'A':
            a(f"buffer_load_dword v{vT2}, off, s[20:23], 0")
        a.lab(f"L_nw{role}")
        a(f"s_bitcmp1_b32 {'s33' if role == 'A' else 's32'}, s29")
        a("s_waitcnt lgkmcnt(0)")
        if opt.stamp == 2:
            a("s_mov_b32 s84, m0"); a("s_mov_b32 m0, s29")
            a("v_writelane_b32 v208, s80, m0"); a("v_writelane_b32 v209, s82, m0"); a("s_mov_b32 m0, s84")
        if role == 'B':
            a("s_cbranch_scc0 L_goB")
            a("s_waitcnt vmcnt(4)")
            a("s_barrier")
            a.lab("L_goB")
        first = True
        for (i, k_, s_) in pO:
            if i < cut: continue
            a(s_)
            if first and role == 'A': a("s_setprio 2")
            first = False
        for (i, k_, s_) in pE: a(s_)
        for (i, k_, s_) in pO:
            if i < cut: a(s_)
        if role == 'A':
            a("s_cbranch_scc0 L_topA")
            a("s_cbranch_vccnz L_tail")
            a("s_barrier")
            a("s_branch L_topA")
        else:
            a("s_cbranch_vccz L_topB")
    R = Sr['E']
    PK = {'A': Sr['E'] + 8, 'B': Sr['E'] + 14}
    OB = Sr['E'] + 20
    fl = opt.stfl.replace('_', ' ')
    def finish(t, ds=True):
        E, O = Or[(t, 'E')], Or[(t, 'O')]
        l, rc = (R, R + 2) if t == 'A' else (R + 1, R + 4)
        a(f"v_add_f32 v{l}, v{E+12}, v{O+12}")
        a(f"v_rcp_f32 v{rc}, v{l}")
        a(f"v_permlane32_swap_b32 v{O}, v{O+8}")
        a(f"v_permlane32_swap_b32 v{O+1}, v{O+9}")
        for j in (8, 0, 2, 4, 6):
            a(f"v_pk_add_f32 {vr(E+j,2)}, {vr(E+j,2)}, {vr(O+j+2,2)}")
        for j in (8, 0, 2, 4, 6):
            a(f"v_pk_mul_f32 {vr(E+j,2)}, {vr(E+j,2)}, {vr(rc,2)} op_sel_hi:[1,0]")
        st = vStA if t == 'A' else vStB
        for j in (4, 0, 1, 2, 3):
            a(f"v_cvt_pk_bf16_f32 v{PK[t]+j}, v{E+2*j}, v{E+2*j+1}")
        if not ds: return
        a(f"ds_write_b32 v{st}, v{PK[t]+4} offset:16")
        a(f"ds_write2_b32 v{st}, v{PK[t]}, v{PK[t]+1} offset0:0 offset1:1")
        a(f"ds_write2_b32 v{st}, v{PK[t]+2}, v{PK[t]+3} offset0:2 offset1:3")
        if t == 'A':
            a(f"ds_read_b128 {vr(OB,4)}, v{vStR}")
        else:
            a(f"ds_read_b128 {vr(OB+4,4)}, v{vStR} offset:1024")
            a(f"ds_read_b128 {vr(OB+8,4)}, v{vStR} offset:2048")
    def store(k): a(f"buffer_store_dwordx4 {vr(OB+4*k,4)}, v{vDma}, s[20:23], 0 offen offset:{1024*k} {fl}")
    def dot(t, j): a(f"v_dot2c_f32_bf16 v{R if t == 'A' else R+1}, 0, v{PK[t]+j}")
    a.lab("L_tail")
    tm = {10: mf_pv('A', 'O', 0, 'T'), 18: mf_pv('A', 'O', 1, 'T'), 26: mf_pv('B', 'O', 0, 'T')}
    for i in range(cut, 32):
        if i in tm: a(tm[i])
        if i == 29: finish('A', ds=(opt.tv == 0))
        a(ex('O', i))
    stamp(6)
    if opt.tv == 0:
        a("s_nop 1")
        a(mf_pv('B', 'O', 1, 'T'))
        a("s_nop 9")
        lgkm(0)
        store(0)
        finish('B')
    else:
        a(f"ds_write_b32 v{vStA}, v{PK['A']+4} offset:16")
        a(f"ds_write2_b32 v{vStA}, v{PK['A']}, v{PK['A']+1} offset0:0 offset1:1")
        a(mf_pv('B', 'O', 1, 'T'))
        a(f"ds_write2_b32 v{vStA}, v{PK['A']+2}, v{PK['A']+3} offset0:2 offset1:3")
        a(f"ds_read_b128 {vr(OB,4)}, v{vStR}")
        a("s_nop 9")
        n0 = len(a.l)
        finish('B')
        a.l[n0+opt.tv:n0+opt.tv] = ["    s_waitcnt lgkmcnt(0)", f"    buffer_store_dwordx4 {vr(OB,4)}, v{vDma}, s[20:23], 0 offen {fl}"]
    lgkm(1)
    store(1)
    lgkm(0)
    store(2)
    stamp(7)
    a("s_setprio 0")
    for t in 'AB':
        for j in range(5): dot(t, j)
    a(f"v_cmp_nge_f32 s[36:37], v{R}, 1.0")
    a(f"v_cmp_nle_f32 vcc, v{R}, s35")
    a("s_or_b64 s[36:37], s[36:37], vcc")
    a(f"v_cmp_nge_f32 s[38:39], v{R+1}, 1.0")
    a(f"v_cmp_nle_f32 vcc, v{R+1}, s35")
    a("s_or_b64 s[36:37], s[36:37], s[38:39]")
    a("s_or_b64 s[36:37], s[36:37], vcc")
    a("s_cbranch_scc1 L_check")
    a.lab("L_done")
    if opt.amp:
        a("s_waitcnt vmcnt(0)")
        stamp(8)
        a("s_memrealtime s[42:43]")
        a("s_waitcnt lgkmcnt(0)")
        a(f"s_sub_u32 s50, s{60+2*opt.ampb}, s{60+2*opt.ampa}")
        if opt.ampbase >= 0:
            a(f"s_max_u32 s50, s50, {opt.ampbase}")
            a(f"s_sub_u32 s50, s50, {opt.ampbase}")
            if opt.ampwg >= 0: a(f"s_cmp_lg_u32 s2, {opt.ampwg}")
            else: a("s_and_b32 s51, s2, 7")
            a("s_cselect_b32 s50, 0, s50")
        a(f"s_mul_i32 s50, s50, {opt.amp}")
        a("s_min_u32 s50, s50, 20000")
        if opt.ampr:
            a("s_cmp_lt_u32 s24, 4")
            a("s_cselect_b32 s50, s50, 0" if opt.ampr == 'A' else "s_cselect_b32 s50, 0, s50")
        a.lab("L_spin")
        a("s_sleep 2")
        a("s_memrealtime s[52:53]")
        a("s_waitcnt lgkmcnt(0)")
        a("s_sub_u32 s51, s52, s42")
        a("s_cmp_lt_u32 s51, s50")
        a("s_cbranch_scc1 L_spin")
    if opt.stamp:
        a("s_mov_b64 exec, 1")
        a("s_waitcnt vmcnt(0)")
        stamp(8)
        a("s_memrealtime s[58:59]")
        a("s_getreg_b32 s42, hwreg(HW_REG_HW_ID)")
        a("s_getreg_b32 s43, hwreg(HW_REG_XCC_ID)")
        a("s_waitcnt lgkmcnt(0)")
        for i, sr in enumerate((56, 58, 42, 43, 60, 62, 64, 66, 68, 70, 72, 74, 76)):
            a(f"v_mov_b32 v{16+i}, s{sr}")
        a("s_lshl_b32 s50, s2, 3"); a("s_add_u32 s50, s50, s24"); a("s_lshl_b32 s50, s50, 6")
        a("v_mov_b32 v1, s50")
        for i in range(4): a(f"global_store_dwordx4 v1, v[{16+4*i}:{19+4*i}], s[40:41] offset:{16*i}")
        if opt.stamp == 2:
            a("s_mov_b64 exec, -1")
            a("s_lshl_b32 s50, s50, 3"); a("s_add_u32 s50, s50, 0x100000")
            a("v_lshl_add_u32 v1, v0, 3, s50")
            a("global_store_dwordx2 v1, v[208:209], s[40:41]")
    a.lab("L_end")
    a("s_endpgm")
    a.lab("L_check")
    a("s_waitcnt vmcnt(0)")
    mA, mB = 0, vSlot
    if opt.stamp == 2: mA = 187
    def rewind(n):
        a(f"v_subrev_u32 v{vK}, {n*ST}, v{vK}")
        a(f"v_mul_u32_u24 v{vT2}, {n}, v{vIncV}")
        a(f"v_sub_u32 v{vV}, v{vV}, v{vT2}")
        a("s_mov_b32 s29, 0")
    def scores():
        a(f"buffer_load_dwordx2 {vr(KX,2)}, v{vK}, s[16:19], 0 offen offset:32")
        a(f"buffer_load_dwordx4 {vr(Kr['E'],4)}, v{vK}, s[16:19], 0 offen")
        a(f"buffer_load_dwordx4 {vr(Kr['O'],4)}, v{vK}, s[16:19], 0 offen offset:40")
        a("s_waitcnt vmcnt(0) lgkmcnt(0)")
        a(mf_x('E')); a(mf_x('O'))
        a("s_nop 15"); a("s_nop 3")
        for par in 'EO':
            for t in 'AB': a(mf_q(t, par))
        a("s_nop 15")
    def step(lab):
        a(f"v_add_u32 v{vK}, v{vIncK}, v{vK}")
        a(f"v_add_u32 v{vV}, v{vIncV}, v{vV}")
        a("s_add_u32 s29, s29, 1")
        a("s_cmp_lg_u32 s29, 32")
        a(f"s_cbranch_scc1 {lab}")
    rewind(31)
    a(f"v_mov_b32 v{mA}, 0xff800000"); a(f"v_mov_b32 v{mB}, 0xff800000")
    a.lab("L_max")
    scores()
    for par in 'EO':
        for t, m in (('A', mA), ('B', mB)):
            s = Sr[par] + (16 if t == 'B' else 0)
            for j in range(0, 16, 2): a(f"v_max3_f32 v{m}, v{m}, v{s+j}, v{s+j+1}")
    step("L_max")
    for m in (mA, mB):
        a(f"v_mov_b32 v{vT2}, v{m}")
        a("s_nop 1")
        a(f"v_permlane32_swap_b32 v{vT2}, v{m}")
        a("s_nop 1")
        a(f"v_max_f32 v{m}, v{m}, v{vT2}")
    rewind(32)
    for r in range(120, 184): a(f"v_mov_b32 v{r}, 0")
    a.lab("L_acc")
    for par in 'EO':
        for j in range(2):
            for f in rd_v(par, j, 0): a(f)
    scores()
    for par in 'EO':
        for t, m in (('A', mA), ('B', mB)):
            s = Sr[par] + (16 if t == 'B' else 0)
            for j in range(16): a(f"v_sub_f32 v{s+j}, v{s+j}, v{m}")
            for j in range(16): a(f"v_exp_f32 v{s+j}, v{s+j}")
    a("s_nop 1")
    for par in 'EO':
        for t in 'AB':
            for j in range(2): a(mf_pv(t, par, j))
    step("L_acc")
    a("s_nop 15")
    finish('A'); finish('B')
    a("s_waitcnt lgkmcnt(0)")
    for k in range(3): store(k)
    a("s_branch L_done")
    nv = 212 if opt.stamp == 2 else NV
    a.raw(f""".section .rodata,"a"
.p2align 6
.amdhsa_kernel {NAME}_kernel
  .amdhsa_next_free_vgpr {nv}
  .amdhsa_next_free_sgpr {90 if (opt.stamp or opt.amp) else 48}
  .amdhsa_accum_offset {nv}
  .amdhsa_group_segment_fixed_size 0
  .amdhsa_kernarg_size 48
  .amdhsa_user_sgpr_count 2
  .amdhsa_user_sgpr_kernarg_segment_ptr 1
  .amdhsa_system_sgpr_workgroup_id_x 1
.end_amdhsa_kernel""")
    return a.text()

def parse(argv):
    p = argparse.ArgumentParser()
    p.add_argument('-o', default=f"cdna_kernels/{NAME}.s")
    p.add_argument('--grp', default='2,2')
    p.add_argument('--pf', type=int, default=0)
    p.add_argument('--kxm', type=int, default=0)
    p.add_argument('--probe', default='')
    p.add_argument('--ampwg', type=int, default=-1)
    p.add_argument('--tv', type=int, default=0)
    p.add_argument('--touch', type=int, default=0)
    p.add_argument('--b05', type=int, default=0)
    p.add_argument('--b1', type=int, default=3)
    p.add_argument('--b2', type=int, default=7)
    p.add_argument('--bdelay', type=int, default=1)
    p.add_argument('--cut', type=int, default=4)
    p.add_argument('--pos', default='2,5,15,18,21,31,25')
    p.add_argument('--tpos', default='2,5,13,18,21,26,29')
    p.add_argument('--stfl', default='sc1')
    p.add_argument('--ldfl', default='')
    p.add_argument('--qfl', default='')
    p.add_argument('--stamp', type=int, default=0)
    p.add_argument('--amp', type=int, default=0)
    p.add_argument('--ampa', type=int, default=0)
    p.add_argument('--ampb', type=int, default=8)
    p.add_argument('--ampr', default='')
    p.add_argument('--ampbase', type=int, default=-1)
    return p.parse_args(argv)

if __name__ == '__main__':
    opt = parse(sys.argv[1:])
    open(opt.o, 'w').write(gen(opt))
```

```python
import sys, struct, math, argparse

NAME = "standalone__fused_io_aware_attn__prompt"
HB = 73728
ST = 2304
VBASE = HB
CBASE = 2 * HB
ABASE = CBASE + 4096
XBASE = ABASE + 4096
LDS = XBASE + 3 * ST + 1024

def f2u(x): return struct.unpack('<I', struct.pack('<f', x))[0]
CSCALE = f2u(math.log2(math.e) / math.sqrt(18.0))

vK, vV = 2, 3
vIncK, vIncV = 4, 5
vSlot, vIdx, vQo, vDma = 1, 6, 7, 14
vT2 = 15
KX = 8
QX = {'E': 10, 'O': 12}
Kr = {'E': 16, 'O': 20}
Qr = {('A', 'E'): 24, ('B', 'E'): 28, ('A', 'O'): 32, ('B', 'O'): 36}
Vr = {('E', 0): 40, ('E', 1): 44, ('O', 0): 48, ('O', 1): 52}
Sr = {'E': 56, 'O': 88}
Or = {('A', 'E'): 120, ('B', 'E'): 136, ('A', 'O'): 152, ('B', 'O'): 168}
vStA, vStB, vStR = 184, 185, 186
Vr[('T', 0)] = 188; Vr[('T', 1)] = 192
KX0, KE0, KO0 = 196, 198, 202
NV = 208
AL = dict(on=False)
def kx(): return KX0 if AL['on'] else KX
def kr(par): return {'E': KE0, 'O': KO0}[par] if AL['on'] else Kr[par]
def vv(par, j): return Vr[('T', j)] if (AL['on'] and par == 'E') else Vr[(par, j)]

def vr(b, n): return f"v[{b}:{b+n-1}]"

class Asm:
    def __init__(self): self.l = []
    def __call__(self, s): self.l.append("    " + s)
    def lab(self, s): self.l.append(s + ":")
    def raw(self, s): self.l.append(s)
    def text(self): return "\n".join(self.l) + "\n"

def mf_x(par):
    return f"v_mfma_f32_32x32x4_2b_bf16 {vr(Sr[par],32)}, {vr(kx(),2)}, {vr(QX[par],2)}, 0 cbsz:1 abid:0"
def mf_q(t, par):
    s = Sr[par] + (16 if t == 'B' else 0)
    return f"v_mfma_f32_32x32x16_bf16 {vr(s,16)}, {vr(kr(par),4)}, {vr(Qr[(t,par)],4)}, {vr(s,16)}"
def mf_pv(t, par, j, vs=None):
    s = Sr[par] + (16 if t == 'B' else 0) + 8 * j
    return f"v_smfmac_f32_32x32x32_bf16 {vr(Or[(t,par)],16)}, {vr(vv(vs or par,j),4)}, {vr(s,8)}, v{vIdx}"
def ex(par, i): return f"v_exp_f32 v{Sr[par]+i}, v{Sr[par]+i}"
def rd_kx(u): return [f"ds_read_b64 {vr(kx(),2)}, v{vK} offset:{u*ST+32}"]
def rd_k(par, u):
    o = u * ST + (40 if par == 'O' else 0)
    return [f"ds_read_b64 {vr(kr(par),2)}, v{vK} offset:{o}", f"ds_read_b64 {vr(kr(par)+2,2)}, v{vK} offset:{o+8}"]
def rd_v(par, j, u):
    o = u * ST + (32 if par != 'E' else 0) + 16 * j * 72
    return [f"ds_read_b64_tr_b16 {vr(vv(par,j),2)}, v{vV} offset:{o}", f"ds_read_b64_tr_b16 {vr(vv(par,j)+2,2)}, v{vV} offset:{o+4*72}"]

def phase_list(par, opt, look=True):
    oth = 'O' if par == 'E' else 'E'
    pos = [int(x) for x in (opt.pos if look else opt.tpos).split(',')]
    mf = {pos[0]: mf_pv('B', oth, 1), pos[2]: mf_pv('A', par, 0), pos[3]: mf_pv('A', par, 1), pos[5]: mf_pv('B', par, 0)}
    if look:
        mf.update({pos[1]: mf_x(oth), pos[4]: mf_q('A', oth), pos[6]: mf_q('B', oth)})
    out = []
    for i in range(32):
        if i in mf: out.append((i, 'm', mf[i]))
        out.append((i, 'e', ex(par, i)))
    return out

def gen(opt):
    a = Asm()
    def stamp(i):
        if opt.stamp and (opt.stamp != 3 or i in (0, 7, 8)): a(f"s_memtime s[{60+2*i}:{61+2*i}]")
        if opt.amp and i in (opt.ampa, opt.ampb): a(f"{'s_memtime' if opt.ampbase >= 0 else 's_memrealtime'} s[{60+2*i}:{61+2*i}]")
    smem = opt.stamp in (1, 2) or (opt.amp and not (opt.ampa in (0, 7) and opt.ampb in (7, 8)))
    def lgkm(n): a(f"s_waitcnt lgkmcnt({0 if smem else n})")
    a.raw(f"""; Fused attention forward, B=2 H=32 S=2048 D=18, bf16 in/out (written by my generator gen/gen6.py).
; @launch grid=(256,1,1) block=(512,1,1) lds={LDS}
.amdgcn_target "amdgcn-amd-amdhsa--gfx950"
.text
.globl {NAME}_kernel
.p2align 8
.type {NAME}_kernel,@function
{NAME}_kernel:""")
    a("s_load_dwordx4 s[4:7], s[0:1], 0")
    a("s_load_dwordx4 s[8:11], s[0:1], 16")
    if opt.stamp:
        a("s_load_dwordx2 s[40:41], s[0:1], 40")
        if opt.stamp == 3:
            for i in range(62, 74): a(f"s_mov_b32 s{i}, 0")
        a("s_memrealtime s[56:57]")
    stamp(0)
    a("s_cmp_ge_u32 s2, 256")
    a("s_cbranch_scc1 L_end")
    t0, t1 = Sr['E'] + 8, Sr['E'] + 9
    a(f"v_lshrrev_b32 v{t0}, 6, v0")
    a(f"v_lshlrev_b32 v{vSlot}, 3, v0")
    a(f"v_readfirstlane_b32 s24, v{t0}")
    a("v_and_b32 v0, 63, v0")
    if opt.pf:
        a("s_getpc_b64 s[36:37]")
        a(f"v_lshlrev_b32 v{vT2}, 6, v0")
        a("s_cmp_lg_u32 s24, 7")
        a("s_cbranch_scc1 L_nopf")
        a(f"global_load_dword v{vT2}, v{vT2}, s[36:37]")
        a.lab("L_nopf")
    a("s_and_b32 s25, s2, 7")
    a("s_lshr_b32 s26, s2, 5")
    a("s_lshl3_add_u32 s25, s25, s26")
    a(f"s_mul_i32 s25, s25, {HB}")
    a("s_bfe_u32 s26, s2, 0x20003")
    a("s_lshl3_add_u32 s26, s26, s24")
    a(f"s_mul_i32 s26, s26, {ST}")
    a("s_add_u32 s26, s26, s25")
    a(f"v_lshlrev_b32 v{vDma}, 4, v0")
    a("s_lshl_b32 s27, s24, 11")
    a("s_mov_b32 m0, s27")
    a(f"s_mov_b32 s18, {HB}")
    a("s_mov_b32 s19, 0x00020000")
    a(f"s_mov_b32 s46, {HB}")
    a("s_mov_b32 s47, 0x00020000")
    a(f"s_movk_i32 s14, {ST}")
    a("s_mov_b32 s15, 0x00020000")
    a(f"v_mul_u32_u24 v{vQo}, 36, v0")
    a("s_cmp_ge_u32 s24, 4")
    a("s_cselect_b64 vcc, 1, 0")
    a("s_waitcnt lgkmcnt(0)")
    stamp(1)
    ldf = opt.ldfl.replace('_', ' ')
    def quad():
        a(f"buffer_load_dwordx4 v{vDma}, s[16:19], s27 offen lds {ldf}")
        a(f"buffer_load_dwordx4 v{vDma}, s[16:19], s27 offen offset:1024 lds {ldf}")
        a("s_add_u32 m0, s27, s18")
        a("s_nop 0")
        a(f"buffer_load_dwordx4 v{vDma}, s[44:47], s27 offen lds {ldf}")
        a(f"buffer_load_dwordx4 v{vDma}, s[44:47], s27 offen offset:1024 lds {ldf}")
        a("s_add_u32 m0, s27, 16384")
        a("s_add_u32 s27, s27, 16384")
    T = Sr['O']
    qf = opt.qfl.replace('_', ' ')
    def qloads():
        a(f"buffer_load_dword v{T+8}, v{vQo}, s[12:15], 0 offen offset:32 {qf}")
        a(f"buffer_load_dwordx4 {vr(T,4)}, v{vQo}, s[12:15], 0 offen {qf}")
        a(f"buffer_load_dwordx4 {vr(T+4,4)}, v{vQo}, s[12:15], 0 offen offset:16 {qf}")
    a("s_add_u32 s16, s6, s25")
    a("s_addc_u32 s17, s7, 0")
    a("s_add_u32 s44, s8, s25")
    a("s_addc_u32 s45, s9, 0")
    a("s_add_u32 s12, s4, s26")
    a("s_addc_u32 s13, s5, 0")
    if opt.probe:
        srd = {'q': 's[12:15]', 'k': 's[16:19]', 'v': 's[44:47]'}[opt.probe]
        a("s_mov_b64 exec, 1")
        a(f"buffer_load_dword v{vT2}, off, {srd}, {'0' if opt.probe == 'q' else 's27'}")
        a("s_waitcnt vmcnt(0)")
        a("s_mov_b64 exec, -1")
        stamp(9)
        a("s_waitcnt lgkmcnt(0)")
        a("s_barrier")
    a("s_cbranch_vccnz L_setup")
    quad()
    if opt.bdelay: qloads()
    a.lab("L_setup")
    if not opt.bdelay: qloads()
    a(f"v_and_b32 v{t0}, 31, v0")
    a(f"v_lshrrev_b32 v{t1}, 5, v0")
    a("s_add_u32 s20, s10, s26")
    a("s_addc_u32 s21, s11, 0")
    a(f"s_movk_i32 s22, {ST}")
    a("s_mov_b32 s23, 0x00020000")
    C = Sr['E']
    a(f"v_and_b32 v{C}, 1, v0")
    a(f"v_subrev_u32 v{C}, 1, v{C}")
    a(f"v_and_b32 v{C}, 0x3f80, v{C}")
    a(f"v_mov_b32 v{C+1}, 0")
    a(f"v_add_u32 v{vSlot}, {CBASE}, v{vSlot}")
    a(f"ds_write_b64 v{vSlot}, {vr(C,2)}")
    a(f"v_mov_b32 v{QX['E']}, 0"); a(f"v_mov_b32 v{QX['E']+1}, 0"); a(f"v_mov_b32 v{QX['O']}, 0")
    a(f"v_mul_u32_u24 v{vK}, 72, v{t0}")
    a(f"v_lshl_add_u32 v{vK}, v{t1}, 4, v{vK}")
    a(f"v_mfma_f32_32x32x4_2b_bf16 {vr(120,32)}, {vr(QX['E'],2)}, {vr(QX['E'],2)}, 0")
    a(f"v_mfma_f32_32x32x4_2b_bf16 {vr(152,32)}, {vr(QX['E'],2)}, {vr(QX['E'],2)}, 0")
    t3, t4, t5 = C + 4, C + 5, C + 6
    a(f"v_bfe_u32 v{t3}, v0, 2, 2")
    a(f"v_lshl_add_u32 v{t3}, v{t1}, 3, v{t3}")
    a(f"v_mul_u32_u24 v{t3}, 72, v{t3}")
    a(f"v_and_b32 v{t4}, 1, v0")
    a(f"v_lshl_add_u32 v{t3}, v{t4}, 4, v{t3}")
    a(f"v_and_b32 v{t4}, 2, v0")
    a(f"v_lshl_add_u32 v{t3}, v{t4}, 2, v{t3}")
    a(f"v_lshlrev_b32 v{t5}, 6, v{t1}")
    a(f"v_lshlrev_b32 v{t4}, 2, v{t4}")
    a(f"v_sub_u32 v{t5}, v{t5}, v{t4}")
    a(f"v_add_u32 v{t5}, {CBASE+56}, v{t5}")
    a(f"v_and_b32 v{t4}, 16, v0")
    a(f"v_add3_u32 v{t3}, v{t4}, v{t3}, s18")
    a("s_mov_b32 vcc_lo, 0xdddd0000"); a("s_mov_b32 vcc_hi, 0xdddd0000")
    a(f"v_mov_b32 v{vIdx}, 0xdddd")
    a(f"v_mov_b32 v{vIncK}, {ST}")
    a(f"v_cndmask_b32 v{vIncV}, v{vIncK}, 0, vcc")
    a(f"v_cndmask_b32 v{vV}, v{t3}, v{t5}, vcc")
    a(f"v_add_u32 v{C+2}, v{vK}, v{vIncK}")
    a(f"v_add_u32 v{C+3}, v{vV}, v{vIncV}")
    a(f"ds_write_b64 v{vSlot}, {vr(C+2,2)} offset:4096")
    a(f"s_mul_i32 s28, s24, {ST}")
    a("s_cmp_ge_u32 s24, 5")
    a(f"s_cselect_b32 s29, {XBASE - 5*ST}, 0")
    a("s_add_u32 s28, s28, s29")
    a(f"v_mul_u32_u24 v{vStA}, 36, v{t0}")
    a(f"v_lshl_add_u32 v{vStA}, v{t1}, 4, v{vStA}")
    a(f"v_add_u32 v{vStA}, s28, v{vStA}")
    a(f"v_add_u32 v{vStB}, 1152, v{vStA}")
    a(f"v_add_u32 v{vStR}, s28, v{vDma}")
    a(f"s_mov_b32 s30, {CSCALE:#x}"); a(f"s_mov_b32 s31, {CSCALE:#x}")
    a("s_mov_b32 s29, 1")
    b1, b2 = opt.b1, opt.b2
    assert b1 == 3 and 6 <= b2 <= 7
    a(f"s_mov_b32 s32, {(1 << (b1-1)) | (1 << (b2-1)):#x}")
    a(f"s_mov_b32 s33, {(1 << (b1-1)) | (1 << (b2-1)) | (1 << 31):#x}")
    a("s_mov_b32 s35, 0x6c800000")
    a("s_mov_b64 vcc, 0")
    a("s_cmp_ge_u32 s24, 4")
    if opt.bdelay == 1:
        a("s_cbranch_scc0 L_noq")
        qloads()
        a.lab("L_noq")
    if opt.bdelay == 3:
        a("s_waitcnt vmcnt(5)")
        a("s_barrier")
        a("s_cbranch_scc0 L_noq")
        qloads()
        a.lab("L_noq")
    a("s_waitcnt vmcnt(3) lgkmcnt(0)")
    stamp(2)
    a("s_barrier")
    if opt.bdelay == 2:
        a("s_cbranch_scc1 L_qB")
        a.lab("L_qdone")
    burst = rd_kx(1) + rd_v('O', 0, 0) + rd_k('E', 1) + rd_v('O', 1, 0) + rd_v('E', 0, 1) + rd_v('E', 1, 1) + rd_k('O', 1)
    bump = f"ds_add_rtn_u64 {vr(vK,2)}, v{vSlot}, {vr(vIncK,2)} offset:4096"
    AL['on'] = True
    rd0 = rd_kx(0) + rd_k('E', 0) + rd_k('O', 0) + rd_v('E', 0, 0) + rd_v('E', 1, 0) + burst + [bump]
    for f in rd0[:13]: a(f)
    a("s_waitcnt lgkmcnt(4)" if not smem else "s_waitcnt lgkmcnt(0)")
    for f in rd0[13:]: a(f)
    a("s_setprio 3")
    stamp(3)
    W = T + 10
    wof = {}
    def unpack(src, k):
        w = W + 2 * k; wof[src] = w
        a(f"v_lshlrev_b32 v{w}, 16, v{src}")
        a(f"v_and_b32 v{w+1}, 0xffff0000, v{src}")
        a(f"v_pk_mul_f32 {vr(w,2)}, {vr(w,2)}, s[30:31]")
    def pack(src, d): a(f"v_cvt_pk_bf16_f32 v{d}, v{wof[src]}, v{wof[src]+1}")
    QAE, QBE, QAO, QBO = Qr[('A','E')], Qr[('B','E')], Qr[('A','O')], Qr[('B','O')]
    a("s_waitcnt vmcnt(2)")
    unpack(T + 8, 8)
    pack(T + 8, QX['E']); pack(T + 8, QBO + 3)
    a("s_waitcnt vmcnt(1)")
    a(mf_x('E'))
    for j in range(4): unpack(T + j, j)
    for j in range(4): pack(T + j, QAE + j)
    pack(T, QX['O'] + 1)
    a("s_waitcnt vmcnt(0)")
    stamp(4)
    for j in range(4, 8): unpack(T + j, j)
    for j in range(4): pack(T + 4 + j, QBE + j)
    for j in range(4): a(f"v_permlane32_swap_b32 v{QAE+j}, v{QBE+j}")
    pack(T + 4, QAO + 3)
    a(f"v_mov_b32 v{QAO}, v{QAE+1}")
    a(mf_q('A', 'E'))
    a(f"v_permlane32_swap_b32 v{QAO+3}, v{QBO+3}")
    for j in range(1, 3): a(f"v_mov_b32 v{QAO+j}, v{QAE+j+1}")
    for j in range(0, 3): a(f"v_mov_b32 v{QBO+j}, v{QBE+j+1}")
    a(mf_q('B', 'E'))
    a("s_cbranch_scc1 L_startB")
    a("s_setprio 2")
    a("s_waitcnt lgkmcnt(0)")
    a("s_nop 1")
    cut = opt.cut
    pos0 = int(opt.pos.split(',')[0])
    assert cut > pos0
    a.lab("L_first")
    stamp(5)
    for (i, k_, s_) in phase_list('E', opt):
        if not (i == pos0 and k_ == 'm'): a(s_)
    for (i, k_, s_) in phase_list('O', opt):
        if i < cut: a(s_)
    AL['on'] = False
    pE, pO = phase_list('E', opt), phase_list('O', opt)
    for (i, k_, s_) in pO:
        if i >= cut: a(s_)
    for (i, k_, s_) in pE: a(s_)
    for (i, k_, s_) in pO:
        if i < cut: a(s_)
    a("s_cbranch_scc0 L_topA")
    a("s_branch L_topB")
    if opt.bdelay == 2:
        a.lab("L_qB")
        qloads()
        a("s_branch L_qdone")
    a.lab("L_startB")
    a("s_setprio 1")
    quad()
    a("s_cmp_ge_u32 s24, 4")
    a("s_waitcnt lgkmcnt(0)")
    a("s_branch L_first")
    if opt.kxm: burst = ["s_mov_b32 exec_hi, 0", burst[0], "s_mov_b32 exec_hi, -1"] + burst[1:]
    for role in 'AB':
        a.raw("    .p2align 6")
        a.lab(f"L_top{role}")
        if role == 'A': a("s_setprio 0")
        a("s_add_u32 s29, s29, 1")
        for f in burst: a(f)
        a("s_cmp_lg_u32 s29, 31")
        a(f"s_cbranch_scc1 L_nl{role}")
        a("s_mov_b64 vcc, 1")
        a("s_waitcnt lgkmcnt(8)")
        for f in rd_v('T', 0, 1) + rd_v('T', 1, 1): a(f)
        a.lab(f"L_nl{role}")
        a(f"ds_add_rtn_u64 {vr(vK,2)}, v{vSlot}, {vr(vIncK,2)} offset:4096")
        if opt.stamp == 2:
            a("s_memtime s[80:81]"); a("s_memrealtime s[82:83]")
        a("s_cmp_gt_u32 s29, 4")
        a(f"s_cbranch_scc1 L_nd{role}")
        quad()
        if role == 'A':
            a("s_cmp_lg_u32 s29, 4")
            a("s_cbranch_scc1 L_ndA")
            quad()
        a.lab(f"L_nd{role}")
        a(f"s_cmp_lg_u32 s29, {b2-1}")
        a(f"s_cbranch_scc1 L_nw{role}")
        a("s_waitcnt vmcnt(0)")
        if opt.touch and role == 'A':
            a(f"buffer_load_dword v{vT2}, off, s[20:23], 0")
        a.lab(f"L_nw{role}")
        a(f"s_bitcmp1_b32 {'s33' if role == 'A' else 's32'}, s29")
        a("s_waitcnt lgkmcnt(0)")
        if opt.stamp == 2:
            a("s_mov_b32 s84, m0"); a("s_mov_b32 m0, s29")
            a("v_writelane_b32 v208, s80, m0"); a("v_writelane_b32 v209, s82, m0"); a("s_mov_b32 m0, s84")
        if role == 'B':
            a("s_cbranch_scc0 L_goB")
            a("s_waitcnt vmcnt(4)")
            a("s_barrier")
            a.lab("L_goB")
        first = True
        for (i, k_, s_) in pO:
            if i < cut: continue
            a(s_)
            if first and role == 'A': a("s_setprio 2")
            first = False
        for (i, k_, s_) in pE: a(s_)
        for (i, k_, s_) in pO:
            if i < cut: a(s_)
        if role == 'A':
            a("s_cbranch_scc0 L_topA")
            a("s_cbranch_vccnz L_tail")
            a("s_barrier")
            a("s_branch L_topA")
        else:
            a("s_cbranch_vccz L_topB")
    R = Sr['E']
    PK = {'A': Sr['E'] + 8, 'B': Sr['E'] + 14}
    OB = Sr['E'] + 20
    fl = opt.stfl.replace('_', ' ')
    def finish(t, ds=True):
        E, O = Or[(t, 'E')], Or[(t, 'O')]
        l, rc = (R, R + 2) if t == 'A' else (R + 1, R + 4)
        a(f"v_add_f32 v{l}, v{E+12}, v{O+12}")
        a(f"v_rcp_f32 v{rc}, v{l}")
        a(f"v_permlane32_swap_b32 v{O}, v{O+8}")
        a(f"v_permlane32_swap_b32 v{O+1}, v{O+9}")
        for j in (8, 0, 2, 4, 6):
            a(f"v_pk_add_f32 {vr(E+j,2)}, {vr(E+j,2)}, {vr(O+j+2,2)}")
        for j in (8, 0, 2, 4, 6):
            a(f"v_pk_mul_f32 {vr(E+j,2)}, {vr(E+j,2)}, {vr(rc,2)} op_sel_hi:[1,0]")
        st = vStA if t == 'A' else vStB
        for j in (4, 0, 1, 2, 3):
            a(f"v_cvt_pk_bf16_f32 v{PK[t]+j}, v{E+2*j}, v{E+2*j+1}")
        if not ds: return
        a(f"ds_write_b32 v{st}, v{PK[t]+4} offset:16")
        a(f"ds_write2_b32 v{st}, v{PK[t]}, v{PK[t]+1} offset0:0 offset1:1")
        a(f"ds_write2_b32 v{st}, v{PK[t]+2}, v{PK[t]+3} offset0:2 offset1:3")
        if t == 'A':
            a(f"ds_read_b128 {vr(OB,4)}, v{vStR}")
        else:
            a(f"ds_read_b128 {vr(OB+4,4)}, v{vStR} offset:1024")
            a(f"ds_read_b128 {vr(OB+8,4)}, v{vStR} offset:2048")
    def store(k): a(f"buffer_store_dwordx4 {vr(OB+4*k,4)}, v{vDma}, s[20:23], 0 offen offset:{1024*k} {fl}")
    def dot(t, j): a(f"v_dot2c_f32_bf16 v{R if t == 'A' else R+1}, 0, v{PK[t]+j}")
    a.lab("L_tail")
    tm = {10: mf_pv('A', 'O', 0, 'T'), 18: mf_pv('A', 'O', 1, 'T'), 26: mf_pv('B', 'O', 0, 'T')}
    for i in range(cut, 32):
        if i in tm: a(tm[i])
        if i == 29: finish('A', ds=(opt.tv == 0))
        a(ex('O', i))
    stamp(6)
    if opt.tv == 0:
        a("s_nop 1")
        a(mf_pv('B', 'O', 1, 'T'))
        a("s_nop 9")
        lgkm(0)
        store(0)
        finish('B')
    else:
        a(f"ds_write_b32 v{vStA}, v{PK['A']+4} offset:16")
        a(f"ds_write2_b32 v{vStA}, v{PK['A']}, v{PK['A']+1} offset0:0 offset1:1")
        a(mf_pv('B', 'O', 1, 'T'))
        a(f"ds_write2_b32 v{vStA}, v{PK['A']+2}, v{PK['A']+3} offset0:2 offset1:3")
        a(f"ds_read_b128 {vr(OB,4)}, v{vStR}")
        a("s_nop 9")
        n0 = len(a.l)
        finish('B')
        a.l[n0+opt.tv:n0+opt.tv] = ["    s_waitcnt lgkmcnt(0)", f"    buffer_store_dwordx4 {vr(OB,4)}, v{vDma}, s[20:23], 0 offen {fl}"]
    lgkm(1)
    store(1)
    lgkm(0)
    store(2)
    stamp(7)
    a("s_setprio 0")
    for t in 'AB':
        for j in range(5): dot(t, j)
    a(f"v_cmp_nge_f32 s[36:37], v{R}, 1.0")
    a(f"v_cmp_nle_f32 vcc, v{R}, s35")
    a("s_or_b64 s[36:37], s[36:37], vcc")
    a(f"v_cmp_nge_f32 s[38:39], v{R+1}, 1.0")
    a(f"v_cmp_nle_f32 vcc, v{R+1}, s35")
    a("s_or_b64 s[36:37], s[36:37], s[38:39]")
    a("s_or_b64 s[36:37], s[36:37], vcc")
    a("s_cbranch_scc1 L_check")
    a.lab("L_done")
    if opt.amp:
        a("s_waitcnt vmcnt(0)")
        stamp(8)
        a("s_memrealtime s[42:43]")
        a("s_waitcnt lgkmcnt(0)")
        a(f"s_sub_u32 s50, s{60+2*opt.ampb}, s{60+2*opt.ampa}")
        if opt.ampbase >= 0:
            a(f"s_max_u32 s50, s50, {opt.ampbase}")
            a(f"s_sub_u32 s50, s50, {opt.ampbase}")
            if opt.ampwg == -2:
                a("s_load_dwordx2 s[54:55], s[0:1], 32")
                a(f"s_cmp_lg_u32 s24, {3 if opt.ampr == 'A' else 7}")
                a("s_cbranch_scc1 L_end")
                a("s_add_u32 s51, s50, 0x1000000")
                a("s_mov_b64 exec, 1")
                a("v_mov_b32 v16, s51"); a("v_mov_b32 v17, 0")
                a("s_waitcnt lgkmcnt(0)")
                a("global_atomic_add v18, v17, v16, s[54:55] sc0 sc1")
                a("s_waitcnt vmcnt(0)")
                a("v_readfirstlane_b32 s51, v18")
                a("s_nop 3")
                a("s_add_u32 s50, s50, s51")
                a("s_and_b32 s50, s50, 0xffffff")
                a("s_lshr_b32 s50, s50, 8")
                a("s_lshr_b32 s51, s51, 24")
                a("s_cmp_lg_u32 s51, 255")
            elif opt.ampwg >= 0: a(f"s_cmp_lg_u32 s2, {opt.ampwg}")
            else: a("s_and_b32 s51, s2, 7")
            a("s_cselect_b32 s50, 0, s50")
        a(f"s_mul_i32 s50, s50, {opt.amp}")
        a("s_min_u32 s50, s50, 20000")
        if opt.ampr:
            a("s_cmp_lt_u32 s24, 4")
            a("s_cselect_b32 s50, s50, 0" if opt.ampr == 'A' else "s_cselect_b32 s50, 0, s50")
        a.lab("L_spin")
        a("s_sleep 2")
        a("s_memrealtime s[52:53]")
        a("s_waitcnt lgkmcnt(0)")
        a("s_sub_u32 s51, s52, s42")
        a("s_cmp_lt_u32 s51, s50")
        a("s_cbranch_scc1 L_spin")
    if opt.stamp:
        a("s_mov_b64 exec, 1")
        a("s_waitcnt vmcnt(0)")
        stamp(8)
        a("s_memrealtime s[58:59]")
        a("s_getreg_b32 s42, hwreg(HW_REG_HW_ID)")
        a("s_getreg_b32 s43, hwreg(HW_REG_XCC_ID)")
        a("s_waitcnt lgkmcnt(0)")
        for i, sr in enumerate((56, 58, 42, 43, 60, 62, 64, 66, 68, 70, 72, 74, 76)):
            a(f"v_mov_b32 v{16+i}, s{sr}")
        a("s_lshl_b32 s50, s2, 3"); a("s_add_u32 s50, s50, s24"); a("s_lshl_b32 s50, s50, 6")
        a("v_mov_b32 v1, s50")
        for i in range(4): a(f"global_store_dwordx4 v1, v[{16+4*i}:{19+4*i}], s[40:41] offset:{16*i}")
        if opt.stamp == 2:
            a("s_mov_b64 exec, -1")
            a("s_lshl_b32 s50, s50, 3"); a("s_add_u32 s50, s50, 0x100000")
            a("v_lshl_add_u32 v1, v0, 3, s50")
            a("global_store_dwordx2 v1, v[208:209], s[40:41]")
    a.lab("L_end")
    a("s_endpgm")
    a.lab("L_check")
    a("s_waitcnt vmcnt(0)")
    mA, mB = 0, vSlot
    if opt.stamp == 2: mA = 187
    def rewind(n):
        a(f"v_subrev_u32 v{vK}, {n*ST}, v{vK}")
        a(f"v_mul_u32_u24 v{vT2}, {n}, v{vIncV}")
        a(f"v_sub_u32 v{vV}, v{vV}, v{vT2}")
        a("s_mov_b32 s29, 0")
    def scores():
        a(f"buffer_load_dwordx2 {vr(KX,2)}, v{vK}, s[16:19], 0 offen offset:32")
        a(f"buffer_load_dwordx4 {vr(Kr['E'],4)}, v{vK}, s[16:19], 0 offen")
        a(f"buffer_load_dwordx4 {vr(Kr['O'],4)}, v{vK}, s[16:19], 0 offen offset:40")
        a("s_waitcnt vmcnt(0) lgkmcnt(0)")
        a(mf_x('E')); a(mf_x('O'))
        a("s_nop 15"); a("s_nop 3")
        for par in 'EO':
            for t in 'AB': a(mf_q(t, par))
        a("s_nop 15")
    def step(lab):
        a(f"v_add_u32 v{vK}, v{vIncK}, v{vK}")
        a(f"v_add_u32 v{vV}, v{vIncV}, v{vV}")
        a("s_add_u32 s29, s29, 1")
        a("s_cmp_lg_u32 s29, 32")
        a(f"s_cbranch_scc1 {lab}")
    rewind(31)
    a(f"v_mov_b32 v{mA}, 0xff800000"); a(f"v_mov_b32 v{mB}, 0xff800000")
    a.lab("L_max")
    scores()
    for par in 'EO':
        for t, m in (('A', mA), ('B', mB)):
            s = Sr[par] + (16 if t == 'B' else 0)
            for j in range(0, 16, 2): a(f"v_max3_f32 v{m}, v{m}, v{s+j}, v{s+j+1}")
    step("L_max")
    for m in (mA, mB):
        a(f"v_mov_b32 v{vT2}, v{m}")
        a("s_nop 1")
        a(f"v_permlane32_swap_b32 v{vT2}, v{m}")
        a("s_nop 1")
        a(f"v_max_f32 v{m}, v{m}, v{vT2}")
    rewind(32)
    for r in range(120, 184): a(f"v_mov_b32 v{r}, 0")
    a.lab("L_acc")
    for par in 'EO':
        for j in range(2):
            for f in rd_v(par, j, 0): a(f)
    scores()
    for par in 'EO':
        for t, m in (('A', mA), ('B', mB)):
            s = Sr[par] + (16 if t == 'B' else 0)
            for j in range(16): a(f"v_sub_f32 v{s+j}, v{s+j}, v{m}")
            for j in range(16): a(f"v_exp_f32 v{s+j}, v{s+j}")
    a("s_nop 1")
    for par in 'EO':
        for t in 'AB':
            for j in range(2): a(mf_pv(t, par, j))
    step("L_acc")
    a("s_nop 15")
    finish('A'); finish('B')
    a("s_waitcnt lgkmcnt(0)")
    for k in range(3): store(k)
    a("s_branch L_done")
    nv = 212 if opt.stamp == 2 else NV
    a.raw(f""".section .rodata,"a"
.p2align 6
.amdhsa_kernel {NAME}_kernel
  .amdhsa_next_free_vgpr {nv}
  .amdhsa_next_free_sgpr {90 if (opt.stamp or opt.amp) else 48}
  .amdhsa_accum_offset {nv}
  .amdhsa_group_segment_fixed_size 0
  .amdhsa_kernarg_size 48
  .amdhsa_user_sgpr_count 2
  .amdhsa_user_sgpr_kernarg_segment_ptr 1
  .amdhsa_system_sgpr_workgroup_id_x 1
.end_amdhsa_kernel""")
    return a.text()

def parse(argv):
    p = argparse.ArgumentParser()
    p.add_argument('-o', default=f"cdna_kernels/{NAME}.s")
    p.add_argument('--grp', default='2,2')
    p.add_argument('--pf', type=int, default=0)
    p.add_argument('--kxm', type=int, default=0)
    p.add_argument('--probe', default='')
    p.add_argument('--ampwg', type=int, default=-1)
    p.add_argument('--tv', type=int, default=0)
    p.add_argument('--touch', type=int, default=0)
    p.add_argument('--b05', type=int, default=0)
    p.add_argument('--b1', type=int, default=3)
    p.add_argument('--b2', type=int, default=7)
    p.add_argument('--bdelay', type=int, default=1)
    p.add_argument('--cut', type=int, default=4)
    p.add_argument('--pos', default='2,5,15,18,21,31,25')
    p.add_argument('--tpos', default='2,5,13,18,21,26,29')
    p.add_argument('--stfl', default='sc1')
    p.add_argument('--ldfl', default='')
    p.add_argument('--qfl', default='')
    p.add_argument('--stamp', type=int, default=0)
    p.add_argument('--amp', type=int, default=0)
    p.add_argument('--ampa', type=int, default=0)
    p.add_argument('--ampb', type=int, default=8)
    p.add_argument('--ampr', default='')
    p.add_argument('--ampbase', type=int, default=-1)
    return p.parse_args(argv)

if __name__ == '__main__':
    opt = parse(sys.argv[1:])
    open(opt.o, 'w').write(gen(opt))
```

```python
import sys, struct, math, argparse

NAME = "standalone__fused_io_aware_attn__prompt"
HB = 73728
ST = 2304
VBASE = HB
CBASE = 2 * HB
ABASE = CBASE + 4096
XBASE = ABASE + 4096
LDS = XBASE + 3 * ST + 1024

def f2u(x): return struct.unpack('<I', struct.pack('<f', x))[0]
CSCALE = f2u(math.log2(math.e) / math.sqrt(18.0))

vK, vV = 2, 3
vIncK, vIncV = 4, 5
vSlot, vIdx, vQo, vDma = 1, 6, 7, 14
vT2 = 15
KX = 8
QX = {'E': 10, 'O': 12}
Kr = {'E': 16, 'O': 20}
Qr = {('A', 'E'): 24, ('B', 'E'): 28, ('A', 'O'): 32, ('B', 'O'): 36}
Vr = {('E', 0): 40, ('E', 1): 44, ('O', 0): 48, ('O', 1): 52}
Sr = {'E': 56, 'O': 88}
Or = {('A', 'E'): 120, ('B', 'E'): 136, ('A', 'O'): 152, ('B', 'O'): 168}
vStA, vStB, vStR = 184, 185, 186
Vr[('T', 0)] = 188; Vr[('T', 1)] = 192
KX0, KE0, KO0 = 196, 198, 202
NV = 208
AL = dict(on=False)
def kx(): return KX0 if AL['on'] else KX
def kr(par): return {'E': KE0, 'O': KO0}[par] if AL['on'] else Kr[par]
def vv(par, j): return Vr[('T', j)] if (AL['on'] and par == 'E') else Vr[(par, j)]

def vr(b, n): return f"v[{b}:{b+n-1}]"

class Asm:
    def __init__(self): self.l = []
    def __call__(self, s): self.l.append("    " + s)
    def lab(self, s): self.l.append(s + ":")
    def raw(self, s): self.l.append(s)
    def text(self): return "\n".join(self.l) + "\n"

def mf_x(par):
    return f"v_mfma_f32_32x32x4_2b_bf16 {vr(Sr[par],32)}, {vr(kx(),2)}, {vr(QX[par],2)}, 0 cbsz:1 abid:0"
def mf_q(t, par):
    s = Sr[par] + (16 if t == 'B' else 0)
    return f"v_mfma_f32_32x32x16_bf16 {vr(s,16)}, {vr(kr(par),4)}, {vr(Qr[(t,par)],4)}, {vr(s,16)}"
def mf_pv(t, par, j, vs=None):
    s = Sr[par] + (16 if t == 'B' else 0) + 8 * j
    return f"v_smfmac_f32_32x32x32_bf16 {vr(Or[(t,par)],16)}, {vr(vv(vs or par,j),4)}, {vr(s,8)}, v{vIdx}"
def ex(par, i): return f"v_exp_f32 v{Sr[par]+i}, v{Sr[par]+i}"
def rd_kx(u): return [f"ds_read_b64 {vr(kx(),2)}, v{vK} offset:{u*ST+32}"]
def rd_k(par, u):
    o = u * ST + (40 if par == 'O' else 0)
    return [f"ds_read_b64 {vr(kr(par),2)}, v{vK} offset:{o}", f"ds_read_b64 {vr(kr(par)+2,2)}, v{vK} offset:{o+8}"]
def rd_v(par, j, u):
    o = u * ST + (32 if par != 'E' else 0) + 16 * j * 72
    return [f"ds_read_b64_tr_b16 {vr(vv(par,j),2)}, v{vV} offset:{o}", f"ds_read_b64_tr_b16 {vr(vv(par,j)+2,2)}, v{vV} offset:{o+4*72}"]

def phase_list(par, opt, look=True):
    oth = 'O' if par == 'E' else 'E'
    pos = [int(x) for x in (opt.pos if look else opt.tpos).split(',')]
    mf = {pos[0]: mf_pv('B', oth, 1), pos[2]: mf_pv('A', par, 0), pos[3]: mf_pv('A', par, 1), pos[5]: mf_pv('B', par, 0)}
    if look:
        mf.update({pos[1]: mf_x(oth), pos[4]: mf_q('A', oth), pos[6]: mf_q('B', oth)})
    out = []
    for i in range(32):
        if i in mf: out.append((i, 'm', mf[i]))
        out.append((i, 'e', ex(par, i)))
    return out

def gen(opt):
    a = Asm()
    def stamp(i):
        if opt.stamp and (opt.stamp != 3 or i in (0, 7, 8)): a(f"s_memtime s[{60+2*i}:{61+2*i}]")
        if opt.amp and i in (opt.ampa, opt.ampb): a(f"{'s_memtime' if opt.ampbase >= 0 else 's_memrealtime'} s[{60+2*i}:{61+2*i}]")
    smem = opt.stamp in (1, 2) or (opt.amp and not (opt.ampa in (0, 7) and opt.ampb in (7, 8)))
    def lgkm(n): a(f"s_waitcnt lgkmcnt({0 if smem else n})")
    a.raw(f"""; Fused attention forward, B=2 H=32 S=2048 D=18, bf16 in/out (written by my generator gen/gen7.py).
; @launch grid=(256,1,1) block=(512,1,1) lds={LDS}
.amdgcn_target "amdgcn-amd-amdhsa--gfx950"
.text
.globl {NAME}_kernel
.p2align 8
.type {NAME}_kernel,@function
{NAME}_kernel:""")
    a("s_load_dwordx4 s[4:7], s[0:1], 0")
    a("s_load_dwordx4 s[8:11], s[0:1], 16")
    if opt.stamp:
        a("s_load_dwordx2 s[40:41], s[0:1], 40")
        if opt.stamp == 3:
            for i in range(62, 74): a(f"s_mov_b32 s{i}, 0")
        a("s_memrealtime s[56:57]")
    stamp(0)
    a("s_cmp_ge_u32 s2, 256")
    a("s_cbranch_scc1 L_end")
    t0, t1 = Sr['E'] + 8, Sr['E'] + 9
    a(f"v_lshrrev_b32 v{t0}, 6, v0")
    a(f"v_lshlrev_b32 v{vSlot}, 3, v0")
    a(f"v_readfirstlane_b32 s24, v{t0}")
    a("v_and_b32 v0, 63, v0")
    if opt.pf:
        a("s_getpc_b64 s[36:37]")
        a(f"v_lshlrev_b32 v{vT2}, 6, v0")
        a("s_cmp_lg_u32 s24, 7")
        a("s_cbranch_scc1 L_nopf")
        a(f"global_load_dword v{vT2}, v{vT2}, s[36:37]")
        a.lab("L_nopf")
    a("s_and_b32 s25, s2, 7")
    a("s_lshr_b32 s26, s2, 5")
    a("s_lshl3_add_u32 s25, s25, s26")
    a(f"s_mul_i32 s25, s25, {HB}")
    a("s_bfe_u32 s26, s2, 0x20003")
    a("s_lshl3_add_u32 s26, s26, s24")
    a(f"s_mul_i32 s26, s26, {ST}")
    a("s_add_u32 s26, s26, s25")
    a(f"v_lshlrev_b32 v{vDma}, 4, v0")
    a("s_lshl_b32 s27, s24, 11")
    a("s_mov_b32 m0, s27")
    a(f"s_mov_b32 s18, {HB}")
    a("s_mov_b32 s19, 0x00020000")
    a(f"s_mov_b32 s46, {HB}")
    a("s_mov_b32 s47, 0x00020000")
    a(f"s_movk_i32 s14, {ST}")
    a("s_mov_b32 s15, 0x00020000")
    a(f"v_mul_u32_u24 v{vQo}, 36, v0")
    a("s_cmp_ge_u32 s24, 4")
    a("s_cselect_b64 vcc, 1, 0")
    a("s_waitcnt lgkmcnt(0)")
    stamp(1)
    ldf = opt.ldfl.replace('_', ' ')
    def quad():
        a(f"buffer_load_dwordx4 v{vDma}, s[16:19], s27 offen lds {ldf}")
        a(f"buffer_load_dwordx4 v{vDma}, s[16:19], s27 offen offset:1024 lds {ldf}")
        a("s_add_u32 m0, s27, s18")
        a("s_nop 0")
        a(f"buffer_load_dwordx4 v{vDma}, s[44:47], s27 offen lds {ldf}")
        a(f"buffer_load_dwordx4 v{vDma}, s[44:47], s27 offen offset:1024 lds {ldf}")
        a("s_add_u32 m0, s27, 16384")
        a("s_add_u32 s27, s27, 16384")
    T = Sr['O']
    qf = opt.qfl.replace('_', ' ')
    def qloads():
        a(f"buffer_load_dword v{T+8}, v{vQo}, s[12:15], 0 offen offset:32 {qf}")
        a(f"buffer_load_dwordx4 {vr(T,4)}, v{vQo}, s[12:15], 0 offen {qf}")
        a(f"buffer_load_dwordx4 {vr(T+4,4)}, v{vQo}, s[12:15], 0 offen offset:16 {qf}")
    a("s_add_u32 s16, s6, s25")
    a("s_addc_u32 s17, s7, 0")
    a("s_add_u32 s44, s8, s25")
    a("s_addc_u32 s45, s9, 0")
    a("s_add_u32 s12, s4, s26")
    a("s_addc_u32 s13, s5, 0")
    if opt.probe:
        srd = {'q': 's[12:15]', 'k': 's[16:19]', 'v': 's[44:47]'}[opt.probe]
        a("s_mov_b64 exec, 1")
        a(f"buffer_load_dword v{vT2}, off, {srd}, {'0' if opt.probe == 'q' else 's27'}")
        a("s_waitcnt vmcnt(0)")
        a("s_mov_b64 exec, -1")
        stamp(9)
        a("s_waitcnt lgkmcnt(0)")
        a("s_barrier")
    a("s_cbranch_vccnz L_setup")
    if opt.qfirst: qloads(); quad()
    else: quad(); qloads()
    a.lab("L_setup")
    a(f"v_and_b32 v{t0}, 31, v0")
    a(f"v_lshrrev_b32 v{t1}, 5, v0")
    a("s_add_u32 s20, s10, s26")
    a("s_addc_u32 s21, s11, 0")
    a(f"s_movk_i32 s22, {ST}")
    a("s_mov_b32 s23, 0x00020000")
    C = Sr['E']
    a(f"v_and_b32 v{C}, 1, v0")
    a(f"v_subrev_u32 v{C}, 1, v{C}")
    a(f"v_and_b32 v{C}, 0x3f80, v{C}")
    a(f"v_mov_b32 v{C+1}, 0")
    a(f"v_add_u32 v{vSlot}, {CBASE}, v{vSlot}")
    a(f"ds_write_b64 v{vSlot}, {vr(C,2)}")
    a(f"v_mov_b32 v{QX['E']}, 0"); a(f"v_mov_b32 v{QX['E']+1}, 0"); a(f"v_mov_b32 v{QX['O']}, 0")
    a(f"v_mul_u32_u24 v{vK}, 72, v{t0}")
    a(f"v_lshl_add_u32 v{vK}, v{t1}, 4, v{vK}")
    a(f"v_mfma_f32_32x32x4_2b_bf16 {vr(120,32)}, {vr(QX['E'],2)}, {vr(QX['E'],2)}, 0")
    a(f"v_mfma_f32_32x32x4_2b_bf16 {vr(152,32)}, {vr(QX['E'],2)}, {vr(QX['E'],2)}, 0")
    t3, t4, t5 = C + 4, C + 5, C + 6
    a(f"v_bfe_u32 v{t3}, v0, 2, 2")
    a(f"v_lshl_add_u32 v{t3}, v{t1}, 3, v{t3}")
    a(f"v_mul_u32_u24 v{t3}, 72, v{t3}")
    a(f"v_and_b32 v{t4}, 1, v0")
    a(f"v_lshl_add_u32 v{t3}, v{t4}, 4, v{t3}")
    a(f"v_and_b32 v{t4}, 2, v0")
    a(f"v_lshl_add_u32 v{t3}, v{t4}, 2, v{t3}")
    a(f"v_lshlrev_b32 v{t5}, 6, v{t1}")
    a(f"v_lshlrev_b32 v{t4}, 2, v{t4}")
    a(f"v_sub_u32 v{t5}, v{t5}, v{t4}")
    a(f"v_add_u32 v{t5}, {CBASE+56}, v{t5}")
    a(f"v_and_b32 v{t4}, 16, v0")
    a(f"v_add3_u32 v{t3}, v{t4}, v{t3}, s18")
    a("s_mov_b32 vcc_lo, 0xdddd0000"); a("s_mov_b32 vcc_hi, 0xdddd0000")
    a(f"v_mov_b32 v{vIdx}, 0xdddd")
    a(f"v_mov_b32 v{vIncK}, {ST}")
    a(f"v_cndmask_b32 v{vIncV}, v{vIncK}, 0, vcc")
    a(f"v_cndmask_b32 v{vV}, v{t3}, v{t5}, vcc")
    a(f"v_add_u32 v{C+2}, v{vK}, v{vIncK}")
    a(f"v_add_u32 v{C+3}, v{vV}, v{vIncV}")
    a(f"ds_write_b64 v{vSlot}, {vr(C+2,2)} offset:4096")
    a(f"s_mul_i32 s28, s24, {ST}")
    a("s_cmp_ge_u32 s24, 5")
    a(f"s_cselect_b32 s29, {XBASE - 5*ST}, 0")
    a("s_add_u32 s28, s28, s29")
    a(f"v_mul_u32_u24 v{vStA}, 36, v{t0}")
    a(f"v_lshl_add_u32 v{vStA}, v{t1}, 4, v{vStA}")
    a(f"v_add_u32 v{vStA}, s28, v{vStA}")
    a(f"v_add_u32 v{vStB}, 1152, v{vStA}")
    a(f"v_add_u32 v{vStR}, s28, v{vDma}")
    a(f"s_mov_b32 s30, {CSCALE:#x}"); a(f"s_mov_b32 s31, {CSCALE:#x}")
    a("s_mov_b32 s29, 1")
    b1, b2 = opt.b1, opt.b2
    assert b1 == 3 and 6 <= b2 <= 7
    a(f"s_mov_b32 s32, {(1 << (b1-1)) | (1 << (b2-1)):#x}")
    a(f"s_mov_b32 s33, {(1 << (b1-1)) | (1 << (b2-1)) | (1 << 31):#x}")
    a("s_mov_b32 s35, 0x6c800000")
    a("s_mov_b64 vcc, 0")
    a("s_cmp_ge_u32 s24, 4")
    a("s_cbranch_scc1 L_proB")
    burst = rd_kx(1) + rd_v('O', 0, 0) + rd_k('E', 1) + rd_v('O', 1, 0) + rd_v('E', 0, 1) + rd_v('E', 1, 1) + rd_k('O', 1)
    bump = f"ds_add_rtn_u64 {vr(vK,2)}, v{vSlot}, {vr(vIncK,2)} offset:4096"
    AL['on'] = True
    rd0 = rd_kx(0) + rd_k('E', 0) + rd_k('O', 0) + rd_v('E', 0, 0) + rd_v('E', 1, 0) + burst + [bump]
    W = T + 10
    wof = {}
    def unpack(src, k):
        w = W + 2 * k; wof[src] = w
        a(f"v_lshlrev_b32 v{w}, 16, v{src}")
        a(f"v_and_b32 v{w+1}, 0xffff0000, v{src}")
        a(f"v_pk_mul_f32 {vr(w,2)}, {vr(w,2)}, s[30:31]")
    def pack(src, d): a(f"v_cvt_pk_bf16_f32 v{d}, v{wof[src]}, v{wof[src]+1}")
    QAE, QBE, QAO, QBO = Qr[('A','E')], Qr[('B','E')], Qr[('A','O')], Qr[('B','O')]
    def prep(nlater, mfma):
        a(f"s_waitcnt vmcnt({2+nlater})")
        if not mfma and opt.bdelay == 3: a("s_barrier")
        unpack(T + 8, 8)
        pack(T + 8, QX['E']); pack(T + 8, QBO + 3)
        a(f"s_waitcnt vmcnt({1+nlater})")
        if mfma: a(mf_x('E'))
        for j in range(4): unpack(T + j, j)
        for j in range(4): pack(T + j, QAE + j)
        pack(T, QX['O'] + 1)
        a(f"s_waitcnt vmcnt({nlater})")
        stamp(4)
        for j in range(4, 8): unpack(T + j, j)
        for j in range(4): pack(T + 4 + j, QBE + j)
        for j in range(4): a(f"v_permlane32_swap_b32 v{QAE+j}, v{QBE+j}")
        pack(T + 4, QAO + 3)
        a(f"v_mov_b32 v{QAO}, v{QAE+1}")
        if mfma: a(mf_q('A', 'E'))
        a(f"v_mov_b32 v{QAO+1}, v{QAE+2}")
        a(f"v_permlane32_swap_b32 v{QAO+3}, v{QBO+3}")
        a(f"v_mov_b32 v{QAO+2}, v{QAE+3}")
        for j in range(0, 3): a(f"v_mov_b32 v{QBO+j}, v{QBE+j+1}")
        if mfma: a(mf_q('B', 'E'))
    a("s_setprio 2")
    if opt.qfirst:
        prep(4, False)
        a("s_waitcnt vmcnt(0) lgkmcnt(0)")
        stamp(2)
        a("s_barrier")
        for f in rd0[:9]: a(f)
        lgkm(8)
        stamp(3)
        a(mf_x('E'))
        for f in rd0[9:15]: a(f)
        lgkm(7)
        for f in rd0[15:]: a(f)
        a("s_nop 2")
        a(mf_q('A', 'E'))
        a("s_nop 9")
        a("s_waitcnt lgkmcnt(0)")
        a(mf_q('B', 'E'))
    else:
        if opt.bdelay == 3:
            a("s_waitcnt vmcnt(5)")
            a("s_barrier")
        a("s_waitcnt vmcnt(3) lgkmcnt(0)")
        stamp(2)
        a("s_barrier")
        for f in rd0[:13]: a(f)
        lgkm(4)
        for f in rd0[13:]: a(f)
        stamp(3)
        prep(0, True)
        a("s_nop 3")
        a("s_waitcnt lgkmcnt(0)")
    cut = opt.cut
    pos0 = int(opt.pos.split(',')[0])
    assert cut > pos0
    a.lab("L_first")
    stamp(5)
    for (i, k_, s_) in phase_list('E', opt):
        if not (i == pos0 and k_ == 'm'): a(s_)
    for (i, k_, s_) in phase_list('O', opt):
        if i < cut: a(s_)
    AL['on'] = False
    pE, pO = phase_list('E', opt), phase_list('O', opt)
    for (i, k_, s_) in pO:
        if i >= cut: a(s_)
    for (i, k_, s_) in pE: a(s_)
    for (i, k_, s_) in pO:
        if i < cut: a(s_)
    a("s_cbranch_scc0 L_topA")
    a("s_branch L_topB")
    a.lab("L_proB")
    AL['on'] = True
    if opt.bdelay == 3: a("s_barrier")
    if opt.bdelay != 2: qloads()
    a("s_waitcnt lgkmcnt(0)")
    stamp(2)
    a("s_barrier")
    if opt.bdelay == 2: qloads()
    for f in rd0[:13]: a(f)
    lgkm(4)
    for f in rd0[13:]: a(f)
    a("s_setprio 3")
    stamp(3)
    prep(0, True)
    AL['on'] = False
    a("s_setprio 1")
    quad()
    a("s_cmp_ge_u32 s24, 4")
    a("s_waitcnt lgkmcnt(0)")
    a("s_branch L_first")
    if opt.kxm: burst = ["s_mov_b32 exec_hi, 0", burst[0], "s_mov_b32 exec_hi, -1"] + burst[1:]
    for role in 'AB':
        a.raw("    .p2align 6")
        a.lab(f"L_top{role}")
        if role == 'A': a("s_setprio 0")
        a("s_add_u32 s29, s29, 1")
        for f in burst: a(f)
        a("s_cmp_lg_u32 s29, 31")
        a(f"s_cbranch_scc1 L_nl{role}")
        a("s_mov_b64 vcc, 1")
        a("s_waitcnt lgkmcnt(8)")
        for f in rd_v('T', 0, 1) + rd_v('T', 1, 1): a(f)
        a.lab(f"L_nl{role}")
        a(f"ds_add_rtn_u64 {vr(vK,2)}, v{vSlot}, {vr(vIncK,2)} offset:4096")
        if opt.stamp == 2:
            a("s_memtime s[80:81]"); a("s_memrealtime s[82:83]")
        a("s_cmp_gt_u32 s29, 4")
        a(f"s_cbranch_scc1 L_nd{role}")
        quad()
        if role == 'A':
            a("s_cmp_lg_u32 s29, 4")
            a("s_cbranch_scc1 L_ndA")
            quad()
        a.lab(f"L_nd{role}")
        a(f"s_cmp_lg_u32 s29, {b2-1}")
        a(f"s_cbranch_scc1 L_nw{role}")
        a("s_waitcnt vmcnt(0)")
        if opt.touch and role == 'A':
            a(f"buffer_load_dword v{vT2}, off, s[20:23], 0")
        a.lab(f"L_nw{role}")
        a(f"s_bitcmp1_b32 {'s33' if role == 'A' else 's32'}, s29")
        a("s_waitcnt lgkmcnt(0)")
        if opt.stamp == 2:
            a("s_mov_b32 s84, m0"); a("s_mov_b32 m0, s29")
            a("v_writelane_b32 v208, s80, m0"); a("v_writelane_b32 v209, s82, m0"); a("s_mov_b32 m0, s84")
        if role == 'B':
            a("s_cbranch_scc0 L_goB")
            a("s_waitcnt vmcnt(4)")
            a("s_barrier")
            a.lab("L_goB")
        first = True
        for (i, k_, s_) in pO:
            if i < cut: continue
            a(s_)
            if first and role == 'A': a("s_setprio 2")
            first = False
        for (i, k_, s_) in pE: a(s_)
        for (i, k_, s_) in pO:
            if i < cut: a(s_)
        if role == 'A':
            a("s_cbranch_scc0 L_topA")
            a("s_cbranch_vccnz L_tail")
            a("s_barrier")
            a("s_branch L_topA")
        else:
            a("s_cbranch_vccz L_topB")
    R = Sr['E']
    PK = {'A': Sr['E'] + 8, 'B': Sr['E'] + 14}
    OB = Sr['E'] + 20
    fl = opt.stfl.replace('_', ' ')
    def finish(t, ds=True):
        E, O = Or[(t, 'E')], Or[(t, 'O')]
        l, rc = (R, R + 2) if t == 'A' else (R + 1, R + 4)
        a(f"v_add_f32 v{l}, v{E+12}, v{O+12}")
        a(f"v_rcp_f32 v{rc}, v{l}")
        a(f"v_permlane32_swap_b32 v{O}, v{O+8}")
        a(f"v_permlane32_swap_b32 v{O+1}, v{O+9}")
        for j in (8, 0, 2, 4, 6):
            a(f"v_pk_add_f32 {vr(E+j,2)}, {vr(E+j,2)}, {vr(O+j+2,2)}")
        for j in (8, 0, 2, 4, 6):
            a(f"v_pk_mul_f32 {vr(E+j,2)}, {vr(E+j,2)}, {vr(rc,2)} op_sel_hi:[1,0]")
        st = vStA if t == 'A' else vStB
        for j in (4, 0, 1, 2, 3):
            a(f"v_cvt_pk_bf16_f32 v{PK[t]+j}, v{E+2*j}, v{E+2*j+1}")
        if not ds: return
        a(f"ds_write_b32 v{st}, v{PK[t]+4} offset:16")
        a(f"ds_write2_b32 v{st}, v{PK[t]}, v{PK[t]+1} offset0:0 offset1:1")
        a(f"ds_write2_b32 v{st}, v{PK[t]+2}, v{PK[t]+3} offset0:2 offset1:3")
        if t == 'A':
            a(f"ds_read_b128 {vr(OB,4)}, v{vStR}")
        else:
            a(f"ds_read_b128 {vr(OB+4,4)}, v{vStR} offset:1024")
            a(f"ds_read_b128 {vr(OB+8,4)}, v{vStR} offset:2048")
    def store(k): a(f"buffer_store_dwordx4 {vr(OB+4*k,4)}, v{vDma}, s[20:23], 0 offen offset:{1024*k} {fl}")
    def dot(t, j): a(f"v_dot2c_f32_bf16 v{R if t == 'A' else R+1}, 0, v{PK[t]+j}")
    a.lab("L_tail")
    tm = {10: mf_pv('A', 'O', 0, 'T'), 18: mf_pv('A', 'O', 1, 'T'), 26: mf_pv('B', 'O', 0, 'T')}
    for i in range(cut, 32):
        if i in tm: a(tm[i])
        if i == 29: finish('A', ds=(opt.tv == 0))
        a(ex('O', i))
    stamp(6)
    if opt.tv == 0:
        a("s_nop 1")
        a(mf_pv('B', 'O', 1, 'T'))
        a("s_nop 9")
        lgkm(0)
        store(0)
        finish('B')
    else:
        a(f"ds_write_b32 v{vStA}, v{PK['A']+4} offset:16")
        a(f"ds_write2_b32 v{vStA}, v{PK['A']}, v{PK['A']+1} offset0:0 offset1:1")
        a(mf_pv('B', 'O', 1, 'T'))
        a(f"ds_write2_b32 v{vStA}, v{PK['A']+2}, v{PK['A']+3} offset0:2 offset1:3")
        a(f"ds_read_b128 {vr(OB,4)}, v{vStR}")
        a("s_nop 9")
        n0 = len(a.l)
        finish('B')
        a.l[n0+opt.tv:n0+opt.tv] = ["    s_waitcnt lgkmcnt(0)", f"    buffer_store_dwordx4 {vr(OB,4)}, v{vDma}, s[20:23], 0 offen {fl}"]
    lgkm(1)
    store(1)
    lgkm(0)
    store(2)
    stamp(7)
    a("s_setprio 0")
    for t in 'AB':
        for j in range(5): dot(t, j)
    a(f"v_cmp_nge_f32 s[36:37], v{R}, 1.0")
    a(f"v_cmp_nle_f32 vcc, v{R}, s35")
    a("s_or_b64 s[36:37], s[36:37], vcc")
    a(f"v_cmp_nge_f32 s[38:39], v{R+1}, 1.0")
    a(f"v_cmp_nle_f32 vcc, v{R+1}, s35")
    a("s_or_b64 s[36:37], s[36:37], s[38:39]")
    a("s_or_b64 s[36:37], s[36:37], vcc")
    a("s_cbranch_scc1 L_check")
    a.lab("L_done")
    if opt.amp:
        a("s_waitcnt vmcnt(0)")
        stamp(8)
        a("s_memrealtime s[42:43]")
        a("s_waitcnt lgkmcnt(0)")
        a(f"s_sub_u32 s50, s{60+2*opt.ampb}, s{60+2*opt.ampa}")
        if opt.ampbase >= 0:
            a(f"s_max_u32 s50, s50, {opt.ampbase}")
            a(f"s_sub_u32 s50, s50, {opt.ampbase}")
            if opt.ampwg == -2:
                a("s_load_dwordx2 s[54:55], s[0:1], 32")
                a(f"s_cmp_lg_u32 s24, {3 if opt.ampr == 'A' else 7}")
                a("s_cbranch_scc1 L_end")
                a("s_add_u32 s51, s50, 0x1000000")
                a("s_mov_b64 exec, 1")
                a("v_mov_b32 v16, s51"); a("v_mov_b32 v17, 0")
                a("s_waitcnt lgkmcnt(0)")
                a("global_atomic_add v18, v17, v16, s[54:55] sc0 sc1")
                a("s_waitcnt vmcnt(0)")
                a("v_readfirstlane_b32 s51, v18")
                a("s_nop 3")
                a("s_add_u32 s50, s50, s51")
                a("s_and_b32 s50, s50, 0xffffff")
                a("s_lshr_b32 s50, s50, 8")
                a("s_lshr_b32 s51, s51, 24")
                a("s_cmp_lg_u32 s51, 255")
            elif opt.ampwg >= 0: a(f"s_cmp_lg_u32 s2, {opt.ampwg}")
            else: a("s_and_b32 s51, s2, 7")
            a("s_cselect_b32 s50, 0, s50")
        a(f"s_mul_i32 s50, s50, {opt.amp}")
        a("s_min_u32 s50, s50, 20000")
        if opt.ampr:
            a("s_cmp_lt_u32 s24, 4")
            a("s_cselect_b32 s50, s50, 0" if opt.ampr == 'A' else "s_cselect_b32 s50, 0, s50")
        a.lab("L_spin")
        a("s_sleep 2")
        a("s_memrealtime s[52:53]")
        a("s_waitcnt lgkmcnt(0)")
        a("s_sub_u32 s51, s52, s42")
        a("s_cmp_lt_u32 s51, s50")
        a("s_cbranch_scc1 L_spin")
    if opt.stamp:
        a("s_mov_b64 exec, 1")
        a("s_waitcnt vmcnt(0)")
        stamp(8)
        a("s_memrealtime s[58:59]")
        a("s_getreg_b32 s42, hwreg(HW_REG_HW_ID)")
        a("s_getreg_b32 s43, hwreg(HW_REG_XCC_ID)")
        a("s_waitcnt lgkmcnt(0)")
        for i, sr in enumerate((56, 58, 42, 43, 60, 62, 64, 66, 68, 70, 72, 74, 76)):
            a(f"v_mov_b32 v{16+i}, s{sr}")
        a("s_lshl_b32 s50, s2, 3"); a("s_add_u32 s50, s50, s24"); a("s_lshl_b32 s50, s50, 6")
        a("v_mov_b32 v1, s50")
        for i in range(4): a(f"global_store_dwordx4 v1, v[{16+4*i}:{19+4*i}], s[40:41] offset:{16*i}")
        if opt.stamp == 2:
            a("s_mov_b64 exec, -1")
            a("s_lshl_b32 s50, s50, 3"); a("s_add_u32 s50, s50, 0x100000")
            a("v_lshl_add_u32 v1, v0, 3, s50")
            a("global_store_dwordx2 v1, v[208:209], s[40:41]")
    a.lab("L_end")
    a("s_endpgm")
    a.lab("L_check")
    a("s_waitcnt vmcnt(0)")
    mA, mB = 0, vSlot
    if opt.stamp == 2: mA = 187
    def rewind(n):
        a(f"v_subrev_u32 v{vK}, {n*ST}, v{vK}")
        a(f"v_mul_u32_u24 v{vT2}, {n}, v{vIncV}")
        a(f"v_sub_u32 v{vV}, v{vV}, v{vT2}")
        a("s_mov_b32 s29, 0")
    def scores():
        a(f"buffer_load_dwordx2 {vr(KX,2)}, v{vK}, s[16:19], 0 offen offset:32")
        a(f"buffer_load_dwordx4 {vr(Kr['E'],4)}, v{vK}, s[16:19], 0 offen")
        a(f"buffer_load_dwordx4 {vr(Kr['O'],4)}, v{vK}, s[16:19], 0 offen offset:40")
        a("s_waitcnt vmcnt(0) lgkmcnt(0)")
        a(mf_x('E')); a(mf_x('O'))
        a("s_nop 15"); a("s_nop 3")
        for par in 'EO':
            for t in 'AB': a(mf_q(t, par))
        a("s_nop 15")
    def step(lab):
        a(f"v_add_u32 v{vK}, v{vIncK}, v{vK}")
        a(f"v_add_u32 v{vV}, v{vIncV}, v{vV}")
        a("s_add_u32 s29, s29, 1")
        a("s_cmp_lg_u32 s29, 32")
        a(f"s_cbranch_scc1 {lab}")
    rewind(31)
    a(f"v_mov_b32 v{mA}, 0xff800000"); a(f"v_mov_b32 v{mB}, 0xff800000")
    a.lab("L_max")
    scores()
    for par in 'EO':
        for t, m in (('A', mA), ('B', mB)):
            s = Sr[par] + (16 if t == 'B' else 0)
            for j in range(0, 16, 2): a(f"v_max3_f32 v{m}, v{m}, v{s+j}, v{s+j+1}")
    step("L_max")
    for m in (mA, mB):
        a(f"v_mov_b32 v{vT2}, v{m}")
        a("s_nop 1")
        a(f"v_permlane32_swap_b32 v{vT2}, v{m}")
        a("s_nop 1")
        a(f"v_max_f32 v{m}, v{m}, v{vT2}")
    rewind(32)
    for r in range(120, 184): a(f"v_mov_b32 v{r}, 0")
    a.lab("L_acc")
    for par in 'EO':
        for j in range(2):
            for f in rd_v(par, j, 0): a(f)
    scores()
    for par in 'EO':
        for t, m in (('A', mA), ('B', mB)):
            s = Sr[par] + (16 if t == 'B' else 0)
            for j in range(16): a(f"v_sub_f32 v{s+j}, v{s+j}, v{m}")
            for j in range(16): a(f"v_exp_f32 v{s+j}, v{s+j}")
    a("s_nop 1")
    for par in 'EO':
        for t in 'AB':
            for j in range(2): a(mf_pv(t, par, j))
    step("L_acc")
    a("s_nop 15")
    finish('A'); finish('B')
    a("s_waitcnt lgkmcnt(0)")
    for k in range(3): store(k)
    a("s_branch L_done")
    nv = 212 if opt.stamp == 2 else NV
    a.raw(f""".section .rodata,"a"
.p2align 6
.amdhsa_kernel {NAME}_kernel
  .amdhsa_next_free_vgpr {nv}
  .amdhsa_next_free_sgpr {90 if (opt.stamp or opt.amp) else 48}
  .amdhsa_accum_offset {nv}
  .amdhsa_group_segment_fixed_size 0
  .amdhsa_kernarg_size 48
  .amdhsa_user_sgpr_count 2
  .amdhsa_user_sgpr_kernarg_segment_ptr 1
  .amdhsa_system_sgpr_workgroup_id_x 1
.end_amdhsa_kernel""")
    return a.text()

def parse(argv):
    p = argparse.ArgumentParser()
    p.add_argument('-o', default=f"cdna_kernels/{NAME}.s")
    p.add_argument('--grp', default='2,2')
    p.add_argument('--pf', type=int, default=1)
    p.add_argument('--kxm', type=int, default=0)
    p.add_argument('--qfirst', type=int, default=1)
    p.add_argument('--probe', default='')
    p.add_argument('--ampwg', type=int, default=-1)
    p.add_argument('--tv', type=int, default=0)
    p.add_argument('--touch', type=int, default=0)
    p.add_argument('--b05', type=int, default=0)
    p.add_argument('--b1', type=int, default=3)
    p.add_argument('--b2', type=int, default=7)
    p.add_argument('--bdelay', type=int, default=1)
    p.add_argument('--cut', type=int, default=4)
    p.add_argument('--pos', default='2,5,15,18,21,31,25')
    p.add_argument('--tpos', default='2,5,13,18,21,26,29')
    p.add_argument('--stfl', default='sc1')
    p.add_argument('--ldfl', default='')
    p.add_argument('--qfl', default='')
    p.add_argument('--stamp', type=int, default=0)
    p.add_argument('--amp', type=int, default=0)
    p.add_argument('--ampa', type=int, default=0)
    p.add_argument('--ampb', type=int, default=8)
    p.add_argument('--ampr', default='')
    p.add_argument('--ampbase', type=int, default=-1)
    return p.parse_args(argv)

if __name__ == '__main__':
    opt = parse(sys.argv[1:])
    open(opt.o, 'w').write(gen(opt))
```

```python
import sys, struct, math, argparse

NAME = "standalone__fused_io_aware_attn__prompt"
HB = 73728
ST = 2304
VBASE = HB
CBASE = 2 * HB
ABASE = CBASE + 4096
XBASE = ABASE + 4096
LDS = XBASE + 3 * ST + 1024

def f2u(x): return struct.unpack('<I', struct.pack('<f', x))[0]
CSCALE = f2u(math.log2(math.e) / math.sqrt(18.0))

vK, vV = 2, 3
vIncK, vIncV = 4, 5
vSlot, vIdx, vQo, vDma = 1, 6, 7, 14
vT2 = 15
KX = 8
QX = {'E': 10, 'O': 12}
Kr = {'E': 16, 'O': 20}
Qr = {('A', 'E'): 24, ('B', 'E'): 28, ('A', 'O'): 32, ('B', 'O'): 36}
Vr = {('E', 0): 40, ('E', 1): 44, ('O', 0): 48, ('O', 1): 52}
Sr = {'E': 56, 'O': 88}
Or = {('A', 'E'): 120, ('B', 'E'): 136, ('A', 'O'): 152, ('B', 'O'): 168}
vStA, vStB, vStR = 184, 185, 186
Vr[('T', 0)] = 188; Vr[('T', 1)] = 192
KX0, KE0, KO0 = 196, 198, 202
NV = 208
AL = dict(on=False)
def kx(): return KX0 if AL['on'] else KX
def kr(par): return {'E': KE0, 'O': KO0}[par] if AL['on'] else Kr[par]
def vv(par, j): return Vr[('T', j)] if (AL['on'] and par == 'E') else Vr[(par, j)]

def vr(b, n): return f"v[{b}:{b+n-1}]"

class Asm:
    def __init__(self): self.l = []
    def __call__(self, s): self.l.append("    " + s)
    def lab(self, s): self.l.append(s + ":")
    def raw(self, s): self.l.append(s)
    def text(self): return "\n".join(self.l) + "\n"

def mf_x(par):
    return f"v_mfma_f32_32x32x4_2b_bf16 {vr(Sr[par],32)}, {vr(kx(),2)}, {vr(QX[par],2)}, 0 cbsz:1 abid:0"
def mf_q(t, par):
    s = Sr[par] + (16 if t == 'B' else 0)
    return f"v_mfma_f32_32x32x16_bf16 {vr(s,16)}, {vr(kr(par),4)}, {vr(Qr[(t,par)],4)}, {vr(s,16)}"
def mf_pv(t, par, j, vs=None):
    s = Sr[par] + (16 if t == 'B' else 0) + 8 * j
    return f"v_smfmac_f32_32x32x32_bf16 {vr(Or[(t,par)],16)}, {vr(vv(vs or par,j),4)}, {vr(s,8)}, v{vIdx}"
def ex(par, i): return f"v_exp_f32 v{Sr[par]+i}, v{Sr[par]+i}"
def rd_kx(u): return [f"ds_read_b64 {vr(kx(),2)}, v{vK} offset:{u*ST+32}"]
def rd_k(par, u):
    o = u * ST + (40 if par == 'O' else 0)
    return [f"ds_read_b64 {vr(kr(par),2)}, v{vK} offset:{o}", f"ds_read_b64 {vr(kr(par)+2,2)}, v{vK} offset:{o+8}"]
def rd_v(par, j, u):
    o = u * ST + (32 if par != 'E' else 0) + 16 * j * 72
    return [f"ds_read_b64_tr_b16 {vr(vv(par,j),2)}, v{vV} offset:{o}", f"ds_read_b64_tr_b16 {vr(vv(par,j)+2,2)}, v{vV} offset:{o+4*72}"]

def phase_list(par, opt, look=True):
    oth = 'O' if par == 'E' else 'E'
    pos = [int(x) for x in (opt.pos if look else opt.tpos).split(',')]
    mf = {pos[0]: mf_pv('B', oth, 1), pos[2]: mf_pv('A', par, 0), pos[3]: mf_pv('A', par, 1), pos[5]: mf_pv('B', par, 0)}
    if look:
        mf.update({pos[1]: mf_x(oth), pos[4]: mf_q('A', oth), pos[6]: mf_q('B', oth)})
    out = []
    for i in range(32):
        if i in mf: out.append((i, 'm', mf[i]))
        out.append((i, 'e', ex(par, i)))
    return out

def gen(opt):
    a = Asm()
    def stamp(i):
        if opt.stamp and (opt.stamp != 3 or i in (0, 7, 8)): a(f"s_memtime s[{60+2*i}:{61+2*i}]")
        if opt.amp and i in (opt.ampa, opt.ampb): a(f"{'s_memtime' if opt.ampbase >= 0 else 's_memrealtime'} s[{60+2*i}:{61+2*i}]")
    smem = opt.stamp in (1, 2) or (opt.amp and not (opt.ampa in (0, 7) and opt.ampb in (7, 8)))
    def lgkm(n): a(f"s_waitcnt lgkmcnt({0 if smem else n})")
    a.raw(f"""; Fused attention forward, B=2 H=32 S=2048 D=18, bf16 in/out (written by my generator gen/gen8.py).
; @launch grid=(256,1,1) block=(512,1,1) lds={LDS}
.amdgcn_target "amdgcn-amd-amdhsa--gfx950"
.text
.globl {NAME}_kernel
.p2align 8
.type {NAME}_kernel,@function
{NAME}_kernel:""")
    stamp(0)
    if opt.stamp: a("s_memrealtime s[56:57]")
    a("s_load_dwordx8 s[4:11], s[0:1], 0")
    if opt.pf:
        a("s_getpc_b64 s[36:37]")
        a(f"v_mul_u32_u24 v{vT2}, 9, v0")
        a(f"global_load_ubyte v{vT2}, v{vT2}, s[36:37] offset:116")
    a("v_readfirstlane_b32 s24, v0")
    a("s_and_b32 s3, s2, 7")
    a("s_lshr_b32 s25, s2, 3")
    a("s_lshl_b32 s3, s3, 5")
    a("s_add_u32 s3, s3, s25")
    a("s_cmpk_ge_u32 s2, 256")
    a("s_cbranch_scc1 L_end")
    a(f"v_lshl_add_u32 v{vQo}, s3, 9, v0")
    a(f"v_mul_u32_u24 v{vQo}, 36, v{vQo}")
    a("s_cmpk_ge_u32 s24, 256")
    a("s_cbranch_scc1 L_setup")
    t0, t1 = Sr['E'] + 8, Sr['E'] + 9
    T = Sr['O']
    ldf = opt.ldfl.replace('_', ' ')
    qf = opt.qfl.replace('_', ' ')
    def qloads():
        a(f"global_load_dword v{T+8}, v{vQo}, s[4:5] offset:32 {qf}")
        a(f"global_load_dwordx4 {vr(T,4)}, v{vQo}, s[4:5] {qf}")
        a(f"global_load_dwordx4 {vr(T+4,4)}, v{vQo}, s[4:5] offset:16 {qf}")
    def addr0():
        a("s_lshl_b32 m0, s24, 5")
        a("s_lshr_b32 s25, s3, 2")
        a(f"s_mul_i32 s25, s25, {HB}")
        a("s_lshl4_add_u32 s26, s24, s25")
        a(f"v_lshl_add_u32 v{t0}, v0, 4, s26")
    def quad0():
        a(f"global_load_lds_dwordx4 v{t0}, s[6:7] {ldf}")
        a(f"global_load_lds_dwordx4 v{t0}, s[6:7] offset:1024 {ldf}")
        a(f"s_add_u32 m0, m0, {VBASE}")
        a("s_nop 0")
        a(f"global_load_lds_dwordx4 v{t0}, s[8:9] {ldf}")
        a(f"global_load_lds_dwordx4 v{t0}, s[8:9] offset:1024 {ldf}")
    if opt.qfirst:
        a("s_waitcnt lgkmcnt(0)")
        stamp(1)
        qloads(); addr0(); quad0()
    else:
        addr0()
        a("s_waitcnt lgkmcnt(0)")
        stamp(1)
        quad0(); qloads()
    a.lab("L_setup")
    if opt.stamp:
        a("s_load_dwordx2 s[40:41], s[0:1], 40")
        if opt.stamp == 3:
            for i in range(62, 74): a(f"s_mov_b32 s{i}, 0")
    a(f"v_lshlrev_b32 v{vSlot}, 3, v0")
    a("v_and_b32 v0, 63, v0")
    a("s_lshr_b32 s24, s24, 6")
    a("s_lshr_b32 s25, s3, 2")
    a(f"s_mul_i32 s25, s25, {HB}")
    a("s_lshl3_add_u32 s26, s3, s24")
    a(f"s_mul_i32 s26, s26, {ST}")
    a(f"v_lshlrev_b32 v{vDma}, 4, v0")
    a("s_lshl_b32 s27, s24, 11")
    a("s_cmp_lt_u32 s24, 4")
    a("s_cselect_b32 s28, 16384, 0")
    a("s_add_u32 s27, s27, s28")
    a("s_mov_b32 m0, s27")
    a(f"s_mov_b32 s18, {HB}")
    a("s_mov_b32 s19, 0x00020000")
    a(f"s_mov_b32 s46, {HB}")
    a("s_mov_b32 s47, 0x00020000")
    def quad():
        a(f"buffer_load_dwordx4 v{vDma}, s[16:19], s27 offen lds {ldf}")
        a(f"buffer_load_dwordx4 v{vDma}, s[16:19], s27 offen offset:1024 lds {ldf}")
        a("s_add_u32 m0, s27, s18")
        a("s_nop 0")
        a(f"buffer_load_dwordx4 v{vDma}, s[44:47], s27 offen lds {ldf}")
        a(f"buffer_load_dwordx4 v{vDma}, s[44:47], s27 offen offset:1024 lds {ldf}")
        a("s_add_u32 m0, s27, 16384")
        a("s_add_u32 s27, s27, 16384")
    a("s_waitcnt lgkmcnt(0)")
    a("s_add_u32 s16, s6, s25")
    a("s_addc_u32 s17, s7, 0")
    a("s_add_u32 s44, s8, s25")
    a("s_addc_u32 s45, s9, 0")
    a(f"v_and_b32 v{t0}, 31, v0")
    a(f"v_lshrrev_b32 v{t1}, 5, v0")
    a("s_add_u32 s20, s10, s26")
    a("s_addc_u32 s21, s11, 0")
    a(f"s_movk_i32 s22, {ST}")
    a("s_mov_b32 s23, 0x00020000")
    C = Sr['E']
    a(f"v_and_b32 v{C}, 1, v0")
    a(f"v_subrev_u32 v{C}, 1, v{C}")
    a(f"v_and_b32 v{C}, 0x3f80, v{C}")
    a(f"v_mov_b32 v{C+1}, 0")
    a(f"v_add_u32 v{vSlot}, {CBASE}, v{vSlot}")
    a(f"ds_write_b64 v{vSlot}, {vr(C,2)}")
    a(f"v_mov_b32 v{QX['E']}, 0"); a(f"v_mov_b32 v{QX['E']+1}, 0"); a(f"v_mov_b32 v{QX['O']}, 0")
    a(f"v_mul_u32_u24 v{vK}, 72, v{t0}")
    a(f"v_lshl_add_u32 v{vK}, v{t1}, 4, v{vK}")
    a(f"v_mfma_f32_32x32x4_2b_bf16 {vr(120,32)}, {vr(QX['E'],2)}, {vr(QX['E'],2)}, 0")
    a(f"v_mfma_f32_32x32x4_2b_bf16 {vr(152,32)}, {vr(QX['E'],2)}, {vr(QX['E'],2)}, 0")
    t3, t4, t5 = C + 4, C + 5, C + 6
    a(f"v_bfe_u32 v{t3}, v0, 2, 2")
    a(f"v_lshl_add_u32 v{t3}, v{t1}, 3, v{t3}")
    a(f"v_mul_u32_u24 v{t3}, 72, v{t3}")
    a(f"v_and_b32 v{t4}, 1, v0")
    a(f"v_lshl_add_u32 v{t3}, v{t4}, 4, v{t3}")
    a(f"v_and_b32 v{t4}, 2, v0")
    a(f"v_lshl_add_u32 v{t3}, v{t4}, 2, v{t3}")
    a(f"v_lshlrev_b32 v{t5}, 6, v{t1}")
    a(f"v_lshlrev_b32 v{t4}, 2, v{t4}")
    a(f"v_sub_u32 v{t5}, v{t5}, v{t4}")
    a(f"v_add_u32 v{t5}, {CBASE+56}, v{t5}")
    a(f"v_and_b32 v{t4}, 16, v0")
    a(f"v_add3_u32 v{t3}, v{t4}, v{t3}, s18")
    a("s_mov_b32 vcc_lo, 0xdddd0000"); a("s_mov_b32 vcc_hi, 0xdddd0000")
    a(f"v_mov_b32 v{vIdx}, 0xdddd")
    a(f"v_mov_b32 v{vIncK}, {ST}")
    a(f"v_cndmask_b32 v{vIncV}, v{vIncK}, 0, vcc")
    a(f"v_cndmask_b32 v{vV}, v{t3}, v{t5}, vcc")
    a(f"v_add_u32 v{C+2}, v{vK}, v{vIncK}")
    a(f"v_add_u32 v{C+3}, v{vV}, v{vIncV}")
    a(f"ds_write_b64 v{vSlot}, {vr(C+2,2)} offset:4096")
    a(f"s_mul_i32 s28, s24, {ST}")
    a("s_cmp_ge_u32 s24, 5")
    a(f"s_cselect_b32 s29, {XBASE - 5*ST}, 0")
    a("s_add_u32 s28, s28, s29")
    a(f"v_mul_u32_u24 v{vStA}, 36, v{t0}")
    a(f"v_lshl_add_u32 v{vStA}, v{t1}, 4, v{vStA}")
    a(f"v_add_u32 v{vStA}, s28, v{vStA}")
    a(f"v_add_u32 v{vStB}, 1152, v{vStA}")
    a(f"v_add_u32 v{vStR}, s28, v{vDma}")
    a(f"s_mov_b32 s30, {CSCALE:#x}"); a(f"s_mov_b32 s31, {CSCALE:#x}")
    a("s_mov_b32 s29, 1")
    b1, b2 = opt.b1, opt.b2
    assert b1 == 3 and 6 <= b2 <= 7
    a(f"s_mov_b32 s32, {(1 << (b1-1)) | (1 << (b2-1)):#x}")
    a(f"s_mov_b32 s33, {(1 << (b1-1)) | (1 << (b2-1)) | (1 << 31):#x}")
    a("s_mov_b32 s35, 0x6c800000")
    a("s_mov_b64 vcc, 0")
    a("s_cmp_ge_u32 s24, 4")
    a("s_cbranch_scc1 L_proB")
    burst = rd_kx(1) + rd_v('O', 0, 0) + rd_k('E', 1) + rd_v('O', 1, 0) + rd_v('E', 0, 1) + rd_v('E', 1, 1) + rd_k('O', 1)
    bump = f"ds_add_rtn_u64 {vr(vK,2)}, v{vSlot}, {vr(vIncK,2)} offset:4096"
    AL['on'] = True
    rd0 = rd_kx(0) + rd_k('E', 0) + rd_k('O', 0) + rd_v('E', 0, 0) + rd_v('E', 1, 0) + burst + [bump]
    W = T + 10
    wof = {}
    def unpack(src, k):
        w = W + 2 * k; wof[src] = w
        a(f"v_lshlrev_b32 v{w}, 16, v{src}")
        a(f"v_and_b32 v{w+1}, 0xffff0000, v{src}")
        a(f"v_pk_mul_f32 {vr(w,2)}, {vr(w,2)}, s[30:31]")
    def pack(src, d): a(f"v_cvt_pk_bf16_f32 v{d}, v{wof[src]}, v{wof[src]+1}")
    QAE, QBE, QAO, QBO = Qr[('A','E')], Qr[('B','E')], Qr[('A','O')], Qr[('B','O')]
    def prep(nlater, mfma):
        a(f"s_waitcnt vmcnt({2+nlater})")
        if not mfma and opt.bdelay == 3: a("s_barrier")
        unpack(T + 8, 8)
        pack(T + 8, QX['E']); pack(T + 8, QBO + 3)
        a(f"s_waitcnt vmcnt({1+nlater})")
        if mfma: a(mf_x('E'))
        for j in range(4): unpack(T + j, j)
        for j in range(4): pack(T + j, QAE + j)
        pack(T, QX['O'] + 1)
        a(f"s_waitcnt vmcnt({nlater})")
        stamp(4)
        for j in range(4, 8): unpack(T + j, j)
        for j in range(4): pack(T + 4 + j, QBE + j)
        for j in range(4): a(f"v_permlane32_swap_b32 v{QAE+j}, v{QBE+j}")
        pack(T + 4, QAO + 3)
        a(f"v_mov_b32 v{QAO}, v{QAE+1}")
        if mfma: a(mf_q('A', 'E'))
        a(f"v_mov_b32 v{QAO+1}, v{QAE+2}")
        a(f"v_permlane32_swap_b32 v{QAO+3}, v{QBO+3}")
        a(f"v_mov_b32 v{QAO+2}, v{QAE+3}")
        for j in range(0, 3): a(f"v_mov_b32 v{QBO+j}, v{QBE+j+1}")
        if mfma: a(mf_q('B', 'E'))
    a("s_setprio 2")
    if opt.qfirst:
        prep(4, False)
        a("s_waitcnt vmcnt(0) lgkmcnt(0)")
        stamp(2)
        a("s_barrier")
        for f in rd0[:9]: a(f)
        lgkm(8)
        stamp(3)
        a(mf_x('E'))
        for f in rd0[9:15]: a(f)
        lgkm(7)
        for f in rd0[15:]: a(f)
        a("s_nop 2")
        a(mf_q('A', 'E'))
        a("s_nop 9")
        a("s_waitcnt lgkmcnt(0)")
        a(mf_q('B', 'E'))
    else:
        if opt.bdelay == 3:
            a("s_waitcnt vmcnt(5)")
            a("s_barrier")
        a("s_waitcnt vmcnt(3) lgkmcnt(0)")
        stamp(2)
        a("s_barrier")
        for f in rd0[:13]: a(f)
        lgkm(4)
        for f in rd0[13:]: a(f)
        stamp(3)
        prep(0, True)
        a("s_nop 3")
        a("s_waitcnt lgkmcnt(0)")
    cut = opt.cut
    pos0 = int(opt.pos.split(',')[0])
    assert cut > pos0
    a.lab("L_first")
    stamp(5)
    for (i, k_, s_) in phase_list('E', opt):
        if not (i == pos0 and k_ == 'm'): a(s_)
    for (i, k_, s_) in phase_list('O', opt):
        if i < cut: a(s_)
    AL['on'] = False
    pE, pO = phase_list('E', opt), phase_list('O', opt)
    for (i, k_, s_) in pO:
        if i >= cut: a(s_)
    for (i, k_, s_) in pE: a(s_)
    for (i, k_, s_) in pO:
        if i < cut: a(s_)
    a("s_cbranch_scc0 L_topA")
    a("s_branch L_topB")
    a.lab("L_proB")
    AL['on'] = True
    if opt.bdelay == 3: a("s_barrier")
    if opt.bdelay != 2: qloads()
    a("s_waitcnt lgkmcnt(0)")
    stamp(2)
    a("s_barrier")
    if opt.bdelay == 2: qloads()
    for f in rd0[:13]: a(f)
    lgkm(4)
    for f in rd0[13:]: a(f)
    a("s_setprio 3")
    stamp(3)
    prep(0, True)
    AL['on'] = False
    a("s_setprio 1")
    quad()
    a("s_cmp_ge_u32 s24, 4")
    a("s_waitcnt lgkmcnt(0)")
    a("s_branch L_first")
    if opt.kxm: burst = ["s_mov_b32 exec_hi, 0", burst[0], "s_mov_b32 exec_hi, -1"] + burst[1:]
    for role in 'AB':
        a.raw("    .p2align 6")
        a.lab(f"L_top{role}")
        if role == 'A': a("s_setprio 0")
        a("s_add_u32 s29, s29, 1")
        for f in burst: a(f)
        a("s_cmp_lg_u32 s29, 31")
        a(f"s_cbranch_scc1 L_nl{role}")
        a("s_mov_b64 vcc, 1")
        a("s_waitcnt lgkmcnt(8)")
        for f in rd_v('T', 0, 1) + rd_v('T', 1, 1): a(f)
        a.lab(f"L_nl{role}")
        a(f"ds_add_rtn_u64 {vr(vK,2)}, v{vSlot}, {vr(vIncK,2)} offset:4096")
        if opt.stamp == 2:
            a("s_memtime s[80:81]"); a("s_memrealtime s[82:83]")
        a("s_cmp_gt_u32 s29, 4")
        a(f"s_cbranch_scc1 L_nd{role}")
        quad()
        if role == 'A':
            a("s_cmp_lg_u32 s29, 4")
            a("s_cbranch_scc1 L_ndA")
            quad()
        a.lab(f"L_nd{role}")
        a(f"s_cmp_lg_u32 s29, {b2-1}")
        a(f"s_cbranch_scc1 L_nw{role}")
        a("s_waitcnt vmcnt(0)")
        if opt.touch and role == 'A':
            a(f"buffer_load_dword v{vT2}, off, s[20:23], 0")
        a.lab(f"L_nw{role}")
        a(f"s_bitcmp1_b32 {'s33' if role == 'A' else 's32'}, s29")
        a("s_waitcnt lgkmcnt(0)")
        if opt.stamp == 2:
            a("s_mov_b32 s84, m0"); a("s_mov_b32 m0, s29")
            a("v_writelane_b32 v208, s80, m0"); a("v_writelane_b32 v209, s82, m0"); a("s_mov_b32 m0, s84")
        if role == 'B':
            a("s_cbranch_scc0 L_goB")
            a("s_waitcnt vmcnt(4)")
            a("s_barrier")
            a.lab("L_goB")
        first = True
        for (i, k_, s_) in pO:
            if i < cut: continue
            a(s_)
            if first and role == 'A': a("s_setprio 2")
            first = False
        for (i, k_, s_) in pE: a(s_)
        for (i, k_, s_) in pO:
            if i < cut: a(s_)
        if role == 'A':
            a("s_cbranch_scc0 L_topA")
            a("s_cbranch_vccnz L_tail")
            a("s_barrier")
            a("s_branch L_topA")
        else:
            a("s_cbranch_vccz L_topB")
    R = Sr['E']
    PK = {'A': Sr['E'] + 8, 'B': Sr['E'] + 14}
    OB = Sr['E'] + 20
    fl = opt.stfl.replace('_', ' ')
    def finish(t, ds=True):
        E, O = Or[(t, 'E')], Or[(t, 'O')]
        l, rc = (R, R + 2) if t == 'A' else (R + 1, R + 4)
        a(f"v_add_f32 v{l}, v{E+12}, v{O+12}")
        a(f"v_rcp_f32 v{rc}, v{l}")
        a(f"v_permlane32_swap_b32 v{O}, v{O+8}")
        a(f"v_permlane32_swap_b32 v{O+1}, v{O+9}")
        for j in (8, 0, 2, 4, 6):
            a(f"v_pk_add_f32 {vr(E+j,2)}, {vr(E+j,2)}, {vr(O+j+2,2)}")
        for j in (8, 0, 2, 4, 6):
            a(f"v_pk_mul_f32 {vr(E+j,2)}, {vr(E+j,2)}, {vr(rc,2)} op_sel_hi:[1,0]")
        st = vStA if t == 'A' else vStB
        for j in (4, 0, 1, 2, 3):
            a(f"v_cvt_pk_bf16_f32 v{PK[t]+j}, v{E+2*j}, v{E+2*j+1}")
        if not ds: return
        a(f"ds_write_b32 v{st}, v{PK[t]+4} offset:16")
        a(f"ds_write2_b32 v{st}, v{PK[t]}, v{PK[t]+1} offset0:0 offset1:1")
        a(f"ds_write2_b32 v{st}, v{PK[t]+2}, v{PK[t]+3} offset0:2 offset1:3")
        if t == 'A':
            a(f"ds_read_b128 {vr(OB,4)}, v{vStR}")
        else:
            a(f"ds_read_b128 {vr(OB+4,4)}, v{vStR} offset:1024")
            a(f"ds_read_b128 {vr(OB+8,4)}, v{vStR} offset:2048")
    def store(k): a(f"buffer_store_dwordx4 {vr(OB+4*k,4)}, v{vDma}, s[20:23], 0 offen offset:{1024*k} {fl}")
    def dot(t, j): a(f"v_dot2c_f32_bf16 v{R if t == 'A' else R+1}, 0, v{PK[t]+j}")
    a.lab("L_tail")
    tm = {10: mf_pv('A', 'O', 0, 'T'), 18: mf_pv('A', 'O', 1, 'T'), 26: mf_pv('B', 'O', 0, 'T')}
    for i in range(cut, 32):
        if i in tm: a(tm[i])
        if i == 29: finish('A', ds=(opt.tv == 0))
        a(ex('O', i))
    stamp(6)
    if opt.tv == 0:
        a("s_nop 1")
        a(mf_pv('B', 'O', 1, 'T'))
        a("s_nop 9")
        lgkm(0)
        store(0)
        finish('B')
    else:
        a(f"ds_write_b32 v{vStA}, v{PK['A']+4} offset:16")
        a(f"ds_write2_b32 v{vStA}, v{PK['A']}, v{PK['A']+1} offset0:0 offset1:1")
        a(mf_pv('B', 'O', 1, 'T'))
        a(f"ds_write2_b32 v{vStA}, v{PK['A']+2}, v{PK['A']+3} offset0:2 offset1:3")
        a(f"ds_read_b128 {vr(OB,4)}, v{vStR}")
        a("s_nop 9")
        n0 = len(a.l)
        finish('B')
        a.l[n0+opt.tv:n0+opt.tv] = ["    s_waitcnt lgkmcnt(0)", f"    buffer_store_dwordx4 {vr(OB,4)}, v{vDma}, s[20:23], 0 offen {fl}"]
    lgkm(1)
    store(1)
    lgkm(0)
    store(2)
    stamp(7)
    a("s_setprio 0")
    for t in 'AB':
        for j in range(5): dot(t, j)
    a(f"v_cmp_nge_f32 s[36:37], v{R}, 1.0")
    a(f"v_cmp_nle_f32 vcc, v{R}, s35")
    a("s_or_b64 s[36:37], s[36:37], vcc")
    a(f"v_cmp_nge_f32 s[38:39], v{R+1}, 1.0")
    a(f"v_cmp_nle_f32 vcc, v{R+1}, s35")
    a("s_or_b64 s[36:37], s[36:37], s[38:39]")
    a("s_or_b64 s[36:37], s[36:37], vcc")
    a("s_cbranch_scc1 L_check")
    a.lab("L_done")
    if opt.amp:
        a("s_waitcnt vmcnt(0)")
        stamp(8)
        a("s_memrealtime s[42:43]")
        a("s_waitcnt lgkmcnt(0)")
        a(f"s_sub_u32 s50, s{60+2*opt.ampb}, s{60+2*opt.ampa}")
        if opt.ampbase >= 0:
            a(f"s_max_u32 s50, s50, {opt.ampbase}")
            a(f"s_sub_u32 s50, s50, {opt.ampbase}")
            if opt.ampwg == -2:
                a("s_load_dwordx2 s[54:55], s[0:1], 32")
                a(f"s_cmp_lg_u32 s24, {3 if opt.ampr == 'A' else 7}")
                a("s_cbranch_scc1 L_end")
                a("s_add_u32 s51, s50, 0x1000000")
                a("s_mov_b64 exec, 1")
                a("v_mov_b32 v16, s51"); a("v_mov_b32 v17, 0")
                a("s_waitcnt lgkmcnt(0)")
                a("global_atomic_add v18, v17, v16, s[54:55] sc0 sc1")
                a("s_waitcnt vmcnt(0)")
                a("v_readfirstlane_b32 s51, v18")
                a("s_nop 3")
                a("s_add_u32 s50, s50, s51")
                a("s_and_b32 s50, s50, 0xffffff")
                a("s_lshr_b32 s50, s50, 8")
                a("s_lshr_b32 s51, s51, 24")
                a("s_cmp_lg_u32 s51, 255")
            elif opt.ampwg >= 0: a(f"s_cmp_lg_u32 s2, {opt.ampwg}")
            else: a("s_and_b32 s51, s2, 7")
            a("s_cselect_b32 s50, 0, s50")
        a(f"s_mul_i32 s50, s50, {opt.amp}")
        a("s_min_u32 s50, s50, 20000")
        if opt.ampr:
            a("s_cmp_lt_u32 s24, 4")
            a("s_cselect_b32 s50, s50, 0" if opt.ampr == 'A' else "s_cselect_b32 s50, 0, s50")
        a.lab("L_spin")
        a("s_sleep 2")
        a("s_memrealtime s[52:53]")
        a("s_waitcnt lgkmcnt(0)")
        a("s_sub_u32 s51, s52, s42")
        a("s_cmp_lt_u32 s51, s50")
        a("s_cbranch_scc1 L_spin")
    if opt.stamp:
        a("s_mov_b64 exec, 1")
        a("s_waitcnt vmcnt(0)")
        stamp(8)
        a("s_memrealtime s[58:59]")
        a("s_getreg_b32 s42, hwreg(HW_REG_HW_ID)")
        a("s_getreg_b32 s43, hwreg(HW_REG_XCC_ID)")
        a("s_waitcnt lgkmcnt(0)")
        for i, sr in enumerate((56, 58, 42, 43, 60, 62, 64, 66, 68, 70, 72, 74, 76)):
            a(f"v_mov_b32 v{16+i}, s{sr}")
        a("s_lshl_b32 s50, s2, 3"); a("s_add_u32 s50, s50, s24"); a("s_lshl_b32 s50, s50, 6")
        a("v_mov_b32 v1, s50")
        for i in range(4): a(f"global_store_dwordx4 v1, v[{16+4*i}:{19+4*i}], s[40:41] offset:{16*i}")
        if opt.stamp == 2:
            a("s_mov_b64 exec, -1")
            a("s_lshl_b32 s50, s50, 3"); a("s_add_u32 s50, s50, 0x100000")
            a("v_lshl_add_u32 v1, v0, 3, s50")
            a("global_store_dwordx2 v1, v[208:209], s[40:41]")
    a.lab("L_end")
    a("s_endpgm")
    a.lab("L_check")
    a("s_waitcnt vmcnt(0)")
    mA, mB = 0, vSlot
    if opt.stamp == 2: mA = 187
    def rewind(n):
        a(f"v_subrev_u32 v{vK}, {n*ST}, v{vK}")
        a(f"v_mul_u32_u24 v{vT2}, {n}, v{vIncV}")
        a(f"v_sub_u32 v{vV}, v{vV}, v{vT2}")
        a("s_mov_b32 s29, 0")
    def scores():
        a(f"buffer_load_dwordx2 {vr(KX,2)}, v{vK}, s[16:19], 0 offen offset:32")
        a(f"buffer_load_dwordx4 {vr(Kr['E'],4)}, v{vK}, s[16:19], 0 offen")
        a(f"buffer_load_dwordx4 {vr(Kr['O'],4)}, v{vK}, s[16:19], 0 offen offset:40")
        a("s_waitcnt vmcnt(0) lgkmcnt(0)")
        a(mf_x('E')); a(mf_x('O'))
        a("s_nop 15"); a("s_nop 3")
        for par in 'EO':
            for t in 'AB': a(mf_q(t, par))
        a("s_nop 15")
    def step(lab):
        a(f"v_add_u32 v{vK}, v{vIncK}, v{vK}")
        a(f"v_add_u32 v{vV}, v{vIncV}, v{vV}")
        a("s_add_u32 s29, s29, 1")
        a("s_cmp_lg_u32 s29, 32")
        a(f"s_cbranch_scc1 {lab}")
    rewind(31)
    a(f"v_mov_b32 v{mA}, 0xff800000"); a(f"v_mov_b32 v{mB}, 0xff800000")
    a.lab("L_max")
    scores()
    for par in 'EO':
        for t, m in (('A', mA), ('B', mB)):
            s = Sr[par] + (16 if t == 'B' else 0)
            for j in range(0, 16, 2): a(f"v_max3_f32 v{m}, v{m}, v{s+j}, v{s+j+1}")
    step("L_max")
    for m in (mA, mB):
        a(f"v_mov_b32 v{vT2}, v{m}")
        a("s_nop 1")
        a(f"v_permlane32_swap_b32 v{vT2}, v{m}")
        a("s_nop 1")
        a(f"v_max_f32 v{m}, v{m}, v{vT2}")
    rewind(32)
    for r in range(120, 184): a(f"v_mov_b32 v{r}, 0")
    a.lab("L_acc")
    for par in 'EO':
        for j in range(2):
            for f in rd_v(par, j, 0): a(f)
    scores()
    for par in 'EO':
        for t, m in (('A', mA), ('B', mB)):
            s = Sr[par] + (16 if t == 'B' else 0)
            for j in range(16): a(f"v_sub_f32 v{s+j}, v{s+j}, v{m}")
            for j in range(16): a(f"v_exp_f32 v{s+j}, v{s+j}")
    a("s_nop 1")
    for par in 'EO':
        for t in 'AB':
            for j in range(2): a(mf_pv(t, par, j))
    step("L_acc")
    a("s_nop 15")
    finish('A'); finish('B')
    a("s_waitcnt lgkmcnt(0)")
    for k in range(3): store(k)
    a("s_branch L_done")
    nv = 212 if opt.stamp == 2 else NV
    a.raw(f""".section .rodata,"a"
.p2align 6
.amdhsa_kernel {NAME}_kernel
  .amdhsa_next_free_vgpr {nv}
  .amdhsa_next_free_sgpr {90 if (opt.stamp or opt.amp) else 48}
  .amdhsa_accum_offset {nv}
  .amdhsa_group_segment_fixed_size 0
  .amdhsa_kernarg_size 48
  .amdhsa_user_sgpr_count 2
  .amdhsa_user_sgpr_kernarg_segment_ptr 1
  .amdhsa_system_sgpr_workgroup_id_x 1
.end_amdhsa_kernel""")
    return a.text()

def parse(argv):
    p = argparse.ArgumentParser()
    p.add_argument('-o', default=f"cdna_kernels/{NAME}.s")
    p.add_argument('--grp', default='2,2')
    p.add_argument('--pf', type=int, default=1)
    p.add_argument('--kxm', type=int, default=0)
    p.add_argument('--qfirst', type=int, default=1)
    p.add_argument('--probe', default='')
    p.add_argument('--ampwg', type=int, default=-1)
    p.add_argument('--tv', type=int, default=0)
    p.add_argument('--touch', type=int, default=0)
    p.add_argument('--b05', type=int, default=0)
    p.add_argument('--b1', type=int, default=3)
    p.add_argument('--b2', type=int, default=7)
    p.add_argument('--bdelay', type=int, default=1)
    p.add_argument('--cut', type=int, default=4)
    p.add_argument('--pos', default='2,5,15,18,21,31,25')
    p.add_argument('--tpos', default='2,5,13,18,21,26,29')
    p.add_argument('--stfl', default='sc1')
    p.add_argument('--ldfl', default='')
    p.add_argument('--qfl', default='')
    p.add_argument('--stamp', type=int, default=0)
    p.add_argument('--amp', type=int, default=0)
    p.add_argument('--ampa', type=int, default=0)
    p.add_argument('--ampb', type=int, default=8)
    p.add_argument('--ampr', default='')
    p.add_argument('--ampbase', type=int, default=-1)
    return p.parse_args(argv)

if __name__ == '__main__':
    opt = parse(sys.argv[1:])
    open(opt.o, 'w').write(gen(opt))
```

```python
import sys, struct, math, argparse

NAME = "standalone__fused_io_aware_attn__prompt"
HB = 73728
ST = 2304
VBASE = HB
CBASE = 2 * HB
ABASE = CBASE + 4096
XBASE = ABASE + 4096
LDS = XBASE + 3 * ST + 1024

def f2u(x): return struct.unpack('<I', struct.pack('<f', x))[0]
CSCALE = f2u(math.log2(math.e) / math.sqrt(18.0))

vK, vV = 2, 3
vIncK, vIncV = 4, 5
vSlot, vIdx, vQo, vDma = 1, 6, 7, 14
vT2 = 15
KX = 8
QX = {'E': 10, 'O': 12}
Kr = {'E': 16, 'O': 20}
Qr = {('A', 'E'): 24, ('B', 'E'): 28, ('A', 'O'): 32, ('B', 'O'): 36}
Vr = {('E', 0): 40, ('E', 1): 44, ('O', 0): 48, ('O', 1): 52}
Sr = {'E': 56, 'O': 88}
Or = {('A', 'E'): 120, ('B', 'E'): 136, ('A', 'O'): 152, ('B', 'O'): 168}
vStA, vStB, vStR = 184, 185, 186
Vr[('T', 0)] = 188; Vr[('T', 1)] = 192
KX0, KE0, KO0 = 196, 198, 202
NV = 208
AL = dict(on=False)
def kx(): return KX0 if AL['on'] else KX
def kr(par): return {'E': KE0, 'O': KO0}[par] if AL['on'] else Kr[par]
def vv(par, j): return Vr[('T', j)] if (AL['on'] and par == 'E') else Vr[(par, j)]

def vr(b, n): return f"v[{b}:{b+n-1}]"

class Asm:
    def __init__(self): self.l = []
    def __call__(self, s): self.l.append("    " + s)
    def lab(self, s): self.l.append(s + ":")
    def raw(self, s): self.l.append(s)
    def text(self): return "\n".join(self.l) + "\n"

def mf_x(par):
    return f"v_mfma_f32_32x32x4_2b_bf16 {vr(Sr[par],32)}, {vr(kx(),2)}, {vr(QX[par],2)}, 0 cbsz:1 abid:0"
def mf_q(t, par):
    s = Sr[par] + (16 if t == 'B' else 0)
    return f"v_mfma_f32_32x32x16_bf16 {vr(s,16)}, {vr(kr(par),4)}, {vr(Qr[(t,par)],4)}, {vr(s,16)}"
def mf_pv(t, par, j, vs=None):
    s = Sr[par] + (16 if t == 'B' else 0) + 8 * j
    return f"v_smfmac_f32_32x32x32_bf16 {vr(Or[(t,par)],16)}, {vr(vv(vs or par,j),4)}, {vr(s,8)}, v{vIdx}"
def ex(par, i): return f"v_exp_f32 v{Sr[par]+i}, v{Sr[par]+i}"
def rd_kx(u): return [f"ds_read_b64 {vr(kx(),2)}, v{vK} offset:{u*ST+32}"]
def rd_k(par, u):
    o = u * ST + (40 if par == 'O' else 0)
    return [f"ds_read_b64 {vr(kr(par),2)}, v{vK} offset:{o}", f"ds_read_b64 {vr(kr(par)+2,2)}, v{vK} offset:{o+8}"]
def rd_v(par, j, u):
    o = u * ST + (32 if par != 'E' else 0) + 16 * j * 72
    return [f"ds_read_b64_tr_b16 {vr(vv(par,j),2)}, v{vV} offset:{o}", f"ds_read_b64_tr_b16 {vr(vv(par,j)+2,2)}, v{vV} offset:{o+4*72}"]

def phase_list(par, opt, look=True):
    oth = 'O' if par == 'E' else 'E'
    pos = [int(x) for x in (opt.pos if look else opt.tpos).split(',')]
    mf = {pos[0]: mf_pv('B', oth, 1), pos[2]: mf_pv('A', par, 0), pos[3]: mf_pv('A', par, 1), pos[5]: mf_pv('B', par, 0)}
    if look:
        mf.update({pos[1]: mf_x(oth), pos[4]: mf_q('A', oth), pos[6]: mf_q('B', oth)})
    out = []
    for i in range(32):
        if i in mf: out.append((i, 'm', mf[i]))
        out.append((i, 'e', ex(par, i)))
    return out

def gen(opt):
    a = Asm()
    def stamp(i):
        if opt.stamp and (opt.stamp != 3 or i in (0, 7, 8)): a(f"s_memtime s[{60+2*i}:{61+2*i}]")
        if opt.amp and i in (opt.ampa, opt.ampb): a(f"{'s_memtime' if opt.ampbase >= 0 else 's_memrealtime'} s[{60+2*i}:{61+2*i}]")
    smem = opt.stamp in (1, 2) or (opt.amp and not (opt.ampa in (0, 7) and opt.ampb in (7, 8)))
    def lgkm(n): a(f"s_waitcnt lgkmcnt({0 if smem else n})")
    a.raw(f"""; Fused attention forward, B=2 H=32 S=2048 D=18, bf16 in/out (written by my generator gen/gen8.py).
; @launch grid=(256,1,1) block=(512,1,1) lds={LDS}
.amdgcn_target "amdgcn-amd-amdhsa--gfx950"
.text
.globl {NAME}_kernel
.p2align 8
.type {NAME}_kernel,@function
{NAME}_kernel:""")
    stamp(0)
    if opt.stamp: a("s_memrealtime s[56:57]")
    a("s_load_dwordx8 s[4:11], s[0:1], 0")
    if opt.pf:
        a("s_getpc_b64 s[36:37]")
        a(f"v_mul_u32_u24 v{vT2}, 9, v0")
        a(f"global_load_ubyte v{vT2}, v{vT2}, s[36:37] offset:116")
    a("v_readfirstlane_b32 s24, v0")
    a("s_and_b32 s3, s2, 7")
    a("s_lshr_b32 s25, s2, 3")
    a("s_lshl_b32 s3, s3, 5")
    a("s_add_u32 s3, s3, s25")
    a("s_cmpk_ge_u32 s2, 256")
    a("s_cbranch_scc1 L_end")
    a(f"v_lshl_add_u32 v{vQo}, s3, 9, v0")
    a(f"v_mul_u32_u24 v{vQo}, 36, v{vQo}")
    a("s_cmpk_ge_u32 s24, 256")
    a("s_cbranch_scc1 L_setup")
    t0, t1 = Sr['E'] + 8, Sr['E'] + 9
    T = Sr['O']
    ldf = opt.ldfl.replace('_', ' ')
    qf = opt.qfl.replace('_', ' ')
    def qloads():
        a(f"global_load_dword v{T+8}, v{vQo}, s[4:5] offset:32 {qf}")
        a(f"global_load_dwordx4 {vr(T,4)}, v{vQo}, s[4:5] {qf}")
        a(f"global_load_dwordx4 {vr(T+4,4)}, v{vQo}, s[4:5] offset:16 {qf}")
    def addr0():
        a("s_lshl_b32 m0, s24, 5")
        a("s_lshr_b32 s25, s3, 2")
        a(f"s_mul_i32 s25, s25, {HB}")
        a("s_lshl4_add_u32 s26, s24, s25")
        a(f"v_lshl_add_u32 v{t0}, v0, 4, s26")
    def quad0():
        a(f"global_load_lds_dwordx4 v{t0}, s[6:7] {ldf}")
        a(f"global_load_lds_dwordx4 v{t0}, s[6:7] offset:1024 {ldf}")
        a(f"s_add_u32 m0, m0, {VBASE}")
        a("s_nop 0")
        a(f"global_load_lds_dwordx4 v{t0}, s[8:9] {ldf}")
        a(f"global_load_lds_dwordx4 v{t0}, s[8:9] offset:1024 {ldf}")
    if opt.qfirst:
        a("s_waitcnt lgkmcnt(0)")
        stamp(1)
        qloads(); addr0(); quad0()
    else:
        addr0()
        a("s_waitcnt lgkmcnt(0)")
        stamp(1)
        quad0(); qloads()
    a.lab("L_setup")
    if opt.stamp:
        a("s_load_dwordx2 s[40:41], s[0:1], 40")
        if opt.stamp == 3:
            for i in range(62, 74): a(f"s_mov_b32 s{i}, 0")
    a(f"v_lshlrev_b32 v{vSlot}, 3, v0")
    a("v_and_b32 v0, 63, v0")
    a("s_lshr_b32 s24, s24, 6")
    a("s_lshr_b32 s25, s3, 2")
    a(f"s_mul_i32 s25, s25, {HB}")
    a("s_lshl3_add_u32 s26, s3, s24")
    a(f"s_mul_i32 s26, s26, {ST}")
    a(f"v_lshlrev_b32 v{vDma}, 4, v0")
    a("s_lshl_b32 s27, s24, 11")
    a("s_cmp_lt_u32 s24, 4")
    a("s_cselect_b32 s28, 16384, 0")
    a("s_add_u32 s27, s27, s28")
    a("s_mov_b32 m0, s27")
    a(f"s_mov_b32 s18, {HB}")
    a("s_mov_b32 s19, 0x00020000")
    a(f"s_mov_b32 s46, {HB}")
    a("s_mov_b32 s47, 0x00020000")
    def quad():
        a(f"buffer_load_dwordx4 v{vDma}, s[16:19], s27 offen {ldf} lds")
        a(f"buffer_load_dwordx4 v{vDma}, s[16:19], s27 offen offset:1024 {ldf} lds")
        a("s_add_u32 m0, s27, s18")
        a("s_nop 0")
        a(f"buffer_load_dwordx4 v{vDma}, s[44:47], s27 offen {ldf} lds")
        a(f"buffer_load_dwordx4 v{vDma}, s[44:47], s27 offen offset:1024 {ldf} lds")
        a("s_add_u32 m0, s27, 16384")
        a("s_add_u32 s27, s27, 16384")
    a("s_waitcnt lgkmcnt(0)")
    a("s_add_u32 s16, s6, s25")
    a("s_addc_u32 s17, s7, 0")
    a("s_add_u32 s44, s8, s25")
    a("s_addc_u32 s45, s9, 0")
    a(f"v_and_b32 v{t0}, 31, v0")
    a(f"v_lshrrev_b32 v{t1}, 5, v0")
    a("s_add_u32 s20, s10, s26")
    a("s_addc_u32 s21, s11, 0")
    a(f"s_movk_i32 s22, {ST}")
    a("s_mov_b32 s23, 0x00020000")
    C = Sr['E']
    a(f"v_and_b32 v{C}, 1, v0")
    a(f"v_subrev_u32 v{C}, 1, v{C}")
    a(f"v_and_b32 v{C}, 0x3f80, v{C}")
    a(f"v_mov_b32 v{C+1}, 0")
    a(f"v_add_u32 v{vSlot}, {CBASE}, v{vSlot}")
    a(f"ds_write_b64 v{vSlot}, {vr(C,2)}")
    a(f"v_mov_b32 v{QX['E']}, 0"); a(f"v_mov_b32 v{QX['E']+1}, 0"); a(f"v_mov_b32 v{QX['O']}, 0")
    a(f"v_mul_u32_u24 v{vK}, 72, v{t0}")
    a(f"v_lshl_add_u32 v{vK}, v{t1}, 4, v{vK}")
    a(f"v_mfma_f32_32x32x4_2b_bf16 {vr(120,32)}, {vr(QX['E'],2)}, {vr(QX['E'],2)}, 0")
    a(f"v_mfma_f32_32x32x4_2b_bf16 {vr(152,32)}, {vr(QX['E'],2)}, {vr(QX['E'],2)}, 0")
    t3, t4, t5 = C + 4, C + 5, C + 6
    a(f"v_bfe_u32 v{t3}, v0, 2, 2")
    a(f"v_lshl_add_u32 v{t3}, v{t1}, 3, v{t3}")
    a(f"v_mul_u32_u24 v{t3}, 72, v{t3}")
    a(f"v_and_b32 v{t4}, 1, v0")
    a(f"v_lshl_add_u32 v{t3}, v{t4}, 4, v{t3}")
    a(f"v_and_b32 v{t4}, 2, v0")
    a(f"v_lshl_add_u32 v{t3}, v{t4}, 2, v{t3}")
    a(f"v_lshlrev_b32 v{t5}, 6, v{t1}")
    a(f"v_lshlrev_b32 v{t4}, 2, v{t4}")
    a(f"v_sub_u32 v{t5}, v{t5}, v{t4}")
    a(f"v_add_u32 v{t5}, {CBASE+56}, v{t5}")
    a(f"v_and_b32 v{t4}, 16, v0")
    a(f"v_add3_u32 v{t3}, v{t4}, v{t3}, s18")
    a("s_mov_b32 vcc_lo, 0xdddd0000"); a("s_mov_b32 vcc_hi, 0xdddd0000")
    a(f"v_mov_b32 v{vIdx}, 0xdddd")
    a(f"v_mov_b32 v{vIncK}, {ST}")
    a(f"v_cndmask_b32 v{vIncV}, v{vIncK}, 0, vcc")
    a(f"v_cndmask_b32 v{vV}, v{t3}, v{t5}, vcc")
    a(f"v_add_u32 v{C+2}, v{vK}, v{vIncK}")
    a(f"v_add_u32 v{C+3}, v{vV}, v{vIncV}")
    a(f"ds_write_b64 v{vSlot}, {vr(C+2,2)} offset:4096")
    a(f"s_mul_i32 s28, s24, {ST}")
    a("s_cmp_ge_u32 s24, 5")
    a(f"s_cselect_b32 s29, {XBASE - 5*ST}, 0")
    a("s_add_u32 s28, s28, s29")
    a(f"v_mul_u32_u24 v{vStA}, 36, v{t0}")
    a(f"v_lshl_add_u32 v{vStA}, v{t1}, 4, v{vStA}")
    a(f"v_add_u32 v{vStA}, s28, v{vStA}")
    a(f"v_add_u32 v{vStB}, 1152, v{vStA}")
    a(f"v_add_u32 v{vStR}, s28, v{vDma}")
    a(f"s_mov_b32 s30, {CSCALE:#x}"); a(f"s_mov_b32 s31, {CSCALE:#x}")
    a("s_mov_b32 s29, 1")
    b1, b2 = opt.b1, opt.b2
    assert b1 == 3 and 6 <= b2 <= 7
    a(f"s_mov_b32 s32, {(1 << (b1-1)) | (1 << (b2-1)):#x}")
    a(f"s_mov_b32 s33, {(1 << (b1-1)) | (1 << (b2-1)) | (1 << 31):#x}")
    a("s_mov_b32 s35, 0x6c800000")
    a("s_mov_b64 vcc, 0")
    a("s_cmp_ge_u32 s24, 4")
    if not opt.shared: a("s_cbranch_scc1 L_proB")
    burst = rd_kx(1) + rd_v('O', 0, 0) + rd_k('E', 1) + rd_v('O', 1, 0) + rd_v('E', 0, 1) + rd_v('E', 1, 1) + rd_k('O', 1)
    bump = f"ds_add_rtn_u64 {vr(vK,2)}, v{vSlot}, {vr(vIncK,2)} offset:4096"
    AL['on'] = True
    rd0 = rd_kx(0) + rd_k('E', 0) + rd_k('O', 0) + rd_v('E', 0, 0) + rd_v('E', 1, 0) + burst + [bump]
    W = T + 10
    wof = {}
    def unpack(src, k):
        w = W + 2 * k; wof[src] = w
        a(f"v_lshlrev_b32 v{w}, 16, v{src}")
        a(f"v_and_b32 v{w+1}, 0xffff0000, v{src}")
        a(f"v_pk_mul_f32 {vr(w,2)}, {vr(w,2)}, s[30:31]")
    def pack(src, d): a(f"v_cvt_pk_bf16_f32 v{d}, v{wof[src]}, v{wof[src]+1}")
    QAE, QBE, QAO, QBO = Qr[('A','E')], Qr[('B','E')], Qr[('A','O')], Qr[('B','O')]
    def prep(nlater, mfma):
        a(f"s_waitcnt vmcnt({2+nlater})")
        if not mfma and opt.bdelay == 3: a("s_barrier")
        unpack(T + 8, 8)
        pack(T + 8, QX['E']); pack(T + 8, QBO + 3)
        a(f"s_waitcnt vmcnt({1+nlater})")
        if mfma: a(mf_x('E'))
        for j in range(4): unpack(T + j, j)
        for j in range(4): pack(T + j, QAE + j)
        pack(T, QX['O'] + 1)
        a(f"s_waitcnt vmcnt({nlater})")
        stamp(4)
        for j in range(4, 8): unpack(T + j, j)
        for j in range(4): pack(T + 4 + j, QBE + j)
        for j in range(4): a(f"v_permlane32_swap_b32 v{QAE+j}, v{QBE+j}")
        pack(T + 4, QAO + 3)
        a(f"v_mov_b32 v{QAO}, v{QAE+1}")
        if mfma: a(mf_q('A', 'E'))
        a(f"v_mov_b32 v{QAO+1}, v{QAE+2}")
        a(f"v_permlane32_swap_b32 v{QAO+3}, v{QBO+3}")
        a(f"v_mov_b32 v{QAO+2}, v{QAE+3}")
        for j in range(0, 3): a(f"v_mov_b32 v{QBO+j}, v{QBE+j+1}")
        if mfma: a(mf_q('B', 'E'))
    if opt.shared:
        assert not opt.qfirst
        if opt.bdelay == 3:
            a("s_waitcnt vmcnt(5)")
            a("s_barrier")
        a("s_cbranch_scc0 L_noq")
        qloads()
        a.lab("L_noq")
        a("s_waitcnt vmcnt(3) lgkmcnt(0)")
        stamp(2)
        a("s_barrier")
        for f in rd0[:13]: a(f)
        lgkm(4)
        for f in rd0[13:]: a(f)
        a("s_setprio 3")
        stamp(3)
        prep(0, True)
        a("s_cbranch_scc1 L_startB")
        a("s_setprio 2")
        a("s_nop 1")
        a("s_waitcnt lgkmcnt(0)")
    if not opt.shared: a("s_setprio 2")
    if opt.shared: pass
    elif opt.qfirst:
        prep(4, False)
        a("s_waitcnt vmcnt(0) lgkmcnt(0)")
        stamp(2)
        a("s_barrier")
        for f in rd0[:9]: a(f)
        lgkm(8)
        stamp(3)
        a(mf_x('E'))
        for f in rd0[9:15]: a(f)
        lgkm(7)
        for f in rd0[15:]: a(f)
        a("s_nop 2")
        a(mf_q('A', 'E'))
        a("s_nop 9")
        a("s_waitcnt lgkmcnt(0)")
        a(mf_q('B', 'E'))
    else:
        if opt.bdelay == 3:
            a("s_waitcnt vmcnt(5)")
            a("s_barrier")
        a("s_waitcnt vmcnt(3) lgkmcnt(0)")
        stamp(2)
        a("s_barrier")
        for f in rd0[:13]: a(f)
        lgkm(4)
        for f in rd0[13:]: a(f)
        stamp(3)
        prep(0, True)
        a("s_nop 3")
        a("s_waitcnt lgkmcnt(0)")
    cut = opt.cut
    pos0 = int(opt.pos.split(',')[0])
    assert cut > pos0
    a.lab("L_first")
    stamp(5)
    for (i, k_, s_) in phase_list('E', opt):
        if not (i == pos0 and k_ == 'm'): a(s_)
    for (i, k_, s_) in phase_list('O', opt):
        if i < cut: a(s_)
    AL['on'] = False
    pE, pO = phase_list('E', opt), phase_list('O', opt)
    for (i, k_, s_) in pO:
        if i >= cut: a(s_)
    for (i, k_, s_) in pE: a(s_)
    for (i, k_, s_) in pO:
        if i < cut: a(s_)
    a("s_cbranch_scc0 L_topA")
    a("s_branch L_topB")
    if not opt.shared:
        a.lab("L_proB")
        AL['on'] = True
        if opt.bdelay == 3: a("s_barrier")
        if opt.bdelay != 2: qloads()
        a("s_waitcnt lgkmcnt(0)")
        stamp(2)
        a("s_barrier")
        if opt.bdelay == 2: qloads()
        for f in rd0[:13]: a(f)
        lgkm(4)
        for f in rd0[13:]: a(f)
        a("s_setprio 3")
        stamp(3)
        prep(0, True)
        AL['on'] = False
    a.lab("L_startB")
    a("s_setprio 1")
    quad()
    a("s_cmp_ge_u32 s24, 4")
    a("s_waitcnt lgkmcnt(0)")
    a("s_branch L_first")
    if opt.kxm: burst = ["s_mov_b32 exec_hi, 0", burst[0], "s_mov_b32 exec_hi, -1"] + burst[1:]
    for role in 'AB':
        a.raw("    .p2align 6")
        a.lab(f"L_top{role}")
        if role == 'A': a("s_setprio 0")
        a("s_add_u32 s29, s29, 1")
        for f in burst: a(f)
        a("s_cmp_lg_u32 s29, 31")
        a(f"s_cbranch_scc1 L_nl{role}")
        a("s_mov_b64 vcc, 1")
        a("s_waitcnt lgkmcnt(8)")
        for f in rd_v('T', 0, 1) + rd_v('T', 1, 1): a(f)
        a.lab(f"L_nl{role}")
        a(f"ds_add_rtn_u64 {vr(vK,2)}, v{vSlot}, {vr(vIncK,2)} offset:4096")
        if opt.stamp == 2:
            a("s_memtime s[80:81]"); a("s_memrealtime s[82:83]")
        a("s_cmp_gt_u32 s29, 4")
        a(f"s_cbranch_scc1 L_nd{role}")
        quad()
        if role == 'A':
            a("s_cmp_lg_u32 s29, 4")
            a("s_cbranch_scc1 L_ndA")
            quad()
        a.lab(f"L_nd{role}")
        a(f"s_cmp_lg_u32 s29, {b2-1}")
        a(f"s_cbranch_scc1 L_nw{role}")
        a("s_waitcnt vmcnt(0)")
        if opt.touch and role == 'A':
            a(f"buffer_load_dword v{vT2}, off, s[20:23], 0")
        a.lab(f"L_nw{role}")
        a(f"s_bitcmp1_b32 {'s33' if role == 'A' else 's32'}, s29")
        a("s_waitcnt lgkmcnt(0)")
        if opt.stamp == 2:
            a("s_mov_b32 s84, m0"); a("s_mov_b32 m0, s29")
            a("v_writelane_b32 v208, s80, m0"); a("v_writelane_b32 v209, s82, m0"); a("s_mov_b32 m0, s84")
        if role == 'B':
            a("s_cbranch_scc0 L_goB")
            a("s_waitcnt vmcnt(4)")
            a("s_barrier")
            a.lab("L_goB")
        first = True
        for (i, k_, s_) in pO:
            if i < cut: continue
            a(s_)
            if first and role == 'A': a("s_setprio 2")
            first = False
        for (i, k_, s_) in pE: a(s_)
        for (i, k_, s_) in pO:
            if i < cut: a(s_)
        if role == 'A':
            a("s_cbranch_scc0 L_topA")
            a("s_cbranch_vccnz L_tail")
            a("s_barrier")
            a("s_branch L_topA")
        else:
            a("s_cbranch_vccz L_topB")
    R = Sr['E']
    PK = {'A': Sr['E'] + 8, 'B': Sr['E'] + 14}
    OB = Sr['E'] + 20
    fl = opt.stfl.replace('_', ' ')
    def finish(t, ds=True):
        E, O = Or[(t, 'E')], Or[(t, 'O')]
        l, rc = (R, R + 2) if t == 'A' else (R + 1, R + 4)
        a(f"v_add_f32 v{l}, v{E+12}, v{O+12}")
        a(f"v_rcp_f32 v{rc}, v{l}")
        a(f"v_permlane32_swap_b32 v{O}, v{O+8}")
        a(f"v_permlane32_swap_b32 v{O+1}, v{O+9}")
        for j in (8, 0, 2, 4, 6):
            a(f"v_pk_add_f32 {vr(E+j,2)}, {vr(E+j,2)}, {vr(O+j+2,2)}")
        for j in (8, 0, 2, 4, 6):
            a(f"v_pk_mul_f32 {vr(E+j,2)}, {vr(E+j,2)}, {vr(rc,2)} op_sel_hi:[1,0]")
        st = vStA if t == 'A' else vStB
        for j in (4, 0, 1, 2, 3):
            a(f"v_cvt_pk_bf16_f32 v{PK[t]+j}, v{E+2*j}, v{E+2*j+1}")
        if not ds: return
        a(f"ds_write_b32 v{st}, v{PK[t]+4} offset:16")
        a(f"ds_write2_b32 v{st}, v{PK[t]}, v{PK[t]+1} offset0:0 offset1:1")
        a(f"ds_write2_b32 v{st}, v{PK[t]+2}, v{PK[t]+3} offset0:2 offset1:3")
        if t == 'A':
            a(f"ds_read_b128 {vr(OB,4)}, v{vStR}")
        else:
            a(f"ds_read_b128 {vr(OB+4,4)}, v{vStR} offset:1024")
            a(f"ds_read_b128 {vr(OB+8,4)}, v{vStR} offset:2048")
    def store(k): a(f"buffer_store_dwordx4 {vr(OB+4*k,4)}, v{vDma}, s[20:23], 0 offen offset:{1024*k} {fl}")
    def dot(t, j): a(f"v_dot2c_f32_bf16 v{R if t == 'A' else R+1}, 0, v{PK[t]+j}")
    a.lab("L_tail")
    tm = {10: mf_pv('A', 'O', 0, 'T'), 18: mf_pv('A', 'O', 1, 'T'), 26: mf_pv('B', 'O', 0, 'T')}
    for i in range(cut, 32):
        if i in tm: a(tm[i])
        if i == 29: finish('A', ds=(opt.tv == 0))
        a(ex('O', i))
    stamp(6)
    if opt.tv == 0:
        a("s_nop 1")
        a(mf_pv('B', 'O', 1, 'T'))
        a("s_nop 9")
        lgkm(0)
        store(0)
        finish('B')
    else:
        a(f"ds_write_b32 v{vStA}, v{PK['A']+4} offset:16")
        a(f"ds_write2_b32 v{vStA}, v{PK['A']}, v{PK['A']+1} offset0:0 offset1:1")
        a(mf_pv('B', 'O', 1, 'T'))
        a(f"ds_write2_b32 v{vStA}, v{PK['A']+2}, v{PK['A']+3} offset0:2 offset1:3")
        a(f"ds_read_b128 {vr(OB,4)}, v{vStR}")
        a("s_nop 9")
        n0 = len(a.l)
        finish('B')
        a.l[n0+opt.tv:n0+opt.tv] = ["    s_waitcnt lgkmcnt(0)", f"    buffer_store_dwordx4 {vr(OB,4)}, v{vDma}, s[20:23], 0 offen {fl}"]
    lgkm(1)
    store(1)
    lgkm(0)
    store(2)
    stamp(7)
    a("s_setprio 0")
    for t in 'AB':
        for j in range(5): dot(t, j)
    a(f"v_cmp_nge_f32 s[36:37], v{R}, 1.0")
    a(f"v_cmp_nle_f32 vcc, v{R}, s35")
    a("s_or_b64 s[36:37], s[36:37], vcc")
    a(f"v_cmp_nge_f32 s[38:39], v{R+1}, 1.0")
    a(f"v_cmp_nle_f32 vcc, v{R+1}, s35")
    a("s_or_b64 s[36:37], s[36:37], s[38:39]")
    a("s_or_b64 s[36:37], s[36:37], vcc")
    a("s_cbranch_scc1 L_check")
    a.lab("L_done")
    if opt.amp:
        a("s_waitcnt vmcnt(0)")
        stamp(8)
        a("s_memrealtime s[42:43]")
        a("s_waitcnt lgkmcnt(0)")
        a(f"s_sub_u32 s50, s{60+2*opt.ampb}, s{60+2*opt.ampa}")
        if opt.ampbase >= 0:
            a(f"s_max_u32 s50, s50, {opt.ampbase}")
            a(f"s_sub_u32 s50, s50, {opt.ampbase}")
            if opt.ampwg == -2:
                a("s_load_dwordx2 s[54:55], s[0:1], 32")
                a(f"s_cmp_lg_u32 s24, {3 if opt.ampr == 'A' else 7}")
                a("s_cbranch_scc1 L_end")
                a("s_add_u32 s51, s50, 0x1000000")
                a("s_mov_b64 exec, 1")
                a("v_mov_b32 v16, s51"); a("v_mov_b32 v17, 0")
                a("s_waitcnt lgkmcnt(0)")
                a("global_atomic_add v18, v17, v16, s[54:55] sc0 sc1")
                a("s_waitcnt vmcnt(0)")
                a("v_readfirstlane_b32 s51, v18")
                a("s_nop 3")
                a("s_add_u32 s50, s50, s51")
                a("s_and_b32 s50, s50, 0xffffff")
                a("s_lshr_b32 s50, s50, 8")
                a("s_lshr_b32 s51, s51, 24")
                a("s_cmp_lg_u32 s51, 255")
            elif opt.ampwg >= 0: a(f"s_cmp_lg_u32 s2, {opt.ampwg}")
            else: a("s_and_b32 s51, s2, 7")
            a("s_cselect_b32 s50, 0, s50")
        a(f"s_mul_i32 s50, s50, {opt.amp}")
        a("s_min_u32 s50, s50, 20000")
        if opt.ampr:
            a("s_cmp_lt_u32 s24, 4")
            a("s_cselect_b32 s50, s50, 0" if opt.ampr == 'A' else "s_cselect_b32 s50, 0, s50")
        a.lab("L_spin")
        a("s_sleep 2")
        a("s_memrealtime s[52:53]")
        a("s_waitcnt lgkmcnt(0)")
        a("s_sub_u32 s51, s52, s42")
        a("s_cmp_lt_u32 s51, s50")
        a("s_cbranch_scc1 L_spin")
    if opt.stamp:
        a("s_mov_b64 exec, 1")
        a("s_waitcnt vmcnt(0)")
        stamp(8)
        a("s_memrealtime s[58:59]")
        a("s_getreg_b32 s42, hwreg(HW_REG_HW_ID)")
        a("s_getreg_b32 s43, hwreg(HW_REG_XCC_ID)")
        a("s_waitcnt lgkmcnt(0)")
        for i, sr in enumerate((56, 58, 42, 43, 60, 62, 64, 66, 68, 70, 72, 74, 76)):
            a(f"v_mov_b32 v{16+i}, s{sr}")
        a("s_lshl_b32 s50, s2, 3"); a("s_add_u32 s50, s50, s24"); a("s_lshl_b32 s50, s50, 6")
        a("v_mov_b32 v1, s50")
        for i in range(4): a(f"global_store_dwordx4 v1, v[{16+4*i}:{19+4*i}], s[40:41] offset:{16*i}")
        if opt.stamp == 2:
            a("s_mov_b64 exec, -1")
            a("s_lshl_b32 s50, s50, 3"); a("s_add_u32 s50, s50, 0x100000")
            a("v_lshl_add_u32 v1, v0, 3, s50")
            a("global_store_dwordx2 v1, v[208:209], s[40:41]")
    a.lab("L_end")
    a("s_endpgm")
    a.lab("L_check")
    a("s_waitcnt vmcnt(0)")
    mA, mB = 0, vSlot
    if opt.stamp == 2: mA = 187
    def rewind(n):
        a(f"v_subrev_u32 v{vK}, {n*ST}, v{vK}")
        a(f"v_mul_u32_u24 v{vT2}, {n}, v{vIncV}")
        a(f"v_sub_u32 v{vV}, v{vV}, v{vT2}")
        a("s_mov_b32 s29, 0")
    def scores():
        a(f"buffer_load_dwordx2 {vr(KX,2)}, v{vK}, s[16:19], 0 offen offset:32")
        a(f"buffer_load_dwordx4 {vr(Kr['E'],4)}, v{vK}, s[16:19], 0 offen")
        a(f"buffer_load_dwordx4 {vr(Kr['O'],4)}, v{vK}, s[16:19], 0 offen offset:40")
        a("s_waitcnt vmcnt(0) lgkmcnt(0)")
        a(mf_x('E')); a(mf_x('O'))
        a("s_nop 15"); a("s_nop 3")
        for par in 'EO':
            for t in 'AB': a(mf_q(t, par))
        a("s_nop 15")
    def step(lab):
        a(f"v_add_u32 v{vK}, v{vIncK}, v{vK}")
        a(f"v_add_u32 v{vV}, v{vIncV}, v{vV}")
        a("s_add_u32 s29, s29, 1")
        a("s_cmp_lg_u32 s29, 32")
        a(f"s_cbranch_scc1 {lab}")
    rewind(31)
    a(f"v_mov_b32 v{mA}, 0xff800000"); a(f"v_mov_b32 v{mB}, 0xff800000")
    a.lab("L_max")
    scores()
    for par in 'EO':
        for t, m in (('A', mA), ('B', mB)):
            s = Sr[par] + (16 if t == 'B' else 0)
            for j in range(0, 16, 2): a(f"v_max3_f32 v{m}, v{m}, v{s+j}, v{s+j+1}")
    step("L_max")
    for m in (mA, mB):
        a(f"v_mov_b32 v{vT2}, v{m}")
        a("s_nop 1")
        a(f"v_permlane32_swap_b32 v{vT2}, v{m}")
        a("s_nop 1")
        a(f"v_max_f32 v{m}, v{m}, v{vT2}")
    rewind(32)
    for r in range(120, 184): a(f"v_mov_b32 v{r}, 0")
    a.lab("L_acc")
    for par in 'EO':
        for j in range(2):
            for f in rd_v(par, j, 0): a(f)
    scores()
    for par in 'EO':
        for t, m in (('A', mA), ('B', mB)):
            s = Sr[par] + (16 if t == 'B' else 0)
            for j in range(16): a(f"v_sub_f32 v{s+j}, v{s+j}, v{m}")
            for j in range(16): a(f"v_exp_f32 v{s+j}, v{s+j}")
    a("s_nop 1")
    for par in 'EO':
        for t in 'AB':
            for j in range(2): a(mf_pv(t, par, j))
    step("L_acc")
    a("s_nop 15")
    finish('A'); finish('B')
    a("s_waitcnt lgkmcnt(0)")
    for k in range(3): store(k)
    a("s_branch L_done")
    nv = 212 if opt.stamp == 2 else NV
    a.raw(f""".section .rodata,"a"
.p2align 6
.amdhsa_kernel {NAME}_kernel
  .amdhsa_next_free_vgpr {nv}
  .amdhsa_next_free_sgpr {90 if (opt.stamp or opt.amp) else 48}
  .amdhsa_accum_offset {nv}
  .amdhsa_group_segment_fixed_size 0
  .amdhsa_kernarg_size 48
  .amdhsa_user_sgpr_count 2
  .amdhsa_user_sgpr_kernarg_segment_ptr 1
  .amdhsa_system_sgpr_workgroup_id_x 1
.end_amdhsa_kernel""")
    return a.text()

def parse(argv):
    p = argparse.ArgumentParser()
    p.add_argument('-o', default=f"cdna_kernels/{NAME}.s")
    p.add_argument('--grp', default='2,2')
    p.add_argument('--pf', type=int, default=1)
    p.add_argument('--kxm', type=int, default=0)
    p.add_argument('--shared', type=int, default=1)
    p.add_argument('--qfirst', type=int, default=0)
    p.add_argument('--probe', default='')
    p.add_argument('--ampwg', type=int, default=-1)
    p.add_argument('--tv', type=int, default=0)
    p.add_argument('--touch', type=int, default=0)
    p.add_argument('--b05', type=int, default=0)
    p.add_argument('--b1', type=int, default=3)
    p.add_argument('--b2', type=int, default=7)
    p.add_argument('--bdelay', type=int, default=3)
    p.add_argument('--cut', type=int, default=4)
    p.add_argument('--pos', default='2,5,15,18,21,31,25')
    p.add_argument('--tpos', default='2,5,13,18,21,26,29')
    p.add_argument('--stfl', default='sc1')
    p.add_argument('--ldfl', default='')
    p.add_argument('--qfl', default='')
    p.add_argument('--stamp', type=int, default=0)
    p.add_argument('--amp', type=int, default=0)
    p.add_argument('--ampa', type=int, default=0)
    p.add_argument('--ampb', type=int, default=8)
    p.add_argument('--ampr', default='')
    p.add_argument('--ampbase', type=int, default=-1)
    return p.parse_args(argv)

if __name__ == '__main__':
    opt = parse(sys.argv[1:])
    open(opt.o, 'w').write(gen(opt))
```

```python
import sys, struct, math, argparse

NAME = "standalone__fused_io_aware_attn__prompt"
HB = 73728
ST = 2304
VBASE = HB
CBASE = 2 * HB
ABASE = CBASE + 4096
XBASE = ABASE + 4096
LDS = XBASE + 3 * ST + 1024

def f2u(x): return struct.unpack('<I', struct.pack('<f', x))[0]
CSCALE = f2u(math.log2(math.e) / math.sqrt(18.0))

vK, vV = 2, 3
vIncK, vIncV = 4, 5
vSlot, vIdx, vQo, vDma = 1, 6, 7, 14
vT2 = 15
KX = 8
QX = {'E': 10, 'O': 12}
Kr = {'E': 16, 'O': 20}
Qr = {('A', 'E'): 24, ('B', 'E'): 28, ('A', 'O'): 32, ('B', 'O'): 36}
Vr = {('E', 0): 40, ('E', 1): 44, ('O', 0): 48, ('O', 1): 52}
Sr = {'E': 56, 'O': 88}
Or = {('A', 'E'): 120, ('B', 'E'): 136, ('A', 'O'): 152, ('B', 'O'): 168}
vStA, vStB, vStR = 184, 185, 186
Vr[('T', 0)] = 188; Vr[('T', 1)] = 192
KX0, KE0, KO0 = 196, 198, 202
NV = 208
AL = dict(on=False)
def kx(): return KX0 if AL['on'] else KX
def kr(par): return {'E': KE0, 'O': KO0}[par] if AL['on'] else Kr[par]
def vv(par, j): return Vr[('T', j)] if (AL['on'] and par == 'E') else Vr[(par, j)]

def vr(b, n): return f"v[{b}:{b+n-1}]"

class Asm:
    def __init__(self): self.l = []
    def __call__(self, s): self.l.append("    " + s)
    def lab(self, s): self.l.append(s + ":")
    def raw(self, s): self.l.append(s)
    def text(self): return "\n".join(self.l) + "\n"

def mf_x(par):
    return f"v_mfma_f32_32x32x4_2b_bf16 {vr(Sr[par],32)}, {vr(kx(),2)}, {vr(QX[par],2)}, 0 cbsz:1 abid:0"
def mf_q(t, par):
    s = Sr[par] + (16 if t == 'B' else 0)
    return f"v_mfma_f32_32x32x16_bf16 {vr(s,16)}, {vr(kr(par),4)}, {vr(Qr[(t,par)],4)}, {vr(s,16)}"
def mf_pv(t, par, j, vs=None):
    s = Sr[par] + (16 if t == 'B' else 0) + 8 * j
    return f"v_smfmac_f32_32x32x32_bf16 {vr(Or[(t,par)],16)}, {vr(vv(vs or par,j),4)}, {vr(s,8)}, v{vIdx}"
def ex(par, i): return f"v_exp_f32 v{Sr[par]+i}, v{Sr[par]+i}"
def rd_kx(u): return [f"ds_read_b64 {vr(kx(),2)}, v{vK} offset:{u*ST+32}"]
def rd_k(par, u):
    o = u * ST + (40 if par == 'O' else 0)
    return [f"ds_read_b64 {vr(kr(par),2)}, v{vK} offset:{o}", f"ds_read_b64 {vr(kr(par)+2,2)}, v{vK} offset:{o+8}"]
def rd_v(par, j, u):
    o = u * ST + (32 if par != 'E' else 0) + 16 * j * 72
    return [f"ds_read_b64_tr_b16 {vr(vv(par,j),2)}, v{vV} offset:{o}", f"ds_read_b64_tr_b16 {vr(vv(par,j)+2,2)}, v{vV} offset:{o+4*72}"]

def phase_list(par, opt, look=True):
    oth = 'O' if par == 'E' else 'E'
    pos = [int(x) for x in (opt.pos if look else opt.tpos).split(',')]
    mf = {pos[0]: mf_pv('B', oth, 1), pos[2]: mf_pv('A', par, 0), pos[3]: mf_pv('A', par, 1), pos[5]: mf_pv('B', par, 0)}
    if look:
        mf.update({pos[1]: mf_x(oth), pos[4]: mf_q('A', oth), pos[6]: mf_q('B', oth)})
    out = []
    for i in range(32):
        if i in mf: out.append((i, 'm', mf[i]))
        out.append((i, 'e', ex(par, i)))
    return out

def gen(opt):
    a = Asm()
    def stamp(i):
        if opt.stamp and (opt.stamp != 3 or i in (0, 7, 8)): a(f"s_memtime s[{60+2*i}:{61+2*i}]")
        if opt.amp and i in (opt.ampa, opt.ampb): a(f"{'s_memtime' if opt.ampbase >= 0 else 's_memrealtime'} s[{60+2*i}:{61+2*i}]")
    smem = opt.stamp in (1, 2) or (opt.amp and not (opt.ampa in (0, 7) and opt.ampb in (7, 8)))
    def lgkm(n): a(f"s_waitcnt lgkmcnt({0 if smem else n})")
    a.raw(f"""; Fused attention forward, B=2 H=32 S=2048 D=18, bf16 in/out (written by my generator gen/gen8.py).
; @launch grid=(256,1,1) block=(512,1,1) lds={LDS}
.amdgcn_target "amdgcn-amd-amdhsa--gfx950"
.text
.globl {NAME}_kernel
.p2align 8
.type {NAME}_kernel,@function
{NAME}_kernel:""")
    stamp(0)
    if opt.stamp: a("s_memrealtime s[56:57]")
    a("s_load_dwordx8 s[4:11], s[0:1], 0")
    if opt.pf:
        a("s_getpc_b64 s[36:37]")
        a(f"v_mul_u32_u24 v{vT2}, 9, v0")
        a(f"global_load_ubyte v{vT2}, v{vT2}, s[36:37] offset:116")
    a("v_readfirstlane_b32 s24, v0")
    a("s_and_b32 s3, s2, 7")
    a("s_lshr_b32 s25, s2, 3")
    a("s_lshl_b32 s3, s3, 5")
    a("s_add_u32 s3, s3, s25")
    a("s_cmpk_ge_u32 s2, 256")
    a("s_cbranch_scc1 L_end")
    a(f"v_lshl_add_u32 v{vQo}, s3, 9, v0")
    a(f"v_mul_u32_u24 v{vQo}, 36, v{vQo}")
    a("s_cmpk_ge_u32 s24, 256")
    a("s_cbranch_scc1 L_setup")
    t0, t1 = Sr['E'] + 8, Sr['E'] + 9
    T = Sr['O']
    ldf = opt.ldfl.replace('_', ' ')
    qf = opt.qfl.replace('_', ' ')
    def qloads():
        a(f"global_load_dword v{T+8}, v{vQo}, s[4:5] offset:32 {qf}")
        a(f"global_load_dwordx4 {vr(T,4)}, v{vQo}, s[4:5] {qf}")
        a(f"global_load_dwordx4 {vr(T+4,4)}, v{vQo}, s[4:5] offset:16 {qf}")
    def addr0():
        a("s_lshl_b32 m0, s24, 5")
        a("s_lshr_b32 s25, s3, 2")
        a(f"s_mul_i32 s25, s25, {HB}")
        a("s_lshl4_add_u32 s26, s24, s25")
        a(f"v_lshl_add_u32 v{t0}, v0, 4, s26")
    def quad0():
        a(f"global_load_lds_dwordx4 v{t0}, s[6:7] {ldf}")
        a(f"global_load_lds_dwordx4 v{t0}, s[6:7] offset:1024 {ldf}")
        a(f"s_add_u32 m0, m0, {VBASE}")
        a("s_nop 0")
        a(f"global_load_lds_dwordx4 v{t0}, s[8:9] {ldf}")
        a(f"global_load_lds_dwordx4 v{t0}, s[8:9] offset:1024 {ldf}")
    if opt.qfirst:
        a("s_waitcnt lgkmcnt(0)")
        stamp(1)
        qloads(); addr0(); quad0()
    else:
        addr0()
        a("s_waitcnt lgkmcnt(0)")
        stamp(1)
        quad0(); qloads()
    a.lab("L_setup")
    if opt.stamp:
        a("s_load_dwordx2 s[40:41], s[0:1], 40")
        if opt.stamp == 3:
            for i in range(62, 74): a(f"s_mov_b32 s{i}, 0")
    a(f"v_lshlrev_b32 v{vSlot}, 3, v0")
    a("v_and_b32 v0, 63, v0")
    a("s_lshr_b32 s24, s24, 6")
    a("s_lshr_b32 s25, s3, 2")
    a(f"s_mul_i32 s25, s25, {HB}")
    a("s_lshl3_add_u32 s26, s3, s24")
    a(f"s_mul_i32 s26, s26, {ST}")
    a(f"v_lshlrev_b32 v{vDma}, 4, v0")
    a("s_lshl_b32 s27, s24, 11")
    a("s_cmp_lt_u32 s24, 4")
    a("s_cselect_b32 s28, 16384, 0")
    a("s_add_u32 s27, s27, s28")
    a("s_mov_b32 m0, s27")
    a(f"s_mov_b32 s18, {HB}")
    a("s_mov_b32 s19, 0x00020000")
    a(f"s_mov_b32 s46, {HB}")
    a("s_mov_b32 s47, 0x00020000")
    def quad():
        a(f"buffer_load_dwordx4 v{vDma}, s[16:19], s27 offen {ldf} lds")
        a(f"buffer_load_dwordx4 v{vDma}, s[16:19], s27 offen offset:1024 {ldf} lds")
        a("s_add_u32 m0, s27, s18")
        a("s_nop 0")
        a(f"buffer_load_dwordx4 v{vDma}, s[44:47], s27 offen {ldf} lds")
        a(f"buffer_load_dwordx4 v{vDma}, s[44:47], s27 offen offset:1024 {ldf} lds")
        a("s_add_u32 m0, s27, 16384")
        a("s_add_u32 s27, s27, 16384")
    a("s_waitcnt lgkmcnt(0)")
    a("s_add_u32 s16, s6, s25")
    a("s_addc_u32 s17, s7, 0")
    a("s_add_u32 s44, s8, s25")
    a("s_addc_u32 s45, s9, 0")
    a(f"v_and_b32 v{t0}, 31, v0")
    a(f"v_lshrrev_b32 v{t1}, 5, v0")
    a("s_add_u32 s20, s10, s26")
    a("s_addc_u32 s21, s11, 0")
    a(f"s_movk_i32 s22, {ST}")
    a("s_mov_b32 s23, 0x00020000")
    C = Sr['E']
    a(f"v_and_b32 v{C}, 1, v0")
    a(f"v_subrev_u32 v{C}, 1, v{C}")
    a(f"v_and_b32 v{C}, 0x3f80, v{C}")
    a(f"v_mov_b32 v{C+1}, 0")
    a(f"v_add_u32 v{vSlot}, {CBASE}, v{vSlot}")
    a(f"ds_write_b64 v{vSlot}, {vr(C,2)}")
    a(f"v_mov_b32 v{QX['E']}, 0"); a(f"v_mov_b32 v{QX['E']+1}, 0"); a(f"v_mov_b32 v{QX['O']}, 0")
    a(f"v_mul_u32_u24 v{vK}, 72, v{t0}")
    a(f"v_lshl_add_u32 v{vK}, v{t1}, 4, v{vK}")
    a(f"v_mfma_f32_32x32x4_2b_bf16 {vr(120,32)}, {vr(QX['E'],2)}, {vr(QX['E'],2)}, 0")
    a(f"v_mfma_f32_32x32x4_2b_bf16 {vr(152,32)}, {vr(QX['E'],2)}, {vr(QX['E'],2)}, 0")
    t3, t4, t5 = C + 4, C + 5, C + 6
    a(f"v_bfe_u32 v{t3}, v0, 2, 2")
    a(f"v_lshl_add_u32 v{t3}, v{t1}, 3, v{t3}")
    a(f"v_mul_u32_u24 v{t3}, 72, v{t3}")
    a(f"v_and_b32 v{t4}, 1, v0")
    a(f"v_lshl_add_u32 v{t3}, v{t4}, 4, v{t3}")
    a(f"v_and_b32 v{t4}, 2, v0")
    a(f"v_lshl_add_u32 v{t3}, v{t4}, 2, v{t3}")
    a(f"v_lshlrev_b32 v{t5}, 6, v{t1}")
    a(f"v_lshlrev_b32 v{t4}, 2, v{t4}")
    a(f"v_sub_u32 v{t5}, v{t5}, v{t4}")
    a(f"v_add_u32 v{t5}, {CBASE+56}, v{t5}")
    a(f"v_and_b32 v{t4}, 16, v0")
    a(f"v_add3_u32 v{t3}, v{t4}, v{t3}, s18")
    a("s_mov_b32 vcc_lo, 0xdddd0000"); a("s_mov_b32 vcc_hi, 0xdddd0000")
    a(f"v_mov_b32 v{vIdx}, 0xdddd")
    a(f"v_mov_b32 v{vIncK}, {ST}")
    a(f"v_cndmask_b32 v{vIncV}, v{vIncK}, 0, vcc")
    a(f"v_cndmask_b32 v{vV}, v{t3}, v{t5}, vcc")
    a(f"v_add_u32 v{C+2}, v{vK}, v{vIncK}")
    a(f"v_add_u32 v{C+3}, v{vV}, v{vIncV}")
    a(f"ds_write_b64 v{vSlot}, {vr(C+2,2)} offset:4096")
    a(f"s_mul_i32 s28, s24, {ST}")
    a("s_cmp_ge_u32 s24, 5")
    a(f"s_cselect_b32 s29, {XBASE - 5*ST}, 0")
    a("s_add_u32 s28, s28, s29")
    a(f"v_mul_u32_u24 v{vStA}, 36, v{t0}")
    a(f"v_lshl_add_u32 v{vStA}, v{t1}, 4, v{vStA}")
    a(f"v_add_u32 v{vStA}, s28, v{vStA}")
    a(f"v_add_u32 v{vStB}, 1152, v{vStA}")
    a(f"v_add_u32 v{vStR}, s28, v{vDma}")
    a(f"s_mov_b32 s30, {CSCALE:#x}"); a(f"s_mov_b32 s31, {CSCALE:#x}")
    a("s_mov_b32 s29, 1")
    b1, b2 = opt.b1, opt.b2
    assert b1 == 3 and 6 <= b2 <= 7
    a(f"s_mov_b32 s32, {(1 << (b1-1)) | (1 << (b2-1)):#x}")
    a(f"s_mov_b32 s33, {(1 << (b1-1)) | (1 << (b2-1)) | (1 << 31):#x}")
    a("s_mov_b32 s34, 0xffff0000")
    a("s_mov_b32 s35, 0x6c800000")
    a("s_mov_b64 vcc, 0")
    a("s_cmp_ge_u32 s24, 4")
    if not opt.shared: a("s_cbranch_scc1 L_proB")
    burst = rd_kx(1) + rd_v('O', 0, 0) + rd_k('E', 1) + rd_v('O', 1, 0) + rd_v('E', 0, 1) + rd_v('E', 1, 1) + rd_k('O', 1)
    bump = f"ds_add_rtn_u64 {vr(vK,2)}, v{vSlot}, {vr(vIncK,2)} offset:4096"
    AL['on'] = True
    rd0 = rd_kx(0) + rd_k('E', 0) + rd_k('O', 0) + rd_v('E', 0, 0) + rd_v('E', 1, 0) + burst + [bump]
    W = T + 10
    wof = {}
    def unpack(src, k):
        w = W + 2 * k; wof[src] = w
        a(f"v_lshlrev_b32 v{w}, 16, v{src}")
        a(f"v_and_b32 v{w+1}, 0xffff0000, v{src}")
        a(f"v_pk_mul_f32 {vr(w,2)}, {vr(w,2)}, s[30:31]")
    def pack(src, d): a(f"v_cvt_pk_bf16_f32 v{d}, v{wof[src]}, v{wof[src]+1}")
    QAE, QBE, QAO, QBO = Qr[('A','E')], Qr[('B','E')], Qr[('A','O')], Qr[('B','O')]
    def prep(nlater, mfma):
        a(f"s_waitcnt vmcnt({2+nlater})")
        if not mfma and opt.bdelay == 3: a("s_barrier")
        unpack(T + 8, 8)
        pack(T + 8, QX['E']); pack(T + 8, QBO + 3)
        a(f"s_waitcnt vmcnt({1+nlater})")
        if mfma: a(mf_x('E'))
        for j in range(4): unpack(T + j, j)
        for j in range(4): pack(T + j, QAE + j)
        pack(T, QX['O'] + 1)
        a(f"s_waitcnt vmcnt({nlater})")
        stamp(4)
        for j in range(4, 8): unpack(T + j, j)
        for j in range(4): pack(T + 4 + j, QBE + j)
        for j in range(4): a(f"v_permlane32_swap_b32 v{QAE+j}, v{QBE+j}")
        pack(T + 4, QAO + 3)
        a(f"v_mov_b32 v{QAO}, v{QAE+1}")
        if mfma: a(mf_q('A', 'E'))
        a(f"v_mov_b32 v{QAO+1}, v{QAE+2}")
        a(f"v_permlane32_swap_b32 v{QAO+3}, v{QBO+3}")
        a(f"v_mov_b32 v{QAO+2}, v{QAE+3}")
        for j in range(0, 3): a(f"v_mov_b32 v{QBO+j}, v{QBE+j+1}")
        if mfma: a(mf_q('B', 'E'))
    if opt.shared:
        assert not opt.qfirst
        if opt.bdelay == 3:
            a("s_waitcnt vmcnt(5)")
            a("s_barrier")
        a("s_cbranch_scc0 L_noq")
        qloads()
        a.lab("L_noq")
        if opt.alp: a.raw("    .p2align 3")
        a("s_waitcnt vmcnt(3) lgkmcnt(0)")
        stamp(2)
        a("s_barrier")
        for f in rd0[:13]: a(f)
        lgkm(4)
        if opt.alp: a("s_setprio 3")
        for f in rd0[13:]: a(f)
        stamp(3)
        if opt.alp:
            def shl(j): a(f"v_lshlrev_b32 v{W+2*j}, 16, v{T+j}")
            def msk(j): a(f"v_and_b32 v{W+2*j+1}, s34, v{T+j}")
            def mul(j): a(f"v_pk_mul_f32 {vr(W+2*j,2)}, {vr(W+2*j,2)}, s[30:31]")
            def cvt(j, d): a(f"v_cvt_pk_bf16_f32 v{d}, v{W+2*j}, v{W+2*j+1}")
            a("s_waitcnt vmcnt(1)")
            shl(8); msk(8); shl(0); mul(8); cvt(8, QX['E']); cvt(8, QBO + 3)
            msk(0); shl(1)
            a(mf_x('E'))
            mul(0)
            for j in range(1, 3): msk(j); shl(j + 1); mul(j)
            msk(3)
            a("s_waitcnt vmcnt(0)")
            stamp(4)
            mul(3)
            for j in range(4): cvt(j, QAE + j)
            for j in range(4, 8): shl(j); msk(j); mul(j)
            for j in range(4): cvt(4 + j, QBE + j)
            for j in range(4): a(f"v_permlane32_swap_b32 v{QAE+j}, v{QBE+j}")
            cvt(4, QAO + 3)
            cvt(0, QX['O'] + 1)
            a(mf_q('A', 'E'))
            a("s_waitcnt lgkmcnt(0)")
            a(f"v_permlane32_swap_b32 v{QAO+3}, v{QBO+3}")
            for j in range(0, 3): a(f"v_mov_b32 v{QAO+j}, v{QAE+j+1}")
            for j in range(0, 3): a(f"v_mov_b32 v{QBO+j}, v{QBE+j+1}")
            a(mf_q('B', 'E'))
            a("s_cbranch_scc1 L_startB")
            a("s_setprio 2")
            a("s_nop 0")
        else:
            a("s_setprio 3")
            prep(0, True)
            a("s_cbranch_scc1 L_startB")
            a("s_setprio 2")
            a("s_nop 1")
            a("s_waitcnt lgkmcnt(0)")
    if not opt.shared: a("s_setprio 2")
    if opt.shared: pass
    elif opt.qfirst:
        prep(4, False)
        a("s_waitcnt vmcnt(0) lgkmcnt(0)")
        stamp(2)
        a("s_barrier")
        for f in rd0[:9]: a(f)
        lgkm(8)
        stamp(3)
        a(mf_x('E'))
        for f in rd0[9:15]: a(f)
        lgkm(7)
        for f in rd0[15:]: a(f)
        a("s_nop 2")
        a(mf_q('A', 'E'))
        a("s_nop 9")
        a("s_waitcnt lgkmcnt(0)")
        a(mf_q('B', 'E'))
    else:
        if opt.bdelay == 3:
            a("s_waitcnt vmcnt(5)")
            a("s_barrier")
        a("s_waitcnt vmcnt(3) lgkmcnt(0)")
        stamp(2)
        a("s_barrier")
        for f in rd0[:13]: a(f)
        lgkm(4)
        for f in rd0[13:]: a(f)
        stamp(3)
        prep(0, True)
        a("s_nop 3")
        a("s_waitcnt lgkmcnt(0)")
    cut = opt.cut
    pos0 = int(opt.pos.split(',')[0])
    assert cut > pos0
    a.lab("L_first")
    stamp(5)
    for (i, k_, s_) in phase_list('E', opt):
        if not (i == pos0 and k_ == 'm'): a(s_)
    for (i, k_, s_) in phase_list('O', opt):
        if i < cut: a(s_)
    AL['on'] = False
    pE, pO = phase_list('E', opt), phase_list('O', opt)
    for (i, k_, s_) in pO:
        if i >= cut: a(s_)
    for (i, k_, s_) in pE: a(s_)
    for (i, k_, s_) in pO:
        if i < cut: a(s_)
    a("s_cbranch_scc0 L_topA")
    a("s_branch L_topB")
    if not opt.shared:
        a.lab("L_proB")
        AL['on'] = True
        if opt.bdelay == 3: a("s_barrier")
        if opt.bdelay != 2: qloads()
        a("s_waitcnt lgkmcnt(0)")
        stamp(2)
        a("s_barrier")
        if opt.bdelay == 2: qloads()
        for f in rd0[:13]: a(f)
        lgkm(4)
        for f in rd0[13:]: a(f)
        a("s_setprio 3")
        stamp(3)
        prep(0, True)
        AL['on'] = False
    a.lab("L_startB")
    a("s_setprio 1")
    quad()
    a("s_cmp_ge_u32 s24, 4")
    a("s_waitcnt lgkmcnt(0)")
    a("s_branch L_first")
    if opt.kxm: burst = ["s_mov_b32 exec_hi, 0", burst[0], "s_mov_b32 exec_hi, -1"] + burst[1:]
    for role in 'AB':
        a.raw("    .p2align 6")
        pad = opt.padA if role == 'A' else opt.padB
        if pad: a.raw(f"    .fill {pad}, 4, 0xbf800000")
        a.lab(f"L_top{role}")
        if role == 'A': a("s_setprio 0")
        a("s_add_u32 s29, s29, 1")
        if opt.itst: a("s_memtime s[48:49]")
        for f in burst: a(f)
        a("s_cmp_lg_u32 s29, 31")
        a(f"s_cbranch_scc1 L_nl{role}")
        a("s_mov_b64 vcc, 1")
        a("s_waitcnt lgkmcnt(8)")
        for f in rd_v('T', 0, 1) + rd_v('T', 1, 1): a(f)
        a.lab(f"L_nl{role}")
        a(f"ds_add_rtn_u64 {vr(vK,2)}, v{vSlot}, {vr(vIncK,2)} offset:4096")
        if opt.stamp == 2:
            a("s_memtime s[80:81]"); a("s_memrealtime s[82:83]")
        if opt.itst:
            a("s_waitcnt lgkmcnt(0)")
            a("s_mov_b32 m0, s29")
            a("s_nop 0")
            a("s_movreld_b32 s62, s48")
            a("s_mov_b32 m0, s27")
            a("s_nop 0")
        a("s_cmp_gt_u32 s29, 4")
        a(f"s_cbranch_scc1 L_nd{role}")
        quad()
        if role == 'A':
            a(f"s_cmp_lg_u32 s29, {opt.dbl}")
            a("s_cbranch_scc1 L_ndA")
            quad()
        a.lab(f"L_nd{role}")
        a(f"s_cmp_lg_u32 s29, {b2-1}")
        a(f"s_cbranch_scc1 L_nw{role}")
        a("s_waitcnt vmcnt(0)")
        if opt.touch and role == 'A':
            a(f"buffer_load_dword v{vT2}, off, s[20:23], 0")
        a.lab(f"L_nw{role}")
        a(f"s_bitcmp1_b32 {'s33' if role == 'A' else 's32'}, s29")
        a("s_waitcnt lgkmcnt(0)")
        if opt.stamp == 2:
            a("s_mov_b32 s84, m0"); a("s_mov_b32 m0, s29")
            a("v_writelane_b32 v208, s80, m0"); a("v_writelane_b32 v209, s82, m0"); a("s_mov_b32 m0, s84")
        if role == 'B':
            a("s_cbranch_scc0 L_goB")
            a("s_waitcnt vmcnt(4)")
            a("s_barrier")
            a.lab("L_goB")
        first = True
        for (i, k_, s_) in pO:
            if i < cut: continue
            a(s_)
            if first and role == 'A' and (not opt.prsh or 'smfmac' in s_):
                a("s_setprio 2")
                first = False
        for (i, k_, s_) in pE: a(s_)
        for (i, k_, s_) in pO:
            if i < cut: a(s_)
        if role == 'A':
            a("s_cbranch_scc0 L_topA")
            a("s_cbranch_vccnz L_tail")
            a("s_barrier")
            a("s_branch L_topA")
        else:
            a("s_cbranch_vccz L_topB")
    R = Sr['E']
    PK = {'A': Sr['E'] + 8, 'B': Sr['E'] + 14}
    OB = Sr['E'] + 20
    fl = opt.stfl.replace('_', ' ')
    def finish(t, ds=True):
        E, O = Or[(t, 'E')], Or[(t, 'O')]
        l, rc = (R, R + 2) if t == 'A' else (R + 1, R + 4)
        a(f"v_add_f32 v{l}, v{E+12}, v{O+12}")
        a(f"v_rcp_f32 v{rc}, v{l}")
        a(f"v_permlane32_swap_b32 v{O}, v{O+8}")
        a(f"v_permlane32_swap_b32 v{O+1}, v{O+9}")
        for j in (8, 0, 2, 4, 6):
            a(f"v_pk_add_f32 {vr(E+j,2)}, {vr(E+j,2)}, {vr(O+j+2,2)}")
        for j in (8, 0, 2, 4, 6):
            a(f"v_pk_mul_f32 {vr(E+j,2)}, {vr(E+j,2)}, {vr(rc,2)} op_sel_hi:[1,0]")
        st = vStA if t == 'A' else vStB
        for j in (4, 0, 1, 2, 3):
            a(f"v_cvt_pk_bf16_f32 v{PK[t]+j}, v{E+2*j}, v{E+2*j+1}")
        if not ds: return
        a(f"ds_write_b32 v{st}, v{PK[t]+4} offset:16")
        a(f"ds_write2_b32 v{st}, v{PK[t]}, v{PK[t]+1} offset0:0 offset1:1")
        a(f"ds_write2_b32 v{st}, v{PK[t]+2}, v{PK[t]+3} offset0:2 offset1:3")
        if t == 'A':
            a(f"ds_read_b128 {vr(OB,4)}, v{vStR}")
        else:
            a(f"ds_read_b128 {vr(OB+4,4)}, v{vStR} offset:1024")
            a(f"ds_read_b128 {vr(OB+8,4)}, v{vStR} offset:2048")
    def store(k): a(f"buffer_store_dwordx4 {vr(OB+4*k,4)}, v{vDma}, s[20:23], 0 offen offset:{1024*k} {fl}")
    def dot(t, j): a(f"v_dot2c_f32_bf16 v{R if t == 'A' else R+1}, 0, v{PK[t]+j}")
    a.lab("L_tail")
    tm = {10: mf_pv('A', 'O', 0, 'T'), 18: mf_pv('A', 'O', 1, 'T'), 26: mf_pv('B', 'O', 0, 'T')}
    for i in range(cut, 32):
        if i in tm: a(tm[i])
        if i == 29:
            n0 = len(a.l)
            finish('A', ds=(opt.tv <= 0))
            if opt.tv < 0:
                lateA = a.l[n0+9:]; del a.l[n0+9:]
        a(ex('O', i))
    stamp(6)
    if opt.tv < 0:
        a.l[-1] = a.l[-1].replace("v_exp_f32 ", "v_exp_f32_e64 ")
        a.l += lateA[:2]
        a(mf_pv('B', 'O', 1, 'T'))
        a.l += lateA[2:]
        n0 = len(a.l)
        finish('B')
        a.l[n0-opt.tv:n0-opt.tv] = ["    s_waitcnt lgkmcnt(0)", f"    buffer_store_dwordx4 {vr(OB,4)}, v{vDma}, s[20:23], 0 offen {fl}", "    s_nop 0"]
    elif opt.tv == 0:
        a("s_nop 1")
        a(mf_pv('B', 'O', 1, 'T'))
        a("s_nop 9")
        lgkm(0)
        store(0)
        finish('B')
    else:
        a(f"ds_write_b32 v{vStA}, v{PK['A']+4} offset:16")
        a(f"ds_write2_b32 v{vStA}, v{PK['A']}, v{PK['A']+1} offset0:0 offset1:1")
        a(mf_pv('B', 'O', 1, 'T'))
        a(f"ds_write2_b32 v{vStA}, v{PK['A']+2}, v{PK['A']+3} offset0:2 offset1:3")
        a(f"ds_read_b128 {vr(OB,4)}, v{vStR}")
        a("s_nop 9")
        n0 = len(a.l)
        finish('B')
        a.l[n0+opt.tv:n0+opt.tv] = ["    s_waitcnt lgkmcnt(0)", f"    buffer_store_dwordx4 {vr(OB,4)}, v{vDma}, s[20:23], 0 offen {fl}"]
    lgkm(1)
    store(1)
    lgkm(0)
    store(2)
    stamp(7)
    a("s_setprio 0")
    for t in 'AB':
        for j in range(5): dot(t, j)
    a(f"v_cmp_nge_f32 s[36:37], v{R}, 1.0")
    a(f"v_cmp_nle_f32 vcc, v{R}, s35")
    a("s_or_b64 s[36:37], s[36:37], vcc")
    a(f"v_cmp_nge_f32 s[38:39], v{R+1}, 1.0")
    a(f"v_cmp_nle_f32 vcc, v{R+1}, s35")
    a("s_or_b64 s[36:37], s[36:37], s[38:39]")
    a("s_or_b64 s[36:37], s[36:37], vcc")
    a("s_cbranch_scc1 L_check")
    a.lab("L_done")
    if opt.amp:
        a("s_waitcnt vmcnt(0)")
        stamp(8)
        a("s_memrealtime s[42:43]")
        a("s_waitcnt lgkmcnt(0)")
        a(f"s_sub_u32 s50, s{60+2*opt.ampb}, s{60+2*opt.ampa}")
        if opt.ampbase >= 0:
            a(f"s_max_u32 s50, s50, {opt.ampbase}")
            a(f"s_sub_u32 s50, s50, {opt.ampbase}")
            if opt.ampwg == -2:
                a("s_load_dwordx2 s[54:55], s[0:1], 32")
                a(f"s_cmp_lg_u32 s24, {3 if opt.ampr == 'A' else 7}")
                a("s_cbranch_scc1 L_end")
                a("s_add_u32 s51, s50, 0x1000000")
                a("s_mov_b64 exec, 1")
                a("v_mov_b32 v16, s51"); a("v_mov_b32 v17, 0")
                a("s_waitcnt lgkmcnt(0)")
                a("global_atomic_add v18, v17, v16, s[54:55] sc0 sc1")
                a("s_waitcnt vmcnt(0)")
                a("v_readfirstlane_b32 s51, v18")
                a("s_nop 3")
                a("s_add_u32 s50, s50, s51")
                a("s_and_b32 s50, s50, 0xffffff")
                a("s_lshr_b32 s50, s50, 8")
                a("s_lshr_b32 s51, s51, 24")
                a("s_cmp_lg_u32 s51, 255")
            elif opt.ampwg >= 0: a(f"s_cmp_lg_u32 s2, {opt.ampwg}")
            else: a("s_and_b32 s51, s2, 7")
            a("s_cselect_b32 s50, 0, s50")
        a(f"s_mul_i32 s50, s50, {opt.amp}")
        a("s_min_u32 s50, s50, 20000")
        if opt.ampr:
            a("s_cmp_lt_u32 s24, 4")
            a("s_cselect_b32 s50, s50, 0" if opt.ampr == 'A' else "s_cselect_b32 s50, 0, s50")
        a.lab("L_spin")
        a("s_sleep 2")
        a("s_memrealtime s[52:53]")
        a("s_waitcnt lgkmcnt(0)")
        a("s_sub_u32 s51, s52, s42")
        a("s_cmp_lt_u32 s51, s50")
        a("s_cbranch_scc1 L_spin")
    if opt.itst:
        a("s_load_dwordx2 s[40:41], s[0:1], 40")
        for i in range(32): a(f"v_writelane_b32 v16, s{62+i}, {i}")
        a("s_lshl_b32 s50, s2, 3"); a("s_add_u32 s50, s50, s24"); a("s_lshl_b32 s50, s50, 8")
        a(f"v_lshrrev_b32 v1, 2, v{vDma}")
        a("v_add_u32 v1, s50, v1")
        a("s_waitcnt lgkmcnt(0)")
        a("global_store_dword v1, v16, s[40:41]")
    if opt.stamp:
        a("s_mov_b64 exec, 1")
        a("s_waitcnt vmcnt(0)")
        stamp(8)
        a("s_memrealtime s[58:59]")
        a("s_getreg_b32 s42, hwreg(HW_REG_HW_ID)")
        a("s_getreg_b32 s43, hwreg(HW_REG_XCC_ID)")
        a("s_waitcnt lgkmcnt(0)")
        for i, sr in enumerate((56, 58, 42, 43, 60, 62, 64, 66, 68, 70, 72, 74, 76)):
            a(f"v_mov_b32 v{16+i}, s{sr}")
        a("s_lshl_b32 s50, s2, 3"); a("s_add_u32 s50, s50, s24"); a("s_lshl_b32 s50, s50, 6")
        a("v_mov_b32 v1, s50")
        for i in range(4): a(f"global_store_dwordx4 v1, v[{16+4*i}:{19+4*i}], s[40:41] offset:{16*i}")
        if opt.stamp == 2:
            a("s_mov_b64 exec, -1")
            a("s_lshl_b32 s50, s50, 3"); a("s_add_u32 s50, s50, 0x100000")
            a("v_lshl_add_u32 v1, v0, 3, s50")
            a("global_store_dwordx2 v1, v[208:209], s[40:41]")
    a.lab("L_end")
    a("s_endpgm")
    a.lab("L_check")
    a("s_waitcnt vmcnt(0)")
    mA, mB = 0, vSlot
    if opt.stamp == 2: mA = 187
    def rewind(n):
        a(f"v_subrev_u32 v{vK}, {n*ST}, v{vK}")
        a(f"v_mul_u32_u24 v{vT2}, {n}, v{vIncV}")
        a(f"v_sub_u32 v{vV}, v{vV}, v{vT2}")
        a("s_mov_b32 s29, 0")
    def scores():
        a(f"buffer_load_dwordx2 {vr(KX,2)}, v{vK}, s[16:19], 0 offen offset:32")
        a(f"buffer_load_dwordx4 {vr(Kr['E'],4)}, v{vK}, s[16:19], 0 offen")
        a(f"buffer_load_dwordx4 {vr(Kr['O'],4)}, v{vK}, s[16:19], 0 offen offset:40")
        a("s_waitcnt vmcnt(0) lgkmcnt(0)")
        a(mf_x('E')); a(mf_x('O'))
        a("s_nop 15"); a("s_nop 3")
        for par in 'EO':
            for t in 'AB': a(mf_q(t, par))
        a("s_nop 15")
    def step(lab):
        a(f"v_add_u32 v{vK}, v{vIncK}, v{vK}")
        a(f"v_add_u32 v{vV}, v{vIncV}, v{vV}")
        a("s_add_u32 s29, s29, 1")
        a("s_cmp_lg_u32 s29, 32")
        a(f"s_cbranch_scc1 {lab}")
    rewind(31)
    a(f"v_mov_b32 v{mA}, 0xff800000"); a(f"v_mov_b32 v{mB}, 0xff800000")
    a.lab("L_max")
    scores()
    for par in 'EO':
        for t, m in (('A', mA), ('B', mB)):
            s = Sr[par] + (16 if t == 'B' else 0)
            for j in range(0, 16, 2): a(f"v_max3_f32 v{m}, v{m}, v{s+j}, v{s+j+1}")
    step("L_max")
    for m in (mA, mB):
        a(f"v_mov_b32 v{vT2}, v{m}")
        a("s_nop 1")
        a(f"v_permlane32_swap_b32 v{vT2}, v{m}")
        a("s_nop 1")
        a(f"v_max_f32 v{m}, v{m}, v{vT2}")
    rewind(32)
    for r in range(120, 184): a(f"v_mov_b32 v{r}, 0")
    a.lab("L_acc")
    for par in 'EO':
        for j in range(2):
            for f in rd_v(par, j, 0): a(f)
    scores()
    for par in 'EO':
        for t, m in (('A', mA), ('B', mB)):
            s = Sr[par] + (16 if t == 'B' else 0)
            for j in range(16): a(f"v_sub_f32 v{s+j}, v{s+j}, v{m}")
            for j in range(16): a(f"v_exp_f32 v{s+j}, v{s+j}")
    a("s_nop 1")
    for par in 'EO':
        for t in 'AB':
            for j in range(2): a(mf_pv(t, par, j))
    step("L_acc")
    a("s_nop 15")
    finish('A'); finish('B')
    a("s_waitcnt lgkmcnt(0)")
    for k in range(3): store(k)
    a("s_branch L_done")
    nv = 212 if opt.stamp == 2 else NV
    a.raw(f""".section .rodata,"a"
.p2align 6
.amdhsa_kernel {NAME}_kernel
  .amdhsa_next_free_vgpr {nv}
  .amdhsa_next_free_sgpr {100 if (opt.stamp or opt.amp or opt.itst) else 48}
  .amdhsa_accum_offset {nv}
  .amdhsa_group_segment_fixed_size 0
  .amdhsa_kernarg_size 48
  .amdhsa_user_sgpr_count 2
  .amdhsa_user_sgpr_kernarg_segment_ptr 1
  .amdhsa_system_sgpr_workgroup_id_x 1
.end_amdhsa_kernel""")
    return a.text()

def parse(argv):
    p = argparse.ArgumentParser()
    p.add_argument('-o', default=f"cdna_kernels/{NAME}.s")
    p.add_argument('--grp', default='2,2')
    p.add_argument('--pf', type=int, default=1)
    p.add_argument('--kxm', type=int, default=0)
    p.add_argument('--dbl', type=int, default=2)
    p.add_argument('--itst', type=int, default=0)
    p.add_argument('--alp', type=int, default=1)
    p.add_argument('--padA', type=int, default=0)
    p.add_argument('--padB', type=int, default=0)
    p.add_argument('--prsh', type=int, default=1)
    p.add_argument('--shared', type=int, default=1)
    p.add_argument('--qfirst', type=int, default=0)
    p.add_argument('--probe', default='')
    p.add_argument('--ampwg', type=int, default=-1)
    p.add_argument('--tv', type=int, default=0)
    p.add_argument('--touch', type=int, default=0)
    p.add_argument('--b05', type=int, default=0)
    p.add_argument('--b1', type=int, default=3)
    p.add_argument('--b2', type=int, default=7)
    p.add_argument('--bdelay', type=int, default=3)
    p.add_argument('--cut', type=int, default=3)
    p.add_argument('--pos', default='2,5,15,18,21,31,25')
    p.add_argument('--tpos', default='2,5,13,18,21,26,29')
    p.add_argument('--stfl', default='sc1')
    p.add_argument('--ldfl', default='')
    p.add_argument('--qfl', default='')
    p.add_argument('--stamp', type=int, default=0)
    p.add_argument('--amp', type=int, default=0)
    p.add_argument('--ampa', type=int, default=0)
    p.add_argument('--ampb', type=int, default=8)
    p.add_argument('--ampr', default='')
    p.add_argument('--ampbase', type=int, default=-1)
    return p.parse_args(argv)

if __name__ == '__main__':
    opt = parse(sys.argv[1:])
    open(opt.o, 'w').write(gen(opt))
```

```python
import sys, struct, math, argparse

NAME = "standalone__fused_io_aware_attn__prompt"
HB = 73728
ST = 2304
VBASE = HB
CBASE = 2 * HB
ABASE = CBASE + 4096
XBASE = ABASE + 4096
LDS = XBASE + 3 * ST + 1024

def f2u(x): return struct.unpack('<I', struct.pack('<f', x))[0]
CSCALE = f2u(math.log2(math.e) / math.sqrt(18.0))

vK, vV = 2, 3
vIncK, vIncV = 4, 5
vSlot, vIdx, vQo, vDma = 1, 6, 7, 14
vT2 = 15
KX = 8
QX = {'E': 10, 'O': 12}
Kr = {'E': 16, 'O': 20}
Qr = {('A', 'E'): 24, ('B', 'E'): 28, ('A', 'O'): 32, ('B', 'O'): 36}
Vr = {('E', 0): 40, ('E', 1): 44, ('O', 0): 48, ('O', 1): 52}
Sr = {'E': 56, 'O': 88}
Or = {('A', 'E'): 120, ('B', 'E'): 136, ('A', 'O'): 152, ('B', 'O'): 168}
vStA, vStB, vStR = 184, 185, 186
Vr[('T', 0)] = 188; Vr[('T', 1)] = 192
KX0, KE0, KO0 = 196, 198, 202
NV = 208
AL = dict(on=False)
def kx(): return KX0 if AL['on'] else KX
def kr(par): return {'E': KE0, 'O': KO0}[par] if AL['on'] else Kr[par]
def vv(par, j): return Vr[('T', j)] if (AL['on'] and par == 'E') else Vr[(par, j)]

def vr(b, n): return f"v[{b}:{b+n-1}]"

class Asm:
    def __init__(self): self.l = []
    def __call__(self, s): self.l.append("    " + s)
    def lab(self, s): self.l.append(s + ":")
    def raw(self, s): self.l.append(s)
    def text(self): return "\n".join(self.l) + "\n"

def mf_x(par):
    return f"v_mfma_f32_32x32x4_2b_bf16 {vr(Sr[par],32)}, {vr(kx(),2)}, {vr(QX[par],2)}, 0 cbsz:1 abid:0"
def mf_q(t, par):
    s = Sr[par] + (16 if t == 'B' else 0)
    return f"v_mfma_f32_32x32x16_bf16 {vr(s,16)}, {vr(kr(par),4)}, {vr(Qr[(t,par)],4)}, {vr(s,16)}"
def mf_pv(t, par, j, vs=None):
    s = Sr[par] + (16 if t == 'B' else 0) + 8 * j
    return f"v_smfmac_f32_32x32x32_bf16 {vr(Or[(t,par)],16)}, {vr(vv(vs or par,j),4)}, {vr(s,8)}, v{vIdx}"
def ex(par, i): return f"v_exp_f32 v{Sr[par]+i}, v{Sr[par]+i}"
def rd_kx(u): return [f"ds_read_b64 {vr(kx(),2)}, v{vK} offset:{u*ST+32}"]
def rd_k(par, u):
    o = u * ST + (40 if par == 'O' else 0)
    return [f"ds_read_b64 {vr(kr(par),2)}, v{vK} offset:{o}", f"ds_read_b64 {vr(kr(par)+2,2)}, v{vK} offset:{o+8}"]
def rd_v(par, j, u):
    o = u * ST + (32 if par != 'E' else 0) + 16 * j * 72
    return [f"ds_read_b64_tr_b16 {vr(vv(par,j),2)}, v{vV} offset:{o}", f"ds_read_b64_tr_b16 {vr(vv(par,j)+2,2)}, v{vV} offset:{o+4*72}"]

def phase_list(par, opt, look=True):
    oth = 'O' if par == 'E' else 'E'
    pos = [int(x) for x in (opt.pos if look else opt.tpos).split(',')]
    mf = {pos[0]: mf_pv('B', oth, 1), pos[2]: mf_pv('A', par, 0), pos[3]: mf_pv('A', par, 1), pos[5]: mf_pv('B', par, 0)}
    if look:
        mf.update({pos[1]: mf_x(oth), pos[4]: mf_q('A', oth), pos[6]: mf_q('B', oth)})
    out = []
    for i in range(32):
        if i in mf: out.append((i, 'm', mf[i]))
        out.append((i, 'e', ex(par, i)))
    return out

def gen(opt):
    a = Asm()
    def stamp(i):
        if opt.stamp and (opt.stamp != 3 or i in (0, 7, 8)): a(f"s_memtime s[{60+2*i}:{61+2*i}]")
        if opt.amp and i in (opt.ampa, opt.ampb): a(f"{'s_memtime' if opt.ampbase >= 0 else 's_memrealtime'} s[{60+2*i}:{61+2*i}]")
    smem = opt.stamp in (1, 2) or (opt.amp and not (opt.ampa in (0, 7) and opt.ampb in (7, 8)))
    def lgkm(n): a(f"s_waitcnt lgkmcnt({0 if smem else n})")
    a.raw(f"""; Fused attention forward, B=2 H=32 S=2048 D=18, bf16 in/out (written by my generator gen/gen8.py).
; @launch grid=(256,1,1) block=(512,1,1) lds={LDS}
.amdgcn_target "amdgcn-amd-amdhsa--gfx950"
.text
.globl {NAME}_kernel
.p2align 8
.type {NAME}_kernel,@function
{NAME}_kernel:""")
    stamp(0)
    if opt.stamp: a("s_memrealtime s[56:57]")
    a("s_load_dwordx8 s[4:11], s[0:1], 0")
    if opt.pf:
        a("s_getpc_b64 s[36:37]")
        a(f"v_mul_u32_u24 v{vT2}, 9, v0")
        a(f"global_load_ubyte v{vT2}, v{vT2}, s[36:37] offset:116")
    a("v_readfirstlane_b32 s24, v0")
    a("s_and_b32 s3, s2, 7")
    a("s_lshr_b32 s25, s2, 3")
    a("s_lshl_b32 s3, s3, 5")
    a("s_add_u32 s3, s3, s25")
    a("s_cmpk_ge_u32 s2, 256")
    a("s_cbranch_scc1 L_end")
    a(f"v_lshl_add_u32 v{vQo}, s3, 9, v0")
    a(f"v_mul_u32_u24 v{vQo}, 36, v{vQo}")
    a("s_cmpk_ge_u32 s24, 256")
    a("s_cbranch_scc1 L_setup")
    t0, t1 = Sr['E'] + 8, Sr['E'] + 9
    T = Sr['O']
    ldf = opt.ldfl.replace('_', ' ')
    qf = opt.qfl.replace('_', ' ')
    def qloads():
        a(f"global_load_dword v{T+8}, v{vQo}, s[4:5] offset:32 {qf}")
        a(f"global_load_dwordx4 {vr(T,4)}, v{vQo}, s[4:5] {qf}")
        a(f"global_load_dwordx4 {vr(T+4,4)}, v{vQo}, s[4:5] offset:16 {qf}")
    def addr0():
        a("s_lshl_b32 m0, s24, 5")
        a("s_lshr_b32 s25, s3, 2")
        a(f"s_mul_i32 s25, s25, {HB}")
        a("s_lshl4_add_u32 s26, s24, s25")
        a(f"v_lshl_add_u32 v{t0}, v0, 4, s26")
    def quad0():
        a(f"global_load_lds_dwordx4 v{t0}, s[6:7] {ldf}")
        a(f"global_load_lds_dwordx4 v{t0}, s[6:7] offset:1024 {ldf}")
        a(f"s_add_u32 m0, m0, {VBASE}")
        a("s_nop 0")
        a(f"global_load_lds_dwordx4 v{t0}, s[8:9] {ldf}")
        a(f"global_load_lds_dwordx4 v{t0}, s[8:9] offset:1024 {ldf}")
    if opt.qfirst:
        a("s_waitcnt lgkmcnt(0)")
        stamp(1)
        qloads(); addr0(); quad0()
    else:
        addr0()
        a("s_waitcnt lgkmcnt(0)")
        stamp(1)
        if opt.vlate:
            a(f"global_load_lds_dwordx4 v{t0}, s[6:7] {ldf}")
            a(f"global_load_lds_dwordx4 v{t0}, s[6:7] offset:1024 {ldf}")
            a(f"s_add_u32 m0, m0, {VBASE}")
            qloads()
            a(f"global_load_lds_dwordx4 v{t0}, s[8:9] {ldf}")
            a(f"global_load_lds_dwordx4 v{t0}, s[8:9] offset:1024 {ldf}")
        else:
            quad0(); qloads()
    a.lab("L_setup")
    if opt.stamp:
        a("s_load_dwordx2 s[40:41], s[0:1], 40")
        if opt.stamp == 3:
            for i in range(62, 74): a(f"s_mov_b32 s{i}, 0")
    a(f"v_lshlrev_b32 v{vSlot}, 3, v0")
    a("v_and_b32 v0, 63, v0")
    a("s_lshr_b32 s24, s24, 6")
    a("s_lshr_b32 s25, s3, 2")
    a(f"s_mul_i32 s25, s25, {HB}")
    a("s_lshl3_add_u32 s26, s3, s24")
    a(f"s_mul_i32 s26, s26, {ST}")
    a(f"v_lshlrev_b32 v{vDma}, 4, v0")
    a("s_lshl_b32 s27, s24, 11")
    a("s_cmp_lt_u32 s24, 4")
    a("s_cselect_b32 s28, 16384, 0")
    a("s_add_u32 s27, s27, s28")
    a("s_mov_b32 m0, s27")
    a(f"s_mov_b32 s18, {HB}")
    a("s_mov_b32 s19, 0x00020000")
    a(f"s_mov_b32 s46, {HB}")
    a("s_mov_b32 s47, 0x00020000")
    def quad():
        a(f"buffer_load_dwordx4 v{vDma}, s[16:19], s27 offen {ldf} lds")
        a(f"buffer_load_dwordx4 v{vDma}, s[16:19], s27 offen offset:1024 {ldf} lds")
        a("s_add_u32 m0, s27, s18")
        a("s_nop 0")
        a(f"buffer_load_dwordx4 v{vDma}, s[44:47], s27 offen {ldf} lds")
        a(f"buffer_load_dwordx4 v{vDma}, s[44:47], s27 offen offset:1024 {ldf} lds")
        a("s_add_u32 m0, s27, 16384")
        a("s_add_u32 s27, s27, 16384")
    a("s_waitcnt lgkmcnt(0)")
    a("s_add_u32 s16, s6, s25")
    a("s_addc_u32 s17, s7, 0")
    a("s_add_u32 s44, s8, s25")
    a("s_addc_u32 s45, s9, 0")
    a(f"v_and_b32 v{t0}, 31, v0")
    a(f"v_lshrrev_b32 v{t1}, 5, v0")
    a("s_add_u32 s20, s10, s26")
    a("s_addc_u32 s21, s11, 0")
    a(f"s_movk_i32 s22, {ST}")
    a("s_mov_b32 s23, 0x00020000")
    C = Sr['E']
    a(f"v_and_b32 v{C}, 1, v0")
    a(f"v_subrev_u32 v{C}, 1, v{C}")
    a(f"v_and_b32 v{C}, 0x3f80, v{C}")
    a(f"v_mov_b32 v{C+1}, 0")
    a(f"v_add_u32 v{vSlot}, {CBASE}, v{vSlot}")
    a(f"ds_write_b64 v{vSlot}, {vr(C,2)}")
    a(f"v_mov_b32 v{QX['E']}, 0"); a(f"v_mov_b32 v{QX['E']+1}, 0"); a(f"v_mov_b32 v{QX['O']}, 0")
    a(f"v_mul_u32_u24 v{vK}, 72, v{t0}")
    a(f"v_lshl_add_u32 v{vK}, v{t1}, 4, v{vK}")
    a(f"v_mfma_f32_32x32x4_2b_bf16 {vr(120,32)}, {vr(QX['E'],2)}, {vr(QX['E'],2)}, 0")
    a(f"v_mfma_f32_32x32x4_2b_bf16 {vr(152,32)}, {vr(QX['E'],2)}, {vr(QX['E'],2)}, 0")
    t3, t4, t5 = C + 4, C + 5, C + 6
    a(f"v_bfe_u32 v{t3}, v0, 2, 2")
    a(f"v_lshl_add_u32 v{t3}, v{t1}, 3, v{t3}")
    a(f"v_mul_u32_u24 v{t3}, 72, v{t3}")
    a(f"v_and_b32 v{t4}, 1, v0")
    a(f"v_lshl_add_u32 v{t3}, v{t4}, 4, v{t3}")
    a(f"v_and_b32 v{t4}, 2, v0")
    a(f"v_lshl_add_u32 v{t3}, v{t4}, 2, v{t3}")
    a(f"v_lshlrev_b32 v{t5}, 6, v{t1}")
    a(f"v_lshlrev_b32 v{t4}, 2, v{t4}")
    a(f"v_sub_u32 v{t5}, v{t5}, v{t4}")
    a(f"v_add_u32 v{t5}, {CBASE+56}, v{t5}")
    a(f"v_and_b32 v{t4}, 16, v0")
    a(f"v_add3_u32 v{t3}, v{t4}, v{t3}, s18")
    a("s_mov_b32 vcc_lo, 0xdddd0000"); a("s_mov_b32 vcc_hi, 0xdddd0000")
    a(f"v_mov_b32 v{vIdx}, 0xdddd")
    a(f"v_mov_b32 v{vIncK}, {ST}")
    a(f"v_cndmask_b32 v{vIncV}, v{vIncK}, 0, vcc")
    a(f"v_cndmask_b32 v{vV}, v{t3}, v{t5}, vcc")
    a(f"v_add_u32 v{C+2}, v{vK}, v{vIncK}")
    a(f"v_add_u32 v{C+3}, v{vV}, v{vIncV}")
    a(f"ds_write_b64 v{vSlot}, {vr(C+2,2)} offset:4096")
    a(f"s_mul_i32 s28, s24, {ST}")
    a("s_cmp_ge_u32 s24, 5")
    a(f"s_cselect_b32 s29, {XBASE - 5*ST}, 0")
    a("s_add_u32 s28, s28, s29")
    a(f"v_mul_u32_u24 v{vStA}, 36, v{t0}")
    a(f"v_lshl_add_u32 v{vStA}, v{t1}, 4, v{vStA}")
    a(f"v_add_u32 v{vStA}, s28, v{vStA}")
    a(f"v_add_u32 v{vStB}, 1152, v{vStA}")
    a(f"v_add_u32 v{vStR}, s28, v{vDma}")
    a(f"s_mov_b32 s30, {CSCALE:#x}"); a(f"s_mov_b32 s31, {CSCALE:#x}")
    a("s_mov_b32 s29, 1")
    b1, b2 = opt.b1, opt.b2
    assert b1 == 3 and 6 <= b2 <= 7
    a(f"s_mov_b32 s32, {(1 << (b1-1)) | (1 << (b2-1)):#x}")
    a(f"s_mov_b32 s33, {(1 << (b1-1)) | (1 << (b2-1)) | (1 << 31):#x}")
    a("s_mov_b32 s34, 0xffff0000")
    a("s_mov_b32 s35, 0x6c800000")
    a("s_mov_b64 vcc, 0")
    a("s_cmp_ge_u32 s24, 4")
    if not opt.shared: a("s_cbranch_scc1 L_proB")
    burst = rd_kx(1) + rd_v('O', 0, 0) + rd_k('E', 1) + rd_v('O', 1, 0) + rd_v('E', 0, 1) + rd_v('E', 1, 1) + rd_k('O', 1)
    bump = f"ds_add_rtn_u64 {vr(vK,2)}, v{vSlot}, {vr(vIncK,2)} offset:4096"
    AL['on'] = True
    rd0 = rd_kx(0) + rd_k('E', 0) + rd_k('O', 0) + rd_v('E', 0, 0) + rd_v('E', 1, 0) + burst + [bump]
    W = T + 10
    wof = {}
    def unpack(src, k):
        w = W + 2 * k; wof[src] = w
        a(f"v_lshlrev_b32 v{w}, 16, v{src}")
        a(f"v_and_b32 v{w+1}, 0xffff0000, v{src}")
        a(f"v_pk_mul_f32 {vr(w,2)}, {vr(w,2)}, s[30:31]")
    def pack(src, d): a(f"v_cvt_pk_bf16_f32 v{d}, v{wof[src]}, v{wof[src]+1}")
    QAE, QBE, QAO, QBO = Qr[('A','E')], Qr[('B','E')], Qr[('A','O')], Qr[('B','O')]
    def prep(nlater, mfma):
        a(f"s_waitcnt vmcnt({2+nlater})")
        if not mfma and opt.bdelay == 3: a("s_barrier")
        unpack(T + 8, 8)
        pack(T + 8, QX['E']); pack(T + 8, QBO + 3)
        a(f"s_waitcnt vmcnt({1+nlater})")
        if mfma: a(mf_x('E'))
        for j in range(4): unpack(T + j, j)
        for j in range(4): pack(T + j, QAE + j)
        pack(T, QX['O'] + 1)
        a(f"s_waitcnt vmcnt({nlater})")
        stamp(4)
        for j in range(4, 8): unpack(T + j, j)
        for j in range(4): pack(T + 4 + j, QBE + j)
        for j in range(4): a(f"v_permlane32_swap_b32 v{QAE+j}, v{QBE+j}")
        pack(T + 4, QAO + 3)
        a(f"v_mov_b32 v{QAO}, v{QAE+1}")
        if mfma: a(mf_q('A', 'E'))
        a(f"v_mov_b32 v{QAO+1}, v{QAE+2}")
        a(f"v_permlane32_swap_b32 v{QAO+3}, v{QBO+3}")
        a(f"v_mov_b32 v{QAO+2}, v{QAE+3}")
        for j in range(0, 3): a(f"v_mov_b32 v{QBO+j}, v{QBE+j+1}")
        if mfma: a(mf_q('B', 'E'))
    if opt.shared:
        assert not opt.qfirst
        rdK = [f for f in rd0 if f.startswith('ds_read_b64 ')]
        rdV = [f for f in rd0 if not f.startswith('ds_read_b64 ')]
        nl = 2 if opt.vlate else 0
        if opt.vlate:
            a.raw("    .p2align 3")
            a("s_waitcnt vmcnt(5) lgkmcnt(0)")
            stamp(2)
            a("s_barrier")
            if opt.vlate == 1:
                a("s_cbranch_scc0 L_noq")
                qloads()
                a("s_nop 0")
                a.lab("L_noq")
                for f in rdK: a(f)
                a("s_cbranch_scc1 L_vB")
                a.lab("L_prep")
                lgkm(7)
            else:
                a("s_cbranch_scc1 L_vB")
                a("s_nop 0")
                for f in rdK: a(f)
                lgkm(7)
                a("s_nop 0")
                a.lab("L_prep")
            stamp(3)
        else:
            if opt.bdelay == 3:
                a("s_waitcnt vmcnt(5)")
                a("s_barrier")
            a("s_cbranch_scc0 L_noq")
            qloads()
            a.lab("L_noq")
            if opt.alp: a.raw("    .p2align 3")
            a("s_waitcnt vmcnt(3) lgkmcnt(0)")
            stamp(2)
            a("s_barrier")
            for f in rd0[:13]: a(f)
            lgkm(4)
            if opt.alp: a("s_setprio 3")
            for f in rd0[13:]: a(f)
            stamp(3)
        if opt.alp:
            def shl(j): a(f"v_lshlrev_b32 v{W+2*j}, 16, v{T+j}")
            def msk(j): a(f"v_and_b32 v{W+2*j+1}, s34, v{T+j}")
            def mul(j): a(f"v_pk_mul_f32 {vr(W+2*j,2)}, {vr(W+2*j,2)}, s[30:31]")
            def cvt(j, d): a(f"v_cvt_pk_bf16_f32 v{d}, v{W+2*j}, v{W+2*j+1}")
            a(f"s_waitcnt vmcnt({1+nl})")
            shl(8); msk(8); shl(0); mul(8); cvt(8, QX['E']); cvt(8, QBO + 3)
            msk(0); shl(1)
            a(mf_x('E'))
            mul(0)
            for j in range(1, 3): msk(j); shl(j + 1); mul(j)
            msk(3)
            a(f"s_waitcnt vmcnt({nl})")
            stamp(4)
            mul(3)
            for j in range(4): cvt(j, QAE + j)
            for j in range(4, 8): shl(j); msk(j); mul(j)
            for j in range(4): cvt(4 + j, QBE + j)
            for j in range(4): a(f"v_permlane32_swap_b32 v{QAE+j}, v{QBE+j}")
            cvt(4, QAO + 3)
            cvt(0, QX['O'] + 1)
            a(mf_q('A', 'E'))
            a("s_waitcnt lgkmcnt(0)")
            a(f"v_permlane32_swap_b32 v{QAO+3}, v{QBO+3}")
            for j in range(0, 3): a(f"v_mov_b32 v{QAO+j}, v{QAE+j+1}")
            for j in range(0, 3): a(f"v_mov_b32 v{QBO+j}, v{QBE+j+1}")
            a(mf_q('B', 'E'))
            a("s_cbranch_scc1 L_startB")
            a("s_setprio 2")
            if opt.vlate:
                a("s_waitcnt vmcnt(0)")
                a("s_barrier")
                for f in rdV: a(f)
            else:
                a("s_nop 0")
        else:
            a("s_setprio 3")
            prep(0, True)
            a("s_cbranch_scc1 L_startB")
            a("s_setprio 2")
            a("s_nop 1")
            a("s_waitcnt lgkmcnt(0)")
    if not opt.shared: a("s_setprio 2")
    if opt.shared: pass
    elif opt.qfirst:
        prep(4, False)
        a("s_waitcnt vmcnt(0) lgkmcnt(0)")
        stamp(2)
        a("s_barrier")
        for f in rd0[:9]: a(f)
        lgkm(8)
        stamp(3)
        a(mf_x('E'))
        for f in rd0[9:15]: a(f)
        lgkm(7)
        for f in rd0[15:]: a(f)
        a("s_nop 2")
        a(mf_q('A', 'E'))
        a("s_nop 9")
        a("s_waitcnt lgkmcnt(0)")
        a(mf_q('B', 'E'))
    else:
        if opt.bdelay == 3:
            a("s_waitcnt vmcnt(5)")
            a("s_barrier")
        a("s_waitcnt vmcnt(3) lgkmcnt(0)")
        stamp(2)
        a("s_barrier")
        for f in rd0[:13]: a(f)
        lgkm(4)
        for f in rd0[13:]: a(f)
        stamp(3)
        prep(0, True)
        a("s_nop 3")
        a("s_waitcnt lgkmcnt(0)")
    cut = opt.cut
    pos0 = int(opt.pos.split(',')[0])
    assert cut > pos0
    a.lab("L_first")
    stamp(5)
    waited = not opt.vlate
    for (i, k_, s_) in phase_list('E', opt):
        if i == pos0 and k_ == 'm': continue
        if not waited and 'smfmac' in s_:
            a("s_waitcnt lgkmcnt(0)"); waited = True
        a(s_)
    for (i, k_, s_) in phase_list('O', opt):
        if i < cut: a(s_)
    AL['on'] = False
    pE, pO = phase_list('E', opt), phase_list('O', opt)
    for (i, k_, s_) in pO:
        if i >= cut: a(s_)
    for (i, k_, s_) in pE: a(s_)
    for (i, k_, s_) in pO:
        if i < cut: a(s_)
    a("s_cbranch_scc0 L_topA")
    a("s_branch L_topB")
    if not opt.shared:
        a.lab("L_proB")
        AL['on'] = True
        if opt.bdelay == 3: a("s_barrier")
        if opt.bdelay != 2: qloads()
        a("s_waitcnt lgkmcnt(0)")
        stamp(2)
        a("s_barrier")
        if opt.bdelay == 2: qloads()
        for f in rd0[:13]: a(f)
        lgkm(4)
        for f in rd0[13:]: a(f)
        a("s_setprio 3")
        stamp(3)
        prep(0, True)
        AL['on'] = False
    if opt.vlate:
        a.lab("L_vB")
        if opt.vlate == 2:
            qloads()
            for f in rdK: a(f)
        a("s_waitcnt lgkmcnt(0)")
        a("s_barrier")
        for f in rdV: a(f)
        a("s_setprio 3")
        a("s_waitcnt vmcnt(0)")
        a("s_branch L_prep")
    a.lab("L_startB")
    a("s_setprio 1")
    quad()
    a("s_cmp_ge_u32 s24, 4")
    a("s_waitcnt lgkmcnt(0)")
    a("s_branch L_first")
    if opt.kxm: burst = ["s_mov_b32 exec_hi, 0", burst[0], "s_mov_b32 exec_hi, -1"] + burst[1:]
    for role in 'AB':
        a.raw("    .p2align 6")
        pad = opt.padA if role == 'A' else opt.padB
        if pad: a.raw(f"    .fill {pad}, 4, 0xbf800000")
        a.lab(f"L_top{role}")
        if role == 'A': a("s_setprio 0")
        a("s_add_u32 s29, s29, 1")
        if opt.itst: a("s_memtime s[48:49]")
        for f in burst: a(f)
        a("s_cmp_lg_u32 s29, 31")
        a(f"s_cbranch_scc1 L_nl{role}")
        a("s_mov_b64 vcc, 1")
        a("s_waitcnt lgkmcnt(8)")
        for f in rd_v('T', 0, 1) + rd_v('T', 1, 1): a(f)
        a.lab(f"L_nl{role}")
        a(f"ds_add_rtn_u64 {vr(vK,2)}, v{vSlot}, {vr(vIncK,2)} offset:4096")
        if opt.stamp == 2:
            a("s_memtime s[80:81]"); a("s_memrealtime s[82:83]")
        if opt.itst:
            a("s_waitcnt lgkmcnt(0)")
            a("s_mov_b32 m0, s29")
            a("s_nop 0")
            a("s_movreld_b32 s62, s48")
            a("s_mov_b32 m0, s27")
            a("s_nop 0")
        a("s_cmp_gt_u32 s29, 4")
        a(f"s_cbranch_scc1 L_nd{role}")
        quad()
        if role == 'A':
            a(f"s_cmp_lg_u32 s29, {opt.dbl}")
            a("s_cbranch_scc1 L_ndA")
            quad()
        a.lab(f"L_nd{role}")
        a(f"s_cmp_lg_u32 s29, {b2-1}")
        a(f"s_cbranch_scc1 L_nw{role}")
        a("s_waitcnt vmcnt(0)")
        if opt.touch and role == 'A':
            a(f"buffer_load_dword v{vT2}, off, s[20:23], 0")
        a.lab(f"L_nw{role}")
        a(f"s_bitcmp1_b32 {'s33' if role == 'A' else 's32'}, s29")
        a("s_waitcnt lgkmcnt(0)")
        if opt.stamp == 2:
            a("s_mov_b32 s84, m0"); a("s_mov_b32 m0, s29")
            a("v_writelane_b32 v208, s80, m0"); a("v_writelane_b32 v209, s82, m0"); a("s_mov_b32 m0, s84")
        if role == 'B':
            a("s_cbranch_scc0 L_goB")
            a("s_waitcnt vmcnt(4)")
            a("s_barrier")
            a.lab("L_goB")
        first = True
        for (i, k_, s_) in pO:
            if i < cut: continue
            a(s_)
            if first and role == 'A' and (not opt.prsh or 'smfmac' in s_):
                a("s_setprio 2")
                first = False
        for (i, k_, s_) in pE: a(s_)
        for (i, k_, s_) in pO:
            if i < cut: a(s_)
        if role == 'A':
            a("s_cbranch_scc0 L_topA")
            a("s_cbranch_vccnz L_tail")
            a("s_barrier")
            a("s_branch L_topA")
        else:
            a("s_cbranch_vccz L_topB")
    R = Sr['E']
    PK = {'A': Sr['E'] + 8, 'B': Sr['E'] + 14}
    OB = Sr['E'] + 20
    fl = opt.stfl.replace('_', ' ')
    def finish(t, ds=True):
        E, O = Or[(t, 'E')], Or[(t, 'O')]
        l, rc = (R, R + 2) if t == 'A' else (R + 1, R + 4)
        a(f"v_add_f32 v{l}, v{E+12}, v{O+12}")
        a(f"v_rcp_f32 v{rc}, v{l}")
        a(f"v_permlane32_swap_b32 v{O}, v{O+8}")
        a(f"v_permlane32_swap_b32 v{O+1}, v{O+9}")
        for j in (8, 0, 2, 4, 6):
            a(f"v_pk_add_f32 {vr(E+j,2)}, {vr(E+j,2)}, {vr(O+j+2,2)}")
        for j in (8, 0, 2, 4, 6):
            a(f"v_pk_mul_f32 {vr(E+j,2)}, {vr(E+j,2)}, {vr(rc,2)} op_sel_hi:[1,0]")
        st = vStA if t == 'A' else vStB
        for j in (4, 0, 1, 2, 3):
            a(f"v_cvt_pk_bf16_f32 v{PK[t]+j}, v{E+2*j}, v{E+2*j+1}")
        if not ds: return
        a(f"ds_write_b32 v{st}, v{PK[t]+4} offset:16")
        a(f"ds_write2_b32 v{st}, v{PK[t]}, v{PK[t]+1} offset0:0 offset1:1")
        a(f"ds_write2_b32 v{st}, v{PK[t]+2}, v{PK[t]+3} offset0:2 offset1:3")
        if t == 'A':
            a(f"ds_read_b128 {vr(OB,4)}, v{vStR}")
        else:
            a(f"ds_read_b128 {vr(OB+4,4)}, v{vStR} offset:1024")
            a(f"ds_read_b128 {vr(OB+8,4)}, v{vStR} offset:2048")
    def store(k): a(f"buffer_store_dwordx4 {vr(OB+4*k,4)}, v{vDma}, s[20:23], 0 offen offset:{1024*k} {fl}")
    def dot(t, j): a(f"v_dot2c_f32_bf16 v{R if t == 'A' else R+1}, 0, v{PK[t]+j}")
    a.lab("L_tail")
    tm = {10: mf_pv('A', 'O', 0, 'T'), 18: mf_pv('A', 'O', 1, 'T'), 26: mf_pv('B', 'O', 0, 'T')}
    for i in range(cut, 32):
        if i in tm: a(tm[i])
        if i == 29:
            n0 = len(a.l)
            finish('A', ds=(opt.tv <= 0))
            if opt.tv < 0:
                lateA = a.l[n0+9:]; del a.l[n0+9:]
        a(ex('O', i))
    stamp(6)
    if opt.tv < 0:
        a.l[-1] = a.l[-1].replace("v_exp_f32 ", "v_exp_f32_e64 ")
        a.l += lateA[:2]
        a(mf_pv('B', 'O', 1, 'T'))
        a.l += lateA[2:]
        n0 = len(a.l)
        finish('B')
        a.l[n0-opt.tv:n0-opt.tv] = ["    s_waitcnt lgkmcnt(0)", f"    buffer_store_dwordx4 {vr(OB,4)}, v{vDma}, s[20:23], 0 offen {fl}", "    s_nop 0"]
    elif opt.tv == 0:
        a("s_nop 1")
        a(mf_pv('B', 'O', 1, 'T'))
        a("s_nop 9")
        lgkm(0)
        store(0)
        finish('B')
    else:
        a(f"ds_write_b32 v{vStA}, v{PK['A']+4} offset:16")
        a(f"ds_write2_b32 v{vStA}, v{PK['A']}, v{PK['A']+1} offset0:0 offset1:1")
        a(mf_pv('B', 'O', 1, 'T'))
        a(f"ds_write2_b32 v{vStA}, v{PK['A']+2}, v{PK['A']+3} offset0:2 offset1:3")
        a(f"ds_read_b128 {vr(OB,4)}, v{vStR}")
        a("s_nop 9")
        n0 = len(a.l)
        finish('B')
        a.l[n0+opt.tv:n0+opt.tv] = ["    s_waitcnt lgkmcnt(0)", f"    buffer_store_dwordx4 {vr(OB,4)}, v{vDma}, s[20:23], 0 offen {fl}"]
    lgkm(1)
    store(1)
    lgkm(0)
    store(2)
    stamp(7)
    a("s_setprio 0")
    for t in 'AB':
        for j in range(5): dot(t, j)
    a(f"v_cmp_nge_f32 s[36:37], v{R}, 1.0")
    a(f"v_cmp_nle_f32 vcc, v{R}, s35")
    a("s_or_b64 s[36:37], s[36:37], vcc")
    a(f"v_cmp_nge_f32 s[38:39], v{R+1}, 1.0")
    a(f"v_cmp_nle_f32 vcc, v{R+1}, s35")
    a("s_or_b64 s[36:37], s[36:37], s[38:39]")
    a("s_or_b64 s[36:37], s[36:37], vcc")
    a("s_cbranch_scc1 L_check")
    a.lab("L_done")
    if opt.amp:
        a("s_waitcnt vmcnt(0)")
        stamp(8)
        a("s_memrealtime s[42:43]")
        a("s_waitcnt lgkmcnt(0)")
        a(f"s_sub_u32 s50, s{60+2*opt.ampb}, s{60+2*opt.ampa}")
        if opt.ampbase >= 0:
            a(f"s_max_u32 s50, s50, {opt.ampbase}")
            a(f"s_sub_u32 s50, s50, {opt.ampbase}")
            if opt.ampwg == -2:
                a("s_load_dwordx2 s[54:55], s[0:1], 32")
                a(f"s_cmp_lg_u32 s24, {3 if opt.ampr == 'A' else 7}")
                a("s_cbranch_scc1 L_end")
                a("s_add_u32 s51, s50, 0x1000000")
                a("s_mov_b64 exec, 1")
                a("v_mov_b32 v16, s51"); a("v_mov_b32 v17, 0")
                a("s_waitcnt lgkmcnt(0)")
                a("global_atomic_add v18, v17, v16, s[54:55] sc0 sc1")
                a("s_waitcnt vmcnt(0)")
                a("v_readfirstlane_b32 s51, v18")
                a("s_nop 3")
                a("s_add_u32 s50, s50, s51")
                a("s_and_b32 s50, s50, 0xffffff")
                a("s_lshr_b32 s50, s50, 8")
                a("s_lshr_b32 s51, s51, 24")
                a("s_cmp_lg_u32 s51, 255")
            elif opt.ampwg >= 0: a(f"s_cmp_lg_u32 s2, {opt.ampwg}")
            else: a("s_and_b32 s51, s2, 7")
            a("s_cselect_b32 s50, 0, s50")
        a(f"s_mul_i32 s50, s50, {opt.amp}")
        a("s_min_u32 s50, s50, 20000")
        if opt.ampr:
            a("s_cmp_lt_u32 s24, 4")
            a("s_cselect_b32 s50, s50, 0" if opt.ampr == 'A' else "s_cselect_b32 s50, 0, s50")
        a.lab("L_spin")
        a("s_sleep 2")
        a("s_memrealtime s[52:53]")
        a("s_waitcnt lgkmcnt(0)")
        a("s_sub_u32 s51, s52, s42")
        a("s_cmp_lt_u32 s51, s50")
        a("s_cbranch_scc1 L_spin")
    if opt.itst:
        a("s_load_dwordx2 s[40:41], s[0:1], 40")
        for i in range(32): a(f"v_writelane_b32 v16, s{62+i}, {i}")
        a("s_lshl_b32 s50, s2, 3"); a("s_add_u32 s50, s50, s24"); a("s_lshl_b32 s50, s50, 8")
        a(f"v_lshrrev_b32 v1, 2, v{vDma}")
        a("v_add_u32 v1, s50, v1")
        a("s_waitcnt lgkmcnt(0)")
        a("global_store_dword v1, v16, s[40:41]")
    if opt.stamp:
        a("s_mov_b64 exec, 1")
        a("s_waitcnt vmcnt(0)")
        stamp(8)
        a("s_memrealtime s[58:59]")
        a("s_getreg_b32 s42, hwreg(HW_REG_HW_ID)")
        a("s_getreg_b32 s43, hwreg(HW_REG_XCC_ID)")
        a("s_waitcnt lgkmcnt(0)")
        for i, sr in enumerate((56, 58, 42, 43, 60, 62, 64, 66, 68, 70, 72, 74, 76)):
            a(f"v_mov_b32 v{16+i}, s{sr}")
        a("s_lshl_b32 s50, s2, 3"); a("s_add_u32 s50, s50, s24"); a("s_lshl_b32 s50, s50, 6")
        a("v_mov_b32 v1, s50")
        for i in range(4): a(f"global_store_dwordx4 v1, v[{16+4*i}:{19+4*i}], s[40:41] offset:{16*i}")
        if opt.stamp == 2:
            a("s_mov_b64 exec, -1")
            a("s_lshl_b32 s50, s50, 3"); a("s_add_u32 s50, s50, 0x100000")
            a("v_lshl_add_u32 v1, v0, 3, s50")
            a("global_store_dwordx2 v1, v[208:209], s[40:41]")
    a.lab("L_end")
    a("s_endpgm")
    a.lab("L_check")
    a("s_waitcnt vmcnt(0)")
    mA, mB = 0, vSlot
    if opt.stamp == 2: mA = 187
    def rewind(n):
        a(f"v_subrev_u32 v{vK}, {n*ST}, v{vK}")
        a(f"v_mul_u32_u24 v{vT2}, {n}, v{vIncV}")
        a(f"v_sub_u32 v{vV}, v{vV}, v{vT2}")
        a("s_mov_b32 s29, 0")
    def scores():
        a(f"buffer_load_dwordx2 {vr(KX,2)}, v{vK}, s[16:19], 0 offen offset:32")
        a(f"buffer_load_dwordx4 {vr(Kr['E'],4)}, v{vK}, s[16:19], 0 offen")
        a(f"buffer_load_dwordx4 {vr(Kr['O'],4)}, v{vK}, s[16:19], 0 offen offset:40")
        a("s_waitcnt vmcnt(0) lgkmcnt(0)")
        a(mf_x('E')); a(mf_x('O'))
        a("s_nop 15"); a("s_nop 3")
        for par in 'EO':
            for t in 'AB': a(mf_q(t, par))
        a("s_nop 15")
    def step(lab):
        a(f"v_add_u32 v{vK}, v{vIncK}, v{vK}")
        a(f"v_add_u32 v{vV}, v{vIncV}, v{vV}")
        a("s_add_u32 s29, s29, 1")
        a("s_cmp_lg_u32 s29, 32")
        a(f"s_cbranch_scc1 {lab}")
    rewind(31)
    a(f"v_mov_b32 v{mA}, 0xff800000"); a(f"v_mov_b32 v{mB}, 0xff800000")
    a.lab("L_max")
    scores()
    for par in 'EO':
        for t, m in (('A', mA), ('B', mB)):
            s = Sr[par] + (16 if t == 'B' else 0)
            for j in range(0, 16, 2): a(f"v_max3_f32 v{m}, v{m}, v{s+j}, v{s+j+1}")
    step("L_max")
    for m in (mA, mB):
        a(f"v_mov_b32 v{vT2}, v{m}")
        a("s_nop 1")
        a(f"v_permlane32_swap_b32 v{vT2}, v{m}")
        a("s_nop 1")
        a(f"v_max_f32 v{m}, v{m}, v{vT2}")
    rewind(32)
    for r in range(120, 184): a(f"v_mov_b32 v{r}, 0")
    a.lab("L_acc")
    for par in 'EO':
        for j in range(2):
            for f in rd_v(par, j, 0): a(f)
    scores()
    for par in 'EO':
        for t, m in (('A', mA), ('B', mB)):
            s = Sr[par] + (16 if t == 'B' else 0)
            for j in range(16): a(f"v_sub_f32 v{s+j}, v{s+j}, v{m}")
            for j in range(16): a(f"v_exp_f32 v{s+j}, v{s+j}")
    a("s_nop 1")
    for par in 'EO':
        for t in 'AB':
            for j in range(2): a(mf_pv(t, par, j))
    step("L_acc")
    a("s_nop 15")
    finish('A'); finish('B')
    a("s_waitcnt lgkmcnt(0)")
    for k in range(3): store(k)
    a("s_branch L_done")
    nv = 212 if opt.stamp == 2 else NV
    a.raw(f""".section .rodata,"a"
.p2align 6
.amdhsa_kernel {NAME}_kernel
  .amdhsa_next_free_vgpr {nv}
  .amdhsa_next_free_sgpr {100 if (opt.stamp or opt.amp or opt.itst) else 48}
  .amdhsa_accum_offset {nv}
  .amdhsa_group_segment_fixed_size 0
  .amdhsa_kernarg_size 48
  .amdhsa_user_sgpr_count 2
  .amdhsa_user_sgpr_kernarg_segment_ptr 1
  .amdhsa_system_sgpr_workgroup_id_x 1
.end_amdhsa_kernel""")
    return a.text()

def parse(argv):
    p = argparse.ArgumentParser()
    p.add_argument('-o', default=f"cdna_kernels/{NAME}.s")
    p.add_argument('--grp', default='2,2')
    p.add_argument('--pf', type=int, default=1)
    p.add_argument('--kxm', type=int, default=0)
    p.add_argument('--vlate', type=int, default=0)
    p.add_argument('--dbl', type=int, default=2)
    p.add_argument('--itst', type=int, default=0)
    p.add_argument('--alp', type=int, default=1)
    p.add_argument('--padA', type=int, default=0)
    p.add_argument('--padB', type=int, default=0)
    p.add_argument('--prsh', type=int, default=1)
    p.add_argument('--shared', type=int, default=1)
    p.add_argument('--qfirst', type=int, default=0)
    p.add_argument('--probe', default='')
    p.add_argument('--ampwg', type=int, default=-1)
    p.add_argument('--tv', type=int, default=0)
    p.add_argument('--touch', type=int, default=0)
    p.add_argument('--b05', type=int, default=0)
    p.add_argument('--b1', type=int, default=3)
    p.add_argument('--b2', type=int, default=7)
    p.add_argument('--bdelay', type=int, default=3)
    p.add_argument('--cut', type=int, default=3)
    p.add_argument('--pos', default='2,5,15,18,21,31,25')
    p.add_argument('--tpos', default='2,5,13,18,21,26,29')
    p.add_argument('--stfl', default='sc1')
    p.add_argument('--ldfl', default='')
    p.add_argument('--qfl', default='')
    p.add_argument('--stamp', type=int, default=0)
    p.add_argument('--amp', type=int, default=0)
    p.add_argument('--ampa', type=int, default=0)
    p.add_argument('--ampb', type=int, default=8)
    p.add_argument('--ampr', default='')
    p.add_argument('--ampbase', type=int, default=-1)
    return p.parse_args(argv)

if __name__ == '__main__':
    opt = parse(sys.argv[1:])
    open(opt.o, 'w').write(gen(opt))
```

```python
import sys, struct, math, argparse

NAME = "standalone__fused_io_aware_attn__prompt"
HB = 73728
ST = 2304
VBASE = HB
CBASE = 2 * HB
ABASE = CBASE + 4096
XBASE = ABASE + 4096
LDS = XBASE + 3 * ST + 1024

def f2u(x): return struct.unpack('<I', struct.pack('<f', x))[0]
CSCALE = f2u(math.log2(math.e) / math.sqrt(18.0))

vK, vV = 2, 3
vIncK, vIncV = 4, 5
vSlot, vIdx, vQo, vDma = 1, 6, 7, 14
vT2 = 15
KX = 8
QX = {'E': 10, 'O': 12}
Kr = {'E': 16, 'O': 20}
Qr = {('A', 'E'): 24, ('B', 'E'): 28, ('A', 'O'): 32, ('B', 'O'): 36}
Vr = {('E', 0): 40, ('E', 1): 44, ('O', 0): 48, ('O', 1): 52}
Sr = {'E': 56, 'O': 88}
Or = {('A', 'E'): 120, ('B', 'E'): 136, ('A', 'O'): 152, ('B', 'O'): 168}
vStA, vStB, vStR = 184, 185, 186
Vr[('T', 0)] = 188; Vr[('T', 1)] = 192
KX0, KE0, KO0 = 196, 198, 202
NV = 208
AL = dict(on=False)
def kx(): return KX0 if AL['on'] else KX
def kr(par): return {'E': KE0, 'O': KO0}[par] if AL['on'] else Kr[par]
def vv(par, j): return Vr[('T', j)] if (AL['on'] and par == 'E') else Vr[(par, j)]

def vr(b, n): return f"v[{b}:{b+n-1}]"

class Asm:
    def __init__(self): self.l = []
    def __call__(self, s): self.l.append("    " + s)
    def lab(self, s): self.l.append(s + ":")
    def raw(self, s): self.l.append(s)
    def text(self): return "\n".join(self.l) + "\n"

def mf_x(par):
    return f"v_mfma_f32_32x32x4_2b_bf16 {vr(Sr[par],32)}, {vr(kx(),2)}, {vr(QX[par],2)}, 0 cbsz:1 abid:0"
def mf_q(t, par):
    s = Sr[par] + (16 if t == 'B' else 0)
    return f"v_mfma_f32_32x32x16_bf16 {vr(s,16)}, {vr(kr(par),4)}, {vr(Qr[(t,par)],4)}, {vr(s,16)}"
def mf_pv(t, par, j, vs=None):
    s = Sr[par] + (16 if t == 'B' else 0) + 8 * j
    return f"v_smfmac_f32_32x32x32_bf16 {vr(Or[(t,par)],16)}, {vr(vv(vs or par,j),4)}, {vr(s,8)}, v{vIdx}"
def ex(par, i): return f"v_exp_f32 v{Sr[par]+i}, v{Sr[par]+i}"
def rd_kx(u): return [f"ds_read_b64 {vr(kx(),2)}, v{vK} offset:{u*ST+32}"]
def rd_k(par, u):
    o = u * ST + (40 if par == 'O' else 0)
    return [f"ds_read_b64 {vr(kr(par),2)}, v{vK} offset:{o}", f"ds_read_b64 {vr(kr(par)+2,2)}, v{vK} offset:{o+8}"]
def rd_v(par, j, u):
    o = u * ST + (32 if par != 'E' else 0) + 16 * j * 72
    return [f"ds_read_b64_tr_b16 {vr(vv(par,j),2)}, v{vV} offset:{o}", f"ds_read_b64_tr_b16 {vr(vv(par,j)+2,2)}, v{vV} offset:{o+4*72}"]

def phase_list(par, opt, look=True):
    oth = 'O' if par == 'E' else 'E'
    pos = [int(x) for x in (opt.pos if look else opt.tpos).split(',')]
    mf = {pos[0]: mf_pv('B', oth, 1), pos[2]: mf_pv('A', par, 0), pos[3]: mf_pv('A', par, 1), pos[5]: mf_pv('B', par, 0)}
    if look:
        mf.update({pos[1]: mf_x(oth), pos[4]: mf_q('A', oth), pos[6]: mf_q('B', oth)})
    out = []
    for i in range(32):
        if i in mf: out.append((i, 'm', mf[i]))
        out.append((i, 'e', ex(par, i)))
    return out

def gen(opt):
    a = Asm()
    def stamp(i):
        if opt.stamp and (opt.stamp != 3 or i in (0, 7, 8)): a(f"s_memtime s[{60+2*i}:{61+2*i}]")
        if opt.amp and i in (opt.ampa, opt.ampb): a(f"{'s_memtime' if opt.ampbase >= 0 else 's_memrealtime'} s[{60+2*i}:{61+2*i}]")
    smem = opt.stamp in (1, 2) or (opt.amp and not (opt.ampa in (0, 7) and opt.ampb in (7, 8)))
    def lgkm(n): a(f"s_waitcnt lgkmcnt({0 if smem else n})")
    a.raw(f"""; Fused attention forward, B=2 H=32 S=2048 D=18, bf16 in/out (written by my generator gen/gen8.py).
; @launch grid=(256,1,1) block=(512,1,1) lds={LDS}
.amdgcn_target "amdgcn-amd-amdhsa--gfx950"
.text
.globl {NAME}_kernel
.p2align 8
.type {NAME}_kernel,@function
{NAME}_kernel:""")
    stamp(0)
    if opt.stamp: a("s_memrealtime s[56:57]")
    a("s_load_dwordx8 s[4:11], s[0:1], 0")
    if opt.pf:
        a("s_getpc_b64 s[36:37]")
        a(f"v_mul_u32_u24 v{vT2}, 9, v0")
        a(f"global_load_ubyte v{vT2}, v{vT2}, s[36:37] offset:116")
    a("v_readfirstlane_b32 s24, v0")
    a("s_and_b32 s3, s2, 7")
    a("s_lshr_b32 s25, s2, 3")
    a("s_lshl_b32 s3, s3, 5")
    a("s_add_u32 s3, s3, s25")
    a("s_cmpk_ge_u32 s2, 256")
    a("s_cbranch_scc1 L_end")
    a(f"v_lshl_add_u32 v{vQo}, s3, 9, v0")
    a(f"v_mul_u32_u24 v{vQo}, 36, v{vQo}")
    a("s_cmpk_ge_u32 s24, 256")
    a("s_cbranch_scc1 L_setup")
    t0, t1 = Sr['E'] + 8, Sr['E'] + 9
    T = Sr['O']
    ldf = opt.ldfl.replace('_', ' ')
    qf = opt.qfl.replace('_', ' ')
    def qloads():
        a(f"global_load_dword v{T+8}, v{vQo}, s[4:5] offset:32 {qf}")
        a(f"global_load_dwordx4 {vr(T,4)}, v{vQo}, s[4:5] {qf}")
        a(f"global_load_dwordx4 {vr(T+4,4)}, v{vQo}, s[4:5] offset:16 {qf}")
    def addr0():
        a("s_lshl_b32 m0, s24, 5")
        a("s_lshr_b32 s25, s3, 2")
        a(f"s_mul_i32 s25, s25, {HB}")
        a("s_lshl4_add_u32 s26, s24, s25")
        a(f"v_lshl_add_u32 v{t0}, v0, 4, s26")
    def quad0():
        a(f"global_load_lds_dwordx4 v{t0}, s[6:7] {ldf}")
        a(f"global_load_lds_dwordx4 v{t0}, s[6:7] offset:1024 {ldf}")
        a(f"s_add_u32 m0, m0, {VBASE}")
        a("s_nop 0")
        a(f"global_load_lds_dwordx4 v{t0}, s[8:9] {ldf}")
        a(f"global_load_lds_dwordx4 v{t0}, s[8:9] offset:1024 {ldf}")
    if opt.qfirst:
        a("s_waitcnt lgkmcnt(0)")
        stamp(1)
        qloads(); addr0(); quad0()
    else:
        addr0()
        a("s_waitcnt lgkmcnt(0)")
        stamp(1)
        if opt.vlate:
            a(f"global_load_lds_dwordx4 v{t0}, s[6:7] {ldf}")
            a(f"global_load_lds_dwordx4 v{t0}, s[6:7] offset:1024 {ldf}")
            a(f"s_add_u32 m0, m0, {VBASE}")
            qloads()
            a(f"global_load_lds_dwordx4 v{t0}, s[8:9] {ldf}")
            a(f"global_load_lds_dwordx4 v{t0}, s[8:9] offset:1024 {ldf}")
        else:
            quad0(); qloads()
    a.lab("L_setup")
    if opt.stamp:
        a("s_load_dwordx2 s[40:41], s[0:1], 40")
        if opt.stamp == 3:
            for i in range(62, 74): a(f"s_mov_b32 s{i}, 0")
    a(f"v_lshlrev_b32 v{vSlot}, 3, v0")
    a("v_and_b32 v0, 63, v0")
    a("s_lshr_b32 s24, s24, 6")
    a("s_lshr_b32 s25, s3, 2")
    a(f"s_mul_i32 s25, s25, {HB}")
    a("s_lshl3_add_u32 s26, s3, s24")
    a(f"s_mul_i32 s26, s26, {ST}")
    a(f"v_lshlrev_b32 v{vDma}, 4, v0")
    a("s_lshl_b32 s27, s24, 11")
    a("s_cmp_lt_u32 s24, 4")
    a("s_cselect_b32 s28, 16384, 0")
    a("s_add_u32 s27, s27, s28")
    a("s_mov_b32 m0, s27")
    a(f"s_mov_b32 s18, {HB}")
    a("s_mov_b32 s19, 0x00020000")
    a(f"s_mov_b32 s46, {HB}")
    a("s_mov_b32 s47, 0x00020000")
    def quad():
        a(f"buffer_load_dwordx4 v{vDma}, s[16:19], s27 offen {ldf} lds")
        a(f"buffer_load_dwordx4 v{vDma}, s[16:19], s27 offen offset:1024 {ldf} lds")
        a("s_add_u32 m0, s27, s18")
        a("s_nop 0")
        a(f"buffer_load_dwordx4 v{vDma}, s[44:47], s27 offen {ldf} lds")
        a(f"buffer_load_dwordx4 v{vDma}, s[44:47], s27 offen offset:1024 {ldf} lds")
        a("s_add_u32 m0, s27, 16384")
        a("s_add_u32 s27, s27, 16384")
    a("s_waitcnt lgkmcnt(0)")
    a("s_add_u32 s16, s6, s25")
    a("s_addc_u32 s17, s7, 0")
    a("s_add_u32 s44, s8, s25")
    a("s_addc_u32 s45, s9, 0")
    a(f"v_and_b32 v{t0}, 31, v0")
    a(f"v_lshrrev_b32 v{t1}, 5, v0")
    a("s_add_u32 s20, s10, s26")
    a("s_addc_u32 s21, s11, 0")
    a(f"s_movk_i32 s22, {ST}")
    a("s_mov_b32 s23, 0x00020000")
    C = Sr['E']
    a(f"v_and_b32 v{C}, 1, v0")
    a(f"v_subrev_u32 v{C}, 1, v{C}")
    a(f"v_and_b32 v{C}, 0x3f80, v{C}")
    a(f"v_mov_b32 v{C+1}, 0")
    a(f"v_add_u32 v{vSlot}, {CBASE}, v{vSlot}")
    a(f"ds_write_b64 v{vSlot}, {vr(C,2)}")
    a(f"v_mov_b32 v{QX['E']}, 0"); a(f"v_mov_b32 v{QX['E']+1}, 0"); a(f"v_mov_b32 v{QX['O']}, 0")
    a(f"v_mul_u32_u24 v{vK}, 72, v{t0}")
    a(f"v_lshl_add_u32 v{vK}, v{t1}, 4, v{vK}")
    a(f"v_mfma_f32_32x32x4_2b_bf16 {vr(120,32)}, {vr(QX['E'],2)}, {vr(QX['E'],2)}, 0")
    a(f"v_mfma_f32_32x32x4_2b_bf16 {vr(152,32)}, {vr(QX['E'],2)}, {vr(QX['E'],2)}, 0")
    t3, t4, t5 = C + 4, C + 5, C + 6
    a(f"v_bfe_u32 v{t3}, v0, 2, 2")
    a(f"v_lshl_add_u32 v{t3}, v{t1}, 3, v{t3}")
    a(f"v_mul_u32_u24 v{t3}, 72, v{t3}")
    a(f"v_and_b32 v{t4}, 1, v0")
    a(f"v_lshl_add_u32 v{t3}, v{t4}, 4, v{t3}")
    a(f"v_and_b32 v{t4}, 2, v0")
    a(f"v_lshl_add_u32 v{t3}, v{t4}, 2, v{t3}")
    a(f"v_lshlrev_b32 v{t5}, 6, v{t1}")
    a(f"v_lshlrev_b32 v{t4}, 2, v{t4}")
    a(f"v_sub_u32 v{t5}, v{t5}, v{t4}")
    a(f"v_add_u32 v{t5}, {CBASE+56}, v{t5}")
    a(f"v_and_b32 v{t4}, 16, v0")
    a(f"v_add3_u32 v{t3}, v{t4}, v{t3}, s18")
    a("s_mov_b32 vcc_lo, 0xdddd0000"); a("s_mov_b32 vcc_hi, 0xdddd0000")
    a(f"v_mov_b32 v{vIdx}, 0xdddd")
    a(f"v_mov_b32 v{vIncK}, {ST}")
    a(f"v_cndmask_b32 v{vIncV}, v{vIncK}, 0, vcc")
    a(f"v_cndmask_b32 v{vV}, v{t3}, v{t5}, vcc")
    a(f"v_add_u32 v{C+2}, v{vK}, v{vIncK}")
    a(f"v_add_u32 v{C+3}, v{vV}, v{vIncV}")
    a(f"ds_write_b64 v{vSlot}, {vr(C+2,2)} offset:4096")
    a(f"s_mul_i32 s28, s24, {ST}")
    a("s_cmp_ge_u32 s24, 5")
    a(f"s_cselect_b32 s29, {XBASE - 5*ST}, 0")
    a("s_add_u32 s28, s28, s29")
    a(f"v_mul_u32_u24 v{vStA}, 36, v{t0}")
    a(f"v_lshl_add_u32 v{vStA}, v{t1}, 4, v{vStA}")
    a(f"v_add_u32 v{vStA}, s28, v{vStA}")
    a(f"v_add_u32 v{vStB}, 1152, v{vStA}")
    a(f"v_add_u32 v{vStR}, s28, v{vDma}")
    a(f"s_mov_b32 s30, {CSCALE:#x}"); a(f"s_mov_b32 s31, {CSCALE:#x}")
    a("s_mov_b32 s29, 1")
    b1, b2 = opt.b1, opt.b2
    assert b1 == 3 and 6 <= b2 <= 7
    a(f"s_mov_b32 s32, {(1 << (b1-1)) | (1 << (b2-1)):#x}")
    a(f"s_mov_b32 s33, {(1 << (b1-1)) | (1 << (b2-1)) | (1 << 31):#x}")
    a("s_mov_b32 s34, 0xffff0000")
    a("s_mov_b32 s35, 0x6c800000")
    a("s_mov_b64 vcc, 0")
    a("s_cmp_ge_u32 s24, 4")
    if not opt.shared: a("s_cbranch_scc1 L_proB")
    burst = rd_kx(1) + rd_v('O', 0, 0) + rd_k('E', 1) + rd_v('O', 1, 0) + rd_v('E', 0, 1) + rd_v('E', 1, 1) + rd_k('O', 1)
    bump = f"ds_add_rtn_u64 {vr(vK,2)}, v{vSlot}, {vr(vIncK,2)} offset:4096"
    AL['on'] = True
    rd0 = rd_kx(0) + rd_k('E', 0) + rd_k('O', 0) + rd_v('E', 0, 0) + rd_v('E', 1, 0) + burst + [bump]
    W = T + 10
    wof = {}
    def unpack(src, k):
        w = W + 2 * k; wof[src] = w
        a(f"v_lshlrev_b32 v{w}, 16, v{src}")
        a(f"v_and_b32 v{w+1}, 0xffff0000, v{src}")
        a(f"v_pk_mul_f32 {vr(w,2)}, {vr(w,2)}, s[30:31]")
    def pack(src, d): a(f"v_cvt_pk_bf16_f32 v{d}, v{wof[src]}, v{wof[src]+1}")
    QAE, QBE, QAO, QBO = Qr[('A','E')], Qr[('B','E')], Qr[('A','O')], Qr[('B','O')]
    def prep(nlater, mfma):
        a(f"s_waitcnt vmcnt({2+nlater})")
        if not mfma and opt.bdelay == 3: a("s_barrier")
        unpack(T + 8, 8)
        pack(T + 8, QX['E']); pack(T + 8, QBO + 3)
        a(f"s_waitcnt vmcnt({1+nlater})")
        if mfma: a(mf_x('E'))
        for j in range(4): unpack(T + j, j)
        for j in range(4): pack(T + j, QAE + j)
        pack(T, QX['O'] + 1)
        a(f"s_waitcnt vmcnt({nlater})")
        stamp(4)
        for j in range(4, 8): unpack(T + j, j)
        for j in range(4): pack(T + 4 + j, QBE + j)
        for j in range(4): a(f"v_permlane32_swap_b32 v{QAE+j}, v{QBE+j}")
        pack(T + 4, QAO + 3)
        a(f"v_mov_b32 v{QAO}, v{QAE+1}")
        if mfma: a(mf_q('A', 'E'))
        a(f"v_mov_b32 v{QAO+1}, v{QAE+2}")
        a(f"v_permlane32_swap_b32 v{QAO+3}, v{QBO+3}")
        a(f"v_mov_b32 v{QAO+2}, v{QAE+3}")
        for j in range(0, 3): a(f"v_mov_b32 v{QBO+j}, v{QBE+j+1}")
        if mfma: a(mf_q('B', 'E'))
    if opt.shared:
        assert not opt.qfirst
        rdK = [f for f in rd0 if f.startswith('ds_read_b64 ')]
        rdV = [f for f in rd0 if not f.startswith('ds_read_b64 ')]
        nl = 2 if opt.vlate else 0
        if opt.vlate:
            a.raw("    .p2align 3")
            a("s_waitcnt vmcnt(5) lgkmcnt(0)")
            stamp(2)
            a("s_barrier")
            if opt.vlate == 1:
                a("s_cbranch_scc0 L_noq")
                qloads()
                a("s_nop 0")
                a.lab("L_noq")
                for f in rdK: a(f)
                a("s_cbranch_scc1 L_vB")
                a.lab("L_prep")
                lgkm(7)
            else:
                a("s_cbranch_scc1 L_vB")
                a("s_nop 0")
                for f in rdK: a(f)
                lgkm(7)
                a("s_nop 0")
                a.lab("L_prep")
            stamp(3)
        else:
            if opt.bdelay == 3:
                a("s_waitcnt vmcnt(5)")
                a("s_barrier")
            a("s_cbranch_scc0 L_noq")
            qloads()
            a.lab("L_noq")
            if opt.alp: a.raw("    .p2align 3")
            a("s_waitcnt vmcnt(3) lgkmcnt(0)")
            stamp(2)
            a("s_barrier")
            if opt.bread in (1, 2):
                a("s_cbranch_scc1 L_waitB")
                a.lab("L_reads")
                a("s_setprio 3")
            if opt.bread >= 3:
                for f in rd0[:9]: a(f)
                a("s_setprio 3" if opt.bread == 3 else "s_cbranch_scc1 L_waitB")
                a.lab("L_reads")
            elif opt.bread == 2:
                for f in rd0[:9]: a(f)
                a("s_nop 0")
                lgkm(6)
            else:
                for f in rd0[:13]: a(f)
                lgkm(4)
                if opt.alp: a("s_setprio 3")
                for f in rd0[13:]: a(f)
            stamp(3)
        if opt.alp:
            def shl(j): a(f"v_lshlrev_b32 v{W+2*j}, 16, v{T+j}")
            def msk(j): a(f"v_and_b32 v{W+2*j+1}, s34, v{T+j}")
            def mul(j): a(f"v_pk_mul_f32 {vr(W+2*j,2)}, {vr(W+2*j,2)}, s[30:31]")
            def cvt(j, d): a(f"v_cvt_pk_bf16_f32 v{d}, v{W+2*j}, v{W+2*j+1}")
            a(f"s_waitcnt vmcnt({1+nl})")
            if opt.bread >= 3:
                shl(8); msk(8); mul(8); cvt(8, QX['E']); cvt(8, QBO + 3)
                shl(0); msk(0); shl(1)
                lgkm(6)
            else:
                shl(8); msk(8); shl(0); mul(8); cvt(8, QX['E']); cvt(8, QBO + 3)
                msk(0); shl(1)
            a(mf_x('E'))
            mul(0)
            for j in range(1, 3): msk(j); shl(j + 1); mul(j)
            msk(3)
            a(f"s_waitcnt vmcnt({nl})")
            stamp(4)
            mul(3)
            for j in range(4): cvt(j, QAE + j)
            for j in range(4, 8): shl(j); msk(j); mul(j)
            for j in range(4): cvt(4 + j, QBE + j)
            for j in range(4): a(f"v_permlane32_swap_b32 v{QAE+j}, v{QBE+j}")
            cvt(4, QAO + 3)
            cvt(0, QX['O'] + 1)
            a(mf_q('A', 'E'))
            a("s_waitcnt lgkmcnt(0)")
            a(f"v_permlane32_swap_b32 v{QAO+3}, v{QBO+3}")
            for j in range(0, 3): a(f"v_mov_b32 v{QAO+j}, v{QAE+j+1}")
            for j in range(0, 3): a(f"v_mov_b32 v{QBO+j}, v{QBE+j+1}")
            a(mf_q('B', 'E'))
            if opt.bread in (2, 3):
                for f in rd0[9:]: a(f)
            a("s_cbranch_scc1 L_startB")
            a("s_setprio 2")
            if opt.bread == 4:
                for f in rd0[9:]: a(f)
            if opt.bread >= 2: pass
            elif opt.vlate:
                a("s_waitcnt vmcnt(0)")
                a("s_barrier")
                for f in rdV: a(f)
            else:
                a("s_nop 0")
        else:
            a("s_setprio 3")
            prep(0, True)
            a("s_cbranch_scc1 L_startB")
            a("s_setprio 2")
            a("s_nop 1")
            a("s_waitcnt lgkmcnt(0)")
    if not opt.shared: a("s_setprio 2")
    if opt.shared: pass
    elif opt.qfirst:
        prep(4, False)
        a("s_waitcnt vmcnt(0) lgkmcnt(0)")
        stamp(2)
        a("s_barrier")
        for f in rd0[:9]: a(f)
        lgkm(8)
        stamp(3)
        a(mf_x('E'))
        for f in rd0[9:15]: a(f)
        lgkm(7)
        for f in rd0[15:]: a(f)
        a("s_nop 2")
        a(mf_q('A', 'E'))
        a("s_nop 9")
        a("s_waitcnt lgkmcnt(0)")
        a(mf_q('B', 'E'))
    else:
        if opt.bdelay == 3:
            a("s_waitcnt vmcnt(5)")
            a("s_barrier")
        a("s_waitcnt vmcnt(3) lgkmcnt(0)")
        stamp(2)
        a("s_barrier")
        for f in rd0[:13]: a(f)
        lgkm(4)
        for f in rd0[13:]: a(f)
        stamp(3)
        prep(0, True)
        a("s_nop 3")
        a("s_waitcnt lgkmcnt(0)")
    cut = opt.cut
    pos0 = int(opt.pos.split(',')[0])
    assert cut > pos0
    a.lab("L_first")
    stamp(5)
    waited = not opt.vlate
    for (i, k_, s_) in phase_list('E', opt):
        if i == pos0 and k_ == 'm': continue
        if not waited and 'smfmac' in s_:
            a("s_waitcnt lgkmcnt(0)"); waited = True
        a(s_)
        if opt.bread >= 2 and 'smfmac' in s_ and i > 25: a("s_waitcnt lgkmcnt(0)")
    for (i, k_, s_) in phase_list('O', opt):
        if i < cut: a(s_)
    AL['on'] = False
    pE, pO = phase_list('E', opt), phase_list('O', opt)
    for (i, k_, s_) in pO:
        if i >= cut: a(s_)
    for (i, k_, s_) in pE: a(s_)
    for (i, k_, s_) in pO:
        if i < cut: a(s_)
    a("s_cbranch_scc0 L_topA")
    a("s_branch L_topB")
    if not opt.shared:
        a.lab("L_proB")
        AL['on'] = True
        if opt.bdelay == 3: a("s_barrier")
        if opt.bdelay != 2: qloads()
        a("s_waitcnt lgkmcnt(0)")
        stamp(2)
        a("s_barrier")
        if opt.bdelay == 2: qloads()
        for f in rd0[:13]: a(f)
        lgkm(4)
        for f in rd0[13:]: a(f)
        a("s_setprio 3")
        stamp(3)
        prep(0, True)
        AL['on'] = False
    if opt.vlate:
        a.lab("L_vB")
        if opt.vlate == 2:
            qloads()
            for f in rdK: a(f)
        a("s_waitcnt lgkmcnt(0)")
        a("s_barrier")
        for f in rdV: a(f)
        a("s_setprio 3")
        a("s_waitcnt vmcnt(0)")
        a("s_branch L_prep")
    if opt.bread in (1, 2):
        a.lab("L_waitB")
        a("s_waitcnt vmcnt(2)")
        a("s_branch L_reads")
    if opt.bread == 4:
        a.lab("L_waitB")
        a("s_setprio 3")
        a("s_waitcnt lgkmcnt(0)")
        for f in rd0[9:]: a(f)
        a("s_branch L_reads")
    a.lab("L_startB")
    a("s_setprio 1")
    quad()
    a("s_cmp_ge_u32 s24, 4")
    a("s_waitcnt lgkmcnt(0)")
    a("s_branch L_first")
    if opt.kxm: burst = ["s_mov_b32 exec_hi, 0", burst[0], "s_mov_b32 exec_hi, -1"] + burst[1:]
    for role in 'AB':
        a.raw("    .p2align 6")
        pad = opt.padA if role == 'A' else opt.padB
        if pad: a.raw(f"    .fill {pad}, 4, 0xbf800000")
        a.lab(f"L_top{role}")
        if role == 'A': a("s_setprio 0")
        a("s_add_u32 s29, s29, 1")
        if opt.itst: a("s_memtime s[48:49]")
        for f in burst: a(f)
        a("s_cmp_lg_u32 s29, 31")
        a(f"s_cbranch_scc1 L_nl{role}")
        a("s_mov_b64 vcc, 1")
        a("s_waitcnt lgkmcnt(8)")
        for f in rd_v('T', 0, 1) + rd_v('T', 1, 1): a(f)
        a.lab(f"L_nl{role}")
        a(f"ds_add_rtn_u64 {vr(vK,2)}, v{vSlot}, {vr(vIncK,2)} offset:4096")
        if opt.stamp == 2:
            a("s_memtime s[80:81]"); a("s_memrealtime s[82:83]")
        if opt.itst:
            a("s_waitcnt lgkmcnt(0)")
            a("s_mov_b32 m0, s29")
            a("s_nop 0")
            a("s_movreld_b32 s62, s48")
            a("s_mov_b32 m0, s27")
            a("s_nop 0")
        a("s_cmp_gt_u32 s29, 4")
        a(f"s_cbranch_scc1 L_nd{role}")
        quad()
        if role == 'A':
            a(f"s_cmp_lg_u32 s29, {opt.dbl}")
            a("s_cbranch_scc1 L_ndA")
            quad()
        a.lab(f"L_nd{role}")
        a(f"s_cmp_lg_u32 s29, {b2-1}")
        a(f"s_cbranch_scc1 L_nw{role}")
        a("s_waitcnt vmcnt(0)")
        if opt.touch and role == 'A':
            a(f"buffer_load_dword v{vT2}, off, s[20:23], 0")
        a.lab(f"L_nw{role}")
        a(f"s_bitcmp1_b32 {'s33' if role == 'A' else 's32'}, s29")
        a("s_waitcnt lgkmcnt(0)")
        if opt.stamp == 2:
            a("s_mov_b32 s84, m0"); a("s_mov_b32 m0, s29")
            a("v_writelane_b32 v208, s80, m0"); a("v_writelane_b32 v209, s82, m0"); a("s_mov_b32 m0, s84")
        if role == 'B':
            a("s_cbranch_scc0 L_goB")
            a("s_waitcnt vmcnt(4)")
            a("s_barrier")
            a.lab("L_goB")
        first = True
        for (i, k_, s_) in pO:
            if i < cut: continue
            a(s_)
            if first and role == 'A' and (not opt.prsh or 'smfmac' in s_):
                a("s_setprio 2")
                first = False
        for (i, k_, s_) in pE: a(s_)
        for (i, k_, s_) in pO:
            if i < cut: a(s_)
        if role == 'A':
            a("s_cbranch_scc0 L_topA")
            a("s_cbranch_vccnz L_tail")
            a("s_barrier")
            a("s_branch L_topA")
        else:
            a("s_cbranch_vccz L_topB")
    R = Sr['E']
    PK = {'A': Sr['E'] + 8, 'B': Sr['E'] + 14}
    OB = Sr['E'] + 20
    fl = opt.stfl.replace('_', ' ')
    def finish(t, ds=True):
        E, O = Or[(t, 'E')], Or[(t, 'O')]
        l, rc = (R, R + 2) if t == 'A' else (R + 1, R + 4)
        a(f"v_add_f32 v{l}, v{E+12}, v{O+12}")
        a(f"v_rcp_f32 v{rc}, v{l}")
        a(f"v_permlane32_swap_b32 v{O}, v{O+8}")
        a(f"v_permlane32_swap_b32 v{O+1}, v{O+9}")
        for j in (8, 0, 2, 4, 6):
            a(f"v_pk_add_f32 {vr(E+j,2)}, {vr(E+j,2)}, {vr(O+j+2,2)}")
        for j in (8, 0, 2, 4, 6):
            a(f"v_pk_mul_f32 {vr(E+j,2)}, {vr(E+j,2)}, {vr(rc,2)} op_sel_hi:[1,0]")
        st = vStA if t == 'A' else vStB
        for j in (4, 0, 1, 2, 3):
            a(f"v_cvt_pk_bf16_f32 v{PK[t]+j}, v{E+2*j}, v{E+2*j+1}")
        if not ds: return
        a(f"ds_write_b32 v{st}, v{PK[t]+4} offset:16")
        a(f"ds_write2_b32 v{st}, v{PK[t]}, v{PK[t]+1} offset0:0 offset1:1")
        a(f"ds_write2_b32 v{st}, v{PK[t]+2}, v{PK[t]+3} offset0:2 offset1:3")
        if t == 'A':
            a(f"ds_read_b128 {vr(OB,4)}, v{vStR}")
        else:
            a(f"ds_read_b128 {vr(OB+4,4)}, v{vStR} offset:1024")
            a(f"ds_read_b128 {vr(OB+8,4)}, v{vStR} offset:2048")
    def store(k): a(f"buffer_store_dwordx4 {vr(OB+4*k,4)}, v{vDma}, s[20:23], 0 offen offset:{1024*k} {fl}")
    def dot(t, j): a(f"v_dot2c_f32_bf16 v{R if t == 'A' else R+1}, 0, v{PK[t]+j}")
    a.lab("L_tail")
    tm = {10: mf_pv('A', 'O', 0, 'T'), 18: mf_pv('A', 'O', 1, 'T'), 26: mf_pv('B', 'O', 0, 'T')}
    for i in range(cut, 32):
        if i in tm: a(tm[i])
        if i == 29:
            n0 = len(a.l)
            finish('A', ds=(opt.tv <= 0))
            if opt.tv < 0:
                lateA = a.l[n0+9:]; del a.l[n0+9:]
        a(ex('O', i))
    stamp(6)
    if opt.tv < 0:
        a.l[-1] = a.l[-1].replace("v_exp_f32 ", "v_exp_f32_e64 ")
        a.l += lateA[:2]
        a(mf_pv('B', 'O', 1, 'T'))
        a.l += lateA[2:]
        n0 = len(a.l)
        finish('B')
        a.l[n0-opt.tv:n0-opt.tv] = ["    s_waitcnt lgkmcnt(0)", f"    buffer_store_dwordx4 {vr(OB,4)}, v{vDma}, s[20:23], 0 offen {fl}", "    s_nop 0"]
    elif opt.tv == 0:
        a("s_nop 1")
        a(mf_pv('B', 'O', 1, 'T'))
        a("s_nop 9")
        lgkm(0)
        store(0)
        finish('B')
    else:
        a(f"ds_write_b32 v{vStA}, v{PK['A']+4} offset:16")
        a(f"ds_write2_b32 v{vStA}, v{PK['A']}, v{PK['A']+1} offset0:0 offset1:1")
        a(mf_pv('B', 'O', 1, 'T'))
        a(f"ds_write2_b32 v{vStA}, v{PK['A']+2}, v{PK['A']+3} offset0:2 offset1:3")
        a(f"ds_read_b128 {vr(OB,4)}, v{vStR}")
        a("s_nop 9")
        n0 = len(a.l)
        finish('B')
        a.l[n0+opt.tv:n0+opt.tv] = ["    s_waitcnt lgkmcnt(0)", f"    buffer_store_dwordx4 {vr(OB,4)}, v{vDma}, s[20:23], 0 offen {fl}"]
    lgkm(1)
    store(1)
    lgkm(0)
    store(2)
    stamp(7)
    a("s_setprio 0")
    for t in 'AB':
        for j in range(5): dot(t, j)
    a(f"v_cmp_nge_f32 s[36:37], v{R}, 1.0")
    a(f"v_cmp_nle_f32 vcc, v{R}, s35")
    a("s_or_b64 s[36:37], s[36:37], vcc")
    a(f"v_cmp_nge_f32 s[38:39], v{R+1}, 1.0")
    a(f"v_cmp_nle_f32 vcc, v{R+1}, s35")
    a("s_or_b64 s[36:37], s[36:37], s[38:39]")
    a("s_or_b64 s[36:37], s[36:37], vcc")
    a("s_cbranch_scc1 L_check")
    a.lab("L_done")
    if opt.amp:
        a("s_waitcnt vmcnt(0)")
        stamp(8)
        a("s_memrealtime s[42:43]")
        a("s_waitcnt lgkmcnt(0)")
        a(f"s_sub_u32 s50, s{60+2*opt.ampb}, s{60+2*opt.ampa}")
        if opt.ampbase >= 0:
            a(f"s_max_u32 s50, s50, {opt.ampbase}")
            a(f"s_sub_u32 s50, s50, {opt.ampbase}")
            if opt.ampwg == -2:
                a("s_load_dwordx2 s[54:55], s[0:1], 32")
                a(f"s_cmp_lg_u32 s24, {3 if opt.ampr == 'A' else 7}")
                a("s_cbranch_scc1 L_end")
                a("s_add_u32 s51, s50, 0x1000000")
                a("s_mov_b64 exec, 1")
                a("v_mov_b32 v16, s51"); a("v_mov_b32 v17, 0")
                a("s_waitcnt lgkmcnt(0)")
                a("global_atomic_add v18, v17, v16, s[54:55] sc0 sc1")
                a("s_waitcnt vmcnt(0)")
                a("v_readfirstlane_b32 s51, v18")
                a("s_nop 3")
                a("s_add_u32 s50, s50, s51")
                a("s_and_b32 s50, s50, 0xffffff")
                a("s_lshr_b32 s50, s50, 8")
                a("s_lshr_b32 s51, s51, 24")
                a("s_cmp_lg_u32 s51, 255")
            elif opt.ampwg >= 0: a(f"s_cmp_lg_u32 s2, {opt.ampwg}")
            else: a("s_and_b32 s51, s2, 7")
            a("s_cselect_b32 s50, 0, s50")
        a(f"s_mul_i32 s50, s50, {opt.amp}")
        a("s_min_u32 s50, s50, 20000")
        if opt.ampr:
            a("s_cmp_lt_u32 s24, 4")
            a("s_cselect_b32 s50, s50, 0" if opt.ampr == 'A' else "s_cselect_b32 s50, 0, s50")
        a.lab("L_spin")
        a("s_sleep 2")
        a("s_memrealtime s[52:53]")
        a("s_waitcnt lgkmcnt(0)")
        a("s_sub_u32 s51, s52, s42")
        a("s_cmp_lt_u32 s51, s50")
        a("s_cbranch_scc1 L_spin")
    if opt.itst:
        a("s_load_dwordx2 s[40:41], s[0:1], 40")
        for i in range(32): a(f"v_writelane_b32 v16, s{62+i}, {i}")
        a("s_lshl_b32 s50, s2, 3"); a("s_add_u32 s50, s50, s24"); a("s_lshl_b32 s50, s50, 8")
        a(f"v_lshrrev_b32 v1, 2, v{vDma}")
        a("v_add_u32 v1, s50, v1")
        a("s_waitcnt lgkmcnt(0)")
        a("global_store_dword v1, v16, s[40:41]")
    if opt.stamp:
        a("s_mov_b64 exec, 1")
        a("s_waitcnt vmcnt(0)")
        stamp(8)
        a("s_memrealtime s[58:59]")
        a("s_getreg_b32 s42, hwreg(HW_REG_HW_ID)")
        a("s_getreg_b32 s43, hwreg(HW_REG_XCC_ID)")
        a("s_waitcnt lgkmcnt(0)")
        for i, sr in enumerate((56, 58, 42, 43, 60, 62, 64, 66, 68, 70, 72, 74, 76)):
            a(f"v_mov_b32 v{16+i}, s{sr}")
        a("s_lshl_b32 s50, s2, 3"); a("s_add_u32 s50, s50, s24"); a("s_lshl_b32 s50, s50, 6")
        a("v_mov_b32 v1, s50")
        for i in range(4): a(f"global_store_dwordx4 v1, v[{16+4*i}:{19+4*i}], s[40:41] offset:{16*i}")
        if opt.stamp == 2:
            a("s_mov_b64 exec, -1")
            a("s_lshl_b32 s50, s50, 3"); a("s_add_u32 s50, s50, 0x100000")
            a("v_lshl_add_u32 v1, v0, 3, s50")
            a("global_store_dwordx2 v1, v[208:209], s[40:41]")
    a.lab("L_end")
    a("s_endpgm")
    a.lab("L_check")
    a("s_waitcnt vmcnt(0)")
    mA, mB = 0, vSlot
    if opt.stamp == 2: mA = 187
    def rewind(n):
        a(f"v_subrev_u32 v{vK}, {n*ST}, v{vK}")
        a(f"v_mul_u32_u24 v{vT2}, {n}, v{vIncV}")
        a(f"v_sub_u32 v{vV}, v{vV}, v{vT2}")
        a("s_mov_b32 s29, 0")
    def scores():
        a(f"buffer_load_dwordx2 {vr(KX,2)}, v{vK}, s[16:19], 0 offen offset:32")
        a(f"buffer_load_dwordx4 {vr(Kr['E'],4)}, v{vK}, s[16:19], 0 offen")
        a(f"buffer_load_dwordx4 {vr(Kr['O'],4)}, v{vK}, s[16:19], 0 offen offset:40")
        a("s_waitcnt vmcnt(0) lgkmcnt(0)")
        a(mf_x('E')); a(mf_x('O'))
        a("s_nop 15"); a("s_nop 3")
        for par in 'EO':
            for t in 'AB': a(mf_q(t, par))
        a("s_nop 15")
    def step(lab):
        a(f"v_add_u32 v{vK}, v{vIncK}, v{vK}")
        a(f"v_add_u32 v{vV}, v{vIncV}, v{vV}")
        a("s_add_u32 s29, s29, 1")
        a("s_cmp_lg_u32 s29, 32")
        a(f"s_cbranch_scc1 {lab}")
    rewind(31)
    a(f"v_mov_b32 v{mA}, 0xff800000"); a(f"v_mov_b32 v{mB}, 0xff800000")
    a.lab("L_max")
    scores()
    for par in 'EO':
        for t, m in (('A', mA), ('B', mB)):
            s = Sr[par] + (16 if t == 'B' else 0)
            for j in range(0, 16, 2): a(f"v_max3_f32 v{m}, v{m}, v{s+j}, v{s+j+1}")
    step("L_max")
    for m in (mA, mB):
        a(f"v_mov_b32 v{vT2}, v{m}")
        a("s_nop 1")
        a(f"v_permlane32_swap_b32 v{vT2}, v{m}")
        a("s_nop 1")
        a(f"v_max_f32 v{m}, v{m}, v{vT2}")
    rewind(32)
    for r in range(120, 184): a(f"v_mov_b32 v{r}, 0")
    a.lab("L_acc")
    for par in 'EO':
        for j in range(2):
            for f in rd_v(par, j, 0): a(f)
    scores()
    for par in 'EO':
        for t, m in (('A', mA), ('B', mB)):
            s = Sr[par] + (16 if t == 'B' else 0)
            for j in range(16): a(f"v_sub_f32 v{s+j}, v{s+j}, v{m}")
            for j in range(16): a(f"v_exp_f32 v{s+j}, v{s+j}")
    a("s_nop 1")
    for par in 'EO':
        for t in 'AB':
            for j in range(2): a(mf_pv(t, par, j))
    step("L_acc")
    a("s_nop 15")
    finish('A'); finish('B')
    a("s_waitcnt lgkmcnt(0)")
    for k in range(3): store(k)
    a("s_branch L_done")
    nv = 212 if opt.stamp == 2 else NV
    a.raw(f""".section .rodata,"a"
.p2align 6
.amdhsa_kernel {NAME}_kernel
  .amdhsa_next_free_vgpr {nv}
  .amdhsa_next_free_sgpr {100 if (opt.stamp or opt.amp or opt.itst) else 48}
  .amdhsa_accum_offset {nv}
  .amdhsa_group_segment_fixed_size 0
  .amdhsa_kernarg_size 48
  .amdhsa_user_sgpr_count 2
  .amdhsa_user_sgpr_kernarg_segment_ptr 1
  .amdhsa_system_sgpr_workgroup_id_x 1
.end_amdhsa_kernel""")
    return a.text()

def parse(argv):
    p = argparse.ArgumentParser()
    p.add_argument('-o', default=f"cdna_kernels/{NAME}.s")
    p.add_argument('--grp', default='2,2')
    p.add_argument('--pf', type=int, default=1)
    p.add_argument('--kxm', type=int, default=0)
    p.add_argument('--bread', type=int, default=0)
    p.add_argument('--vlate', type=int, default=0)
    p.add_argument('--dbl', type=int, default=2)
    p.add_argument('--itst', type=int, default=0)
    p.add_argument('--alp', type=int, default=1)
    p.add_argument('--padA', type=int, default=0)
    p.add_argument('--padB', type=int, default=0)
    p.add_argument('--prsh', type=int, default=1)
    p.add_argument('--shared', type=int, default=1)
    p.add_argument('--qfirst', type=int, default=0)
    p.add_argument('--probe', default='')
    p.add_argument('--ampwg', type=int, default=-1)
    p.add_argument('--tv', type=int, default=0)
    p.add_argument('--touch', type=int, default=0)
    p.add_argument('--b05', type=int, default=0)
    p.add_argument('--b1', type=int, default=3)
    p.add_argument('--b2', type=int, default=7)
    p.add_argument('--bdelay', type=int, default=3)
    p.add_argument('--cut', type=int, default=3)
    p.add_argument('--pos', default='2,5,15,18,21,31,25')
    p.add_argument('--tpos', default='2,5,13,18,21,26,29')
    p.add_argument('--stfl', default='sc1')
    p.add_argument('--ldfl', default='')
    p.add_argument('--qfl', default='')
    p.add_argument('--stamp', type=int, default=0)
    p.add_argument('--amp', type=int, default=0)
    p.add_argument('--ampa', type=int, default=0)
    p.add_argument('--ampb', type=int, default=8)
    p.add_argument('--ampr', default='')
    p.add_argument('--ampbase', type=int, default=-1)
    return p.parse_args(argv)

if __name__ == '__main__':
    opt = parse(sys.argv[1:])
    open(opt.o, 'w').write(gen(opt))
```

```python
import sys, struct, math, argparse

NAME = "standalone__fused_io_aware_attn__prompt"
HB = 73728
ST = 2304
VBASE = HB
ABASE = 2 * HB
CBASE = ABASE + 4096
XBASE = CBASE + 256
LDS = XBASE + 3 * ST + 1024
OOR = 0x28000

def f2u(x): return struct.unpack('<I', struct.pack('<f', x))[0]
CSCALE = f2u(math.log2(math.e) / math.sqrt(18.0))

vSlot, vK, vV, vInc, vIdx, vQo, vDma, vT2 = 1, 2, 3, 4, 6, 7, 14, 15
KX = 8
QX = {'E': 10, 'O': 12}
Kr = {'E': 16, 'O': 20}
Qr = {('A', 'E'): 24, ('B', 'E'): 28, ('A', 'O'): 32, ('B', 'O'): 36}
Vr = {('E', 0): 40, ('E', 1): 44, ('O', 0): 48, ('O', 1): 52, ('T', 0): 188, ('T', 1): 192}
Sr = {'E': 56, 'O': 88}
Or = {('A', 'E'): 120, ('B', 'E'): 136, ('A', 'O'): 152, ('B', 'O'): 168}
vStA, vStB, vStR, vC = 184, 185, 186, 187
KX0, KE0, KO0 = 196, 198, 202
NV = 212
AL = dict(on=False)
G = dict(xc='0', xs=None)
KXO, KXO0 = 206, 208
def kx(par='E'):
    if G['xs'] is not None and par == 'O': return KXO0 if AL['on'] else KXO
    return KX0 if AL['on'] else KX
def kr(par): return {'E': KE0, 'O': KO0}[par] if AL['on'] else Kr[par]
def vv(par, j): return Vr[('T', j)] if (AL['on'] and par == 'E') else Vr[(par, j)]
def vr(b, n): return f"v[{b}:{b+n-1}]"

class Asm:
    def __init__(self): self.l = []
    def __call__(self, s, c=None): self.l.append("    " + s + (f"    ; {c}" if c else ""))
    def lab(self, s): self.l.append(s + ":")
    def raw(self, s): self.l.append(s)
    def note(self, s): self.l.append("    ; " + s)
    def text(self): return "\n".join(x.rstrip() for x in self.l) + "\n"

def mf_x(par):
    return f"v_mfma_f32_32x32x4_2b_bf16 {vr(Sr[par],32)}, {vr(kx(par),2)}, {vr(QX[par],2)}, {G['xc']} cbsz:1 abid:0"
def mf_q(t, par):
    s = Sr[par] + (16 if t == 'B' else 0)
    return f"v_mfma_f32_32x32x16_bf16 {vr(s,16)}, {vr(kr(par),4)}, {vr(Qr[(t,par)],4)}, {vr(s,16)}"
def mf_pv(t, par, j, vs=None):
    s = Sr[par] + (16 if t == 'B' else 0) + 8 * j
    return f"v_smfmac_f32_32x32x32_bf16 {vr(Or[(t,par)],16)}, {vr(vv(vs or par,j),4)}, {vr(s,8)}, v{vIdx}"
def ex(par, i): return f"v_exp_f32 v{Sr[par]+i}, v{Sr[par]+i}"
def rd_kx(u):
    if G['xs'] is not None: return [f"ds_read_b32 v{kx('E')}, v{vK} offset:{u*ST+32}", f"ds_read_b32 v{kx('O')}, v{vK} offset:{u*ST+36}"]
    return [f"ds_read_b64 {vr(kx(),2)}, v{vK} offset:{u*ST+32}"]
def rd_k(par, u):
    o = u * ST + (40 if par == 'O' else 0)
    return [f"ds_read_b64 {vr(kr(par),2)}, v{vK} offset:{o}", f"ds_read_b64 {vr(kr(par)+2,2)}, v{vK} offset:{o+8}"]
def rd_v(par, u):
    out = []
    for j in range(2):
        o = u * ST + (40 if par != 'E' else 0) + 4 * j * 72
        out += [f"ds_read_b64_tr_b16 {vr(vv(par,j),2)}, v{vV} offset:{o}", f"ds_read_b64_tr_b16 {vr(vv(par,j)+2,2)}, v{vV} offset:{o+72}"]
    return out
def clean(par):
    e = par == 'E'
    return [f"s_mov_b64 exec, {'s[12:13]' if e else 's[14:15]'}"] + [f"ds_read_b128 {vr(vv(par,j),4)}, v{vC} offset:{0 if e else 16}" for j in range(2)]
ALL = ["s_mov_b64 exec, -1"]

def phase_list(par, opt):
    oth = 'O' if par == 'E' else 'E'
    pos = [int(x) for x in opt.pos.split(',')]
    mf = {pos[0]: mf_pv('B', oth, 1), pos[1]: mf_x(oth), pos[2]: mf_pv('A', par, 0), pos[3]: mf_pv('A', par, 1),
          pos[4]: mf_q('A', oth), pos[5]: mf_pv('B', par, 0), pos[6]: mf_q('B', oth)}
    out = []
    for i in range(32):
        if i in mf: out.append((i, 'm', mf[i]))
        out.append((i, 'e', ex(par, i)))
    return out

def gen(opt):
    G['xc'] = opt.xc; G['xs'] = None if opt.xs == '' else float(opt.xs)
    xs = G['xs'] is not None
    a = Asm()
    def stamp(i):
        if opt.stamp and (opt.stamp != 3 or i in (0, 7, 8)): a(f"s_memtime s[{60+2*i}:{61+2*i}]")
        if opt.amp and i in (opt.ampa, opt.ampb): a(f"{'s_memrealtime' if opt.ampt else 's_memtime'} s[{60+2*i}:{61+2*i}]")
    smem = opt.stamp == 1 or (opt.amp and not (opt.ampa in (0, 7) and opt.ampb in (7, 8)))
    def lgkm(n): a(f"s_waitcnt lgkmcnt({0 if smem else n})")
    a.raw(f"""; Fused attention forward, B=2 H=32 S=2048 D=18, bf16 in/out (emitted by my own generator script).
; @launch grid=(256,1,1) block=(512,1,1) lds={LDS}
.amdgcn_target "amdgcn-amd-amdhsa--gfx950"
.text
.globl {NAME}_kernel
.p2align 8
.type {NAME}_kernel,@function
{NAME}_kernel:""")
    stamp(0)
    if opt.stamp: a("s_memrealtime s[56:57]")
    a("s_load_dwordx8 s[4:11], s[0:1], 0", "q, k, v, out")
    if opt.pf:
        a("s_getpc_b64 s[36:37]")
        a(f"v_mul_u32_u24 v{vT2}, 9, v0")
        a(f"global_load_ubyte v{vT2}, v{vT2}, s[36:37] offset:116", "pulls this kernel's code lines into L2")
    a("v_readfirstlane_b32 s24, v0", "64 * wave")
    a("s_and_b32 s3, s2, 7")
    a("s_lshr_b32 s25, s2, 3")
    a("s_lshl_b32 s3, s3, 5")
    a("s_add_u32 s3, s3, s25", "4 * head + query block")
    a("s_cmpk_ge_u32 s2, 256")
    a("s_cbranch_scc1 L_end")
    a(f"v_lshl_add_u32 v{vQo}, s3, 9, v0")
    a(f"v_mul_u32_u24 v{vQo}, 36, v{vQo}", "one Q row per lane")
    a("s_cmpk_ge_u32 s24, 256")
    a("s_cbranch_scc1 L_setup", "role B (waves 4..7) starts its loads after role A's")
    t0, t1 = Sr['E'] + 8, Sr['E'] + 9
    T = Sr['O']
    def qloads():
        a(f"global_load_dword v{T+8}, v{vQo}, s[4:5] offset:32")
        a(f"global_load_dwordx4 {vr(T,4)}, v{vQo}, s[4:5]")
        a(f"global_load_dwordx4 {vr(T+4,4)}, v{vQo}, s[4:5] offset:16")
    a("s_lshl_b32 m0, s24, 5", "2 KB chunk `wave` of K and of V")
    a("s_lshr_b32 s25, s3, 2")
    a(f"s_mul_i32 s25, s25, {HB}")
    a("s_lshl4_add_u32 s26, s24, s25")
    a(f"v_lshl_add_u32 v{t0}, v0, 4, s26")
    a("s_waitcnt lgkmcnt(0)")
    stamp(1)
    a(f"global_load_lds_dwordx4 v{t0}, s[6:7]")
    a(f"global_load_lds_dwordx4 v{t0}, s[6:7] offset:1024")
    a(f"s_add_u32 m0, m0, {VBASE}")
    a("s_nop 0")
    a(f"global_load_lds_dwordx4 v{t0}, s[8:9]")
    a(f"global_load_lds_dwordx4 v{t0}, s[8:9] offset:1024")
    qloads()
    a.lab("L_setup")
    if opt.stamp:
        a("s_load_dwordx2 s[40:41], s[0:1], 40")
        if opt.stamp == 3:
            for i in range(62, 74): a(f"s_mov_b32 s{i}, 0")
    a(f"v_lshlrev_b32 v{vSlot}, 3, v0")
    a("v_and_b32 v0, 63, v0")
    a("s_lshr_b32 s24, s24, 6", "wave id")
    a("s_lshr_b32 s25, s3, 2")
    a(f"s_mul_i32 s25, s25, {HB}", "head byte offset")
    a("s_lshl3_add_u32 s26, s3, s24")
    a(f"s_mul_i32 s26, s26, {ST}", "output byte offset of this wave")
    a(f"v_lshlrev_b32 v{vDma}, 4, v0")
    a("s_lshl_b32 s27, s24, 11")
    a("s_cmp_lt_u32 s24, 4")
    a("s_cselect_b32 s28, 16384, 0")
    a("s_add_u32 s27, s27, s28", "byte offset of this wave's next 2 KB chunk")
    a("s_mov_b32 m0, s27")
    a(f"s_mov_b32 s18, {HB}")
    a("s_mov_b32 s19, 0x00020000")
    a(f"s_mov_b32 s46, {HB}")
    a("s_mov_b32 s47, 0x00020000")
    a(f"s_movk_i32 s22, {ST}")
    a("s_mov_b32 s23, 0x00020000")
    def quad():
        a(f"buffer_load_dwordx4 v{vDma}, s[16:19], s27 offen lds")
        a(f"buffer_load_dwordx4 v{vDma}, s[16:19], s27 offen offset:1024 lds")
        a("s_add_u32 m0, s27, s18")
        a("s_nop 0")
        a(f"buffer_load_dwordx4 v{vDma}, s[44:47], s27 offen lds")
        a(f"buffer_load_dwordx4 v{vDma}, s[44:47], s27 offen offset:1024 lds")
        a("s_add_u32 m0, s27, 16384")
        a("s_add_u32 s27, s27, 16384")
    a("s_waitcnt lgkmcnt(0)")
    a("s_add_u32 s16, s6, s25")
    a("s_addc_u32 s17, s7, 0")
    a("s_add_u32 s44, s8, s25")
    a("s_addc_u32 s45, s9, 0")
    a("s_add_u32 s20, s10, s26")
    a("s_addc_u32 s21, s11, 0")
    C = Sr['E']
    t3, t4, t5 = C + 4, C + 5, C + 6
    a(f"v_mov_b32 v{QX['E']}, 0"); a(f"v_mov_b32 v{QX['E']+1}, 0"); a(f"v_mov_b32 v{QX['O']}, 0")
    a(f"v_and_b32 v{t0}, 31, v0")
    a(f"v_lshrrev_b32 v{t1}, 5, v0", "half wave h")
    a(f"v_mfma_f32_32x32x4_2b_bf16 {vr(120,32)}, {vr(QX['E'],2)}, {vr(QX['E'],2)}, 0")
    a(f"v_mfma_f32_32x32x4_2b_bf16 {vr(152,32)}, {vr(QX['E'],2)}, {vr(QX['E'],2)}, 0")
    a("s_mov_b32 vcc_lo, 0x00f000f0"); a("s_mov_b32 vcc_hi, 0x00f000f0")
    a(f"v_mov_b32 v{t4}, 0x3f803f80")
    a(f"v_cndmask_b32 v{t4}, 0, v{t4}, vcc")
    a(f"v_and_b32 v{t3}, 15, v0")
    a(f"v_mov_b32 v{t5}, {CBASE}")
    a(f"v_lshl_add_u32 v{t3}, v{t3}, 2, v{t5}")
    a(f"ds_write_b32 v{t3}, v{t4}")
    a(f"v_add_u32 v{vC}, 32, v{t5}")
    a("s_mov_b32 vcc_lo, 0x00040000"); a("s_mov_b32 vcc_hi, 0x00040000")
    a(f"v_cndmask_b32 v{vC}, v{vC}, v{t5}, vcc", "row 18: ones for odd keys")
    a(f"v_add_u32 v{t5}, 16, v{t5}")
    a("s_lshl_b64 vcc, vcc, 2")
    a(f"v_cndmask_b32 v{vC}, v{vC}, v{t5}, vcc", "row 20: ones for even keys")
    a("s_mov_b32 s12, 0x00fc0000"); a("s_mov_b32 s13, 0x00fc0000")
    a("s_lshr_b64 s[14:15], s[12:13], 2")
    a(f"v_and_b32 v{t3}, 3, v0")
    a(f"v_lshrrev_b32 v{t4}, 2, v{t0}")
    a(f"v_lshl_add_u32 v{t3}, v{t3}, 3, v{t4}")
    a(f"v_mul_u32_u24 v{vK}, 72, v{t3}")
    a(f"v_lshl_add_u32 v{vK}, v{t1}, 4, v{vK}")
    a(f"v_and_b32 v{t3}, 12, v0")
    a(f"v_add_lshl_u32 v{t3}, v{t3}, v{t1}, 1")
    a(f"v_mul_u32_u24 v{t3}, 72, v{t3}")
    a(f"v_and_b32 v{t4}, 1, v0")
    a(f"v_lshlrev_b32 v{t4}, 4, v{t4}")
    a(f"v_sub_u32 v{t3}, v{t3}, v{t4}")
    a(f"v_and_b32 v{t4}, 2, v0")
    a(f"v_lshl_add_u32 v{t3}, v{t4}, 2, v{t3}")
    a(f"v_and_b32 v{t4}, 16, v0")
    a(f"v_add3_u32 v{t3}, v{t4}, v{t3}, s18")
    a(f"v_add_u32 v{t4}, 16, v{t3}")
    a(f"v_subrev_u32 v{t3}, 8, v{t3}")
    a("s_mov_b32 vcc_lo, 0x22220000"); a("s_mov_b32 vcc_hi, 0x22220000")
    a(f"v_cndmask_b32 v{t3}, v{t4}, v{t3}, vcc")
    a(f"v_mov_b32 v{t4}, {OOR:#x}")
    a("s_mov_b32 vcc_lo, 0xcccc0000"); a("s_mov_b32 vcc_hi, 0xcccc0000")
    a(f"v_cndmask_b32 v{vV}, v{t3}, v{t4}, vcc")
    if xs:
        for r in (KX, KX0, KXO, KXO0): a(f"v_mov_b32 v{r+1}, {0x3f80 if G['xs'] else 0:#x}")
        for par in 'EO': a(f"v_mov_b32 v{QX[par]+1}, {f2u(G['xs']) >> 16:#x}", "constant softmax shift")
    a(f"v_mov_b32 v{vIdx}, 0xdddd", "sparse index: elements 1 and 3 of every group of four")
    a(f"v_mov_b32 v{vInc}, {ST}")
    a(f"v_mov_b32 v{vInc+1}, {ST}")
    a(f"v_add_u32 v{C+2}, v{vK}, v{vInc}")
    a(f"v_add_u32 v{C+3}, v{vV}, v{vInc}")
    a(f"v_add_u32 v{vSlot}, {ABASE}, v{vSlot}")
    a(f"ds_write_b64 v{vSlot}, {vr(C+2,2)}", "address counters, stepped by ds_add_rtn_u64")
    a(f"s_mul_i32 s28, s24, {ST}")
    a("s_cmp_ge_u32 s24, 5")
    a(f"s_cselect_b32 s29, {XBASE - 5*ST}, 0")
    a("s_add_u32 s28, s28, s29")
    a(f"v_mul_u32_u24 v{vStA}, 36, v{t0}")
    a(f"v_lshlrev_b32 v{t4}, 4, v{t1}")
    a(f"v_sub_u32 v{vStA}, v{vStA}, v{t4}")
    a(f"v_add3_u32 v{vStA}, v{vStA}, 16, s28")
    a(f"v_add_u32 v{vStB}, 1152, v{vStA}")
    a(f"v_add_u32 v{vStR}, s28, v{vDma}")
    if opt.obias:
        bb = f2u(opt.obias)
        a("s_nop 15")
        for t in 'AB':
            E, O = Or[(t, 'E')], Or[(t, 'O')]
            for j in range(8):
                a(f"v_mov_b32 v{E+j}, {bb:#x}"); a(f"v_mov_b32 v{O+j}, {bb | (0x80000000 if opt.osign else 0):#x}")
        a("s_mov_b32 exec_hi, 0")
        for t in 'AB':
            for j in (8, 9): a(f"v_mov_b32 v{Or[(t,'E')]+j}, {bb:#x}")
        a("s_not_b64 exec, exec")
        for t in 'AB':
            for j in (10, 11): a(f"v_mov_b32 v{Or[(t,'O')]+j}, {bb | (0x80000000 if opt.osign else 0):#x}")
        a("s_mov_b64 exec, -1")
    a(f"s_mov_b32 s30, {CSCALE:#x}", "log2(e)/sqrt(18)"); a(f"s_mov_b32 s31, {CSCALE:#x}")
    a("s_mov_b32 s29, 1", "super tile counter")
    b1, b2 = 3, 7
    a(f"s_mov_b32 s32, {(1 << (b1-1)) | (1 << (b2-1)):#x}", "barrier schedule")
    a(f"s_mov_b32 s33, {(1 << (b1-1)) | (1 << (b2-1)) | (1 << 31):#x}")
    a("s_mov_b32 s34, 0xffff0000")
    a("s_mov_b32 s35, 0x7b800000", "2^120")
    a("s_mov_b64 vcc, 0")
    a("s_cmp_ge_u32 s24, 4", "SCC = role B (kept until the loops)")
    a("s_waitcnt vmcnt(5)")
    a("s_barrier", "role A's K chunks are in: role B starts its Q loads")
    a("s_cbranch_scc0 L_noq")
    qloads()
    a.lab("L_noq")
    a.raw("    .p2align 3")
    a("s_waitcnt vmcnt(3) lgkmcnt(0)")
    stamp(2)
    a("s_barrier", "first 8 KB of K and V are in")
    bump = f"ds_add_rtn_u64 {vr(vK,2)}, v{vSlot}, {vr(vInc,2)}"
    bK = rd_kx(1) + rd_k('E', 1) + rd_k('O', 1)
    bV = rd_v('O', 0) + rd_v('E', 1)
    bC = clean('O') + clean('E')
    AL['on'] = True
    l0 = rd_kx(0) + rd_k('E', 0) + rd_k('O', 0) + rd_v('E', 0) + bK + bV + [bump]
    for f in l0[:14]: a(f)
    lgkm(15 - (len(l0) - 14))
    a("s_setprio 3")
    for f in l0[14:]: a(f)
    lgkm(9)
    for f in bC + clean('E')[1:] + ALL: a(f)
    stamp(3)
    W = T + 10
    QAE, QBE, QAO, QBO = Qr[('A','E')], Qr[('B','E')], Qr[('A','O')], Qr[('B','O')]
    def shl(j): a(f"v_lshlrev_b32 v{W+2*j}, 16, v{T+j}")
    def msk(j): a(f"v_and_b32 v{W+2*j+1}, s34, v{T+j}")
    def mul(j): a(f"v_pk_mul_f32 {vr(W+2*j,2)}, {vr(W+2*j,2)}, s[30:31]")
    def cvt(j, d): a(f"v_cvt_pk_bf16_f32 v{d}, v{W+2*j}, v{W+2*j+1}")
    a("s_waitcnt vmcnt(1)")
    shl(8); msk(8); shl(0); mul(8); cvt(8, QX['E']); cvt(8, QBO + 3)
    msk(0); shl(1)
    a(mf_x('E'))
    mul(0)
    for j in range(1, 3): msk(j); shl(j + 1); mul(j)
    msk(3)
    a("s_waitcnt vmcnt(0)")
    stamp(4)
    mul(3)
    for j in range(4): cvt(j, QAE + j)
    for j in range(4, 8): shl(j); msk(j); mul(j)
    for j in range(4): cvt(4 + j, QBE + j)
    for j in range(4): a(f"v_permlane32_swap_b32 v{QAE+j}, v{QBE+j}")
    cvt(4, QAO + 3)
    cvt(0, QX['O'] + (0 if xs else 1))
    a(mf_q('A', 'E'))
    a("s_waitcnt lgkmcnt(0)")
    a(f"v_permlane32_swap_b32 v{QAO+3}, v{QBO+3}")
    for j in range(0, 3): a(f"v_mov_b32 v{QAO+j}, v{QAE+j+1}")
    for j in range(0, 3): a(f"v_mov_b32 v{QBO+j}, v{QBE+j+1}")
    a(mf_q('B', 'E'))
    a("s_cbranch_scc1 L_startB")
    a("s_setprio 2")
    a("s_nop 0")
    cut = opt.cut
    pos0 = int(opt.pos.split(',')[0])
    assert cut > pos0
    a.lab("L_first")
    stamp(5)
    for (i, k_, s_) in phase_list('E', opt):
        if not (i == pos0 and k_ == 'm'): a(s_)
    for (i, k_, s_) in phase_list('O', opt):
        if i < cut: a(s_)
    AL['on'] = False
    pE, pO = phase_list('E', opt), phase_list('O', opt)
    seg = [s_ for (i, k_, s_) in pO if i >= cut] + [s_ for (i, k_, s_) in pE] + [s_ for (i, k_, s_) in pO if i < cut]
    for s_ in seg: a(s_)
    a("s_cbranch_scc0 L_topA")
    a("s_branch L_topB")
    a.lab("L_startB")
    a("s_setprio 1")
    quad()
    a("s_cmp_ge_u32 s24, 4")
    a("s_branch L_first")
    for role in 'AB':
        a.raw("    .p2align 6")
        pad = opt.padA if role == 'A' else opt.padB
        if pad: a.raw(f"    .fill {pad}, 4, 0xbf800000    ; never executed: sets the loop's fetch alignment")
        a.lab(f"L_top{role}")
        if role == 'A': a("s_setprio 0")
        a("s_add_u32 s29, s29, 1")
        if opt.itst: a("s_memtime s[48:49]")
        for f in bV + bK: a(f)
        a("s_cmp_lg_u32 s29, 31")
        a(f"s_cbranch_scc1 L_nl{role}")
        a("s_mov_b64 vcc, 1", "last segment: it runs on into the tail")
        a("s_waitcnt lgkmcnt(8)")
        for f in rd_v('T', 1) + clean('T') + ALL: a(f)
        a.lab(f"L_nl{role}")
        a("s_waitcnt lgkmcnt(10)")
        for f in [bump] + bC + ALL: a(f)
        if opt.itst:
            a("s_waitcnt lgkmcnt(0)"); a("s_mov_b32 m0, s29"); a("s_nop 0")
            a("s_movreld_b32 s62, s48"); a("s_mov_b32 m0, s27"); a("s_nop 0")
        a("s_cmp_gt_u32 s29, 4")
        a(f"s_cbranch_scc1 L_nd{role}")
        quad()
        if role == 'A':
            a("s_cmp_lg_u32 s29, 2")
            a("s_cbranch_scc1 L_ndA")
            quad()
        a.lab(f"L_nd{role}")
        a(f"s_cmp_lg_u32 s29, {b2-1}")
        a(f"s_cbranch_scc1 L_nw{role}")
        a("s_waitcnt vmcnt(0)")
        a.lab(f"L_nw{role}")
        a(f"s_bitcmp1_b32 {'s33' if role == 'A' else 's32'}, s29", "SCC: a barrier follows this " + ("segment" if role == 'A' else "burst"))
        a("s_waitcnt lgkmcnt(0)")
        if role == 'B':
            a("s_cbranch_scc0 L_goB")
            a("s_waitcnt vmcnt(4)")
            a("s_barrier")
            a.lab("L_goB")
        first = True
        for s_ in seg:
            a(s_)
            if first and role == 'A' and 'smfmac' in s_:
                a("s_setprio 2"); first = False
        if role == 'A':
            a("s_cbranch_scc0 L_topA")
            a("s_cbranch_vccnz L_tail")
            a("s_barrier")
            a("s_branch L_topA")
        else:
            a("s_cbranch_vccz L_topB")
    R = Sr['E']
    PK = {'A': Sr['E'] + 8, 'B': Sr['E'] + 14}
    OB = Sr['E'] + 20
    def finish(t):
        E, O = Or[(t, 'E')], Or[(t, 'O')]
        l, rc = (R, R + 2) if t == 'A' else (R + 1, R + 4)
        a(f"v_permlane32_swap_b32 v{O+6}, v{O+10}")
        a(f"v_permlane32_swap_b32 v{O+7}, v{O+11}")
        a(f"v_add_f32 v{rc}, v{E+8}, v{O+6}", "denominator (upper half wave)")
        a(f"v_add_f32 v{l}, v{E+8}, v{O+6}")
        a(f"v_pk_add_f32 {vr(E+8,2)}, {vr(E+8,2)}, {vr(O+6,2)}")
        a(f"v_pk_add_f32 {vr(E,2)}, {vr(E,2)}, {vr(O+10,2)}")
        a(f"v_permlane32_swap_b32 v{rc}, v{l}")
        a(f"v_rcp_f32 v{rc}, v{l}")
        for j in (2, 4, 6):
            a(f"v_pk_add_f32 {vr(E+j,2)}, {vr(E+j,2)}, {vr(O+j-2,2)}")
        for j in (8, 0, 2, 4, 6):
            a(f"v_pk_mul_f32 {vr(E+j,2)}, {vr(E+j,2)}, {vr(rc,2)} op_sel_hi:[1,0]")
        st = vStA if t == 'A' else vStB
        for j in (4, 0, 1, 2, 3):
            a(f"v_cvt_pk_bf16_f32 v{PK[t]+j}, v{E+2*j}, v{E+2*j+1}")
        a(f"ds_write_b32 v{st}, v{PK[t]+4} offset:16", "upper half's word is overwritten by the next write")
        a(f"ds_write2_b32 v{st}, v{PK[t]}, v{PK[t]+1} offset0:0 offset1:1")
        a(f"ds_write2_b32 v{st}, v{PK[t]+2}, v{PK[t]+3} offset0:2 offset1:3")
        if t == 'A':
            a(f"ds_read_b128 {vr(OB,4)}, v{vStR}")
        else:
            a(f"ds_read_b128 {vr(OB+4,4)}, v{vStR} offset:1024")
            a(f"ds_read_b128 {vr(OB+8,4)}, v{vStR} offset:2048")
    def store(k): a(f"buffer_store_dwordx4 {vr(OB+4*k,4)}, v{vDma}, s[20:23], 0 offen offset:{1024*k} sc1")
    a.lab("L_tail")
    tm = {10: mf_pv('A', 'O', 0, 'T'), 18: mf_pv('A', 'O', 1, 'T'), 26: mf_pv('B', 'O', 0, 'T')}
    for i in range(cut, 32):
        if i in tm: a(tm[i])
        if i == 29: finish('A')
        a(ex('O', i))
    stamp(6)
    a("s_nop 1")
    a(mf_pv('B', 'O', 1, 'T'))
    a("s_nop 9")
    lgkm(0)
    store(0)
    finish('B')
    lgkm(1)
    store(1)
    lgkm(0)
    store(2)
    stamp(7)
    a("s_setprio 0")
    for t in 'AB':
        for j in range(5): a(f"v_dot2c_f32_bf16 v{R if t == 'A' else R+1}, 0, v{PK[t]+j}")
    a(f"v_cmp_nge_f32 s[36:37], v{R}, 1.0")
    a(f"v_cmp_nle_f32 vcc, v{R}, s35")
    a("s_or_b64 s[36:37], s[36:37], vcc")
    a(f"v_cmp_nge_f32 s[38:39], v{R+1}, 1.0")
    a(f"v_cmp_nle_f32 vcc, v{R+1}, s35")
    a("s_or_b64 s[36:37], s[36:37], s[38:39]")
    a("s_or_b64 s[36:37], s[36:37], vcc")
    a("s_cbranch_scc1 L_slow")
    a.lab("L_done")
    if opt.amp:
        a("s_waitcnt vmcnt(0)")
        stamp(8)
        a("s_memrealtime s[42:43]")
        a("s_waitcnt lgkmcnt(0)")
        a(f"s_sub_u32 s50, s{60+2*opt.ampb}, s{60+2*opt.ampa}")
        a(f"s_max_u32 s50, s50, {opt.ampbase}")
        a(f"s_sub_u32 s50, s50, {opt.ampbase}")
        a("s_load_dwordx2 s[54:55], s[0:1], 32")
        a(f"s_cmp_lg_u32 s24, {3 if opt.ampr == 'A' else 7}")
        a("s_cbranch_scc1 L_end")
        a("s_add_u32 s51, s50, 0x1000000")
        a("s_mov_b64 exec, 1")
        a("v_mov_b32 v16, s51"); a("v_mov_b32 v17, 0")
        a("s_waitcnt lgkmcnt(0)")
        a("global_atomic_add v18, v17, v16, s[54:55] sc0 sc1")
        a("s_waitcnt vmcnt(0)")
        a("v_readfirstlane_b32 s51, v18")
        a("s_nop 3")
        a("s_add_u32 s50, s50, s51")
        a("s_and_b32 s50, s50, 0xffffff")
        a(f"s_mul_i32 s50, s50, {opt.amp}")
        a("s_lshr_b32 s50, s50, 8")
        a("s_lshr_b32 s51, s51, 24")
        a("s_cmp_lg_u32 s51, 255")
        a("s_cselect_b32 s50, 0, s50")
        a("s_min_u32 s50, s50, 20000")
        a.lab("L_spin")
        a("s_sleep 2")
        a("s_memrealtime s[52:53]")
        a("s_waitcnt lgkmcnt(0)")
        a("s_sub_u32 s51, s52, s42")
        a("s_cmp_lt_u32 s51, s50")
        a("s_cbranch_scc1 L_spin")
    if opt.itst:
        a("s_load_dwordx2 s[40:41], s[0:1], 40")
        for i in range(32): a(f"v_writelane_b32 v16, s{62+i}, {i}")
        a("s_lshl_b32 s50, s2, 3"); a("s_add_u32 s50, s50, s24"); a("s_lshl_b32 s50, s50, 8")
        a(f"v_lshrrev_b32 v1, 2, v{vDma}")
        a("v_add_u32 v1, s50, v1")
        a("s_waitcnt lgkmcnt(0)")
        a("global_store_dword v1, v16, s[40:41]")
    if opt.stamp:
        a("s_mov_b64 exec, 1")
        a("s_waitcnt vmcnt(0)")
        stamp(8)
        a("s_memrealtime s[58:59]")
        a("s_getreg_b32 s42, hwreg(HW_REG_HW_ID)")
        a("s_getreg_b32 s43, hwreg(HW_REG_XCC_ID)")
        a("s_waitcnt lgkmcnt(0)")
        for i, sr in enumerate((56, 58, 42, 43, 60, 62, 64, 66, 68, 70, 72, 74, 76)):
            a(f"v_mov_b32 v{16+i}, s{sr}")
        a("s_lshl_b32 s50, s2, 3"); a("s_add_u32 s50, s50, s24"); a("s_lshl_b32 s50, s50, 6")
        a("v_mov_b32 v1, s50")
        for i in range(4): a(f"global_store_dwordx4 v1, v[{16+4*i}:{19+4*i}], s[40:41] offset:{16*i}")
    a.lab("L_end")
    a("s_endpgm")
    a.lab("L_slow")
    a("s_waitcnt vmcnt(0)")
    mA, mB = 0, vSlot
    def rewind(n):
        a(f"v_subrev_u32 v{vK}, {n*ST}, v{vK}")
        a(f"v_subrev_u32 v{vV}, {n*ST}, v{vV}")
        a("s_mov_b32 s29, 0")
    def scores():
        if xs:
            a(f"buffer_load_dword v{KX}, v{vK}, s[16:19], 0 offen offset:32")
            a(f"buffer_load_dword v{KXO}, v{vK}, s[16:19], 0 offen offset:36")
        else:
            a(f"buffer_load_dwordx2 {vr(KX,2)}, v{vK}, s[16:19], 0 offen offset:32")
        a(f"buffer_load_dwordx4 {vr(Kr['E'],4)}, v{vK}, s[16:19], 0 offen")
        a(f"buffer_load_dwordx4 {vr(Kr['O'],4)}, v{vK}, s[16:19], 0 offen offset:40")
        a("s_waitcnt vmcnt(0) lgkmcnt(0)")
        a(mf_x('E')); a(mf_x('O'))
        a("s_nop 15"); a("s_nop 3")
        for par in 'EO':
            for t in 'AB': a(mf_q(t, par))
        a("s_nop 15")
    def step(lab):
        a(f"v_add_u32 v{vK}, v{vInc}, v{vK}")
        a(f"v_add_u32 v{vV}, v{vInc}, v{vV}")
        a("s_add_u32 s29, s29, 1")
        a("s_cmp_lg_u32 s29, 32")
        a(f"s_cbranch_scc1 {lab}")
    rewind(31)
    a(f"v_mov_b32 v{mA}, 0xff800000"); a(f"v_mov_b32 v{mB}, 0xff800000")
    a.lab("L_max")
    scores()
    for par in 'EO':
        for t, m in (('A', mA), ('B', mB)):
            s = Sr[par] + (16 if t == 'B' else 0)
            for j in range(0, 16, 2): a(f"v_max3_f32 v{m}, v{m}, v{s+j}, v{s+j+1}")
    step("L_max")
    for m in (mA, mB):
        a(f"v_mov_b32 v{vT2}, v{m}")
        a("s_nop 1")
        a(f"v_permlane32_swap_b32 v{vT2}, v{m}")
        a("s_nop 1")
        a(f"v_max_f32 v{m}, v{m}, v{vT2}")
    rewind(32)
    for r in range(120, 184): a(f"v_mov_b32 v{r}, 0")
    a.lab("L_acc")
    for f in rd_v('E', 0) + rd_v('O', 0) + clean('E') + clean('O') + ALL: a(f)
    scores()
    for par in 'EO':
        for t, m in (('A', mA), ('B', mB)):
            s = Sr[par] + (16 if t == 'B' else 0)
            for j in range(16): a(f"v_sub_f32 v{s+j}, v{s+j}, v{m}")
            for j in range(16): a(f"v_exp_f32 v{s+j}, v{s+j}")
    a("s_nop 1")
    for par in 'EO':
        for t in 'AB':
            for j in range(2): a(mf_pv(t, par, j))
    step("L_acc")
    a("s_nop 15")
    finish('A'); finish('B')
    a("s_waitcnt lgkmcnt(0)")
    for k in range(3): store(k)
    a("s_branch L_done")
    a.raw(f""".section .rodata,"a"
.p2align 6
.amdhsa_kernel {NAME}_kernel
  .amdhsa_next_free_vgpr {NV}
  .amdhsa_next_free_sgpr {100 if (opt.stamp or opt.amp or opt.itst) else 48}
  .amdhsa_accum_offset {NV}
  .amdhsa_group_segment_fixed_size 0
  .amdhsa_kernarg_size 48
  .amdhsa_user_sgpr_count 2
  .amdhsa_user_sgpr_kernarg_segment_ptr 1
  .amdhsa_system_sgpr_workgroup_id_x 1
.end_amdhsa_kernel""")
    return a.text()

def parse(argv):
    p = argparse.ArgumentParser()
    p.add_argument('-o', default=f"cdna_kernels/{NAME}.s")
    p.add_argument('--cut', type=int, default=3)
    p.add_argument('--pos', default='2,5,15,18,21,31,25')
    p.add_argument('--pf', type=int, default=1)
    p.add_argument('--ampt', type=int, default=0)
    p.add_argument('--obias', type=float, default=0)
    p.add_argument('--osign', type=int, default=1)
    p.add_argument('--xc', default='0')
    p.add_argument('--xs', default='35')
    p.add_argument('--padA', type=int, default=4)
    p.add_argument('--padB', type=int, default=0)
    p.add_argument('--stamp', type=int, default=0)
    p.add_argument('--itst', type=int, default=0)
    p.add_argument('--amp', type=int, default=0)
    p.add_argument('--ampa', type=int, default=0)
    p.add_argument('--ampb', type=int, default=8)
    p.add_argument('--ampr', default='')
    p.add_argument('--ampbase', type=int, default=44000)
    return p.parse_args(argv)

if __name__ == '__main__':
    opt = parse(sys.argv[1:])
    open(opt.o, 'w').write(gen(opt))
```

```python
import sys, struct, math, argparse

NAME = "standalone__fused_io_aware_attn__prompt"
HB = 73728
ST = 2304
VBASE = HB
ABASE = 2 * HB
LDS = ABASE + 4096
OOR = 0x28000

def f2u(x): return struct.unpack('<I', struct.pack('<f', x))[0]
CSCALE = f2u(math.log2(math.e) / math.sqrt(18.0))

vSlot, vK, vV, vInc, vIdx, vQo, vDma, vT2 = 1, 2, 3, 4, 6, 7, 14, 15
KXr = {'E': 8, 'O': 176}
QX = {'E': 10, 'O': 12}
Kr = {'E': 16, 'O': 20}
Qr = {('A', 'E'): 24, ('B', 'E'): 28, ('A', 'O'): 32, ('B', 'O'): 36}
Vr = {('E', 0): 40, ('E', 1): 44, ('O', 0): 48, ('O', 1): 52, ('T', 0): 168, ('T', 1): 172}
Sr = {'E': 56, 'O': 88}
Or = {'A': 120, 'B': 136}
TR = 152
KX0 = {'E': 178, 'O': 180}
K0 = {'E': 182, 'O': 186}
vStA, vStB, vStR, vR, vWE, vWO = 190, 191, 192, 193, 194, 195
NV = 196
AL = dict(on=False)
def kx(par): return KX0[par] if AL['on'] else KXr[par]
def kr(par): return K0[par] if AL['on'] else Kr[par]
def vv(par, j): return Vr[('T', j)] if (AL['on'] and par == 'E') else Vr[(par, j)]
def vr(b, n): return f"v[{b}:{b+n-1}]"

class Asm:
    def __init__(self): self.l = []
    def __call__(self, s, c=None): self.l.append("    " + s + (f"    ; {c}" if c else ""))
    def lab(self, s): self.l.append(s + ":")
    def raw(self, s): self.l.append(s)
    def note(self, s): self.l.append("    ; " + s)
    def text(self): return "\n".join(x.rstrip() for x in self.l) + "\n"

def mf_x(par):
    return f"v_mfma_f32_32x32x4_2b_bf16 {vr(Sr[par],32)}, {vr(kx(par),2)}, {vr(QX[par],2)}, 0 cbsz:1 abid:0"
def mf_q(t, par):
    s = Sr[par] + (16 if t == 'B' else 0)
    return f"v_mfma_f32_32x32x16_bf16 {vr(s,16)}, {vr(kr(par),4)}, {vr(Qr[(t,par)],4)}, {vr(s,16)}"
def mf_pv(t, par, j, vs=None):
    s = Sr[par] + (16 if t == 'B' else 0) + 8 * j
    return f"v_smfmac_f32_32x32x32_bf16 {vr(Or[t],16)}, {vr(vv(vs or par,j),4)}, {vr(s,8)}, v{vIdx}"
def ex(par, i): return f"v_exp_f32 v{Sr[par]+i}, v{Sr[par]+i}"
def rd_kx(u): return [f"ds_read_b32 v{kx('E')}, v{vK} offset:{u*ST+32}", f"ds_read_b32 v{kx('O')}, v{vK} offset:{u*ST+36}"]
def rd_k(par, u):
    o = u * ST + (40 if par == 'O' else 0)
    return [f"ds_read_b64 {vr(kr(par),2)}, v{vK} offset:{o}", f"ds_read_b64 {vr(kr(par)+2,2)}, v{vK} offset:{o+8}"]
def rd_v(par, u):
    return [f"ds_read_b128 {vr(vv(par,j),4)}, v{vV} offset:{u*ST + (0 if par == 'E' else 1152) + 576*j}" for j in range(2)]
ROWS = "s_mov_b64 exec, s[12:13]"
LOW = "s_mov_b32 exec_hi, 0"
ALL = "s_mov_b64 exec, -1"

def phase_list(par, opt):
    oth = 'O' if par == 'E' else 'E'
    pos = [int(x) for x in opt.pos.split(',')]
    mf = {pos[0]: mf_pv('B', oth, 1), pos[1]: mf_x(oth), pos[2]: mf_pv('A', par, 0), pos[3]: mf_pv('A', par, 1),
          pos[4]: mf_q('A', oth), pos[5]: mf_pv('B', par, 0), pos[6]: mf_q('B', oth)}
    out = []
    for i in range(32):
        if i in mf: out.append((i, 'm', mf[i]))
        out.append((i, 'e', ex(par, i)))
    return out

def gen(opt):
    a = Asm()
    def stamp(i):
        if opt.stamp and (opt.stamp != 3 or i in (0, 7, 8)): a(f"s_memtime s[{60+2*i}:{61+2*i}]")
        if opt.amp and i in (opt.ampa, opt.ampb): a(f"{'s_memrealtime' if opt.ampt else 's_memtime'} s[{60+2*i}:{61+2*i}]")
    smem = opt.stamp == 1 or (opt.amp and not (opt.ampa in (0, 7) and opt.ampb in (7, 8)))
    def lgkm(n): a(f"s_waitcnt lgkmcnt({0 if smem else n})")
    a.raw(f"""; Fused attention forward, B=2 H=32 S=2048 D=18, bf16 in/out (emitted by my own generator script).
; @launch grid=(256,1,1) block=(512,1,1) lds={LDS}
.amdgcn_target "amdgcn-amd-amdhsa--gfx950"
.text
.globl {NAME}_kernel
.p2align 8
.type {NAME}_kernel,@function
{NAME}_kernel:""")
    stamp(0)
    if opt.stamp: a("s_memrealtime s[56:57]")
    a("s_load_dwordx8 s[4:11], s[0:1], 0", "q, k, v, out")
    if opt.pf:
        a("s_getpc_b64 s[36:37]")
        a(f"v_mul_u32_u24 v{vT2}, 9, v0")
        a(f"global_load_ubyte v{vT2}, v{vT2}, s[36:37] offset:116", "pulls this kernel's code lines into L2")
    a("v_readfirstlane_b32 s24, v0", "64 * wave")
    a("s_and_b32 s3, s2, 7")
    a("s_lshr_b32 s25, s2, 3")
    a("s_lshl_b32 s3, s3, 5")
    a("s_add_u32 s3, s3, s25", "4 * head + query block")
    a("s_cmpk_ge_u32 s2, 256")
    a("s_cbranch_scc1 L_end")
    a(f"v_lshl_add_u32 v{vQo}, s3, 9, v0")
    a(f"v_mul_u32_u24 v{vQo}, 36, v{vQo}", "one Q row per lane")
    a("s_cmpk_ge_u32 s24, 256")
    a("s_cbranch_scc1 L_setup", "role B (waves 4..7) starts its loads after role A's")
    t0, t1 = Sr['E'] + 8, Sr['E'] + 9
    T = Sr['O']
    def qloads():
        a(f"global_load_dword v{T+8}, v{vQo}, s[4:5] offset:32")
        a(f"global_load_dwordx4 {vr(T,4)}, v{vQo}, s[4:5]")
        a(f"global_load_dwordx4 {vr(T+4,4)}, v{vQo}, s[4:5] offset:16")
    a("s_lshr_b32 s25, s3, 2")
    a(f"s_mul_i32 s25, s25, {HB}")
    a("s_mul_i32 s26, s24, 20")
    a("s_add_u32 s26, s26, s25")
    a(f"v_lshl_add_u32 v{t0}, v0, 4, s26")
    a("s_mul_i32 s26, s24, 36", "super tile `wave` of V and of K")
    a(f"s_add_u32 m0, s26, {VBASE}")
    a("s_waitcnt lgkmcnt(0)")
    stamp(1)
    a(f"global_load_lds_dwordx4 v{t0}, s[8:9]")
    a(f"global_load_lds_dwordx4 v{t0}, s[8:9] offset:1024")
    a("s_mov_b64 exec, 0xffff")
    a(f"global_load_lds_dwordx4 v{t0}, s[8:9] offset:2048")
    a("s_mov_b32 m0, s26")
    a("s_nop 0")
    a(f"global_load_lds_dwordx4 v{t0}, s[6:7] offset:2048")
    a(ALL)
    a(f"global_load_lds_dwordx4 v{t0}, s[6:7]")
    a(f"global_load_lds_dwordx4 v{t0}, s[6:7] offset:1024")
    qloads()
    a.lab("L_setup")
    if opt.stamp:
        a("s_load_dwordx2 s[40:41], s[0:1], 40")
        if opt.stamp == 3:
            for i in range(62, 74): a(f"s_mov_b32 s{i}, 0")
    a(f"v_lshlrev_b32 v{vSlot}, 3, v0")
    a("v_and_b32 v0, 63, v0")
    a("s_lshr_b32 s24, s24, 6", "wave id")
    a("s_lshr_b32 s25, s3, 2")
    a(f"s_mul_i32 s25, s25, {HB}", "head byte offset")
    a("s_lshl3_add_u32 s26, s3, s24")
    a(f"s_mul_i32 s26, s26, {ST}", "output byte offset of this wave")
    a(f"v_lshlrev_b32 v{vDma}, 4, v0")
    a("s_cmp_lt_u32 s24, 4")
    a("s_cselect_b32 s28, 8, 0")
    a("s_add_u32 s28, s28, s24")
    a(f"s_mul_i32 s27, s28, {ST}", "byte offset of this wave's next super tile to load")
    a(f"s_mov_b32 s18, {HB}")
    a("s_mov_b32 s19, 0x00020000")
    a(f"s_mov_b32 s46, {HB}")
    a("s_mov_b32 s47, 0x00020000")
    a(f"s_movk_i32 s22, {ST}")
    a("s_mov_b32 s23, 0x00020000")
    def dma():
        a("s_mov_b32 m0, s27")
        a("s_nop 0")
        a(f"buffer_load_dwordx4 v{vDma}, s[16:19], s27 offen lds")
        a(f"buffer_load_dwordx4 v{vDma}, s[16:19], s27 offen offset:1024 lds")
        a("s_mov_b64 exec, 0xffff")
        a(f"buffer_load_dwordx4 v{vDma}, s[16:19], s27 offen offset:2048 lds")
        a("s_add_u32 m0, s27, s18")
        a("s_nop 0")
        a(f"buffer_load_dwordx4 v{vDma}, s[44:47], s27 offen offset:2048 lds")
        a(ALL)
        a(f"buffer_load_dwordx4 v{vDma}, s[44:47], s27 offen lds")
        a(f"buffer_load_dwordx4 v{vDma}, s[44:47], s27 offen offset:1024 lds")
        a(f"s_add_u32 s27, s27, {8*ST}")
    def tr_read():
        for u in range(2):
            for j in range(2):
                for p in range(2):
                    a(f"ds_read_b64_tr_b16 {vr(TR+8*u+4*j+2*p,2)}, v{vR} offset:{40*u + (4*j+p)*72}")
    def tr_write(step):
        a(ROWS)
        for j in range(2): a(f"ds_write_b128 v{vWE}, {vr(TR+4*j,4)} offset:{576*j}")
        a("s_mov_b64 exec, s[14:15]")
        for j in range(2): a(f"ds_write_b128 v{vWO}, {vr(TR+8+4*j,4)} offset:{576*j}")
        a(ALL)
        if step == 8: a("s_setprio 3")
        for r in (vR, vWE, vWO): a(f"v_add_u32 v{r}, {step*ST}, v{r}")
    a("s_waitcnt lgkmcnt(0)")
    a("s_add_u32 s16, s6, s25")
    a("s_addc_u32 s17, s7, 0")
    a("s_add_u32 s44, s8, s25")
    a("s_addc_u32 s45, s9, 0")
    a("s_add_u32 s20, s10, s26")
    a("s_addc_u32 s21, s11, 0")
    C = Sr['E']
    t3, t4, t5 = C + 4, C + 5, C + 6
    a(f"v_mov_b32 v{QX['E']}, 0"); a(f"v_mov_b32 v{QX['E']+1}, 0")
    a(f"v_and_b32 v{t0}, 31, v0", "MFMA row m")
    a(f"v_lshrrev_b32 v{t1}, 5, v0", "half wave h")
    a(f"v_mfma_f32_32x32x4_2b_bf16 {vr(120,32)}, {vr(QX['E'],2)}, {vr(QX['E'],2)}, 0")
    a(f"v_cmp_eq_u32 vcc, 20, v{t0}")
    a(f"v_mov_b32 v{t4}, 0x3f803f80")
    a("s_mov_b32 s12, 0x0003ffff"); a("s_mov_b32 s13, 0x0003ffff")
    a("s_mov_b32 s14, 0x00c0ffff"); a("s_mov_b32 s15, 0x00c0ffff")
    a(f"v_cndmask_b32 v40, 0, v{t4}, vcc")
    a(f"v_cndmask_b32 v41, 0, v{t4}, vcc")
    for r in list(range(42, 56, 2)) + list(range(168, 176, 2)): a(f"v_pk_mov_b32 {vr(r,2)}, v[40:41], v[40:41]")
    a(f"v_and_b32 v{t3}, 3, v0")
    a(f"v_lshrrev_b32 v{t4}, 2, v{t0}")
    a(f"v_lshl_add_u32 v{t4}, v{t3}, 3, v{t4}")
    a(f"v_mul_u32_u24 v{vK}, 72, v{t4}")
    a(f"v_lshl_add_u32 v{vK}, v{t1}, 4, v{vK}")
    a(f"v_bfe_u32 v{t4}, v0, 3, 1")
    a(f"v_lshl_add_u32 v{t3}, v{t4}, 2, v{t3}")
    a(f"v_and_b32 v{t4}, 4, v0")
    a(f"v_lshlrev_b32 v{t4}, 1, v{t4}")
    a(f"v_sub_u32 v{t3}, v{t3}, v{t4}")
    a(f"v_add_u32 v{t3}, 8, v{t3}")
    a(f"v_cmp_lt_u32 vcc, 15, v{t0}")
    a(f"v_and_b32 v{t4}, 1, v0")
    a(f"v_add_u32 v{t4}, 16, v{t4}")
    a(f"v_cndmask_b32 v{t3}, v{t3}, v{t4}, vcc")
    a(f"v_mul_u32_u24 v{t5}, 18, v{t1}")
    a("s_cmp_lt_u32 s24, 4")
    a(f"s_cselect_b32 s29, 0, {4*ST}")
    a("s_sub_u32 s29, s27, s29")
    a("s_add_u32 s29, s29, s18", "first V super tile this wave transposes")
    for sub, dst, extra in ((4, vWE, 0), (2, vWO, 72)):
        a(f"v_subrev_u32 v{t4}, {sub}, v{t3}")
        a(f"v_add_u32 v{dst}, 18, v{t4}")
        a(f"v_min_u32 v{t4}, v{t4}, v{dst}")
        a(f"v_add_u32 v{t4}, v{t4}, v{t5}")
        if extra: a(f"v_add_u32 v{t4}, {extra}, v{t4}")
        else: a(f"v_lshl_add_u32 v{vV}, v{t4}, 4, s18")
        a(f"v_lshl_add_u32 v{dst}, v{t4}, 4, s29")
    a(f"v_and_b32 v{t3}, 12, v0")
    a(f"v_add_lshl_u32 v{t3}, v{t3}, v{t1}, 1")
    a(f"v_mul_u32_u24 v{t3}, 72, v{t3}")
    a(f"v_and_b32 v{t4}, 1, v0")
    a(f"v_lshlrev_b32 v{t4}, 4, v{t4}")
    a(f"v_sub_u32 v{t3}, v{t3}, v{t4}")
    a(f"v_and_b32 v{t4}, 2, v0")
    a(f"v_lshl_add_u32 v{t3}, v{t4}, 2, v{t3}")
    a(f"v_and_b32 v{t4}, 16, v0")
    a(f"v_add3_u32 v{t3}, v{t4}, v{t3}, s29")
    a(f"v_add_u32 v{t4}, 16, v{t3}")
    a(f"v_subrev_u32 v{t3}, 8, v{t3}")
    a("s_mov_b32 vcc_lo, 0x22220000"); a("s_mov_b32 vcc_hi, 0x22220000")
    a(f"v_cndmask_b32 v{t3}, v{t4}, v{t3}, vcc")
    a(f"v_mov_b32 v{t4}, {OOR:#x}")
    a("s_mov_b32 vcc_lo, 0xcccc0000"); a("s_mov_b32 vcc_hi, 0xcccc0000")
    a(f"v_cndmask_b32 v{vR}, v{t3}, v{t4}, vcc")
    for r in list(KXr.values()) + list(KX0.values()): a(f"v_mov_b32 v{r+1}, 0x3f80")
    for par in 'EO': a(f"v_mov_b32 v{QX[par]+1}, {f2u(opt.xs) >> 16:#x}", "constant softmax shift")
    a(f"v_mov_b32 v{vIdx}, 0xdddd", "sparse index: elements 1 and 3 of every group of four")
    a(f"v_mov_b32 v{vInc}, {ST}")
    a(f"v_mov_b32 v{vInc+1}, {ST}")
    a(f"v_add_u32 v{C+2}, v{vK}, v{vInc}")
    a(f"v_add_u32 v{C+3}, v{vV}, v{vInc}")
    a(f"v_add_u32 v{vSlot}, {ABASE}, v{vSlot}")
    a(f"ds_write_b64 v{vSlot}, {vr(C+2,2)}", "address counters, stepped by ds_add_rtn_u64")
    a(f"s_mul_i32 s28, s24, {ST}")
    a(f"v_mul_u32_u24 v{vStA}, 36, v{t0}")
    a(f"v_lshlrev_b32 v{t4}, 4, v{t1}")
    a(f"v_sub_u32 v{vStA}, v{vStA}, v{t4}")
    a(f"v_add3_u32 v{vStA}, v{vStA}, 16, s28")
    a(f"v_add_u32 v{vStB}, 1152, v{vStA}")
    a(f"v_add_u32 v{vStR}, s28, v{vDma}")
    a(f"s_mov_b32 s30, {CSCALE:#x}", "log2(e)/sqrt(18)"); a(f"s_mov_b32 s31, {CSCALE:#x}")
    a("s_mov_b32 s29, 1", "super tile counter")
    a("s_mov_b32 s32, 0x8088", "barrier schedule")
    a("s_mov_b32 s33, 0x80008088")
    a("s_mov_b32 s38, 0x8000ddd0", "iterations with extra work, role A")
    a("s_mov_b32 s39, 0x8000dddc", "role B")
    a("s_mov_b32 s34, 0xffff0000")
    a("s_mov_b32 s35, 0x7b800000", "2^120")
    a("s_mov_b64 vcc, 0")
    a("s_cmp_ge_u32 s24, 4", "SCC = role B (kept until the loops)")
    a("s_waitcnt vmcnt(6)")
    a("s_barrier", "V super tiles 0..3 are in: role B transposes them and starts its Q loads")
    a("s_cbranch_scc0 L_noq")
    tr_read()
    qloads()
    a("s_waitcnt lgkmcnt(0)")
    tr_write(4)
    a.lab("L_noq")
    a.raw("    .p2align 3")
    a("s_waitcnt vmcnt(3) lgkmcnt(0)")
    stamp(2)
    a("s_barrier", "K super tiles 0..3 are in, V super tiles 0..3 are transposed")
    bump = f"ds_add_rtn_u64 {vr(vK,2)}, v{vSlot}, {vr(vInc,2)}"
    bK, bX = rd_k('E', 1) + rd_k('O', 1), rd_kx(1)
    bV = rd_v('O', 0) + rd_v('E', 1)
    AL['on'] = True
    late = []
    if opt.split:
        for f in rd_kx(0) + rd_k('E', 0) + rd_k('O', 0) + [ROWS, "s_setprio 3"] + rd_v('E', 0) + [ALL]: a(f)
        lgkm(4)
        late = bK + [LOW] + bX + [ROWS] + bV + [ALL, bump]
    else:
        for f in rd_kx(0) + rd_k('E', 0) + rd_k('O', 0) + bX + bK: a(f)
        a(ROWS)
        lgkm(8)
        for f in rd_v('E', 0) + bV + [ALL, "s_setprio 3", bump]: a(f)
    stamp(3)
    W = T + 10
    QAE, QBE, QAO, QBO = Qr[('A','E')], Qr[('B','E')], Qr[('A','O')], Qr[('B','O')]
    def shl(j): a(f"v_lshlrev_b32 v{W+2*j}, 16, v{T+j}")
    def msk(j): a(f"v_and_b32 v{W+2*j+1}, s34, v{T+j}")
    def mul(j): a(f"v_pk_mul_f32 {vr(W+2*j,2)}, {vr(W+2*j,2)}, s[30:31]")
    def cvt(j, d): a(f"v_cvt_pk_bf16_f32 v{d}, v{W+2*j}, v{W+2*j+1}")
    a("s_waitcnt vmcnt(0)")
    stamp(4)
    shl(8)
    a(f"v_and_b32_e64 v{W+17}, s34, v{T+8}")
    mul(8); cvt(8, QX['E'])
    shl(0); msk(0)
    a(mf_x('E'))
    cvt(8, QBO + 3)
    for j in range(1, 8): shl(j); msk(j)
    for j in range(8): mul(j)
    for j in range(4): cvt(j, QAE + j)
    for j in range(4): cvt(4 + j, QBE + j)
    for j in range(4): a(f"v_permlane32_swap_b32 v{QAE+j}, v{QBE+j}")
    cvt(4, QAO + 3)
    cvt(0, QX['O'])
    a(mf_q('A', 'E'))
    a("s_waitcnt lgkmcnt(0)")
    a(f"v_permlane32_swap_b32 v{QAO+3}, v{QBO+3}")
    for j in range(0, 3): a(f"v_mov_b32 v{QAO+j}, v{QAE+j+1}")
    for j in range(0, 3): a(f"v_mov_b32 v{QBO+j}, v{QBE+j+1}")
    a(mf_q('B', 'E'))
    for f in late: a(f)
    a("s_cbranch_scc1 L_startB")
    a("s_setprio 2")
    if not late: a("s_nop 0")
    cut = opt.cut
    pos0 = int(opt.pos.split(',')[0])
    assert cut > pos0
    a.lab("L_first")
    stamp(5)
    for (i, k_, s_) in phase_list('E', opt):
        if not (i == pos0 and k_ == 'm'): a(s_)
        if late and 'smfmac' in s_ and i > 25: a("s_waitcnt lgkmcnt(0)")
    for (i, k_, s_) in phase_list('O', opt):
        if i < cut: a(s_)
    AL['on'] = False
    pE, pO = phase_list('E', opt), phase_list('O', opt)
    seg = [s_ for (i, k_, s_) in pO if i >= cut] + [s_ for (i, k_, s_) in pE] + [s_ for (i, k_, s_) in pO if i < cut]
    for s_ in seg: a(s_)
    a("s_cbranch_scc0 L_topA")
    a("s_branch L_topB")
    a.lab("L_startB")
    a("s_setprio 1")
    dma()
    a("s_cmp_ge_u32 s24, 4")
    a("s_branch L_first")
    a.lab("L_ev")
    a("s_bitcmp1_b32 s29, 0")
    a("s_cbranch_scc1 L_evW")
    a("s_bitcmp1_b32 s29, 1")
    a("s_cbranch_scc0 L_evD")
    a("s_waitcnt vmcnt(0) lgkmcnt(7)")
    tr_read()
    a.lab("L_evx")
    a("s_cmp_ge_u32 s24, 4")
    a("s_cbranch_scc0 L_backA")
    a("s_setprio 1")
    a("s_branch L_backB")
    a.lab("L_evW")
    a("s_cmp_eq_u32 s29, 31")
    a("s_cbranch_scc1 L_ev31")
    tr_write(8)
    a("s_setprio 0")
    a("s_branch L_evx")
    a.lab("L_evD")
    dma()
    a("s_branch L_evx")
    a.lab("L_ev31")
    a("s_mov_b64 vcc, 1", "last segment: it runs on into the tail")
    a("s_waitcnt lgkmcnt(0)")
    for f in [ROWS] + rd_v('T', 0) + [ALL]: a(f)
    a("s_branch L_evx")
    for role in 'AB':
        a.raw("    .p2align 6")
        pad = opt.padA if role == 'A' else opt.padB
        if pad: a.raw(f"    .fill {pad}, 4, 0xbf800000    ; never executed: sets the loop's fetch alignment")
        a.lab(f"L_top{role}")
        if role == 'A': a("s_setprio 0")
        a("s_add_u32 s29, s29, 1")
        if opt.itst: a("s_memtime s[48:49]")
        for f in bK + [LOW] + bX + [ROWS] + bV + [ALL, bump]: a(f)
        a(f"s_bitcmp1_b32 {'s38' if role == 'A' else 's39'}, s29")
        a("s_cbranch_scc1 L_ev")
        a.lab(f"L_back{role}")
        a(f"s_bitcmp1_b32 {'s33' if role == 'A' else 's32'}, s29", "SCC: a barrier follows this " + ("segment" if role == 'A' else "burst"))
        a("s_waitcnt lgkmcnt(0)")
        if opt.itst:
            a("s_mov_b32 m0, s29"); a("s_nop 0"); a("s_movreld_b32 s62, s48"); a("s_nop 0"); a("s_nop 0"); a("s_nop 0")
        if role == 'B':
            a("s_cbranch_scc0 L_segB")
            a("s_barrier")
        a.lab(f"L_seg{role}")
        first = True
        for s_ in seg:
            a(s_)
            if first and role == 'A' and 'smfmac' in s_:
                a("s_setprio 2"); first = False
        if role == 'A':
            a("s_cbranch_scc0 L_topA")
            a("s_cbranch_vccnz L_tail")
            a("s_barrier")
            a("s_branch L_topA")
        else:
            a("s_cbranch_vccz L_topB")
    R = Sr['E']
    PK = {'A': Sr['E'] + 8, 'B': Sr['E'] + 14}
    OB = Sr['E'] + 20
    def finish(t, fill=None):
        O = Or[t]
        rc = R + 2 if t == 'A' else R + 4
        a(f"v_pk_mov_b32 {vr(rc,2)}, {vr(O+8,2)}, {vr(O+8,2)} op_sel:[0,0]", "denominator sits in the upper half wave")
        for f in (fill or ["s_nop 1"]): a(f)
        a(f"v_permlane32_swap_b32 v{rc}, v{rc+1}")
        a(f"v_rcp_f32 v{rc}, v{rc+1}")
    def finish2(t):
        O = Or[t]
        rc = R + 2 if t == 'A' else R + 4
        for j in (8, 0, 2, 4, 6):
            a(f"v_pk_mul_f32 {vr(O+j,2)}, {vr(O+j,2)}, {vr(rc,2)} op_sel_hi:[1,0]")
        st = vStA if t == 'A' else vStB
        for j in (4, 0, 1, 2, 3):
            a(f"v_cvt_pk_bf16_f32 v{PK[t]+j}, v{O+2*j}, v{O+2*j+1}")
        a(f"ds_write_b32 v{st}, v{PK[t]+4} offset:16", "upper half's word is overwritten by the next write")
        a(f"ds_write2_b32 v{st}, v{PK[t]}, v{PK[t]+1} offset0:0 offset1:1")
        a(f"ds_write2_b32 v{st}, v{PK[t]+2}, v{PK[t]+3} offset0:2 offset1:3")
        if t == 'A':
            a(f"ds_read_b128 {vr(OB,4)}, v{vStR}")
        else:
            a(f"ds_read_b128 {vr(OB+4,4)}, v{vStR} offset:1024")
            a(f"ds_read_b128 {vr(OB+8,4)}, v{vStR} offset:2048")
    def store(k): return f"buffer_store_dwordx4 {vr(OB+4*k,4)}, v{vDma}, s[20:23], 0 offen offset:{1024*k} sc1"
    a.lab("L_tail")
    tm = {10: mf_pv('A', 'O', 0, 'T'), 18: mf_pv('A', 'O', 1, 'T'), 26: mf_pv('B', 'O', 0, 'T')}
    for i in range(cut, 29):
        if i in tm: a(tm[i])
        a(ex('O', i))
    finish('A', [ex('O', 29), ex('O', 30)])
    a(ex('O', 31).replace("v_exp_f32", "v_exp_f32_e64"))
    stamp(6)
    n0 = len(a.l)
    finish2('A')
    a.l.insert(n0 + 5, "    " + mf_pv('B', 'O', 1, 'T'))
    if opt.tv < 0:
        a("s_nop 0")
        lgkm(0)
        a(store(0))
        finish('B')
        a("s_nop 0")
        finish2('B')
    else:
        a("s_nop 1"); a("s_nop 0")
        finish('B')
        a("s_nop 0")
        n0 = len(a.l)
        finish2('B')
        a.l[n0+opt.tv:n0+opt.tv] = ["    s_waitcnt lgkmcnt(0)", "    " + store(0), "    s_nop 0"]
    lgkm(1)
    a(store(1))
    lgkm(0)
    a(store(2))
    stamp(7)
    a("s_setprio 0")
    for t in 'AB':
        for j in range(5): a(f"v_dot2c_f32_bf16 v{R+3 if t == 'A' else R+5}, 0, v{PK[t]+j}")
    a(f"v_cmp_nge_f32 s[36:37], v{R+3}, 1.0")
    a(f"v_cmp_nle_f32 vcc, v{R+3}, s35")
    a("s_or_b64 s[36:37], s[36:37], vcc")
    a(f"v_cmp_nge_f32 s[38:39], v{R+5}, 1.0")
    a(f"v_cmp_nle_f32 vcc, v{R+5}, s35")
    a("s_or_b64 s[36:37], s[36:37], s[38:39]")
    a("s_or_b64 s[36:37], s[36:37], vcc")
    a("s_cbranch_scc1 L_slow")
    a.lab("L_done")
    if opt.amp:
        a("s_waitcnt vmcnt(0)")
        stamp(8)
        a("s_memrealtime s[42:43]")
        a("s_waitcnt lgkmcnt(0)")
        a(f"s_sub_u32 s50, s{60+2*opt.ampb}, s{60+2*opt.ampa}")
        a(f"s_max_u32 s50, s50, {opt.ampbase}")
        a(f"s_sub_u32 s50, s50, {opt.ampbase}")
        a("s_load_dwordx2 s[54:55], s[0:1], 32")
        a(f"s_cmp_lg_u32 s24, {3 if opt.ampr == 'A' else 7}")
        a("s_cbranch_scc1 L_end")
        a("s_add_u32 s51, s50, 0x1000000")
        a("s_mov_b64 exec, 1")
        a("v_mov_b32 v16, s51"); a("v_mov_b32 v17, 0")
        a("s_waitcnt lgkmcnt(0)")
        a("global_atomic_add v18, v17, v16, s[54:55] sc0 sc1")
        a("s_waitcnt vmcnt(0)")
        a("v_readfirstlane_b32 s51, v18")
        a("s_nop 3")
        a("s_add_u32 s50, s50, s51")
        a("s_and_b32 s50, s50, 0xffffff")
        a(f"s_mul_i32 s50, s50, {opt.amp}")
        a("s_lshr_b32 s50, s50, 8")
        a("s_lshr_b32 s51, s51, 24")
        a("s_cmp_lg_u32 s51, 255")
        a("s_cselect_b32 s50, 0, s50")
        a("s_min_u32 s50, s50, 20000")
        a.lab("L_spin")
        a("s_sleep 2")
        a("s_memrealtime s[52:53]")
        a("s_waitcnt lgkmcnt(0)")
        a("s_sub_u32 s51, s52, s42")
        a("s_cmp_lt_u32 s51, s50")
        a("s_cbranch_scc1 L_spin")
    if opt.itst:
        a("s_load_dwordx2 s[40:41], s[0:1], 40")
        for i in range(32): a(f"v_writelane_b32 v16, s{62+i}, {i}")
        a("s_lshl_b32 s50, s2, 3"); a("s_add_u32 s50, s50, s24"); a("s_lshl_b32 s50, s50, 8")
        a(f"v_lshrrev_b32 v1, 2, v{vDma}")
        a("v_add_u32 v1, s50, v1")
        a("s_waitcnt lgkmcnt(0)")
        a("global_store_dword v1, v16, s[40:41]")
    if opt.stamp:
        a("s_mov_b64 exec, 1")
        a("s_waitcnt vmcnt(0)")
        stamp(8)
        a("s_memrealtime s[58:59]")
        a("s_getreg_b32 s42, hwreg(HW_REG_HW_ID)")
        a("s_getreg_b32 s43, hwreg(HW_REG_XCC_ID)")
        a("s_waitcnt lgkmcnt(0)")
        for i, sr in enumerate((56, 58, 42, 43, 60, 62, 64, 66, 68, 70, 72, 74, 76)):
            a(f"v_mov_b32 v{16+i}, s{sr}")
        a("s_lshl_b32 s50, s2, 3"); a("s_add_u32 s50, s50, s24"); a("s_lshl_b32 s50, s50, 6")
        a("v_mov_b32 v1, s50")
        for i in range(4): a(f"global_store_dwordx4 v1, v[{16+4*i}:{19+4*i}], s[40:41] offset:{16*i}")
    a.lab("L_end")
    a("s_endpgm")
    a.lab("L_slow")
    a("s_waitcnt vmcnt(0)")
    mA, mB = 0, vSlot
    def rewind(n):
        a(f"v_subrev_u32 v{vK}, {n*ST}, v{vK}")
        a(f"v_subrev_u32 v{vV}, {n*ST}, v{vV}")
        a("s_mov_b32 s29, 0")
    def scores():
        a(f"buffer_load_dword v{KXr['E']}, v{vK}, s[16:19], 0 offen offset:32")
        a(f"buffer_load_dword v{KXr['O']}, v{vK}, s[16:19], 0 offen offset:36")
        a(f"buffer_load_dwordx4 {vr(Kr['E'],4)}, v{vK}, s[16:19], 0 offen")
        a(f"buffer_load_dwordx4 {vr(Kr['O'],4)}, v{vK}, s[16:19], 0 offen offset:40")
        a("s_waitcnt vmcnt(0) lgkmcnt(0)")
        a(mf_x('E')); a(mf_x('O'))
        a("s_nop 15"); a("s_nop 3")
        for par in 'EO':
            for t in 'AB': a(mf_q(t, par))
        a("s_nop 15")
    def step(lab):
        a(f"v_add_u32 v{vK}, v{vInc}, v{vK}")
        a(f"v_add_u32 v{vV}, v{vInc}, v{vV}")
        a("s_add_u32 s29, s29, 1")
        a("s_cmp_lg_u32 s29, 32")
        a(f"s_cbranch_scc1 {lab}")
    rewind(31)
    a(f"v_mov_b32 v{mA}, 0xff800000"); a(f"v_mov_b32 v{mB}, 0xff800000")
    a.lab("L_max")
    scores()
    for par in 'EO':
        for t, m in (('A', mA), ('B', mB)):
            s = Sr[par] + (16 if t == 'B' else 0)
            for j in range(0, 16, 2): a(f"v_max3_f32 v{m}, v{m}, v{s+j}, v{s+j+1}")
    step("L_max")
    for m in (mA, mB):
        a(f"v_mov_b32 v{vT2}, v{m}")
        a("s_nop 1")
        a(f"v_permlane32_swap_b32 v{vT2}, v{m}")
        a("s_nop 1")
        a(f"v_max_f32 v{m}, v{m}, v{vT2}")
    rewind(32)
    for r in range(120, 152): a(f"v_mov_b32 v{r}, 0")
    a.lab("L_acc")
    for f in [ROWS] + rd_v('E', 0) + rd_v('O', 0) + [ALL]: a(f)
    scores()
    for par in 'EO':
        for t, m in (('A', mA), ('B', mB)):
            s = Sr[par] + (16 if t == 'B' else 0)
            for j in range(16): a(f"v_sub_f32 v{s+j}, v{s+j}, v{m}")
            for j in range(16): a(f"v_exp_f32 v{s+j}, v{s+j}")
    a("s_nop 1")
    for par in 'EO':
        for t in 'AB':
            for j in range(2): a(mf_pv(t, par, j))
    step("L_acc")
    a("s_nop 15")
    for t in 'AB':
        finish(t); a("s_nop 0"); finish2(t)
    a("s_waitcnt lgkmcnt(0)")
    for k in range(3): a(store(k))
    a("s_branch L_done")
    a.raw(f""".section .rodata,"a"
.p2align 6
.amdhsa_kernel {NAME}_kernel
  .amdhsa_next_free_vgpr {NV}
  .amdhsa_next_free_sgpr {100 if (opt.stamp or opt.amp or opt.itst) else 48}
  .amdhsa_accum_offset {NV}
  .amdhsa_group_segment_fixed_size 0
  .amdhsa_kernarg_size 48
  .amdhsa_user_sgpr_count 2
  .amdhsa_user_sgpr_kernarg_segment_ptr 1
  .amdhsa_system_sgpr_workgroup_id_x 1
.end_amdhsa_kernel""")
    return a.text()

def parse(argv):
    p = argparse.ArgumentParser()
    p.add_argument('-o', default=f"cdna_kernels/{NAME}.s")
    p.add_argument('--cut', type=int, default=3)
    p.add_argument('--pos', default='2,5,15,18,21,31,25')
    p.add_argument('--pf', type=int, default=1)
    p.add_argument('--split', type=int, default=0)
    p.add_argument('--xs', type=float, default=35)
    p.add_argument('--tv', type=int, default=5)
    p.add_argument('--padA', type=int, default=0)
    p.add_argument('--padB', type=int, default=1)
    p.add_argument('--stamp', type=int, default=0)
    p.add_argument('--itst', type=int, default=0)
    p.add_argument('--amp', type=int, default=0)
    p.add_argument('--ampt', type=int, default=0)
    p.add_argument('--ampa', type=int, default=0)
    p.add_argument('--ampb', type=int, default=8)
    p.add_argument('--ampr', default='')
    p.add_argument('--ampbase', type=int, default=44000)
    return p.parse_args(argv)

if __name__ == '__main__':
    opt = parse(sys.argv[1:])
    open(opt.o, 'w').write(gen(opt))
```

```python
import sys, struct, math, argparse

NAME = "standalone__fused_io_aware_attn__prompt"
HB = 73728
ST = 2304
VBASE = HB
ABASE = 2 * HB
LDS = ABASE + 4096
OOR = 0x28000

def f2u(x): return struct.unpack('<I', struct.pack('<f', x))[0]
CSCALE = f2u(math.log2(math.e) / math.sqrt(18.0))

vSlot, vK, vV, vInc, vIdx, vQo, vDma, vT2 = 1, 2, 3, 4, 6, 7, 14, 15
KXr = {'E': 8, 'O': 176}
QX = {'E': 10, 'O': 12}
Kr = {'E': 16, 'O': 20}
Qr = {('A', 'E'): 24, ('B', 'E'): 28, ('A', 'O'): 32, ('B', 'O'): 36}
Vr = {('E', 0): 40, ('E', 1): 44, ('O', 0): 48, ('O', 1): 52, ('T', 0): 168, ('T', 1): 172}
Sr = {'E': 56, 'O': 88}
Or = {'A': 120, 'B': 136}
TR = 152
KX0 = {'E': 178, 'O': 180}
K0 = {'E': 182, 'O': 186}
vStA, vStB, vStR, vR, vWE, vWO = 190, 191, 192, 193, 194, 195
NV = 196
AL = dict(on=False)
def kx(par): return KX0[par] if AL['on'] else KXr[par]
def kr(par): return K0[par] if AL['on'] else Kr[par]
def vv(par, j): return Vr[('T', j)] if (AL['on'] and par == 'E') else Vr[(par, j)]
def vr(b, n): return f"v[{b}:{b+n-1}]"

class Asm:
    def __init__(self): self.l = []
    def __call__(self, s, c=None): self.l.append("    " + s + (f"    ; {c}" if c else ""))
    def lab(self, s): self.l.append(s + ":")
    def raw(self, s): self.l.append(s)
    def note(self, s): self.l.append("    ; " + s)
    def text(self): return "\n".join(x.rstrip() for x in self.l) + "\n"

def mf_x(par):
    return f"v_mfma_f32_32x32x4_2b_bf16 {vr(Sr[par],32)}, {vr(kx(par),2)}, {vr(QX[par],2)}, 0 cbsz:1 abid:0"
def mf_q(t, par):
    s = Sr[par] + (16 if t == 'B' else 0)
    return f"v_mfma_f32_32x32x16_bf16 {vr(s,16)}, {vr(kr(par),4)}, {vr(Qr[(t,par)],4)}, {vr(s,16)}"
def mf_pv(t, par, j, vs=None):
    s = Sr[par] + (16 if t == 'B' else 0) + 8 * j
    return f"v_smfmac_f32_32x32x32_bf16 {vr(Or[t],16)}, {vr(vv(vs or par,j),4)}, {vr(s,8)}, v{vIdx}"
def ex(par, i): return f"v_exp_f32 v{Sr[par]+i}, v{Sr[par]+i}"
def rd_kx(u): return [f"ds_read_b32 v{kx('E')}, v{vK} offset:{u*ST+32}", f"ds_read_b32 v{kx('O')}, v{vK} offset:{u*ST+36}"]
def rd_k(par, u):
    o = u * ST + (40 if par == 'O' else 0)
    return [f"ds_read_b64 {vr(kr(par),2)}, v{vK} offset:{o}", f"ds_read_b64 {vr(kr(par)+2,2)}, v{vK} offset:{o+8}"]
def rd_v(par, u):
    return [f"ds_read_b128 {vr(vv(par,j),4)}, v{vV} offset:{u*ST + (0 if par == 'E' else 1152) + 576*j}" for j in range(2)]
ROWS = "s_mov_b64 exec, s[12:13]"
LOW = "s_mov_b32 exec_hi, 0"
ALL = "s_mov_b64 exec, -1"

def phase_list(par, opt):
    oth = 'O' if par == 'E' else 'E'
    pos = [int(x) for x in opt.pos.split(',')]
    mf = {pos[0]: mf_pv('B', oth, 1), pos[1]: mf_x(oth), pos[2]: mf_pv('A', par, 0), pos[3]: mf_pv('A', par, 1),
          pos[4]: mf_q('A', oth), pos[5]: mf_pv('B', par, 0), pos[6]: mf_q('B', oth)}
    out = []
    for i in range(32):
        if i in mf: out.append((i, 'm', mf[i]))
        out.append((i, 'e', ex(par, i)))
    return out

def gen(opt):
    a = Asm()
    def stamp(i):
        if opt.stamp and (opt.stamp != 3 or i in (0, 7, 8)): a(f"s_memtime s[{60+2*i}:{61+2*i}]")
        if opt.amp and i in (opt.ampa, opt.ampb): a(f"{'s_memrealtime' if opt.ampt else 's_memtime'} s[{60+2*i}:{61+2*i}]")
    smem = opt.stamp == 1 or (opt.amp and not (opt.ampa in (0, 7) and opt.ampb in (7, 8)))
    def lgkm(n): a(f"s_waitcnt lgkmcnt({0 if smem else n})")
    a.raw(f"""; Fused attention forward, B=2 H=32 S=2048 D=18, bf16 in/out (emitted by my own generator script).
; @launch grid=(256,1,1) block=(512,1,1) lds={LDS}
.amdgcn_target "amdgcn-amd-amdhsa--gfx950"
.text
.globl {NAME}_kernel
.p2align 8
.type {NAME}_kernel,@function
{NAME}_kernel:""")
    stamp(0)
    if opt.stamp: a("s_memrealtime s[56:57]")
    a("s_load_dwordx8 s[4:11], s[0:1], 0", "q, k, v, out")
    if opt.pf:
        a("s_getpc_b64 s[36:37]")
        a(f"v_mul_u32_u24 v{vT2}, 9, v0")
        a(f"global_load_ubyte v{vT2}, v{vT2}, s[36:37] offset:116", "pulls this kernel's code lines into L2")
    a("v_readfirstlane_b32 s24, v0", "64 * wave")
    a("s_and_b32 s3, s2, 7")
    a("s_lshr_b32 s25, s2, 3")
    a("s_lshl_b32 s3, s3, 5")
    a("s_add_u32 s3, s3, s25", "4 * head + query block")
    a("s_cmpk_ge_u32 s2, 256")
    a("s_cbranch_scc1 L_end")
    a(f"v_lshl_add_u32 v{vQo}, s3, 9, v0")
    a(f"v_mul_u32_u24 v{vQo}, 36, v{vQo}", "one Q row per lane")
    a("s_cmpk_ge_u32 s24, 256")
    a("s_cbranch_scc1 L_setup", "role B (waves 4..7) starts its loads after role A's")
    t0, t1 = Sr['E'] + 8, Sr['E'] + 9
    T = Sr['O']
    def qloads():
        a(f"global_load_dword v{T+8}, v{vQo}, s[4:5] offset:32")
        a(f"global_load_dwordx4 {vr(T,4)}, v{vQo}, s[4:5]")
        a(f"global_load_dwordx4 {vr(T+4,4)}, v{vQo}, s[4:5] offset:16")
    a("s_lshr_b32 s25, s3, 2")
    a(f"s_mul_i32 s25, s25, {HB}")
    a("s_mul_i32 s26, s24, 20")
    a("s_add_u32 s26, s26, s25")
    a(f"v_lshl_add_u32 v{t0}, v0, 4, s26")
    a("s_mul_i32 s26, s24, 36", "super tile `wave` of V and of K")
    kv = opt.ord == 'kvq'
    p1, p2 = ("s[6:7]", "s[8:9]") if kv else ("s[8:9]", "s[6:7]")
    a("s_mov_b32 m0, s26" if kv else f"s_add_u32 m0, s26, {VBASE}")
    a("s_waitcnt lgkmcnt(0)")
    stamp(1)
    a(f"global_load_lds_dwordx4 v{t0}, {p1}")
    a(f"global_load_lds_dwordx4 v{t0}, {p1} offset:1024")
    a("s_mov_b64 exec, 0xffff")
    a(f"global_load_lds_dwordx4 v{t0}, {p1} offset:2048")
    a(f"s_add_u32 m0, s26, {VBASE}" if kv else "s_mov_b32 m0, s26")
    a("s_nop 0")
    a(f"global_load_lds_dwordx4 v{t0}, {p2} offset:2048")
    a(ALL)
    a(f"global_load_lds_dwordx4 v{t0}, {p2}")
    a(f"global_load_lds_dwordx4 v{t0}, {p2} offset:1024")
    qloads()
    a.lab("L_setup")
    if opt.stamp:
        a("s_load_dwordx2 s[40:41], s[0:1], 40")
        if opt.stamp == 3:
            for i in range(62, 74): a(f"s_mov_b32 s{i}, 0")
    a(f"v_lshlrev_b32 v{vSlot}, 3, v0")
    a("v_and_b32 v0, 63, v0")
    a("s_lshr_b32 s24, s24, 6", "wave id")
    a("s_lshr_b32 s25, s3, 2")
    a(f"s_mul_i32 s25, s25, {HB}", "head byte offset")
    a("s_lshl3_add_u32 s26, s3, s24")
    a(f"s_mul_i32 s26, s26, {ST}", "output byte offset of this wave")
    a(f"v_lshlrev_b32 v{vDma}, 4, v0")
    a("s_cmp_lt_u32 s24, 4")
    a("s_cselect_b32 s28, 8, 0")
    a("s_add_u32 s28, s28, s24")
    a(f"s_mul_i32 s27, s28, {ST}", "byte offset of this wave's next super tile to load")
    a(f"s_mov_b32 s18, {HB}")
    a("s_mov_b32 s19, 0x00020000")
    a(f"s_mov_b32 s46, {HB}")
    a("s_mov_b32 s47, 0x00020000")
    a(f"s_movk_i32 s22, {ST}")
    a("s_mov_b32 s23, 0x00020000")
    def dma():
        a("s_mov_b32 m0, s27")
        a("s_nop 0")
        a(f"buffer_load_dwordx4 v{vDma}, s[16:19], s27 offen lds")
        a(f"buffer_load_dwordx4 v{vDma}, s[16:19], s27 offen offset:1024 lds")
        a("s_mov_b64 exec, 0xffff")
        a(f"buffer_load_dwordx4 v{vDma}, s[16:19], s27 offen offset:2048 lds")
        a("s_add_u32 m0, s27, s18")
        a("s_nop 0")
        a(f"buffer_load_dwordx4 v{vDma}, s[44:47], s27 offen offset:2048 lds")
        a(ALL)
        a(f"buffer_load_dwordx4 v{vDma}, s[44:47], s27 offen lds")
        a(f"buffer_load_dwordx4 v{vDma}, s[44:47], s27 offen offset:1024 lds")
        a(f"s_add_u32 s27, s27, {8*ST}")
    def tr_read():
        for u in range(2):
            for j in range(2):
                for p in range(2):
                    a(f"ds_read_b64_tr_b16 {vr(TR+8*u+4*j+2*p,2)}, v{vR} offset:{40*u + (4*j+p)*72}")
    def tr_write(step):
        a(ROWS)
        for j in range(2): a(f"ds_write_b128 v{vWE}, {vr(TR+4*j,4)} offset:{576*j}")
        a("s_mov_b64 exec, s[14:15]")
        for j in range(2): a(f"ds_write_b128 v{vWO}, {vr(TR+8+4*j,4)} offset:{576*j}")
        a(ALL)
        if step == 8: a("s_setprio 3")
        if step:
            for r in (vR, vWE, vWO): a(f"v_add_u32 v{r}, {step*ST}, v{r}")
    a("s_waitcnt lgkmcnt(0)")
    a("s_add_u32 s16, s6, s25")
    a("s_addc_u32 s17, s7, 0")
    a("s_add_u32 s44, s8, s25")
    a("s_addc_u32 s45, s9, 0")
    a("s_add_u32 s20, s10, s26")
    a("s_addc_u32 s21, s11, 0")
    C = Sr['E']
    t3, t4, t5 = C + 4, C + 5, C + 6
    a(f"v_mov_b32 v{QX['E']}, 0"); a(f"v_mov_b32 v{QX['E']+1}, 0")
    a(f"v_and_b32 v{t0}, 31, v0", "MFMA row m")
    a(f"v_lshrrev_b32 v{t1}, 5, v0", "half wave h")
    a(f"v_mfma_f32_32x32x4_2b_bf16 {vr(120,32)}, {vr(QX['E'],2)}, {vr(QX['E'],2)}, 0")
    a(f"v_cmp_eq_u32 vcc, 20, v{t0}")
    a(f"v_mov_b32 v{t4}, 0x3f803f80")
    a("s_mov_b32 s12, 0x0003ffff"); a("s_mov_b32 s13, 0x0003ffff")
    a("s_mov_b32 s14, 0x00c0ffff"); a("s_mov_b32 s15, 0x00c0ffff")
    a(f"v_cndmask_b32 v40, 0, v{t4}, vcc")
    a(f"v_cndmask_b32 v41, 0, v{t4}, vcc")
    for r in list(range(42, 56, 2)) + list(range(168, 176, 2)): a(f"v_pk_mov_b32 {vr(r,2)}, v[40:41], v[40:41]")
    a(f"v_and_b32 v{t3}, 3, v0")
    a(f"v_lshrrev_b32 v{t4}, 2, v{t0}")
    a(f"v_lshl_add_u32 v{t4}, v{t3}, 3, v{t4}")
    a(f"v_mul_u32_u24 v{vK}, 72, v{t4}")
    a(f"v_lshl_add_u32 v{vK}, v{t1}, 4, v{vK}")
    a(f"v_bfe_u32 v{t4}, v0, 3, 1")
    a(f"v_lshl_add_u32 v{t3}, v{t4}, 2, v{t3}")
    a(f"v_and_b32 v{t4}, 4, v0")
    a(f"v_lshlrev_b32 v{t4}, 1, v{t4}")
    a(f"v_sub_u32 v{t3}, v{t3}, v{t4}")
    a(f"v_add_u32 v{t3}, 8, v{t3}")
    a(f"v_cmp_lt_u32 vcc, 15, v{t0}")
    a(f"v_and_b32 v{t4}, 1, v0")
    a(f"v_add_u32 v{t4}, 16, v{t4}")
    a(f"v_cndmask_b32 v{t3}, v{t3}, v{t4}, vcc")
    a(f"v_mul_u32_u24 v{t5}, 18, v{t1}")
    a("s_cmp_lt_u32 s24, 4")
    a(f"s_cselect_b32 s29, 0, {4*ST}")
    a("s_sub_u32 s29, s27, s29")
    a("s_add_u32 s29, s29, s18", "first V super tile this wave transposes")
    for sub, dst, extra in ((4, vWE, 0), (2, vWO, 72)):
        a(f"v_subrev_u32 v{t4}, {sub}, v{t3}")
        a(f"v_add_u32 v{dst}, 18, v{t4}")
        a(f"v_min_u32 v{t4}, v{t4}, v{dst}")
        a(f"v_add_u32 v{t4}, v{t4}, v{t5}")
        if extra: a(f"v_add_u32 v{t4}, {extra}, v{t4}")
        else: a(f"v_lshl_add_u32 v{vV}, v{t4}, 4, s18")
        a(f"v_lshl_add_u32 v{dst}, v{t4}, 4, s29")
    a(f"v_and_b32 v{t3}, 12, v0")
    a(f"v_add_lshl_u32 v{t3}, v{t3}, v{t1}, 1")
    a(f"v_mul_u32_u24 v{t3}, 72, v{t3}")
    a(f"v_and_b32 v{t4}, 1, v0")
    a(f"v_lshlrev_b32 v{t4}, 4, v{t4}")
    a(f"v_sub_u32 v{t3}, v{t3}, v{t4}")
    a(f"v_and_b32 v{t4}, 2, v0")
    a(f"v_lshl_add_u32 v{t3}, v{t4}, 2, v{t3}")
    a(f"v_and_b32 v{t4}, 16, v0")
    a(f"v_add3_u32 v{t3}, v{t4}, v{t3}, s29")
    a(f"v_add_u32 v{t4}, 16, v{t3}")
    a(f"v_subrev_u32 v{t3}, 8, v{t3}")
    a("s_mov_b32 vcc_lo, 0x22220000"); a("s_mov_b32 vcc_hi, 0x22220000")
    a(f"v_cndmask_b32 v{t3}, v{t4}, v{t3}, vcc")
    a(f"v_mov_b32 v{t4}, {OOR:#x}")
    a("s_mov_b32 vcc_lo, 0xcccc0000"); a("s_mov_b32 vcc_hi, 0xcccc0000")
    a(f"v_cndmask_b32 v{vR}, v{t3}, v{t4}, vcc")
    for r in list(KXr.values()) + list(KX0.values()): a(f"v_mov_b32 v{r+1}, 0x3f80")
    for par in 'EO': a(f"v_mov_b32 v{QX[par]+1}, {f2u(opt.xs) >> 16:#x}", "constant softmax shift")
    a(f"v_mov_b32 v{vIdx}, 0xdddd", "sparse index: elements 1 and 3 of every group of four")
    a(f"v_mov_b32 v{vInc}, {ST}")
    a(f"v_mov_b32 v{vInc+1}, {ST}")
    a(f"v_add_u32 v{C+2}, v{vK}, v{vInc}")
    a(f"v_add_u32 v{C+3}, v{vV}, v{vInc}")
    a(f"v_add_u32 v{vSlot}, {ABASE}, v{vSlot}")
    a(f"ds_write_b64 v{vSlot}, {vr(C+2,2)}", "address counters, stepped by ds_add_rtn_u64")
    a(f"s_mul_i32 s28, s24, {ST}")
    a(f"v_mul_u32_u24 v{vStA}, 36, v{t0}")
    a(f"v_lshlrev_b32 v{t4}, 4, v{t1}")
    a(f"v_sub_u32 v{vStA}, v{vStA}, v{t4}")
    a(f"v_add3_u32 v{vStA}, v{vStA}, 16, s28")
    a(f"v_add_u32 v{vStB}, 1152, v{vStA}")
    a(f"v_add_u32 v{vStR}, s28, v{vDma}")
    a(f"s_mov_b32 s30, {CSCALE:#x}", "log2(e)/sqrt(18)"); a(f"s_mov_b32 s31, {CSCALE:#x}")
    a("s_mov_b32 s29, 1", "super tile counter")
    a("s_mov_b32 s32, 0x8088", "barrier schedule")
    a("s_mov_b32 s33, 0x80008088")
    a("s_mov_b32 s38, 0x8000ddd0", "iterations with extra work, role A")
    a("s_mov_b32 s39, 0x8000dddc", "role B")
    a("s_mov_b32 s34, 0xffff0000")
    a("s_mov_b32 s35, 0x7b800000", "2^120")
    a("s_mov_b64 vcc, 0")
    a("s_cmp_ge_u32 s24, 4", "SCC = role B (kept until the loops)")
    bump = f"ds_add_rtn_u64 {vr(vK,2)}, v{vSlot}, {vr(vInc,2)}"
    bK, bX = rd_k('E', 1) + rd_k('O', 1), rd_kx(1)
    bV = rd_v('O', 0) + rd_v('E', 1)
    late = []; lateA = []
    if kv:
        a("s_waitcnt vmcnt(6)")
        a("s_barrier", "K super tiles 0..3 are in: role B starts its Q loads")
        a("s_cbranch_scc0 L_noq")
        qloads()
        a.lab("L_noq")
        AL['on'] = True
        for f in rd_kx(0) + rd_k('E', 0) + rd_k('O', 0) + bX + bK: a(f)
        rdV0 = [ROWS] + rd_v('E', 0) + bV + [ALL, bump]
        a("s_cbranch_scc0 L_vA")
        a("s_waitcnt lgkmcnt(0)")
        stamp(2)
        a("s_barrier", "V super tiles 0..3 are in")
        tr_read()
        a("s_waitcnt lgkmcnt(0)")
        tr_write(0)
        a("s_waitcnt lgkmcnt(0)")
        a("s_barrier", "V super tiles 0..3 are transposed")
        for f in rdV0: a(f)
        a("s_setprio 3")
        for r in (vR, vWE, vWO): a(f"v_add_u32 v{r}, {4*ST}, v{r}")
        a("s_branch L_prep")
        a.raw("    .p2align 3")
        a.lab("L_vA")
        a("s_waitcnt vmcnt(3) lgkmcnt(0)")
        stamp(2)
        a("s_barrier", "V super tiles 0..3 are in")
        a.lab("L_prep")
        lateA = ["s_barrier"] + rdV0
    else:
        a("s_waitcnt vmcnt(6)")
        a("s_barrier", "V super tiles 0..3 are in: role B transposes them and starts its Q loads")
        a("s_cbranch_scc0 L_noq")
        tr_read()
        qloads()
        a("s_waitcnt lgkmcnt(0)")
        tr_write(4)
        a.lab("L_noq")
        a.raw("    .p2align 3")
        a("s_waitcnt vmcnt(3) lgkmcnt(0)")
        stamp(2)
        a("s_barrier", "K super tiles 0..3 are in, V super tiles 0..3 are transposed")
        AL['on'] = True
        if opt.split:
            for f in rd_kx(0) + rd_k('E', 0) + rd_k('O', 0) + [ROWS, "s_setprio 3"] + rd_v('E', 0) + [ALL]: a(f)
            lgkm(4)
            late = bK + [LOW] + bX + [ROWS] + bV + [ALL, bump]
        else:
            for f in rd_kx(0) + rd_k('E', 0) + rd_k('O', 0) + bX + bK: a(f)
            a(ROWS)
            lgkm(8)
            for f in rd_v('E', 0) + bV + [ALL, "s_setprio 3", bump]: a(f)
    stamp(3)
    W = T + 10
    QAE, QBE, QAO, QBO = Qr[('A','E')], Qr[('B','E')], Qr[('A','O')], Qr[('B','O')]
    def shl(j): a(f"v_lshlrev_b32 v{W+2*j}, 16, v{T+j}")
    def msk(j): a(f"v_and_b32 v{W+2*j+1}, s34, v{T+j}")
    def mul(j): a(f"v_pk_mul_f32 {vr(W+2*j,2)}, {vr(W+2*j,2)}, s[30:31]")
    def cvt(j, d): a(f"v_cvt_pk_bf16_f32 v{d}, v{W+2*j}, v{W+2*j+1}")
    a("s_waitcnt vmcnt(0)")
    stamp(4)
    shl(8)
    a(f"v_and_b32_e64 v{W+17}, s34, v{T+8}")
    mul(8); cvt(8, QX['E'])
    shl(0); msk(0)
    a(mf_x('E'))
    cvt(8, QBO + 3)
    for j in range(1, 8): shl(j); msk(j)
    for j in range(8): mul(j)
    for j in range(4): cvt(j, QAE + j)
    for j in range(4): cvt(4 + j, QBE + j)
    for j in range(4): a(f"v_permlane32_swap_b32 v{QAE+j}, v{QBE+j}")
    cvt(4, QAO + 3)
    cvt(0, QX['O'])
    a(mf_q('A', 'E'))
    a("s_waitcnt lgkmcnt(0)")
    a(f"v_permlane32_swap_b32 v{QAO+3}, v{QBO+3}")
    for j in range(0, 3): a(f"v_mov_b32 v{QAO+j}, v{QAE+j+1}")
    for j in range(0, 3): a(f"v_mov_b32 v{QBO+j}, v{QBE+j+1}")
    a(mf_q('B', 'E'))
    for f in late: a(f)
    a("s_cbranch_scc1 L_startB")
    a("s_setprio 2")
    for f in lateA: a(f)
    if not late and not lateA: a("s_nop 0")
    cut = opt.cut
    pos0 = int(opt.pos.split(',')[0])
    assert cut > pos0
    a.lab("L_first")
    stamp(5)
    for (i, k_, s_) in phase_list('E', opt):
        if lateA and 'smfmac' in s_ and i > pos0:
            a("s_waitcnt lgkmcnt(0)"); lateA = None
        if not (i == pos0 and k_ == 'm'): a(s_)
        if late and 'smfmac' in s_ and i > 25: a("s_waitcnt lgkmcnt(0)")
    for (i, k_, s_) in phase_list('O', opt):
        if i < cut: a(s_)
    AL['on'] = False
    pE, pO = phase_list('E', opt), phase_list('O', opt)
    seg = [s_ for (i, k_, s_) in pO if i >= cut] + [s_ for (i, k_, s_) in pE] + [s_ for (i, k_, s_) in pO if i < cut]
    for s_ in seg: a(s_)
    a("s_cbranch_scc0 L_topA")
    a("s_branch L_topB")
    a.lab("L_startB")
    a("s_setprio 1")
    dma()
    a("s_cmp_ge_u32 s24, 4")
    a("s_branch L_first")
    a.lab("L_ev")
    a("s_bitcmp1_b32 s29, 0")
    a("s_cbranch_scc1 L_evW")
    a("s_bitcmp1_b32 s29, 1")
    a("s_cbranch_scc0 L_evD")
    a("s_waitcnt vmcnt(0) lgkmcnt(7)")
    tr_read()
    a.lab("L_evx")
    a("s_cmp_ge_u32 s24, 4")
    a("s_cbranch_scc0 L_backA")
    a("s_setprio 1")
    a("s_branch L_backB")
    a.lab("L_evW")
    a("s_cmp_eq_u32 s29, 31")
    a("s_cbranch_scc1 L_ev31")
    tr_write(8)
    a("s_setprio 0")
    a("s_branch L_evx")
    a.lab("L_evD")
    dma()
    a("s_branch L_evx")
    a.lab("L_ev31")
    a("s_mov_b64 vcc, 1", "last segment: it runs on into the tail")
    a("s_waitcnt lgkmcnt(0)")
    for f in [ROWS] + rd_v('T', 0) + [ALL]: a(f)
    a("s_branch L_evx")
    for role in 'AB':
        a.raw("    .p2align 6")
        pad = opt.padA if role == 'A' else opt.padB
        if pad: a.raw(f"    .fill {pad}, 4, 0xbf800000    ; never executed: sets the loop's fetch alignment")
        a.lab(f"L_top{role}")
        if role == 'A': a("s_setprio 0")
        a("s_add_u32 s29, s29, 1")
        if opt.itst: a("s_memtime s[48:49]")
        for f in bK + [LOW] + bX + [ROWS] + bV + [ALL, bump]: a(f)
        a(f"s_bitcmp1_b32 {'s38' if role == 'A' else 's39'}, s29")
        a("s_cbranch_scc1 L_ev")
        a.lab(f"L_back{role}")
        a(f"s_bitcmp1_b32 {'s33' if role == 'A' else 's32'}, s29", "SCC: a barrier follows this " + ("segment" if role == 'A' else "burst"))
        a("s_waitcnt lgkmcnt(0)")
        if opt.itst:
            a("s_mov_b32 m0, s29"); a("s_nop 0"); a("s_movreld_b32 s62, s48"); a("s_nop 0"); a("s_nop 0"); a("s_nop 0")
        if role == 'B':
            a("s_cbranch_scc0 L_segB")
            a("s_barrier")
        a.lab(f"L_seg{role}")
        first = True
        for s_ in seg:
            a(s_)
            if first and role == 'A' and 'smfmac' in s_:
                a("s_setprio 2"); first = False
        if role == 'A':
            a("s_cbranch_scc0 L_topA")
            a("s_cbranch_vccnz L_tail")
            a("s_barrier")
            a("s_branch L_topA")
        else:
            a("s_cbranch_vccz L_topB")
    R = Sr['E']
    PK = {'A': Sr['E'] + 8, 'B': Sr['E'] + 14}
    OB = Sr['E'] + 20
    def finish(t, fill=None):
        O = Or[t]
        rc = R + 2 if t == 'A' else R + 4
        a(f"v_pk_mov_b32 {vr(rc,2)}, {vr(O+8,2)}, {vr(O+8,2)} op_sel:[0,0]", "denominator sits in the upper half wave")
        for f in (fill or ["s_nop 1"]): a(f)
        a(f"v_permlane32_swap_b32 v{rc}, v{rc+1}")
        a(f"v_rcp_f32 v{rc}, v{rc+1}")
    def finish2(t):
        O = Or[t]
        rc = R + 2 if t == 'A' else R + 4
        for j in (8, 0, 2, 4, 6):
            a(f"v_pk_mul_f32 {vr(O+j,2)}, {vr(O+j,2)}, {vr(rc,2)} op_sel_hi:[1,0]")
        st = vStA if t == 'A' else vStB
        for j in (4, 0, 1, 2, 3):
            a(f"v_cvt_pk_bf16_f32 v{PK[t]+j}, v{O+2*j}, v{O+2*j+1}")
        a(f"ds_write_b32 v{st}, v{PK[t]+4} offset:16", "upper half's word is overwritten by the next write")
        a(f"ds_write2_b32 v{st}, v{PK[t]}, v{PK[t]+1} offset0:0 offset1:1")
        a(f"ds_write2_b32 v{st}, v{PK[t]+2}, v{PK[t]+3} offset0:2 offset1:3")
        if t == 'A':
            a(f"ds_read_b128 {vr(OB,4)}, v{vStR}")
        else:
            a(f"ds_read_b128 {vr(OB+4,4)}, v{vStR} offset:1024")
            a(f"ds_read_b128 {vr(OB+8,4)}, v{vStR} offset:2048")
    def store(k): return f"buffer_store_dwordx4 {vr(OB+4*k,4)}, v{vDma}, s[20:23], 0 offen offset:{1024*k} sc1"
    a.lab("L_tail")
    tm = {10: mf_pv('A', 'O', 0, 'T'), 18: mf_pv('A', 'O', 1, 'T'), 26: mf_pv('B', 'O', 0, 'T')}
    for i in range(cut, 29):
        if i in tm: a(tm[i])
        a(ex('O', i))
    finish('A', [ex('O', 29), ex('O', 30)])
    a(ex('O', 31).replace("v_exp_f32", "v_exp_f32_e64"))
    stamp(6)
    n0 = len(a.l)
    finish2('A')
    a.l.insert(n0 + 5, "    " + mf_pv('B', 'O', 1, 'T'))
    if opt.tv < 0:
        a("s_nop 0")
        lgkm(0)
        a(store(0))
        finish('B')
        a("s_nop 0")
        finish2('B')
    else:
        a("s_nop 1"); a("s_nop 0")
        finish('B')
        a("s_nop 0")
        n0 = len(a.l)
        finish2('B')
        a.l[n0+opt.tv:n0+opt.tv] = ["    s_waitcnt lgkmcnt(0)", "    " + store(0), "    s_nop 0"]
    lgkm(1)
    a(store(1))
    lgkm(0)
    a(store(2))
    stamp(7)
    a("s_setprio 0")
    for t in 'AB':
        for j in range(5): a(f"v_dot2c_f32_bf16 v{R+3 if t == 'A' else R+5}, 0, v{PK[t]+j}")
    a(f"v_cmp_nge_f32 s[36:37], v{R+3}, 1.0")
    a(f"v_cmp_nle_f32 vcc, v{R+3}, s35")
    a("s_or_b64 s[36:37], s[36:37], vcc")
    a(f"v_cmp_nge_f32 s[38:39], v{R+5}, 1.0")
    a(f"v_cmp_nle_f32 vcc, v{R+5}, s35")
    a("s_or_b64 s[36:37], s[36:37], s[38:39]")
    a("s_or_b64 s[36:37], s[36:37], vcc")
    a("s_cbranch_scc1 L_slow")
    a.lab("L_done")
    if opt.amp:
        a("s_waitcnt vmcnt(0)")
        stamp(8)
        a("s_memrealtime s[42:43]")
        a("s_waitcnt lgkmcnt(0)")
        a(f"s_sub_u32 s50, s{60+2*opt.ampb}, s{60+2*opt.ampa}")
        a(f"s_max_u32 s50, s50, {opt.ampbase}")
        a(f"s_sub_u32 s50, s50, {opt.ampbase}")
        a("s_load_dwordx2 s[54:55], s[0:1], 32")
        a(f"s_cmp_lg_u32 s24, {3 if opt.ampr == 'A' else 7}")
        a("s_cbranch_scc1 L_end")
        a("s_add_u32 s51, s50, 0x1000000")
        a("s_mov_b64 exec, 1")
        a("v_mov_b32 v16, s51"); a("v_mov_b32 v17, 0")
        a("s_waitcnt lgkmcnt(0)")
        a("global_atomic_add v18, v17, v16, s[54:55] sc0 sc1")
        a("s_waitcnt vmcnt(0)")
        a("v_readfirstlane_b32 s51, v18")
        a("s_nop 3")
        a("s_add_u32 s50, s50, s51")
        a("s_and_b32 s50, s50, 0xffffff")
        a(f"s_mul_i32 s50, s50, {opt.amp}")
        a("s_lshr_b32 s50, s50, 8")
        a("s_lshr_b32 s51, s51, 24")
        a("s_cmp_lg_u32 s51, 255")
        a("s_cselect_b32 s50, 0, s50")
        a("s_min_u32 s50, s50, 20000")
        a.lab("L_spin")
        a("s_sleep 2")
        a("s_memrealtime s[52:53]")
        a("s_waitcnt lgkmcnt(0)")
        a("s_sub_u32 s51, s52, s42")
        a("s_cmp_lt_u32 s51, s50")
        a("s_cbranch_scc1 L_spin")
    if opt.itst:
        a("s_load_dwordx2 s[40:41], s[0:1], 40")
        for i in range(32): a(f"v_writelane_b32 v16, s{62+i}, {i}")
        a("s_lshl_b32 s50, s2, 3"); a("s_add_u32 s50, s50, s24"); a("s_lshl_b32 s50, s50, 8")
        a(f"v_lshrrev_b32 v1, 2, v{vDma}")
        a("v_add_u32 v1, s50, v1")
        a("s_waitcnt lgkmcnt(0)")
        a("global_store_dword v1, v16, s[40:41]")
    if opt.stamp:
        a("s_mov_b64 exec, 1")
        a("s_waitcnt vmcnt(0)")
        stamp(8)
        a("s_memrealtime s[58:59]")
        a("s_getreg_b32 s42, hwreg(HW_REG_HW_ID)")
        a("s_getreg_b32 s43, hwreg(HW_REG_XCC_ID)")
        a("s_waitcnt lgkmcnt(0)")
        for i, sr in enumerate((56, 58, 42, 43, 60, 62, 64, 66, 68, 70, 72, 74, 76)):
            a(f"v_mov_b32 v{16+i}, s{sr}")
        a("s_lshl_b32 s50, s2, 3"); a("s_add_u32 s50, s50, s24"); a("s_lshl_b32 s50, s50, 6")
        a("v_mov_b32 v1, s50")
        for i in range(4): a(f"global_store_dwordx4 v1, v[{16+4*i}:{19+4*i}], s[40:41] offset:{16*i}")
    a.lab("L_end")
    a("s_endpgm")
    a.lab("L_slow")
    a("s_waitcnt vmcnt(0)")
    mA, mB = 0, vSlot
    def rewind(n):
        a(f"v_subrev_u32 v{vK}, {n*ST}, v{vK}")
        a(f"v_subrev_u32 v{vV}, {n*ST}, v{vV}")
        a("s_mov_b32 s29, 0")
    def scores():
        a(f"buffer_load_dword v{KXr['E']}, v{vK}, s[16:19], 0 offen offset:32")
        a(f"buffer_load_dword v{KXr['O']}, v{vK}, s[16:19], 0 offen offset:36")
        a(f"buffer_load_dwordx4 {vr(Kr['E'],4)}, v{vK}, s[16:19], 0 offen")
        a(f"buffer_load_dwordx4 {vr(Kr['O'],4)}, v{vK}, s[16:19], 0 offen offset:40")
        a("s_waitcnt vmcnt(0) lgkmcnt(0)")
        a(mf_x('E')); a(mf_x('O'))
        a("s_nop 15"); a("s_nop 3")
        for par in 'EO':
            for t in 'AB': a(mf_q(t, par))
        a("s_nop 15")
    def step(lab):
        a(f"v_add_u32 v{vK}, v{vInc}, v{vK}")
        a(f"v_add_u32 v{vV}, v{vInc}, v{vV}")
        a("s_add_u32 s29, s29, 1")
        a("s_cmp_lg_u32 s29, 32")
        a(f"s_cbranch_scc1 {lab}")
    rewind(31)
    a(f"v_mov_b32 v{mA}, 0xff800000"); a(f"v_mov_b32 v{mB}, 0xff800000")
    a.lab("L_max")
    scores()
    for par in 'EO':
        for t, m in (('A', mA), ('B', mB)):
            s = Sr[par] + (16 if t == 'B' else 0)
            for j in range(0, 16, 2): a(f"v_max3_f32 v{m}, v{m}, v{s+j}, v{s+j+1}")
    step("L_max")
    for m in (mA, mB):
        a(f"v_mov_b32 v{vT2}, v{m}")
        a("s_nop 1")
        a(f"v_permlane32_swap_b32 v{vT2}, v{m}")
        a("s_nop 1")
        a(f"v_max_f32 v{m}, v{m}, v{vT2}")
    rewind(32)
    for r in range(120, 152): a(f"v_mov_b32 v{r}, 0")
    a.lab("L_acc")
    for f in [ROWS] + rd_v('E', 0) + rd_v('O', 0) + [ALL]: a(f)
    scores()
    for par in 'EO':
        for t, m in (('A', mA), ('B', mB)):
            s = Sr[par] + (16 if t == 'B' else 0)
            for j in range(16): a(f"v_sub_f32 v{s+j}, v{s+j}, v{m}")
            for j in range(16): a(f"v_exp_f32 v{s+j}, v{s+j}")
    a("s_nop 1")
    for par in 'EO':
        for t in 'AB':
            for j in range(2): a(mf_pv(t, par, j))
    step("L_acc")
    a("s_nop 15")
    for t in 'AB':
        finish(t); a("s_nop 0"); finish2(t)
    a("s_waitcnt lgkmcnt(0)")
    for k in range(3): a(store(k))
    a("s_branch L_done")
    a.raw(f""".section .rodata,"a"
.p2align 6
.amdhsa_kernel {NAME}_kernel
  .amdhsa_next_free_vgpr {NV}
  .amdhsa_next_free_sgpr {100 if (opt.stamp or opt.amp or opt.itst) else 48}
  .amdhsa_accum_offset {NV}
  .amdhsa_group_segment_fixed_size 0
  .amdhsa_kernarg_size 48
  .amdhsa_user_sgpr_count 2
  .amdhsa_user_sgpr_kernarg_segment_ptr 1
  .amdhsa_system_sgpr_workgroup_id_x 1
.end_amdhsa_kernel""")
    return a.text()

def parse(argv):
    p = argparse.ArgumentParser()
    p.add_argument('-o', default=f"cdna_kernels/{NAME}.s")
    p.add_argument('--cut', type=int, default=3)
    p.add_argument('--pos', default='2,5,15,18,21,31,25')
    p.add_argument('--pf', type=int, default=1)
    p.add_argument('--ord', default='vkq')
    p.add_argument('--split', type=int, default=1)
    p.add_argument('--xs', type=float, default=35)
    p.add_argument('--tv', type=int, default=5)
    p.add_argument('--padA', type=int, default=0)
    p.add_argument('--padB', type=int, default=1)
    p.add_argument('--stamp', type=int, default=0)
    p.add_argument('--itst', type=int, default=0)
    p.add_argument('--amp', type=int, default=0)
    p.add_argument('--ampt', type=int, default=0)
    p.add_argument('--ampa', type=int, default=0)
    p.add_argument('--ampb', type=int, default=8)
    p.add_argument('--ampr', default='')
    p.add_argument('--ampbase', type=int, default=44000)
    return p.parse_args(argv)

if __name__ == '__main__':
    opt = parse(sys.argv[1:])
    open(opt.o, 'w').write(gen(opt))
```

```python
import sys, struct, math, argparse

NAME = "standalone__fused_io_aware_attn__prompt"
HB = 73728
ST = 2304
VBASE = HB
ABASE = 2 * HB
LDS = ABASE + 4096
OOR = 0x28000

def f2u(x): return struct.unpack('<I', struct.pack('<f', x))[0]
CSCALE = f2u(math.log2(math.e) / math.sqrt(18.0))

vSlot, vK, vV, vInc, vIdx, vQo, vDma, vT2 = 1, 2, 3, 4, 6, 7, 14, 15
KXr = {'E': 8, 'O': 176}
QX = {'E': 10, 'O': 12}
Kr = {'E': 16, 'O': 20}
Qr = {('A', 'E'): 24, ('B', 'E'): 28, ('A', 'O'): 32, ('B', 'O'): 36}
Vr = {('E', 0): 40, ('E', 1): 44, ('O', 0): 48, ('O', 1): 52, ('T', 0): 168, ('T', 1): 172}
Sr = {'E': 56, 'O': 88}
Or = {'A': 120, 'B': 136}
TR = 152
KX0 = {'E': 178, 'O': 180}
K0 = {'E': 182, 'O': 186}
vStA, vStB, vStR, vR, vWE, vWO = 190, 191, 192, 193, 194, 195
NV = 196
AL = dict(on=False)
def kx(par): return KX0[par] if AL['on'] else KXr[par]
def kr(par): return K0[par] if AL['on'] else Kr[par]
def vv(par, j): return Vr[('T', j)] if (AL['on'] and par == 'E') else Vr[(par, j)]
def vr(b, n): return f"v[{b}:{b+n-1}]"

class Asm:
    def __init__(self): self.l = []
    def __call__(self, s, c=None): self.l.append("    " + s + (f"    ; {c}" if c else ""))
    def lab(self, s): self.l.append(s + ":")
    def raw(self, s): self.l.append(s)
    def note(self, s): self.l.append("    ; " + s)
    def text(self): return "\n".join(x.rstrip() for x in self.l) + "\n"

def mf_x(par):
    return f"v_mfma_f32_32x32x4_2b_bf16 {vr(Sr[par],32)}, {vr(kx(par),2)}, {vr(QX[par],2)}, 0 cbsz:1 abid:0"
def mf_q(t, par):
    s = Sr[par] + (16 if t == 'B' else 0)
    return f"v_mfma_f32_32x32x16_bf16 {vr(s,16)}, {vr(kr(par),4)}, {vr(Qr[(t,par)],4)}, {vr(s,16)}"
def mf_pv(t, par, j, vs=None):
    s = Sr[par] + (16 if t == 'B' else 0) + 8 * j
    return f"v_smfmac_f32_32x32x32_bf16 {vr(Or[t],16)}, {vr(vv(vs or par,j),4)}, {vr(s,8)}, v{vIdx}"
def ex(par, i): return f"v_exp_f32 v{Sr[par]+i}, v{Sr[par]+i}"
def rd_kx(u): return [f"ds_read_b32 v{kx('E')}, v{vK} offset:{u*ST+32}", f"ds_read_b32 v{kx('O')}, v{vK} offset:{u*ST+36}"]
def rd_k(par, u):
    o = u * ST + (40 if par == 'O' else 0)
    return [f"ds_read_b64 {vr(kr(par),2)}, v{vK} offset:{o}", f"ds_read_b64 {vr(kr(par)+2,2)}, v{vK} offset:{o+8}"]
def rd_v(par, u):
    return [f"ds_read_b128 {vr(vv(par,j),4)}, v{vV} offset:{u*ST + (0 if par == 'E' else 1152) + 576*j}" for j in range(2)]
ROWS = "s_mov_b64 exec, s[12:13]"
LOW = "s_mov_b32 exec_hi, 0"
ALL = "s_mov_b64 exec, -1"

def phase_list(par, opt):
    oth = 'O' if par == 'E' else 'E'
    pos = [int(x) for x in opt.pos.split(',')]
    mf = {pos[0]: mf_pv('B', oth, 1), pos[1]: mf_x(oth), pos[2]: mf_pv('A', par, 0), pos[3]: mf_pv('A', par, 1),
          pos[4]: mf_q('A', oth), pos[5]: mf_pv('B', par, 0), pos[6]: mf_q('B', oth)}
    out = []
    for i in range(32):
        if i in mf: out.append((i, 'm', mf[i]))
        out.append((i, 'e', ex(par, i)))
    return out

def gen(opt):
    a = Asm()
    def stamp(i):
        if opt.stamp and (opt.stamp != 3 or i in (0, 7, 8)): a(f"s_memtime s[{60+2*i}:{61+2*i}]")
        if opt.amp and i in (opt.ampa, opt.ampb): a(f"{'s_memrealtime' if opt.ampt else 's_memtime'} s[{60+2*i}:{61+2*i}]")
    smem = opt.stamp == 1 or (opt.amp and not (opt.ampa in (0, 7) and opt.ampb in (7, 8)))
    def lgkm(n): a(f"s_waitcnt lgkmcnt({0 if smem else n})")
    a.raw(f"""; Fused attention forward, B=2 H=32 S=2048 D=18, bf16 in/out (emitted by my own generator script).
; @launch grid=(256,1,1) block=(512,1,1) lds={LDS}
.amdgcn_target "amdgcn-amd-amdhsa--gfx950"
.text
.globl {NAME}_kernel
.p2align 8
.type {NAME}_kernel,@function
{NAME}_kernel:""")
    stamp(0)
    if opt.stamp: a("s_memrealtime s[56:57]")
    a("s_load_dwordx8 s[4:11], s[0:1], 0", "q, k, v, out")
    if opt.pf:
        a("s_getpc_b64 s[36:37]")
        a(f"v_mul_u32_u24 v{vT2}, 9, v0")
        a(f"global_load_ubyte v{vT2}, v{vT2}, s[36:37] offset:116", "pulls this kernel's code lines into L2")
    a("v_readfirstlane_b32 s24, v0", "64 * wave")
    a("s_and_b32 s3, s2, 7")
    a("s_lshr_b32 s25, s2, 3")
    a("s_lshl_b32 s3, s3, 5")
    a("s_add_u32 s3, s3, s25", "4 * head + query block")
    a("s_cmpk_ge_u32 s2, 256")
    a("s_cbranch_scc1 L_end")
    a(f"v_lshl_add_u32 v{vQo}, s3, 9, v0")
    a(f"v_mul_u32_u24 v{vQo}, 36, v{vQo}", "one Q row per lane")
    a("s_cmpk_ge_u32 s24, 256")
    a("s_cbranch_scc1 L_setup", "role B (waves 4..7) starts its loads after role A's")
    t0, t1 = Sr['E'] + 8, Sr['E'] + 9
    T = Sr['O']
    def qloads():
        a(f"global_load_dword v{T+8}, v{vQo}, s[4:5] offset:32")
        a(f"global_load_dwordx4 {vr(T,4)}, v{vQo}, s[4:5]")
        a(f"global_load_dwordx4 {vr(T+4,4)}, v{vQo}, s[4:5] offset:16")
    a("s_lshr_b32 s25, s3, 2")
    a(f"s_mul_i32 s25, s25, {HB}")
    a("s_mul_i32 s26, s24, 20")
    a("s_add_u32 s26, s26, s25")
    a(f"v_lshl_add_u32 v{t0}, v0, 4, s26")
    a("s_mul_i32 s26, s24, 36", "super tile `wave` of V and of K")
    kv = opt.ord == 'kvq'
    p1, p2 = ("s[6:7]", "s[8:9]") if kv else ("s[8:9]", "s[6:7]")
    a("s_mov_b32 m0, s26" if kv else f"s_add_u32 m0, s26, {VBASE}")
    a("s_waitcnt lgkmcnt(0)")
    stamp(1)
    a(f"global_load_lds_dwordx4 v{t0}, {p1}")
    a(f"global_load_lds_dwordx4 v{t0}, {p1} offset:1024")
    a("s_mov_b64 exec, 0xffff")
    a(f"global_load_lds_dwordx4 v{t0}, {p1} offset:2048")
    a(f"s_add_u32 m0, s26, {VBASE}" if kv else "s_mov_b32 m0, s26")
    a("s_nop 0")
    a(f"global_load_lds_dwordx4 v{t0}, {p2} offset:2048")
    a(ALL)
    a(f"global_load_lds_dwordx4 v{t0}, {p2}")
    a(f"global_load_lds_dwordx4 v{t0}, {p2} offset:1024")
    qloads()
    a.lab("L_setup")
    if opt.stamp:
        a("s_load_dwordx2 s[40:41], s[0:1], 40")
        if opt.stamp == 3:
            for i in range(62, 74): a(f"s_mov_b32 s{i}, 0")
    a(f"v_lshlrev_b32 v{vSlot}, 3, v0")
    a("v_and_b32 v0, 63, v0")
    a("s_lshr_b32 s24, s24, 6", "wave id")
    a("s_lshr_b32 s25, s3, 2")
    a(f"s_mul_i32 s25, s25, {HB}", "head byte offset")
    a("s_lshl3_add_u32 s26, s3, s24")
    a(f"s_mul_i32 s26, s26, {ST}", "output byte offset of this wave")
    a(f"v_lshlrev_b32 v{vDma}, 4, v0")
    a("s_cmp_lt_u32 s24, 4")
    a("s_cselect_b32 s28, 8, 0")
    a("s_add_u32 s28, s28, s24")
    a(f"s_mul_i32 s27, s28, {ST}", "byte offset of this wave's next super tile to load")
    a(f"s_mov_b32 s18, {HB}")
    a("s_mov_b32 s19, 0x00020000")
    a(f"s_mov_b32 s46, {HB}")
    a("s_mov_b32 s47, 0x00020000")
    a(f"s_movk_i32 s22, {ST}")
    a("s_mov_b32 s23, 0x00020000")
    def dma():
        a("s_mov_b32 m0, s27")
        a("s_nop 0")
        a(f"buffer_load_dwordx4 v{vDma}, s[16:19], s27 offen lds")
        a(f"buffer_load_dwordx4 v{vDma}, s[16:19], s27 offen offset:1024 lds")
        a("s_mov_b64 exec, 0xffff")
        a(f"buffer_load_dwordx4 v{vDma}, s[16:19], s27 offen offset:2048 lds")
        a("s_add_u32 m0, s27, s18")
        a("s_nop 0")
        a(f"buffer_load_dwordx4 v{vDma}, s[44:47], s27 offen offset:2048 lds")
        a(ALL)
        a(f"buffer_load_dwordx4 v{vDma}, s[44:47], s27 offen lds")
        a(f"buffer_load_dwordx4 v{vDma}, s[44:47], s27 offen offset:1024 lds")
        a(f"s_add_u32 s27, s27, {8*ST}")
    def tr_read():
        for u in range(2):
            for j in range(2):
                for p in range(2):
                    a(f"ds_read_b64_tr_b16 {vr(TR+8*u+4*j+2*p,2)}, v{vR} offset:{40*u + (4*j+p)*72}")
    def tr_write(step):
        a(ROWS)
        for j in range(2): a(f"ds_write_b128 v{vWE}, {vr(TR+4*j,4)} offset:{576*j}")
        a("s_mov_b64 exec, s[14:15]")
        for j in range(2): a(f"ds_write_b128 v{vWO}, {vr(TR+8+4*j,4)} offset:{576*j}")
        a(ALL)
        if step == 8: a("s_setprio 3")
        if step:
            for r in (vR, vWE, vWO): a(f"v_add_u32 v{r}, {step*ST}, v{r}")
    a("s_waitcnt lgkmcnt(0)")
    a("s_add_u32 s16, s6, s25")
    a("s_addc_u32 s17, s7, 0")
    a("s_add_u32 s44, s8, s25")
    a("s_addc_u32 s45, s9, 0")
    a("s_add_u32 s20, s10, s26")
    a("s_addc_u32 s21, s11, 0")
    C = Sr['E']
    t3, t4, t5 = C + 4, C + 5, C + 6
    a(f"v_mov_b32 v{QX['E']}, 0"); a(f"v_mov_b32 v{QX['E']+1}, 0")
    a(f"v_and_b32 v{t0}, 31, v0", "MFMA row m")
    a(f"v_lshrrev_b32 v{t1}, 5, v0", "half wave h")
    a(f"v_mfma_f32_32x32x4_2b_bf16 {vr(120,32)}, {vr(QX['E'],2)}, {vr(QX['E'],2)}, 0")
    a(f"v_cmp_eq_u32 vcc, 20, v{t0}")
    a(f"v_mov_b32 v{t4}, 0x3f803f80")
    a("s_mov_b32 s12, 0x0003ffff"); a("s_mov_b32 s13, 0x0003ffff")
    a("s_mov_b32 s14, 0x00c0ffff"); a("s_mov_b32 s15, 0x00c0ffff")
    a(f"v_cndmask_b32 v40, 0, v{t4}, vcc")
    a(f"v_cndmask_b32 v41, 0, v{t4}, vcc")
    for r in list(range(42, 56, 2)) + list(range(168, 176, 2)): a(f"v_pk_mov_b32 {vr(r,2)}, v[40:41], v[40:41]")
    a(f"v_and_b32 v{t3}, 3, v0")
    a(f"v_lshrrev_b32 v{t4}, 2, v{t0}")
    a(f"v_lshl_add_u32 v{t4}, v{t3}, 3, v{t4}")
    a(f"v_mul_u32_u24 v{vK}, 72, v{t4}")
    a(f"v_lshl_add_u32 v{vK}, v{t1}, 4, v{vK}")
    a(f"v_bfe_u32 v{t4}, v0, 3, 1")
    a(f"v_lshl_add_u32 v{t3}, v{t4}, 2, v{t3}")
    a(f"v_and_b32 v{t4}, 4, v0")
    a(f"v_lshlrev_b32 v{t4}, 1, v{t4}")
    a(f"v_sub_u32 v{t3}, v{t3}, v{t4}")
    a(f"v_add_u32 v{t3}, 8, v{t3}")
    a(f"v_cmp_lt_u32 vcc, 15, v{t0}")
    a(f"v_and_b32 v{t4}, 1, v0")
    a(f"v_add_u32 v{t4}, 16, v{t4}")
    a(f"v_cndmask_b32 v{t3}, v{t3}, v{t4}, vcc")
    a(f"v_mul_u32_u24 v{t5}, 18, v{t1}")
    a("s_cmp_lt_u32 s24, 4")
    a(f"s_cselect_b32 s29, 0, {4*ST}")
    a("s_sub_u32 s29, s27, s29")
    a("s_add_u32 s29, s29, s18", "first V super tile this wave transposes")
    for sub, dst, extra in ((4, vWE, 0), (2, vWO, 72)):
        a(f"v_subrev_u32 v{t4}, {sub}, v{t3}")
        a(f"v_add_u32 v{dst}, 18, v{t4}")
        a(f"v_min_u32 v{t4}, v{t4}, v{dst}")
        a(f"v_add_u32 v{t4}, v{t4}, v{t5}")
        if extra: a(f"v_add_u32 v{t4}, {extra}, v{t4}")
        else: a(f"v_lshl_add_u32 v{vV}, v{t4}, 4, s18")
        a(f"v_lshl_add_u32 v{dst}, v{t4}, 4, s29")
    a(f"v_and_b32 v{t3}, 12, v0")
    a(f"v_add_lshl_u32 v{t3}, v{t3}, v{t1}, 1")
    a(f"v_mul_u32_u24 v{t3}, 72, v{t3}")
    a(f"v_and_b32 v{t4}, 1, v0")
    a(f"v_lshlrev_b32 v{t4}, 4, v{t4}")
    a(f"v_sub_u32 v{t3}, v{t3}, v{t4}")
    a(f"v_and_b32 v{t4}, 2, v0")
    a(f"v_lshl_add_u32 v{t3}, v{t4}, 2, v{t3}")
    a(f"v_and_b32 v{t4}, 16, v0")
    a(f"v_add3_u32 v{t3}, v{t4}, v{t3}, s29")
    a(f"v_add_u32 v{t4}, 16, v{t3}")
    a(f"v_subrev_u32 v{t3}, 8, v{t3}")
    a("s_mov_b32 vcc_lo, 0x22220000"); a("s_mov_b32 vcc_hi, 0x22220000")
    a(f"v_cndmask_b32 v{t3}, v{t4}, v{t3}, vcc")
    a(f"v_mov_b32 v{t4}, {OOR:#x}")
    a("s_mov_b32 vcc_lo, 0xcccc0000"); a("s_mov_b32 vcc_hi, 0xcccc0000")
    a(f"v_cndmask_b32 v{vR}, v{t3}, v{t4}, vcc")
    for r in list(KXr.values()) + list(KX0.values()): a(f"v_mov_b32 v{r+1}, 0x3f80")
    for par in 'EO': a(f"v_mov_b32 v{QX[par]+1}, {f2u(opt.xs) >> 16:#x}", "constant softmax shift")
    a(f"v_mov_b32 v{vIdx}, 0xdddd", "sparse index: elements 1 and 3 of every group of four")
    a(f"v_mov_b32 v{vInc}, {ST}")
    a(f"v_mov_b32 v{vInc+1}, {ST}")
    a(f"v_add_u32 v{C+2}, v{vK}, v{vInc}")
    a(f"v_add_u32 v{C+3}, v{vV}, v{vInc}")
    a(f"v_add_u32 v{vSlot}, {ABASE}, v{vSlot}")
    a(f"ds_write_b64 v{vSlot}, {vr(C+2,2)}", "address counters, stepped by ds_add_rtn_u64")
    a(f"s_mul_i32 s28, s24, {ST}")
    a(f"v_mul_u32_u24 v{vStA}, 36, v{t0}")
    a(f"v_lshlrev_b32 v{t4}, 4, v{t1}")
    a(f"v_sub_u32 v{vStA}, v{vStA}, v{t4}")
    a(f"v_add3_u32 v{vStA}, v{vStA}, 16, s28")
    a(f"v_add_u32 v{vStB}, 1152, v{vStA}")
    a(f"v_add_u32 v{vStR}, s28, v{vDma}")
    a(f"s_mov_b32 s30, {CSCALE:#x}", "log2(e)/sqrt(18)"); a(f"s_mov_b32 s31, {CSCALE:#x}")
    a("s_mov_b32 s29, 1", "super tile counter")
    a("s_mov_b32 s32, 0x8088", "barrier schedule")
    a("s_mov_b32 s33, 0x80008088")
    a("s_mov_b32 s38, 0x8000ddd0", "iterations with extra work, role A")
    a("s_mov_b32 s39, 0x8000dddc", "role B")
    a("s_mov_b32 s34, 0xffff0000")
    a("s_mov_b32 s35, 0x7b800000", "2^120")
    a("s_mov_b64 vcc, 0")
    a("s_cmp_ge_u32 s24, 4", "SCC = role B (kept until the loops)")
    bump = f"ds_add_rtn_u64 {vr(vK,2)}, v{vSlot}, {vr(vInc,2)}"
    bK, bX = rd_k('E', 1) + rd_k('O', 1), rd_kx(1)
    bV = rd_v('O', 0) + rd_v('E', 1)
    late = []; lateA = []
    if kv:
        a("s_waitcnt vmcnt(6)")
        a("s_barrier", "K super tiles 0..3 are in: role B starts its Q loads")
        a("s_cbranch_scc0 L_noq")
        qloads()
        a.lab("L_noq")
        AL['on'] = True
        for f in rd_kx(0) + rd_k('E', 0) + rd_k('O', 0) + bX + bK: a(f)
        rdV0 = [ROWS] + rd_v('E', 0) + bV + [ALL, bump]
        a("s_cbranch_scc0 L_vA")
        a("s_waitcnt lgkmcnt(0)")
        stamp(2)
        a("s_barrier", "V super tiles 0..3 are in")
        tr_read()
        a("s_waitcnt lgkmcnt(0)")
        tr_write(0)
        a("s_waitcnt lgkmcnt(0)")
        a("s_barrier", "V super tiles 0..3 are transposed")
        for f in rdV0: a(f)
        a("s_setprio 3")
        for r in (vR, vWE, vWO): a(f"v_add_u32 v{r}, {4*ST}, v{r}")
        a("s_branch L_prep")
        a.raw("    .p2align 3")
        a.lab("L_vA")
        a("s_waitcnt vmcnt(3) lgkmcnt(0)")
        stamp(2)
        a("s_barrier", "V super tiles 0..3 are in")
        a.lab("L_prep")
        lateA = ["s_barrier"] + rdV0
    else:
        if opt.amp: stamp(9)
        a("s_waitcnt vmcnt(6)")
        a("s_barrier", "V super tiles 0..3 are in: role B transposes them and starts its Q loads")
        if opt.amp: stamp(10)
        a("s_cbranch_scc0 L_noq")
        tr_read()
        qloads()
        a("s_waitcnt lgkmcnt(0)")
        tr_write(4)
        a.lab("L_noq")
        a.raw("    .p2align 3")
        a("s_waitcnt vmcnt(3) lgkmcnt(0)")
        stamp(2)
        a("s_barrier", "K super tiles 0..3 are in, V super tiles 0..3 are transposed")
        AL['on'] = True
        if opt.split:
            for f in rd_kx(0) + rd_k('E', 0) + rd_k('O', 0) + [ROWS, "s_setprio 3"] + rd_v('E', 0) + [ALL]: a(f)
            lgkm(4)
            late = bK + [LOW] + bX + [ROWS] + bV + [ALL, bump]
        else:
            for f in rd_kx(0) + rd_k('E', 0) + rd_k('O', 0) + bX + bK: a(f)
            a(ROWS)
            lgkm(8)
            for f in rd_v('E', 0) + bV + [ALL, "s_setprio 3", bump]: a(f)
    stamp(3)
    W = T + 10
    QAE, QBE, QAO, QBO = Qr[('A','E')], Qr[('B','E')], Qr[('A','O')], Qr[('B','O')]
    def shl(j): a(f"v_lshlrev_b32 v{W+2*j}, 16, v{T+j}")
    def msk(j): a(f"v_and_b32 v{W+2*j+1}, s34, v{T+j}")
    def mul(j): a(f"v_pk_mul_f32 {vr(W+2*j,2)}, {vr(W+2*j,2)}, s[30:31]")
    def cvt(j, d): a(f"v_cvt_pk_bf16_f32 v{d}, v{W+2*j}, v{W+2*j+1}")
    a("s_waitcnt vmcnt(0)")
    stamp(4)
    shl(8)
    a(f"v_and_b32_e64 v{W+17}, s34, v{T+8}")
    mul(8); cvt(8, QX['E'])
    shl(0); msk(0)
    a(mf_x('E'))
    cvt(8, QBO + 3)
    for j in range(1, 8): shl(j); msk(j)
    for j in range(8): mul(j)
    for j in range(4): cvt(j, QAE + j)
    for j in range(4): cvt(4 + j, QBE + j)
    for j in range(4): a(f"v_permlane32_swap_b32 v{QAE+j}, v{QBE+j}")
    cvt(4, QAO + 3)
    cvt(0, QX['O'])
    a(mf_q('A', 'E'))
    a("s_waitcnt lgkmcnt(0)")
    a(f"v_permlane32_swap_b32 v{QAO+3}, v{QBO+3}")
    for j in range(0, 3): a(f"v_mov_b32 v{QAO+j}, v{QAE+j+1}")
    for j in range(0, 3): a(f"v_mov_b32 v{QBO+j}, v{QBE+j+1}")
    a(mf_q('B', 'E'))
    for f in late: a(f)
    a("s_cbranch_scc1 L_startB")
    a("s_setprio 2")
    for f in lateA: a(f)
    if not late and not lateA: a("s_nop 0")
    cut = opt.cut
    pos0 = int(opt.pos.split(',')[0])
    assert cut > pos0
    a.lab("L_first")
    if opt.kexp:
        a("s_waitcnt lgkmcnt(0)")
        if opt.kexp != 9:
            a(f"v_add_u32 v{vK}, {ST}, v{vDma}")
        else:
            a(f"v_add_u32 v{vK}, 0, v{vK}")
        a(f"v_add_u32 v{vT2}, v{vK}, v{vInc}")
        a(f"ds_write_b32 v{vSlot}, v{vT2}")
        if opt.kexp != 9:
            bK = [f"ds_read_b128 {vr(Kr['E'],4)}, v{vK} offset:{ST}", f"ds_read_b128 {vr(Kr['O'],4)}, v{vK} offset:{ST+1024}"]
            bX = ["s_lshl_b32 m0, s29, 8", ALL, f"ds_read_addtid_b32 v{KXr['E']} offset:4096"] + ["s_nop 0"] * 4
        if opt.kexp == 2: bump = f"ds_add_rtn_u32 v{vK}, v{vSlot}, v{vInc}"
    stamp(5)
    for (i, k_, s_) in phase_list('E', opt):
        if lateA and 'smfmac' in s_ and i > pos0:
            a("s_waitcnt lgkmcnt(0)"); lateA = None
        if not (i == pos0 and k_ == 'm'): a(s_)
        if late and 'smfmac' in s_ and i > 25: a("s_waitcnt lgkmcnt(0)")
    for (i, k_, s_) in phase_list('O', opt):
        if i < cut: a(s_)
    AL['on'] = False
    pE, pO = phase_list('E', opt), phase_list('O', opt)
    seg = [s_ for (i, k_, s_) in pO if i >= cut] + [s_ for (i, k_, s_) in pE] + [s_ for (i, k_, s_) in pO if i < cut]
    for s_ in seg: a(s_)
    a("s_cbranch_scc0 L_topA")
    a("s_branch L_topB")
    a.lab("L_startB")
    a("s_setprio 1")
    dma()
    a("s_cmp_ge_u32 s24, 4")
    a("s_branch L_first")
    a.lab("L_ev")
    a("s_bitcmp1_b32 s29, 0")
    a("s_cbranch_scc1 L_evW")
    a("s_bitcmp1_b32 s29, 1")
    a("s_cbranch_scc0 L_evD")
    a("s_waitcnt vmcnt(0) lgkmcnt(7)")
    tr_read()
    a.lab("L_evx")
    a("s_cmp_ge_u32 s24, 4")
    a("s_cbranch_scc0 L_backA")
    a("s_setprio 1")
    a("s_branch L_backB")
    a.lab("L_evW")
    a("s_cmp_eq_u32 s29, 31")
    a("s_cbranch_scc1 L_ev31")
    tr_write(8)
    a("s_setprio 0")
    a("s_branch L_evx")
    a.lab("L_evD")
    dma()
    a("s_branch L_evx")
    a.lab("L_ev31")
    a("s_mov_b64 vcc, 1", "last segment: it runs on into the tail")
    a("s_waitcnt lgkmcnt(0)")
    for f in [ROWS] + rd_v('T', 0) + [ALL]: a(f)
    a("s_branch L_evx")
    for role in 'AB':
        a.raw("    .p2align 6")
        pad = opt.padA if role == 'A' else opt.padB
        if pad: a.raw(f"    .fill {pad}, 4, 0xbf800000    ; never executed: sets the loop's fetch alignment")
        a.lab(f"L_top{role}")
        if role == 'A': a("s_setprio 0")
        a("s_add_u32 s29, s29, 1")
        if opt.itst: a("s_memtime s[48:49]")
        for f in bK + [LOW] + bX + [ROWS] + bV + [ALL, bump]: a(f)
        a(f"s_bitcmp1_b32 {'s38' if role == 'A' else 's39'}, s29")
        a("s_cbranch_scc1 L_ev")
        a.lab(f"L_back{role}")
        a(f"s_bitcmp1_b32 {'s33' if role == 'A' else 's32'}, s29", "SCC: a barrier follows this " + ("segment" if role == 'A' else "burst"))
        a("s_waitcnt lgkmcnt(0)")
        if opt.itst:
            a("s_mov_b32 m0, s29"); a("s_nop 0"); a("s_movreld_b32 s62, s48"); a("s_nop 0"); a("s_nop 0"); a("s_nop 0")
        if role == 'B':
            a("s_cbranch_scc0 L_segB")
            a("s_barrier")
        a.lab(f"L_seg{role}")
        first = True
        for s_ in seg:
            a(s_)
            if first and role == 'A' and 'smfmac' in s_:
                a("s_setprio 2"); first = False
        if role == 'A':
            a("s_cbranch_scc0 L_topA")
            a("s_cbranch_vccnz L_tail")
            a("s_barrier")
            a("s_branch L_topA")
        else:
            a("s_cbranch_vccz L_topB")
    R = Sr['E']
    PK = {'A': Sr['E'] + 8, 'B': Sr['E'] + 14}
    OB = Sr['E'] + 20
    def finish(t, fill=None):
        O = Or[t]
        rc = R + 2 if t == 'A' else R + 4
        a(f"v_pk_mov_b32 {vr(rc,2)}, {vr(O+8,2)}, {vr(O+8,2)} op_sel:[0,0]", "denominator sits in the upper half wave")
        for f in (fill or ["s_nop 1"]): a(f)
        a(f"v_permlane32_swap_b32 v{rc}, v{rc+1}")
        a(f"v_rcp_f32 v{rc}, v{rc+1}")
    def finish2(t):
        O = Or[t]
        rc = R + 2 if t == 'A' else R + 4
        for j in (8, 0, 2, 4, 6):
            a(f"v_pk_mul_f32 {vr(O+j,2)}, {vr(O+j,2)}, {vr(rc,2)} op_sel_hi:[1,0]")
        st = vStA if t == 'A' else vStB
        for j in (4, 0, 1, 2, 3):
            a(f"v_cvt_pk_bf16_f32 v{PK[t]+j}, v{O+2*j}, v{O+2*j+1}")
        a(f"ds_write_b32 v{st}, v{PK[t]+4} offset:16", "upper half's word is overwritten by the next write")
        a(f"ds_write2_b32 v{st}, v{PK[t]}, v{PK[t]+1} offset0:0 offset1:1")
        a(f"ds_write2_b32 v{st}, v{PK[t]+2}, v{PK[t]+3} offset0:2 offset1:3")
        if t == 'A':
            a(f"ds_read_b128 {vr(OB,4)}, v{vStR}")
        else:
            a(f"ds_read_b128 {vr(OB+4,4)}, v{vStR} offset:1024")
            a(f"ds_read_b128 {vr(OB+8,4)}, v{vStR} offset:2048")
    def store(k): return f"buffer_store_dwordx4 {vr(OB+4*k,4)}, v{vDma}, s[20:23], 0 offen offset:{1024*k} sc1"
    a.lab("L_tail")
    tm = {10: mf_pv('A', 'O', 0, 'T'), 18: mf_pv('A', 'O', 1, 'T'), 26: mf_pv('B', 'O', 0, 'T')}
    for i in range(cut, 29):
        if i in tm: a(tm[i])
        a(ex('O', i))
    finish('A', [ex('O', 29), ex('O', 30)])
    a(ex('O', 31).replace("v_exp_f32", "v_exp_f32_e64"))
    stamp(6)
    n0 = len(a.l)
    finish2('A')
    a.l.insert(n0 + 5, "    " + mf_pv('B', 'O', 1, 'T'))
    if opt.tv < 0:
        a("s_nop 0")
        lgkm(0)
        a(store(0))
        finish('B')
        a("s_nop 0")
        finish2('B')
    else:
        a("s_nop 1"); a("s_nop 0")
        finish('B')
        a("s_nop 0")
        n0 = len(a.l)
        finish2('B')
        a.l[n0+opt.tv:n0+opt.tv] = ["    s_waitcnt lgkmcnt(0)", "    " + store(0), "    s_nop 0"]
    lgkm(1)
    a(store(1))
    lgkm(0)
    a(store(2))
    stamp(7)
    a("s_setprio 0")
    for t in 'AB':
        for j in range(5): a(f"v_dot2c_f32_bf16 v{R+3 if t == 'A' else R+5}, 0, v{PK[t]+j}")
    a(f"v_cmp_nge_f32 s[36:37], v{R+3}, 1.0")
    a(f"v_cmp_nle_f32 vcc, v{R+3}, s35")
    a("s_or_b64 s[36:37], s[36:37], vcc")
    a(f"v_cmp_nge_f32 s[38:39], v{R+5}, 1.0")
    a(f"v_cmp_nle_f32 vcc, v{R+5}, s35")
    a("s_or_b64 s[36:37], s[36:37], s[38:39]")
    a("s_or_b64 s[36:37], s[36:37], vcc")
    if not opt.kexp: a("s_cbranch_scc1 L_slow")
    a.lab("L_done")
    if opt.amp:
        a("s_waitcnt vmcnt(0)")
        stamp(8)
        a("s_memrealtime s[42:43]")
        a("s_waitcnt lgkmcnt(0)")
        a(f"s_sub_u32 s50, s{60+2*opt.ampb}, s{60+2*opt.ampa}")
        a(f"s_max_u32 s50, s50, {opt.ampbase}")
        a(f"s_sub_u32 s50, s50, {opt.ampbase}")
        a("s_load_dwordx2 s[54:55], s[0:1], 32")
        a(f"s_cmp_lg_u32 s24, {3 if opt.ampr == 'A' else 7}")
        a("s_cbranch_scc1 L_end")
        a("s_add_u32 s51, s50, 0x1000000")
        a("s_mov_b64 exec, 1")
        a("v_mov_b32 v16, s51"); a("v_mov_b32 v17, 0")
        a("s_waitcnt lgkmcnt(0)")
        a("global_atomic_add v18, v17, v16, s[54:55] sc0 sc1")
        a("s_waitcnt vmcnt(0)")
        a("v_readfirstlane_b32 s51, v18")
        a("s_nop 3")
        a("s_add_u32 s50, s50, s51")
        a("s_and_b32 s50, s50, 0xffffff")
        a(f"s_mul_i32 s50, s50, {opt.amp}")
        a("s_lshr_b32 s50, s50, 8")
        a("s_lshr_b32 s51, s51, 24")
        a("s_cmp_lg_u32 s51, 255")
        a("s_cselect_b32 s50, 0, s50")
        a("s_min_u32 s50, s50, 20000")
        a.lab("L_spin")
        a("s_sleep 2")
        a("s_memrealtime s[52:53]")
        a("s_waitcnt lgkmcnt(0)")
        a("s_sub_u32 s51, s52, s42")
        a("s_cmp_lt_u32 s51, s50")
        a("s_cbranch_scc1 L_spin")
    if opt.itst:
        a("s_load_dwordx2 s[40:41], s[0:1], 40")
        for i in range(32): a(f"v_writelane_b32 v16, s{62+i}, {i}")
        a("s_lshl_b32 s50, s2, 3"); a("s_add_u32 s50, s50, s24"); a("s_lshl_b32 s50, s50, 8")
        a(f"v_lshrrev_b32 v1, 2, v{vDma}")
        a("v_add_u32 v1, s50, v1")
        a("s_waitcnt lgkmcnt(0)")
        a("global_store_dword v1, v16, s[40:41]")
    if opt.stamp:
        a("s_mov_b64 exec, 1")
        a("s_waitcnt vmcnt(0)")
        stamp(8)
        a("s_memrealtime s[58:59]")
        a("s_getreg_b32 s42, hwreg(HW_REG_HW_ID)")
        a("s_getreg_b32 s43, hwreg(HW_REG_XCC_ID)")
        a("s_waitcnt lgkmcnt(0)")
        for i, sr in enumerate((56, 58, 42, 43, 60, 62, 64, 66, 68, 70, 72, 74, 76)):
            a(f"v_mov_b32 v{16+i}, s{sr}")
        a("s_lshl_b32 s50, s2, 3"); a("s_add_u32 s50, s50, s24"); a("s_lshl_b32 s50, s50, 6")
        a("v_mov_b32 v1, s50")
        for i in range(4): a(f"global_store_dwordx4 v1, v[{16+4*i}:{19+4*i}], s[40:41] offset:{16*i}")
    a.lab("L_end")
    a("s_endpgm")
    a.lab("L_slow")
    a("s_waitcnt vmcnt(0)")
    mA, mB = 0, vSlot
    def rewind(n):
        a(f"v_subrev_u32 v{vK}, {n*ST}, v{vK}")
        a(f"v_subrev_u32 v{vV}, {n*ST}, v{vV}")
        a("s_mov_b32 s29, 0")
    def scores():
        a(f"buffer_load_dword v{KXr['E']}, v{vK}, s[16:19], 0 offen offset:32")
        a(f"buffer_load_dword v{KXr['O']}, v{vK}, s[16:19], 0 offen offset:36")
        a(f"buffer_load_dwordx4 {vr(Kr['E'],4)}, v{vK}, s[16:19], 0 offen")
        a(f"buffer_load_dwordx4 {vr(Kr['O'],4)}, v{vK}, s[16:19], 0 offen offset:40")
        a("s_waitcnt vmcnt(0) lgkmcnt(0)")
        a(mf_x('E')); a(mf_x('O'))
        a("s_nop 15"); a("s_nop 3")
        for par in 'EO':
            for t in 'AB': a(mf_q(t, par))
        a("s_nop 15")
    def step(lab):
        a(f"v_add_u32 v{vK}, v{vInc}, v{vK}")
        a(f"v_add_u32 v{vV}, v{vInc}, v{vV}")
        a("s_add_u32 s29, s29, 1")
        a("s_cmp_lg_u32 s29, 32")
        a(f"s_cbranch_scc1 {lab}")
    rewind(31)
    a(f"v_mov_b32 v{mA}, 0xff800000"); a(f"v_mov_b32 v{mB}, 0xff800000")
    a.lab("L_max")
    scores()
    for par in 'EO':
        for t, m in (('A', mA), ('B', mB)):
            s = Sr[par] + (16 if t == 'B' else 0)
            for j in range(0, 16, 2): a(f"v_max3_f32 v{m}, v{m}, v{s+j}, v{s+j+1}")
    step("L_max")
    for m in (mA, mB):
        a(f"v_mov_b32 v{vT2}, v{m}")
        a("s_nop 1")
        a(f"v_permlane32_swap_b32 v{vT2}, v{m}")
        a("s_nop 1")
        a(f"v_max_f32 v{m}, v{m}, v{vT2}")
    rewind(32)
    for r in range(120, 152): a(f"v_mov_b32 v{r}, 0")
    a.lab("L_acc")
    for f in [ROWS] + rd_v('E', 0) + rd_v('O', 0) + [ALL]: a(f)
    scores()
    for par in 'EO':
        for t, m in (('A', mA), ('B', mB)):
            s = Sr[par] + (16 if t == 'B' else 0)
            for j in range(16): a(f"v_sub_f32 v{s+j}, v{s+j}, v{m}")
            for j in range(16): a(f"v_exp_f32 v{s+j}, v{s+j}")
    a("s_nop 1")
    for par in 'EO':
        for t in 'AB':
            for j in range(2): a(mf_pv(t, par, j))
    step("L_acc")
    a("s_nop 15")
    for t in 'AB':
        finish(t); a("s_nop 0"); finish2(t)
    a("s_waitcnt lgkmcnt(0)")
    for k in range(3): a(store(k))
    a("s_branch L_done")
    a.raw(f""".section .rodata,"a"
.p2align 6
.amdhsa_kernel {NAME}_kernel
  .amdhsa_next_free_vgpr {NV}
  .amdhsa_next_free_sgpr {100 if (opt.stamp or opt.amp or opt.itst) else 48}
  .amdhsa_accum_offset {NV}
  .amdhsa_group_segment_fixed_size 0
  .amdhsa_kernarg_size 48
  .amdhsa_user_sgpr_count 2
  .amdhsa_user_sgpr_kernarg_segment_ptr 1
  .amdhsa_system_sgpr_workgroup_id_x 1
.end_amdhsa_kernel""")
    return a.text()

def parse(argv):
    p = argparse.ArgumentParser()
    p.add_argument('-o', default=f"cdna_kernels/{NAME}.s")
    p.add_argument('--cut', type=int, default=3)
    p.add_argument('--pos', default='2,5,15,18,21,31,25')
    p.add_argument('--pf', type=int, default=1)
    p.add_argument('--kexp', type=int, default=0)
    p.add_argument('--ord', default='vkq')
    p.add_argument('--split', type=int, default=1)
    p.add_argument('--xs', type=float, default=35)
    p.add_argument('--tv', type=int, default=-1)
    p.add_argument('--padA', type=int, default=0)
    p.add_argument('--padB', type=int, default=1)
    p.add_argument('--stamp', type=int, default=0)
    p.add_argument('--itst', type=int, default=0)
    p.add_argument('--amp', type=int, default=0)
    p.add_argument('--ampt', type=int, default=0)
    p.add_argument('--ampa', type=int, default=0)
    p.add_argument('--ampb', type=int, default=8)
    p.add_argument('--ampr', default='')
    p.add_argument('--ampbase', type=int, default=44000)
    return p.parse_args(argv)

if __name__ == '__main__':
    opt = parse(sys.argv[1:])
    open(opt.o, 'w').write(gen(opt))
```

```python
import sys, struct, math, argparse

NAME = "standalone__fused_io_aware_attn__prompt"
HB = 73728
ST = 2304
VBASE = HB
ABASE = 2 * HB
LDS = ABASE + 4096
OOR = 0x28000

def f2u(x): return struct.unpack('<I', struct.pack('<f', x))[0]
CSCALE = f2u(math.log2(math.e) / math.sqrt(18.0))

vSlot, vK, vV, vInc, vIdx, vQo, vDma, vT2 = 1, 2, 3, 4, 6, 7, 14, 15
KXr = {'E': 8, 'O': 176}
QX = {'E': 10, 'O': 12}
Kr = {'E': 16, 'O': 20}
Qr = {('A', 'E'): 24, ('B', 'E'): 28, ('A', 'O'): 32, ('B', 'O'): 36}
Vr = {('E', 0): 40, ('E', 1): 44, ('O', 0): 48, ('O', 1): 52, ('T', 0): 168, ('T', 1): 172}
Sr = {'E': 56, 'O': 88}
Or = {'A': 120, 'B': 136}
TR = 152
KX0 = {'E': 178, 'O': 180}
K0 = {'E': 182, 'O': 186}
vStA, vStB, vStR, vR, vWE, vWO = 190, 191, 192, 193, 194, 195
NV = 196
AL = dict(on=False)
def kx(par): return KX0[par] if AL['on'] else KXr[par]
def kr(par): return K0[par] if AL['on'] else Kr[par]
def vv(par, j): return Vr[('T', j)] if (AL['on'] and par == 'E') else Vr[(par, j)]
def vr(b, n): return f"v[{b}:{b+n-1}]"

class Asm:
    def __init__(self): self.l = []
    def __call__(self, s, c=None): self.l.append("    " + s + (f"    ; {c}" if c else ""))
    def lab(self, s): self.l.append(s + ":")
    def raw(self, s): self.l.append(s)
    def note(self, s): self.l.append("    ; " + s)
    def text(self): return "\n".join(x.rstrip() for x in self.l) + "\n"

def mf_x(par):
    return f"v_mfma_f32_32x32x4_2b_bf16 {vr(Sr[par],32)}, {vr(kx(par),2)}, {vr(QX[par],2)}, 0 cbsz:1 abid:0"
def mf_q(t, par):
    s = Sr[par] + (16 if t == 'B' else 0)
    return f"v_mfma_f32_32x32x16_bf16 {vr(s,16)}, {vr(kr(par),4)}, {vr(Qr[(t,par)],4)}, {vr(s,16)}"
def mf_pv(t, par, j, vs=None):
    s = Sr[par] + (16 if t == 'B' else 0) + 8 * j
    return f"v_smfmac_f32_32x32x32_bf16 {vr(Or[t],16)}, {vr(vv(vs or par,j),4)}, {vr(s,8)}, v{vIdx}"
def ex(par, i): return f"v_exp_f32 v{Sr[par]+i}, v{Sr[par]+i}"
def rd_kx(u): return [f"ds_read_b32 v{kx('E')}, v{vK} offset:{u*ST+32}", f"ds_read_b32 v{kx('O')}, v{vK} offset:{u*ST+36}"]
def rd_k(par, u):
    o = u * ST + (40 if par == 'O' else 0)
    return [f"ds_read_b64 {vr(kr(par),2)}, v{vK} offset:{o}", f"ds_read_b64 {vr(kr(par)+2,2)}, v{vK} offset:{o+8}"]
def rd_v(par, u):
    return [f"ds_read_b128 {vr(vv(par,j),4)}, v{vV} offset:{u*ST + (0 if par == 'E' else 1152) + 576*j}" for j in range(2)]
ROWS = "s_mov_b64 exec, s[12:13]"
LOW = "s_mov_b32 exec_hi, 0"
ALL = "s_mov_b64 exec, -1"

def phase_list(par, opt):
    oth = 'O' if par == 'E' else 'E'
    pos = [int(x) for x in opt.pos.split(',')]
    mf = {pos[0]: mf_pv('B', oth, 1), pos[1]: mf_x(oth), pos[2]: mf_pv('A', par, 0), pos[3]: mf_pv('A', par, 1),
          pos[4]: mf_q('A', oth), pos[5]: mf_pv('B', par, 0), pos[6]: mf_q('B', oth)}
    out = []
    for i in range(32):
        if i in mf: out.append((i, 'm', mf[i]))
        out.append((i, 'e', ex(par, i)))
    return out

def gen(opt):
    a = Asm()
    def stamp(i):
        if opt.stamp and (opt.stamp != 3 or i in (0, 7, 8)): a(f"s_memtime s[{60+2*i}:{61+2*i}]")
        if opt.amp and i in (opt.ampa, opt.ampb): a(f"{'s_memrealtime' if opt.ampt else 's_memtime'} s[{60+2*i}:{61+2*i}]")
    smem = opt.stamp == 1 or (opt.amp and not (opt.ampa in (0, 7) and opt.ampb in (7, 8)))
    def lgkm(n): a(f"s_waitcnt lgkmcnt({0 if smem else n})")
    a.raw(f"""; Fused attention forward, B=2 H=32 S=2048 D=18, bf16 in/out (emitted by my own generator script).
; @launch grid=(256,1,1) block=(512,1,1) lds={LDS}
.amdgcn_target "amdgcn-amd-amdhsa--gfx950"
.text
.globl {NAME}_kernel
.p2align 8
.type {NAME}_kernel,@function
{NAME}_kernel:""")
    stamp(0)
    if opt.stamp: a("s_memrealtime s[56:57]")
    a("s_load_dwordx8 s[4:11], s[0:1], 0", "q, k, v, out")
    if opt.pf:
        a("s_getpc_b64 s[36:37]")
        a(f"v_mul_u32_u24 v{vT2}, 9, v0")
        a(f"global_load_ubyte v{vT2}, v{vT2}, s[36:37] offset:116", "pulls this kernel's code lines into L2")
    a("v_readfirstlane_b32 s24, v0", "64 * wave")
    a("s_and_b32 s3, s2, 7")
    a("s_lshr_b32 s25, s2, 3")
    a("s_lshl_b32 s3, s3, 5")
    a("s_add_u32 s3, s3, s25", "4 * head + query block")
    a("s_cmpk_ge_u32 s2, 256")
    a("s_cbranch_scc1 L_end")
    a(f"v_lshl_add_u32 v{vQo}, s3, 9, v0")
    a(f"v_mul_u32_u24 v{vQo}, 36, v{vQo}", "one Q row per lane")
    a("s_cmpk_ge_u32 s24, 256")
    a("s_cbranch_scc1 L_setup", "role B (waves 4..7) starts its loads after role A's")
    t0, t1 = Sr['E'] + 8, Sr['E'] + 9
    T = Sr['O']
    def qloads():
        a(f"global_load_dword v{T+8}, v{vQo}, s[4:5] offset:32")
        a(f"global_load_dwordx4 {vr(T,4)}, v{vQo}, s[4:5]")
        a(f"global_load_dwordx4 {vr(T+4,4)}, v{vQo}, s[4:5] offset:16")
    kv = opt.ord == 'kvq'
    hv = opt.ord == 'h'
    if hv:
        a("s_lshr_b32 s25, s3, 2")
        a(f"s_mul_i32 s25, s25, {HB}")
        a("s_and_b32 s26, s24, 64")
        a("s_mul_i32 s26, s26, 36", "waves 0,1: V super tiles 0,1; waves 2,3: K super tiles 0,1")
        a("s_add_u32 s25, s25, s26")
        a(f"v_and_b32 v{t0}, 63, v0")
        a(f"v_lshl_add_u32 v{t0}, v{t0}, 4, s25")
        a("s_cmpk_lt_u32 s24, 128")
        a(f"s_cselect_b32 s27, {VBASE}, 0")
        a("s_waitcnt lgkmcnt(0)")
        stamp(1)
        a("s_cselect_b64 s[42:43], s[8:9], s[6:7]")
        a("s_add_u32 m0, s26, s27")
        a(f"v_add_u32 v{t1}, {2*ST}, v{t0}")
        for t in (t0, t1):
            a(f"global_load_lds_dwordx4 v{t}, s[42:43]")
            a(f"global_load_lds_dwordx4 v{t}, s[42:43] offset:1024")
            a("s_mov_b64 exec, 0xffff")
            a(f"global_load_lds_dwordx4 v{t}, s[42:43] offset:2048")
            a(ALL)
            if t == t0:
                a(f"s_add_u32 m0, m0, {2*ST}", "super tiles 2,3 follow the Q rows")
                qloads()
    else:
        a("s_lshr_b32 s25, s3, 2")
        a(f"s_mul_i32 s25, s25, {HB}")
        a("s_mul_i32 s26, s24, 20")
        a("s_add_u32 s26, s26, s25")
        a(f"v_lshl_add_u32 v{t0}, v0, 4, s26")
        a("s_mul_i32 s26, s24, 36", "super tile `wave` of V and of K")
        p1, p2 = ("s[6:7]", "s[8:9]") if kv else ("s[8:9]", "s[6:7]")
        a("s_mov_b32 m0, s26" if kv else f"s_add_u32 m0, s26, {VBASE}")
        a("s_waitcnt lgkmcnt(0)")
        stamp(1)
        a(f"global_load_lds_dwordx4 v{t0}, {p1}")
        a(f"global_load_lds_dwordx4 v{t0}, {p1} offset:1024")
        a("s_mov_b64 exec, 0xffff")
        a(f"global_load_lds_dwordx4 v{t0}, {p1} offset:2048")
        if opt.half: a(ALL)
        else:
            a(f"s_add_u32 m0, s26, {VBASE}" if kv else "s_mov_b32 m0, s26")
            a("s_nop 0")
            a(f"global_load_lds_dwordx4 v{t0}, {p2} offset:2048")
            a(ALL)
            a(f"global_load_lds_dwordx4 v{t0}, {p2}")
            a(f"global_load_lds_dwordx4 v{t0}, {p2} offset:1024")
        qloads()
    a.lab("L_setup")
    if opt.stamp:
        a("s_load_dwordx2 s[40:41], s[0:1], 40")
        if opt.stamp == 3:
            for i in range(62, 74): a(f"s_mov_b32 s{i}, 0")
    a(f"v_lshlrev_b32 v{vSlot}, 3, v0")
    a("v_and_b32 v0, 63, v0")
    a("s_lshr_b32 s24, s24, 6", "wave id")
    a("s_lshr_b32 s25, s3, 2")
    a(f"s_mul_i32 s25, s25, {HB}", "head byte offset")
    a("s_lshl3_add_u32 s26, s3, s24")
    a(f"s_mul_i32 s26, s26, {ST}", "output byte offset of this wave")
    a(f"v_lshlrev_b32 v{vDma}, 4, v0")
    a("s_cmp_lt_u32 s24, 4")
    a("s_cselect_b32 s28, 8, 0")
    a("s_add_u32 s28, s28, s24")
    a(f"s_mul_i32 s27, s28, {ST}", "byte offset of this wave's next super tile to load")
    a(f"s_mov_b32 s18, {HB}")
    a("s_mov_b32 s19, 0x00020000")
    a(f"s_mov_b32 s46, {HB}")
    a("s_mov_b32 s47, 0x00020000")
    a(f"s_movk_i32 s22, {ST}")
    a("s_mov_b32 s23, 0x00020000")
    def dma():
        a("s_mov_b32 m0, s27")
        a("s_nop 0")
        a(f"buffer_load_dwordx4 v{vDma}, s[16:19], s27 offen lds")
        a(f"buffer_load_dwordx4 v{vDma}, s[16:19], s27 offen offset:1024 lds")
        a("s_mov_b64 exec, 0xffff")
        a(f"buffer_load_dwordx4 v{vDma}, s[16:19], s27 offen offset:2048 lds")
        a("s_add_u32 m0, s27, s18")
        a("s_nop 0")
        a(f"buffer_load_dwordx4 v{vDma}, s[44:47], s27 offen offset:2048 lds")
        a(ALL)
        a(f"buffer_load_dwordx4 v{vDma}, s[44:47], s27 offen lds")
        a(f"buffer_load_dwordx4 v{vDma}, s[44:47], s27 offen offset:1024 lds")
        a(f"s_add_u32 s27, s27, {8*ST}")
    def tr_read():
        for u in range(2):
            for j in range(2):
                for p in range(2):
                    a(f"ds_read_b64_tr_b16 {vr(TR+8*u+4*j+2*p,2)}, v{vR} offset:{40*u + (4*j+p)*72}")
    def tr_write(step):
        a(ROWS)
        for j in range(2): a(f"ds_write_b128 v{vWE}, {vr(TR+4*j,4)} offset:{576*j}")
        a("s_mov_b64 exec, s[14:15]")
        for j in range(2): a(f"ds_write_b128 v{vWO}, {vr(TR+8+4*j,4)} offset:{576*j}")
        a(ALL)
        if step == 8: a("s_setprio 3")
        if step:
            for r in (vR, vWE, vWO): a(f"v_add_u32 v{r}, {step*ST}, v{r}")
    a("s_waitcnt lgkmcnt(0)")
    a("s_add_u32 s16, s6, s25")
    a("s_addc_u32 s17, s7, 0")
    a("s_add_u32 s44, s8, s25")
    a("s_addc_u32 s45, s9, 0")
    a("s_add_u32 s20, s10, s26")
    a("s_addc_u32 s21, s11, 0")
    C = Sr['E']
    t3, t4, t5 = C + 4, C + 5, C + 6
    a(f"v_mov_b32 v{QX['E']}, 0"); a(f"v_mov_b32 v{QX['E']+1}, 0")
    a(f"v_and_b32 v{t0}, 31, v0", "MFMA row m")
    a(f"v_lshrrev_b32 v{t1}, 5, v0", "half wave h")
    a(f"v_mfma_f32_32x32x4_2b_bf16 {vr(120,32)}, {vr(QX['E'],2)}, {vr(QX['E'],2)}, 0")
    a(f"v_cmp_eq_u32 vcc, 20, v{t0}")
    a(f"v_mov_b32 v{t4}, 0x3f803f80")
    a("s_mov_b32 s12, 0x0003ffff"); a("s_mov_b32 s13, 0x0003ffff")
    a("s_mov_b32 s14, 0x00c0ffff"); a("s_mov_b32 s15, 0x00c0ffff")
    a(f"v_cndmask_b32 v40, 0, v{t4}, vcc")
    a(f"v_cndmask_b32 v41, 0, v{t4}, vcc")
    for r in list(range(42, 56, 2)) + list(range(168, 176, 2)): a(f"v_pk_mov_b32 {vr(r,2)}, v[40:41], v[40:41]")
    a(f"v_and_b32 v{t3}, 3, v0")
    a(f"v_lshrrev_b32 v{t4}, 2, v{t0}")
    a(f"v_lshl_add_u32 v{t4}, v{t3}, 3, v{t4}")
    a(f"v_mul_u32_u24 v{vK}, 72, v{t4}")
    a(f"v_lshl_add_u32 v{vK}, v{t1}, 4, v{vK}")
    a(f"v_bfe_u32 v{t4}, v0, 3, 1")
    a(f"v_lshl_add_u32 v{t3}, v{t4}, 2, v{t3}")
    a(f"v_and_b32 v{t4}, 4, v0")
    a(f"v_lshlrev_b32 v{t4}, 1, v{t4}")
    a(f"v_sub_u32 v{t3}, v{t3}, v{t4}")
    a(f"v_add_u32 v{t3}, 8, v{t3}")
    a(f"v_cmp_lt_u32 vcc, 15, v{t0}")
    a(f"v_and_b32 v{t4}, 1, v0")
    a(f"v_add_u32 v{t4}, 16, v{t4}")
    a(f"v_cndmask_b32 v{t3}, v{t3}, v{t4}, vcc")
    a(f"v_mul_u32_u24 v{t5}, 18, v{t1}")
    a("s_cmp_lt_u32 s24, 4")
    a(f"s_cselect_b32 s29, 0, {4*ST}")
    a("s_sub_u32 s29, s27, s29")
    a("s_add_u32 s29, s29, s18", "first V super tile this wave transposes")
    for sub, dst, extra in ((4, vWE, 0), (2, vWO, 72)):
        a(f"v_subrev_u32 v{t4}, {sub}, v{t3}")
        a(f"v_add_u32 v{dst}, 18, v{t4}")
        a(f"v_min_u32 v{t4}, v{t4}, v{dst}")
        a(f"v_add_u32 v{t4}, v{t4}, v{t5}")
        if extra: a(f"v_add_u32 v{t4}, {extra}, v{t4}")
        else: a(f"v_lshl_add_u32 v{vV}, v{t4}, 4, s18")
        a(f"v_lshl_add_u32 v{dst}, v{t4}, 4, s29")
    a(f"v_and_b32 v{t3}, 12, v0")
    a(f"v_add_lshl_u32 v{t3}, v{t3}, v{t1}, 1")
    a(f"v_mul_u32_u24 v{t3}, 72, v{t3}")
    a(f"v_and_b32 v{t4}, 1, v0")
    a(f"v_lshlrev_b32 v{t4}, 4, v{t4}")
    a(f"v_sub_u32 v{t3}, v{t3}, v{t4}")
    a(f"v_and_b32 v{t4}, 2, v0")
    a(f"v_lshl_add_u32 v{t3}, v{t4}, 2, v{t3}")
    a(f"v_and_b32 v{t4}, 16, v0")
    a(f"v_add3_u32 v{t3}, v{t4}, v{t3}, s29")
    a(f"v_add_u32 v{t4}, 16, v{t3}")
    a(f"v_subrev_u32 v{t3}, 8, v{t3}")
    a("s_mov_b32 vcc_lo, 0x22220000"); a("s_mov_b32 vcc_hi, 0x22220000")
    a(f"v_cndmask_b32 v{t3}, v{t4}, v{t3}, vcc")
    a(f"v_mov_b32 v{t4}, {OOR:#x}")
    a("s_mov_b32 vcc_lo, 0xcccc0000"); a("s_mov_b32 vcc_hi, 0xcccc0000")
    a(f"v_cndmask_b32 v{vR}, v{t3}, v{t4}, vcc")
    for r in list(KXr.values()) + list(KX0.values()): a(f"v_mov_b32 v{r+1}, 0x3f80")
    for par in 'EO': a(f"v_mov_b32 v{QX[par]+1}, {f2u(opt.xs) >> 16:#x}", "constant softmax shift")
    a(f"v_mov_b32 v{vIdx}, 0xdddd", "sparse index: elements 1 and 3 of every group of four")
    a(f"v_mov_b32 v{vInc}, {ST}")
    a(f"v_mov_b32 v{vInc+1}, {ST}")
    a(f"v_add_u32 v{C+2}, v{vK}, v{vInc}")
    a(f"v_add_u32 v{C+3}, v{vV}, v{vInc}")
    a(f"v_add_u32 v{vSlot}, {ABASE}, v{vSlot}")
    a(f"ds_write_b64 v{vSlot}, {vr(C+2,2)}", "address counters, stepped by ds_add_rtn_u64")
    a(f"s_mul_i32 s28, s24, {ST}")
    a(f"v_mul_u32_u24 v{vStA}, 36, v{t0}")
    a(f"v_lshlrev_b32 v{t4}, 4, v{t1}")
    a(f"v_sub_u32 v{vStA}, v{vStA}, v{t4}")
    a(f"v_add3_u32 v{vStA}, v{vStA}, 16, s28")
    a(f"v_add_u32 v{vStB}, 1152, v{vStA}")
    a(f"v_add_u32 v{vStR}, s28, v{vDma}")
    a(f"s_mov_b32 s30, {CSCALE:#x}", "log2(e)/sqrt(18)"); a(f"s_mov_b32 s31, {CSCALE:#x}")
    a("s_mov_b32 s29, 1", "super tile counter")
    a("s_mov_b32 s32, 0x8088", "barrier schedule")
    a("s_mov_b32 s33, 0x80008088")
    a("s_mov_b32 s38, 0x8000ddd0", "iterations with extra work, role A")
    a("s_mov_b32 s39, 0x8000dddc", "role B")
    a("s_mov_b32 s34, 0xffff0000")
    a("s_mov_b32 s35, 0x7b800000", "2^120")
    a("s_mov_b64 vcc, 0")
    a("s_cmp_ge_u32 s24, 4", "SCC = role B (kept until the loops)")
    bump = f"ds_add_rtn_u64 {vr(vK,2)}, v{vSlot}, {vr(vInc,2)}"
    bK, bX = rd_k('E', 1) + rd_k('O', 1), rd_kx(1)
    bV = rd_v('O', 0) + rd_v('E', 1)
    late = []; lateA = []
    if hv:
        AL['on'] = True
        rdK0 = rd_kx(0) + rd_k('E', 0) + rd_k('O', 0) + bX + bK
        rdV0 = [ROWS] + rd_v('E', 0) + bV + [ALL, bump]
        if opt.amp: stamp(9)
        a("s_cbranch_scc0 L_vA")
        a("s_cmp_ge_u32 s24, 6")
        a("s_cbranch_scc1 L_v67")
        a("s_barrier", "super tiles 0,1 are in")
        tr_read()
        qloads()
        a("s_waitcnt lgkmcnt(0)")
        tr_write(0)
        a("s_waitcnt lgkmcnt(0)")
        stamp(2)
        a("s_barrier", "V super tiles 0,1 are transposed, super tiles 2,3 are in")
        a("s_branch L_vB")
        a.lab("L_v67")
        a("s_barrier", "super tiles 0,1 are in")
        qloads()
        stamp(2)
        a("s_barrier", "V super tiles 0,1 are transposed, super tiles 2,3 are in")
        tr_read()
        a("s_waitcnt lgkmcnt(0)")
        tr_write(0)
        a("s_waitcnt lgkmcnt(0)")
        a.lab("L_vB")
        for f in rdK0: a(f)
        a("s_waitcnt lgkmcnt(8)")
        for f in rdV0: a(f)
        a("s_barrier", "V super tiles 2,3 are transposed")
        a("s_setprio 3")
        for r in (vR, vWE, vWO): a(f"v_add_u32 v{r}, {4*ST}, v{r}")
        a("s_cmp_ge_u32 s24, 4")
        a("s_waitcnt vmcnt(0)")
        a("s_branch L_prep")
        a.raw("    .p2align 3")
        a.lab("L_vA")
        a("s_waitcnt vmcnt(6)")
        stamp(2)
        a("s_barrier", "super tiles 0,1 are in")
        if opt.amp: stamp(10)
        for f in rdK0: a(f)
        a.lab("L_prep")
        lateA = ["s_waitcnt vmcnt(0)", "s_barrier"] + rdV0
    elif kv:
        a(f"s_waitcnt vmcnt({3 if opt.half else 6})")
        a("s_barrier", "K super tiles 0..3 are in: role B starts its Q loads")
        a("s_cbranch_scc0 L_noq")
        qloads()
        a.lab("L_noq")
        AL['on'] = True
        for f in rd_kx(0) + rd_k('E', 0) + rd_k('O', 0) + bX + bK: a(f)
        rdV0 = [ROWS] + rd_v('E', 0) + bV + [ALL, bump]
        a("s_cbranch_scc0 L_vA")
        a("s_waitcnt lgkmcnt(0)")
        stamp(2)
        a("s_barrier", "V super tiles 0..3 are in")
        tr_read()
        a("s_waitcnt lgkmcnt(0)")
        tr_write(0)
        a("s_waitcnt lgkmcnt(0)")
        a("s_barrier", "V super tiles 0..3 are transposed")
        for f in rdV0: a(f)
        a("s_setprio 3")
        for r in (vR, vWE, vWO): a(f"v_add_u32 v{r}, {4*ST}, v{r}")
        a("s_branch L_prep")
        a.raw("    .p2align 3")
        a.lab("L_vA")
        a("s_waitcnt vmcnt(3) lgkmcnt(0)")
        stamp(2)
        a("s_barrier", "V super tiles 0..3 are in")
        a.lab("L_prep")
        lateA = ["s_barrier"] + rdV0
    else:
        if opt.amp: stamp(9)
        a(f"s_waitcnt vmcnt({3 if opt.half else 6})")
        a("s_barrier", "V super tiles 0..3 are in: role B transposes them and starts its Q loads")
        if opt.amp: stamp(10)
        a("s_cbranch_scc0 L_noq")
        tr_read()
        qloads()
        a("s_waitcnt lgkmcnt(0)")
        tr_write(4)
        a.lab("L_noq")
        a.raw("    .p2align 3")
        a("s_waitcnt vmcnt(3) lgkmcnt(0)")
        stamp(2)
        a("s_barrier", "K super tiles 0..3 are in, V super tiles 0..3 are transposed")
        AL['on'] = True
        if opt.split:
            for f in rd_kx(0) + rd_k('E', 0) + rd_k('O', 0) + [ROWS, "s_setprio 3"] + rd_v('E', 0) + [ALL]: a(f)
            lgkm(4)
            late = bK + [LOW] + bX + [ROWS] + bV + [ALL, bump]
        else:
            for f in rd_kx(0) + rd_k('E', 0) + rd_k('O', 0) + bX + bK: a(f)
            a(ROWS)
            lgkm(8)
            for f in rd_v('E', 0) + bV + [ALL, "s_setprio 3", bump]: a(f)
    stamp(3)
    W = T + 10
    QAE, QBE, QAO, QBO = Qr[('A','E')], Qr[('B','E')], Qr[('A','O')], Qr[('B','O')]
    def shl(j): a(f"v_lshlrev_b32 v{W+2*j}, 16, v{T+j}")
    def msk(j): a(f"v_and_b32 v{W+2*j+1}, s34, v{T+j}")
    def mul(j): a(f"v_pk_mul_f32 {vr(W+2*j,2)}, {vr(W+2*j,2)}, s[30:31]")
    def cvt(j, d): a(f"v_cvt_pk_bf16_f32 v{d}, v{W+2*j}, v{W+2*j+1}")
    a(f"s_waitcnt vmcnt(3) lgkmcnt({0 if smem else 8})" if hv else "s_waitcnt vmcnt(0)")
    stamp(4)
    shl(8)
    a(f"v_and_b32_e64 v{W+17}, s34, v{T+8}")
    mul(8); cvt(8, QX['E'])
    shl(0); msk(0)
    a(mf_x('E'))
    cvt(8, QBO + 3)
    for j in range(1, 8): shl(j); msk(j)
    for j in range(8): mul(j)
    for j in range(4): cvt(j, QAE + j)
    for j in range(4): cvt(4 + j, QBE + j)
    for j in range(4): a(f"v_permlane32_swap_b32 v{QAE+j}, v{QBE+j}")
    cvt(4, QAO + 3)
    cvt(0, QX['O'])
    a(mf_q('A', 'E'))
    a("s_waitcnt lgkmcnt(0)")
    a(f"v_permlane32_swap_b32 v{QAO+3}, v{QBO+3}")
    for j in range(0, 3): a(f"v_mov_b32 v{QAO+j}, v{QAE+j+1}")
    for j in range(0, 3): a(f"v_mov_b32 v{QBO+j}, v{QBE+j+1}")
    a(mf_q('B', 'E'))
    for f in late: a(f)
    a("s_cbranch_scc1 L_startB")
    a("s_setprio 2")
    for f in lateA: a(f)
    if not late and not lateA: a("s_nop 0")
    cut = opt.cut
    pos0 = int(opt.pos.split(',')[0])
    assert cut > pos0
    a.lab("L_first")
    if opt.kexp:
        a("s_waitcnt lgkmcnt(0)")
        if opt.kexp != 9:
            a(f"v_add_u32 v{vK}, {ST}, v{vDma}")
        else:
            a(f"v_add_u32 v{vK}, 0, v{vK}")
        a(f"v_add_u32 v{vT2}, v{vK}, v{vInc}")
        a(f"ds_write_b32 v{vSlot}, v{vT2}")
        if opt.kexp != 9:
            bK = [f"ds_read_b128 {vr(Kr['E'],4)}, v{vK} offset:{ST}", f"ds_read_b128 {vr(Kr['O'],4)}, v{vK} offset:{ST+1024}"]
            bX = ["s_lshl_b32 m0, s29, 8", ALL, f"ds_read_addtid_b32 v{KXr['E']} offset:4096"] + ["s_nop 0"] * 4
        if opt.kexp == 2: bump = f"ds_add_rtn_u32 v{vK}, v{vSlot}, v{vInc}"
    stamp(5)
    for (i, k_, s_) in phase_list('E', opt):
        if lateA and 'smfmac' in s_ and i > pos0:
            a("s_waitcnt lgkmcnt(0)"); lateA = None
        if not (i == pos0 and k_ == 'm'): a(s_)
        if late and 'smfmac' in s_ and i > 25: a("s_waitcnt lgkmcnt(0)")
    for (i, k_, s_) in phase_list('O', opt):
        if i < cut: a(s_)
    AL['on'] = False
    pE, pO = phase_list('E', opt), phase_list('O', opt)
    seg = [s_ for (i, k_, s_) in pO if i >= cut] + [s_ for (i, k_, s_) in pE] + [s_ for (i, k_, s_) in pO if i < cut]
    npv = 0
    for s_ in seg:
        a(s_)
        if hv and 'smfmac' in s_:
            npv += 1
            if npv == opt.b3:
                a("s_cbranch_scc1 L_nob3")
                a("s_barrier", "V super tiles 2,3 are transposed")
                a.lab("L_nob3")
    a("s_cbranch_scc0 L_topA")
    a("s_branch L_topB")
    a.lab("L_startB")
    a("s_setprio 1")
    dma()
    a("s_cmp_ge_u32 s24, 4")
    a("s_branch L_first")
    a.lab("L_ev")
    a("s_bitcmp1_b32 s29, 0")
    a("s_cbranch_scc1 L_evW")
    a("s_bitcmp1_b32 s29, 1")
    a("s_cbranch_scc0 L_evD")
    a("s_waitcnt vmcnt(0) lgkmcnt(7)")
    tr_read()
    a.lab("L_evx")
    a("s_cmp_ge_u32 s24, 4")
    a("s_cbranch_scc0 L_backA")
    a("s_setprio 1")
    a("s_branch L_backB")
    a.lab("L_evW")
    a("s_cmp_eq_u32 s29, 31")
    a("s_cbranch_scc1 L_ev31")
    tr_write(8)
    a("s_setprio 0")
    a("s_branch L_evx")
    a.lab("L_evD")
    dma()
    a("s_branch L_evx")
    a.lab("L_ev31")
    a("s_mov_b64 vcc, 1", "last segment: it runs on into the tail")
    a("s_waitcnt lgkmcnt(0)")
    for f in [ROWS] + rd_v('T', 0) + [ALL]: a(f)
    a("s_branch L_evx")
    for role in 'AB':
        a.raw("    .p2align 6")
        pad = opt.padA if role == 'A' else opt.padB
        if pad: a.raw(f"    .fill {pad}, 4, 0xbf800000    ; never executed: sets the loop's fetch alignment")
        a.lab(f"L_top{role}")
        if role == 'A': a("s_setprio 0")
        a("s_add_u32 s29, s29, 1")
        if opt.itst: a("s_memtime s[48:49]")
        for f in bK + [LOW] + bX + [ROWS] + bV + [ALL, bump]: a(f)
        a(f"s_bitcmp1_b32 {'s38' if role == 'A' else 's39'}, s29")
        a("s_cbranch_scc1 L_ev")
        a.lab(f"L_back{role}")
        a(f"s_bitcmp1_b32 {'s33' if role == 'A' else 's32'}, s29", "SCC: a barrier follows this " + ("segment" if role == 'A' else "burst"))
        a("s_waitcnt lgkmcnt(0)")
        if opt.itst:
            a("s_mov_b32 m0, s29"); a("s_nop 0"); a("s_movreld_b32 s62, s48"); a("s_nop 0"); a("s_nop 0"); a("s_nop 0")
        if role == 'B':
            a("s_cbranch_scc0 L_segB")
            a("s_barrier")
        a.lab(f"L_seg{role}")
        first = True
        for s_ in seg:
            a(s_)
            if first and role == 'A' and 'smfmac' in s_:
                a("s_setprio 2"); first = False
        if role == 'A':
            a("s_cbranch_scc0 L_topA")
            a("s_cbranch_vccnz L_tail")
            a("s_barrier")
            a("s_branch L_topA")
        else:
            a("s_cbranch_vccz L_topB")
    R = Sr['E']
    PK = {'A': Sr['E'] + 8, 'B': Sr['E'] + 14}
    OB = Sr['E'] + 20
    def finish(t, fill=None):
        O = Or[t]
        rc = R + 2 if t == 'A' else R + 4
        a(f"v_pk_mov_b32 {vr(rc,2)}, {vr(O+8,2)}, {vr(O+8,2)} op_sel:[0,0]", "denominator sits in the upper half wave")
        for f in (fill or ["s_nop 1"]): a(f)
        a(f"v_permlane32_swap_b32 v{rc}, v{rc+1}")
        a(f"v_rcp_f32 v{rc}, v{rc+1}")
    def finish2(t):
        O = Or[t]
        rc = R + 2 if t == 'A' else R + 4
        for j in (8, 0, 2, 4, 6):
            a(f"v_pk_mul_f32 {vr(O+j,2)}, {vr(O+j,2)}, {vr(rc,2)} op_sel_hi:[1,0]")
        st = vStA if t == 'A' else vStB
        for j in (4, 0, 1, 2, 3):
            a(f"v_cvt_pk_bf16_f32 v{PK[t]+j}, v{O+2*j}, v{O+2*j+1}")
        a(f"ds_write_b32 v{st}, v{PK[t]+4} offset:16", "upper half's word is overwritten by the next write")
        a(f"ds_write2_b32 v{st}, v{PK[t]}, v{PK[t]+1} offset0:0 offset1:1")
        a(f"ds_write2_b32 v{st}, v{PK[t]+2}, v{PK[t]+3} offset0:2 offset1:3")
        if t == 'A':
            a(f"ds_read_b128 {vr(OB,4)}, v{vStR}")
        else:
            a(f"ds_read_b128 {vr(OB+4,4)}, v{vStR} offset:1024")
            a(f"ds_read_b128 {vr(OB+8,4)}, v{vStR} offset:2048")
    def store(k): return f"buffer_store_dwordx4 {vr(OB+4*k,4)}, v{vDma}, s[20:23], 0 offen offset:{1024*k} sc1"
    a.lab("L_tail")
    tm = {10: mf_pv('A', 'O', 0, 'T'), 18: mf_pv('A', 'O', 1, 'T'), 26: mf_pv('B', 'O', 0, 'T')}
    for i in range(cut, 29):
        if i in tm: a(tm[i])
        a(ex('O', i))
    finish('A', [ex('O', 29), ex('O', 30)])
    a(ex('O', 31).replace("v_exp_f32", "v_exp_f32_e64"))
    stamp(6)
    n0 = len(a.l)
    finish2('A')
    a.l.insert(n0 + 5, "    " + mf_pv('B', 'O', 1, 'T'))
    if opt.tv < 0:
        a("s_nop 0")
        lgkm(0)
        a(store(0))
        finish('B')
        a("s_nop 0")
        finish2('B')
    else:
        a("s_nop 1"); a("s_nop 0")
        finish('B')
        a("s_nop 0")
        n0 = len(a.l)
        finish2('B')
        a.l[n0+opt.tv:n0+opt.tv] = ["    s_waitcnt lgkmcnt(0)", "    " + store(0), "    s_nop 0"]
    lgkm(1)
    a(store(1))
    lgkm(0)
    a(store(2))
    stamp(7)
    a("s_setprio 0")
    for t in 'AB':
        for j in range(5): a(f"v_dot2c_f32_bf16 v{R+3 if t == 'A' else R+5}, 0, v{PK[t]+j}")
    a(f"v_cmp_nge_f32 s[36:37], v{R+3}, 1.0")
    a(f"v_cmp_nle_f32 vcc, v{R+3}, s35")
    a("s_or_b64 s[36:37], s[36:37], vcc")
    a(f"v_cmp_nge_f32 s[38:39], v{R+5}, 1.0")
    a(f"v_cmp_nle_f32 vcc, v{R+5}, s35")
    a("s_or_b64 s[36:37], s[36:37], s[38:39]")
    a("s_or_b64 s[36:37], s[36:37], vcc")
    if not (opt.kexp or opt.half): a("s_cbranch_scc1 L_slow")
    a.lab("L_done")
    if opt.amp:
        a("s_waitcnt vmcnt(0)")
        stamp(8)
        a("s_memrealtime s[42:43]")
        a("s_waitcnt lgkmcnt(0)")
        a(f"s_sub_u32 s50, s{60+2*opt.ampb}, s{60+2*opt.ampa}")
        a(f"s_max_u32 s50, s50, {opt.ampbase}")
        a(f"s_sub_u32 s50, s50, {opt.ampbase}")
        a("s_load_dwordx2 s[54:55], s[0:1], 32")
        a(f"s_cmp_lg_u32 s24, {3 if opt.ampr == 'A' else 7}")
        a("s_cbranch_scc1 L_end")
        a("s_add_u32 s51, s50, 0x1000000")
        a("s_mov_b64 exec, 1")
        a("v_mov_b32 v16, s51"); a("v_mov_b32 v17, 0")
        a("s_waitcnt lgkmcnt(0)")
        a("global_atomic_add v18, v17, v16, s[54:55] sc0 sc1")
        a("s_waitcnt vmcnt(0)")
        a("v_readfirstlane_b32 s51, v18")
        a("s_nop 3")
        a("s_add_u32 s50, s50, s51")
        a("s_and_b32 s50, s50, 0xffffff")
        a(f"s_mul_i32 s50, s50, {opt.amp}")
        a("s_lshr_b32 s50, s50, 8")
        a("s_lshr_b32 s51, s51, 24")
        a("s_cmp_lg_u32 s51, 255")
        a("s_cselect_b32 s50, 0, s50")
        a("s_min_u32 s50, s50, 20000")
        a.lab("L_spin")
        a("s_sleep 2")
        a("s_memrealtime s[52:53]")
        a("s_waitcnt lgkmcnt(0)")
        a("s_sub_u32 s51, s52, s42")
        a("s_cmp_lt_u32 s51, s50")
        a("s_cbranch_scc1 L_spin")
    if opt.itst:
        a("s_load_dwordx2 s[40:41], s[0:1], 40")
        for i in range(32): a(f"v_writelane_b32 v16, s{62+i}, {i}")
        a("s_lshl_b32 s50, s2, 3"); a("s_add_u32 s50, s50, s24"); a("s_lshl_b32 s50, s50, 8")
        a(f"v_lshrrev_b32 v1, 2, v{vDma}")
        a("v_add_u32 v1, s50, v1")
        a("s_waitcnt lgkmcnt(0)")
        a("global_store_dword v1, v16, s[40:41]")
    if opt.stamp:
        a("s_mov_b64 exec, 1")
        a("s_waitcnt vmcnt(0)")
        stamp(8)
        a("s_memrealtime s[58:59]")
        a("s_getreg_b32 s42, hwreg(HW_REG_HW_ID)")
        a("s_getreg_b32 s43, hwreg(HW_REG_XCC_ID)")
        a("s_waitcnt lgkmcnt(0)")
        for i, sr in enumerate((56, 58, 42, 43, 60, 62, 64, 66, 68, 70, 72, 74, 76)):
            a(f"v_mov_b32 v{16+i}, s{sr}")
        a("s_lshl_b32 s50, s2, 3"); a("s_add_u32 s50, s50, s24"); a("s_lshl_b32 s50, s50, 6")
        a("v_mov_b32 v1, s50")
        for i in range(4): a(f"global_store_dwordx4 v1, v[{16+4*i}:{19+4*i}], s[40:41] offset:{16*i}")
    a.lab("L_end")
    a("s_endpgm")
    a.lab("L_slow")
    a("s_waitcnt vmcnt(0)")
    mA, mB = 0, vSlot
    def rewind(n):
        a(f"v_subrev_u32 v{vK}, {n*ST}, v{vK}")
        a(f"v_subrev_u32 v{vV}, {n*ST}, v{vV}")
        a("s_mov_b32 s29, 0")
    def scores():
        a(f"buffer_load_dword v{KXr['E']}, v{vK}, s[16:19], 0 offen offset:32")
        a(f"buffer_load_dword v{KXr['O']}, v{vK}, s[16:19], 0 offen offset:36")
        a(f"buffer_load_dwordx4 {vr(Kr['E'],4)}, v{vK}, s[16:19], 0 offen")
        a(f"buffer_load_dwordx4 {vr(Kr['O'],4)}, v{vK}, s[16:19], 0 offen offset:40")
        a("s_waitcnt vmcnt(0) lgkmcnt(0)")
        a(mf_x('E')); a(mf_x('O'))
        a("s_nop 15"); a("s_nop 3")
        for par in 'EO':
            for t in 'AB': a(mf_q(t, par))
        a("s_nop 15")
    def step(lab):
        a(f"v_add_u32 v{vK}, v{vInc}, v{vK}")
        a(f"v_add_u32 v{vV}, v{vInc}, v{vV}")
        a("s_add_u32 s29, s29, 1")
        a("s_cmp_lg_u32 s29, 32")
        a(f"s_cbranch_scc1 {lab}")
    rewind(31)
    a(f"v_mov_b32 v{mA}, 0xff800000"); a(f"v_mov_b32 v{mB}, 0xff800000")
    a.lab("L_max")
    scores()
    for par in 'EO':
        for t, m in (('A', mA), ('B', mB)):
            s = Sr[par] + (16 if t == 'B' else 0)
            for j in range(0, 16, 2): a(f"v_max3_f32 v{m}, v{m}, v{s+j}, v{s+j+1}")
    step("L_max")
    for m in (mA, mB):
        a(f"v_mov_b32 v{vT2}, v{m}")
        a("s_nop 1")
        a(f"v_permlane32_swap_b32 v{vT2}, v{m}")
        a("s_nop 1")
        a(f"v_max_f32 v{m}, v{m}, v{vT2}")
    rewind(32)
    for r in range(120, 152): a(f"v_mov_b32 v{r}, 0")
    a.lab("L_acc")
    for f in [ROWS] + rd_v('E', 0) + rd_v('O', 0) + [ALL]: a(f)
    scores()
    for par in 'EO':
        for t, m in (('A', mA), ('B', mB)):
            s = Sr[par] + (16 if t == 'B' else 0)
            for j in range(16): a(f"v_sub_f32 v{s+j}, v{s+j}, v{m}")
            for j in range(16): a(f"v_exp_f32 v{s+j}, v{s+j}")
    a("s_nop 1")
    for par in 'EO':
        for t in 'AB':
            for j in range(2): a(mf_pv(t, par, j))
    step("L_acc")
    a("s_nop 15")
    for t in 'AB':
        finish(t); a("s_nop 0"); finish2(t)
    a("s_waitcnt lgkmcnt(0)")
    for k in range(3): a(store(k))
    a("s_branch L_done")
    a.raw(f""".section .rodata,"a"
.p2align 6
.amdhsa_kernel {NAME}_kernel
  .amdhsa_next_free_vgpr {NV}
  .amdhsa_next_free_sgpr {100 if (opt.stamp or opt.amp or opt.itst) else 48}
  .amdhsa_accum_offset {NV}
  .amdhsa_group_segment_fixed_size 0
  .amdhsa_kernarg_size 48
  .amdhsa_user_sgpr_count 2
  .amdhsa_user_sgpr_kernarg_segment_ptr 1
  .amdhsa_system_sgpr_workgroup_id_x 1
.end_amdhsa_kernel""")
    return a.text()

def parse(argv):
    p = argparse.ArgumentParser()
    p.add_argument('-o', default=f"cdna_kernels/{NAME}.s")
    p.add_argument('--cut', type=int, default=3)
    p.add_argument('--pos', default='2,5,15,18,21,31,25')
    p.add_argument('--pf', type=int, default=1)
    p.add_argument('--b3', type=int, default=2)
    p.add_argument('--half', type=int, default=0)
    p.add_argument('--kexp', type=int, default=0)
    p.add_argument('--ord', default='vkq')
    p.add_argument('--split', type=int, default=1)
    p.add_argument('--xs', type=float, default=35)
    p.add_argument('--tv', type=int, default=-1)
    p.add_argument('--padA', type=int, default=0)
    p.add_argument('--padB', type=int, default=1)
    p.add_argument('--stamp', type=int, default=0)
    p.add_argument('--itst', type=int, default=0)
    p.add_argument('--amp', type=int, default=0)
    p.add_argument('--ampt', type=int, default=0)
    p.add_argument('--ampa', type=int, default=0)
    p.add_argument('--ampb', type=int, default=8)
    p.add_argument('--ampr', default='')
    p.add_argument('--ampbase', type=int, default=44000)
    return p.parse_args(argv)

if __name__ == '__main__':
    opt = parse(sys.argv[1:])
    open(opt.o, 'w').write(gen(opt))
```

```python
import sys, struct, math, argparse

NAME = "standalone__fused_io_aware_attn__prompt"
HB = 73728
ST = 2304
VBASE = HB
ABASE = 2 * HB
LDS = ABASE + 4096
OOR = 0x28000

def f2u(x): return struct.unpack('<I', struct.pack('<f', x))[0]
CSCALE = f2u(math.log2(math.e) / math.sqrt(18.0))

vSlot, vK, vV, vInc, vIdx, vQo, vDma, vT2 = 1, 2, 3, 4, 6, 7, 14, 15
KXr = {'E': 8, 'O': 176}
QX = {'E': 10, 'O': 12}
Kr = {'E': 16, 'O': 20}
Qr = {('A', 'E'): 24, ('B', 'E'): 28, ('A', 'O'): 32, ('B', 'O'): 36}
Vr = {('E', 0): 40, ('E', 1): 44, ('O', 0): 48, ('O', 1): 52, ('T', 0): 168, ('T', 1): 172}
Sr = {'E': 56, 'O': 88}
Or = {'A': 120, 'B': 136}
TR = 152
KX0 = {'E': 178, 'O': 180}
K0 = {'E': 182, 'O': 186}
vStA, vStB, vStR, vR, vWE, vWO = 190, 191, 192, 193, 194, 195
NV = 196
AL = dict(on=False)
def kx(par): return KX0[par] if AL['on'] else KXr[par]
def kr(par): return K0[par] if AL['on'] else Kr[par]
def vv(par, j): return Vr[('T', j)] if (AL['on'] and par == 'E') else Vr[(par, j)]
def vr(b, n): return f"v[{b}:{b+n-1}]"

class Asm:
    def __init__(self): self.l = []
    def __call__(self, s, c=None): self.l.append("    " + s + (f"    ; {c}" if c else ""))
    def lab(self, s): self.l.append(s + ":")
    def raw(self, s): self.l.append(s)
    def note(self, s): self.l.append("    ; " + s)
    def text(self): return "\n".join(x.rstrip() for x in self.l) + "\n"

def mf_x(par):
    return f"v_mfma_f32_32x32x4_2b_bf16 {vr(Sr[par],32)}, {vr(kx(par),2)}, {vr(QX[par],2)}, 0 cbsz:1 abid:0"
def mf_q(t, par):
    s = Sr[par] + (16 if t == 'B' else 0)
    return f"v_mfma_f32_32x32x16_bf16 {vr(s,16)}, {vr(kr(par),4)}, {vr(Qr[(t,par)],4)}, {vr(s,16)}"
def mf_pv(t, par, j, vs=None):
    s = Sr[par] + (16 if t == 'B' else 0) + 8 * j
    return f"v_smfmac_f32_32x32x32_bf16 {vr(Or[t],16)}, {vr(vv(vs or par,j),4)}, {vr(s,8)}, v{vIdx}"
def ex(par, i): return f"v_exp_f32 v{Sr[par]+i}, v{Sr[par]+i}"
def rd_kx(u): return [f"ds_read_b32 v{kx('E')}, v{vK} offset:{u*ST+32}", f"ds_read_b32 v{kx('O')}, v{vK} offset:{u*ST+36}"]
def rd_k(par, u):
    o = u * ST + (40 if par == 'O' else 0)
    return [f"ds_read_b64 {vr(kr(par),2)}, v{vK} offset:{o}", f"ds_read_b64 {vr(kr(par)+2,2)}, v{vK} offset:{o+8}"]
def rd_v(par, u):
    return [f"ds_read_b128 {vr(vv(par,j),4)}, v{vV} offset:{u*ST + (0 if par == 'E' else 1152) + 576*j}" for j in range(2)]
ROWS = "s_mov_b64 exec, s[12:13]"
LOW = "s_mov_b32 exec_hi, 0"
ALL = "s_mov_b64 exec, -1"

def phase_list(par, opt):
    oth = 'O' if par == 'E' else 'E'
    pos = [int(x) for x in opt.pos.split(',')]
    mf = {pos[0]: mf_pv('B', oth, 1), pos[1]: mf_x(oth), pos[2]: mf_pv('A', par, 0), pos[3]: mf_pv('A', par, 1),
          pos[4]: mf_q('A', oth), pos[5]: mf_pv('B', par, 0), pos[6]: mf_q('B', oth)}
    out = []
    for i in range(32):
        if i in mf: out.append((i, 'm', mf[i]))
        out.append((i, 'e', ex(par, i)))
    return out

def gen(opt):
    a = Asm()
    def stamp(i):
        if opt.stamp and (opt.stamp != 3 or i in (0, 7, 8)): a(f"s_memtime s[{60+2*i}:{61+2*i}]")
        if opt.amp and i in (opt.ampa, opt.ampb): a(f"{'s_memrealtime' if opt.ampt else 's_memtime'} s[{60+2*i}:{61+2*i}]")
    smem = opt.stamp == 1 or (opt.amp and not (opt.ampa in (0, 7) and opt.ampb in (7, 8)))
    def lgkm(n): a(f"s_waitcnt lgkmcnt({0 if smem else n})")
    a.raw(f"""; Fused attention forward, B=2 H=32 S=2048 D=18, bf16 in/out (emitted by my own generator script).
; @launch grid=(256,1,1) block=(512,1,1) lds={LDS}
.amdgcn_target "amdgcn-amd-amdhsa--gfx950"
.text
.globl {NAME}_kernel
.p2align 8
.type {NAME}_kernel,@function
{NAME}_kernel:""")
    stamp(0)
    if opt.stamp: a("s_memrealtime s[56:57]")
    a("s_load_dwordx8 s[4:11], s[0:1], 0", "q, k, v, out")
    if opt.pf:
        a("s_getpc_b64 s[36:37]")
        a(f"v_mul_u32_u24 v{vT2}, 9, v0")
        a(f"global_load_ubyte v{vT2}, v{vT2}, s[36:37] offset:116", "pulls this kernel's code lines into L2")
    a("v_readfirstlane_b32 s24, v0", "64 * wave")
    a("s_and_b32 s3, s2, 7")
    a("s_lshr_b32 s25, s2, 3")
    a("s_lshl_b32 s3, s3, 5")
    a("s_add_u32 s3, s3, s25", "4 * head + query block")
    a("s_cmpk_ge_u32 s2, 256")
    a("s_cbranch_scc1 L_end")
    a(f"v_lshl_add_u32 v{vQo}, s3, 9, v0")
    a(f"v_mul_u32_u24 v{vQo}, 36, v{vQo}", "one Q row per lane")
    a("s_cmpk_ge_u32 s24, 256")
    a("s_cbranch_scc1 L_setup", "role B (waves 4..7) starts its loads after role A's")
    t0, t1 = Sr['E'] + 8, Sr['E'] + 9
    T = Sr['O']
    def qloads():
        a(f"global_load_dword v{T+8}, v{vQo}, s[4:5] offset:32")
        a(f"global_load_dwordx4 {vr(T,4)}, v{vQo}, s[4:5]")
        a(f"global_load_dwordx4 {vr(T+4,4)}, v{vQo}, s[4:5] offset:16")
    kv = opt.ord == 'kvq'
    hv = opt.ord == 'h'
    if hv:
        a("s_lshr_b32 s25, s3, 2")
        a(f"s_mul_i32 s25, s25, {HB}")
        a("s_and_b32 s26, s24, 64")
        a("s_mul_i32 s26, s26, 36", "waves 0,1: V super tiles 0,1; waves 2,3: K super tiles 0,1")
        a("s_add_u32 s25, s25, s26")
        a(f"v_and_b32 v{t0}, 63, v0")
        a(f"v_lshl_add_u32 v{t0}, v{t0}, 4, s25")
        a("s_cmpk_lt_u32 s24, 128")
        a(f"s_cselect_b32 s27, {VBASE}, 0")
        a("s_waitcnt lgkmcnt(0)")
        stamp(1)
        a("s_cselect_b64 s[42:43], s[8:9], s[6:7]")
        a("s_add_u32 m0, s26, s27")
        a(f"v_add_u32 v{t1}, {2*ST}, v{t0}")
        for t in (t0, t1):
            a(f"global_load_lds_dwordx4 v{t}, s[42:43]")
            a(f"global_load_lds_dwordx4 v{t}, s[42:43] offset:1024")
            a("s_mov_b64 exec, 0xffff")
            a(f"global_load_lds_dwordx4 v{t}, s[42:43] offset:2048")
            a(ALL)
            if t == t0:
                a(f"s_add_u32 m0, m0, {2*ST}", "super tiles 2,3 follow the Q rows")
                qloads()
    else:
        a("s_lshr_b32 s25, s3, 2")
        a(f"s_mul_i32 s25, s25, {HB}")
        a("s_mul_i32 s26, s24, 20")
        a("s_add_u32 s26, s26, s25")
        a(f"v_lshl_add_u32 v{t0}, v0, 4, s26")
        a("s_mul_i32 s26, s24, 36", "super tile `wave` of V and of K")
        p1, p2 = ("s[6:7]", "s[8:9]") if kv else ("s[8:9]", "s[6:7]")
        a("s_mov_b32 m0, s26" if kv else f"s_add_u32 m0, s26, {VBASE}")
        a("s_waitcnt lgkmcnt(0)")
        stamp(1)
        a(f"global_load_lds_dwordx4 v{t0}, {p1}")
        a(f"global_load_lds_dwordx4 v{t0}, {p1} offset:1024")
        a("s_mov_b64 exec, 0xffff")
        a(f"global_load_lds_dwordx4 v{t0}, {p1} offset:2048")
        if opt.half: a(ALL)
        else:
            a(f"s_add_u32 m0, s26, {VBASE}" if kv else "s_mov_b32 m0, s26")
            a("s_nop 0")
            a(f"global_load_lds_dwordx4 v{t0}, {p2} offset:2048")
            a(ALL)
            a(f"global_load_lds_dwordx4 v{t0}, {p2}")
            a(f"global_load_lds_dwordx4 v{t0}, {p2} offset:1024")
        qloads()
    a.lab("L_setup")
    if opt.stamp:
        a("s_load_dwordx2 s[40:41], s[0:1], 40")
        if opt.stamp == 3:
            for i in range(62, 74): a(f"s_mov_b32 s{i}, 0")
    a(f"v_lshlrev_b32 v{vSlot}, 3, v0")
    a("v_and_b32 v0, 63, v0")
    a("s_lshr_b32 s24, s24, 6", "wave id")
    a("s_lshr_b32 s25, s3, 2")
    a(f"s_mul_i32 s25, s25, {HB}", "head byte offset")
    a("s_lshl3_add_u32 s26, s3, s24")
    a(f"s_mul_i32 s26, s26, {ST}", "output byte offset of this wave")
    a(f"v_lshlrev_b32 v{vDma}, 4, v0")
    a("s_cmp_lt_u32 s24, 4")
    a("s_cselect_b32 s28, 8, 0")
    a("s_add_u32 s28, s28, s24")
    a(f"s_mul_i32 s27, s28, {ST}", "byte offset of this wave's next super tile to load")
    a(f"s_mov_b32 s18, {HB}")
    a("s_mov_b32 s19, 0x00020000")
    a(f"s_mov_b32 s46, {HB}")
    a("s_mov_b32 s47, 0x00020000")
    a(f"s_movk_i32 s22, {ST}")
    a("s_mov_b32 s23, 0x00020000")
    def dma():
        a("s_mov_b32 m0, s27")
        a("s_nop 0")
        a(f"buffer_load_dwordx4 v{vDma}, s[16:19], s27 offen lds")
        a(f"buffer_load_dwordx4 v{vDma}, s[16:19], s27 offen offset:1024 lds")
        a("s_mov_b64 exec, 0xffff")
        a(f"buffer_load_dwordx4 v{vDma}, s[16:19], s27 offen offset:2048 lds")
        a("s_add_u32 m0, s27, s18")
        a("s_nop 0")
        a(f"buffer_load_dwordx4 v{vDma}, s[44:47], s27 offen offset:2048 lds")
        a(ALL)
        a(f"buffer_load_dwordx4 v{vDma}, s[44:47], s27 offen lds")
        a(f"buffer_load_dwordx4 v{vDma}, s[44:47], s27 offen offset:1024 lds")
        a(f"s_add_u32 s27, s27, {8*ST}")
    def tr_read():
        for u in range(2):
            for j in range(2):
                for p in range(2):
                    a(f"ds_read_b64_tr_b16 {vr(TR+8*u+4*j+2*p,2)}, v{vR} offset:{40*u + (4*j+p)*72}")
    def tr_write(step):
        a(ROWS)
        for j in range(2): a(f"ds_write_b128 v{vWE}, {vr(TR+4*j,4)} offset:{576*j}")
        a("s_mov_b64 exec, s[14:15]")
        for j in range(2): a(f"ds_write_b128 v{vWO}, {vr(TR+8+4*j,4)} offset:{576*j}")
        a(ALL)
        if step == 8: a("s_setprio 3")
        if step:
            for r in (vR, vWE, vWO): a(f"v_add_u32 v{r}, {step*ST}, v{r}")
    a("s_waitcnt lgkmcnt(0)")
    a("s_add_u32 s16, s6, s25")
    a("s_addc_u32 s17, s7, 0")
    a("s_add_u32 s44, s8, s25")
    a("s_addc_u32 s45, s9, 0")
    a("s_add_u32 s20, s10, s26")
    a("s_addc_u32 s21, s11, 0")
    C = Sr['E']
    t3, t4, t5 = C + 4, C + 5, C + 6
    a(f"v_mov_b32 v{QX['E']}, 0"); a(f"v_mov_b32 v{QX['E']+1}, 0")
    a(f"v_and_b32 v{t0}, 31, v0", "MFMA row m")
    a(f"v_lshrrev_b32 v{t1}, 5, v0", "half wave h")
    a(f"v_mfma_f32_32x32x4_2b_bf16 {vr(120,32)}, {vr(QX['E'],2)}, {vr(QX['E'],2)}, 0")
    a(f"v_cmp_eq_u32 vcc, 20, v{t0}")
    a(f"v_mov_b32 v{t4}, 0x3f803f80")
    a("s_mov_b32 s12, 0x0003ffff"); a("s_mov_b32 s13, 0x0003ffff")
    a("s_mov_b32 s14, 0x00c0ffff"); a("s_mov_b32 s15, 0x00c0ffff")
    a(f"v_cndmask_b32 v40, 0, v{t4}, vcc")
    a(f"v_cndmask_b32 v41, 0, v{t4}, vcc")
    for r in list(range(42, 56, 2)) + list(range(168, 176, 2)): a(f"v_pk_mov_b32 {vr(r,2)}, v[40:41], v[40:41]")
    a(f"v_and_b32 v{t3}, 3, v0")
    a(f"v_lshrrev_b32 v{t4}, 2, v{t0}")
    a(f"v_lshl_add_u32 v{t4}, v{t3}, 3, v{t4}")
    a(f"v_mul_u32_u24 v{vK}, 72, v{t4}")
    a(f"v_lshl_add_u32 v{vK}, v{t1}, 4, v{vK}")
    a(f"v_bfe_u32 v{t4}, v0, 3, 1")
    a(f"v_lshl_add_u32 v{t3}, v{t4}, 2, v{t3}")
    a(f"v_and_b32 v{t4}, 4, v0")
    a(f"v_lshlrev_b32 v{t4}, 1, v{t4}")
    a(f"v_sub_u32 v{t3}, v{t3}, v{t4}")
    a(f"v_add_u32 v{t3}, 8, v{t3}")
    a(f"v_cmp_lt_u32 vcc, 15, v{t0}")
    a(f"v_and_b32 v{t4}, 1, v0")
    a(f"v_add_u32 v{t4}, 16, v{t4}")
    a(f"v_cndmask_b32 v{t3}, v{t3}, v{t4}, vcc")
    a(f"v_mul_u32_u24 v{t5}, 18, v{t1}")
    a("s_cmp_lt_u32 s24, 4")
    a(f"s_cselect_b32 s29, 0, {4*ST}")
    a("s_sub_u32 s29, s27, s29")
    a("s_add_u32 s29, s29, s18", "first V super tile this wave transposes")
    for sub, dst, extra in ((4, vWE, 0), (2, vWO, 72)):
        a(f"v_subrev_u32 v{t4}, {sub}, v{t3}")
        a(f"v_add_u32 v{dst}, 18, v{t4}")
        a(f"v_min_u32 v{t4}, v{t4}, v{dst}")
        a(f"v_add_u32 v{t4}, v{t4}, v{t5}")
        if extra: a(f"v_add_u32 v{t4}, {extra}, v{t4}")
        else: a(f"v_lshl_add_u32 v{vV}, v{t4}, 4, s18")
        a(f"v_lshl_add_u32 v{dst}, v{t4}, 4, s29")
    a(f"v_and_b32 v{t3}, 12, v0")
    a(f"v_add_lshl_u32 v{t3}, v{t3}, v{t1}, 1")
    a(f"v_mul_u32_u24 v{t3}, 72, v{t3}")
    a(f"v_and_b32 v{t4}, 1, v0")
    a(f"v_lshlrev_b32 v{t4}, 4, v{t4}")
    a(f"v_sub_u32 v{t3}, v{t3}, v{t4}")
    a(f"v_and_b32 v{t4}, 2, v0")
    a(f"v_lshl_add_u32 v{t3}, v{t4}, 2, v{t3}")
    a(f"v_and_b32 v{t4}, 16, v0")
    a(f"v_add3_u32 v{t3}, v{t4}, v{t3}, s29")
    a(f"v_add_u32 v{t4}, 16, v{t3}")
    a(f"v_subrev_u32 v{t3}, 8, v{t3}")
    a("s_mov_b32 vcc_lo, 0x22220000"); a("s_mov_b32 vcc_hi, 0x22220000")
    a(f"v_cndmask_b32 v{t3}, v{t4}, v{t3}, vcc")
    a(f"v_mov_b32 v{t4}, {OOR:#x}")
    a("s_mov_b32 vcc_lo, 0xcccc0000"); a("s_mov_b32 vcc_hi, 0xcccc0000")
    a(f"v_cndmask_b32 v{vR}, v{t3}, v{t4}, vcc")
    for r in list(KXr.values()) + list(KX0.values()): a(f"v_mov_b32 v{r+1}, 0x3f80")
    for par in 'EO': a(f"v_mov_b32 v{QX[par]+1}, {f2u(opt.xs) >> 16:#x}", "constant softmax shift")
    a(f"v_mov_b32 v{vIdx}, 0xdddd", "sparse index: elements 1 and 3 of every group of four")
    a(f"v_mov_b32 v{vInc}, {ST}")
    a(f"v_mov_b32 v{vInc+1}, {ST}")
    a(f"v_add_u32 v{C+2}, v{vK}, v{vInc}")
    a(f"v_add_u32 v{C+3}, v{vV}, v{vInc}")
    a(f"v_add_u32 v{vSlot}, {ABASE}, v{vSlot}")
    a(f"ds_write_b64 v{vSlot}, {vr(C+2,2)}", "address counters, stepped by ds_add_rtn_u64")
    a(f"s_mul_i32 s28, s24, {ST}")
    a(f"v_mul_u32_u24 v{vStA}, 36, v{t0}")
    a(f"v_lshlrev_b32 v{t4}, 4, v{t1}")
    a(f"v_sub_u32 v{vStA}, v{vStA}, v{t4}")
    a(f"v_add3_u32 v{vStA}, v{vStA}, 16, s28")
    a(f"v_add_u32 v{vStB}, 1152, v{vStA}")
    a(f"v_add_u32 v{vStR}, s28, v{vDma}")
    a(f"s_mov_b32 s30, {CSCALE:#x}", "log2(e)/sqrt(18)"); a(f"s_mov_b32 s31, {CSCALE:#x}")
    a("s_mov_b32 s29, 1", "super tile counter")
    a("s_mov_b32 s32, 0x8088", "barrier schedule")
    a("s_mov_b32 s33, 0x80008088")
    a(f"s_mov_b32 s38, {0x8000ddd0 | (4 if opt.bm else 0):#x}", "iterations with extra work, role A")
    a("s_mov_b32 s39, 0x8000dddc", "role B")
    a("s_mov_b32 s34, 0xffff0000")
    a("s_mov_b32 s35, 0x7b800000", "2^120")
    a("s_mov_b64 vcc, 0")
    a("s_cmp_ge_u32 s24, 4", "SCC = role B (kept until the loops)")
    bump = f"ds_add_rtn_u64 {vr(vK,2)}, v{vSlot}, {vr(vInc,2)}"
    bK, bX = rd_k('E', 1) + rd_k('O', 1), rd_kx(1)
    bV = rd_v('O', 0) + rd_v('E', 1)
    late = []; lateA = []
    if hv:
        AL['on'] = True
        rdK0 = rd_kx(0) + rd_k('E', 0) + rd_k('O', 0) + bX + bK
        rdV0 = [ROWS] + rd_v('E', 0) + bV + [ALL, bump]
        if opt.amp: stamp(9)
        a("s_cbranch_scc0 L_vA")
        a("s_cmp_ge_u32 s24, 6")
        a("s_barrier", "super tiles 0,1 are in")
        a("s_cbranch_scc1 L_v1")
        tr_read()
        a.lab("L_v1")
        qloads()
        a("s_cbranch_scc1 L_v2")
        a("s_waitcnt lgkmcnt(0)")
        tr_write(0)
        a("s_waitcnt lgkmcnt(0)")
        a.lab("L_v2")
        if opt.b2s:
            stamp(2)
            a("s_barrier", "V super tiles 0,1 are transposed")
            for f in rdK0: a(f)
            a("s_waitcnt lgkmcnt(8)")
            for f in rdV0: a(f)
            a("s_waitcnt lgkmcnt(7)")
            a("s_barrier", "super tiles 2,3 are in")
        else:
            for f in rdK0: a(f)
            a("s_waitcnt lgkmcnt(0)")
            stamp(2)
            a("s_barrier", "V super tiles 0,1 are transposed, super tiles 2,3 are in")
        a("s_cbranch_scc0 L_v3")
        tr_read()
        a("s_waitcnt lgkmcnt(0)")
        tr_write(0)
        a("s_waitcnt lgkmcnt(0)")
        a.lab("L_v3")
        a("s_barrier", "V super tiles 2,3 are transposed")
        if not opt.b2s:
            for f in rdV0: a(f)
        a("s_setprio 3")
        for r in (vR, vWE, vWO): a(f"v_add_u32 v{r}, {4*ST}, v{r}")
        a("s_cmp_ge_u32 s24, 4")
        a("s_waitcnt vmcnt(0)")
        a("s_branch L_prep")
        a.raw("    .p2align 3")
        a.lab("L_vA")
        a("s_waitcnt vmcnt(6)")
        stamp(2)
        a("s_barrier", "super tiles 0,1 are in")
        if opt.amp: stamp(10)
        for f in rdK0: a(f)
        a.lab("L_prep")
        lateA = (["s_barrier"] if opt.b2s else ["s_waitcnt vmcnt(0)", "s_barrier"]) + rdV0
    elif kv:
        a(f"s_waitcnt vmcnt({3 if opt.half else 6})")
        a("s_barrier", "K super tiles 0..3 are in: role B starts its Q loads")
        a("s_cbranch_scc0 L_noq")
        qloads()
        a.lab("L_noq")
        AL['on'] = True
        for f in rd_kx(0) + rd_k('E', 0) + rd_k('O', 0) + bX + bK: a(f)
        rdV0 = [ROWS] + rd_v('E', 0) + bV + [ALL, bump]
        a("s_cbranch_scc0 L_vA")
        a("s_waitcnt lgkmcnt(0)")
        stamp(2)
        a("s_barrier", "V super tiles 0..3 are in")
        tr_read()
        a("s_waitcnt lgkmcnt(0)")
        tr_write(0)
        a("s_waitcnt lgkmcnt(0)")
        a("s_barrier", "V super tiles 0..3 are transposed")
        for f in rdV0: a(f)
        a("s_setprio 3")
        for r in (vR, vWE, vWO): a(f"v_add_u32 v{r}, {4*ST}, v{r}")
        a("s_branch L_prep")
        a.raw("    .p2align 3")
        a.lab("L_vA")
        a("s_waitcnt vmcnt(3) lgkmcnt(0)")
        stamp(2)
        a("s_barrier", "V super tiles 0..3 are in")
        a.lab("L_prep")
        lateA = ["s_barrier"] + rdV0
    else:
        if opt.amp: stamp(9)
        a(f"s_waitcnt vmcnt({3 if opt.half else 6})")
        a("s_barrier", "V super tiles 0..3 are in: role B transposes them and starts its Q loads")
        if opt.amp: stamp(10)
        a("s_cbranch_scc0 L_noq")
        tr_read()
        qloads()
        a("s_waitcnt lgkmcnt(0)")
        tr_write(4)
        a.lab("L_noq")
        a.raw("    .p2align 3")
        a("s_waitcnt vmcnt(3) lgkmcnt(0)")
        stamp(2)
        a("s_barrier", "K super tiles 0..3 are in, V super tiles 0..3 are transposed")
        AL['on'] = True
        if opt.split:
            for f in rd_kx(0) + rd_k('E', 0) + rd_k('O', 0) + [ROWS, "s_setprio 3"] + rd_v('E', 0) + [ALL]: a(f)
            lgkm(4)
            late = bK + [LOW] + bX + [ROWS] + bV + [ALL, bump]
        else:
            for f in rd_kx(0) + rd_k('E', 0) + rd_k('O', 0) + bX + bK: a(f)
            a(ROWS)
            lgkm(8)
            for f in rd_v('E', 0) + bV + [ALL, "s_setprio 3", bump]: a(f)
    stamp(3)
    W = T + 10
    QAE, QBE, QAO, QBO = Qr[('A','E')], Qr[('B','E')], Qr[('A','O')], Qr[('B','O')]
    def shl(j): a(f"v_lshlrev_b32 v{W+2*j}, 16, v{T+j}")
    def msk(j): a(f"v_and_b32 v{W+2*j+1}, s34, v{T+j}")
    def mul(j): a(f"v_pk_mul_f32 {vr(W+2*j,2)}, {vr(W+2*j,2)}, s[30:31]")
    def cvt(j, d): a(f"v_cvt_pk_bf16_f32 v{d}, v{W+2*j}, v{W+2*j+1}")
    a(f"s_waitcnt vmcnt(3) lgkmcnt({0 if smem else 8})" if hv else "s_waitcnt vmcnt(0)")
    stamp(4)
    shl(8)
    a(f"v_and_b32_e64 v{W+17}, s34, v{T+8}")
    mul(8); cvt(8, QX['E'])
    shl(0); msk(0)
    a(mf_x('E'))
    cvt(8, QBO + 3)
    for j in range(1, 8): shl(j); msk(j)
    for j in range(8): mul(j)
    for j in range(4): cvt(j, QAE + j)
    for j in range(4): cvt(4 + j, QBE + j)
    for j in range(4): a(f"v_permlane32_swap_b32 v{QAE+j}, v{QBE+j}")
    cvt(4, QAO + 3)
    cvt(0, QX['O'])
    a(mf_q('A', 'E'))
    a("s_waitcnt lgkmcnt(0)")
    a(f"v_permlane32_swap_b32 v{QAO+3}, v{QBO+3}")
    for j in range(0, 3): a(f"v_mov_b32 v{QAO+j}, v{QAE+j+1}")
    for j in range(0, 3): a(f"v_mov_b32 v{QBO+j}, v{QBE+j+1}")
    a(mf_q('B', 'E'))
    for f in late: a(f)
    a("s_cbranch_scc1 L_startB")
    a("s_setprio 2")
    for f in lateA: a(f)
    if not late and not lateA: a("s_nop 0")
    cut = opt.cut
    pos0 = int(opt.pos.split(',')[0])
    assert cut > pos0
    a.lab("L_first")
    if opt.kexp:
        a("s_waitcnt lgkmcnt(0)")
        if opt.kexp != 9:
            a(f"v_add_u32 v{vK}, {ST}, v{vDma}")
        else:
            a(f"v_add_u32 v{vK}, 0, v{vK}")
        a(f"v_add_u32 v{vT2}, v{vK}, v{vInc}")
        a(f"ds_write_b32 v{vSlot}, v{vT2}")
        if opt.kexp != 9:
            bK = [f"ds_read_b128 {vr(Kr['E'],4)}, v{vK} offset:{ST}", f"ds_read_b128 {vr(Kr['O'],4)}, v{vK} offset:{ST+1024}"]
            bX = ["s_lshl_b32 m0, s29, 8", ALL, f"ds_read_addtid_b32 v{KXr['E']} offset:4096"] + ["s_nop 0"] * 4
        if opt.kexp == 2: bump = f"ds_add_rtn_u32 v{vK}, v{vSlot}, v{vInc}"
    stamp(5)
    for (i, k_, s_) in phase_list('E', opt):
        if lateA and 'smfmac' in s_ and i > pos0:
            a("s_waitcnt lgkmcnt(0)"); lateA = None
        if not (i == pos0 and k_ == 'm'): a(s_)
        if hv and opt.b2s and k_ == 'm' and i == opt.b2s:
            assert not opt.bm
            a("s_cbranch_scc1 L_nob2")
            a("s_waitcnt vmcnt(0)")
            a("s_barrier", "super tiles 2,3 are in")
            a.lab("L_nob2")
        if late and 'smfmac' in s_ and i > 25: a("s_waitcnt lgkmcnt(0)")
    for (i, k_, s_) in phase_list('O', opt):
        if i < cut: a(s_)
    AL['on'] = False
    pE, pO = phase_list('E', opt), phase_list('O', opt)
    seg = [s_ for (i, k_, s_) in pO if i >= cut] + [s_ for (i, k_, s_) in pE] + [s_ for (i, k_, s_) in pO if i < cut]
    npv = 0
    for s_ in seg:
        a(s_)
        if hv and 'smfmac' in s_:
            npv += 1
            if npv == opt.b3:
                if not opt.bm: a("s_cbranch_scc1 L_nob3")
                a("s_barrier", "role A: V super tiles 2,3 are transposed; role B: matched in role A's first burst")
                a.lab("L_nob3")
    a("s_cbranch_scc0 L_topA")
    a("s_branch L_topB")
    if opt.bm:
        a.lab("L_evA")
        a("s_cmp_lg_u32 s29, 2")
        a("s_cbranch_scc1 L_ev")
        a("s_barrier")
        a("s_branch L_backA")
    a.lab("L_startB")
    a("s_setprio 1")
    dma()
    a("s_cmp_ge_u32 s24, 4")
    a("s_branch L_first")
    a.lab("L_ev")
    a("s_bitcmp1_b32 s29, 0")
    a("s_cbranch_scc1 L_evW")
    a("s_bitcmp1_b32 s29, 1")
    a("s_cbranch_scc0 L_evD")
    a("s_waitcnt vmcnt(0) lgkmcnt(7)")
    tr_read()
    a.lab("L_evx")
    a("s_cmp_ge_u32 s24, 4")
    a("s_cbranch_scc0 L_backA")
    a("s_setprio 1")
    a("s_branch L_backB")
    a.lab("L_evW")
    a("s_cmp_eq_u32 s29, 31")
    a("s_cbranch_scc1 L_ev31")
    tr_write(8)
    a("s_setprio 0")
    a("s_branch L_evx")
    a.lab("L_evD")
    dma()
    a("s_branch L_evx")
    a.lab("L_ev31")
    a("s_mov_b64 vcc, 1", "last segment: it runs on into the tail")
    a("s_waitcnt lgkmcnt(0)")
    for f in [ROWS] + rd_v('T', 0) + [ALL]: a(f)
    a("s_branch L_evx")
    for role in 'AB':
        a.raw("    .p2align 6")
        pad = opt.padA if role == 'A' else opt.padB
        if pad: a.raw(f"    .fill {pad}, 4, 0xbf800000    ; never executed: sets the loop's fetch alignment")
        a.lab(f"L_top{role}")
        if role == 'A': a("s_setprio 0")
        a("s_add_u32 s29, s29, 1")
        if opt.itst: a("s_memtime s[48:49]")
        for f in bK + [LOW] + bX + [ROWS] + bV + [ALL, bump]: a(f)
        a(f"s_bitcmp1_b32 {'s38' if role == 'A' else 's39'}, s29")
        a("s_cbranch_scc1 L_evA" if (opt.bm and role == 'A') else "s_cbranch_scc1 L_ev")
        a.lab(f"L_back{role}")
        a(f"s_bitcmp1_b32 {'s33' if role == 'A' else 's32'}, s29", "SCC: a barrier follows this " + ("segment" if role == 'A' else "burst"))
        a("s_waitcnt lgkmcnt(0)")
        if opt.itst:
            a("s_mov_b32 m0, s29"); a("s_nop 0"); a("s_movreld_b32 s62, s48"); a("s_nop 0"); a("s_nop 0"); a("s_nop 0")
        if role == 'B':
            a("s_cbranch_scc0 L_segB")
            a("s_barrier")
        a.lab(f"L_seg{role}")
        first = True
        for s_ in seg:
            a(s_)
            if first and role == 'A' and 'smfmac' in s_:
                a("s_setprio 2"); first = False
        if role == 'A':
            a("s_cbranch_scc0 L_topA")
            a("s_cbranch_vccnz L_tail")
            a("s_barrier")
            a("s_branch L_topA")
        else:
            a("s_cbranch_vccz L_topB")
    R = Sr['E']
    PK = {'A': Sr['E'] + 8, 'B': Sr['E'] + 14}
    OB = Sr['E'] + 20
    def finish(t, fill=None):
        O = Or[t]
        rc = R + 2 if t == 'A' else R + 4
        a(f"v_pk_mov_b32 {vr(rc,2)}, {vr(O+8,2)}, {vr(O+8,2)} op_sel:[0,0]", "denominator sits in the upper half wave")
        for f in (fill or ["s_nop 1"]): a(f)
        a(f"v_permlane32_swap_b32 v{rc}, v{rc+1}")
        a(f"v_rcp_f32 v{rc}, v{rc+1}")
    def finish2(t):
        O = Or[t]
        rc = R + 2 if t == 'A' else R + 4
        for j in (8, 0, 2, 4, 6):
            a(f"v_pk_mul_f32 {vr(O+j,2)}, {vr(O+j,2)}, {vr(rc,2)} op_sel_hi:[1,0]")
        st = vStA if t == 'A' else vStB
        for j in (4, 0, 1, 2, 3):
            a(f"v_cvt_pk_bf16_f32 v{PK[t]+j}, v{O+2*j}, v{O+2*j+1}")
        a(f"ds_write_b32 v{st}, v{PK[t]+4} offset:16", "upper half's word is overwritten by the next write")
        a(f"ds_write2_b32 v{st}, v{PK[t]}, v{PK[t]+1} offset0:0 offset1:1")
        a(f"ds_write2_b32 v{st}, v{PK[t]+2}, v{PK[t]+3} offset0:2 offset1:3")
        if t == 'A':
            a(f"ds_read_b128 {vr(OB,4)}, v{vStR}")
        else:
            a(f"ds_read_b128 {vr(OB+4,4)}, v{vStR} offset:1024")
            a(f"ds_read_b128 {vr(OB+8,4)}, v{vStR} offset:2048")
    def store(k): return f"buffer_store_dwordx4 {vr(OB+4*k,4)}, v{vDma}, s[20:23], 0 offen offset:{1024*k} sc1"
    a.lab("L_tail")
    tm = {10: mf_pv('A', 'O', 0, 'T'), 18: mf_pv('A', 'O', 1, 'T'), 26: mf_pv('B', 'O', 0, 'T')}
    for i in range(cut, 29):
        if i in tm: a(tm[i])
        a(ex('O', i))
    finish('A', [ex('O', 29), ex('O', 30)])
    a(ex('O', 31).replace("v_exp_f32", "v_exp_f32_e64"))
    stamp(6)
    n0 = len(a.l)
    finish2('A')
    a.l.insert(n0 + 5, "    " + mf_pv('B', 'O', 1, 'T'))
    if opt.tv < 0:
        a("s_nop 0")
        lgkm(0)
        a(store(0))
        finish('B')
        a("s_nop 0")
        finish2('B')
    else:
        a("s_nop 1"); a("s_nop 0")
        finish('B')
        a("s_nop 0")
        n0 = len(a.l)
        finish2('B')
        a.l[n0+opt.tv:n0+opt.tv] = ["    s_waitcnt lgkmcnt(0)", "    " + store(0), "    s_nop 0"]
    lgkm(1)
    a(store(1))
    lgkm(0)
    a(store(2))
    stamp(7)
    a("s_setprio 0")
    for t in 'AB':
        for j in range(5): a(f"v_dot2c_f32_bf16 v{R+3 if t == 'A' else R+5}, 0, v{PK[t]+j}")
    a(f"v_cmp_nge_f32 s[36:37], v{R+3}, 1.0")
    a(f"v_cmp_nle_f32 vcc, v{R+3}, s35")
    a("s_or_b64 s[36:37], s[36:37], vcc")
    a(f"v_cmp_nge_f32 s[38:39], v{R+5}, 1.0")
    a(f"v_cmp_nle_f32 vcc, v{R+5}, s35")
    a("s_or_b64 s[36:37], s[36:37], s[38:39]")
    a("s_or_b64 s[36:37], s[36:37], vcc")
    if not (opt.kexp or opt.half): a("s_cbranch_scc1 L_slow")
    a.lab("L_done")
    if opt.amp:
        a("s_waitcnt vmcnt(0)")
        stamp(8)
        a("s_memrealtime s[42:43]")
        a("s_waitcnt lgkmcnt(0)")
        a(f"s_sub_u32 s50, s{60+2*opt.ampb}, s{60+2*opt.ampa}")
        a(f"s_max_u32 s50, s50, {opt.ampbase}")
        a(f"s_sub_u32 s50, s50, {opt.ampbase}")
        a("s_load_dwordx2 s[54:55], s[0:1], 32")
        a(f"s_cmp_lg_u32 s24, {3 if opt.ampr == 'A' else 7}")
        a("s_cbranch_scc1 L_end")
        a("s_add_u32 s51, s50, 0x1000000")
        a("s_mov_b64 exec, 1")
        a("v_mov_b32 v16, s51"); a("v_mov_b32 v17, 0")
        a("s_waitcnt lgkmcnt(0)")
        a("global_atomic_add v18, v17, v16, s[54:55] sc0 sc1")
        a("s_waitcnt vmcnt(0)")
        a("v_readfirstlane_b32 s51, v18")
        a("s_nop 3")
        a("s_add_u32 s50, s50, s51")
        a("s_and_b32 s50, s50, 0xffffff")
        a(f"s_mul_i32 s50, s50, {opt.amp}")
        a("s_lshr_b32 s50, s50, 8")
        a("s_lshr_b32 s51, s51, 24")
        a("s_cmp_lg_u32 s51, 255")
        a("s_cselect_b32 s50, 0, s50")
        a("s_min_u32 s50, s50, 20000")
        a.lab("L_spin")
        a("s_sleep 2")
        a("s_memrealtime s[52:53]")
        a("s_waitcnt lgkmcnt(0)")
        a("s_sub_u32 s51, s52, s42")
        a("s_cmp_lt_u32 s51, s50")
        a("s_cbranch_scc1 L_spin")
    if opt.itst:
        a("s_load_dwordx2 s[40:41], s[0:1], 40")
        for i in range(32): a(f"v_writelane_b32 v16, s{62+i}, {i}")
        a("s_lshl_b32 s50, s2, 3"); a("s_add_u32 s50, s50, s24"); a("s_lshl_b32 s50, s50, 8")
        a(f"v_lshrrev_b32 v1, 2, v{vDma}")
        a("v_add_u32 v1, s50, v1")
        a("s_waitcnt lgkmcnt(0)")
        a("global_store_dword v1, v16, s[40:41]")
    if opt.stamp:
        a("s_mov_b64 exec, 1")
        a("s_waitcnt vmcnt(0)")
        stamp(8)
        a("s_memrealtime s[58:59]")
        a("s_getreg_b32 s42, hwreg(HW_REG_HW_ID)")
        a("s_getreg_b32 s43, hwreg(HW_REG_XCC_ID)")
        a("s_waitcnt lgkmcnt(0)")
        for i, sr in enumerate((56, 58, 42, 43, 60, 62, 64, 66, 68, 70, 72, 74, 76)):
            a(f"v_mov_b32 v{16+i}, s{sr}")
        a("s_lshl_b32 s50, s2, 3"); a("s_add_u32 s50, s50, s24"); a("s_lshl_b32 s50, s50, 6")
        a("v_mov_b32 v1, s50")
        for i in range(4): a(f"global_store_dwordx4 v1, v[{16+4*i}:{19+4*i}], s[40:41] offset:{16*i}")
    a.lab("L_end")
    a("s_endpgm")
    a.lab("L_slow")
    a("s_waitcnt vmcnt(0)")
    mA, mB = 0, vSlot
    def rewind(n):
        a(f"v_subrev_u32 v{vK}, {n*ST}, v{vK}")
        a(f"v_subrev_u32 v{vV}, {n*ST}, v{vV}")
        a("s_mov_b32 s29, 0")
    def scores():
        a(f"buffer_load_dword v{KXr['E']}, v{vK}, s[16:19], 0 offen offset:32")
        a(f"buffer_load_dword v{KXr['O']}, v{vK}, s[16:19], 0 offen offset:36")
        a(f"buffer_load_dwordx4 {vr(Kr['E'],4)}, v{vK}, s[16:19], 0 offen")
        a(f"buffer_load_dwordx4 {vr(Kr['O'],4)}, v{vK}, s[16:19], 0 offen offset:40")
        a("s_waitcnt vmcnt(0) lgkmcnt(0)")
        a(mf_x('E')); a(mf_x('O'))
        a("s_nop 15"); a("s_nop 3")
        for par in 'EO':
            for t in 'AB': a(mf_q(t, par))
        a("s_nop 15")
    def step(lab):
        a(f"v_add_u32 v{vK}, v{vInc}, v{vK}")
        a(f"v_add_u32 v{vV}, v{vInc}, v{vV}")
        a("s_add_u32 s29, s29, 1")
        a("s_cmp_lg_u32 s29, 32")
        a(f"s_cbranch_scc1 {lab}")
    rewind(31)
    a(f"v_mov_b32 v{mA}, 0xff800000"); a(f"v_mov_b32 v{mB}, 0xff800000")
    a.lab("L_max")
    scores()
    for par in 'EO':
        for t, m in (('A', mA), ('B', mB)):
            s = Sr[par] + (16 if t == 'B' else 0)
            for j in range(0, 16, 2): a(f"v_max3_f32 v{m}, v{m}, v{s+j}, v{s+j+1}")
    step("L_max")
    for m in (mA, mB):
        a(f"v_mov_b32 v{vT2}, v{m}")
        a("s_nop 1")
        a(f"v_permlane32_swap_b32 v{vT2}, v{m}")
        a("s_nop 1")
        a(f"v_max_f32 v{m}, v{m}, v{vT2}")
    rewind(32)
    for r in range(120, 152): a(f"v_mov_b32 v{r}, 0")
    a.lab("L_acc")
    for f in [ROWS] + rd_v('E', 0) + rd_v('O', 0) + [ALL]: a(f)
    scores()
    for par in 'EO':
        for t, m in (('A', mA), ('B', mB)):
            s = Sr[par] + (16 if t == 'B' else 0)
            for j in range(16): a(f"v_sub_f32 v{s+j}, v{s+j}, v{m}")
            for j in range(16): a(f"v_exp_f32 v{s+j}, v{s+j}")
    a("s_nop 1")
    for par in 'EO':
        for t in 'AB':
            for j in range(2): a(mf_pv(t, par, j))
    step("L_acc")
    a("s_nop 15")
    for t in 'AB':
        finish(t); a("s_nop 0"); finish2(t)
    a("s_waitcnt lgkmcnt(0)")
    for k in range(3): a(store(k))
    a("s_branch L_done")
    a.raw(f""".section .rodata,"a"
.p2align 6
.amdhsa_kernel {NAME}_kernel
  .amdhsa_next_free_vgpr {NV}
  .amdhsa_next_free_sgpr {100 if (opt.stamp or opt.amp or opt.itst) else 48}
  .amdhsa_accum_offset {NV}
  .amdhsa_group_segment_fixed_size 0
  .amdhsa_kernarg_size 48
  .amdhsa_user_sgpr_count 2
  .amdhsa_user_sgpr_kernarg_segment_ptr 1
  .amdhsa_system_sgpr_workgroup_id_x 1
.end_amdhsa_kernel""")
    return a.text()

def parse(argv):
    p = argparse.ArgumentParser()
    p.add_argument('-o', default=f"cdna_kernels/{NAME}.s")
    p.add_argument('--cut', type=int, default=3)
    p.add_argument('--pos', default='2,5,15,18,21,31,25')
    p.add_argument('--pf', type=int, default=1)
    p.add_argument('--bm', type=int, default=0)
    p.add_argument('--b2s', type=int, default=0)
    p.add_argument('--b3', type=int, default=2)
    p.add_argument('--half', type=int, default=0)
    p.add_argument('--kexp', type=int, default=0)
    p.add_argument('--ord', default='vkq')
    p.add_argument('--split', type=int, default=1)
    p.add_argument('--xs', type=float, default=35)
    p.add_argument('--tv', type=int, default=-1)
    p.add_argument('--padA', type=int, default=0)
    p.add_argument('--padB', type=int, default=1)
    p.add_argument('--stamp', type=int, default=0)
    p.add_argument('--itst', type=int, default=0)
    p.add_argument('--amp', type=int, default=0)
    p.add_argument('--ampt', type=int, default=0)
    p.add_argument('--ampa', type=int, default=0)
    p.add_argument('--ampb', type=int, default=8)
    p.add_argument('--ampr', default='')
    p.add_argument('--ampbase', type=int, default=44000)
    return p.parse_args(argv)

if __name__ == '__main__':
    opt = parse(sys.argv[1:])
    open(opt.o, 'w').write(gen(opt))
```

```python
import sys, struct, math, argparse

NAME = "standalone__fused_io_aware_attn__prompt"
HB = 73728
ST = 2304
VBASE = HB
ABASE = 2 * HB
LDS = ABASE + 4096
OOR = 0x28000

def f2u(x): return struct.unpack('<I', struct.pack('<f', x))[0]
CSCALE = f2u(math.log2(math.e) / math.sqrt(18.0))

vSlot, vK, vV, vInc, vIdx, vQo, vDma, vT2 = 1, 2, 3, 4, 6, 7, 14, 15
KXr = {'E': 8, 'O': 176}
QX = {'E': 10, 'O': 12}
Kr = {'E': 16, 'O': 20}
Qr = {('A', 'E'): 24, ('B', 'E'): 28, ('A', 'O'): 32, ('B', 'O'): 36}
Vr = {('E', 0): 40, ('E', 1): 44, ('O', 0): 48, ('O', 1): 52, ('T', 0): 168, ('T', 1): 172}
Sr = {'E': 56, 'O': 88}
Or = {'A': 120, 'B': 136}
TR = 152
KX0 = {'E': 178, 'O': 180}
K0 = {'E': 182, 'O': 186}
vStA, vStB, vStR, vR, vWE, vWO = 190, 191, 192, 193, 194, 195
NV = 196
AL = dict(on=False)
def kx(par): return KX0[par] if AL['on'] else KXr[par]
def kr(par): return K0[par] if AL['on'] else Kr[par]
def vv(par, j): return Vr[('T', j)] if (AL['on'] and par == 'E') else Vr[(par, j)]
def vr(b, n): return f"v[{b}:{b+n-1}]"

class Asm:
    def __init__(self): self.l = []
    def __call__(self, s, c=None): self.l.append("    " + s + (f"    ; {c}" if c else ""))
    def lab(self, s): self.l.append(s + ":")
    def raw(self, s): self.l.append(s)
    def note(self, s): self.l.append("    ; " + s)
    def text(self): return "\n".join(x.rstrip() for x in self.l) + "\n"

def mf_x(par):
    return f"v_mfma_f32_32x32x4_2b_bf16 {vr(Sr[par],32)}, {vr(kx(par),2)}, {vr(QX[par],2)}, 0 cbsz:1 abid:0"
def mf_q(t, par):
    s = Sr[par] + (16 if t == 'B' else 0)
    return f"v_mfma_f32_32x32x16_bf16 {vr(s,16)}, {vr(kr(par),4)}, {vr(Qr[(t,par)],4)}, {vr(s,16)}"
def mf_pv(t, par, j, vs=None):
    s = Sr[par] + (16 if t == 'B' else 0) + 8 * j
    return f"v_smfmac_f32_32x32x32_bf16 {vr(Or[t],16)}, {vr(vv(vs or par,j),4)}, {vr(s,8)}, v{vIdx}"
def ex(par, i): return f"v_exp_f32 v{Sr[par]+i}, v{Sr[par]+i}"
def rd_kx(u): return [f"ds_read_b32 v{kx('E')}, v{vK} offset:{u*ST+32}", f"ds_read_b32 v{kx('O')}, v{vK} offset:{u*ST+36}"]
def rd_k(par, u):
    o = u * ST + (40 if par == 'O' else 0)
    return [f"ds_read_b64 {vr(kr(par),2)}, v{vK} offset:{o}", f"ds_read_b64 {vr(kr(par)+2,2)}, v{vK} offset:{o+8}"]
def rd_v(par, u):
    return [f"ds_read_b128 {vr(vv(par,j),4)}, v{vV} offset:{u*ST + (0 if par == 'E' else 1152) + 576*j}" for j in range(2)]
ROWS = "s_mov_b64 exec, s[12:13]"
LOW = "s_mov_b32 exec_hi, 0"
ALL = "s_mov_b64 exec, -1"

def phase_list(par, opt):
    oth = 'O' if par == 'E' else 'E'
    pos = [int(x) for x in opt.pos.split(',')]
    mf = {pos[0]: mf_pv('B', oth, 1), pos[1]: mf_x(oth), pos[2]: mf_pv('A', par, 0), pos[3]: mf_pv('A', par, 1),
          pos[4]: mf_q('A', oth), pos[5]: mf_pv('B', par, 0), pos[6]: mf_q('B', oth)}
    out = []
    for i in range(32):
        if i in mf: out.append((i, 'm', mf[i]))
        out.append((i, 'e', ex(par, i)))
    return out

def gen(opt):
    a = Asm()
    def stamp(i):
        if opt.stamp and (opt.stamp != 3 or i in (0, 7, 8)): a(f"s_memtime s[{60+2*i}:{61+2*i}]")
        if opt.amp and i in (opt.ampa, opt.ampb): a(f"{'s_memrealtime' if opt.ampt else 's_memtime'} s[{60+2*i}:{61+2*i}]")
    smem = opt.stamp == 1 or (opt.amp and not (opt.ampa in (0, 7) and opt.ampb in (7, 8)))
    def lgkm(n): a(f"s_waitcnt lgkmcnt({0 if smem else n})")
    a.raw(f"""; Fused attention forward, B=2 H=32 S=2048 D=18, bf16 in/out (emitted by my own generator script).
; @launch grid=(256,1,1) block=(512,1,1) lds={LDS}
.amdgcn_target "amdgcn-amd-amdhsa--gfx950"
.text
.globl {NAME}_kernel
.p2align 8
.type {NAME}_kernel,@function
{NAME}_kernel:""")
    stamp(0)
    if opt.stamp: a("s_memrealtime s[56:57]")
    a("s_load_dwordx8 s[4:11], s[0:1], 0", "q, k, v, out")
    if opt.pf:
        a("s_getpc_b64 s[36:37]")
        if opt.pf == 1:
            a(f"v_mul_u32_u24 v{vT2}, 9, v0")
            a(f"global_load_ubyte v{vT2}, v{vT2}, s[36:37] offset:116", "pulls this kernel's code lines into L2")
        else:
            a(f"v_mad_u64_u32 v[16:17], vcc, v0, 9, s[36:37]")
            a(f"global_load_ubyte v{vT2}, v[16:17], off offset:116", "pulls this kernel's own code lines into L2")
    a("v_readfirstlane_b32 s24, v0", "64 * wave")
    a("s_and_b32 s3, s2, 7")
    a("s_lshr_b32 s25, s2, 3")
    a("s_lshl_b32 s3, s3, 5")
    a("s_add_u32 s3, s3, s25", "4 * head + query block")
    a("s_cmpk_ge_u32 s2, 256")
    a("s_cbranch_scc1 L_end")
    a(f"v_lshl_add_u32 v{vQo}, s3, 9, v0")
    a(f"v_mul_u32_u24 v{vQo}, 36, v{vQo}", "one Q row per lane")
    a("s_cmpk_ge_u32 s24, 256")
    a("s_cbranch_scc1 L_setup", "role B (waves 4..7) starts its loads after role A's")
    t0, t1 = Sr['E'] + 8, Sr['E'] + 9
    T = Sr['O']
    def qloads():
        a(f"global_load_dword v{T+8}, v{vQo}, s[4:5] offset:32")
        a(f"global_load_dwordx4 {vr(T,4)}, v{vQo}, s[4:5]")
        a(f"global_load_dwordx4 {vr(T+4,4)}, v{vQo}, s[4:5] offset:16")
    kv = opt.ord == 'kvq'
    hv = opt.ord == 'h'
    if hv:
        a("s_lshr_b32 s25, s3, 2")
        a(f"s_mul_i32 s25, s25, {HB}")
        a("s_and_b32 s26, s24, 64")
        a("s_mul_i32 s26, s26, 36", "waves 0,1: V super tiles 0,1; waves 2,3: K super tiles 0,1")
        a("s_add_u32 s25, s25, s26")
        a(f"v_and_b32 v{t0}, 63, v0")
        a(f"v_lshl_add_u32 v{t0}, v{t0}, 4, s25")
        a("s_cmpk_lt_u32 s24, 128")
        a(f"s_cselect_b32 s27, {VBASE}, 0")
        a("s_waitcnt lgkmcnt(0)")
        stamp(1)
        a("s_cselect_b64 s[42:43], s[8:9], s[6:7]")
        a("s_add_u32 m0, s26, s27")
        a(f"v_add_u32 v{t1}, {2*ST}, v{t0}")
        for t in (t0, t1):
            a(f"global_load_lds_dwordx4 v{t}, s[42:43]")
            a(f"global_load_lds_dwordx4 v{t}, s[42:43] offset:1024")
            a("s_mov_b64 exec, 0xffff")
            a(f"global_load_lds_dwordx4 v{t}, s[42:43] offset:2048")
            a(ALL)
            if t == t0:
                a(f"s_add_u32 m0, m0, {2*ST}", "super tiles 2,3 follow the Q rows")
                qloads()
    else:
        a("s_lshr_b32 s25, s3, 2")
        a(f"s_mul_i32 s25, s25, {HB}")
        a("s_mul_i32 s26, s24, 20")
        a("s_add_u32 s26, s26, s25")
        a(f"v_lshl_add_u32 v{t0}, v0, 4, s26")
        a("s_mul_i32 s26, s24, 36", "super tile `wave` of V and of K")
        p1, p2 = ("s[6:7]", "s[8:9]") if kv else ("s[8:9]", "s[6:7]")
        a("s_mov_b32 m0, s26" if kv else f"s_add_u32 m0, s26, {VBASE}")
        a("s_waitcnt lgkmcnt(0)")
        stamp(1)
        a(f"global_load_lds_dwordx4 v{t0}, {p1}")
        a(f"global_load_lds_dwordx4 v{t0}, {p1} offset:1024")
        a("s_mov_b64 exec, 0xffff")
        a(f"global_load_lds_dwordx4 v{t0}, {p1} offset:2048")
        if opt.half: a(ALL)
        else:
            a(f"s_add_u32 m0, s26, {VBASE}" if kv else "s_mov_b32 m0, s26")
            a("s_nop 0")
            a(f"global_load_lds_dwordx4 v{t0}, {p2} offset:2048")
            a(ALL)
            a(f"global_load_lds_dwordx4 v{t0}, {p2}")
            a(f"global_load_lds_dwordx4 v{t0}, {p2} offset:1024")
        qloads()
    a.lab("L_setup")
    if opt.stamp:
        a("s_load_dwordx2 s[40:41], s[0:1], 40")
        if opt.stamp == 3:
            for i in range(62, 74): a(f"s_mov_b32 s{i}, 0")
    a(f"v_lshlrev_b32 v{vSlot}, 3, v0")
    a("v_and_b32 v0, 63, v0")
    a("s_lshr_b32 s24, s24, 6", "wave id")
    a("s_lshr_b32 s25, s3, 2")
    a(f"s_mul_i32 s25, s25, {HB}", "head byte offset")
    a("s_lshl3_add_u32 s26, s3, s24")
    a(f"s_mul_i32 s26, s26, {ST}", "output byte offset of this wave")
    a(f"v_lshlrev_b32 v{vDma}, 4, v0")
    a("s_cmp_lt_u32 s24, 4")
    a("s_cselect_b32 s28, 8, 0")
    a("s_add_u32 s28, s28, s24")
    a(f"s_mul_i32 s27, s28, {ST}", "byte offset of this wave's next super tile to load")
    a(f"s_mov_b32 s18, {HB}")
    a("s_mov_b32 s19, 0x00020000")
    a(f"s_mov_b32 s46, {HB}")
    a("s_mov_b32 s47, 0x00020000")
    a(f"s_movk_i32 s22, {ST}")
    a("s_mov_b32 s23, 0x00020000")
    def dma():
        a("s_mov_b32 m0, s27")
        a("s_nop 0")
        a(f"buffer_load_dwordx4 v{vDma}, s[16:19], s27 offen lds")
        a(f"buffer_load_dwordx4 v{vDma}, s[16:19], s27 offen offset:1024 lds")
        a("s_mov_b64 exec, 0xffff")
        a(f"buffer_load_dwordx4 v{vDma}, s[16:19], s27 offen offset:2048 lds")
        a("s_add_u32 m0, s27, s18")
        a("s_nop 0")
        a(f"buffer_load_dwordx4 v{vDma}, s[44:47], s27 offen offset:2048 lds")
        a(ALL)
        a(f"buffer_load_dwordx4 v{vDma}, s[44:47], s27 offen lds")
        a(f"buffer_load_dwordx4 v{vDma}, s[44:47], s27 offen offset:1024 lds")
        a(f"s_add_u32 s27, s27, {8*ST}")
    def tr_read():
        for u in range(2):
            for j in range(2):
                for p in range(2):
                    a(f"ds_read_b64_tr_b16 {vr(TR+8*u+4*j+2*p,2)}, v{vR} offset:{40*u + (4*j+p)*72}")
    def tr_write(step):
        a(ROWS)
        for j in range(2): a(f"ds_write_b128 v{vWE}, {vr(TR+4*j,4)} offset:{576*j}")
        a("s_mov_b64 exec, s[14:15]")
        for j in range(2): a(f"ds_write_b128 v{vWO}, {vr(TR+8+4*j,4)} offset:{576*j}")
        a(ALL)
        if step == 8: a("s_setprio 3")
        if step:
            for r in (vR, vWE, vWO): a(f"v_add_u32 v{r}, {step*ST}, v{r}")
    a("s_waitcnt lgkmcnt(0)")
    a("s_add_u32 s16, s6, s25")
    a("s_addc_u32 s17, s7, 0")
    a("s_add_u32 s44, s8, s25")
    a("s_addc_u32 s45, s9, 0")
    a("s_add_u32 s20, s10, s26")
    a("s_addc_u32 s21, s11, 0")
    C = Sr['E']
    t3, t4, t5 = C + 4, C + 5, C + 6
    a(f"v_mov_b32 v{QX['E']}, 0"); a(f"v_mov_b32 v{QX['E']+1}, 0")
    a(f"v_and_b32 v{t0}, 31, v0", "MFMA row m")
    a(f"v_lshrrev_b32 v{t1}, 5, v0", "half wave h")
    a(f"v_mfma_f32_32x32x4_2b_bf16 {vr(120,32)}, {vr(QX['E'],2)}, {vr(QX['E'],2)}, 0")
    a(f"v_cmp_eq_u32 vcc, 20, v{t0}")
    a(f"v_mov_b32 v{t4}, 0x3f803f80")
    a("s_mov_b32 s12, 0x0003ffff"); a("s_mov_b32 s13, 0x0003ffff")
    a("s_mov_b32 s14, 0x00c0ffff"); a("s_mov_b32 s15, 0x00c0ffff")
    a(f"v_cndmask_b32 v40, 0, v{t4}, vcc")
    a(f"v_cndmask_b32 v41, 0, v{t4}, vcc")
    for r in list(range(42, 56, 2)) + list(range(168, 176, 2)): a(f"v_pk_mov_b32 {vr(r,2)}, v[40:41], v[40:41]")
    a(f"v_and_b32 v{t3}, 3, v0")
    a(f"v_lshrrev_b32 v{t4}, 2, v{t0}")
    a(f"v_lshl_add_u32 v{t4}, v{t3}, 3, v{t4}")
    a(f"v_mul_u32_u24 v{vK}, 72, v{t4}")
    a(f"v_lshl_add_u32 v{vK}, v{t1}, 4, v{vK}")
    a(f"v_bfe_u32 v{t4}, v0, 3, 1")
    a(f"v_lshl_add_u32 v{t3}, v{t4}, 2, v{t3}")
    a(f"v_and_b32 v{t4}, 4, v0")
    a(f"v_lshlrev_b32 v{t4}, 1, v{t4}")
    a(f"v_sub_u32 v{t3}, v{t3}, v{t4}")
    a(f"v_add_u32 v{t3}, 8, v{t3}")
    a(f"v_cmp_lt_u32 vcc, 15, v{t0}")
    a(f"v_and_b32 v{t4}, 1, v0")
    a(f"v_add_u32 v{t4}, 16, v{t4}")
    a(f"v_cndmask_b32 v{t3}, v{t3}, v{t4}, vcc")
    a(f"v_mul_u32_u24 v{t5}, 18, v{t1}")
    a("s_cmp_lt_u32 s24, 4")
    a(f"s_cselect_b32 s29, 0, {4*ST}")
    a("s_sub_u32 s29, s27, s29")
    a("s_add_u32 s29, s29, s18", "first V super tile this wave transposes")
    for sub, dst, extra in ((4, vWE, 0), (2, vWO, 72)):
        a(f"v_subrev_u32 v{t4}, {sub}, v{t3}")
        a(f"v_add_u32 v{dst}, 18, v{t4}")
        a(f"v_min_u32 v{t4}, v{t4}, v{dst}")
        a(f"v_add_u32 v{t4}, v{t4}, v{t5}")
        if extra: a(f"v_add_u32 v{t4}, {extra}, v{t4}")
        else: a(f"v_lshl_add_u32 v{vV}, v{t4}, 4, s18")
        a(f"v_lshl_add_u32 v{dst}, v{t4}, 4, s29")
    a(f"v_and_b32 v{t3}, 12, v0")
    a(f"v_add_lshl_u32 v{t3}, v{t3}, v{t1}, 1")
    a(f"v_mul_u32_u24 v{t3}, 72, v{t3}")
    a(f"v_and_b32 v{t4}, 1, v0")
    a(f"v_lshlrev_b32 v{t4}, 4, v{t4}")
    a(f"v_sub_u32 v{t3}, v{t3}, v{t4}")
    a(f"v_and_b32 v{t4}, 2, v0")
    a(f"v_lshl_add_u32 v{t3}, v{t4}, 2, v{t3}")
    a(f"v_and_b32 v{t4}, 16, v0")
    a(f"v_add3_u32 v{t3}, v{t4}, v{t3}, s29")
    a(f"v_add_u32 v{t4}, 16, v{t3}")
    a(f"v_subrev_u32 v{t3}, 8, v{t3}")
    a("s_mov_b32 vcc_lo, 0x22220000"); a("s_mov_b32 vcc_hi, 0x22220000")
    a(f"v_cndmask_b32 v{t3}, v{t4}, v{t3}, vcc")
    a(f"v_mov_b32 v{t4}, {OOR:#x}")
    a("s_mov_b32 vcc_lo, 0xcccc0000"); a("s_mov_b32 vcc_hi, 0xcccc0000")
    a(f"v_cndmask_b32 v{vR}, v{t3}, v{t4}, vcc")
    for r in list(KXr.values()) + list(KX0.values()): a(f"v_mov_b32 v{r+1}, 0x3f80")
    for par in 'EO': a(f"v_mov_b32 v{QX[par]+1}, {f2u(opt.xs) >> 16:#x}", "constant softmax shift")
    a(f"v_mov_b32 v{vIdx}, 0xdddd", "sparse index: elements 1 and 3 of every group of four")
    a(f"v_mov_b32 v{vInc}, {ST}")
    a(f"v_mov_b32 v{vInc+1}, {ST}")
    a(f"v_add_u32 v{C+2}, v{vK}, v{vInc}")
    a(f"v_add_u32 v{C+3}, v{vV}, v{vInc}")
    a(f"v_add_u32 v{vSlot}, {ABASE}, v{vSlot}")
    a(f"ds_write_b64 v{vSlot}, {vr(C+2,2)}", "address counters, stepped by ds_add_rtn_u64")
    a(f"s_mul_i32 s28, s24, {ST}")
    a(f"v_mul_u32_u24 v{vStA}, 36, v{t0}")
    a(f"v_lshlrev_b32 v{t4}, 4, v{t1}")
    a(f"v_sub_u32 v{vStA}, v{vStA}, v{t4}")
    a(f"v_add3_u32 v{vStA}, v{vStA}, 16, s28")
    a(f"v_add_u32 v{vStB}, 1152, v{vStA}")
    a(f"v_add_u32 v{vStR}, s28, v{vDma}")
    a(f"s_mov_b32 s30, {CSCALE:#x}", "log2(e)/sqrt(18)"); a(f"s_mov_b32 s31, {CSCALE:#x}")
    a("s_mov_b32 s29, 1", "super tile counter")
    a("s_mov_b32 s32, 0x8088", "barrier schedule")
    a("s_mov_b32 s33, 0x80008088")
    a(f"s_mov_b32 s38, {0x8000ddd0 | (4 if opt.bm else 0):#x}", "iterations with extra work, role A")
    a("s_mov_b32 s39, 0x8000dddc", "role B")
    a("s_mov_b32 s34, 0xffff0000")
    a("s_mov_b32 s35, 0x7b800000", "2^120")
    a("s_mov_b64 vcc, 0")
    a("s_cmp_ge_u32 s24, 4", "SCC = role B (kept until the loops)")
    bump = f"ds_add_rtn_u64 {vr(vK,2)}, v{vSlot}, {vr(vInc,2)}"
    bK, bX = rd_k('E', 1) + rd_k('O', 1), rd_kx(1)
    bV = rd_v('O', 0) + rd_v('E', 1)
    late = []; lateA = []
    if hv:
        AL['on'] = True
        rdK0 = rd_kx(0) + rd_k('E', 0) + rd_k('O', 0) + bX + bK
        rdV0 = [ROWS] + rd_v('E', 0) + bV + [ALL, bump]
        if opt.amp: stamp(9)
        a("s_cbranch_scc0 L_vA")
        a("s_cmp_ge_u32 s24, 6")
        a("s_barrier", "super tiles 0,1 are in")
        a("s_cbranch_scc1 L_v1")
        tr_read()
        a.lab("L_v1")
        qloads()
        a("s_cbranch_scc1 L_v2")
        a("s_waitcnt lgkmcnt(0)")
        tr_write(0)
        a("s_waitcnt lgkmcnt(0)")
        a.lab("L_v2")
        if opt.b2s:
            stamp(2)
            a("s_barrier", "V super tiles 0,1 are transposed")
            for f in rdK0: a(f)
            a("s_waitcnt lgkmcnt(8)")
            for f in rdV0: a(f)
            a("s_waitcnt lgkmcnt(7)")
            a("s_barrier", "super tiles 2,3 are in")
        else:
            for f in rdK0: a(f)
            a("s_waitcnt lgkmcnt(0)")
            stamp(2)
            a("s_barrier", "V super tiles 0,1 are transposed, super tiles 2,3 are in")
        a("s_cbranch_scc0 L_v3")
        tr_read()
        a("s_waitcnt lgkmcnt(0)")
        tr_write(0)
        a("s_waitcnt lgkmcnt(0)")
        a.lab("L_v3")
        a("s_barrier", "V super tiles 2,3 are transposed")
        if not opt.b2s:
            for f in rdV0: a(f)
        a("s_setprio 3")
        for r in (vR, vWE, vWO): a(f"v_add_u32 v{r}, {4*ST}, v{r}")
        a("s_cmp_ge_u32 s24, 4")
        a("s_waitcnt vmcnt(0)")
        a("s_branch L_prep")
        a.raw("    .p2align 3")
        a.lab("L_vA")
        a("s_waitcnt vmcnt(6)")
        stamp(2)
        a("s_barrier", "super tiles 0,1 are in")
        if opt.amp: stamp(10)
        for f in rdK0: a(f)
        a.lab("L_prep")
        lateA = (["s_barrier"] if opt.b2s else ["s_waitcnt vmcnt(0)", "s_barrier"]) + rdV0
    elif kv:
        a(f"s_waitcnt vmcnt({3 if opt.half else 6})")
        a("s_barrier", "K super tiles 0..3 are in: role B starts its Q loads")
        a("s_cbranch_scc0 L_noq")
        qloads()
        a.lab("L_noq")
        AL['on'] = True
        for f in rd_kx(0) + rd_k('E', 0) + rd_k('O', 0) + bX + bK: a(f)
        rdV0 = [ROWS] + rd_v('E', 0) + bV + [ALL, bump]
        a("s_cbranch_scc0 L_vA")
        a("s_waitcnt lgkmcnt(0)")
        stamp(2)
        a("s_barrier", "V super tiles 0..3 are in")
        tr_read()
        a("s_waitcnt lgkmcnt(0)")
        tr_write(0)
        a("s_waitcnt lgkmcnt(0)")
        a("s_barrier", "V super tiles 0..3 are transposed")
        for f in rdV0: a(f)
        a("s_setprio 3")
        for r in (vR, vWE, vWO): a(f"v_add_u32 v{r}, {4*ST}, v{r}")
        a("s_branch L_prep")
        a.raw("    .p2align 3")
        a.lab("L_vA")
        a("s_waitcnt vmcnt(3) lgkmcnt(0)")
        stamp(2)
        a("s_barrier", "V super tiles 0..3 are in")
        a.lab("L_prep")
        lateA = ["s_barrier"] + rdV0
    else:
        if opt.amp: stamp(9)
        a(f"s_waitcnt vmcnt({3 if opt.half else 6})")
        a("s_barrier", "V super tiles 0..3 are in: role B transposes them and starts its Q loads")
        if opt.amp: stamp(10)
        a("s_cbranch_scc0 L_noq")
        tr_read()
        qloads()
        a("s_waitcnt lgkmcnt(0)")
        tr_write(4)
        a.lab("L_noq")
        a.raw("    .p2align 3")
        a("s_waitcnt vmcnt(3) lgkmcnt(0)")
        stamp(2)
        a("s_barrier", "K super tiles 0..3 are in, V super tiles 0..3 are transposed")
        AL['on'] = True
        if opt.split:
            for f in rd_kx(0) + rd_k('E', 0) + rd_k('O', 0) + [ROWS, "s_setprio 3"] + rd_v('E', 0) + [ALL]: a(f)
            if opt.split == 1: lgkm(4)
            late = bK + [LOW] + bX + [ROWS] + bV + [ALL, bump]
        else:
            for f in rd_kx(0) + rd_k('E', 0) + rd_k('O', 0) + bX + bK: a(f)
            a(ROWS)
            lgkm(8)
            for f in rd_v('E', 0) + bV + [ALL, "s_setprio 3", bump]: a(f)
    stamp(3)
    W = T + 10
    QAE, QBE, QAO, QBO = Qr[('A','E')], Qr[('B','E')], Qr[('A','O')], Qr[('B','O')]
    def shl(j): a(f"v_lshlrev_b32 v{W+2*j}, 16, v{T+j}")
    def msk(j): a(f"v_and_b32 v{W+2*j+1}, s34, v{T+j}")
    def mul(j): a(f"v_pk_mul_f32 {vr(W+2*j,2)}, {vr(W+2*j,2)}, s[30:31]")
    def cvt(j, d): a(f"v_cvt_pk_bf16_f32 v{d}, v{W+2*j}, v{W+2*j+1}")
    a(f"s_waitcnt vmcnt(3) lgkmcnt({0 if smem else 8})" if hv else "s_waitcnt vmcnt(0)")
    stamp(4)
    if opt.split == 2 and opt.ord == 'vkq':
        shl(8); msk(8); mul(8); cvt(8, QX['E']); cvt(8, QBO + 3)
        shl(0)
        lgkm(4)
        a(mf_x('E'))
        a(f"v_and_b32_e64 v{W+1}, s34, v{T}")
    else:
        shl(8)
        a(f"v_and_b32_e64 v{W+17}, s34, v{T+8}")
        mul(8); cvt(8, QX['E'])
        shl(0); msk(0)
        a(mf_x('E'))
        cvt(8, QBO + 3)
    for j in range(1, 8): shl(j); msk(j)
    for j in range(8): mul(j)
    for j in range(4): cvt(j, QAE + j)
    for j in range(4): cvt(4 + j, QBE + j)
    for j in range(4): a(f"v_permlane32_swap_b32 v{QAE+j}, v{QBE+j}")
    cvt(4, QAO + 3)
    cvt(0, QX['O'])
    a(mf_q('A', 'E'))
    a("s_waitcnt lgkmcnt(0)")
    a(f"v_permlane32_swap_b32 v{QAO+3}, v{QBO+3}")
    for j in range(0, 3): a(f"v_mov_b32 v{QAO+j}, v{QAE+j+1}")
    for j in range(0, 3): a(f"v_mov_b32 v{QBO+j}, v{QBE+j+1}")
    a(mf_q('B', 'E'))
    for f in late: a(f)
    a("s_cbranch_scc1 L_startB")
    a("s_setprio 2")
    for f in lateA: a(f)
    if not late and not lateA: a("s_nop 0")
    cut = opt.cut
    pos0 = int(opt.pos.split(',')[0])
    assert cut > pos0
    a.lab("L_first")
    if opt.kexp:
        a("s_waitcnt lgkmcnt(0)")
        if opt.kexp != 9:
            a(f"v_add_u32 v{vK}, {ST}, v{vDma}")
        else:
            a(f"v_add_u32 v{vK}, 0, v{vK}")
        a(f"v_add_u32 v{vT2}, v{vK}, v{vInc}")
        a(f"ds_write_b32 v{vSlot}, v{vT2}")
        if opt.kexp != 9:
            bK = [f"ds_read_b128 {vr(Kr['E'],4)}, v{vK} offset:{ST}", f"ds_read_b128 {vr(Kr['O'],4)}, v{vK} offset:{ST+1024}"]
            bX = ["s_lshl_b32 m0, s29, 8", ALL, f"ds_read_addtid_b32 v{KXr['E']} offset:4096"] + ["s_nop 0"] * 4
        if opt.kexp == 2: bump = f"ds_add_rtn_u32 v{vK}, v{vSlot}, v{vInc}"
    stamp(5)
    for (i, k_, s_) in phase_list('E', opt):
        if lateA and 'smfmac' in s_ and i > pos0:
            a("s_waitcnt lgkmcnt(0)"); lateA = None
        if not (i == pos0 and k_ == 'm'): a(s_)
        if hv and opt.b2s and k_ == 'm' and i == opt.b2s:
            assert not opt.bm
            a("s_cbranch_scc1 L_nob2")
            a("s_waitcnt vmcnt(0)")
            a("s_barrier", "super tiles 2,3 are in")
            a.lab("L_nob2")
        if late and 'smfmac' in s_ and i > 25: a("s_waitcnt lgkmcnt(0)")
    for (i, k_, s_) in phase_list('O', opt):
        if i < cut: a(s_)
    AL['on'] = False
    pE, pO = phase_list('E', opt), phase_list('O', opt)
    seg = [s_ for (i, k_, s_) in pO if i >= cut] + [s_ for (i, k_, s_) in pE] + [s_ for (i, k_, s_) in pO if i < cut]
    npv = 0
    for s_ in seg:
        a(s_)
        if hv and 'smfmac' in s_:
            npv += 1
            if npv == opt.b3:
                if not opt.bm: a("s_cbranch_scc1 L_nob3")
                a("s_barrier", "role A: V super tiles 2,3 are transposed; role B: matched in role A's first burst")
                a.lab("L_nob3")
    a("s_cbranch_scc0 L_topA")
    a("s_branch L_topB")
    if opt.bm:
        a.lab("L_evA")
        a("s_cmp_lg_u32 s29, 2")
        a("s_cbranch_scc1 L_ev")
        a("s_barrier")
        a("s_branch L_backA")
    a.lab("L_startB")
    a("s_setprio 1")
    dma()
    a("s_cmp_ge_u32 s24, 4")
    a("s_branch L_first")
    a.lab("L_ev")
    a("s_bitcmp1_b32 s29, 0")
    a("s_cbranch_scc1 L_evW")
    a("s_bitcmp1_b32 s29, 1")
    a("s_cbranch_scc0 L_evD")
    a("s_waitcnt vmcnt(0) lgkmcnt(7)")
    tr_read()
    a.lab("L_evx")
    a("s_cmp_ge_u32 s24, 4")
    a("s_cbranch_scc0 L_backA")
    a("s_setprio 1")
    a("s_branch L_backB")
    a.lab("L_evW")
    a("s_cmp_eq_u32 s29, 31")
    a("s_cbranch_scc1 L_ev31")
    tr_write(8)
    a("s_setprio 0")
    a("s_branch L_evx")
    a.lab("L_evD")
    dma()
    a("s_branch L_evx")
    a.lab("L_ev31")
    a("s_mov_b64 vcc, 1", "last segment: it runs on into the tail")
    a("s_waitcnt lgkmcnt(0)")
    for f in [ROWS] + rd_v('T', 0) + [ALL]: a(f)
    a("s_branch L_evx")
    for role in 'AB':
        a.raw("    .p2align 6")
        pad = opt.padA if role == 'A' else opt.padB
        if pad: a.raw(f"    .fill {pad}, 4, 0xbf800000    ; never executed: sets the loop's fetch alignment")
        a.lab(f"L_top{role}")
        if role == 'A': a("s_setprio 0")
        a("s_add_u32 s29, s29, 1")
        if opt.itst: a("s_memtime s[48:49]")
        for f in bK + [LOW] + bX + [ROWS] + bV + [ALL, bump]: a(f)
        a(f"s_bitcmp1_b32 {'s38' if role == 'A' else 's39'}, s29")
        a("s_cbranch_scc1 L_evA" if (opt.bm and role == 'A') else "s_cbranch_scc1 L_ev")
        a.lab(f"L_back{role}")
        a(f"s_bitcmp1_b32 {'s33' if role == 'A' else 's32'}, s29", "SCC: a barrier follows this " + ("segment" if role == 'A' else "burst"))
        a("s_waitcnt lgkmcnt(0)")
        if opt.itst:
            a("s_mov_b32 m0, s29"); a("s_nop 0"); a("s_movreld_b32 s62, s48"); a("s_nop 0"); a("s_nop 0"); a("s_nop 0")
        if role == 'B':
            a("s_cbranch_scc0 L_segB")
            a("s_barrier")
        a.lab(f"L_seg{role}")
        first = True
        for s_ in seg:
            a(s_)
            if first and role == 'A' and 'smfmac' in s_:
                a("s_setprio 2"); first = False
        if role == 'A':
            a("s_cbranch_scc0 L_topA")
            a("s_cbranch_vccnz L_tail")
            a("s_barrier")
            a("s_branch L_topA")
        else:
            a("s_cbranch_vccz L_topB")
    R = Sr['E']
    PK = {'A': Sr['E'] + 8, 'B': Sr['E'] + 14}
    OB = Sr['E'] + 20
    def finish(t, fill=None):
        O = Or[t]
        rc = R + 2 if t == 'A' else R + 4
        a(f"v_pk_mov_b32 {vr(rc,2)}, {vr(O+8,2)}, {vr(O+8,2)} op_sel:[0,0]", "denominator sits in the upper half wave")
        for f in (fill or ["s_nop 1"]): a(f)
        a(f"v_permlane32_swap_b32 v{rc}, v{rc+1}")
        a(f"v_rcp_f32 v{rc}, v{rc+1}")
    def finish2(t):
        O = Or[t]
        rc = R + 2 if t == 'A' else R + 4
        for j in (8, 0, 2, 4, 6):
            a(f"v_pk_mul_f32 {vr(O+j,2)}, {vr(O+j,2)}, {vr(rc,2)} op_sel_hi:[1,0]")
        st = vStA if t == 'A' else vStB
        for j in (4, 0, 1, 2, 3):
            a(f"v_cvt_pk_bf16_f32 v{PK[t]+j}, v{O+2*j}, v{O+2*j+1}")
        a(f"ds_write_b32 v{st}, v{PK[t]+4} offset:16", "upper half's word is overwritten by the next write")
        a(f"ds_write2_b32 v{st}, v{PK[t]}, v{PK[t]+1} offset0:0 offset1:1")
        a(f"ds_write2_b32 v{st}, v{PK[t]+2}, v{PK[t]+3} offset0:2 offset1:3")
        if t == 'A':
            a(f"ds_read_b128 {vr(OB,4)}, v{vStR}")
        else:
            a(f"ds_read_b128 {vr(OB+4,4)}, v{vStR} offset:1024")
            a(f"ds_read_b128 {vr(OB+8,4)}, v{vStR} offset:2048")
    def store(k): return f"buffer_store_dwordx4 {vr(OB+4*k,4)}, v{vDma}, s[20:23], 0 offen offset:{1024*k} sc1"
    a.lab("L_tail")
    tm = {10: mf_pv('A', 'O', 0, 'T'), 18: mf_pv('A', 'O', 1, 'T'), 26: mf_pv('B', 'O', 0, 'T')}
    for i in range(cut, 29):
        if i in tm: a(tm[i])
        a(ex('O', i))
    finish('A', [ex('O', 29), ex('O', 30)])
    a(ex('O', 31).replace("v_exp_f32", "v_exp_f32_e64"))
    stamp(6)
    n0 = len(a.l)
    finish2('A')
    a.l.insert(n0 + 5, "    " + mf_pv('B', 'O', 1, 'T'))
    if opt.tv < 0:
        a("s_nop 0")
        lgkm(0)
        a(store(0))
        finish('B')
        a("s_nop 0")
        finish2('B')
    else:
        a("s_nop 1"); a("s_nop 0")
        finish('B')
        a("s_nop 0")
        n0 = len(a.l)
        finish2('B')
        a.l[n0+opt.tv:n0+opt.tv] = ["    s_waitcnt lgkmcnt(0)", "    " + store(0), "    s_nop 0"]
    lgkm(1)
    a(store(1))
    lgkm(0)
    a(store(2))
    stamp(7)
    a("s_setprio 0")
    for t in 'AB':
        for j in range(5): a(f"v_dot2c_f32_bf16 v{R+3 if t == 'A' else R+5}, 0, v{PK[t]+j}")
    a(f"v_cmp_nge_f32 s[36:37], v{R+3}, 1.0")
    a(f"v_cmp_nle_f32 vcc, v{R+3}, s35")
    a("s_or_b64 s[36:37], s[36:37], vcc")
    a(f"v_cmp_nge_f32 s[38:39], v{R+5}, 1.0")
    a(f"v_cmp_nle_f32 vcc, v{R+5}, s35")
    a("s_or_b64 s[36:37], s[36:37], s[38:39]")
    a("s_or_b64 s[36:37], s[36:37], vcc")
    if not (opt.kexp or opt.half): a("s_cbranch_scc1 L_slow")
    a.lab("L_done")
    if opt.amp:
        a("s_waitcnt vmcnt(0)")
        stamp(8)
        a("s_memrealtime s[42:43]")
        a("s_waitcnt lgkmcnt(0)")
        a(f"s_sub_u32 s50, s{60+2*opt.ampb}, s{60+2*opt.ampa}")
        a(f"s_max_u32 s50, s50, {opt.ampbase}")
        a(f"s_sub_u32 s50, s50, {opt.ampbase}")
        a("s_load_dwordx2 s[54:55], s[0:1], 32")
        a(f"s_cmp_lg_u32 s24, {3 if opt.ampr == 'A' else 7}")
        a("s_cbranch_scc1 L_end")
        a("s_add_u32 s51, s50, 0x1000000")
        a("s_mov_b64 exec, 1")
        a("v_mov_b32 v16, s51"); a("v_mov_b32 v17, 0")
        a("s_waitcnt lgkmcnt(0)")
        a("global_atomic_add v18, v17, v16, s[54:55] sc0 sc1")
        a("s_waitcnt vmcnt(0)")
        a("v_readfirstlane_b32 s51, v18")
        a("s_nop 3")
        a("s_add_u32 s50, s50, s51")
        a("s_and_b32 s50, s50, 0xffffff")
        a(f"s_mul_i32 s50, s50, {opt.amp}")
        a("s_lshr_b32 s50, s50, 8")
        a("s_lshr_b32 s51, s51, 24")
        a("s_cmp_lg_u32 s51, 255")
        a("s_cselect_b32 s50, 0, s50")
        a("s_min_u32 s50, s50, 20000")
        a.lab("L_spin")
        a("s_sleep 2")
        a("s_memrealtime s[52:53]")
        a("s_waitcnt lgkmcnt(0)")
        a("s_sub_u32 s51, s52, s42")
        a("s_cmp_lt_u32 s51, s50")
        a("s_cbranch_scc1 L_spin")
    if opt.itst:
        a("s_load_dwordx2 s[40:41], s[0:1], 40")
        for i in range(32): a(f"v_writelane_b32 v16, s{62+i}, {i}")
        a("s_lshl_b32 s50, s2, 3"); a("s_add_u32 s50, s50, s24"); a("s_lshl_b32 s50, s50, 8")
        a(f"v_lshrrev_b32 v1, 2, v{vDma}")
        a("v_add_u32 v1, s50, v1")
        a("s_waitcnt lgkmcnt(0)")
        a("global_store_dword v1, v16, s[40:41]")
    if opt.stamp:
        a("s_mov_b64 exec, 1")
        a("s_waitcnt vmcnt(0)")
        stamp(8)
        a("s_memrealtime s[58:59]")
        a("s_getreg_b32 s42, hwreg(HW_REG_HW_ID)")
        a("s_getreg_b32 s43, hwreg(HW_REG_XCC_ID)")
        a("s_waitcnt lgkmcnt(0)")
        for i, sr in enumerate((56, 58, 42, 43, 60, 62, 64, 66, 68, 70, 72, 74, 76)):
            a(f"v_mov_b32 v{16+i}, s{sr}")
        a("s_lshl_b32 s50, s2, 3"); a("s_add_u32 s50, s50, s24"); a("s_lshl_b32 s50, s50, 6")
        a("v_mov_b32 v1, s50")
        for i in range(4): a(f"global_store_dwordx4 v1, v[{16+4*i}:{19+4*i}], s[40:41] offset:{16*i}")
    a.lab("L_end")
    a("s_endpgm")
    a.lab("L_slow")
    a("s_waitcnt vmcnt(0)")
    mA, mB = 0, vSlot
    def rewind(n):
        a(f"v_subrev_u32 v{vK}, {n*ST}, v{vK}")
        a(f"v_subrev_u32 v{vV}, {n*ST}, v{vV}")
        a("s_mov_b32 s29, 0")
    def scores():
        a(f"buffer_load_dword v{KXr['E']}, v{vK}, s[16:19], 0 offen offset:32")
        a(f"buffer_load_dword v{KXr['O']}, v{vK}, s[16:19], 0 offen offset:36")
        a(f"buffer_load_dwordx4 {vr(Kr['E'],4)}, v{vK}, s[16:19], 0 offen")
        a(f"buffer_load_dwordx4 {vr(Kr['O'],4)}, v{vK}, s[16:19], 0 offen offset:40")
        a("s_waitcnt vmcnt(0) lgkmcnt(0)")
        a(mf_x('E')); a(mf_x('O'))
        a("s_nop 15"); a("s_nop 3")
        for par in 'EO':
            for t in 'AB': a(mf_q(t, par))
        a("s_nop 15")
    def step(lab):
        a(f"v_add_u32 v{vK}, v{vInc}, v{vK}")
        a(f"v_add_u32 v{vV}, v{vInc}, v{vV}")
        a("s_add_u32 s29, s29, 1")
        a("s_cmp_lg_u32 s29, 32")
        a(f"s_cbranch_scc1 {lab}")
    rewind(31)
    a(f"v_mov_b32 v{mA}, 0xff800000"); a(f"v_mov_b32 v{mB}, 0xff800000")
    a.lab("L_max")
    scores()
    for par in 'EO':
        for t, m in (('A', mA), ('B', mB)):
            s = Sr[par] + (16 if t == 'B' else 0)
            for j in range(0, 16, 2): a(f"v_max3_f32 v{m}, v{m}, v{s+j}, v{s+j+1}")
    step("L_max")
    for m in (mA, mB):
        a(f"v_mov_b32 v{vT2}, v{m}")
        a("s_nop 1")
        a(f"v_permlane32_swap_b32 v{vT2}, v{m}")
        a("s_nop 1")
        a(f"v_max_f32 v{m}, v{m}, v{vT2}")
    rewind(32)
    for r in range(120, 152): a(f"v_mov_b32 v{r}, 0")
    a.lab("L_acc")
    for f in [ROWS] + rd_v('E', 0) + rd_v('O', 0) + [ALL]: a(f)
    scores()
    for par in 'EO':
        for t, m in (('A', mA), ('B', mB)):
            s = Sr[par] + (16 if t == 'B' else 0)
            for j in range(16): a(f"v_sub_f32 v{s+j}, v{s+j}, v{m}")
            for j in range(16): a(f"v_exp_f32 v{s+j}, v{s+j}")
    a("s_nop 1")
    for par in 'EO':
        for t in 'AB':
            for j in range(2): a(mf_pv(t, par, j))
    step("L_acc")
    a("s_nop 15")
    for t in 'AB':
        finish(t); a("s_nop 0"); finish2(t)
    a("s_waitcnt lgkmcnt(0)")
    for k in range(3): a(store(k))
    a("s_branch L_done")
    a.raw(f""".section .rodata,"a"
.p2align 6
.amdhsa_kernel {NAME}_kernel
  .amdhsa_next_free_vgpr {NV}
  .amdhsa_next_free_sgpr {100 if (opt.stamp or opt.amp or opt.itst) else 48}
  .amdhsa_accum_offset {NV}
  .amdhsa_group_segment_fixed_size 0
  .amdhsa_kernarg_size 48
  .amdhsa_user_sgpr_count 2
  .amdhsa_user_sgpr_kernarg_segment_ptr 1
  .amdhsa_system_sgpr_workgroup_id_x 1
.end_amdhsa_kernel""")
    return a.text()

def parse(argv):
    p = argparse.ArgumentParser()
    p.add_argument('-o', default=f"cdna_kernels/{NAME}.s")
    p.add_argument('--cut', type=int, default=3)
    p.add_argument('--pos', default='2,5,15,18,21,31,25')
    p.add_argument('--pf', type=int, default=2)
    p.add_argument('--bm', type=int, default=0)
    p.add_argument('--b2s', type=int, default=0)
    p.add_argument('--b3', type=int, default=2)
    p.add_argument('--half', type=int, default=0)
    p.add_argument('--kexp', type=int, default=0)
    p.add_argument('--ord', default='vkq')
    p.add_argument('--split', type=int, default=2)
    p.add_argument('--xs', type=float, default=35)
    p.add_argument('--tv', type=int, default=-1)
    p.add_argument('--padA', type=int, default=0)
    p.add_argument('--padB', type=int, default=1)
    p.add_argument('--stamp', type=int, default=0)
    p.add_argument('--itst', type=int, default=0)
    p.add_argument('--amp', type=int, default=0)
    p.add_argument('--ampt', type=int, default=0)
    p.add_argument('--ampa', type=int, default=0)
    p.add_argument('--ampb', type=int, default=8)
    p.add_argument('--ampr', default='')
    p.add_argument('--ampbase', type=int, default=44000)
    return p.parse_args(argv)

if __name__ == '__main__':
    opt = parse(sys.argv[1:])
    open(opt.o, 'w').write(gen(opt))
```

```python
import sys, struct, math, argparse

NAME = "standalone__fused_io_aware_attn__prompt"
HB = 73728
ST = 2304
VBASE = HB
ABASE = 2 * HB
LDS = ABASE + 3 * 4096
OOR = 0x28000

def f2u(x): return struct.unpack('<I', struct.pack('<f', x))[0]
CSCALE = f2u(math.log2(math.e) / math.sqrt(18.0))

vSlot, vK, vV, vInc, vIdx, vQo, vDma, vT2 = 1, 2, 3, 4, 6, 7, 14, 15
KXr = {'E': 8, 'O': 176}
QX = {'E': 10, 'O': 12}
Kr = {'E': 16, 'O': 20}
Qr = {('A', 'E'): 24, ('B', 'E'): 28, ('A', 'O'): 32, ('B', 'O'): 36}
Vr = {('E', 0): 40, ('E', 1): 44, ('O', 0): 48, ('O', 1): 52, ('T', 0): 168, ('T', 1): 172}
Sr = {'E': 56, 'O': 88}
Or = {'A': 120, 'B': 136}
TR = 152
KX0 = {'E': 178, 'O': 180}
K0 = {'E': 182, 'O': 186}
vStA, vStB, vStR, vR, vWE, vWO, vInc8 = 190, 191, 192, 193, 194, 195, 196
NV = 200
AL = dict(on=False)
def kx(par): return KX0[par] if AL['on'] else KXr[par]
def kr(par): return K0[par] if AL['on'] else Kr[par]
def vv(par, j): return Vr[('T', j)] if (AL['on'] and par == 'E') else Vr[(par, j)]
def vr(b, n): return f"v[{b}:{b+n-1}]"

class Asm:
    def __init__(self): self.l = []
    def __call__(self, s, c=None): self.l.append("    " + s + (f"    ; {c}" if c else ""))
    def lab(self, s): self.l.append(s + ":")
    def raw(self, s): self.l.append(s)
    def note(self, s): self.l.append("    ; " + s)
    def text(self): return "\n".join(x.rstrip() for x in self.l) + "\n"

def mf_x(par):
    return f"v_mfma_f32_32x32x4_2b_bf16 {vr(Sr[par],32)}, {vr(kx(par),2)}, {vr(QX[par],2)}, 0 cbsz:1 abid:0"
def mf_q(t, par):
    s = Sr[par] + (16 if t == 'B' else 0)
    return f"v_mfma_f32_32x32x16_bf16 {vr(s,16)}, {vr(kr(par),4)}, {vr(Qr[(t,par)],4)}, {vr(s,16)}"
def mf_pv(t, par, j, vs=None):
    s = Sr[par] + (16 if t == 'B' else 0) + 8 * j
    return f"v_smfmac_f32_32x32x32_bf16 {vr(Or[t],16)}, {vr(vv(vs or par,j),4)}, {vr(s,8)}, v{vIdx}"
def ex(par, i): return f"v_exp_f32 v{Sr[par]+i}, v{Sr[par]+i}"
def rd_kx(u): return [f"ds_read_b32 v{kx('E')}, v{vK} offset:{u*ST+32}", f"ds_read_b32 v{kx('O')}, v{vK} offset:{u*ST+36}"]
def rd_k(par, u):
    o = u * ST + (40 if par == 'O' else 0)
    return [f"ds_read_b64 {vr(kr(par),2)}, v{vK} offset:{o}", f"ds_read_b64 {vr(kr(par)+2,2)}, v{vK} offset:{o+8}"]
def rd_v(par, u):
    return [f"ds_read_b128 {vr(vv(par,j),4)}, v{vV} offset:{u*ST + (0 if par == 'E' else 1152) + 576*j}" for j in range(2)]
ROWS = "s_mov_b64 exec, s[12:13]"
LOW = "s_mov_b32 exec_hi, 0"
ALL = "s_mov_b64 exec, -1"

def phase_list(par, opt):
    oth = 'O' if par == 'E' else 'E'
    pos = [int(x) for x in opt.pos.split(',')]
    mf = {pos[0]: mf_pv('B', oth, 1), pos[1]: mf_x(oth), pos[2]: mf_pv('A', par, 0), pos[3]: mf_pv('A', par, 1),
          pos[4]: mf_q('A', oth), pos[5]: mf_pv('B', par, 0), pos[6]: mf_q('B', oth)}
    out = []
    for i in range(32):
        if i in mf: out.append((i, 'm', mf[i]))
        out.append((i, 'e', ex(par, i)))
    return out

def gen(opt):
    NB = opt.nb
    assert opt.ord == 'vkq' and opt.split == 2
    a = Asm()
    def stamp(i):
        if opt.stamp and (opt.stamp != 3 or i in (0, 7, 8)): a(f"s_memtime s[{60+2*i}:{61+2*i}]")
        if opt.amp and i in (opt.ampa, opt.ampb): a(f"{'s_memrealtime' if opt.ampt else 's_memtime'} s[{60+2*i}:{61+2*i}]")
    smem = opt.stamp == 1 or (opt.amp and not (opt.ampa in (0, 7) and opt.ampb in (7, 8)))
    def lgkm(n): a(f"s_waitcnt lgkmcnt({0 if smem else n})")
    a.raw(f"""; Fused attention forward, B=2 H=32 S=2048 D=18, bf16 in/out (emitted by my own generator script).
; @launch grid=(256,1,1) block=(512,1,1) lds={LDS}
.amdgcn_target "amdgcn-amd-amdhsa--gfx950"
.text
.globl {NAME}_kernel
.p2align 8
.type {NAME}_kernel,@function
{NAME}_kernel:""")
    stamp(0)
    if opt.stamp: a("s_memrealtime s[56:57]")
    a("s_load_dwordx8 s[4:11], s[0:1], 0", "q, k, v, out")
    if opt.pf:
        a("s_getpc_b64 s[36:37]")
        if opt.pf == 1:
            a(f"v_mul_u32_u24 v{vT2}, 9, v0")
            a(f"global_load_ubyte v{vT2}, v{vT2}, s[36:37] offset:116", "pulls this kernel's code lines into L2")
        else:
            a(f"v_mad_u64_u32 v[16:17], vcc, v0, { {1: 9, 2: 11, 4: 15}[NB] }, s[36:37]")
            a(f"global_load_ubyte v{vT2}, v[16:17], off offset:116", "pulls this kernel's own code lines into L2")
    a("v_readfirstlane_b32 s24, v0", "64 * wave")
    a("s_and_b32 s3, s2, 7")
    a("s_lshr_b32 s25, s2, 3")
    a("s_lshl_b32 s3, s3, 5")
    a("s_add_u32 s3, s3, s25", "4 * head + query block")
    a("s_cmpk_ge_u32 s2, 256")
    a("s_cbranch_scc1 L_end")
    a(f"v_lshl_add_u32 v{vQo}, s3, 9, v0")
    a(f"v_mul_u32_u24 v{vQo}, 36, v{vQo}", "one Q row per lane")
    a("s_cmpk_ge_u32 s24, 256")
    a("s_cbranch_scc1 L_setup", "role B (waves 4..7) starts its loads after role A's")
    t0, t1 = Sr['E'] + 8, Sr['E'] + 9
    T = Sr['O']
    def qloads():
        a(f"global_load_dword v{T+8}, v{vQo}, s[4:5] offset:32")
        a(f"global_load_dwordx4 {vr(T,4)}, v{vQo}, s[4:5]")
        a(f"global_load_dwordx4 {vr(T+4,4)}, v{vQo}, s[4:5] offset:16")
    kv = opt.ord == 'kvq'
    hv = opt.ord == 'h'
    if hv:
        a("s_lshr_b32 s25, s3, 2")
        a(f"s_mul_i32 s25, s25, {HB}")
        a("s_and_b32 s26, s24, 64")
        a("s_mul_i32 s26, s26, 36", "waves 0,1: V super tiles 0,1; waves 2,3: K super tiles 0,1")
        a("s_add_u32 s25, s25, s26")
        a(f"v_and_b32 v{t0}, 63, v0")
        a(f"v_lshl_add_u32 v{t0}, v{t0}, 4, s25")
        a("s_cmpk_lt_u32 s24, 128")
        a(f"s_cselect_b32 s27, {VBASE}, 0")
        a("s_waitcnt lgkmcnt(0)")
        stamp(1)
        a("s_cselect_b64 s[42:43], s[8:9], s[6:7]")
        a("s_add_u32 m0, s26, s27")
        a(f"v_add_u32 v{t1}, {2*ST}, v{t0}")
        for t in (t0, t1):
            a(f"global_load_lds_dwordx4 v{t}, s[42:43]")
            a(f"global_load_lds_dwordx4 v{t}, s[42:43] offset:1024")
            a("s_mov_b64 exec, 0xffff")
            a(f"global_load_lds_dwordx4 v{t}, s[42:43] offset:2048")
            a(ALL)
            if t == t0:
                a(f"s_add_u32 m0, m0, {2*ST}", "super tiles 2,3 follow the Q rows")
                qloads()
    else:
        a("s_lshr_b32 s25, s3, 2")
        a(f"s_mul_i32 s25, s25, {HB}")
        a("s_mul_i32 s26, s24, 20")
        a("s_add_u32 s26, s26, s25")
        a(f"v_lshl_add_u32 v{t0}, v0, 4, s26")
        a("s_mul_i32 s26, s24, 36", "super tile `wave` of V and of K")
        p1, p2 = ("s[6:7]", "s[8:9]") if kv else ("s[8:9]", "s[6:7]")
        a("s_mov_b32 m0, s26" if kv else f"s_add_u32 m0, s26, {VBASE}")
        a("s_waitcnt lgkmcnt(0)")
        stamp(1)
        a(f"global_load_lds_dwordx4 v{t0}, {p1}")
        a(f"global_load_lds_dwordx4 v{t0}, {p1} offset:1024")
        a("s_mov_b64 exec, 0xffff")
        a(f"global_load_lds_dwordx4 v{t0}, {p1} offset:2048")
        if opt.half: a(ALL)
        else:
            a(f"s_add_u32 m0, s26, {VBASE}" if kv else "s_mov_b32 m0, s26")
            a("s_nop 0")
            a(f"global_load_lds_dwordx4 v{t0}, {p2} offset:2048")
            a(ALL)
            a(f"global_load_lds_dwordx4 v{t0}, {p2}")
            a(f"global_load_lds_dwordx4 v{t0}, {p2} offset:1024")
        qloads()
    a.lab("L_setup")
    if opt.stamp:
        a("s_load_dwordx2 s[40:41], s[0:1], 40")
        if opt.stamp == 3:
            for i in range(62, 74): a(f"s_mov_b32 s{i}, 0")
    a(f"v_lshlrev_b32 v{vSlot}, 3, v0")
    a("v_and_b32 v0, 63, v0")
    a("s_lshr_b32 s24, s24, 6", "wave id")
    a("s_lshr_b32 s25, s3, 2")
    a(f"s_mul_i32 s25, s25, {HB}", "head byte offset")
    a("s_lshl3_add_u32 s26, s3, s24")
    a(f"s_mul_i32 s26, s26, {ST}", "output byte offset of this wave")
    a(f"v_lshlrev_b32 v{vDma}, 4, v0")
    a("s_cmp_lt_u32 s24, 4")
    a("s_cselect_b32 s28, 8, 0")
    a("s_add_u32 s28, s28, s24")
    a(f"s_mul_i32 s27, s28, {ST}", "byte offset of this wave's next super tile to load")
    a(f"s_mov_b32 s18, {HB}")
    a("s_mov_b32 s19, 0x00020000")
    a(f"s_mov_b32 s46, {HB}")
    a("s_mov_b32 s47, 0x00020000")
    a(f"s_movk_i32 s22, {ST}")
    a("s_mov_b32 s23, 0x00020000")
    def dma():
        a("s_mov_b32 m0, s27")
        a("s_nop 0")
        a(f"buffer_load_dwordx4 v{vDma}, s[16:19], s27 offen lds")
        a(f"buffer_load_dwordx4 v{vDma}, s[16:19], s27 offen offset:1024 lds")
        a("s_mov_b64 exec, 0xffff")
        a(f"buffer_load_dwordx4 v{vDma}, s[16:19], s27 offen offset:2048 lds")
        a("s_add_u32 m0, s27, s18")
        a("s_nop 0")
        a(f"buffer_load_dwordx4 v{vDma}, s[44:47], s27 offen offset:2048 lds")
        a(ALL)
        a(f"buffer_load_dwordx4 v{vDma}, s[44:47], s27 offen lds")
        a(f"buffer_load_dwordx4 v{vDma}, s[44:47], s27 offen offset:1024 lds")
        a(f"s_add_u32 s27, s27, {8*ST}")
    def tr_read():
        for u in range(2):
            for j in range(2):
                for p in range(2):
                    a(f"ds_read_b64_tr_b16 {vr(TR+8*u+4*j+2*p,2)}, v{vR} offset:{40*u + (4*j+p)*72}")
    def tr_write(step):
        a(ROWS)
        for j in range(2): a(f"ds_write_b128 v{vWE}, {vr(TR+4*j,4)} offset:{576*j}")
        a("s_mov_b64 exec, s[14:15]")
        for j in range(2): a(f"ds_write_b128 v{vWO}, {vr(TR+8+4*j,4)} offset:{576*j}")
        a(ALL)
        if step == 8 and opt.dss:
            a("s_waitcnt lgkmcnt(12)")
            a(f"ds_add_rtn_u64 {vr(vWE,2)}, v{vSlot}, {vr(vInc8,2)} offset:4096")
            a(f"ds_add_rtn_u32 v{vR}, v{vSlot}, v{vInc8} offset:8192")
            return
        if step == 8: a("s_setprio 3")
        if step:
            for r in (vR, vWE, vWO): a(f"v_add_u32 v{r}, {step*ST}, v{r}")
    a("s_waitcnt lgkmcnt(0)")
    a("s_add_u32 s16, s6, s25")
    a("s_addc_u32 s17, s7, 0")
    a("s_add_u32 s44, s8, s25")
    a("s_addc_u32 s45, s9, 0")
    a("s_add_u32 s20, s10, s26")
    a("s_addc_u32 s21, s11, 0")
    C = Sr['E']
    t3, t4, t5 = C + 4, C + 5, C + 6
    a(f"v_mov_b32 v{QX['E']}, 0"); a(f"v_mov_b32 v{QX['E']+1}, 0")
    a(f"v_and_b32 v{t0}, 31, v0", "MFMA row m")
    a(f"v_lshrrev_b32 v{t1}, 5, v0", "half wave h")
    a(f"v_mfma_f32_32x32x4_2b_bf16 {vr(120,32)}, {vr(QX['E'],2)}, {vr(QX['E'],2)}, 0")
    a(f"v_cmp_eq_u32 vcc, 20, v{t0}")
    a(f"v_mov_b32 v{t4}, 0x3f803f80")
    a("s_mov_b32 s12, 0x0003ffff"); a("s_mov_b32 s13, 0x0003ffff")
    a("s_mov_b32 s14, 0x00c0ffff"); a("s_mov_b32 s15, 0x00c0ffff")
    a(f"v_cndmask_b32 v40, 0, v{t4}, vcc")
    a(f"v_cndmask_b32 v41, 0, v{t4}, vcc")
    for r in list(range(42, 56, 2)) + list(range(168, 176, 2)): a(f"v_pk_mov_b32 {vr(r,2)}, v[40:41], v[40:41]")
    a(f"v_and_b32 v{t3}, 3, v0")
    a(f"v_lshrrev_b32 v{t4}, 2, v{t0}")
    a(f"v_lshl_add_u32 v{t4}, v{t3}, 3, v{t4}")
    a(f"v_mul_u32_u24 v{vK}, 72, v{t4}")
    a(f"v_lshl_add_u32 v{vK}, v{t1}, 4, v{vK}")
    a(f"v_bfe_u32 v{t4}, v0, 3, 1")
    a(f"v_lshl_add_u32 v{t3}, v{t4}, 2, v{t3}")
    a(f"v_and_b32 v{t4}, 4, v0")
    a(f"v_lshlrev_b32 v{t4}, 1, v{t4}")
    a(f"v_sub_u32 v{t3}, v{t3}, v{t4}")
    a(f"v_add_u32 v{t3}, 8, v{t3}")
    a(f"v_cmp_lt_u32 vcc, 15, v{t0}")
    a(f"v_and_b32 v{t4}, 1, v0")
    a(f"v_add_u32 v{t4}, 16, v{t4}")
    a(f"v_cndmask_b32 v{t3}, v{t3}, v{t4}, vcc")
    a(f"v_mul_u32_u24 v{t5}, 18, v{t1}")
    a("s_cmp_lt_u32 s24, 4")
    a(f"s_cselect_b32 s29, 0, {4*ST}")
    a("s_sub_u32 s29, s27, s29")
    a("s_add_u32 s29, s29, s18", "first V super tile this wave transposes")
    for sub, dst, extra in ((4, vWE, 0), (2, vWO, 72)):
        a(f"v_subrev_u32 v{t4}, {sub}, v{t3}")
        a(f"v_add_u32 v{dst}, 18, v{t4}")
        a(f"v_min_u32 v{t4}, v{t4}, v{dst}")
        a(f"v_add_u32 v{t4}, v{t4}, v{t5}")
        if extra: a(f"v_add_u32 v{t4}, {extra}, v{t4}")
        else: a(f"v_lshl_add_u32 v{vV}, v{t4}, 4, s18")
        a(f"v_lshl_add_u32 v{dst}, v{t4}, 4, s29")
    a(f"v_and_b32 v{t3}, 12, v0")
    a(f"v_add_lshl_u32 v{t3}, v{t3}, v{t1}, 1")
    a(f"v_mul_u32_u24 v{t3}, 72, v{t3}")
    a(f"v_and_b32 v{t4}, 1, v0")
    a(f"v_lshlrev_b32 v{t4}, 4, v{t4}")
    a(f"v_sub_u32 v{t3}, v{t3}, v{t4}")
    a(f"v_and_b32 v{t4}, 2, v0")
    a(f"v_lshl_add_u32 v{t3}, v{t4}, 2, v{t3}")
    a(f"v_and_b32 v{t4}, 16, v0")
    a(f"v_add3_u32 v{t3}, v{t4}, v{t3}, s29")
    a(f"v_add_u32 v{t4}, 16, v{t3}")
    a(f"v_subrev_u32 v{t3}, 8, v{t3}")
    a("s_mov_b32 vcc_lo, 0x22220000"); a("s_mov_b32 vcc_hi, 0x22220000")
    a(f"v_cndmask_b32 v{t3}, v{t4}, v{t3}, vcc")
    a(f"v_mov_b32 v{t4}, {OOR:#x}")
    a("s_mov_b32 vcc_lo, 0xcccc0000"); a("s_mov_b32 vcc_hi, 0xcccc0000")
    a(f"v_cndmask_b32 v{vR}, v{t3}, v{t4}, vcc")
    for r in list(KXr.values()) + list(KX0.values()): a(f"v_mov_b32 v{r+1}, 0x3f80")
    for par in 'EO': a(f"v_mov_b32 v{QX[par]+1}, {f2u(opt.xs) >> 16:#x}", "constant softmax shift")
    a(f"v_mov_b32 v{vIdx}, 0xdddd", "sparse index: elements 1 and 3 of every group of four")
    a(f"v_mov_b32 v{vInc}, {NB*ST}")
    a(f"v_mov_b32 v{vInc+1}, {NB*ST}")
    a(f"v_add_u32 v{C+2}, v{vK}, v{vInc}")
    a(f"v_add_u32 v{C+3}, v{vV}, v{vInc}")
    a(f"v_add_u32 v{vSlot}, {ABASE}, v{vSlot}")
    a(f"ds_write_b64 v{vSlot}, {vr(C+2,2)}", "address counters, stepped by ds_add_rtn_u64")
    if opt.dss:
        a("s_cmp_lt_u32 s24, 4")
        a(f"s_cselect_b32 s29, 0, {4*ST}")
        a(f"v_mov_b32 v{vInc8}, {8*ST}")
        a(f"v_mov_b32 v{vInc8+1}, {8*ST}")
        a(f"v_add3_u32 v{C}, v{vWE}, v{vInc8}, s29")
        a(f"v_add3_u32 v{C+1}, v{vWO}, v{vInc8}, s29")
        a(f"v_add3_u32 v{t3}, v{vR}, v{vInc8}, s29")
        a(f"ds_write_b64 v{vSlot}, {vr(C,2)} offset:4096")
        a(f"ds_write_b32 v{vSlot}, v{t3} offset:8192")
    a(f"s_mul_i32 s28, s24, {ST}")
    a(f"v_mul_u32_u24 v{vStA}, 36, v{t0}")
    a(f"v_lshlrev_b32 v{t4}, 4, v{t1}")
    a(f"v_sub_u32 v{vStA}, v{vStA}, v{t4}")
    a(f"v_add3_u32 v{vStA}, v{vStA}, 16, s28")
    a(f"v_add_u32 v{vStB}, 1152, v{vStA}")
    a(f"v_add_u32 v{vStR}, s28, v{vDma}")
    a(f"s_mov_b32 s30, {CSCALE:#x}", "log2(e)/sqrt(18)"); a(f"s_mov_b32 s31, {CSCALE:#x}")
    a("s_mov_b32 s29, 1", "super tile counter")
    a("s_mov_b32 s32, 0x8088", "barrier schedule")
    a("s_mov_b32 s33, 0x80008088")
    a(f"s_mov_b32 s38, {0x8000ddd0 | (4 if opt.bm else 0):#x}", "iterations with extra work, role A")
    a("s_mov_b32 s39, 0x8000dddc", "role B")
    a("s_mov_b32 s34, 0xffff0000")
    a("s_mov_b32 s35, 0x7b800000", "2^120")
    a("s_mov_b64 vcc, 0")
    a("s_cmp_ge_u32 s24, 4", "SCC = role B (kept until the loops)")
    bump = f"ds_add_rtn_u64 {vr(vK,2)}, v{vSlot}, {vr(vInc,2)}"
    bK, bX = rd_k('E', 1) + rd_k('O', 1), rd_kx(1)
    bV = rd_v('O', 0) + rd_v('E', 1)
    late = []; lateA = []
    if hv:
        AL['on'] = True
        rdK0 = rd_kx(0) + rd_k('E', 0) + rd_k('O', 0) + bX + bK
        rdV0 = [ROWS] + rd_v('E', 0) + bV + [ALL, bump]
        if opt.amp: stamp(9)
        a("s_cbranch_scc0 L_vA")
        a("s_cmp_ge_u32 s24, 6")
        a("s_barrier", "super tiles 0,1 are in")
        a("s_cbranch_scc1 L_v1")
        tr_read()
        a.lab("L_v1")
        qloads()
        a("s_cbranch_scc1 L_v2")
        a("s_waitcnt lgkmcnt(0)")
        tr_write(0)
        a("s_waitcnt lgkmcnt(0)")
        a.lab("L_v2")
        if opt.b2s:
            stamp(2)
            a("s_barrier", "V super tiles 0,1 are transposed")
            for f in rdK0: a(f)
            a("s_waitcnt lgkmcnt(8)")
            for f in rdV0: a(f)
            a("s_waitcnt lgkmcnt(7)")
            a("s_barrier", "super tiles 2,3 are in")
        else:
            for f in rdK0: a(f)
            a("s_waitcnt lgkmcnt(0)")
            stamp(2)
            a("s_barrier", "V super tiles 0,1 are transposed, super tiles 2,3 are in")
        a("s_cbranch_scc0 L_v3")
        tr_read()
        a("s_waitcnt lgkmcnt(0)")
        tr_write(0)
        a("s_waitcnt lgkmcnt(0)")
        a.lab("L_v3")
        a("s_barrier", "V super tiles 2,3 are transposed")
        if not opt.b2s:
            for f in rdV0: a(f)
        a("s_setprio 3")
        for r in (vR, vWE, vWO): a(f"v_add_u32 v{r}, {4*ST}, v{r}")
        a("s_cmp_ge_u32 s24, 4")
        a("s_waitcnt vmcnt(0)")
        a("s_branch L_prep")
        a.raw("    .p2align 3")
        a.lab("L_vA")
        a("s_waitcnt vmcnt(6)")
        stamp(2)
        a("s_barrier", "super tiles 0,1 are in")
        if opt.amp: stamp(10)
        for f in rdK0: a(f)
        a.lab("L_prep")
        lateA = (["s_barrier"] if opt.b2s else ["s_waitcnt vmcnt(0)", "s_barrier"]) + rdV0
    elif kv:
        a(f"s_waitcnt vmcnt({3 if opt.half else 6})")
        a("s_barrier", "K super tiles 0..3 are in: role B starts its Q loads")
        a("s_cbranch_scc0 L_noq")
        qloads()
        a.lab("L_noq")
        AL['on'] = True
        for f in rd_kx(0) + rd_k('E', 0) + rd_k('O', 0) + bX + bK: a(f)
        rdV0 = [ROWS] + rd_v('E', 0) + bV + [ALL, bump]
        a("s_cbranch_scc0 L_vA")
        a("s_waitcnt lgkmcnt(0)")
        stamp(2)
        a("s_barrier", "V super tiles 0..3 are in")
        tr_read()
        a("s_waitcnt lgkmcnt(0)")
        tr_write(0)
        a("s_waitcnt lgkmcnt(0)")
        a("s_barrier", "V super tiles 0..3 are transposed")
        for f in rdV0: a(f)
        a("s_setprio 3")
        for r in (vR, vWE, vWO): a(f"v_add_u32 v{r}, {4*ST}, v{r}")
        a("s_branch L_prep")
        a.raw("    .p2align 3")
        a.lab("L_vA")
        a("s_waitcnt vmcnt(3) lgkmcnt(0)")
        stamp(2)
        a("s_barrier", "V super tiles 0..3 are in")
        a.lab("L_prep")
        lateA = ["s_barrier"] + rdV0
    else:
        if opt.amp: stamp(9)
        a(f"s_waitcnt vmcnt({3 if opt.half else 6})")
        a("s_barrier", "V super tiles 0..3 are in: role B transposes them and starts its Q loads")
        if opt.amp: stamp(10)
        a("s_cbranch_scc0 L_noq")
        tr_read()
        qloads()
        a("s_waitcnt lgkmcnt(0)")
        tr_write(4)
        a.lab("L_noq")
        a.raw("    .p2align 3")
        a("s_waitcnt vmcnt(3) lgkmcnt(0)")
        stamp(2)
        a("s_barrier", "K super tiles 0..3 are in, V super tiles 0..3 are transposed")
        AL['on'] = True
        if opt.split:
            for f in rd_kx(0) + rd_k('E', 0) + rd_k('O', 0) + [ROWS, "s_setprio 3"] + rd_v('E', 0) + [ALL]: a(f)
            if opt.split == 1: lgkm(4)
            late = bK + [LOW] + bX + [ROWS] + bV + [ALL] + ([bump] if NB == 1 else [])
        else:
            for f in rd_kx(0) + rd_k('E', 0) + rd_k('O', 0) + bX + bK: a(f)
            a(ROWS)
            lgkm(8)
            for f in rd_v('E', 0) + bV + [ALL, "s_setprio 3", bump]: a(f)
    stamp(3)
    W = T + 10
    QAE, QBE, QAO, QBO = Qr[('A','E')], Qr[('B','E')], Qr[('A','O')], Qr[('B','O')]
    def shl(j): a(f"v_lshlrev_b32 v{W+2*j}, 16, v{T+j}")
    def msk(j): a(f"v_and_b32 v{W+2*j+1}, s34, v{T+j}")
    def mul(j): a(f"v_pk_mul_f32 {vr(W+2*j,2)}, {vr(W+2*j,2)}, s[30:31]")
    def cvt(j, d): a(f"v_cvt_pk_bf16_f32 v{d}, v{W+2*j}, v{W+2*j+1}")
    a(f"s_waitcnt vmcnt(3) lgkmcnt({0 if smem else 8})" if hv else "s_waitcnt vmcnt(0)")
    stamp(4)
    if opt.split == 2 and opt.ord == 'vkq':
        shl(8); msk(8); mul(8); cvt(8, QX['E']); cvt(8, QBO + 3)
        shl(0)
        lgkm(4)
        a(mf_x('E'))
        a(f"v_and_b32_e64 v{W+1}, s34, v{T}")
    else:
        shl(8)
        a(f"v_and_b32_e64 v{W+17}, s34, v{T+8}")
        mul(8); cvt(8, QX['E'])
        shl(0); msk(0)
        a(mf_x('E'))
        cvt(8, QBO + 3)
    for j in range(1, 8): shl(j); msk(j)
    for j in range(8): mul(j)
    for j in range(4): cvt(j, QAE + j)
    for j in range(4): cvt(4 + j, QBE + j)
    for j in range(4): a(f"v_permlane32_swap_b32 v{QAE+j}, v{QBE+j}")
    cvt(4, QAO + 3)
    cvt(0, QX['O'])
    a(mf_q('A', 'E'))
    a("s_waitcnt lgkmcnt(0)")
    a(f"v_permlane32_swap_b32 v{QAO+3}, v{QBO+3}")
    for j in range(0, 3): a(f"v_mov_b32 v{QAO+j}, v{QAE+j+1}")
    for j in range(0, 3): a(f"v_mov_b32 v{QBO+j}, v{QBE+j+1}")
    a(mf_q('B', 'E'))
    for f in late: a(f)
    a("s_cbranch_scc1 L_startB")
    a("s_setprio 2")
    for f in lateA: a(f)
    if not late and not lateA: a("s_nop 0")
    cut = opt.cut
    pos0 = int(opt.pos.split(',')[0])
    assert cut > pos0
    a.lab("L_first")
    if opt.kexp:
        a("s_waitcnt lgkmcnt(0)")
        if opt.kexp != 9:
            a(f"v_add_u32 v{vK}, {ST}, v{vDma}")
        else:
            a(f"v_add_u32 v{vK}, 0, v{vK}")
        a(f"v_add_u32 v{vT2}, v{vK}, v{vInc}")
        a(f"ds_write_b32 v{vSlot}, v{vT2}")
        if opt.kexp != 9:
            bK = [f"ds_read_b128 {vr(Kr['E'],4)}, v{vK} offset:{ST}", f"ds_read_b128 {vr(Kr['O'],4)}, v{vK} offset:{ST+1024}"]
            bX = ["s_lshl_b32 m0, s29, 8", ALL, f"ds_read_addtid_b32 v{KXr['E']} offset:4096"] + ["s_nop 0"] * 4
        if opt.kexp == 2: bump = f"ds_add_rtn_u32 v{vK}, v{vSlot}, v{vInc}"
    stamp(5)
    for (i, k_, s_) in phase_list('E', opt):
        if lateA and 'smfmac' in s_ and i > pos0:
            a("s_waitcnt lgkmcnt(0)"); lateA = None
        if not (i == pos0 and k_ == 'm'): a(s_)
        if hv and opt.b2s and k_ == 'm' and i == opt.b2s:
            assert not opt.bm
            a("s_cbranch_scc1 L_nob2")
            a("s_waitcnt vmcnt(0)")
            a("s_barrier", "super tiles 2,3 are in")
            a.lab("L_nob2")
        if late and 'smfmac' in s_ and i > 25: a("s_waitcnt lgkmcnt(0)")
    for (i, k_, s_) in phase_list('O', opt):
        if i < cut: a(s_)
    AL['on'] = False
    pE, pO = phase_list('E', opt), phase_list('O', opt)
    seg = [s_ for (i, k_, s_) in pO if i >= cut] + [s_ for (i, k_, s_) in pE] + [s_ for (i, k_, s_) in pO if i < cut]
    npv = 0
    for s_ in seg:
        a(s_)
        if hv and 'smfmac' in s_:
            npv += 1
            if npv == opt.b3:
                if not opt.bm: a("s_cbranch_scc1 L_nob3")
                a("s_barrier", "role A: V super tiles 2,3 are transposed; role B: matched in role A's first burst")
                a.lab("L_nob3")
    a(f"s_cbranch_scc0 L_topA{2 % NB}")
    a(f"s_branch L_topB{2 % NB}")
    if opt.bm:
        a.lab("L_evA")
        a("s_cmp_lg_u32 s29, 2")
        a("s_cbranch_scc1 L_ev")
        a("s_barrier")
        a("s_branch L_backA")
    a.lab("L_startB")
    a("s_setprio 1")
    dma()
    a("s_cmp_ge_u32 s24, 4")
    a("s_branch L_first")
    def back(n):
        if not opt.dss: raise SystemExit("dss required")
        a("s_cmp_ge_u32 s24, 4")
        a(f"s_cbranch_scc0 L_backA{n % NB}")
        a(f"s_branch L_backB{n % NB}")
    a.lab("L_ev")
    if NB == 1:
        a("s_bitcmp1_b32 s29, 0")
        a("s_cbranch_scc1 L_evW")
    a.lab("L_evE")
    if NB <= 2:
        a("s_bitcmp1_b32 s29, 1")
        a("s_cbranch_scc0 L_evD")
    a.lab("L_evR")
    a("s_waitcnt vmcnt(0) lgkmcnt(7)")
    tr_read()
    back(2)
    a.lab("L_evW")
    a("s_cmp_eq_u32 s29, 31")
    a("s_cbranch_scc1 L_ev31")
    tr_write(8)
    back(3)
    a.lab("L_evD")
    dma()
    back(0)
    a.lab("L_ev31")
    a("s_mov_b64 vcc, 1", "last segment: it runs on into the tail")
    if NB == 1: a("s_waitcnt lgkmcnt(0)")
    for f in [ROWS] + rd_v('T', NB - 1) + [ALL]: a(f)
    back(3)
    def reads(u): return rd_k('E', u) + rd_k('O', u) + [LOW] + rd_kx(u) + [ROWS] + rd_v('O', u-1) + rd_v('E', u) + [ALL] + ([bump] if u == NB else [])
    pads = {'A': [int(x) for x in opt.padA.split(',')], 'B': [int(x) for x in opt.padB.split(',')]}
    for role in 'AB':
        a.raw("    .p2align 6")
        pad = pads[role][0]
        if pad: a.raw(f"    .fill {pad}, 4, 0xbf800000    ; never executed: sets the loop's fetch alignment")
        for c in range(NB):
            last = c == NB - 1
            a.lab(f"L_top{role}{c}")
            if role == 'A': a("s_setprio 0")
            a("s_add_u32 s29, s29, 1")
            if opt.itst: a("s_memtime s[48:49]")
            for f in reads(c if c else NB): a(f)
            if not (NB == 4 and c == 1):
                a(f"s_bitcmp1_b32 {'s38' if role == 'A' else 's39'}, s29")
                a("s_cbranch_scc1 " + ("L_ev" if NB == 1 else ("L_evW" if last else ("L_evE" if NB == 2 else ("L_evD" if c == 0 else "L_evR")))))
            a.lab(f"L_back{role}{c}")
            if last: a(f"s_bitcmp1_b32 {'s33' if role == 'A' else 's32'}, s29", "SCC: a barrier follows this " + ("segment" if role == 'A' else "burst"))
            if c and len(pads[role]) > c:
                for k in range(pads[role][c]): a("s_waitcnt lgkmcnt(4)")
            a("s_waitcnt lgkmcnt(0)")
            if opt.itst:
                a("s_mov_b32 m0, s29"); a("s_nop 0"); a("s_movreld_b32 s62, s48"); a("s_nop 0"); a("s_nop 0"); a("s_nop 0")
            if role == 'B' and last:
                a(f"s_cbranch_scc0 L_segB{c}")
                a("s_barrier")
            a.lab(f"L_seg{role}{c}")
            first = True
            for s_ in seg:
                a(s_)
                if first and role == 'A' and 'smfmac' in s_:
                    a("s_setprio 2"); first = False
        if role == 'A':
            a("s_cbranch_scc0 L_topA0")
            a("s_cbranch_vccnz L_tail")
            a("s_barrier")
            a("s_branch L_topA0")
        else:
            a("s_cbranch_vccz L_topB0")
    R = Sr['E']
    PK = {'A': Sr['E'] + 8, 'B': Sr['E'] + 14}
    OB = Sr['E'] + 20
    def finish(t, fill=None):
        O = Or[t]
        rc = R + 2 if t == 'A' else R + 4
        a(f"v_pk_mov_b32 {vr(rc,2)}, {vr(O+8,2)}, {vr(O+8,2)} op_sel:[0,0]", "denominator sits in the upper half wave")
        for f in (fill or ["s_nop 1"]): a(f)
        a(f"v_permlane32_swap_b32 v{rc}, v{rc+1}")
        a(f"v_rcp_f32 v{rc}, v{rc+1}")
    def finish2(t):
        O = Or[t]
        rc = R + 2 if t == 'A' else R + 4
        for j in (8, 0, 2, 4, 6):
            a(f"v_pk_mul_f32 {vr(O+j,2)}, {vr(O+j,2)}, {vr(rc,2)} op_sel_hi:[1,0]")
        st = vStA if t == 'A' else vStB
        for j in (4, 0, 1, 2, 3):
            a(f"v_cvt_pk_bf16_f32 v{PK[t]+j}, v{O+2*j}, v{O+2*j+1}")
        a(f"ds_write_b32 v{st}, v{PK[t]+4} offset:16", "upper half's word is overwritten by the next write")
        a(f"ds_write2_b32 v{st}, v{PK[t]}, v{PK[t]+1} offset0:0 offset1:1")
        a(f"ds_write2_b32 v{st}, v{PK[t]+2}, v{PK[t]+3} offset0:2 offset1:3")
        if t == 'A':
            a(f"ds_read_b128 {vr(OB,4)}, v{vStR}")
        else:
            a(f"ds_read_b128 {vr(OB+4,4)}, v{vStR} offset:1024")
            a(f"ds_read_b128 {vr(OB+8,4)}, v{vStR} offset:2048")
    def store(k): return f"buffer_store_dwordx4 {vr(OB+4*k,4)}, v{vDma}, s[20:23], 0 offen offset:{1024*k} sc1"
    a.lab("L_tail")
    tm = {10: mf_pv('A', 'O', 0, 'T'), 18: mf_pv('A', 'O', 1, 'T'), 26: mf_pv('B', 'O', 0, 'T')}
    for i in range(cut, 29):
        if i in tm: a(tm[i])
        a(ex('O', i))
    finish('A', [ex('O', 29), ex('O', 30)])
    a(ex('O', 31).replace("v_exp_f32", "v_exp_f32_e64"))
    stamp(6)
    n0 = len(a.l)
    finish2('A')
    a.l.insert(n0 + 5, "    " + mf_pv('B', 'O', 1, 'T'))
    if opt.tv < 0:
        a("s_nop 0")
        lgkm(0)
        a(store(0))
        finish('B')
        a("s_nop 0")
        finish2('B')
    else:
        a("s_nop 1"); a("s_nop 0")
        finish('B')
        a("s_nop 0")
        n0 = len(a.l)
        finish2('B')
        a.l[n0+opt.tv:n0+opt.tv] = ["    s_waitcnt lgkmcnt(0)", "    " + store(0), "    s_nop 0"]
    lgkm(1)
    a(store(1))
    lgkm(0)
    a(store(2))
    stamp(7)
    a("s_setprio 0")
    for t in 'AB':
        for j in range(5): a(f"v_dot2c_f32_bf16 v{R+3 if t == 'A' else R+5}, 0, v{PK[t]+j}")
    a(f"v_cmp_nge_f32 s[36:37], v{R+3}, 1.0")
    a(f"v_cmp_nle_f32 vcc, v{R+3}, s35")
    a("s_or_b64 s[36:37], s[36:37], vcc")
    a(f"v_cmp_nge_f32 s[38:39], v{R+5}, 1.0")
    a(f"v_cmp_nle_f32 vcc, v{R+5}, s35")
    a("s_or_b64 s[36:37], s[36:37], s[38:39]")
    a("s_or_b64 s[36:37], s[36:37], vcc")
    if not (opt.kexp or opt.half): a("s_cbranch_scc1 L_slow")
    a.lab("L_done")
    if opt.amp:
        a("s_waitcnt vmcnt(0)")
        stamp(8)
        a("s_memrealtime s[42:43]")
        a("s_waitcnt lgkmcnt(0)")
        a(f"s_sub_u32 s50, s{60+2*opt.ampb}, s{60+2*opt.ampa}")
        a(f"s_max_u32 s50, s50, {opt.ampbase}")
        a(f"s_sub_u32 s50, s50, {opt.ampbase}")
        a("s_load_dwordx2 s[54:55], s[0:1], 32")
        a(f"s_cmp_lg_u32 s24, {3 if opt.ampr == 'A' else 7}")
        a("s_cbranch_scc1 L_end")
        a("s_add_u32 s51, s50, 0x1000000")
        a("s_mov_b64 exec, 1")
        a("v_mov_b32 v16, s51"); a("v_mov_b32 v17, 0")
        a("s_waitcnt lgkmcnt(0)")
        a("global_atomic_add v18, v17, v16, s[54:55] sc0 sc1")
        a("s_waitcnt vmcnt(0)")
        a("v_readfirstlane_b32 s51, v18")
        a("s_nop 3")
        a("s_add_u32 s50, s50, s51")
        a("s_and_b32 s50, s50, 0xffffff")
        a(f"s_mul_i32 s50, s50, {opt.amp}")
        a("s_lshr_b32 s50, s50, 8")
        a("s_lshr_b32 s51, s51, 24")
        a("s_cmp_lg_u32 s51, 255")
        a("s_cselect_b32 s50, 0, s50")
        a("s_min_u32 s50, s50, 20000")
        a.lab("L_spin")
        a("s_sleep 2")
        a("s_memrealtime s[52:53]")
        a("s_waitcnt lgkmcnt(0)")
        a("s_sub_u32 s51, s52, s42")
        a("s_cmp_lt_u32 s51, s50")
        a("s_cbranch_scc1 L_spin")
    if opt.itst:
        a("s_load_dwordx2 s[40:41], s[0:1], 40")
        for i in range(32): a(f"v_writelane_b32 v16, s{62+i}, {i}")
        a("s_lshl_b32 s50, s2, 3"); a("s_add_u32 s50, s50, s24"); a("s_lshl_b32 s50, s50, 8")
        a(f"v_lshrrev_b32 v1, 2, v{vDma}")
        a("v_add_u32 v1, s50, v1")
        a("s_waitcnt lgkmcnt(0)")
        a("global_store_dword v1, v16, s[40:41]")
    if opt.stamp:
        a("s_mov_b64 exec, 1")
        a("s_waitcnt vmcnt(0)")
        stamp(8)
        a("s_memrealtime s[58:59]")
        a("s_getreg_b32 s42, hwreg(HW_REG_HW_ID)")
        a("s_getreg_b32 s43, hwreg(HW_REG_XCC_ID)")
        a("s_waitcnt lgkmcnt(0)")
        for i, sr in enumerate((56, 58, 42, 43, 60, 62, 64, 66, 68, 70, 72, 74, 76)):
            a(f"v_mov_b32 v{16+i}, s{sr}")
        a("s_lshl_b32 s50, s2, 3"); a("s_add_u32 s50, s50, s24"); a("s_lshl_b32 s50, s50, 6")
        a("v_mov_b32 v1, s50")
        for i in range(4): a(f"global_store_dwordx4 v1, v[{16+4*i}:{19+4*i}], s[40:41] offset:{16*i}")
    a.lab("L_end")
    a("s_endpgm")
    a.lab("L_slow")
    a("s_waitcnt vmcnt(0)")
    mA, mB = 0, vSlot
    def rewind(n):
        a(f"v_subrev_u32 v{vK}, {n*ST}, v{vK}")
        a(f"v_subrev_u32 v{vV}, {n*ST}, v{vV}")
        a("s_mov_b32 s29, 0")
    def scores():
        a(f"buffer_load_dword v{KXr['E']}, v{vK}, s[16:19], 0 offen offset:32")
        a(f"buffer_load_dword v{KXr['O']}, v{vK}, s[16:19], 0 offen offset:36")
        a(f"buffer_load_dwordx4 {vr(Kr['E'],4)}, v{vK}, s[16:19], 0 offen")
        a(f"buffer_load_dwordx4 {vr(Kr['O'],4)}, v{vK}, s[16:19], 0 offen offset:40")
        a("s_waitcnt vmcnt(0) lgkmcnt(0)")
        a(mf_x('E')); a(mf_x('O'))
        a("s_nop 15"); a("s_nop 3")
        for par in 'EO':
            for t in 'AB': a(mf_q(t, par))
        a("s_nop 15")
    def step(lab):
        a(f"v_add_u32 v{vK}, {ST}, v{vK}")
        a(f"v_add_u32 v{vV}, {ST}, v{vV}")
        a("s_add_u32 s29, s29, 1")
        a("s_cmp_lg_u32 s29, 32")
        a(f"s_cbranch_scc1 {lab}")
    rewind(32 - NB)
    a(f"v_mov_b32 v{mA}, 0xff800000"); a(f"v_mov_b32 v{mB}, 0xff800000")
    a.lab("L_max")
    scores()
    for par in 'EO':
        for t, m in (('A', mA), ('B', mB)):
            s = Sr[par] + (16 if t == 'B' else 0)
            for j in range(0, 16, 2): a(f"v_max3_f32 v{m}, v{m}, v{s+j}, v{s+j+1}")
    step("L_max")
    for m in (mA, mB):
        a(f"v_mov_b32 v{vT2}, v{m}")
        a("s_nop 1")
        a(f"v_permlane32_swap_b32 v{vT2}, v{m}")
        a("s_nop 1")
        a(f"v_max_f32 v{m}, v{m}, v{vT2}")
    rewind(32)
    for r in range(120, 152): a(f"v_mov_b32 v{r}, 0")
    a.lab("L_acc")
    for f in [ROWS] + rd_v('E', 0) + rd_v('O', 0) + [ALL]: a(f)
    scores()
    for par in 'EO':
        for t, m in (('A', mA), ('B', mB)):
            s = Sr[par] + (16 if t == 'B' else 0)
            for j in range(16): a(f"v_sub_f32 v{s+j}, v{s+j}, v{m}")
            for j in range(16): a(f"v_exp_f32 v{s+j}, v{s+j}")
    a("s_nop 1")
    for par in 'EO':
        for t in 'AB':
            for j in range(2): a(mf_pv(t, par, j))
    step("L_acc")
    a("s_nop 15")
    for t in 'AB':
        finish(t); a("s_nop 0"); finish2(t)
    a("s_waitcnt lgkmcnt(0)")
    for k in range(3): a(store(k))
    a("s_branch L_done")
    a.raw(f""".section .rodata,"a"
.p2align 6
.amdhsa_kernel {NAME}_kernel
  .amdhsa_next_free_vgpr {NV}
  .amdhsa_next_free_sgpr {100 if (opt.stamp or opt.amp or opt.itst) else 48}
  .amdhsa_accum_offset {NV}
  .amdhsa_group_segment_fixed_size 0
  .amdhsa_kernarg_size 48
  .amdhsa_user_sgpr_count 2
  .amdhsa_user_sgpr_kernarg_segment_ptr 1
  .amdhsa_system_sgpr_workgroup_id_x 1
.end_amdhsa_kernel""")
    return a.text()

def parse(argv):
    p = argparse.ArgumentParser()
    p.add_argument('-o', default=f"cdna_kernels/{NAME}.s")
    p.add_argument('--cut', type=int, default=3)
    p.add_argument('--pos', default='2,5,15,18,21,31,25')
    p.add_argument('--pf', type=int, default=2)
    p.add_argument('--bm', type=int, default=0)
    p.add_argument('--b2s', type=int, default=0)
    p.add_argument('--b3', type=int, default=2)
    p.add_argument('--nb', type=int, default=2)
    p.add_argument('--dss', type=int, default=1)
    p.add_argument('--half', type=int, default=0)
    p.add_argument('--kexp', type=int, default=0)
    p.add_argument('--ord', default='vkq')
    p.add_argument('--split', type=int, default=2)
    p.add_argument('--xs', type=float, default=35)
    p.add_argument('--tv', type=int, default=-1)
    p.add_argument('--padA', default='0')
    p.add_argument('--padB', default='1')
    p.add_argument('--stamp', type=int, default=0)
    p.add_argument('--itst', type=int, default=0)
    p.add_argument('--amp', type=int, default=0)
    p.add_argument('--ampt', type=int, default=0)
    p.add_argument('--ampa', type=int, default=0)
    p.add_argument('--ampb', type=int, default=8)
    p.add_argument('--ampr', default='')
    p.add_argument('--ampbase', type=int, default=44000)
    return p.parse_args(argv)

if __name__ == '__main__':
    opt = parse(sys.argv[1:])
    open(opt.o, 'w').write(gen(opt))
```

```python
import sys, struct, math, argparse

NAME = "standalone__fused_io_aware_attn__prompt"
HB = 73728
ST = 2304
VBASE = HB
ABASE = 2 * HB
LDS = ABASE + 3 * 4096
OOR = 0x28000

def f2u(x): return struct.unpack('<I', struct.pack('<f', x))[0]
CSCALE = f2u(math.log2(math.e) / math.sqrt(18.0))

vSlot, vK, vV, vInc, vIdx, vQo, vDma, vT2 = 1, 2, 3, 4, 6, 7, 14, 15
KXr = {'E': 8, 'O': 176}
QX = {'E': 10, 'O': 12}
Kr = {'E': 16, 'O': 20}
Qr = {('A', 'E'): 24, ('B', 'E'): 28, ('A', 'O'): 32, ('B', 'O'): 36}
Vr = {('E', 0): 40, ('E', 1): 44, ('O', 0): 48, ('O', 1): 52, ('T', 0): 168, ('T', 1): 172}
Sr = {'E': 56, 'O': 88}
Or = {'A': 120, 'B': 136}
TR = 152
KX0 = {'E': 178, 'O': 180}
K0 = {'E': 182, 'O': 186}
vStA, vStB, vStR, vR, vWE, vWO, vInc8 = 190, 191, 192, 193, 194, 195, 196
NV = 200
AL = dict(on=False)
def kx(par): return KX0[par] if AL['on'] else KXr[par]
def kr(par): return K0[par] if AL['on'] else Kr[par]
def vv(par, j): return Vr[('T', j)] if (AL['on'] and par == 'E') else Vr[(par, j)]
def vr(b, n): return f"v[{b}:{b+n-1}]"

class Asm:
    def __init__(self): self.l = []
    def __call__(self, s, c=None): self.l.append("    " + s + (f"    ; {c}" if c else ""))
    def lab(self, s): self.l.append(s + ":")
    def raw(self, s): self.l.append(s)
    def note(self, s): self.l.append("    ; " + s)
    def text(self): return "\n".join(x.rstrip() for x in self.l) + "\n"

def mf_x(par):
    return f"v_mfma_f32_32x32x4_2b_bf16 {vr(Sr[par],32)}, {vr(kx(par),2)}, {vr(QX[par],2)}, 0 cbsz:1 abid:0"
def mf_q(t, par):
    s = Sr[par] + (16 if t == 'B' else 0)
    return f"v_mfma_f32_32x32x16_bf16 {vr(s,16)}, {vr(kr(par),4)}, {vr(Qr[(t,par)],4)}, {vr(s,16)}"
def mf_pv(t, par, j, vs=None):
    s = Sr[par] + (16 if t == 'B' else 0) + 8 * j
    return f"v_smfmac_f32_32x32x32_bf16 {vr(Or[t],16)}, {vr(vv(vs or par,j),4)}, {vr(s,8)}, v{vIdx}"
def ex(par, i): return f"v_exp_f32 v{Sr[par]+i}, v{Sr[par]+i}"
def rd_kx(u): return [f"ds_read_b32 v{kx('E')}, v{vK} offset:{u*ST+32}", f"ds_read_b32 v{kx('O')}, v{vK} offset:{u*ST+36}"]
def rd_k(par, u):
    o = u * ST + (40 if par == 'O' else 0)
    return [f"ds_read_b64 {vr(kr(par),2)}, v{vK} offset:{o}", f"ds_read_b64 {vr(kr(par)+2,2)}, v{vK} offset:{o+8}"]
def rd_v(par, u):
    return [f"ds_read_b128 {vr(vv(par,j),4)}, v{vV} offset:{u*ST + (0 if par == 'E' else 1152) + 576*j}" for j in range(2)]
ROWS = "s_mov_b64 exec, s[12:13]"
LOW = "s_mov_b32 exec_hi, 0"
ALL = "s_mov_b64 exec, -1"

def phase_list(par, opt):
    oth = 'O' if par == 'E' else 'E'
    pos = [int(x) for x in opt.pos.split(',')]
    mf = {pos[0]: mf_pv('B', oth, 1), pos[1]: mf_x(oth), pos[2]: mf_pv('A', par, 0), pos[3]: mf_pv('A', par, 1),
          pos[4]: mf_q('A', oth), pos[5]: mf_pv('B', par, 0), pos[6]: mf_q('B', oth)}
    out = []
    for i in range(32):
        if i in mf: out.append((i, 'm', mf[i]))
        out.append((i, 'e', ex(par, i)))
    return out

def gen(opt):
    NB = opt.nb
    assert opt.ord == 'vkq' and opt.split == 2
    a = Asm()
    def stamp(i):
        if opt.stamp and (opt.stamp != 3 or i in (0, 7, 8)): a(f"s_memtime s[{60+2*i}:{61+2*i}]")
        if opt.amp and i in (opt.ampa, opt.ampb): a(f"{'s_memrealtime' if opt.ampt else 's_memtime'} s[{60+2*i}:{61+2*i}]")
    smem = opt.stamp == 1 or (opt.amp and not (opt.ampa in (0, 7) and opt.ampb in (7, 8)))
    def lgkm(n): a(f"s_waitcnt lgkmcnt({0 if smem else n})")
    a.raw(f"""; Fused attention forward, B=2 H=32 S=2048 D=18, bf16 in/out (emitted by my own generator script).
; @launch grid=(256,1,1) block=(512,1,1) lds={LDS}
.amdgcn_target "amdgcn-amd-amdhsa--gfx950"
.text
.globl {NAME}_kernel
.p2align 8
.type {NAME}_kernel,@function
{NAME}_kernel:""")
    stamp(0)
    if opt.stamp: a("s_memrealtime s[56:57]")
    a("s_load_dwordx8 s[4:11], s[0:1], 0", "q, k, v, out")
    if opt.pf:
        a("s_getpc_b64 s[36:37]")
        if opt.pf == 1:
            a(f"v_mul_u32_u24 v{vT2}, 9, v0")
            a(f"global_load_ubyte v{vT2}, v{vT2}, s[36:37] offset:116", "pulls this kernel's code lines into L2")
        else:
            a(f"v_mad_u64_u32 v[16:17], vcc, v0, { {1: 9, 2: 11, 4: 15}[NB] }, s[36:37]")
            a(f"global_load_ubyte v{vT2}, v[16:17], off offset:116", "pulls this kernel's own code lines into L2")
    a("v_readfirstlane_b32 s24, v0", "64 * wave")
    a("s_and_b32 s3, s2, 7")
    a("s_lshr_b32 s25, s2, 3")
    a("s_lshl_b32 s3, s3, 5")
    a("s_add_u32 s3, s3, s25", "4 * head + query block")
    a("s_cmpk_ge_u32 s2, 256")
    a("s_cbranch_scc1 L_end")
    a(f"v_lshl_add_u32 v{vQo}, s3, 9, v0")
    a(f"v_mul_u32_u24 v{vQo}, 36, v{vQo}", "one Q row per lane")
    a("s_cmpk_ge_u32 s24, 256")
    a("s_cbranch_scc1 L_setup", "role B (waves 4..7) starts its loads after role A's")
    t0, t1 = Sr['E'] + 8, Sr['E'] + 9
    T = Sr['O']
    def qloads():
        a(f"global_load_dword v{T+8}, v{vQo}, s[4:5] offset:32")
        a(f"global_load_dwordx4 {vr(T,4)}, v{vQo}, s[4:5]")
        a(f"global_load_dwordx4 {vr(T+4,4)}, v{vQo}, s[4:5] offset:16")
    kv = opt.ord == 'kvq'
    hv = opt.ord == 'h'
    if hv:
        a("s_lshr_b32 s25, s3, 2")
        a(f"s_mul_i32 s25, s25, {HB}")
        a("s_and_b32 s26, s24, 64")
        a("s_mul_i32 s26, s26, 36", "waves 0,1: V super tiles 0,1; waves 2,3: K super tiles 0,1")
        a("s_add_u32 s25, s25, s26")
        a(f"v_and_b32 v{t0}, 63, v0")
        a(f"v_lshl_add_u32 v{t0}, v{t0}, 4, s25")
        a("s_cmpk_lt_u32 s24, 128")
        a(f"s_cselect_b32 s27, {VBASE}, 0")
        a("s_waitcnt lgkmcnt(0)")
        stamp(1)
        a("s_cselect_b64 s[42:43], s[8:9], s[6:7]")
        a("s_add_u32 m0, s26, s27")
        a(f"v_add_u32 v{t1}, {2*ST}, v{t0}")
        for t in (t0, t1):
            a(f"global_load_lds_dwordx4 v{t}, s[42:43]")
            a(f"global_load_lds_dwordx4 v{t}, s[42:43] offset:1024")
            a("s_mov_b64 exec, 0xffff")
            a(f"global_load_lds_dwordx4 v{t}, s[42:43] offset:2048")
            a(ALL)
            if t == t0:
                a(f"s_add_u32 m0, m0, {2*ST}", "super tiles 2,3 follow the Q rows")
                qloads()
    else:
        a("s_lshr_b32 s25, s3, 2")
        a(f"s_mul_i32 s25, s25, {HB}")
        a("s_mul_i32 s26, s24, 20")
        a("s_add_u32 s26, s26, s25")
        a(f"v_lshl_add_u32 v{t0}, v0, 4, s26")
        a("s_mul_i32 s26, s24, 36", "super tile `wave` of V and of K")
        p1, p2 = ("s[6:7]", "s[8:9]") if kv else ("s[8:9]", "s[6:7]")
        a("s_mov_b32 m0, s26" if kv else f"s_add_u32 m0, s26, {VBASE}")
        a("s_waitcnt lgkmcnt(0)")
        stamp(1)
        a(f"global_load_lds_dwordx4 v{t0}, {p1}")
        a(f"global_load_lds_dwordx4 v{t0}, {p1} offset:1024")
        a("s_mov_b64 exec, 0xffff")
        a(f"global_load_lds_dwordx4 v{t0}, {p1} offset:2048")
        if opt.half: a(ALL)
        else:
            a(f"s_add_u32 m0, s26, {VBASE}" if kv else "s_mov_b32 m0, s26")
            a("s_nop 0")
            a(f"global_load_lds_dwordx4 v{t0}, {p2} offset:2048")
            a(ALL)
            a(f"global_load_lds_dwordx4 v{t0}, {p2}")
            a(f"global_load_lds_dwordx4 v{t0}, {p2} offset:1024")
        qloads()
    a.lab("L_setup")
    if opt.stamp:
        a("s_load_dwordx2 s[40:41], s[0:1], 40")
        if opt.stamp == 3:
            for i in range(62, 74): a(f"s_mov_b32 s{i}, 0")
    a(f"v_lshlrev_b32 v{vSlot}, 3, v0")
    a("v_and_b32 v0, 63, v0")
    a("s_lshr_b32 s24, s24, 6", "wave id")
    a("s_lshr_b32 s25, s3, 2")
    a(f"s_mul_i32 s25, s25, {HB}", "head byte offset")
    a("s_lshl3_add_u32 s26, s3, s24")
    a(f"s_mul_i32 s26, s26, {ST}", "output byte offset of this wave")
    a(f"v_lshlrev_b32 v{vDma}, 4, v0")
    a("s_cmp_lt_u32 s24, 4")
    a("s_cselect_b32 s28, 8, 0")
    a("s_add_u32 s28, s28, s24")
    a(f"s_mul_i32 s27, s28, {ST}", "byte offset of this wave's next super tile to load")
    a(f"s_mov_b32 s18, {HB}")
    a("s_mov_b32 s19, 0x00020000")
    a(f"s_mov_b32 s46, {HB}")
    a("s_mov_b32 s47, 0x00020000")
    a(f"s_movk_i32 s22, {ST}")
    a("s_mov_b32 s23, 0x00020000")
    def dma():
        a("s_mov_b32 m0, s27")
        a("s_nop 0")
        a(f"buffer_load_dwordx4 v{vDma}, s[16:19], s27 offen lds")
        a(f"buffer_load_dwordx4 v{vDma}, s[16:19], s27 offen offset:1024 lds")
        a("s_mov_b64 exec, 0xffff")
        a(f"buffer_load_dwordx4 v{vDma}, s[16:19], s27 offen offset:2048 lds")
        a("s_add_u32 m0, s27, s18")
        a("s_nop 0")
        a(f"buffer_load_dwordx4 v{vDma}, s[44:47], s27 offen offset:2048 lds")
        a(ALL)
        a(f"buffer_load_dwordx4 v{vDma}, s[44:47], s27 offen lds")
        a(f"buffer_load_dwordx4 v{vDma}, s[44:47], s27 offen offset:1024 lds")
        a(f"s_add_u32 s27, s27, {8*ST}")
    def tr_read():
        for u in range(2):
            for j in range(2):
                for p in range(2):
                    a(f"ds_read_b64_tr_b16 {vr(TR+8*u+4*j+2*p,2)}, v{vR} offset:{40*u + (4*j+p)*72}")
    def tr_write(step):
        a(ROWS)
        for j in range(2): a(f"ds_write_b128 v{vWE}, {vr(TR+4*j,4)} offset:{576*j}")
        a("s_mov_b64 exec, s[14:15]")
        for j in range(2): a(f"ds_write_b128 v{vWO}, {vr(TR+8+4*j,4)} offset:{576*j}")
        a(ALL)
        if step == 8 and opt.dss:
            a("s_waitcnt lgkmcnt(12)")
            a(f"ds_add_rtn_u64 {vr(vWE,2)}, v{vSlot}, {vr(vInc8,2)} offset:4096")
            a(f"ds_add_rtn_u32 v{vR}, v{vSlot}, v{vInc8} offset:8192")
            return
        if step == 8: a("s_setprio 3")
        if step:
            for r in (vR, vWE, vWO): a(f"v_add_u32 v{r}, {step*ST}, v{r}")
    a("s_waitcnt lgkmcnt(0)")
    a("s_add_u32 s16, s6, s25")
    a("s_addc_u32 s17, s7, 0")
    a("s_add_u32 s44, s8, s25")
    a("s_addc_u32 s45, s9, 0")
    a("s_add_u32 s20, s10, s26")
    a("s_addc_u32 s21, s11, 0")
    C = Sr['E']
    t3, t4, t5 = C + 4, C + 5, C + 6
    a(f"v_mov_b32 v{QX['E']}, 0"); a(f"v_mov_b32 v{QX['E']+1}, 0")
    a(f"v_and_b32 v{t0}, 31, v0", "MFMA row m")
    a(f"v_lshrrev_b32 v{t1}, 5, v0", "half wave h")
    a(f"v_mfma_f32_32x32x4_2b_bf16 {vr(120,32)}, {vr(QX['E'],2)}, {vr(QX['E'],2)}, 0")
    a(f"v_cmp_eq_u32 vcc, 20, v{t0}")
    a(f"v_mov_b32 v{t4}, 0x3f803f80")
    a("s_mov_b32 s12, 0x0003ffff"); a("s_mov_b32 s13, 0x0003ffff")
    a("s_mov_b32 s14, 0x00c0ffff"); a("s_mov_b32 s15, 0x00c0ffff")
    a(f"v_cndmask_b32 v40, 0, v{t4}, vcc")
    a(f"v_cndmask_b32 v41, 0, v{t4}, vcc")
    for r in list(range(42, 56, 2)) + list(range(168, 176, 2)): a(f"v_pk_mov_b32 {vr(r,2)}, v[40:41], v[40:41]")
    a(f"v_and_b32 v{t3}, 3, v0")
    a(f"v_lshrrev_b32 v{t4}, 2, v{t0}")
    a(f"v_lshl_add_u32 v{t4}, v{t3}, 3, v{t4}")
    a(f"v_mul_u32_u24 v{vK}, 72, v{t4}")
    a(f"v_lshl_add_u32 v{vK}, v{t1}, 4, v{vK}")
    a(f"v_bfe_u32 v{t4}, v0, 3, 1")
    a(f"v_lshl_add_u32 v{t3}, v{t4}, 2, v{t3}")
    a(f"v_and_b32 v{t4}, 4, v0")
    a(f"v_lshlrev_b32 v{t4}, 1, v{t4}")
    a(f"v_sub_u32 v{t3}, v{t3}, v{t4}")
    a(f"v_add_u32 v{t3}, 8, v{t3}")
    a(f"v_cmp_lt_u32 vcc, 15, v{t0}")
    a(f"v_and_b32 v{t4}, 1, v0")
    a(f"v_add_u32 v{t4}, 16, v{t4}")
    a(f"v_cndmask_b32 v{t3}, v{t3}, v{t4}, vcc")
    a(f"v_mul_u32_u24 v{t5}, 18, v{t1}")
    a("s_cmp_lt_u32 s24, 4")
    a(f"s_cselect_b32 s29, 0, {4*ST}")
    a("s_sub_u32 s29, s27, s29")
    a("s_add_u32 s29, s29, s18", "first V super tile this wave transposes")
    for sub, dst, extra in ((4, vWE, 0), (2, vWO, 72)):
        a(f"v_subrev_u32 v{t4}, {sub}, v{t3}")
        a(f"v_add_u32 v{dst}, 18, v{t4}")
        a(f"v_min_u32 v{t4}, v{t4}, v{dst}")
        a(f"v_add_u32 v{t4}, v{t4}, v{t5}")
        if extra: a(f"v_add_u32 v{t4}, {extra}, v{t4}")
        else: a(f"v_lshl_add_u32 v{vV}, v{t4}, 4, s18")
        a(f"v_lshl_add_u32 v{dst}, v{t4}, 4, s29")
    a(f"v_and_b32 v{t3}, 12, v0")
    a(f"v_add_lshl_u32 v{t3}, v{t3}, v{t1}, 1")
    a(f"v_mul_u32_u24 v{t3}, 72, v{t3}")
    a(f"v_and_b32 v{t4}, 1, v0")
    a(f"v_lshlrev_b32 v{t4}, 4, v{t4}")
    a(f"v_sub_u32 v{t3}, v{t3}, v{t4}")
    a(f"v_and_b32 v{t4}, 2, v0")
    a(f"v_lshl_add_u32 v{t3}, v{t4}, 2, v{t3}")
    a(f"v_and_b32 v{t4}, 16, v0")
    a(f"v_add3_u32 v{t3}, v{t4}, v{t3}, s29")
    a(f"v_add_u32 v{t4}, 16, v{t3}")
    a(f"v_subrev_u32 v{t3}, 8, v{t3}")
    a("s_mov_b32 vcc_lo, 0x22220000"); a("s_mov_b32 vcc_hi, 0x22220000")
    a(f"v_cndmask_b32 v{t3}, v{t4}, v{t3}, vcc")
    a(f"v_mov_b32 v{t4}, {OOR:#x}")
    a("s_mov_b32 vcc_lo, 0xcccc0000"); a("s_mov_b32 vcc_hi, 0xcccc0000")
    a(f"v_cndmask_b32 v{vR}, v{t3}, v{t4}, vcc")
    for r in list(KXr.values()) + list(KX0.values()): a(f"v_mov_b32 v{r+1}, 0x3f80")
    for par in 'EO': a(f"v_mov_b32 v{QX[par]+1}, {f2u(opt.xs) >> 16:#x}", "constant softmax shift")
    a(f"v_mov_b32 v{vIdx}, 0xdddd", "sparse index: elements 1 and 3 of every group of four")
    a(f"v_mov_b32 v{vInc}, {NB*ST}")
    a(f"v_mov_b32 v{vInc+1}, {NB*ST}")
    a(f"v_add_u32 v{C+2}, v{vK}, v{vInc}")
    a(f"v_add_u32 v{C+3}, v{vV}, v{vInc}")
    a(f"v_add_u32 v{vSlot}, {ABASE}, v{vSlot}")
    a(f"ds_write_b64 v{vSlot}, {vr(C+2,2)}", "address counters, stepped by ds_add_rtn_u64")
    if opt.dss:
        a("s_cmp_lt_u32 s24, 4")
        a(f"s_cselect_b32 s29, 0, {4*ST}")
        a(f"v_mov_b32 v{vInc8}, {8*ST}")
        a(f"v_mov_b32 v{vInc8+1}, {8*ST}")
        a(f"v_add3_u32 v{C}, v{vWE}, v{vInc8}, s29")
        a(f"v_add3_u32 v{C+1}, v{vWO}, v{vInc8}, s29")
        a(f"v_add3_u32 v{t3}, v{vR}, v{vInc8}, s29")
        a(f"ds_write_b64 v{vSlot}, {vr(C,2)} offset:4096")
        a(f"ds_write_b32 v{vSlot}, v{t3} offset:8192")
    a(f"s_mul_i32 s28, s24, {ST}")
    a(f"v_mul_u32_u24 v{vStA}, 36, v{t0}")
    a(f"v_lshlrev_b32 v{t4}, 4, v{t1}")
    a(f"v_sub_u32 v{vStA}, v{vStA}, v{t4}")
    a(f"v_add3_u32 v{vStA}, v{vStA}, 16, s28")
    a(f"v_add_u32 v{vStB}, 1152, v{vStA}")
    a(f"v_add_u32 v{vStR}, s28, v{vDma}")
    a(f"s_mov_b32 s30, {CSCALE:#x}", "log2(e)/sqrt(18)"); a(f"s_mov_b32 s31, {CSCALE:#x}")
    a("s_mov_b32 s29, 1", "super tile counter")
    a("s_mov_b32 s32, 0x8088", "barrier schedule")
    a("s_mov_b32 s33, 0x80008088")
    a(f"s_mov_b32 s38, {0x8000ddd0 | (4 if opt.bm else 0):#x}", "iterations with extra work, role A")
    a("s_mov_b32 s39, 0x8000dddc", "role B")
    a("s_mov_b32 s34, 0xffff0000")
    a("s_mov_b32 s35, 0x7b800000", "2^120")
    a("s_mov_b64 vcc, 0")
    a("s_cmp_ge_u32 s24, 4", "SCC = role B (kept until the loops)")
    bump = f"ds_add_rtn_u64 {vr(vK,2)}, v{vSlot}, {vr(vInc,2)}"
    bK, bX = rd_k('E', 1) + rd_k('O', 1), rd_kx(1)
    bV = rd_v('O', 0) + rd_v('E', 1)
    late = []; lateA = []
    if hv:
        AL['on'] = True
        rdK0 = rd_kx(0) + rd_k('E', 0) + rd_k('O', 0) + bX + bK
        rdV0 = [ROWS] + rd_v('E', 0) + bV + [ALL, bump]
        if opt.amp: stamp(9)
        a("s_cbranch_scc0 L_vA")
        a("s_cmp_ge_u32 s24, 6")
        a("s_barrier", "super tiles 0,1 are in")
        a("s_cbranch_scc1 L_v1")
        tr_read()
        a.lab("L_v1")
        qloads()
        a("s_cbranch_scc1 L_v2")
        a("s_waitcnt lgkmcnt(0)")
        tr_write(0)
        a("s_waitcnt lgkmcnt(0)")
        a.lab("L_v2")
        if opt.b2s:
            stamp(2)
            a("s_barrier", "V super tiles 0,1 are transposed")
            for f in rdK0: a(f)
            a("s_waitcnt lgkmcnt(8)")
            for f in rdV0: a(f)
            a("s_waitcnt lgkmcnt(7)")
            a("s_barrier", "super tiles 2,3 are in")
        else:
            for f in rdK0: a(f)
            a("s_waitcnt lgkmcnt(0)")
            stamp(2)
            a("s_barrier", "V super tiles 0,1 are transposed, super tiles 2,3 are in")
        a("s_cbranch_scc0 L_v3")
        tr_read()
        a("s_waitcnt lgkmcnt(0)")
        tr_write(0)
        a("s_waitcnt lgkmcnt(0)")
        a.lab("L_v3")
        a("s_barrier", "V super tiles 2,3 are transposed")
        if not opt.b2s:
            for f in rdV0: a(f)
        a("s_setprio 3")
        for r in (vR, vWE, vWO): a(f"v_add_u32 v{r}, {4*ST}, v{r}")
        a("s_cmp_ge_u32 s24, 4")
        a("s_waitcnt vmcnt(0)")
        a("s_branch L_prep")
        a.raw("    .p2align 3")
        a.lab("L_vA")
        a("s_waitcnt vmcnt(6)")
        stamp(2)
        a("s_barrier", "super tiles 0,1 are in")
        if opt.amp: stamp(10)
        for f in rdK0: a(f)
        a.lab("L_prep")
        lateA = (["s_barrier"] if opt.b2s else ["s_waitcnt vmcnt(0)", "s_barrier"]) + rdV0
    elif kv:
        a(f"s_waitcnt vmcnt({3 if opt.half else 6})")
        a("s_barrier", "K super tiles 0..3 are in: role B starts its Q loads")
        a("s_cbranch_scc0 L_noq")
        qloads()
        a.lab("L_noq")
        AL['on'] = True
        for f in rd_kx(0) + rd_k('E', 0) + rd_k('O', 0) + bX + bK: a(f)
        rdV0 = [ROWS] + rd_v('E', 0) + bV + [ALL, bump]
        a("s_cbranch_scc0 L_vA")
        a("s_waitcnt lgkmcnt(0)")
        stamp(2)
        a("s_barrier", "V super tiles 0..3 are in")
        tr_read()
        a("s_waitcnt lgkmcnt(0)")
        tr_write(0)
        a("s_waitcnt lgkmcnt(0)")
        a("s_barrier", "V super tiles 0..3 are transposed")
        for f in rdV0: a(f)
        a("s_setprio 3")
        for r in (vR, vWE, vWO): a(f"v_add_u32 v{r}, {4*ST}, v{r}")
        a("s_branch L_prep")
        a.raw("    .p2align 3")
        a.lab("L_vA")
        a("s_waitcnt vmcnt(3) lgkmcnt(0)")
        stamp(2)
        a("s_barrier", "V super tiles 0..3 are in")
        a.lab("L_prep")
        lateA = ["s_barrier"] + rdV0
    else:
        if opt.amp: stamp(9)
        a(f"s_waitcnt vmcnt({3 if opt.half else 6})")
        a("s_barrier", "V super tiles 0..3 are in: role B transposes them and starts its Q loads")
        if opt.amp: stamp(10)
        a("s_cbranch_scc0 L_noq")
        tr_read()
        qloads()
        a("s_waitcnt lgkmcnt(0)")
        tr_write(4)
        a.lab("L_noq")
        a.raw("    .p2align 3")
        a("s_waitcnt vmcnt(3) lgkmcnt(0)")
        stamp(2)
        a("s_barrier", "K super tiles 0..3 are in, V super tiles 0..3 are transposed")
        AL['on'] = True
        if opt.split:
            for f in rd_kx(0) + rd_k('E', 0) + rd_k('O', 0) + [ROWS, "s_setprio 3"] + rd_v('E', 0) + [ALL]: a(f)
            if opt.split == 1: lgkm(4)
            late = bK + [LOW] + bX + [ROWS] + bV + [ALL] + ([bump] if NB == 1 else [])
        else:
            for f in rd_kx(0) + rd_k('E', 0) + rd_k('O', 0) + bX + bK: a(f)
            a(ROWS)
            lgkm(8)
            for f in rd_v('E', 0) + bV + [ALL, "s_setprio 3", bump]: a(f)
    stamp(3)
    W = T + 10
    QAE, QBE, QAO, QBO = Qr[('A','E')], Qr[('B','E')], Qr[('A','O')], Qr[('B','O')]
    def shl(j): a(f"v_lshlrev_b32 v{W+2*j}, 16, v{T+j}")
    def msk(j): a(f"v_and_b32 v{W+2*j+1}, s34, v{T+j}")
    def mul(j): a(f"v_pk_mul_f32 {vr(W+2*j,2)}, {vr(W+2*j,2)}, s[30:31]")
    def cvt(j, d): a(f"v_cvt_pk_bf16_f32 v{d}, v{W+2*j}, v{W+2*j+1}")
    a(f"s_waitcnt vmcnt(3) lgkmcnt({0 if smem else 8})" if hv else "s_waitcnt vmcnt(0)")
    stamp(4)
    if opt.split == 2 and opt.ord == 'vkq':
        shl(8); msk(8); mul(8); cvt(8, QX['E']); cvt(8, QBO + 3)
        shl(0)
        lgkm(4)
        a(mf_x('E'))
        a(f"v_and_b32_e64 v{W+1}, s34, v{T}")
    else:
        shl(8)
        a(f"v_and_b32_e64 v{W+17}, s34, v{T+8}")
        mul(8); cvt(8, QX['E'])
        shl(0); msk(0)
        a(mf_x('E'))
        cvt(8, QBO + 3)
    for j in range(1, 8): shl(j); msk(j)
    for j in range(8): mul(j)
    for j in range(4): cvt(j, QAE + j)
    for j in range(4): cvt(4 + j, QBE + j)
    for j in range(4): a(f"v_permlane32_swap_b32 v{QAE+j}, v{QBE+j}")
    cvt(4, QAO + 3)
    cvt(0, QX['O'])
    a(mf_q('A', 'E'))
    a("s_waitcnt lgkmcnt(0)")
    a(f"v_permlane32_swap_b32 v{QAO+3}, v{QBO+3}")
    for j in range(0, 3): a(f"v_mov_b32 v{QAO+j}, v{QAE+j+1}")
    for j in range(0, 3): a(f"v_mov_b32 v{QBO+j}, v{QBE+j+1}")
    a(mf_q('B', 'E'))
    for f in late: a(f)
    a("s_cbranch_scc1 L_startB")
    a("s_setprio 2")
    for f in lateA: a(f)
    if not late and not lateA: a("s_nop 0")
    cut = opt.cut
    pos0 = int(opt.pos.split(',')[0])
    assert cut > pos0
    a.lab("L_first")
    if opt.kexp:
        a("s_waitcnt lgkmcnt(0)")
        if opt.kexp != 9:
            a(f"v_add_u32 v{vK}, {ST}, v{vDma}")
        else:
            a(f"v_add_u32 v{vK}, 0, v{vK}")
        a(f"v_add_u32 v{vT2}, v{vK}, v{vInc}")
        a(f"ds_write_b32 v{vSlot}, v{vT2}")
        if opt.kexp != 9:
            bK = [f"ds_read_b128 {vr(Kr['E'],4)}, v{vK} offset:{ST}", f"ds_read_b128 {vr(Kr['O'],4)}, v{vK} offset:{ST+1024}"]
            bX = ["s_lshl_b32 m0, s29, 8", ALL, f"ds_read_addtid_b32 v{KXr['E']} offset:4096"] + ["s_nop 0"] * 4
        if opt.kexp == 2: bump = f"ds_add_rtn_u32 v{vK}, v{vSlot}, v{vInc}"
    stamp(5)
    for (i, k_, s_) in phase_list('E', opt):
        if lateA and 'smfmac' in s_ and i > pos0:
            a("s_waitcnt lgkmcnt(0)"); lateA = None
        if not (i == pos0 and k_ == 'm'): a(s_)
        if hv and opt.b2s and k_ == 'm' and i == opt.b2s:
            assert not opt.bm
            a("s_cbranch_scc1 L_nob2")
            a("s_waitcnt vmcnt(0)")
            a("s_barrier", "super tiles 2,3 are in")
            a.lab("L_nob2")
        if late and 'smfmac' in s_ and i > 25: a("s_waitcnt lgkmcnt(0)")
    for (i, k_, s_) in phase_list('O', opt):
        if i < cut: a(s_)
    AL['on'] = False
    pE, pO = phase_list('E', opt), phase_list('O', opt)
    seg = [s_ for (i, k_, s_) in pO if i >= cut] + [s_ for (i, k_, s_) in pE] + [s_ for (i, k_, s_) in pO if i < cut]
    npv = 0
    for s_ in seg:
        a(s_)
        if hv and 'smfmac' in s_:
            npv += 1
            if npv == opt.b3:
                if not opt.bm: a("s_cbranch_scc1 L_nob3")
                a("s_barrier", "role A: V super tiles 2,3 are transposed; role B: matched in role A's first burst")
                a.lab("L_nob3")
    a(f"s_cbranch_scc0 L_topA{2 % NB}")
    a(f"s_branch L_topB{2 % NB}")
    if opt.bm:
        a.lab("L_evA")
        a("s_cmp_lg_u32 s29, 2")
        a("s_cbranch_scc1 L_ev")
        a("s_barrier")
        a("s_branch L_backA")
    a.lab("L_startB")
    a("s_setprio 1")
    dma()
    a("s_cmp_ge_u32 s24, 4")
    a("s_branch L_first")
    def back(n):
        if not opt.dss: raise SystemExit("dss required")
        a("s_cmp_ge_u32 s24, 4")
        a(f"s_cbranch_scc0 L_backA{n % NB}")
        a(f"s_branch L_backB{n % NB}")
    a.lab("L_ev")
    if NB == 1:
        a("s_bitcmp1_b32 s29, 0")
        a("s_cbranch_scc1 L_evW")
    a.lab("L_evE")
    if NB <= 2:
        a("s_bitcmp1_b32 s29, 1")
        a("s_cbranch_scc0 L_evD")
    a.lab("L_evR")
    a("s_waitcnt vmcnt(0) lgkmcnt(7)")
    tr_read()
    back(2)
    a.lab("L_evW")
    a("s_cmp_eq_u32 s29, 31")
    a("s_cbranch_scc1 L_ev31")
    tr_write(8)
    back(3)
    a.lab("L_evD")
    dma()
    back(0)
    a.lab("L_ev31")
    a("s_mov_b64 vcc, 1", "last segment: it runs on into the tail")
    if NB == 1: a("s_waitcnt lgkmcnt(0)")
    for f in [ROWS] + rd_v('T', NB - 1) + [ALL]: a(f)
    back(3)
    def reads(u): return rd_k('E', u) + rd_k('O', u) + [LOW] + rd_kx(u) + [ROWS] + rd_v('O', u-1) + rd_v('E', u) + [ALL] + ([bump] if u == NB else [])
    pads = {'A': [int(x) for x in opt.padA.split(',')], 'B': [int(x) for x in opt.padB.split(',')]}
    for role in 'AB':
        a.raw("    .p2align 6")
        pad = pads[role][0]
        if pad: a.raw(f"    .fill {pad}, 4, 0xbf800000    ; never executed: sets the loop's fetch alignment")
        for c in range(NB):
            last = c == NB - 1
            a.lab(f"L_top{role}{c}")
            if role == 'A': a("s_setprio 0")
            a("s_add_u32 s29, s29, 1")
            if opt.itst: a("s_memtime s[48:49]")
            for f in reads(c if c else NB): a(f)
            if not (NB == 4 and c == 1):
                a(f"s_bitcmp1_b32 {'s38' if role == 'A' else 's39'}, s29")
                a("s_cbranch_scc1 " + ("L_ev" if NB == 1 else ("L_evW" if last else ("L_evE" if NB == 2 else ("L_evD" if c == 0 else "L_evR")))))
            a.lab(f"L_back{role}{c}")
            if last: a(f"s_bitcmp1_b32 {'s33' if role == 'A' else 's32'}, s29", "SCC: a barrier follows this " + ("segment" if role == 'A' else "burst"))
            if c and len(pads[role]) > c:
                for k in range(pads[role][c]): a("s_waitcnt lgkmcnt(4)")
            a("s_waitcnt lgkmcnt(0)")
            if opt.itst:
                a("s_mov_b32 m0, s29"); a("s_nop 0"); a("s_movreld_b32 s62, s48"); a("s_nop 0"); a("s_nop 0"); a("s_nop 0")
            if role == 'B' and last:
                a(f"s_cbranch_scc0 L_segB{c}")
                a("s_barrier")
            a.lab(f"L_seg{role}{c}")
            nm = 0
            for s_ in seg:
                a(s_)
                if role == 'A' and ('smfmac' in s_ or 'x16_bf16' in s_):
                    nm += 1
                    if nm == opt.prn: a("s_setprio 2")
        if role == 'A':
            a("s_cbranch_scc0 L_topA0")
            a("s_cbranch_vccnz L_tail")
            a("s_barrier")
            a("s_branch L_topA0")
        else:
            a("s_cbranch_vccz L_topB0")
    R = Sr['E']
    PK = {'A': Sr['E'] + 8, 'B': Sr['E'] + 14}
    OB = Sr['E'] + 20
    def finish(t, fill=None):
        O = Or[t]
        rc = R + 2 if t == 'A' else R + 4
        a(f"v_pk_mov_b32 {vr(rc,2)}, {vr(O+8,2)}, {vr(O+8,2)} op_sel:[0,0]", "denominator sits in the upper half wave")
        for f in (fill or ["s_nop 1"]): a(f)
        a(f"v_permlane32_swap_b32 v{rc}, v{rc+1}")
        a(f"v_rcp_f32 v{rc}, v{rc+1}")
    def finish2(t):
        O = Or[t]
        rc = R + 2 if t == 'A' else R + 4
        for j in (8, 0, 2, 4, 6):
            a(f"v_pk_mul_f32 {vr(O+j,2)}, {vr(O+j,2)}, {vr(rc,2)} op_sel_hi:[1,0]")
        st = vStA if t == 'A' else vStB
        for j in (4, 0, 1, 2, 3):
            a(f"v_cvt_pk_bf16_f32 v{PK[t]+j}, v{O+2*j}, v{O+2*j+1}")
        a(f"ds_write_b32 v{st}, v{PK[t]+4} offset:16", "upper half's word is overwritten by the next write")
        a(f"ds_write2_b32 v{st}, v{PK[t]}, v{PK[t]+1} offset0:0 offset1:1")
        a(f"ds_write2_b32 v{st}, v{PK[t]+2}, v{PK[t]+3} offset0:2 offset1:3")
        if t == 'A':
            a(f"ds_read_b128 {vr(OB,4)}, v{vStR}")
        else:
            a(f"ds_read_b128 {vr(OB+4,4)}, v{vStR} offset:1024")
            a(f"ds_read_b128 {vr(OB+8,4)}, v{vStR} offset:2048")
    def store(k): return f"buffer_store_dwordx4 {vr(OB+4*k,4)}, v{vDma}, s[20:23], 0 offen offset:{1024*k} sc1"
    a.lab("L_tail")
    tm = {10: mf_pv('A', 'O', 0, 'T'), 18: mf_pv('A', 'O', 1, 'T'), 26: mf_pv('B', 'O', 0, 'T')}
    for i in range(cut, 29):
        if i in tm: a(tm[i])
        a(ex('O', i))
    finish('A', [ex('O', 29), ex('O', 30)])
    a(ex('O', 31).replace("v_exp_f32", "v_exp_f32_e64"))
    stamp(6)
    n0 = len(a.l)
    finish2('A')
    a.l.insert(n0 + 5, "    " + mf_pv('B', 'O', 1, 'T'))
    if opt.tv < 0:
        a("s_nop 0")
        lgkm(0)
        a(store(0))
        finish('B')
        a("s_nop 0")
        finish2('B')
    else:
        a("s_nop 1"); a("s_nop 0")
        finish('B')
        a("s_nop 0")
        n0 = len(a.l)
        finish2('B')
        a.l[n0+opt.tv:n0+opt.tv] = ["    s_waitcnt lgkmcnt(0)", "    " + store(0), "    s_nop 0"]
    lgkm(1)
    a(store(1))
    lgkm(0)
    a(store(2))
    stamp(7)
    a("s_setprio 0")
    for t in 'AB':
        for j in range(5): a(f"v_dot2c_f32_bf16 v{R+3 if t == 'A' else R+5}, 0, v{PK[t]+j}")
    a(f"v_cmp_nge_f32 s[36:37], v{R+3}, 1.0")
    a(f"v_cmp_nle_f32 vcc, v{R+3}, s35")
    a("s_or_b64 s[36:37], s[36:37], vcc")
    a(f"v_cmp_nge_f32 s[38:39], v{R+5}, 1.0")
    a(f"v_cmp_nle_f32 vcc, v{R+5}, s35")
    a("s_or_b64 s[36:37], s[36:37], s[38:39]")
    a("s_or_b64 s[36:37], s[36:37], vcc")
    if not (opt.kexp or opt.half): a("s_cbranch_scc1 L_slow")
    a.lab("L_done")
    if opt.amp:
        a("s_waitcnt vmcnt(0)")
        stamp(8)
        a("s_memrealtime s[42:43]")
        a("s_waitcnt lgkmcnt(0)")
        a(f"s_sub_u32 s50, s{60+2*opt.ampb}, s{60+2*opt.ampa}")
        a(f"s_max_u32 s50, s50, {opt.ampbase}")
        a(f"s_sub_u32 s50, s50, {opt.ampbase}")
        a("s_load_dwordx2 s[54:55], s[0:1], 32")
        a(f"s_cmp_lg_u32 s24, {3 if opt.ampr == 'A' else 7}")
        a("s_cbranch_scc1 L_end")
        a("s_add_u32 s51, s50, 0x1000000")
        a("s_mov_b64 exec, 1")
        a("v_mov_b32 v16, s51"); a("v_mov_b32 v17, 0")
        a("s_waitcnt lgkmcnt(0)")
        a("global_atomic_add v18, v17, v16, s[54:55] sc0 sc1")
        a("s_waitcnt vmcnt(0)")
        a("v_readfirstlane_b32 s51, v18")
        a("s_nop 3")
        a("s_add_u32 s50, s50, s51")
        a("s_and_b32 s50, s50, 0xffffff")
        a(f"s_mul_i32 s50, s50, {opt.amp}")
        a("s_lshr_b32 s50, s50, 8")
        a("s_lshr_b32 s51, s51, 24")
        a("s_cmp_lg_u32 s51, 255")
        a("s_cselect_b32 s50, 0, s50")
        a("s_min_u32 s50, s50, 20000")
        a.lab("L_spin")
        a("s_sleep 2")
        a("s_memrealtime s[52:53]")
        a("s_waitcnt lgkmcnt(0)")
        a("s_sub_u32 s51, s52, s42")
        a("s_cmp_lt_u32 s51, s50")
        a("s_cbranch_scc1 L_spin")
    if opt.itst:
        a("s_load_dwordx2 s[40:41], s[0:1], 40")
        for i in range(32): a(f"v_writelane_b32 v16, s{62+i}, {i}")
        a("s_lshl_b32 s50, s2, 3"); a("s_add_u32 s50, s50, s24"); a("s_lshl_b32 s50, s50, 8")
        a(f"v_lshrrev_b32 v1, 2, v{vDma}")
        a("v_add_u32 v1, s50, v1")
        a("s_waitcnt lgkmcnt(0)")
        a("global_store_dword v1, v16, s[40:41]")
    if opt.stamp:
        a("s_mov_b64 exec, 1")
        a("s_waitcnt vmcnt(0)")
        stamp(8)
        a("s_memrealtime s[58:59]")
        a("s_getreg_b32 s42, hwreg(HW_REG_HW_ID)")
        a("s_getreg_b32 s43, hwreg(HW_REG_XCC_ID)")
        a("s_waitcnt lgkmcnt(0)")
        for i, sr in enumerate((56, 58, 42, 43, 60, 62, 64, 66, 68, 70, 72, 74, 76)):
            a(f"v_mov_b32 v{16+i}, s{sr}")
        a("s_lshl_b32 s50, s2, 3"); a("s_add_u32 s50, s50, s24"); a("s_lshl_b32 s50, s50, 6")
        a("v_mov_b32 v1, s50")
        for i in range(4): a(f"global_store_dwordx4 v1, v[{16+4*i}:{19+4*i}], s[40:41] offset:{16*i}")
    a.lab("L_end")
    a("s_endpgm")
    a.lab("L_slow")
    a("s_waitcnt vmcnt(0)")
    mA, mB = 0, vSlot
    def rewind(n):
        a(f"v_subrev_u32 v{vK}, {n*ST}, v{vK}")
        a(f"v_subrev_u32 v{vV}, {n*ST}, v{vV}")
        a("s_mov_b32 s29, 0")
    def scores():
        a(f"buffer_load_dword v{KXr['E']}, v{vK}, s[16:19], 0 offen offset:32")
        a(f"buffer_load_dword v{KXr['O']}, v{vK}, s[16:19], 0 offen offset:36")
        a(f"buffer_load_dwordx4 {vr(Kr['E'],4)}, v{vK}, s[16:19], 0 offen")
        a(f"buffer_load_dwordx4 {vr(Kr['O'],4)}, v{vK}, s[16:19], 0 offen offset:40")
        a("s_waitcnt vmcnt(0) lgkmcnt(0)")
        a(mf_x('E')); a(mf_x('O'))
        a("s_nop 15"); a("s_nop 3")
        for par in 'EO':
            for t in 'AB': a(mf_q(t, par))
        a("s_nop 15")
    def step(lab):
        a(f"v_add_u32 v{vK}, {ST}, v{vK}")
        a(f"v_add_u32 v{vV}, {ST}, v{vV}")
        a("s_add_u32 s29, s29, 1")
        a("s_cmp_lg_u32 s29, 32")
        a(f"s_cbranch_scc1 {lab}")
    rewind(32 - NB)
    a(f"v_mov_b32 v{mA}, 0xff800000"); a(f"v_mov_b32 v{mB}, 0xff800000")
    a.lab("L_max")
    scores()
    for par in 'EO':
        for t, m in (('A', mA), ('B', mB)):
            s = Sr[par] + (16 if t == 'B' else 0)
            for j in range(0, 16, 2): a(f"v_max3_f32 v{m}, v{m}, v{s+j}, v{s+j+1}")
    step("L_max")
    for m in (mA, mB):
        a(f"v_mov_b32 v{vT2}, v{m}")
        a("s_nop 1")
        a(f"v_permlane32_swap_b32 v{vT2}, v{m}")
        a("s_nop 1")
        a(f"v_max_f32 v{m}, v{m}, v{vT2}")
    rewind(32)
    for r in range(120, 152): a(f"v_mov_b32 v{r}, 0")
    a.lab("L_acc")
    for f in [ROWS] + rd_v('E', 0) + rd_v('O', 0) + [ALL]: a(f)
    scores()
    for par in 'EO':
        for t, m in (('A', mA), ('B', mB)):
            s = Sr[par] + (16 if t == 'B' else 0)
            for j in range(16): a(f"v_sub_f32 v{s+j}, v{s+j}, v{m}")
            for j in range(16): a(f"v_exp_f32 v{s+j}, v{s+j}")
    a("s_nop 1")
    for par in 'EO':
        for t in 'AB':
            for j in range(2): a(mf_pv(t, par, j))
    step("L_acc")
    a("s_nop 15")
    for t in 'AB':
        finish(t); a("s_nop 0"); finish2(t)
    a("s_waitcnt lgkmcnt(0)")
    for k in range(3): a(store(k))
    a("s_branch L_done")
    a.raw(f""".section .rodata,"a"
.p2align 6
.amdhsa_kernel {NAME}_kernel
  .amdhsa_next_free_vgpr {NV}
  .amdhsa_next_free_sgpr {100 if (opt.stamp or opt.amp or opt.itst) else 48}
  .amdhsa_accum_offset {NV}
  .amdhsa_group_segment_fixed_size 0
  .amdhsa_kernarg_size 48
  .amdhsa_user_sgpr_count 2
  .amdhsa_user_sgpr_kernarg_segment_ptr 1
  .amdhsa_system_sgpr_workgroup_id_x 1
.end_amdhsa_kernel""")
    return a.text()

def parse(argv):
    p = argparse.ArgumentParser()
    p.add_argument('-o', default=f"cdna_kernels/{NAME}.s")
    p.add_argument('--cut', type=int, default=3)
    p.add_argument('--pos', default='2,5,15,18,21,31,25')
    p.add_argument('--pf', type=int, default=2)
    p.add_argument('--bm', type=int, default=0)
    p.add_argument('--b2s', type=int, default=0)
    p.add_argument('--b3', type=int, default=2)
    p.add_argument('--prn', type=int, default=1)
    p.add_argument('--nb', type=int, default=4)
    p.add_argument('--dss', type=int, default=1)
    p.add_argument('--half', type=int, default=0)
    p.add_argument('--kexp', type=int, default=0)
    p.add_argument('--ord', default='vkq')
    p.add_argument('--split', type=int, default=2)
    p.add_argument('--xs', type=float, default=35)
    p.add_argument('--tv', type=int, default=-1)
    p.add_argument('--padA', default='0')
    p.add_argument('--padB', default='0')
    p.add_argument('--stamp', type=int, default=0)
    p.add_argument('--itst', type=int, default=0)
    p.add_argument('--amp', type=int, default=0)
    p.add_argument('--ampt', type=int, default=0)
    p.add_argument('--ampa', type=int, default=0)
    p.add_argument('--ampb', type=int, default=8)
    p.add_argument('--ampr', default='')
    p.add_argument('--ampbase', type=int, default=44000)
    return p.parse_args(argv)

if __name__ == '__main__':
    opt = parse(sys.argv[1:])
    open(opt.o, 'w').write(gen(opt))
```

```python
import sys, struct, math, argparse

NAME = "standalone__fused_io_aware_attn__prompt"
HB = 73728
ST = 2304
VBASE = HB
ABASE = 2 * HB
LDS = ABASE + 3 * 4096
OOR = 0x28000

def f2u(x): return struct.unpack('<I', struct.pack('<f', x))[0]
CSCALE = f2u(math.log2(math.e) / math.sqrt(18.0))

vSlot, vK, vV, vInc, vIdx, vQo, vDma, vT2 = 1, 2, 3, 4, 6, 7, 14, 15
KXr = {'E': 8, 'O': 176}
QX = {'E': 10, 'O': 12}
Kr = {'E': 16, 'O': 20}
Qr = {('A', 'E'): 24, ('B', 'E'): 28, ('A', 'O'): 32, ('B', 'O'): 36}
Vr = {('E', 0): 40, ('E', 1): 44, ('O', 0): 48, ('O', 1): 52, ('T', 0): 168, ('T', 1): 172}
Sr = {'E': 56, 'O': 88}
Or = {'A': 120, 'B': 136}
TR = 152
KX0 = {'E': 178, 'O': 180}
K0 = {'E': 182, 'O': 186}
vStA, vStB, vStR, vR, vWE, vWO, vInc8 = 190, 191, 192, 193, 194, 195, 196
NV = 200
AL = dict(on=False)
def kx(par): return KX0[par] if AL['on'] else KXr[par]
def kr(par): return K0[par] if AL['on'] else Kr[par]
def vv(par, j): return Vr[('T', j)] if (AL['on'] and par == 'E') else Vr[(par, j)]
def vr(b, n): return f"v[{b}:{b+n-1}]"

class Asm:
    def __init__(self): self.l = []
    def __call__(self, s, c=None): self.l.append("    " + s + (f"    ; {c}" if c else ""))
    def lab(self, s): self.l.append(s + ":")
    def raw(self, s): self.l.append(s)
    def note(self, s): self.l.append("    ; " + s)
    def text(self): return "\n".join(x.rstrip() for x in self.l) + "\n"

def mf_x(par):
    return f"v_mfma_f32_32x32x4_2b_bf16 {vr(Sr[par],32)}, {vr(kx(par),2)}, {vr(QX[par],2)}, 0 cbsz:1 abid:0"
def mf_q(t, par):
    s = Sr[par] + (16 if t == 'B' else 0)
    return f"v_mfma_f32_32x32x16_bf16 {vr(s,16)}, {vr(kr(par),4)}, {vr(Qr[(t,par)],4)}, {vr(s,16)}"
def mf_pv(t, par, j, vs=None):
    s = Sr[par] + (16 if t == 'B' else 0) + 8 * j
    return f"v_smfmac_f32_32x32x32_bf16 {vr(Or[t],16)}, {vr(vv(vs or par,j),4)}, {vr(s,8)}, v{vIdx}"
def ex(par, i): return f"v_exp_f32 v{Sr[par]+i}, v{Sr[par]+i}"
def rd_kx(u): return [f"ds_read_b32 v{kx('E')}, v{vK} offset:{u*ST+32}", f"ds_read_b32 v{kx('O')}, v{vK} offset:{u*ST+36}"]
def rd_k(par, u):
    o = u * ST + (40 if par == 'O' else 0)
    return [f"ds_read_b64 {vr(kr(par),2)}, v{vK} offset:{o}", f"ds_read_b64 {vr(kr(par)+2,2)}, v{vK} offset:{o+8}"]
def rd_v(par, u):
    return [f"ds_read_b128 {vr(vv(par,j),4)}, v{vV} offset:{u*ST + (0 if par == 'E' else 1152) + 576*j}" for j in range(2)]
ROWS = "s_mov_b64 exec, s[12:13]"
LOW = "s_mov_b32 exec_hi, 0"
ALL = "s_mov_b64 exec, -1"

def phase_list(par, opt):
    oth = 'O' if par == 'E' else 'E'
    pos = [int(x) for x in opt.pos.split(',')]
    mf = {pos[0]: mf_pv('B', oth, 1), pos[1]: mf_x(oth), pos[2]: mf_pv('A', par, 0), pos[3]: mf_pv('A', par, 1),
          pos[4]: mf_q('A', oth), pos[5]: mf_pv('B', par, 0), pos[6]: mf_q('B', oth)}
    out = []
    for i in range(32):
        if i in mf: out.append((i, 'm', mf[i]))
        if opt.fill and i == pos[3]: out.append((i, 'n', f"s_nop {opt.fill-1}"))
        out.append((i, 'e', ex(par, i)))
    return out

def gen(opt):
    NB = opt.nb
    assert opt.ord == 'vkq' and opt.split == 2
    a = Asm()
    def stamp(i):
        if opt.stamp and (opt.stamp != 3 or i in (0, 7, 8)): a(f"s_memtime s[{60+2*i}:{61+2*i}]")
        if opt.amp and i in (opt.ampa, opt.ampb): a(f"{'s_memrealtime' if opt.ampt else 's_memtime'} s[{60+2*i}:{61+2*i}]")
    smem = opt.stamp == 1 or (opt.amp and not (opt.ampa in (0, 7) and opt.ampb in (7, 8)))
    def lgkm(n): a(f"s_waitcnt lgkmcnt({0 if smem else n})")
    a.raw(f"""; Fused attention forward, B=2 H=32 S=2048 D=18, bf16 in/out (emitted by my own generator script).
; @launch grid=(256,1,1) block=(512,1,1) lds={LDS}
.amdgcn_target "amdgcn-amd-amdhsa--gfx950"
.text
.globl {NAME}_kernel
.p2align 8
.type {NAME}_kernel,@function
{NAME}_kernel:""")
    stamp(0)
    if opt.stamp: a("s_memrealtime s[56:57]")
    a("s_load_dwordx8 s[4:11], s[0:1], 0", "q, k, v, out")
    if opt.pf:
        a("s_getpc_b64 s[36:37]")
        if opt.pf == 1:
            a(f"v_mul_u32_u24 v{vT2}, 9, v0")
            a(f"global_load_ubyte v{vT2}, v{vT2}, s[36:37] offset:116", "pulls this kernel's code lines into L2")
        else:
            a(f"v_mad_u64_u32 v[16:17], vcc, v0, { {1: 9, 2: 11, 4: 15}[NB] }, s[36:37]")
            a(f"global_load_ubyte v{vT2}, v[16:17], off offset:116", "pulls this kernel's own code lines into L2")
    a("v_readfirstlane_b32 s24, v0", "64 * wave")
    a("s_and_b32 s3, s2, 7")
    a("s_lshr_b32 s25, s2, 3")
    a("s_lshl_b32 s3, s3, 5")
    a("s_add_u32 s3, s3, s25", "4 * head + query block")
    a("s_cmpk_ge_u32 s2, 256")
    a("s_cbranch_scc1 L_end")
    a(f"v_lshl_add_u32 v{vQo}, s3, 9, v0")
    a(f"v_mul_u32_u24 v{vQo}, 36, v{vQo}", "one Q row per lane")
    a("s_cmpk_ge_u32 s24, 256")
    a("s_cbranch_scc1 L_setup", "role B (waves 4..7) starts its loads after role A's")
    t0, t1 = Sr['E'] + 8, Sr['E'] + 9
    T = Sr['O']
    def qloads():
        a(f"global_load_dword v{T+8}, v{vQo}, s[4:5] offset:32")
        a(f"global_load_dwordx4 {vr(T,4)}, v{vQo}, s[4:5]")
        a(f"global_load_dwordx4 {vr(T+4,4)}, v{vQo}, s[4:5] offset:16")
    kv = opt.ord == 'kvq'
    hv = opt.ord == 'h'
    if hv:
        a("s_lshr_b32 s25, s3, 2")
        a(f"s_mul_i32 s25, s25, {HB}")
        a("s_and_b32 s26, s24, 64")
        a("s_mul_i32 s26, s26, 36", "waves 0,1: V super tiles 0,1; waves 2,3: K super tiles 0,1")
        a("s_add_u32 s25, s25, s26")
        a(f"v_and_b32 v{t0}, 63, v0")
        a(f"v_lshl_add_u32 v{t0}, v{t0}, 4, s25")
        a("s_cmpk_lt_u32 s24, 128")
        a(f"s_cselect_b32 s27, {VBASE}, 0")
        a("s_waitcnt lgkmcnt(0)")
        stamp(1)
        a("s_cselect_b64 s[42:43], s[8:9], s[6:7]")
        a("s_add_u32 m0, s26, s27")
        a(f"v_add_u32 v{t1}, {2*ST}, v{t0}")
        for t in (t0, t1):
            a(f"global_load_lds_dwordx4 v{t}, s[42:43]")
            a(f"global_load_lds_dwordx4 v{t}, s[42:43] offset:1024")
            a("s_mov_b64 exec, 0xffff")
            a(f"global_load_lds_dwordx4 v{t}, s[42:43] offset:2048")
            a(ALL)
            if t == t0:
                a(f"s_add_u32 m0, m0, {2*ST}", "super tiles 2,3 follow the Q rows")
                qloads()
    else:
        a("s_lshr_b32 s25, s3, 2")
        a(f"s_mul_i32 s25, s25, {HB}")
        a("s_mul_i32 s26, s24, 20")
        a("s_add_u32 s26, s26, s25")
        a(f"v_lshl_add_u32 v{t0}, v0, 4, s26")
        a("s_mul_i32 s26, s24, 36", "super tile `wave` of V and of K")
        p1, p2 = ("s[6:7]", "s[8:9]") if kv else ("s[8:9]", "s[6:7]")
        a("s_mov_b32 m0, s26" if kv else f"s_add_u32 m0, s26, {VBASE}")
        a("s_waitcnt lgkmcnt(0)")
        stamp(1)
        a(f"global_load_lds_dwordx4 v{t0}, {p1}")
        a(f"global_load_lds_dwordx4 v{t0}, {p1} offset:1024")
        a("s_mov_b64 exec, 0xffff")
        a(f"global_load_lds_dwordx4 v{t0}, {p1} offset:2048")
        if opt.half: a(ALL)
        else:
            a(f"s_add_u32 m0, s26, {VBASE}" if kv else "s_mov_b32 m0, s26")
            a("s_nop 0")
            a(f"global_load_lds_dwordx4 v{t0}, {p2} offset:2048")
            a(ALL)
            a(f"global_load_lds_dwordx4 v{t0}, {p2}")
            a(f"global_load_lds_dwordx4 v{t0}, {p2} offset:1024")
        qloads()
    a.lab("L_setup")
    if opt.stamp:
        a("s_load_dwordx2 s[40:41], s[0:1], 40")
        if opt.stamp == 3:
            for i in range(62, 74): a(f"s_mov_b32 s{i}, 0")
    a(f"v_lshlrev_b32 v{vSlot}, 3, v0")
    a("v_and_b32 v0, 63, v0")
    a("s_lshr_b32 s24, s24, 6", "wave id")
    a("s_lshr_b32 s25, s3, 2")
    a(f"s_mul_i32 s25, s25, {HB}", "head byte offset")
    a("s_lshl3_add_u32 s26, s3, s24")
    a(f"s_mul_i32 s26, s26, {ST}", "output byte offset of this wave")
    a(f"v_lshlrev_b32 v{vDma}, 4, v0")
    a("s_cmp_lt_u32 s24, 4")
    a("s_cselect_b32 s28, 8, 0")
    a("s_add_u32 s28, s28, s24")
    a(f"s_mul_i32 s27, s28, {ST}", "byte offset of this wave's next super tile to load")
    a(f"s_mov_b32 s18, {HB}")
    a("s_mov_b32 s19, 0x00020000")
    a(f"s_mov_b32 s46, {HB}")
    a("s_mov_b32 s47, 0x00020000")
    a(f"s_movk_i32 s22, {ST}")
    a("s_mov_b32 s23, 0x00020000")
    def dma():
        a("s_mov_b32 m0, s27")
        a("s_nop 0")
        a(f"buffer_load_dwordx4 v{vDma}, s[16:19], s27 offen lds")
        a(f"buffer_load_dwordx4 v{vDma}, s[16:19], s27 offen offset:1024 lds")
        a("s_mov_b64 exec, 0xffff")
        a(f"buffer_load_dwordx4 v{vDma}, s[16:19], s27 offen offset:2048 lds")
        a("s_add_u32 m0, s27, s18")
        a("s_nop 0")
        a(f"buffer_load_dwordx4 v{vDma}, s[44:47], s27 offen offset:2048 lds")
        a(ALL)
        a(f"buffer_load_dwordx4 v{vDma}, s[44:47], s27 offen lds")
        a(f"buffer_load_dwordx4 v{vDma}, s[44:47], s27 offen offset:1024 lds")
        a(f"s_add_u32 s27, s27, {8*ST}")
    def tr_read():
        for u in range(2):
            for j in range(2):
                for p in range(2):
                    a(f"ds_read_b64_tr_b16 {vr(TR+8*u+4*j+2*p,2)}, v{vR} offset:{40*u + (4*j+p)*72}")
    def tr_write(step):
        a(ROWS)
        for j in range(2): a(f"ds_write_b128 v{vWE}, {vr(TR+4*j,4)} offset:{576*j}")
        a("s_mov_b64 exec, s[14:15]")
        for j in range(2): a(f"ds_write_b128 v{vWO}, {vr(TR+8+4*j,4)} offset:{576*j}")
        a(ALL)
        if step == 8 and opt.dss:
            a("s_waitcnt lgkmcnt(12)")
            a(f"ds_add_rtn_u64 {vr(vWE,2)}, v{vSlot}, {vr(vInc8,2)} offset:4096")
            a(f"ds_add_rtn_u32 v{vR}, v{vSlot}, v{vInc8} offset:8192")
            return
        if step == 8: a("s_setprio 3")
        if step:
            for r in (vR, vWE, vWO): a(f"v_add_u32 v{r}, {step*ST}, v{r}")
    a("s_waitcnt lgkmcnt(0)")
    a("s_add_u32 s16, s6, s25")
    a("s_addc_u32 s17, s7, 0")
    a("s_add_u32 s44, s8, s25")
    a("s_addc_u32 s45, s9, 0")
    a("s_add_u32 s20, s10, s26")
    a("s_addc_u32 s21, s11, 0")
    C = Sr['E']
    t3, t4, t5 = C + 4, C + 5, C + 6
    a(f"v_mov_b32 v{QX['E']}, 0"); a(f"v_mov_b32 v{QX['E']+1}, 0")
    a(f"v_and_b32 v{t0}, 31, v0", "MFMA row m")
    a(f"v_lshrrev_b32 v{t1}, 5, v0", "half wave h")
    a(f"v_mfma_f32_32x32x4_2b_bf16 {vr(120,32)}, {vr(QX['E'],2)}, {vr(QX['E'],2)}, 0")
    a(f"v_cmp_eq_u32 vcc, 20, v{t0}")
    a(f"v_mov_b32 v{t4}, 0x3f803f80")
    a("s_mov_b32 s12, 0x0003ffff"); a("s_mov_b32 s13, 0x0003ffff")
    a("s_mov_b32 s14, 0x00c0ffff"); a("s_mov_b32 s15, 0x00c0ffff")
    a(f"v_cndmask_b32 v40, 0, v{t4}, vcc")
    a(f"v_cndmask_b32 v41, 0, v{t4}, vcc")
    for r in list(range(42, 56, 2)) + list(range(168, 176, 2)): a(f"v_pk_mov_b32 {vr(r,2)}, v[40:41], v[40:41]")
    a(f"v_and_b32 v{t3}, 3, v0")
    a(f"v_lshrrev_b32 v{t4}, 2, v{t0}")
    a(f"v_lshl_add_u32 v{t4}, v{t3}, 3, v{t4}")
    a(f"v_mul_u32_u24 v{vK}, 72, v{t4}")
    a(f"v_lshl_add_u32 v{vK}, v{t1}, 4, v{vK}")
    a(f"v_bfe_u32 v{t4}, v0, 3, 1")
    a(f"v_lshl_add_u32 v{t3}, v{t4}, 2, v{t3}")
    a(f"v_and_b32 v{t4}, 4, v0")
    a(f"v_lshlrev_b32 v{t4}, 1, v{t4}")
    a(f"v_sub_u32 v{t3}, v{t3}, v{t4}")
    a(f"v_add_u32 v{t3}, 8, v{t3}")
    a(f"v_cmp_lt_u32 vcc, 15, v{t0}")
    a(f"v_and_b32 v{t4}, 1, v0")
    a(f"v_add_u32 v{t4}, 16, v{t4}")
    a(f"v_cndmask_b32 v{t3}, v{t3}, v{t4}, vcc")
    a(f"v_mul_u32_u24 v{t5}, 18, v{t1}")
    a("s_cmp_lt_u32 s24, 4")
    a(f"s_cselect_b32 s29, 0, {4*ST}")
    a("s_sub_u32 s29, s27, s29")
    a("s_add_u32 s29, s29, s18", "first V super tile this wave transposes")
    for sub, dst, extra in ((4, vWE, 0), (2, vWO, 72)):
        a(f"v_subrev_u32 v{t4}, {sub}, v{t3}")
        a(f"v_add_u32 v{dst}, 18, v{t4}")
        a(f"v_min_u32 v{t4}, v{t4}, v{dst}")
        a(f"v_add_u32 v{t4}, v{t4}, v{t5}")
        if extra: a(f"v_add_u32 v{t4}, {extra}, v{t4}")
        else: a(f"v_lshl_add_u32 v{vV}, v{t4}, 4, s18")
        a(f"v_lshl_add_u32 v{dst}, v{t4}, 4, s29")
    a(f"v_and_b32 v{t3}, 12, v0")
    a(f"v_add_lshl_u32 v{t3}, v{t3}, v{t1}, 1")
    a(f"v_mul_u32_u24 v{t3}, 72, v{t3}")
    a(f"v_and_b32 v{t4}, 1, v0")
    a(f"v_lshlrev_b32 v{t4}, 4, v{t4}")
    a(f"v_sub_u32 v{t3}, v{t3}, v{t4}")
    a(f"v_and_b32 v{t4}, 2, v0")
    a(f"v_lshl_add_u32 v{t3}, v{t4}, 2, v{t3}")
    a(f"v_and_b32 v{t4}, 16, v0")
    a(f"v_add3_u32 v{t3}, v{t4}, v{t3}, s29")
    a(f"v_add_u32 v{t4}, 16, v{t3}")
    a(f"v_subrev_u32 v{t3}, 8, v{t3}")
    a("s_mov_b32 vcc_lo, 0x22220000"); a("s_mov_b32 vcc_hi, 0x22220000")
    a(f"v_cndmask_b32 v{t3}, v{t4}, v{t3}, vcc")
    a(f"v_mov_b32 v{t4}, {OOR:#x}")
    a("s_mov_b32 vcc_lo, 0xcccc0000"); a("s_mov_b32 vcc_hi, 0xcccc0000")
    a(f"v_cndmask_b32 v{vR}, v{t3}, v{t4}, vcc")
    for r in list(KXr.values()) + list(KX0.values()): a(f"v_mov_b32 v{r+1}, 0x3f80")
    for par in 'EO': a(f"v_mov_b32 v{QX[par]+1}, {f2u(opt.xs) >> 16:#x}", "constant softmax shift")
    a(f"v_mov_b32 v{vIdx}, 0xdddd", "sparse index: elements 1 and 3 of every group of four")
    a(f"v_mov_b32 v{vInc}, {NB*ST}")
    a(f"v_mov_b32 v{vInc+1}, {NB*ST}")
    a(f"v_add_u32 v{C+2}, v{vK}, v{vInc}")
    a(f"v_add_u32 v{C+3}, v{vV}, v{vInc}")
    a(f"v_add_u32 v{vSlot}, {ABASE}, v{vSlot}")
    a(f"ds_write_b64 v{vSlot}, {vr(C+2,2)}", "address counters, stepped by ds_add_rtn_u64")
    if opt.dss:
        a("s_cmp_lt_u32 s24, 4")
        a(f"s_cselect_b32 s29, 0, {4*ST}")
        a(f"v_mov_b32 v{vInc8}, {8*ST}")
        a(f"v_mov_b32 v{vInc8+1}, {8*ST}")
        a(f"v_add3_u32 v{C}, v{vWE}, v{vInc8}, s29")
        a(f"v_add3_u32 v{C+1}, v{vWO}, v{vInc8}, s29")
        a(f"v_add3_u32 v{t3}, v{vR}, v{vInc8}, s29")
        a(f"ds_write_b64 v{vSlot}, {vr(C,2)} offset:4096")
        a(f"ds_write_b32 v{vSlot}, v{t3} offset:8192")
    a(f"s_mul_i32 s28, s24, {ST}")
    a(f"v_mul_u32_u24 v{vStA}, 36, v{t0}")
    a(f"v_lshlrev_b32 v{t4}, 4, v{t1}")
    a(f"v_sub_u32 v{vStA}, v{vStA}, v{t4}")
    a(f"v_add3_u32 v{vStA}, v{vStA}, 16, s28")
    a(f"v_add_u32 v{vStB}, 1152, v{vStA}")
    a(f"v_add_u32 v{vStR}, s28, v{vDma}")
    a(f"s_mov_b32 s30, {CSCALE:#x}", "log2(e)/sqrt(18)"); a(f"s_mov_b32 s31, {CSCALE:#x}")
    a("s_mov_b32 s29, 1", "super tile counter")
    a("s_mov_b32 s32, 0x8088", "barrier schedule")
    a("s_mov_b32 s33, 0x80008088")
    a(f"s_mov_b32 s38, {0x8000ddd0 | (4 if opt.bm else 0):#x}", "iterations with extra work, role A")
    a("s_mov_b32 s39, 0x8000dddc", "role B")
    a("s_mov_b32 s34, 0xffff0000")
    a("s_mov_b32 s35, 0x7b800000", "2^120")
    a("s_mov_b64 vcc, 0")
    a("s_cmp_ge_u32 s24, 4", "SCC = role B (kept until the loops)")
    bump = f"ds_add_rtn_u64 {vr(vK,2)}, v{vSlot}, {vr(vInc,2)}"
    bK, bX = rd_k('E', 1) + rd_k('O', 1), rd_kx(1)
    bV = rd_v('O', 0) + rd_v('E', 1)
    late = []; lateA = []
    if hv:
        AL['on'] = True
        rdK0 = rd_kx(0) + rd_k('E', 0) + rd_k('O', 0) + bX + bK
        rdV0 = [ROWS] + rd_v('E', 0) + bV + [ALL, bump]
        if opt.amp: stamp(9)
        a("s_cbranch_scc0 L_vA")
        a("s_cmp_ge_u32 s24, 6")
        a("s_barrier", "super tiles 0,1 are in")
        a("s_cbranch_scc1 L_v1")
        tr_read()
        a.lab("L_v1")
        qloads()
        a("s_cbranch_scc1 L_v2")
        a("s_waitcnt lgkmcnt(0)")
        tr_write(0)
        a("s_waitcnt lgkmcnt(0)")
        a.lab("L_v2")
        if opt.b2s:
            stamp(2)
            a("s_barrier", "V super tiles 0,1 are transposed")
            for f in rdK0: a(f)
            a("s_waitcnt lgkmcnt(8)")
            for f in rdV0: a(f)
            a("s_waitcnt lgkmcnt(7)")
            a("s_barrier", "super tiles 2,3 are in")
        else:
            for f in rdK0: a(f)
            a("s_waitcnt lgkmcnt(0)")
            stamp(2)
            a("s_barrier", "V super tiles 0,1 are transposed, super tiles 2,3 are in")
        a("s_cbranch_scc0 L_v3")
        tr_read()
        a("s_waitcnt lgkmcnt(0)")
        tr_write(0)
        a("s_waitcnt lgkmcnt(0)")
        a.lab("L_v3")
        a("s_barrier", "V super tiles 2,3 are transposed")
        if not opt.b2s:
            for f in rdV0: a(f)
        a("s_setprio 3")
        for r in (vR, vWE, vWO): a(f"v_add_u32 v{r}, {4*ST}, v{r}")
        a("s_cmp_ge_u32 s24, 4")
        a("s_waitcnt vmcnt(0)")
        a("s_branch L_prep")
        a.raw("    .p2align 3")
        a.lab("L_vA")
        a("s_waitcnt vmcnt(6)")
        stamp(2)
        a("s_barrier", "super tiles 0,1 are in")
        if opt.amp: stamp(10)
        for f in rdK0: a(f)
        a.lab("L_prep")
        lateA = (["s_barrier"] if opt.b2s else ["s_waitcnt vmcnt(0)", "s_barrier"]) + rdV0
    elif kv:
        a(f"s_waitcnt vmcnt({3 if opt.half else 6})")
        a("s_barrier", "K super tiles 0..3 are in: role B starts its Q loads")
        a("s_cbranch_scc0 L_noq")
        qloads()
        a.lab("L_noq")
        AL['on'] = True
        for f in rd_kx(0) + rd_k('E', 0) + rd_k('O', 0) + bX + bK: a(f)
        rdV0 = [ROWS] + rd_v('E', 0) + bV + [ALL, bump]
        a("s_cbranch_scc0 L_vA")
        a("s_waitcnt lgkmcnt(0)")
        stamp(2)
        a("s_barrier", "V super tiles 0..3 are in")
        tr_read()
        a("s_waitcnt lgkmcnt(0)")
        tr_write(0)
        a("s_waitcnt lgkmcnt(0)")
        a("s_barrier", "V super tiles 0..3 are transposed")
        for f in rdV0: a(f)
        a("s_setprio 3")
        for r in (vR, vWE, vWO): a(f"v_add_u32 v{r}, {4*ST}, v{r}")
        a("s_branch L_prep")
        a.raw("    .p2align 3")
        a.lab("L_vA")
        a("s_waitcnt vmcnt(3) lgkmcnt(0)")
        stamp(2)
        a("s_barrier", "V super tiles 0..3 are in")
        a.lab("L_prep")
        lateA = ["s_barrier"] + rdV0
    else:
        if opt.amp: stamp(9)
        a(f"s_waitcnt vmcnt({3 if opt.half else 6})")
        a("s_barrier", "V super tiles 0..3 are in: role B transposes them and starts its Q loads")
        if opt.amp: stamp(10)
        a("s_cbranch_scc0 L_noq")
        tr_read()
        qloads()
        a("s_waitcnt lgkmcnt(0)")
        tr_write(4)
        a.lab("L_noq")
        a.raw("    .p2align 3")
        a("s_waitcnt vmcnt(3) lgkmcnt(0)")
        stamp(2)
        a("s_barrier", "K super tiles 0..3 are in, V super tiles 0..3 are transposed")
        AL['on'] = True
        if opt.split:
            for f in rd_kx(0) + rd_k('E', 0) + rd_k('O', 0) + [ROWS, "s_setprio 3"] + rd_v('E', 0) + [ALL]: a(f)
            if opt.split == 1: lgkm(4)
            late = bK + [LOW] + bX + [ROWS] + bV + [ALL] + ([bump] if NB == 1 else [])
        else:
            for f in rd_kx(0) + rd_k('E', 0) + rd_k('O', 0) + bX + bK: a(f)
            a(ROWS)
            lgkm(8)
            for f in rd_v('E', 0) + bV + [ALL, "s_setprio 3", bump]: a(f)
    stamp(3)
    W = T + 10
    QAE, QBE, QAO, QBO = Qr[('A','E')], Qr[('B','E')], Qr[('A','O')], Qr[('B','O')]
    def shl(j): a(f"v_lshlrev_b32 v{W+2*j}, 16, v{T+j}")
    def msk(j): a(f"v_and_b32 v{W+2*j+1}, s34, v{T+j}")
    def mul(j): a(f"v_pk_mul_f32 {vr(W+2*j,2)}, {vr(W+2*j,2)}, s[30:31]")
    def cvt(j, d): a(f"v_cvt_pk_bf16_f32 v{d}, v{W+2*j}, v{W+2*j+1}")
    a(f"s_waitcnt vmcnt(3) lgkmcnt({0 if smem else 8})" if hv else "s_waitcnt vmcnt(0)")
    stamp(4)
    if opt.split == 2 and opt.ord == 'vkq':
        shl(8); msk(8); mul(8); cvt(8, QX['E']); cvt(8, QBO + 3)
        shl(0)
        lgkm(4)
        a(mf_x('E'))
        a(f"v_and_b32_e64 v{W+1}, s34, v{T}")
    else:
        shl(8)
        a(f"v_and_b32_e64 v{W+17}, s34, v{T+8}")
        mul(8); cvt(8, QX['E'])
        shl(0); msk(0)
        a(mf_x('E'))
        cvt(8, QBO + 3)
    for j in range(1, 8): shl(j); msk(j)
    for j in range(8): mul(j)
    for j in range(4): cvt(j, QAE + j)
    for j in range(4): cvt(4 + j, QBE + j)
    for j in range(4): a(f"v_permlane32_swap_b32 v{QAE+j}, v{QBE+j}")
    cvt(4, QAO + 3)
    cvt(0, QX['O'])
    a(mf_q('A', 'E'))
    a("s_waitcnt lgkmcnt(0)")
    a(f"v_permlane32_swap_b32 v{QAO+3}, v{QBO+3}")
    for j in range(0, 3): a(f"v_mov_b32 v{QAO+j}, v{QAE+j+1}")
    for j in range(0, 3): a(f"v_mov_b32 v{QBO+j}, v{QBE+j+1}")
    a(mf_q('B', 'E'))
    for f in late: a(f)
    a("s_cbranch_scc1 L_startB")
    a("s_setprio 2")
    for f in lateA: a(f)
    if not late and not lateA: a("s_nop 0")
    cut = opt.cut
    pos0 = int(opt.pos.split(',')[0])
    assert cut > pos0
    a.lab("L_first")
    if opt.kexp:
        a("s_waitcnt lgkmcnt(0)")
        if opt.kexp != 9:
            a(f"v_add_u32 v{vK}, {ST}, v{vDma}")
        else:
            a(f"v_add_u32 v{vK}, 0, v{vK}")
        a(f"v_add_u32 v{vT2}, v{vK}, v{vInc}")
        a(f"ds_write_b32 v{vSlot}, v{vT2}")
        if opt.kexp != 9:
            bK = [f"ds_read_b128 {vr(Kr['E'],4)}, v{vK} offset:{ST}", f"ds_read_b128 {vr(Kr['O'],4)}, v{vK} offset:{ST+1024}"]
            bX = ["s_lshl_b32 m0, s29, 8", ALL, f"ds_read_addtid_b32 v{KXr['E']} offset:4096"] + ["s_nop 0"] * 4
        if opt.kexp == 2: bump = f"ds_add_rtn_u32 v{vK}, v{vSlot}, v{vInc}"
    stamp(5)
    for (i, k_, s_) in phase_list('E', opt):
        if lateA and 'smfmac' in s_ and i > pos0:
            a("s_waitcnt lgkmcnt(0)"); lateA = None
        if not (i == pos0 and k_ == 'm'): a(s_)
        if hv and opt.b2s and k_ == 'm' and i == opt.b2s:
            assert not opt.bm
            a("s_cbranch_scc1 L_nob2")
            a("s_waitcnt vmcnt(0)")
            a("s_barrier", "super tiles 2,3 are in")
            a.lab("L_nob2")
        if late and 'smfmac' in s_ and i > 25: a("s_waitcnt lgkmcnt(0)")
    for (i, k_, s_) in phase_list('O', opt):
        if i < cut: a(s_)
    AL['on'] = False
    pE, pO = phase_list('E', opt), phase_list('O', opt)
    seg = [s_ for (i, k_, s_) in pO if i >= cut] + [s_ for (i, k_, s_) in pE] + [s_ for (i, k_, s_) in pO if i < cut]
    npv = 0
    for s_ in seg:
        a(s_)
        if hv and 'smfmac' in s_:
            npv += 1
            if npv == opt.b3:
                if not opt.bm: a("s_cbranch_scc1 L_nob3")
                a("s_barrier", "role A: V super tiles 2,3 are transposed; role B: matched in role A's first burst")
                a.lab("L_nob3")
    a(f"s_cbranch_scc0 L_topA{2 % NB}")
    a(f"s_branch L_topB{2 % NB}")
    if opt.bm:
        a.lab("L_evA")
        a("s_cmp_lg_u32 s29, 2")
        a("s_cbranch_scc1 L_ev")
        a("s_barrier")
        a("s_branch L_backA")
    a.lab("L_startB")
    a("s_setprio 1")
    dma()
    a("s_cmp_ge_u32 s24, 4")
    a("s_branch L_first")
    def back(n):
        if not opt.dss: raise SystemExit("dss required")
        a("s_cmp_ge_u32 s24, 4")
        a(f"s_cbranch_scc0 L_backA{n % NB}")
        a(f"s_branch L_backB{n % NB}")
    a.lab("L_ev")
    if NB == 1:
        a("s_bitcmp1_b32 s29, 0")
        a("s_cbranch_scc1 L_evW")
    a.lab("L_evE")
    if NB <= 2:
        a("s_bitcmp1_b32 s29, 1")
        a("s_cbranch_scc0 L_evD")
    a.lab("L_evR")
    a("s_waitcnt vmcnt(0) lgkmcnt(7)")
    tr_read()
    back(2)
    a.lab("L_evW")
    a("s_cmp_eq_u32 s29, 31")
    a("s_cbranch_scc1 L_ev31")
    tr_write(8)
    back(3)
    a.lab("L_evD")
    dma()
    back(0)
    a.lab("L_ev31")
    a("s_mov_b64 vcc, 1", "last segment: it runs on into the tail")
    if NB == 1: a("s_waitcnt lgkmcnt(0)")
    for f in [ROWS] + rd_v('T', NB - 1) + [ALL]: a(f)
    back(3)
    def reads(u): return rd_k('E', u) + rd_k('O', u) + [LOW] + rd_kx(u) + [ROWS] + rd_v('O', u-1) + rd_v('E', u) + [ALL] + ([bump] if u == NB else [])
    pads = {'A': [int(x) for x in opt.padA.split(',')], 'B': [int(x) for x in opt.padB.split(',')]}
    for role in 'AB':
        a.raw("    .p2align 6")
        pad = pads[role][0]
        if pad: a.raw(f"    .fill {pad}, 4, 0xbf800000    ; never executed: sets the loop's fetch alignment")
        for c in range(NB):
            last = c == NB - 1
            a.lab(f"L_top{role}{c}")
            if role == 'A': a("s_setprio 0")
            a("s_add_u32 s29, s29, 1")
            if opt.itst: a("s_memtime s[48:49]")
            for f in reads(c if c else NB): a(f)
            if not (NB == 4 and c == 1):
                a(f"s_bitcmp1_b32 {'s38' if role == 'A' else 's39'}, s29")
                a("s_cbranch_scc1 " + ("L_ev" if NB == 1 else ("L_evW" if last else ("L_evE" if NB == 2 else ("L_evD" if c == 0 else "L_evR")))))
            a.lab(f"L_back{role}{c}")
            if last: a(f"s_bitcmp1_b32 {'s33' if role == 'A' else 's32'}, s29", "SCC: a barrier follows this " + ("segment" if role == 'A' else "burst"))
            if c and len(pads[role]) > c:
                for k in range(pads[role][c]): a("s_waitcnt lgkmcnt(4)")
            a("s_waitcnt lgkmcnt(0)")
            if opt.itst:
                a("s_mov_b32 m0, s29"); a("s_nop 0"); a("s_movreld_b32 s62, s48"); a("s_nop 0"); a("s_nop 0"); a("s_nop 0")
            if role == 'B' and last:
                a(f"s_cbranch_scc0 L_segB{c}")
                a("s_barrier")
            a.lab(f"L_seg{role}{c}")
            nm = 0
            for s_ in seg:
                a(s_)
                if role == 'A' and ('smfmac' in s_ or 'x16_bf16' in s_):
                    nm += 1
                    if nm == opt.prn: a("s_setprio 2")
        if role == 'A':
            a("s_cbranch_scc0 L_topA0")
            a("s_cbranch_vccnz L_tail")
            a("s_barrier")
            a("s_branch L_topA0")
        else:
            a("s_cbranch_vccz L_topB0")
    R = Sr['E']
    PK = {'A': Sr['E'] + 8, 'B': Sr['E'] + 14}
    OB = Sr['E'] + 20
    def finish(t, fill=None):
        O = Or[t]
        rc = R + 2 if t == 'A' else R + 4
        a(f"v_pk_mov_b32 {vr(rc,2)}, {vr(O+8,2)}, {vr(O+8,2)} op_sel:[0,0]", "denominator sits in the upper half wave")
        for f in (fill or ["s_nop 1"]): a(f)
        a(f"v_permlane32_swap_b32 v{rc}, v{rc+1}")
        a(f"v_rcp_f32 v{rc}, v{rc+1}")
    def finish2(t):
        O = Or[t]
        rc = R + 2 if t == 'A' else R + 4
        for j in (8, 0, 2, 4, 6):
            a(f"v_pk_mul_f32 {vr(O+j,2)}, {vr(O+j,2)}, {vr(rc,2)} op_sel_hi:[1,0]")
        st = vStA if t == 'A' else vStB
        for j in (4, 0, 1, 2, 3):
            a(f"v_cvt_pk_bf16_f32 v{PK[t]+j}, v{O+2*j}, v{O+2*j+1}")
        a(f"ds_write_b32 v{st}, v{PK[t]+4} offset:16", "upper half's word is overwritten by the next write")
        a(f"ds_write2_b32 v{st}, v{PK[t]}, v{PK[t]+1} offset0:0 offset1:1")
        a(f"ds_write2_b32 v{st}, v{PK[t]+2}, v{PK[t]+3} offset0:2 offset1:3")
        if t == 'A':
            a(f"ds_read_b128 {vr(OB,4)}, v{vStR}")
        else:
            a(f"ds_read_b128 {vr(OB+4,4)}, v{vStR} offset:1024")
            a(f"ds_read_b128 {vr(OB+8,4)}, v{vStR} offset:2048")
    def store(k): return f"buffer_store_dwordx4 {vr(OB+4*k,4)}, v{vDma}, s[20:23], 0 offen offset:{1024*k} sc1"
    a.lab("L_tail")
    tm = {10: mf_pv('A', 'O', 0, 'T'), 18: mf_pv('A', 'O', 1, 'T'), 26: mf_pv('B', 'O', 0, 'T')}
    for i in range(cut, 29):
        if i in tm: a(tm[i])
        a(ex('O', i))
    finish('A', [ex('O', 29), ex('O', 30)])
    a(ex('O', 31).replace("v_exp_f32", "v_exp_f32_e64"))
    stamp(6)
    n0 = len(a.l)
    finish2('A')
    a.l.insert(n0 + 5, "    " + mf_pv('B', 'O', 1, 'T'))
    if opt.tv < 0:
        a("s_nop 0")
        lgkm(0)
        a(store(0))
        finish('B')
        a("s_nop 0")
        finish2('B')
    else:
        a("s_nop 1"); a("s_nop 0")
        finish('B')
        a("s_nop 0")
        n0 = len(a.l)
        finish2('B')
        a.l[n0+opt.tv:n0+opt.tv] = ["    s_waitcnt lgkmcnt(0)", "    " + store(0), "    s_nop 0"]
    lgkm(1)
    a(store(1))
    lgkm(0)
    a(store(2))
    stamp(7)
    a("s_setprio 0")
    for t in 'AB':
        for j in range(5): a(f"v_dot2c_f32_bf16 v{R+3 if t == 'A' else R+5}, 0, v{PK[t]+j}")
    a(f"v_cmp_nge_f32 s[36:37], v{R+3}, 1.0")
    a(f"v_cmp_nle_f32 vcc, v{R+3}, s35")
    a("s_or_b64 s[36:37], s[36:37], vcc")
    a(f"v_cmp_nge_f32 s[38:39], v{R+5}, 1.0")
    a(f"v_cmp_nle_f32 vcc, v{R+5}, s35")
    a("s_or_b64 s[36:37], s[36:37], s[38:39]")
    a("s_or_b64 s[36:37], s[36:37], vcc")
    if not (opt.kexp or opt.half): a("s_cbranch_scc1 L_slow")
    a.lab("L_done")
    if opt.amp:
        a("s_waitcnt vmcnt(0)")
        stamp(8)
        a("s_memrealtime s[42:43]")
        a("s_waitcnt lgkmcnt(0)")
        a(f"s_sub_u32 s50, s{60+2*opt.ampb}, s{60+2*opt.ampa}")
        a(f"s_max_u32 s50, s50, {opt.ampbase}")
        a(f"s_sub_u32 s50, s50, {opt.ampbase}")
        a("s_load_dwordx2 s[54:55], s[0:1], 32")
        a(f"s_cmp_lg_u32 s24, {3 if opt.ampr == 'A' else 7}")
        a("s_cbranch_scc1 L_end")
        a("s_add_u32 s51, s50, 0x1000000")
        a("s_mov_b64 exec, 1")
        a("v_mov_b32 v16, s51"); a("v_mov_b32 v17, 0")
        a("s_waitcnt lgkmcnt(0)")
        a("global_atomic_add v18, v17, v16, s[54:55] sc0 sc1")
        a("s_waitcnt vmcnt(0)")
        a("v_readfirstlane_b32 s51, v18")
        a("s_nop 3")
        a("s_add_u32 s50, s50, s51")
        a("s_and_b32 s50, s50, 0xffffff")
        a(f"s_mul_i32 s50, s50, {opt.amp}")
        a("s_lshr_b32 s50, s50, 8")
        a("s_lshr_b32 s51, s51, 24")
        a("s_cmp_lg_u32 s51, 255")
        a("s_cselect_b32 s50, 0, s50")
        a("s_min_u32 s50, s50, 20000")
        a.lab("L_spin")
        a("s_sleep 2")
        a("s_memrealtime s[52:53]")
        a("s_waitcnt lgkmcnt(0)")
        a("s_sub_u32 s51, s52, s42")
        a("s_cmp_lt_u32 s51, s50")
        a("s_cbranch_scc1 L_spin")
    if opt.itst:
        a("s_load_dwordx2 s[40:41], s[0:1], 40")
        for i in range(32): a(f"v_writelane_b32 v16, s{62+i}, {i}")
        a("s_lshl_b32 s50, s2, 3"); a("s_add_u32 s50, s50, s24"); a("s_lshl_b32 s50, s50, 8")
        a(f"v_lshrrev_b32 v1, 2, v{vDma}")
        a("v_add_u32 v1, s50, v1")
        a("s_waitcnt lgkmcnt(0)")
        a("global_store_dword v1, v16, s[40:41]")
    if opt.stamp:
        a("s_mov_b64 exec, 1")
        a("s_waitcnt vmcnt(0)")
        stamp(8)
        a("s_memrealtime s[58:59]")
        a("s_getreg_b32 s42, hwreg(HW_REG_HW_ID)")
        a("s_getreg_b32 s43, hwreg(HW_REG_XCC_ID)")
        a("s_waitcnt lgkmcnt(0)")
        for i, sr in enumerate((56, 58, 42, 43, 60, 62, 64, 66, 68, 70, 72, 74, 76)):
            a(f"v_mov_b32 v{16+i}, s{sr}")
        a("s_lshl_b32 s50, s2, 3"); a("s_add_u32 s50, s50, s24"); a("s_lshl_b32 s50, s50, 6")
        a("v_mov_b32 v1, s50")
        for i in range(4): a(f"global_store_dwordx4 v1, v[{16+4*i}:{19+4*i}], s[40:41] offset:{16*i}")
    a.lab("L_end")
    a("s_endpgm")
    a.lab("L_slow")
    a("s_waitcnt vmcnt(0)")
    mA, mB = 0, vSlot
    def rewind(n):
        a(f"v_subrev_u32 v{vK}, {n*ST}, v{vK}")
        a(f"v_subrev_u32 v{vV}, {n*ST}, v{vV}")
        a("s_mov_b32 s29, 0")
    def scores():
        a(f"buffer_load_dword v{KXr['E']}, v{vK}, s[16:19], 0 offen offset:32")
        a(f"buffer_load_dword v{KXr['O']}, v{vK}, s[16:19], 0 offen offset:36")
        a(f"buffer_load_dwordx4 {vr(Kr['E'],4)}, v{vK}, s[16:19], 0 offen")
        a(f"buffer_load_dwordx4 {vr(Kr['O'],4)}, v{vK}, s[16:19], 0 offen offset:40")
        a("s_waitcnt vmcnt(0) lgkmcnt(0)")
        a(mf_x('E')); a(mf_x('O'))
        a("s_nop 15"); a("s_nop 3")
        for par in 'EO':
            for t in 'AB': a(mf_q(t, par))
        a("s_nop 15")
    def step(lab):
        a(f"v_add_u32 v{vK}, {ST}, v{vK}")
        a(f"v_add_u32 v{vV}, {ST}, v{vV}")
        a("s_add_u32 s29, s29, 1")
        a("s_cmp_lg_u32 s29, 32")
        a(f"s_cbranch_scc1 {lab}")
    rewind(32 - NB)
    a(f"v_mov_b32 v{mA}, 0xff800000"); a(f"v_mov_b32 v{mB}, 0xff800000")
    a.lab("L_max")
    scores()
    for par in 'EO':
        for t, m in (('A', mA), ('B', mB)):
            s = Sr[par] + (16 if t == 'B' else 0)
            for j in range(0, 16, 2): a(f"v_max3_f32 v{m}, v{m}, v{s+j}, v{s+j+1}")
    step("L_max")
    for m in (mA, mB):
        a(f"v_mov_b32 v{vT2}, v{m}")
        a("s_nop 1")
        a(f"v_permlane32_swap_b32 v{vT2}, v{m}")
        a("s_nop 1")
        a(f"v_max_f32 v{m}, v{m}, v{vT2}")
    rewind(32)
    for r in range(120, 152): a(f"v_mov_b32 v{r}, 0")
    a.lab("L_acc")
    for f in [ROWS] + rd_v('E', 0) + rd_v('O', 0) + [ALL]: a(f)
    scores()
    for par in 'EO':
        for t, m in (('A', mA), ('B', mB)):
            s = Sr[par] + (16 if t == 'B' else 0)
            for j in range(16): a(f"v_sub_f32 v{s+j}, v{s+j}, v{m}")
            for j in range(16): a(f"v_exp_f32 v{s+j}, v{s+j}")
    a("s_nop 1")
    for par in 'EO':
        for t in 'AB':
            for j in range(2): a(mf_pv(t, par, j))
    step("L_acc")
    a("s_nop 15")
    for t in 'AB':
        finish(t); a("s_nop 0"); finish2(t)
    a("s_waitcnt lgkmcnt(0)")
    for k in range(3): a(store(k))
    a("s_branch L_done")
    a.raw(f""".section .rodata,"a"
.p2align 6
.amdhsa_kernel {NAME}_kernel
  .amdhsa_next_free_vgpr {NV}
  .amdhsa_next_free_sgpr {100 if (opt.stamp or opt.amp or opt.itst) else 48}
  .amdhsa_accum_offset {NV}
  .amdhsa_group_segment_fixed_size 0
  .amdhsa_kernarg_size 48
  .amdhsa_user_sgpr_count 2
  .amdhsa_user_sgpr_kernarg_segment_ptr 1
  .amdhsa_system_sgpr_workgroup_id_x 1
.end_amdhsa_kernel""")
    return a.text()

def parse(argv):
    p = argparse.ArgumentParser()
    p.add_argument('-o', default=f"cdna_kernels/{NAME}.s")
    p.add_argument('--cut', type=int, default=4)
    p.add_argument('--pos', default='2,5,15,18,21,27,24')
    p.add_argument('--pf', type=int, default=2)
    p.add_argument('--bm', type=int, default=0)
    p.add_argument('--b2s', type=int, default=0)
    p.add_argument('--b3', type=int, default=2)
    p.add_argument('--fill', type=int, default=0)
    p.add_argument('--prn', type=int, default=1)
    p.add_argument('--nb', type=int, default=4)
    p.add_argument('--dss', type=int, default=1)
    p.add_argument('--half', type=int, default=0)
    p.add_argument('--kexp', type=int, default=0)
    p.add_argument('--ord', default='vkq')
    p.add_argument('--split', type=int, default=2)
    p.add_argument('--xs', type=float, default=35)
    p.add_argument('--tv', type=int, default=-1)
    p.add_argument('--padA', default='0')
    p.add_argument('--padB', default='1')
    p.add_argument('--stamp', type=int, default=0)
    p.add_argument('--itst', type=int, default=0)
    p.add_argument('--amp', type=int, default=0)
    p.add_argument('--ampt', type=int, default=0)
    p.add_argument('--ampa', type=int, default=0)
    p.add_argument('--ampb', type=int, default=8)
    p.add_argument('--ampr', default='')
    p.add_argument('--ampbase', type=int, default=44000)
    return p.parse_args(argv)

if __name__ == '__main__':
    opt = parse(sys.argv[1:])
    open(opt.o, 'w').write(gen(opt))
```

```python
import sys, struct, math, argparse

NAME = "standalone__fused_io_aware_attn__prompt"
HB = 73728
ST = 2304
VBASE = HB
ABASE = 2 * HB
LDS = ABASE + 3 * 4096
OOR = 0x28000
NB = 4

def f2u(x): return struct.unpack('<I', struct.pack('<f', x))[0]
CSCALE = f2u(math.log2(math.e) / math.sqrt(18.0))

vSlot, vK, vV, vInc, vIdx, vQo, vDma, vT2 = 1, 2, 3, 4, 6, 7, 14, 15
KX, QX, KX0 = 8, 10, 12
Kr = {'E': 16, 'O': 20}
Qr = {'A': 24, 'B': 28}
K0 = {'E': 32, 'O': 36}
Vr = {('E', 0): 40, ('E', 1): 44, ('O', 0): 48, ('O', 1): 52, ('T', 0): 168, ('T', 1): 172}
Sr = {'E': 56, 'O': 88}
Or = {'A': 120, 'B': 136}
TR = 152
vWE, vWO, vInc8, vR, vStA, vStB, vStR, vGK, vGX = 176, 177, 178, 180, 181, 182, 183, 184, 185
NV = 188
AL = dict(on=False)
def kx(): return KX0 if AL['on'] else KX
def kr(par): return K0[par] if AL['on'] else Kr[par]
def vv(par, j): return Vr[('T', j)] if (AL['on'] and par == 'E') else Vr[(par, j)]
def vr(b, n): return f"v[{b}:{b+n-1}]"

class Asm:
    def __init__(self): self.l = []
    def __call__(self, s, c=None): self.l.append("    " + s + (f"    ; {c}" if c else ""))
    def lab(self, s): self.l.append(s + ":")
    def raw(self, s): self.l.append(s)
    def note(self, s): self.l.append("    ; " + s)
    def text(self): return "\n".join(x.rstrip() for x in self.l) + "\n"

def mf_x(par):
    return f"v_mfma_f32_32x32x4_2b_bf16 {vr(Sr[par],32)}, {vr(kx(),2)}, {vr(QX,2)}, 0 cbsz:1 abid:{0 if par == 'E' else 1}"
def mf_q(t, par):
    s = Sr[par] + (16 if t == 'B' else 0)
    return f"v_mfma_f32_32x32x16_bf16 {vr(s,16)}, {vr(kr(par),4)}, {vr(Qr[t],4)}, {vr(s,16)}"
def mf_pv(t, par, j, vs=None):
    s = Sr[par] + (16 if t == 'B' else 0) + 8 * j
    return f"v_smfmac_f32_32x32x32_bf16 {vr(Or[t],16)}, {vr(vv(vs or par,j),4)}, {vr(s,8)}, v{vIdx}"
def ex(par, i): return f"v_exp_f32 v{Sr[par]+i}, v{Sr[par]+i}"
def rd_k(u):
    return [f"ds_read_addtid_b32 v{kx()} offset:{u*ST+2048}",
            f"ds_read_b128 {vr(kr('E'),4)}, v{vK} offset:{u*ST}", f"ds_read_b128 {vr(kr('O'),4)}, v{vK} offset:{u*ST+1024}"]
def rd_v(par, u):
    return [f"ds_read_b128 {vr(vv(par,j),4)}, v{vV} offset:{u*ST + (0 if par == 'E' else 1152) + 576*j}" for j in range(2)]
ROWS = "s_mov_b64 exec, s[12:13]"
ALL = "s_mov_b64 exec, -1"

def phase_list(par, opt):
    oth = 'O' if par == 'E' else 'E'
    pos = [int(x) for x in opt.pos.split(',')]
    mf = {pos[0]: mf_pv('B', oth, 1), pos[1]: mf_x(oth), pos[2]: mf_pv('A', par, 0), pos[3]: mf_pv('A', par, 1),
          pos[4]: mf_q('A', oth), pos[5]: mf_pv('B', par, 0), pos[6]: mf_q('B', oth)}
    out = []
    for i in range(32):
        if i in mf: out.append((i, 'm', mf[i]))
        if opt.fill and i == pos[3]: out.append((i, 'n', f"s_nop {opt.fill-1}"))
        out.append((i, 'e', ex(par, i)))
    return out

def gen(opt):
    a = Asm()
    def stamp(i):
        if opt.stamp and (opt.stamp != 3 or i in (0, 7, 8)): a(f"s_memtime s[{60+2*i}:{61+2*i}]")
        if opt.amp and i in (opt.ampa, opt.ampb): a(f"{'s_memrealtime' if opt.ampt else 's_memtime'} s[{60+2*i}:{61+2*i}]")
    smem = opt.stamp == 1 or (opt.amp and not (opt.ampa in (0, 7) and opt.ampb in (7, 8)))
    def lgkm(n): a(f"s_waitcnt lgkmcnt({0 if smem else n})")
    a.raw(f"""; Fused attention forward, B=2 H=32 S=2048 D=18, bf16 in/out (emitted by my own generator script).
; @launch grid=(256,1,1) block=(512,1,1) lds={LDS}
.amdgcn_target "amdgcn-amd-amdhsa--gfx950"
.text
.globl {NAME}_kernel
.p2align 8
.type {NAME}_kernel,@function
{NAME}_kernel:""")
    stamp(0)
    if opt.stamp: a("s_memrealtime s[56:57]")
    a("s_load_dwordx8 s[4:11], s[0:1], 0", "q, k, v, out")
    if opt.pf:
        a("s_getpc_b64 s[36:37]")
        a("v_mad_u64_u32 v[16:17], vcc, v0, 14, s[36:37]")
        a(f"global_load_ubyte v{vT2}, v[16:17], off offset:116", "pulls this kernel's own code lines into L2")
    a("v_readfirstlane_b32 s24, v0", "64 * wave")
    a("s_and_b32 s3, s2, 7")
    a("s_lshr_b32 s25, s2, 3")
    a("s_lshl_b32 s3, s3, 5")
    a("s_add_u32 s3, s3, s25", "4 * head + query block")
    a("s_cmpk_ge_u32 s2, 256")
    a("s_cbranch_scc1 L_end")
    a("s_cmpk_ge_u32 s24, 256")
    a("s_cbranch_scc1 L_setup", "role B (waves 4..7) starts its loads after role A's")
    t0, t1 = Sr['E'] + 8, Sr['E'] + 9
    C = Sr['E']
    t3, t4, t5 = C + 4, C + 5, C + 6
    T = Sr['O']
    def qloads():
        a(f"global_load_dword v{T+8}, v{vQo}, s[4:5] offset:32")
        a(f"global_load_dwordx4 {vr(T,4)}, v{vQo}, s[4:5]")
        a(f"global_load_dwordx4 {vr(T+4,4)}, v{vQo}, s[4:5] offset:16")
    def qaddr():
        a(f"v_lshl_add_u32 v{vQo}, s3, 9, v0")
        a(f"v_mul_u32_u24 v{vQo}, 36, v{vQo}", "one Q row per lane")
    def gaddr():
        a(f"v_and_b32 v{t0}, 31, v0", "MFMA row m = key pair")
        a(f"v_bfe_u32 v{t1}, v0, 5, 1", "half wave h")
        a(f"v_mul_u32_u24 v{vGK}, 72, v{t0}")
        a(f"v_mad_u32_u24 v{vGX}, v{t1}, 36, v{vGK}", "dims 16,17 of the even (h=0) / odd (h=1) key, less 32")
        a(f"v_lshl_add_u32 v{vGK}, v{t1}, 4, v{vGK}", "dims 8h..8h+7 of the even key")
    a("s_lshr_b32 s25, s3, 2")
    a(f"s_mul_i32 s25, s25, {HB}")
    a("s_mul_i32 s26, s24, 20")
    a("s_add_u32 s26, s26, s25")
    a(f"v_lshl_add_u32 v{t3}, v0, 4, s26")
    a("s_mul_i32 s26, s24, 36", "super tile `wave` of V and of K")
    a(f"s_add_u32 m0, s26, {VBASE}")
    a("s_waitcnt lgkmcnt(0)")
    stamp(1)
    a(f"global_load_lds_dwordx4 v{t3}, s[8:9]")
    a(f"global_load_lds_dwordx4 v{t3}, s[8:9] offset:1024")
    a("s_mov_b64 exec, 0xffff")
    a(f"global_load_lds_dwordx4 v{t3}, s[8:9] offset:2048")
    a(ALL)
    a("s_add_u32 s25, s25, s26")
    a("s_add_u32 s42, s6, s25")
    a("s_addc_u32 s43, s7, 0")
    a("s_mov_b32 m0, s26")
    gaddr()
    a(f"global_load_lds_dwordx4 v{vGK}, s[42:43]")
    a("s_add_u32 m0, s26, 988")
    qaddr()
    a(f"global_load_lds_dwordx4 v{vGK}, s[42:43] offset:36")
    a("s_add_u32 m0, s26, 2016")
    a("s_nop 0")
    a(f"global_load_lds_dword v{vGX}, s[42:43] offset:32")
    qloads()
    a.lab("L_setup")
    if opt.stamp:
        a("s_load_dwordx2 s[40:41], s[0:1], 40")
        if opt.stamp == 3:
            for i in range(62, 74): a(f"s_mov_b32 s{i}, 0")
    qaddr(); gaddr()
    a(f"v_lshlrev_b32 v{vSlot}, 3, v0")
    a("v_and_b32 v0, 63, v0")
    a("s_lshr_b32 s24, s24, 6", "wave id")
    a("s_lshr_b32 s25, s3, 2")
    a(f"s_mul_i32 s25, s25, {HB}", "head byte offset")
    a("s_lshl3_add_u32 s26, s3, s24")
    a(f"s_mul_i32 s26, s26, {ST}", "output byte offset of this wave")
    a(f"v_lshlrev_b32 v{vDma}, 4, v0")
    a("s_cmp_lt_u32 s24, 4")
    a("s_cselect_b32 s28, 8, 0")
    a("s_add_u32 s28, s28, s24")
    a(f"s_mul_i32 s27, s28, {ST}", "byte offset of this wave's next super tile to load")
    a(f"s_mov_b32 s18, {HB}")
    a("s_mov_b32 s19, 0x00020000")
    a(f"s_mov_b32 s46, {HB}")
    a("s_mov_b32 s47, 0x00020000")
    a(f"s_movk_i32 s22, {ST}")
    a("s_mov_b32 s23, 0x00020000")
    def dma():
        a("s_add_u32 m0, s27, s18")
        a("s_mov_b64 exec, 0xffff")
        a(f"buffer_load_dwordx4 v{vDma}, s[44:47], s27 offen offset:2048 lds")
        a(ALL)
        a(f"buffer_load_dwordx4 v{vDma}, s[44:47], s27 offen lds")
        a(f"buffer_load_dwordx4 v{vDma}, s[44:47], s27 offen offset:1024 lds")
        a("s_mov_b32 m0, s27")
        a("s_nop 0")
        a(f"buffer_load_dwordx4 v{vGK}, s[16:19], s27 offen lds")
        a("s_add_u32 m0, s27, 988")
        a("s_nop 0")
        a(f"buffer_load_dwordx4 v{vGK}, s[16:19], s27 offen offset:36 lds")
        a("s_add_u32 m0, s27, 2016")
        a("s_nop 0")
        a(f"buffer_load_dword v{vGX}, s[16:19], s27 offen offset:32 lds")
        a("s_mov_b32 m0, s28")
        a(f"s_add_u32 s27, s27, {8*ST}")
    def tr_read():
        for u in range(2):
            for j in range(2):
                for p in range(2):
                    a(f"ds_read_b64_tr_b16 {vr(TR+8*u+4*j+2*p,2)}, v{vR} offset:{40*u + (16*j+4*p)*72}")
    def tr_write():
        a(ROWS)
        for j in range(2): a(f"ds_write_b128 v{vWE}, {vr(TR+4*j,4)} offset:{576*j}")
        a("s_mov_b64 exec, s[14:15]")
        for j in range(2): a(f"ds_write_b128 v{vWO}, {vr(TR+8+4*j,4)} offset:{576*j}")
        a(ALL)
    a("s_waitcnt lgkmcnt(0)")
    a("s_add_u32 s16, s6, s25")
    a("s_addc_u32 s17, s7, 0")
    a("s_add_u32 s44, s8, s25")
    a("s_addc_u32 s45, s9, 0")
    a("s_add_u32 s20, s10, s26")
    a("s_addc_u32 s21, s11, 0")
    a(f"v_cmp_eq_u32 vcc, 20, v{t0}")
    a(f"v_mov_b32 v{QX}, 0"); a(f"v_mov_b32 v{QX+1}, 0")
    a(f"v_mov_b32 v{t4}, 0x3f803f80")
    a("s_mov_b32 s12, 0x0003ffff"); a("s_mov_b32 s13, 0x0003ffff")
    a("s_mov_b32 s14, 0x00c0ffff"); a("s_mov_b32 s15, 0x00c0ffff")
    a(f"v_cndmask_b32 v40, 0, v{t4}, vcc")
    a(f"v_cndmask_b32 v41, 0, v{t4}, vcc")
    for r in list(range(42, 56, 2)) + list(range(168, 176, 2)): a(f"v_pk_mov_b32 {vr(r,2)}, v[40:41], v[40:41]")
    a(f"v_mfma_f32_32x32x4_2b_bf16 {vr(120,32)}, {vr(QX,2)}, {vr(QX,2)}, 0", "zeroes the accumulators")
    a(f"v_and_b32 v{t3}, 3, v0")
    a(f"v_bfe_u32 v{t4}, v0, 3, 1")
    a(f"v_lshl_add_u32 v{t3}, v{t4}, 2, v{t3}")
    a(f"v_and_b32 v{t4}, 4, v0")
    a(f"v_lshlrev_b32 v{t4}, 1, v{t4}")
    a(f"v_sub_u32 v{t3}, v{t3}, v{t4}")
    a(f"v_add_u32 v{t3}, 8, v{t3}")
    a(f"v_cmp_lt_u32 vcc, 15, v{t0}")
    a(f"v_and_b32 v{t4}, 1, v0")
    a(f"v_add_u32 v{t4}, 16, v{t4}")
    a(f"v_cndmask_b32 v{t3}, v{t3}, v{t4}, vcc")
    a(f"v_mul_u32_u24 v{t5}, 18, v{t1}")
    a("s_cmp_lt_u32 s24, 4")
    a(f"s_cselect_b32 s28, 0, {4*ST}")
    a("s_sub_u32 s29, s27, s28")
    a("s_add_u32 s29, s29, s18", "first V super tile this wave transposes")
    for sub, dst, extra in ((4, vWE, 0), (2, vWO, 72)):
        a(f"v_subrev_u32 v{t4}, {sub}, v{t3}")
        a(f"v_add_u32 v{dst}, 18, v{t4}")
        a(f"v_min_u32 v{t4}, v{t4}, v{dst}")
        a(f"v_add_u32 v{t4}, v{t4}, v{t5}")
        if extra: a(f"v_add_u32 v{t4}, {extra}, v{t4}")
        else: a(f"v_lshl_add_u32 v{vV}, v{t4}, 4, s18")
        a(f"v_lshl_add_u32 v{dst}, v{t4}, 4, s29")
    a(f"v_bfe_u32 v{t3}, v0, 2, 2")
    a(f"v_lshl_add_u32 v{t3}, v{t1}, 3, v{t3}")
    a(f"v_mul_u32_u24 v{t3}, 72, v{t3}")
    a(f"v_and_b32 v{t4}, 1, v0")
    a(f"v_lshlrev_b32 v{t4}, 4, v{t4}")
    a(f"v_sub_u32 v{t3}, v{t3}, v{t4}")
    a(f"v_and_b32 v{t4}, 2, v0")
    a(f"v_lshl_add_u32 v{t3}, v{t4}, 2, v{t3}")
    a(f"v_and_b32 v{t4}, 16, v0")
    a(f"v_add3_u32 v{t3}, v{t4}, v{t3}, s29")
    a(f"v_add_u32 v{t4}, 16, v{t3}")
    a(f"v_subrev_u32 v{t3}, 8, v{t3}")
    a("s_mov_b32 vcc_lo, 0x22220000"); a("s_mov_b32 vcc_hi, 0x22220000")
    a(f"v_cndmask_b32 v{t3}, v{t4}, v{t3}, vcc")
    a(f"v_mov_b32 v{t4}, {OOR:#x}")
    a("s_mov_b32 vcc_lo, 0xcccc0000"); a("s_mov_b32 vcc_hi, 0xcccc0000")
    a(f"v_cndmask_b32 v{vR}, v{t3}, v{t4}, vcc")
    for r in (KX, KX0): a(f"v_mov_b32 v{r+1}, 0x3f80")
    a(f"v_mov_b32 v{QX+1}, {f2u(opt.xs) >> 16:#x}", "constant softmax shift")
    a(f"v_mov_b32 v{vIdx}, 0xdddd", "sparse index: elements 1 and 3 of every group of four")
    a(f"v_mov_b32 v{vK}, v{vDma}")
    a(f"v_mov_b32 v{vInc}, {NB*ST}")
    a(f"v_mov_b32 v{vInc+1}, {NB*ST}")
    a(f"v_add_u32 v{C+2}, v{vK}, v{vInc}")
    a(f"v_add_u32 v{C+3}, v{vV}, v{vInc}")
    a(f"v_add_u32 v{vSlot}, {ABASE}, v{vSlot}")
    a(f"ds_write_b64 v{vSlot}, {vr(C+2,2)}")
    a(f"v_mov_b32 v{vInc8}, {8*ST}")
    a(f"v_mov_b32 v{vInc8+1}, {8*ST}")
    a(f"v_add3_u32 v{C}, v{vWE}, v{vInc8}, s28")
    a(f"v_add3_u32 v{C+1}, v{vWO}, v{vInc8}, s28")
    a(f"v_add3_u32 v{t3}, v{vR}, v{vInc8}, s28")
    a(f"ds_write_b64 v{vSlot}, {vr(C,2)} offset:4096")
    a(f"ds_write_b32 v{vSlot}, v{t3} offset:8192")
    a(f"s_mul_i32 s28, s24, {ST}")
    a(f"v_mul_u32_u24 v{vStA}, 36, v{t0}")
    a(f"v_lshlrev_b32 v{t4}, 4, v{t1}")
    a(f"v_sub_u32 v{vStA}, v{vStA}, v{t4}")
    a(f"v_add3_u32 v{vStA}, v{vStA}, 16, s28")
    a(f"v_add_u32 v{vStB}, 1152, v{vStA}")
    a(f"v_add_u32 v{vStR}, s28, v{vDma}")
    a(f"s_mov_b32 s30, {CSCALE:#x}", "log2(e)/sqrt(18)"); a(f"s_mov_b32 s31, {CSCALE:#x}")
    a("s_mov_b32 s28, 0")
    a("s_mov_b32 m0, 0")
    a("s_mov_b32 s29, 1", "super tile counter")
    a("s_mov_b32 s32, 0x8088", "barrier schedule")
    a("s_mov_b32 s33, 0x80008088")
    a("s_mov_b32 s38, 0x8000ddd0", "iterations with extra work, role A")
    a("s_mov_b32 s39, 0x8000dddc", "role B")
    a("s_mov_b32 s34, 0xffff0000")
    a("s_mov_b32 s35, 0x7b800000", "2^120")
    a("s_mov_b64 vcc, 0")
    a("s_cmp_ge_u32 s24, 4", "SCC = role B (kept until the loops)")
    if opt.amp: stamp(9)
    a("s_waitcnt vmcnt(6)")
    a("s_barrier", "V super tiles 0..3 are in: role B transposes them and starts its Q loads")
    if opt.amp: stamp(10)
    a("s_cbranch_scc0 L_noq")
    tr_read()
    qloads()
    a("s_waitcnt lgkmcnt(0)")
    tr_write()
    for r in (vR, vWE, vWO): a(f"v_add_u32 v{r}, {4*ST}, v{r}")
    a.lab("L_noq")
    a.raw("    .p2align 3")
    a("s_waitcnt vmcnt(3) lgkmcnt(0)")
    stamp(2)
    a("s_barrier", "K super tiles 0..3 are in, V super tiles 0..3 are transposed")
    bump = f"ds_add_rtn_u64 {vr(vK,2)}, v{vSlot}, {vr(vInc,2)}"
    def reads(u): return rd_k(u) + [ROWS] + rd_v('O', u-1) + rd_v('E', u) + [ALL]
    late = reads(1)
    AL['on'] = True
    for f in rd_k(0) + [ROWS, "s_setprio 3"] + rd_v('E', 0) + [ALL]: a(f)
    stamp(3)
    W = T + 10
    QA, QB = Qr['A'], Qr['B']
    def shl(j): a(f"v_lshlrev_b32 v{W+2*j}, 16, v{T+j}")
    def msk(j): a(f"v_and_b32 v{W+2*j+1}, s34, v{T+j}")
    def mul(j): a(f"v_pk_mul_f32 {vr(W+2*j,2)}, {vr(W+2*j,2)}, s[30:31]")
    def cvt(j, d): a(f"v_cvt_pk_bf16_f32 v{d}, v{W+2*j}, v{W+2*j+1}")
    a("s_waitcnt vmcnt(0)")
    stamp(4)
    shl(8); msk(8); mul(8); cvt(8, QX)
    shl(0)
    lgkm(3)
    a(mf_x('E'))
    a(f"v_and_b32_e64 v{W+1}, s34, v{T}")
    for j in range(1, 8): shl(j); msk(j)
    for j in range(8): mul(j)
    for j in range(4): cvt(j, QA + j)
    for j in range(4): cvt(4 + j, QB + j)
    for j in range(4): a(f"v_permlane32_swap_b32 v{QA+j}, v{QB+j}")
    a("s_waitcnt lgkmcnt(0)")
    a("s_nop 0")
    a(mf_q('A', 'E'))
    for f in late[:3]: a(f)
    a(mf_q('B', 'E'))
    for f in late[3:]: a(f)
    a("s_cbranch_scc1 L_startB")
    a("s_setprio 2")
    cut = opt.cut
    pos0 = int(opt.pos.split(',')[0])
    assert cut > pos0
    a.lab("L_first")
    stamp(5)
    for (i, k_, s_) in phase_list('E', opt):
        if not (i == pos0 and k_ == 'm'): a(s_)
        if 'smfmac' in s_ and i > 25: a("s_waitcnt lgkmcnt(0)")
    for (i, k_, s_) in phase_list('O', opt):
        if i < cut: a(s_)
    AL['on'] = False
    pE, pO = phase_list('E', opt), phase_list('O', opt)
    seg = [s_ for (i, k_, s_) in pO if i >= cut] + [s_ for (i, k_, s_) in pE] + [s_ for (i, k_, s_) in pO if i < cut]
    for s_ in seg: a(s_)
    a("s_cbranch_scc0 L_topA2")
    a("s_branch L_topB2")
    a.lab("L_startB")
    a("s_setprio 1")
    dma()
    a("s_cmp_ge_u32 s24, 4")
    a("s_branch L_first")
    def back(n):
        a("s_cmp_ge_u32 s24, 4")
        a(f"s_cbranch_scc0 L_backA{n}")
        a(f"s_branch L_backB{n}")
    a.lab("L_evR")
    a("s_waitcnt vmcnt(0)")
    tr_read()
    back(2)
    a.lab("L_evW")
    a("s_cmp_eq_u32 s29, 31")
    a("s_cbranch_scc1 L_ev31")
    tr_write()
    a(f"ds_add_rtn_u64 {vr(vWE,2)}, v{vSlot}, {vr(vInc8,2)} offset:4096")
    a(f"ds_add_rtn_u32 v{vR}, v{vSlot}, v{vInc8} offset:8192")
    back(3)
    a.lab("L_evD")
    dma()
    back(0)
    a.lab("L_ev31")
    a("s_mov_b64 vcc, 1", "last segment: it runs on into the tail")
    for f in [ROWS] + rd_v('T', 3) + [ALL]: a(f)
    back(3)
    pads = {'A': [int(x) for x in opt.padA.split(',')], 'B': [int(x) for x in opt.padB.split(',')]}
    for role in 'AB':
        a.raw("    .p2align 6")
        pad = pads[role][0]
        if pad: a.raw(f"    .fill {pad}, 4, 0xbf800000    ; never executed: sets the loop's fetch alignment")
        for c in range(NB):
            last = c == NB - 1
            a.lab(f"L_top{role}{c}")
            if role == 'A': a("s_setprio 0")
            a("s_add_u32 s29, s29, 1")
            if opt.itst: a("s_memtime s[48:49]")
            for f in reads(c if c else NB): a(f)
            if c == 0:
                a(bump)
                a(f"s_addk_i32 s28, {NB*ST}")
                a("s_mov_b32 m0, s28")
            if c != 1:
                a(f"s_bitcmp1_b32 {'s38' if role == 'A' else 's39'}, s29")
                a("s_cbranch_scc1 " + ("L_evW" if last else ("L_evD" if c == 0 else "L_evR")))
            a.lab(f"L_back{role}{c}")
            if last: a(f"s_bitcmp1_b32 {'s33' if role == 'A' else 's32'}, s29", "SCC: a barrier follows this " + ("segment" if role == 'A' else "burst"))
            if c and len(pads[role]) > c:
                for k in range(pads[role][c]): a("s_waitcnt lgkmcnt(4)")
            a("s_waitcnt lgkmcnt(0)")
            if opt.itst:
                a("s_mov_b32 m0, s29"); a("s_nop 0"); a("s_movreld_b32 s62, s48"); a("s_mov_b32 m0, s28"); a("s_nop 0"); a("s_nop 0")
            if role == 'B' and last:
                a(f"s_cbranch_scc0 L_segB{c}")
                a("s_barrier")
            a.lab(f"L_seg{role}{c}")
            nm = 0
            for s_ in seg:
                a(s_)
                if role == 'A' and ('smfmac' in s_ or 'x16_bf16' in s_):
                    nm += 1
                    if nm == opt.prn: a("s_setprio 2")
        if role == 'A':
            a("s_cbranch_scc0 L_topA0")
            a("s_cbranch_vccnz L_tail")
            a("s_barrier")
            a("s_branch L_topA0")
        else:
            a("s_cbranch_vccz L_topB0")
    R = Sr['E']
    PK = {'A': Sr['E'] + 8, 'B': Sr['E'] + 14}
    OB = Sr['E'] + 20
    def finish(t, fill=None):
        O = Or[t]
        rc = R + 2 if t == 'A' else R + 4
        a(f"v_pk_mov_b32 {vr(rc,2)}, {vr(O+8,2)}, {vr(O+8,2)} op_sel:[0,0]", "denominator sits in the upper half wave")
        for f in (fill or ["s_nop 1"]): a(f)
        a(f"v_permlane32_swap_b32 v{rc}, v{rc+1}")
        a(f"v_rcp_f32 v{rc}, v{rc+1}")
    def finish2(t):
        O = Or[t]
        rc = R + 2 if t == 'A' else R + 4
        for j in (8, 0, 2, 4, 6):
            a(f"v_pk_mul_f32 {vr(O+j,2)}, {vr(O+j,2)}, {vr(rc,2)} op_sel_hi:[1,0]")
        st = vStA if t == 'A' else vStB
        for j in (4, 0, 1, 2, 3):
            a(f"v_cvt_pk_bf16_f32 v{PK[t]+j}, v{O+2*j}, v{O+2*j+1}")
        a(f"ds_write_b32 v{st}, v{PK[t]+4} offset:16", "upper half's word is overwritten by the next write")
        a(f"ds_write2_b32 v{st}, v{PK[t]}, v{PK[t]+1} offset0:0 offset1:1")
        a(f"ds_write2_b32 v{st}, v{PK[t]+2}, v{PK[t]+3} offset0:2 offset1:3")
        if t == 'A':
            a(f"ds_read_b128 {vr(OB,4)}, v{vStR}")
        else:
            a(f"ds_read_b128 {vr(OB+4,4)}, v{vStR} offset:1024")
            a(f"ds_read_b128 {vr(OB+8,4)}, v{vStR} offset:2048")
    def store(k): return f"buffer_store_dwordx4 {vr(OB+4*k,4)}, v{vDma}, s[20:23], 0 offen offset:{1024*k} sc1"
    a.lab("L_tail")
    if opt.tail == 0:
        tm = {10: mf_pv('A', 'O', 0, 'T'), 18: mf_pv('A', 'O', 1, 'T'), 26: mf_pv('B', 'O', 0, 'T')}
        for i in range(cut, 29):
            if i in tm: a(tm[i])
            a(ex('O', i))
        finish('A', [ex('O', 29), ex('O', 30)])
        a(ex('O', 31).replace("v_exp_f32", "v_exp_f32_e64"))
        stamp(6)
        n0 = len(a.l)
        finish2('A')
        a.l.insert(n0 + 5, "    " + mf_pv('B', 'O', 1, 'T'))
        a("s_nop 0")
    else:
        tm = {10: mf_pv('A', 'O', 0, 'T'), 18: mf_pv('A', 'O', 1, 'T')}
        for i in range(cut, 28):
            if i in tm: a(tm[i])
            if i == 18: a("s_nop 1")
            a(ex('O', i))
        finish('A', [ex('O', 28), ex('O', 29)])
        a(ex('O', 30).replace("v_exp_f32", "v_exp_f32_e64"))
        n0 = len(a.l)
        finish2('A')
        a.l.insert(n0 + 10, "    " + mf_pv('B', 'O', 0, 'T'))
        a.l.insert(n0 + 13, "    " + ex('O', 31).replace("v_exp_f32", "v_exp_f32_e64"))
        stamp(6)
        a(mf_pv('B', 'O', 1, 'T'))
        a("s_nop 9")
    lgkm(0)
    a(store(0))
    finish('B')
    a("s_nop 0")
    finish2('B')
    lgkm(1)
    a(store(1))
    lgkm(0)
    a(store(2))
    stamp(7)
    a("s_setprio 0")
    for t in 'AB':
        for j in range(5): a(f"v_dot2c_f32_bf16 v{R+3 if t == 'A' else R+5}, 0, v{PK[t]+j}")
    a(f"v_cmp_nge_f32 s[36:37], v{R+3}, 1.0")
    a(f"v_cmp_nle_f32 vcc, v{R+3}, s35")
    a("s_or_b64 s[36:37], s[36:37], vcc")
    a(f"v_cmp_nge_f32 s[38:39], v{R+5}, 1.0")
    a(f"v_cmp_nle_f32 vcc, v{R+5}, s35")
    a("s_or_b64 s[36:37], s[36:37], s[38:39]")
    a("s_or_b64 s[36:37], s[36:37], vcc")
    a("s_cbranch_scc1 L_slow")
    a.lab("L_done")
    if opt.amp:
        a("s_waitcnt vmcnt(0)")
        stamp(8)
        a("s_memrealtime s[42:43]")
        a("s_waitcnt lgkmcnt(0)")
        a(f"s_sub_u32 s50, s{60+2*opt.ampb}, s{60+2*opt.ampa}")
        a(f"s_max_u32 s50, s50, {opt.ampbase}")
        a(f"s_sub_u32 s50, s50, {opt.ampbase}")
        a("s_load_dwordx2 s[54:55], s[0:1], 32")
        a(f"s_cmp_lg_u32 s24, {3 if opt.ampr == 'A' else 7}")
        a("s_cbranch_scc1 L_end")
        a("s_add_u32 s51, s50, 0x1000000")
        a("s_mov_b64 exec, 1")
        a("v_mov_b32 v16, s51"); a("v_mov_b32 v17, 0")
        a("s_waitcnt lgkmcnt(0)")
        a("global_atomic_add v18, v17, v16, s[54:55] sc0 sc1")
        a("s_waitcnt vmcnt(0)")
        a("v_readfirstlane_b32 s51, v18")
        a("s_nop 3")
        a("s_add_u32 s50, s50, s51")
        a("s_and_b32 s50, s50, 0xffffff")
        a(f"s_mul_i32 s50, s50, {opt.amp}")
        a("s_lshr_b32 s50, s50, 8")
        a("s_lshr_b32 s51, s51, 24")
        a("s_cmp_lg_u32 s51, 255")
        a("s_cselect_b32 s50, 0, s50")
        a("s_min_u32 s50, s50, 20000")
        a.lab("L_spin")
        a("s_sleep 2")
        a("s_memrealtime s[52:53]")
        a("s_waitcnt lgkmcnt(0)")
        a("s_sub_u32 s51, s52, s42")
        a("s_cmp_lt_u32 s51, s50")
        a("s_cbranch_scc1 L_spin")
    if opt.itst:
        a("s_load_dwordx2 s[40:41], s[0:1], 40")
        for i in range(32): a(f"v_writelane_b32 v16, s{62+i}, {i}")
        a("s_lshl_b32 s50, s2, 3"); a("s_add_u32 s50, s50, s24"); a("s_lshl_b32 s50, s50, 8")
        a(f"v_lshrrev_b32 v1, 2, v{vDma}")
        a("v_add_u32 v1, s50, v1")
        a("s_waitcnt lgkmcnt(0)")
        a("global_store_dword v1, v16, s[40:41]")
    if opt.stamp:
        a("s_mov_b64 exec, 1")
        a("s_waitcnt vmcnt(0)")
        stamp(8)
        a("s_memrealtime s[58:59]")
        a("s_getreg_b32 s42, hwreg(HW_REG_HW_ID)")
        a("s_getreg_b32 s43, hwreg(HW_REG_XCC_ID)")
        a("s_waitcnt lgkmcnt(0)")
        for i, sr in enumerate((56, 58, 42, 43, 60, 62, 64, 66, 68, 70, 72, 74, 76)):
            a(f"v_mov_b32 v{16+i}, s{sr}")
        a("s_lshl_b32 s50, s2, 3"); a("s_add_u32 s50, s50, s24"); a("s_lshl_b32 s50, s50, 6")
        a("v_mov_b32 v1, s50")
        for i in range(4): a(f"global_store_dwordx4 v1, v[{16+4*i}:{19+4*i}], s[40:41] offset:{16*i}")
    a.lab("L_end")
    a("s_endpgm")
    a.lab("L_slow")
    a("s_waitcnt vmcnt(0)")
    mA, mB = 0, vSlot
    def scores():
        a(f"buffer_load_dword v{KX}, v{vGX}, s[16:19], s29 offen offset:32")
        a(f"buffer_load_dwordx4 {vr(Kr['E'],4)}, v{vGK}, s[16:19], s29 offen")
        a(f"buffer_load_dwordx4 {vr(Kr['O'],4)}, v{vGK}, s[16:19], s29 offen offset:36")
        a("s_waitcnt vmcnt(0) lgkmcnt(0)")
        a(mf_x('E')); a(mf_x('O'))
        a("s_nop 15"); a("s_nop 3")
        for par in 'EO':
            for t in 'AB': a(mf_q(t, par))
        a("s_nop 15")
    def step(lab):
        a(f"s_add_u32 s29, s29, {ST}")
        a("s_cmp_lg_u32 s29, s18")
        a(f"s_cbranch_scc1 {lab}")
    a("s_mov_b32 s29, 0")
    a(f"v_mov_b32 v{mA}, 0xff800000"); a(f"v_mov_b32 v{mB}, 0xff800000")
    a.lab("L_max")
    scores()
    for par in 'EO':
        for t, m in (('A', mA), ('B', mB)):
            s = Sr[par] + (16 if t == 'B' else 0)
            for j in range(0, 16, 2): a(f"v_max3_f32 v{m}, v{m}, v{s+j}, v{s+j+1}")
    step("L_max")
    for m in (mA, mB):
        a(f"v_mov_b32 v{vT2}, v{m}")
        a("s_nop 1")
        a(f"v_permlane32_swap_b32 v{vT2}, v{m}")
        a("s_nop 1")
        a(f"v_max_f32 v{m}, v{m}, v{vT2}")
    a(f"v_subrev_u32 v{vV}, {(32-NB)*ST}, v{vV}")
    a("s_mov_b32 s29, 0")
    for r in range(120, 152): a(f"v_mov_b32 v{r}, 0")
    a.lab("L_acc")
    for f in [ROWS] + rd_v('E', 0) + rd_v('O', 0) + [ALL]: a(f)
    scores()
    for par in 'EO':
        for t, m in (('A', mA), ('B', mB)):
            s = Sr[par] + (16 if t == 'B' else 0)
            for j in range(16): a(f"v_sub_f32 v{s+j}, v{s+j}, v{m}")
            for j in range(16): a(f"v_exp_f32 v{s+j}, v{s+j}")
    a(f"v_add_u32 v{vV}, {ST}, v{vV}")
    a("s_nop 0")
    for par in 'EO':
        for t in 'AB':
            for j in range(2): a(mf_pv(t, par, j))
    step("L_acc")
    a("s_nop 15")
    for t in 'AB':
        finish(t); a("s_nop 0"); finish2(t)
    a("s_waitcnt lgkmcnt(0)")
    for k in range(3): a(store(k))
    a("s_branch L_done")
    a.raw(f""".section .rodata,"a"
.p2align 6
.amdhsa_kernel {NAME}_kernel
  .amdhsa_next_free_vgpr {NV}
  .amdhsa_next_free_sgpr {100 if (opt.stamp or opt.amp or opt.itst) else 48}
  .amdhsa_accum_offset {NV}
  .amdhsa_group_segment_fixed_size 0
  .amdhsa_kernarg_size 48
  .amdhsa_user_sgpr_count 2
  .amdhsa_user_sgpr_kernarg_segment_ptr 1
  .amdhsa_system_sgpr_workgroup_id_x 1
.end_amdhsa_kernel""")
    return a.text()

def parse(argv):
    p = argparse.ArgumentParser()
    p.add_argument('-o', default=f"cdna_kernels/{NAME}.s")
    p.add_argument('--cut', type=int, default=4)
    p.add_argument('--pos', default='2,5,15,18,21,27,24')
    p.add_argument('--fill', type=int, default=0)
    p.add_argument('--prn', type=int, default=1)
    p.add_argument('--tail', type=int, default=1)
    p.add_argument('--pf', type=int, default=1)
    p.add_argument('--xs', type=float, default=35)
    p.add_argument('--padA', default='0')
    p.add_argument('--padB', default='1')
    p.add_argument('--stamp', type=int, default=0)
    p.add_argument('--itst', type=int, default=0)
    p.add_argument('--amp', type=int, default=0)
    p.add_argument('--ampt', type=int, default=0)
    p.add_argument('--ampa', type=int, default=0)
    p.add_argument('--ampb', type=int, default=8)
    p.add_argument('--ampr', default='')
    p.add_argument('--ampbase', type=int, default=44000)
    return p.parse_args(argv)

if __name__ == '__main__':
    opt = parse(sys.argv[1:])
    open(opt.o, 'w').write(gen(opt))
```

```python
import sys, struct, math, argparse

NAME = "standalone__fused_io_aware_attn__prompt"
HB = 73728
ST = 2304
VBASE = HB
ABASE = 2 * HB
LDS = ABASE + 3 * 4096
OOR = 0x28000
NB = 4

def f2u(x): return struct.unpack('<I', struct.pack('<f', x))[0]
CSCALE = f2u(math.log2(math.e) / math.sqrt(18.0))

vSlot, vK, vV, vInc, vIdx, vQo, vDma, vT2 = 1, 2, 3, 4, 6, 7, 14, 15
KX, QX, KX0 = 8, 10, 12
Kr = {'E': 16, 'O': 20}
Qr = {'A': 24, 'B': 28}
K0 = {'E': 32, 'O': 36}
Vr = {('E', 0): 40, ('E', 1): 44, ('O', 0): 48, ('O', 1): 52, ('T', 0): 168, ('T', 1): 172}
Sr = {'E': 56, 'O': 88}
Or = {'A': 120, 'B': 136}
TR = 152
vWE, vWO, vInc8, vR, vStA, vStB, vStR, vGK, vGX = 176, 177, 178, 180, 181, 182, 183, 184, 185
NV = 188
AL = dict(on=False)
def kx(): return KX0 if AL['on'] else KX
def kr(par): return K0[par] if AL['on'] else Kr[par]
def vv(par, j): return Vr[('T', j)] if (AL['on'] and par == 'E') else Vr[(par, j)]
def vr(b, n): return f"v[{b}:{b+n-1}]"

class Asm:
    def __init__(self): self.l = []
    def __call__(self, s, c=None): self.l.append("    " + s + (f"    ; {c}" if c else ""))
    def lab(self, s): self.l.append(s + ":")
    def raw(self, s): self.l.append(s)
    def note(self, s): self.l.append("    ; " + s)
    def text(self): return "\n".join(x.rstrip() for x in self.l) + "\n"

def mf_x(par):
    return f"v_mfma_f32_32x32x4_2b_bf16 {vr(Sr[par],32)}, {vr(kx(),2)}, {vr(QX,2)}, 0 cbsz:1 abid:{0 if par == 'E' else 1}"
def mf_q(t, par):
    s = Sr[par] + (16 if t == 'B' else 0)
    return f"v_mfma_f32_32x32x16_bf16 {vr(s,16)}, {vr(kr(par),4)}, {vr(Qr[t],4)}, {vr(s,16)}"
def mf_pv(t, par, j, vs=None):
    s = Sr[par] + (16 if t == 'B' else 0) + 8 * j
    return f"v_smfmac_f32_32x32x32_bf16 {vr(Or[t],16)}, {vr(vv(vs or par,j),4)}, {vr(s,8)}, v{vIdx}"
def ex(par, i): return f"v_exp_f32 v{Sr[par]+i}, v{Sr[par]+i}"
def rd_k(u):
    return [f"ds_read_addtid_b32 v{kx()} offset:{u*ST+2048}",
            f"ds_read_b128 {vr(kr('E'),4)}, v{vK} offset:{u*ST}", f"ds_read_b128 {vr(kr('O'),4)}, v{vK} offset:{u*ST+1024}"]
def rd_v(par, u):
    return [f"ds_read_b128 {vr(vv(par,j),4)}, v{vV} offset:{u*ST + (0 if par == 'E' else 1152) + 576*j}" for j in range(2)]
ROWS = "s_mov_b64 exec, s[12:13]"
ALL = "s_mov_b64 exec, -1"

def phase_list(par, opt):
    oth = 'O' if par == 'E' else 'E'
    pos = [int(x) for x in opt.pos.split(',')]
    mf = {pos[0]: mf_pv('B', oth, 1), pos[1]: mf_x(oth), pos[2]: mf_pv('A', par, 0), pos[3]: mf_pv('A', par, 1),
          pos[4]: mf_q('A', oth), pos[5]: mf_pv('B', par, 0), pos[6]: mf_q('B', oth)}
    out = []
    for i in range(32):
        if i in mf: out.append((i, 'm', mf[i]))
        if opt.fill and i == pos[3]: out.append((i, 'n', f"s_nop {opt.fill-1}"))
        out.append((i, 'e', ex(par, i)))
    return out

def gen(opt):
    a = Asm()
    def stamp(i):
        if opt.stamp and (opt.stamp != 3 or i in (0, 7, 8)): a(f"s_memtime s[{60+2*i}:{61+2*i}]")
        if opt.amp and i in (opt.ampa, opt.ampb): a(f"{'s_memrealtime' if opt.ampt else 's_memtime'} s[{60+2*i}:{61+2*i}]")
    smem = opt.stamp == 1 or (opt.amp and not (opt.ampa in (0, 7) and opt.ampb in (7, 8)))
    def lgkm(n): a(f"s_waitcnt lgkmcnt({0 if smem else n})")
    a.raw(f"""; Fused attention forward, B=2 H=32 S=2048 D=18, bf16 in/out (emitted by my own generator script).
; @launch grid=(256,1,1) block=(512,1,1) lds={LDS}
.amdgcn_target "amdgcn-amd-amdhsa--gfx950"
.text
.globl {NAME}_kernel
.p2align 8
.type {NAME}_kernel,@function
{NAME}_kernel:""")
    stamp(0)
    if opt.stamp: a("s_memrealtime s[56:57]")
    a("s_load_dwordx8 s[4:11], s[0:1], 0", "q, k, v, out")
    if opt.pf:
        a("s_getpc_b64 s[36:37]")
        a("v_mad_u64_u32 v[16:17], vcc, v0, 14, s[36:37]")
        a(f"global_load_ubyte v{vT2}, v[16:17], off offset:116", "pulls this kernel's own code lines into L2")
    a("v_readfirstlane_b32 s24, v0", "64 * wave")
    a("s_and_b32 s3, s2, 7")
    a("s_lshr_b32 s25, s2, 3")
    a("s_lshl_b32 s3, s3, 5")
    a("s_add_u32 s3, s3, s25", "4 * head + query block")
    a("s_cmpk_ge_u32 s2, 256")
    a("s_cbranch_scc1 L_end")
    if not opt.tlb:
        a("s_cmpk_ge_u32 s24, 256")
        a("s_cbranch_scc1 L_setup", "role B (waves 4..7) starts its loads after role A's")
    t0, t1 = Sr['E'] + 8, Sr['E'] + 9
    C = Sr['E']
    t3, t4, t5 = C + 4, C + 5, C + 6
    T = Sr['O']
    def qloads():
        a(f"global_load_dword v{T+8}, v{vQo}, s[4:5] offset:32")
        a(f"global_load_dwordx4 {vr(T,4)}, v{vQo}, s[4:5]")
        a(f"global_load_dwordx4 {vr(T+4,4)}, v{vQo}, s[4:5] offset:16")
    def qaddr():
        a(f"v_lshl_add_u32 v{vQo}, s3, 9, v0")
        a(f"v_mul_u32_u24 v{vQo}, 36, v{vQo}", "one Q row per lane")
    def gaddr():
        a(f"v_and_b32 v{t0}, 31, v0", "MFMA row m = key pair")
        a(f"v_bfe_u32 v{t1}, v0, 5, 1", "half wave h")
        a(f"v_mul_u32_u24 v{vGK}, 72, v{t0}")
        a(f"v_mad_u32_u24 v{vGX}, v{t1}, 36, v{vGK}", "dims 16,17 of the even (h=0) / odd (h=1) key, less 32")
        a(f"v_lshl_add_u32 v{vGK}, v{t1}, 4, v{vGK}", "dims 8h..8h+7 of the even key")
    a("s_lshr_b32 s25, s3, 2")
    a(f"s_mul_i32 s25, s25, {HB}")
    a("s_mul_i32 s26, s24, 20")
    a("s_add_u32 s26, s26, s25")
    a(f"v_lshl_add_u32 v{t3}, v0, 4, s26")
    a("s_mul_i32 s26, s24, 36", "super tile `wave` of V and of K")
    a(f"s_add_u32 m0, s26, {VBASE}")
    if opt.tlb: a("s_cmpk_ge_u32 s24, 256")
    a("s_waitcnt lgkmcnt(0)")
    stamp(1)
    if opt.tlb:
        if opt.tlb & 1: a("s_load_dword s40, s[6:7], s25", "starts the address translation of K early")
        if opt.tlb & 2: a("s_load_dword s41, s[4:5], s25", "and of Q")
        a("s_cbranch_scc1 L_setup", "role B (waves 4..7) starts its loads after role A's")
    a(f"global_load_lds_dwordx4 v{t3}, s[8:9]")
    a(f"global_load_lds_dwordx4 v{t3}, s[8:9] offset:1024")
    a("s_mov_b64 exec, 0xffff")
    a(f"global_load_lds_dwordx4 v{t3}, s[8:9] offset:2048")
    a(ALL)
    a("s_add_u32 s25, s25, s26")
    a("s_add_u32 s42, s6, s25")
    a("s_addc_u32 s43, s7, 0")
    a("s_mov_b32 m0, s26")
    gaddr()
    a(f"global_load_lds_dwordx4 v{vGK}, s[42:43]")
    a("s_add_u32 m0, s26, 988")
    qaddr()
    a(f"global_load_lds_dwordx4 v{vGK}, s[42:43] offset:36")
    a("s_add_u32 m0, s26, 2016")
    a("s_nop 0")
    a(f"global_load_lds_dword v{vGX}, s[42:43] offset:32")
    qloads()
    a.lab("L_setup")
    if opt.stamp:
        if opt.stamp == 3:
            for i in range(62, 74): a(f"s_mov_b32 s{i}, 0")
    qaddr(); gaddr()
    a(f"v_lshlrev_b32 v{vSlot}, 3, v0")
    a("v_and_b32 v0, 63, v0")
    a("s_lshr_b32 s24, s24, 6", "wave id")
    a("s_lshr_b32 s25, s3, 2")
    a(f"s_mul_i32 s25, s25, {HB}", "head byte offset")
    a("s_lshl3_add_u32 s26, s3, s24")
    a(f"s_mul_i32 s26, s26, {ST}", "output byte offset of this wave")
    a(f"v_lshlrev_b32 v{vDma}, 4, v0")
    a("s_cmp_lt_u32 s24, 4")
    a("s_cselect_b32 s28, 8, 0")
    a("s_add_u32 s28, s28, s24")
    a(f"s_mul_i32 s27, s28, {ST}", "byte offset of this wave's next super tile to load")
    a(f"s_mov_b32 s18, {HB}")
    a("s_mov_b32 s19, 0x00020000")
    a(f"s_mov_b32 s46, {HB}")
    a("s_mov_b32 s47, 0x00020000")
    a(f"s_movk_i32 s22, {ST}")
    a("s_mov_b32 s23, 0x00020000")
    def dma():
        a("s_add_u32 m0, s27, s18")
        a("s_mov_b64 exec, 0xffff")
        a(f"buffer_load_dwordx4 v{vDma}, s[44:47], s27 offen offset:2048 lds")
        a(ALL)
        a(f"buffer_load_dwordx4 v{vDma}, s[44:47], s27 offen lds")
        a(f"buffer_load_dwordx4 v{vDma}, s[44:47], s27 offen offset:1024 lds")
        a("s_mov_b32 m0, s27")
        a("s_nop 0")
        a(f"buffer_load_dwordx4 v{vGK}, s[16:19], s27 offen lds")
        a("s_add_u32 m0, s27, 988")
        a("s_nop 0")
        a(f"buffer_load_dwordx4 v{vGK}, s[16:19], s27 offen offset:36 lds")
        a("s_add_u32 m0, s27, 2016")
        a("s_nop 0")
        a(f"buffer_load_dword v{vGX}, s[16:19], s27 offen offset:32 lds")
        a("s_mov_b32 m0, s28")
        a(f"s_add_u32 s27, s27, {8*ST}")
    def tr_read():
        for u in range(2):
            for j in range(2):
                for p in range(2):
                    a(f"ds_read_b64_tr_b16 {vr(TR+8*u+4*j+2*p,2)}, v{vR} offset:{40*u + (16*j+4*p)*72}")
    def tr_write():
        a(ROWS)
        for j in range(2): a(f"ds_write_b128 v{vWE}, {vr(TR+4*j,4)} offset:{576*j}")
        a("s_mov_b64 exec, s[14:15]")
        for j in range(2): a(f"ds_write_b128 v{vWO}, {vr(TR+8+4*j,4)} offset:{576*j}")
        a(ALL)
    if not opt.tlb: a("s_waitcnt lgkmcnt(0)")
    a("s_add_u32 s16, s6, s25")
    a("s_addc_u32 s17, s7, 0")
    a("s_add_u32 s44, s8, s25")
    a("s_addc_u32 s45, s9, 0")
    a("s_add_u32 s20, s10, s26")
    a("s_addc_u32 s21, s11, 0")
    a(f"v_cmp_eq_u32 vcc, 20, v{t0}")
    a(f"v_mov_b32 v{QX}, 0"); a(f"v_mov_b32 v{QX+1}, 0")
    a(f"v_mov_b32 v{t4}, 0x3f803f80")
    a("s_mov_b32 s12, 0x0003ffff"); a("s_mov_b32 s13, 0x0003ffff")
    a("s_mov_b32 s14, 0x00c0ffff"); a("s_mov_b32 s15, 0x00c0ffff")
    a(f"v_cndmask_b32 v40, 0, v{t4}, vcc")
    a(f"v_cndmask_b32 v41, 0, v{t4}, vcc")
    for r in list(range(42, 56, 2)) + list(range(168, 176, 2)): a(f"v_pk_mov_b32 {vr(r,2)}, v[40:41], v[40:41]")
    a(f"v_mfma_f32_32x32x4_2b_bf16 {vr(120,32)}, {vr(QX,2)}, {vr(QX,2)}, 0", "zeroes the accumulators")
    a(f"v_and_b32 v{t3}, 3, v0")
    a(f"v_bfe_u32 v{t4}, v0, 3, 1")
    a(f"v_lshl_add_u32 v{t3}, v{t4}, 2, v{t3}")
    a(f"v_and_b32 v{t4}, 4, v0")
    a(f"v_lshlrev_b32 v{t4}, 1, v{t4}")
    a(f"v_sub_u32 v{t3}, v{t3}, v{t4}")
    a(f"v_add_u32 v{t3}, 8, v{t3}")
    a(f"v_cmp_lt_u32 vcc, 15, v{t0}")
    a(f"v_and_b32 v{t4}, 1, v0")
    a(f"v_add_u32 v{t4}, 16, v{t4}")
    a(f"v_cndmask_b32 v{t3}, v{t3}, v{t4}, vcc")
    a(f"v_mul_u32_u24 v{t5}, 18, v{t1}")
    a("s_cmp_lt_u32 s24, 4")
    a(f"s_cselect_b32 s28, 0, {4*ST}")
    a("s_sub_u32 s29, s27, s28")
    a("s_add_u32 s29, s29, s18", "first V super tile this wave transposes")
    for sub, dst, extra in ((4, vWE, 0), (2, vWO, 72)):
        a(f"v_subrev_u32 v{t4}, {sub}, v{t3}")
        a(f"v_add_u32 v{dst}, 18, v{t4}")
        a(f"v_min_u32 v{t4}, v{t4}, v{dst}")
        a(f"v_add_u32 v{t4}, v{t4}, v{t5}")
        if extra: a(f"v_add_u32 v{t4}, {extra}, v{t4}")
        else: a(f"v_lshl_add_u32 v{vV}, v{t4}, 4, s18")
        a(f"v_lshl_add_u32 v{dst}, v{t4}, 4, s29")
    a(f"v_bfe_u32 v{t3}, v0, 2, 2")
    a(f"v_lshl_add_u32 v{t3}, v{t1}, 3, v{t3}")
    a(f"v_mul_u32_u24 v{t3}, 72, v{t3}")
    a(f"v_and_b32 v{t4}, 1, v0")
    a(f"v_lshlrev_b32 v{t4}, 4, v{t4}")
    a(f"v_sub_u32 v{t3}, v{t3}, v{t4}")
    a(f"v_and_b32 v{t4}, 2, v0")
    a(f"v_lshl_add_u32 v{t3}, v{t4}, 2, v{t3}")
    a(f"v_and_b32 v{t4}, 16, v0")
    a(f"v_add3_u32 v{t3}, v{t4}, v{t3}, s29")
    a(f"v_add_u32 v{t4}, 16, v{t3}")
    a(f"v_subrev_u32 v{t3}, 8, v{t3}")
    a("s_mov_b32 vcc_lo, 0x22220000"); a("s_mov_b32 vcc_hi, 0x22220000")
    a(f"v_cndmask_b32 v{t3}, v{t4}, v{t3}, vcc")
    a(f"v_mov_b32 v{t4}, {OOR:#x}")
    a("s_mov_b32 vcc_lo, 0xcccc0000"); a("s_mov_b32 vcc_hi, 0xcccc0000")
    a(f"v_cndmask_b32 v{vR}, v{t3}, v{t4}, vcc")
    for r in (KX, KX0): a(f"v_mov_b32 v{r+1}, 0x3f80")
    a(f"v_mov_b32 v{QX+1}, {f2u(opt.xs) >> 16:#x}", "constant softmax shift")
    a(f"v_mov_b32 v{vIdx}, 0xdddd", "sparse index: elements 1 and 3 of every group of four")
    a(f"v_mov_b32 v{vK}, v{vDma}")
    a(f"v_mov_b32 v{vInc}, {NB*ST}")
    a(f"v_mov_b32 v{vInc+1}, {NB*ST}")
    a(f"v_add_u32 v{C+2}, v{vK}, v{vInc}")
    a(f"v_add_u32 v{C+3}, v{vV}, v{vInc}")
    a(f"v_add_u32 v{vSlot}, {ABASE}, v{vSlot}")
    a(f"ds_write_b64 v{vSlot}, {vr(C+2,2)}")
    a(f"v_mov_b32 v{vInc8}, {8*ST}")
    a(f"v_mov_b32 v{vInc8+1}, {8*ST}")
    a(f"v_add3_u32 v{C}, v{vWE}, v{vInc8}, s28")
    a(f"v_add3_u32 v{C+1}, v{vWO}, v{vInc8}, s28")
    a(f"v_add3_u32 v{t3}, v{vR}, v{vInc8}, s28")
    a(f"ds_write_b64 v{vSlot}, {vr(C,2)} offset:4096")
    a(f"ds_write_b32 v{vSlot}, v{t3} offset:8192")
    a(f"s_mul_i32 s28, s24, {ST}")
    a(f"v_mul_u32_u24 v{vStA}, 36, v{t0}")
    a(f"v_lshlrev_b32 v{t4}, 4, v{t1}")
    a(f"v_sub_u32 v{vStA}, v{vStA}, v{t4}")
    a(f"v_add3_u32 v{vStA}, v{vStA}, 16, s28")
    a(f"v_add_u32 v{vStB}, 1152, v{vStA}")
    a(f"v_add_u32 v{vStR}, s28, v{vDma}")
    a(f"s_mov_b32 s30, {CSCALE:#x}", "log2(e)/sqrt(18)"); a(f"s_mov_b32 s31, {CSCALE:#x}")
    a("s_mov_b32 s28, 0")
    a("s_mov_b32 m0, 0")
    a("s_mov_b32 s29, 1", "super tile counter")
    a("s_mov_b32 s32, 0x8088", "barrier schedule")
    a("s_mov_b32 s33, 0x80008088")
    a("s_mov_b32 s38, 0x8000ddd0", "iterations with extra work, role A")
    a("s_mov_b32 s39, 0x8000dddc", "role B")
    a("s_mov_b32 s34, 0xffff0000")
    a("s_mov_b32 s35, 0x7b800000", "2^120")
    a("s_mov_b64 vcc, 0")
    a("s_cmp_ge_u32 s24, 4", "SCC = role B (kept until the loops)")
    if opt.amp: stamp(9)
    a("s_waitcnt vmcnt(6)")
    a("s_barrier", "V super tiles 0..3 are in: role B transposes them and starts its Q loads")
    if opt.amp: stamp(10)
    a("s_cbranch_scc0 L_noq")
    tr_read()
    qloads()
    a("s_waitcnt lgkmcnt(0)")
    tr_write()
    for r in (vR, vWE, vWO): a(f"v_add_u32 v{r}, {4*ST}, v{r}")
    a.lab("L_noq")
    a.raw("    .p2align 3")
    a("s_waitcnt vmcnt(3) lgkmcnt(0)")
    stamp(2)
    a("s_barrier", "K super tiles 0..3 are in, V super tiles 0..3 are transposed")
    bump = f"ds_add_rtn_u64 {vr(vK,2)}, v{vSlot}, {vr(vInc,2)}"
    def reads(u): return rd_k(u) + [ROWS] + rd_v('O', u-1) + rd_v('E', u) + [ALL]
    late = reads(1)
    AL['on'] = True
    for f in rd_k(0) + [ROWS, "s_setprio 3"] + rd_v('E', 0) + [ALL]: a(f)
    stamp(3)
    W = T + 10
    QA, QB = Qr['A'], Qr['B']
    def shl(j): a(f"v_lshlrev_b32 v{W+2*j}, 16, v{T+j}")
    def msk(j): a(f"v_and_b32 v{W+2*j+1}, s34, v{T+j}")
    def mul(j): a(f"v_pk_mul_f32 {vr(W+2*j,2)}, {vr(W+2*j,2)}, s[30:31]")
    def cvt(j, d): a(f"v_cvt_pk_bf16_f32 v{d}, v{W+2*j}, v{W+2*j+1}")
    a("s_waitcnt vmcnt(0)")
    stamp(4)
    shl(8); msk(8); mul(8); cvt(8, QX)
    shl(0)
    lgkm(3)
    a(mf_x('E'))
    a(f"v_and_b32_e64 v{W+1}, s34, v{T}")
    for j in range(1, 8): shl(j); msk(j)
    for j in range(8): mul(j)
    for j in range(4): cvt(j, QA + j)
    for j in range(4): cvt(4 + j, QB + j)
    for j in range(4): a(f"v_permlane32_swap_b32 v{QA+j}, v{QB+j}")
    a("s_waitcnt lgkmcnt(0)")
    a("s_nop 0")
    a(mf_q('A', 'E'))
    for f in late[:3]: a(f)
    a(mf_q('B', 'E'))
    for f in late[3:]: a(f)
    a("s_cbranch_scc1 L_startB")
    a("s_setprio 2")
    cut = opt.cut
    pos0 = int(opt.pos.split(',')[0])
    assert cut > pos0
    a.lab("L_first")
    stamp(5)
    for (i, k_, s_) in phase_list('E', opt):
        if not (i == pos0 and k_ == 'm'): a(s_)
        if 'smfmac' in s_ and i > 25: a("s_waitcnt lgkmcnt(0)")
    for (i, k_, s_) in phase_list('O', opt):
        if i < cut: a(s_)
    AL['on'] = False
    pE, pO = phase_list('E', opt), phase_list('O', opt)
    seg = [s_ for (i, k_, s_) in pO if i >= cut] + [s_ for (i, k_, s_) in pE] + [s_ for (i, k_, s_) in pO if i < cut]
    for s_ in seg: a(s_)
    a("s_cbranch_scc0 L_topA2")
    a("s_branch L_topB2")
    a.lab("L_startB")
    a("s_setprio 1")
    dma()
    a("s_cmp_ge_u32 s24, 4")
    a("s_branch L_first")
    def back(n):
        a("s_cmp_ge_u32 s24, 4")
        a(f"s_cbranch_scc0 L_backA{n}")
        a(f"s_branch L_backB{n}")
    a.lab("L_evR")
    a("s_waitcnt vmcnt(0)")
    tr_read()
    back(2)
    a.lab("L_evW")
    a("s_cmp_eq_u32 s29, 31")
    a("s_cbranch_scc1 L_ev31")
    tr_write()
    a(f"ds_add_rtn_u64 {vr(vWE,2)}, v{vSlot}, {vr(vInc8,2)} offset:4096")
    a(f"ds_add_rtn_u32 v{vR}, v{vSlot}, v{vInc8} offset:8192")
    back(3)
    a.lab("L_evD")
    dma()
    back(0)
    a.lab("L_ev31")
    a("s_mov_b64 vcc, 1", "last segment: it runs on into the tail")
    for f in [ROWS] + rd_v('T', 3) + [ALL]: a(f)
    back(3)
    pads = {'A': [int(x) for x in opt.padA.split(',')], 'B': [int(x) for x in opt.padB.split(',')]}
    for role in 'AB':
        a.raw("    .p2align 6")
        pad = pads[role][0]
        if pad: a.raw(f"    .fill {pad}, 4, 0xbf800000    ; never executed: sets the loop's fetch alignment")
        for c in range(NB):
            last = c == NB - 1
            a.lab(f"L_top{role}{c}")
            if role == 'A': a("s_setprio 0")
            a("s_add_u32 s29, s29, 1")
            if opt.itst: a("s_memtime s[48:49]")
            for f in reads(c if c else NB): a(f)
            if c == 0:
                a(bump)
                a(f"s_addk_i32 s28, {NB*ST}")
                a("s_mov_b32 m0, s28")
            if c != 1:
                a(f"s_bitcmp1_b32 {'s38' if role == 'A' else 's39'}, s29")
                a("s_cbranch_scc1 " + ("L_evW" if last else ("L_evD" if c == 0 else "L_evR")))
            a.lab(f"L_back{role}{c}")
            if last: a(f"s_bitcmp1_b32 {'s33' if role == 'A' else 's32'}, s29", "SCC: a barrier follows this " + ("segment" if role == 'A' else "burst"))
            if c and len(pads[role]) > c:
                for k in range(pads[role][c]): a("s_waitcnt lgkmcnt(4)")
            a("s_waitcnt lgkmcnt(0)")
            if opt.itst:
                a("s_mov_b32 m0, s29"); a("s_nop 0"); a("s_movreld_b32 s62, s48"); a("s_mov_b32 m0, s28"); a("s_nop 0"); a("s_nop 0")
            if role == 'B' and last:
                a(f"s_cbranch_scc0 L_segB{c}")
                a("s_barrier")
            a.lab(f"L_seg{role}{c}")
            nm = 0
            for s_ in seg:
                a(s_)
                if role == 'A' and ('smfmac' in s_ or 'x16_bf16' in s_):
                    nm += 1
                    if nm == opt.prn: a("s_setprio 2")
        if role == 'A':
            a("s_cbranch_scc0 L_topA0")
            a("s_cbranch_vccnz L_tail")
            a("s_barrier")
            a("s_branch L_topA0")
        else:
            a("s_cbranch_vccz L_topB0")
    R = Sr['E']
    PK = {'A': Sr['E'] + 8, 'B': Sr['E'] + 14}
    OB = Sr['E'] + 20
    def finish(t, fill=None):
        O = Or[t]
        rc = R + 2 if t == 'A' else R + 4
        a(f"v_pk_mov_b32 {vr(rc,2)}, {vr(O+8,2)}, {vr(O+8,2)} op_sel:[0,0]", "denominator sits in the upper half wave")
        for f in (fill or ["s_nop 1"]): a(f)
        a(f"v_permlane32_swap_b32 v{rc}, v{rc+1}")
        a(f"v_rcp_f32 v{rc}, v{rc+1}")
    def finish2(t):
        O = Or[t]
        rc = R + 2 if t == 'A' else R + 4
        for j in (8, 0, 2, 4, 6):
            a(f"v_pk_mul_f32 {vr(O+j,2)}, {vr(O+j,2)}, {vr(rc,2)} op_sel_hi:[1,0]")
        st = vStA if t == 'A' else vStB
        for j in (4, 0, 1, 2, 3):
            a(f"v_cvt_pk_bf16_f32 v{PK[t]+j}, v{O+2*j}, v{O+2*j+1}")
        a(f"ds_write_b32 v{st}, v{PK[t]+4} offset:16", "upper half's word is overwritten by the next write")
        a(f"ds_write2_b32 v{st}, v{PK[t]}, v{PK[t]+1} offset0:0 offset1:1")
        a(f"ds_write2_b32 v{st}, v{PK[t]+2}, v{PK[t]+3} offset0:2 offset1:3")
        if t == 'A':
            a(f"ds_read_b128 {vr(OB,4)}, v{vStR}")
        else:
            a(f"ds_read_b128 {vr(OB+4,4)}, v{vStR} offset:1024")
            a(f"ds_read_b128 {vr(OB+8,4)}, v{vStR} offset:2048")
    def store(k): return f"buffer_store_dwordx4 {vr(OB+4*k,4)}, v{vDma}, s[20:23], 0 offen offset:{1024*k} sc1"
    a.lab("L_tail")
    if opt.tail == 0:
        tm = {10: mf_pv('A', 'O', 0, 'T'), 18: mf_pv('A', 'O', 1, 'T'), 26: mf_pv('B', 'O', 0, 'T')}
        for i in range(cut, 29):
            if i in tm: a(tm[i])
            a(ex('O', i))
        finish('A', [ex('O', 29), ex('O', 30)])
        a(ex('O', 31).replace("v_exp_f32", "v_exp_f32_e64"))
        stamp(6)
        n0 = len(a.l)
        finish2('A')
        a.l.insert(n0 + 5, "    " + mf_pv('B', 'O', 1, 'T'))
        a("s_nop 0")
    else:
        tm = {10: mf_pv('A', 'O', 0, 'T'), 18: mf_pv('A', 'O', 1, 'T')}
        for i in range(cut, 28):
            if i in tm: a(tm[i])
            if i == 18: a("s_nop 1")
            a(ex('O', i))
        finish('A', [ex('O', 28), ex('O', 29)])
        a(ex('O', 30).replace("v_exp_f32", "v_exp_f32_e64"))
        n0 = len(a.l)
        finish2('A')
        a.l.insert(n0 + 10, "    " + mf_pv('B', 'O', 0, 'T'))
        a.l.insert(n0 + 13, "    " + ex('O', 31).replace("v_exp_f32", "v_exp_f32_e64"))
        stamp(6)
        a(mf_pv('B', 'O', 1, 'T'))
        a("s_nop 9")
    lgkm(0)
    a(store(0))
    finish('B')
    a("s_nop 0")
    finish2('B')
    lgkm(1)
    a(store(1))
    lgkm(0)
    a(store(2))
    stamp(7)
    a("s_setprio 0")
    for t in 'AB':
        for j in range(5): a(f"v_dot2c_f32_bf16 v{R+3 if t == 'A' else R+5}, 0, v{PK[t]+j}")
    a(f"v_cmp_nge_f32 s[36:37], v{R+3}, 1.0")
    a(f"v_cmp_nle_f32 vcc, v{R+3}, s35")
    a("s_or_b64 s[36:37], s[36:37], vcc")
    a(f"v_cmp_nge_f32 s[38:39], v{R+5}, 1.0")
    a(f"v_cmp_nle_f32 vcc, v{R+5}, s35")
    a("s_or_b64 s[36:37], s[36:37], s[38:39]")
    a("s_or_b64 s[36:37], s[36:37], vcc")
    a("s_cbranch_scc1 L_slow")
    a.lab("L_done")
    if opt.amp:
        a("s_waitcnt vmcnt(0)")
        stamp(8)
        a("s_memrealtime s[42:43]")
        a("s_waitcnt lgkmcnt(0)")
        a(f"s_sub_u32 s50, s{60+2*opt.ampb}, s{60+2*opt.ampa}")
        a(f"s_max_u32 s50, s50, {opt.ampbase}")
        a(f"s_sub_u32 s50, s50, {opt.ampbase}")
        a("s_load_dwordx2 s[54:55], s[0:1], 32")
        a(f"s_cmp_lg_u32 s24, {3 if opt.ampr == 'A' else 7}")
        a("s_cbranch_scc1 L_end")
        a("s_add_u32 s51, s50, 0x1000000")
        a("s_mov_b64 exec, 1")
        a("v_mov_b32 v16, s51"); a("v_mov_b32 v17, 0")
        a("s_waitcnt lgkmcnt(0)")
        a("global_atomic_add v18, v17, v16, s[54:55] sc0 sc1")
        a("s_waitcnt vmcnt(0)")
        a("v_readfirstlane_b32 s51, v18")
        a("s_nop 3")
        a("s_add_u32 s50, s50, s51")
        a("s_and_b32 s50, s50, 0xffffff")
        a(f"s_mul_i32 s50, s50, {opt.amp}")
        a("s_lshr_b32 s50, s50, 8")
        a("s_lshr_b32 s51, s51, 24")
        a("s_cmp_lg_u32 s51, 255")
        a("s_cselect_b32 s50, 0, s50")
        a("s_min_u32 s50, s50, 20000")
        a.lab("L_spin")
        a("s_sleep 2")
        a("s_memrealtime s[52:53]")
        a("s_waitcnt lgkmcnt(0)")
        a("s_sub_u32 s51, s52, s42")
        a("s_cmp_lt_u32 s51, s50")
        a("s_cbranch_scc1 L_spin")
    if opt.itst:
        a("s_load_dwordx2 s[40:41], s[0:1], 40")
        for i in range(32): a(f"v_writelane_b32 v16, s{62+i}, {i}")
        a("s_lshl_b32 s50, s2, 3"); a("s_add_u32 s50, s50, s24"); a("s_lshl_b32 s50, s50, 8")
        a(f"v_lshrrev_b32 v1, 2, v{vDma}")
        a("v_add_u32 v1, s50, v1")
        a("s_waitcnt lgkmcnt(0)")
        a("global_store_dword v1, v16, s[40:41]")
    if opt.stamp:
        a("s_mov_b64 exec, 1")
        a("s_waitcnt vmcnt(0)")
        stamp(8)
        a("s_memrealtime s[58:59]")
        a("s_load_dwordx2 s[40:41], s[0:1], 40")
        a("s_getreg_b32 s42, hwreg(HW_REG_HW_ID)")
        a("s_getreg_b32 s43, hwreg(HW_REG_XCC_ID)")
        a("s_waitcnt lgkmcnt(0)")
        for i, sr in enumerate((56, 58, 42, 43, 60, 62, 64, 66, 68, 70, 72, 74, 76)):
            a(f"v_mov_b32 v{16+i}, s{sr}")
        a("s_lshl_b32 s50, s2, 3"); a("s_add_u32 s50, s50, s24"); a("s_lshl_b32 s50, s50, 6")
        a("v_mov_b32 v1, s50")
        for i in range(4): a(f"global_store_dwordx4 v1, v[{16+4*i}:{19+4*i}], s[40:41] offset:{16*i}")
    a.lab("L_end")
    a("s_endpgm")
    a.lab("L_slow")
    a("s_waitcnt vmcnt(0)")
    mA, mB = 0, vSlot
    def scores():
        a(f"buffer_load_dword v{KX}, v{vGX}, s[16:19], s29 offen offset:32")
        a(f"buffer_load_dwordx4 {vr(Kr['E'],4)}, v{vGK}, s[16:19], s29 offen")
        a(f"buffer_load_dwordx4 {vr(Kr['O'],4)}, v{vGK}, s[16:19], s29 offen offset:36")
        a("s_waitcnt vmcnt(0) lgkmcnt(0)")
        a(mf_x('E')); a(mf_x('O'))
        a("s_nop 15"); a("s_nop 3")
        for par in 'EO':
            for t in 'AB': a(mf_q(t, par))
        a("s_nop 15")
    def step(lab):
        a(f"s_add_u32 s29, s29, {ST}")
        a("s_cmp_lg_u32 s29, s18")
        a(f"s_cbranch_scc1 {lab}")
    a("s_mov_b32 s29, 0")
    a(f"v_mov_b32 v{mA}, 0xff800000"); a(f"v_mov_b32 v{mB}, 0xff800000")
    a.lab("L_max")
    scores()
    for par in 'EO':
        for t, m in (('A', mA), ('B', mB)):
            s = Sr[par] + (16 if t == 'B' else 0)
            for j in range(0, 16, 2): a(f"v_max3_f32 v{m}, v{m}, v{s+j}, v{s+j+1}")
    step("L_max")
    for m in (mA, mB):
        a(f"v_mov_b32 v{vT2}, v{m}")
        a("s_nop 1")
        a(f"v_permlane32_swap_b32 v{vT2}, v{m}")
        a("s_nop 1")
        a(f"v_max_f32 v{m}, v{m}, v{vT2}")
    a(f"v_subrev_u32 v{vV}, {(32-NB)*ST}, v{vV}")
    a("s_mov_b32 s29, 0")
    for r in range(120, 152): a(f"v_mov_b32 v{r}, 0")
    a.lab("L_acc")
    for f in [ROWS] + rd_v('E', 0) + rd_v('O', 0) + [ALL]: a(f)
    scores()
    for par in 'EO':
        for t, m in (('A', mA), ('B', mB)):
            s = Sr[par] + (16 if t == 'B' else 0)
            for j in range(16): a(f"v_sub_f32 v{s+j}, v{s+j}, v{m}")
            for j in range(16): a(f"v_exp_f32 v{s+j}, v{s+j}")
    a(f"v_add_u32 v{vV}, {ST}, v{vV}")
    a("s_nop 0")
    for par in 'EO':
        for t in 'AB':
            for j in range(2): a(mf_pv(t, par, j))
    step("L_acc")
    a("s_nop 15")
    for t in 'AB':
        finish(t); a("s_nop 0"); finish2(t)
    a("s_waitcnt lgkmcnt(0)")
    for k in range(3): a(store(k))
    a("s_branch L_done")
    a.raw(f""".section .rodata,"a"
.p2align 6
.amdhsa_kernel {NAME}_kernel
  .amdhsa_next_free_vgpr {NV}
  .amdhsa_next_free_sgpr {100 if (opt.stamp or opt.amp or opt.itst) else 48}
  .amdhsa_accum_offset {NV}
  .amdhsa_group_segment_fixed_size 0
  .amdhsa_kernarg_size 48
  .amdhsa_user_sgpr_count 2
  .amdhsa_user_sgpr_kernarg_segment_ptr 1
  .amdhsa_system_sgpr_workgroup_id_x 1
.end_amdhsa_kernel""")
    return a.text()

def parse(argv):
    p = argparse.ArgumentParser()
    p.add_argument('-o', default=f"cdna_kernels/{NAME}.s")
    p.add_argument('--cut', type=int, default=4)
    p.add_argument('--pos', default='2,5,15,18,21,27,24')
    p.add_argument('--fill', type=int, default=0)
    p.add_argument('--prn', type=int, default=1)
    p.add_argument('--tail', type=int, default=1)
    p.add_argument('--tlb', type=int, default=0)
    p.add_argument('--pf', type=int, default=1)
    p.add_argument('--xs', type=float, default=35)
    p.add_argument('--padA', default='0')
    p.add_argument('--padB', default='1')
    p.add_argument('--stamp', type=int, default=0)
    p.add_argument('--itst', type=int, default=0)
    p.add_argument('--amp', type=int, default=0)
    p.add_argument('--ampt', type=int, default=0)
    p.add_argument('--ampa', type=int, default=0)
    p.add_argument('--ampb', type=int, default=8)
    p.add_argument('--ampr', default='')
    p.add_argument('--ampbase', type=int, default=44000)
    return p.parse_args(argv)

if __name__ == '__main__':
    opt = parse(sys.argv[1:])
    open(opt.o, 'w').write(gen(opt))
```

```python
import sys, struct, math, argparse

NAME = "standalone__fused_io_aware_attn__prompt"
HB = 73728
ST = 2304
VBASE = HB
ABASE = 2 * HB
LDS = ABASE + 3 * 4096
OOR = 0x28000
NB = 4

def f2u(x): return struct.unpack('<I', struct.pack('<f', x))[0]
CSCALE = f2u(math.log2(math.e) / math.sqrt(18.0))

vSlot, vK, vV, vInc, vIdx, vQo, vDma, vT2 = 1, 2, 3, 4, 6, 7, 14, 15
KX, QX, KX0 = 8, 10, 12
Kr = {'E': 16, 'O': 20}
Qr = {'A': 24, 'B': 28}
K0 = {'E': 32, 'O': 36}
Vr = {('E', 0): 40, ('E', 1): 44, ('O', 0): 48, ('O', 1): 52, ('T', 0): 168, ('T', 1): 172}
Sr = {'E': 56, 'O': 88}
Or = {'A': 120, 'B': 136}
TR = 152
vWE, vWO, vInc8, vR, vStA, vStB, vStR, vGK, vGX = 176, 177, 178, 180, 181, 182, 183, 184, 185
NV = 188
AL = dict(on=False)
def kx(): return KX0 if AL['on'] else KX
def kr(par): return K0[par] if AL['on'] else Kr[par]
def vv(par, j): return Vr[('T', j)] if (AL['on'] and par == 'E') else Vr[(par, j)]
def vr(b, n): return f"v[{b}:{b+n-1}]"

class Asm:
    def __init__(self): self.l = []
    def __call__(self, s, c=None): self.l.append("    " + s + (f"    ; {c}" if c else ""))
    def lab(self, s): self.l.append(s + ":")
    def raw(self, s): self.l.append(s)
    def note(self, s): self.l.append("    ; " + s)
    def text(self): return "\n".join(x.rstrip() for x in self.l) + "\n"

def mf_x(par):
    return f"v_mfma_f32_32x32x4_2b_bf16 {vr(Sr[par],32)}, {vr(kx(),2)}, {vr(QX,2)}, 0 cbsz:1 abid:{0 if par == 'E' else 1}"
def mf_q(t, par):
    s = Sr[par] + (16 if t == 'B' else 0)
    return f"v_mfma_f32_32x32x16_bf16 {vr(s,16)}, {vr(kr(par),4)}, {vr(Qr[t],4)}, {vr(s,16)}"
def mf_pv(t, par, j, vs=None):
    s = Sr[par] + (16 if t == 'B' else 0) + 8 * j
    return f"v_smfmac_f32_32x32x32_bf16 {vr(Or[t],16)}, {vr(vv(vs or par,j),4)}, {vr(s,8)}, v{vIdx}"
def ex(par, i): return f"v_exp_f32 v{Sr[par]+i}, v{Sr[par]+i}"
def rd_k(u):
    return [f"ds_read_addtid_b32 v{kx()} offset:{u*ST+2048}",
            f"ds_read_b128 {vr(kr('E'),4)}, v{vK} offset:{u*ST}", f"ds_read_b128 {vr(kr('O'),4)}, v{vK} offset:{u*ST+1024}"]
def rd_v(par, u):
    return [f"ds_read_b128 {vr(vv(par,j),4)}, v{vV} offset:{u*ST + (0 if par == 'E' else 1152) + 576*j}" for j in range(2)]
ROWS = "s_mov_b64 exec, s[12:13]"
ALL = "s_mov_b64 exec, -1"

def phase_list(par, opt):
    oth = 'O' if par == 'E' else 'E'
    pos = [int(x) for x in opt.pos.split(',')]
    mf = {pos[0]: mf_pv('B', oth, 1), pos[1]: mf_x(oth), pos[2]: mf_pv('A', par, 0), pos[3]: mf_pv('A', par, 1),
          pos[4]: mf_q('A', oth), pos[5]: mf_pv('B', par, 0), pos[6]: mf_q('B', oth)}
    out = []
    for i in range(32):
        if i in mf: out.append((i, 'm', mf[i]))
        if opt.fill and i == pos[3]: out.append((i, 'n', f"s_nop {opt.fill-1}"))
        out.append((i, 'e', ex(par, i)))
    return out

def gen(opt):
    a = Asm()
    def stamp(i):
        if opt.stamp and (opt.stamp != 3 or i in (0, 7, 8)): a(f"s_memtime s[{60+2*i}:{61+2*i}]")
        if opt.amp and i in (opt.ampa, opt.ampb): a(f"{'s_memrealtime' if opt.ampt else 's_memtime'} s[{60+2*i}:{61+2*i}]")
    smem = opt.stamp == 1 or (opt.amp and not (opt.ampa in (0, 7) and opt.ampb in (7, 8)))
    def lgkm(n): a(f"s_waitcnt lgkmcnt({0 if smem else n})")
    a.raw(f"""; Fused attention forward, B=2 H=32 S=2048 D=18, bf16 in/out (emitted by my own generator script).
; @launch grid=(256,1,1) block=(512,1,1) lds={LDS}
.amdgcn_target "amdgcn-amd-amdhsa--gfx950"
.text
.globl {NAME}_kernel
.p2align 8
.type {NAME}_kernel,@function
{NAME}_kernel:""")
    stamp(0)
    if opt.stamp: a("s_memrealtime s[56:57]")
    a("s_load_dwordx8 s[4:11], s[0:1], 0", "q, k, v, out")
    if opt.pf:
        a("s_getpc_b64 s[36:37]")
        a("v_mad_u64_u32 v[16:17], vcc, v0, 14, s[36:37]")
        a(f"global_load_ubyte v{vT2}, v[16:17], off offset:116", "pulls this kernel's own code lines into L2")
    a("v_readfirstlane_b32 s24, v0", "64 * wave")
    a("s_and_b32 s3, s2, 7")
    a("s_lshr_b32 s25, s2, 3")
    a("s_lshl_b32 s3, s3, 5")
    a("s_add_u32 s3, s3, s25", "4 * head + query block")
    a("s_cmpk_ge_u32 s2, 256")
    a("s_cbranch_scc1 L_end")
    if not opt.tlb:
        a("s_cmpk_ge_u32 s24, 256")
        a("s_cbranch_scc1 L_setup", "role B (waves 4..7) starts its loads after role A's")
    t0, t1 = Sr['E'] + 8, Sr['E'] + 9
    C = Sr['E']
    t3, t4, t5 = C + 4, C + 5, C + 6
    T = Sr['O']
    def qloads():
        a(f"global_load_dword v{T+8}, v{vQo}, s[4:5] offset:32")
        a(f"global_load_dwordx4 {vr(T,4)}, v{vQo}, s[4:5]")
        a(f"global_load_dwordx4 {vr(T+4,4)}, v{vQo}, s[4:5] offset:16")
    def qaddr():
        a(f"v_lshl_add_u32 v{vQo}, s3, 9, v0")
        a(f"v_mul_u32_u24 v{vQo}, 36, v{vQo}", "one Q row per lane")
    def gaddr():
        a(f"v_and_b32 v{t0}, 31, v0", "MFMA row m = key pair")
        a(f"v_bfe_u32 v{t1}, v0, 5, 1", "half wave h")
        a(f"v_mul_u32_u24 v{vGK}, 72, v{t0}")
        a(f"v_mad_u32_u24 v{vGX}, v{t1}, 36, v{vGK}", "dims 16,17 of the even (h=0) / odd (h=1) key, less 32")
        a(f"v_lshl_add_u32 v{vGK}, v{t1}, 4, v{vGK}", "dims 8h..8h+7 of the even key")
    if opt.dpf:
        a.note("inside the first instruction cache lines: one word per 36-byte row starts every line of the first loads")
        qaddr()
        a("s_andn2_b32 s25, s3, 3")
        a(f"v_lshl_add_u32 v{t4}, s25, 9, v0")
        a(f"v_mul_u32_u24 v{t4}, 36, v{t4}")
        a("s_waitcnt lgkmcnt(0)")
        stamp(1)
        for ch in opt.dpf:
            if ch == 'v': a(f"global_load_dword v{TR}, v{t4}, s[8:9]")
            if ch == 'k': a(f"global_load_dword v{TR+1}, v{t4}, s[6:7]")
            if ch == 'q': a(f"global_load_dword v{TR+2}, v{vQo}, s[4:5]")
    a("s_lshr_b32 s25, s3, 2")
    a(f"s_mul_i32 s25, s25, {HB}")
    a("s_mul_i32 s26, s24, 20")
    a("s_add_u32 s26, s26, s25")
    a(f"v_lshl_add_u32 v{t3}, v0, 4, s26")
    a("s_mul_i32 s26, s24, 36", "super tile `wave` of V and of K")
    a(f"s_add_u32 m0, s26, {VBASE}")
    if opt.tlb: a("s_cmpk_ge_u32 s24, 256")
    if opt.dpf: a("s_nop 0")
    else:
        a("s_waitcnt lgkmcnt(0)")
        stamp(1)
    if opt.tlb:
        if opt.tlb & 1: a("s_load_dword s40, s[6:7], s25", "starts the address translation of K early")
        if opt.tlb & 2: a("s_load_dword s41, s[4:5], s25", "and of Q")
        a("s_cbranch_scc1 L_setup", "role B (waves 4..7) starts its loads after role A's")
    a(f"global_load_lds_dwordx4 v{t3}, s[8:9]")
    a(f"global_load_lds_dwordx4 v{t3}, s[8:9] offset:1024")
    a("s_mov_b64 exec, 0xffff")
    a(f"global_load_lds_dwordx4 v{t3}, s[8:9] offset:2048")
    a(ALL)
    a("s_add_u32 s25, s25, s26")
    a("s_add_u32 s42, s6, s25")
    a("s_addc_u32 s43, s7, 0")
    a("s_mov_b32 m0, s26")
    gaddr()
    a(f"global_load_lds_dwordx4 v{vGK}, s[42:43]")
    a("s_add_u32 m0, s26, 988")
    if opt.dpf: a("s_nop 0")
    else: qaddr()
    a(f"global_load_lds_dwordx4 v{vGK}, s[42:43] offset:36")
    a("s_add_u32 m0, s26, 2016")
    a("s_nop 0")
    a(f"global_load_lds_dword v{vGX}, s[42:43] offset:32")
    qloads()
    if opt.amp: stamp(11)
    a.lab("L_setup")
    if opt.stamp:
        if opt.stamp == 3:
            for i in range(62, 74): a(f"s_mov_b32 s{i}, 0")
    qaddr(); gaddr()
    a(f"v_lshlrev_b32 v{vSlot}, 3, v0")
    a("v_and_b32 v0, 63, v0")
    a("s_lshr_b32 s24, s24, 6", "wave id")
    a("s_lshr_b32 s25, s3, 2")
    a(f"s_mul_i32 s25, s25, {HB}", "head byte offset")
    a("s_lshl3_add_u32 s26, s3, s24")
    a(f"s_mul_i32 s26, s26, {ST}", "output byte offset of this wave")
    a(f"v_lshlrev_b32 v{vDma}, 4, v0")
    a("s_cmp_lt_u32 s24, 4")
    a("s_cselect_b32 s28, 8, 0")
    a("s_add_u32 s28, s28, s24")
    a(f"s_mul_i32 s27, s28, {ST}", "byte offset of this wave's next super tile to load")
    a(f"s_mov_b32 s18, {HB}")
    a("s_mov_b32 s19, 0x00020000")
    a(f"s_mov_b32 s46, {HB}")
    a("s_mov_b32 s47, 0x00020000")
    a(f"s_movk_i32 s22, {ST}")
    a("s_mov_b32 s23, 0x00020000")
    def dma():
        a("s_add_u32 m0, s27, s18")
        a("s_mov_b64 exec, 0xffff")
        a(f"buffer_load_dwordx4 v{vDma}, s[44:47], s27 offen offset:2048 lds")
        a(ALL)
        a(f"buffer_load_dwordx4 v{vDma}, s[44:47], s27 offen lds")
        a(f"buffer_load_dwordx4 v{vDma}, s[44:47], s27 offen offset:1024 lds")
        a("s_mov_b32 m0, s27")
        a("s_nop 0")
        a(f"buffer_load_dwordx4 v{vGK}, s[16:19], s27 offen lds")
        a("s_add_u32 m0, s27, 988")
        a("s_nop 0")
        a(f"buffer_load_dwordx4 v{vGK}, s[16:19], s27 offen offset:36 lds")
        a("s_add_u32 m0, s27, 2016")
        a("s_nop 0")
        a(f"buffer_load_dword v{vGX}, s[16:19], s27 offen offset:32 lds")
        a("s_mov_b32 m0, s28")
        a(f"s_add_u32 s27, s27, {8*ST}")
    def tr_read():
        for u in range(2):
            for j in range(2):
                for p in range(2):
                    a(f"ds_read_b64_tr_b16 {vr(TR+8*u+4*j+2*p,2)}, v{vR} offset:{40*u + (16*j+4*p)*72}")
    def tr_write():
        a(ROWS)
        for j in range(2): a(f"ds_write_b128 v{vWE}, {vr(TR+4*j,4)} offset:{576*j}")
        a("s_mov_b64 exec, s[14:15]")
        for j in range(2): a(f"ds_write_b128 v{vWO}, {vr(TR+8+4*j,4)} offset:{576*j}")
        a(ALL)
    if not opt.tlb: a("s_waitcnt lgkmcnt(0)")
    a("s_add_u32 s16, s6, s25")
    a("s_addc_u32 s17, s7, 0")
    a("s_add_u32 s44, s8, s25")
    a("s_addc_u32 s45, s9, 0")
    a("s_add_u32 s20, s10, s26")
    a("s_addc_u32 s21, s11, 0")
    a(f"v_cmp_eq_u32 vcc, 20, v{t0}")
    a(f"v_mov_b32 v{QX}, 0"); a(f"v_mov_b32 v{QX+1}, 0")
    a(f"v_mov_b32 v{t4}, 0x3f803f80")
    a("s_mov_b32 s12, 0x0003ffff"); a("s_mov_b32 s13, 0x0003ffff")
    a("s_mov_b32 s14, 0x00c0ffff"); a("s_mov_b32 s15, 0x00c0ffff")
    a(f"v_cndmask_b32 v40, 0, v{t4}, vcc")
    a(f"v_cndmask_b32 v41, 0, v{t4}, vcc")
    for r in list(range(42, 56, 2)) + list(range(168, 176, 2)): a(f"v_pk_mov_b32 {vr(r,2)}, v[40:41], v[40:41]")
    a(f"v_mfma_f32_32x32x4_2b_bf16 {vr(120,32)}, {vr(QX,2)}, {vr(QX,2)}, 0", "zeroes the accumulators")
    a(f"v_and_b32 v{t3}, 3, v0")
    a(f"v_bfe_u32 v{t4}, v0, 3, 1")
    a(f"v_lshl_add_u32 v{t3}, v{t4}, 2, v{t3}")
    a(f"v_and_b32 v{t4}, 4, v0")
    a(f"v_lshlrev_b32 v{t4}, 1, v{t4}")
    a(f"v_sub_u32 v{t3}, v{t3}, v{t4}")
    a(f"v_add_u32 v{t3}, 8, v{t3}")
    a(f"v_cmp_lt_u32 vcc, 15, v{t0}")
    a(f"v_and_b32 v{t4}, 1, v0")
    a(f"v_add_u32 v{t4}, 16, v{t4}")
    a(f"v_cndmask_b32 v{t3}, v{t3}, v{t4}, vcc")
    a(f"v_mul_u32_u24 v{t5}, 18, v{t1}")
    a("s_cmp_lt_u32 s24, 4")
    a(f"s_cselect_b32 s28, 0, {4*ST}")
    a("s_sub_u32 s29, s27, s28")
    a("s_add_u32 s29, s29, s18", "first V super tile this wave transposes")
    for sub, dst, extra in ((4, vWE, 0), (2, vWO, 72)):
        a(f"v_subrev_u32 v{t4}, {sub}, v{t3}")
        a(f"v_add_u32 v{dst}, 18, v{t4}")
        a(f"v_min_u32 v{t4}, v{t4}, v{dst}")
        a(f"v_add_u32 v{t4}, v{t4}, v{t5}")
        if extra: a(f"v_add_u32 v{t4}, {extra}, v{t4}")
        else: a(f"v_lshl_add_u32 v{vV}, v{t4}, 4, s18")
        a(f"v_lshl_add_u32 v{dst}, v{t4}, 4, s29")
    a(f"v_bfe_u32 v{t3}, v0, 2, 2")
    a(f"v_lshl_add_u32 v{t3}, v{t1}, 3, v{t3}")
    a(f"v_mul_u32_u24 v{t3}, 72, v{t3}")
    a(f"v_and_b32 v{t4}, 1, v0")
    a(f"v_lshlrev_b32 v{t4}, 4, v{t4}")
    a(f"v_sub_u32 v{t3}, v{t3}, v{t4}")
    a(f"v_and_b32 v{t4}, 2, v0")
    a(f"v_lshl_add_u32 v{t3}, v{t4}, 2, v{t3}")
    a(f"v_and_b32 v{t4}, 16, v0")
    a(f"v_add3_u32 v{t3}, v{t4}, v{t3}, s29")
    a(f"v_add_u32 v{t4}, 16, v{t3}")
    a(f"v_subrev_u32 v{t3}, 8, v{t3}")
    a("s_mov_b32 vcc_lo, 0x22220000"); a("s_mov_b32 vcc_hi, 0x22220000")
    a(f"v_cndmask_b32 v{t3}, v{t4}, v{t3}, vcc")
    a(f"v_mov_b32 v{t4}, {OOR:#x}")
    a("s_mov_b32 vcc_lo, 0xcccc0000"); a("s_mov_b32 vcc_hi, 0xcccc0000")
    a(f"v_cndmask_b32 v{vR}, v{t3}, v{t4}, vcc")
    for r in (KX, KX0): a(f"v_mov_b32 v{r+1}, 0x3f80")
    a(f"v_mov_b32 v{QX+1}, {f2u(opt.xs) >> 16:#x}", "constant softmax shift")
    a(f"v_mov_b32 v{vIdx}, 0xdddd", "sparse index: elements 1 and 3 of every group of four")
    a(f"v_mov_b32 v{vK}, v{vDma}")
    a(f"v_mov_b32 v{vInc}, {NB*ST}")
    a(f"v_mov_b32 v{vInc+1}, {NB*ST}")
    a(f"v_add_u32 v{C+2}, v{vK}, v{vInc}")
    a(f"v_add_u32 v{C+3}, v{vV}, v{vInc}")
    a(f"v_add_u32 v{vSlot}, {ABASE}, v{vSlot}")
    a(f"ds_write_b64 v{vSlot}, {vr(C+2,2)}")
    a(f"v_mov_b32 v{vInc8}, {8*ST}")
    a(f"v_mov_b32 v{vInc8+1}, {8*ST}")
    a(f"v_add3_u32 v{C}, v{vWE}, v{vInc8}, s28")
    a(f"v_add3_u32 v{C+1}, v{vWO}, v{vInc8}, s28")
    a(f"v_add3_u32 v{t3}, v{vR}, v{vInc8}, s28")
    a(f"ds_write_b64 v{vSlot}, {vr(C,2)} offset:4096")
    a(f"ds_write_b32 v{vSlot}, v{t3} offset:8192")
    a(f"s_mul_i32 s28, s24, {ST}")
    a(f"v_mul_u32_u24 v{vStA}, 36, v{t0}")
    a(f"v_lshlrev_b32 v{t4}, 4, v{t1}")
    a(f"v_sub_u32 v{vStA}, v{vStA}, v{t4}")
    a(f"v_add3_u32 v{vStA}, v{vStA}, 16, s28")
    a(f"v_add_u32 v{vStB}, 1152, v{vStA}")
    a(f"v_add_u32 v{vStR}, s28, v{vDma}")
    a(f"s_mov_b32 s30, {CSCALE:#x}", "log2(e)/sqrt(18)"); a(f"s_mov_b32 s31, {CSCALE:#x}")
    a("s_mov_b32 s28, 0")
    a("s_mov_b32 m0, 0")
    a("s_mov_b32 s29, 1", "super tile counter")
    a("s_mov_b32 s32, 0x8088", "barrier schedule")
    a("s_mov_b32 s33, 0x80008088")
    a("s_mov_b32 s38, 0x8000ddd0", "iterations with extra work, role A")
    a("s_mov_b32 s39, 0x8000dddc", "role B")
    a("s_mov_b32 s34, 0xffff0000")
    a("s_mov_b32 s35, 0x7b800000", "2^120")
    a("s_mov_b64 vcc, 0")
    a("s_cmp_ge_u32 s24, 4", "SCC = role B (kept until the loops)")
    if opt.amp: stamp(9)
    a("s_waitcnt vmcnt(6)")
    a("s_barrier", "V super tiles 0..3 are in: role B transposes them and starts its Q loads")
    if opt.amp: stamp(10)
    a("s_cbranch_scc0 L_noq")
    tr_read()
    qloads()
    a("s_waitcnt lgkmcnt(0)")
    tr_write()
    for r in (vR, vWE, vWO): a(f"v_add_u32 v{r}, {4*ST}, v{r}")
    a.lab("L_noq")
    a.raw("    .p2align 3")
    a("s_waitcnt vmcnt(3) lgkmcnt(0)")
    stamp(2)
    a("s_barrier", "K super tiles 0..3 are in, V super tiles 0..3 are transposed")
    bump = f"ds_add_rtn_u64 {vr(vK,2)}, v{vSlot}, {vr(vInc,2)}"
    def reads(u): return rd_k(u) + [ROWS] + rd_v('O', u-1) + rd_v('E', u) + [ALL]
    late = reads(1)
    AL['on'] = True
    for f in rd_k(0) + [ROWS, "s_setprio 3"] + rd_v('E', 0) + [ALL]: a(f)
    stamp(3)
    W = T + 10
    QA, QB = Qr['A'], Qr['B']
    def shl(j): a(f"v_lshlrev_b32 v{W+2*j}, 16, v{T+j}")
    def msk(j): a(f"v_and_b32 v{W+2*j+1}, s34, v{T+j}")
    def mul(j): a(f"v_pk_mul_f32 {vr(W+2*j,2)}, {vr(W+2*j,2)}, s[30:31]")
    def cvt(j, d): a(f"v_cvt_pk_bf16_f32 v{d}, v{W+2*j}, v{W+2*j+1}")
    a("s_waitcnt vmcnt(0)")
    stamp(4)
    shl(8); msk(8); mul(8); cvt(8, QX)
    shl(0)
    lgkm(3)
    a(mf_x('E'))
    a(f"v_and_b32_e64 v{W+1}, s34, v{T}")
    for j in range(1, 8): shl(j); msk(j)
    for j in range(8): mul(j)
    for j in range(4): cvt(j, QA + j)
    for j in range(4): cvt(4 + j, QB + j)
    for j in range(4): a(f"v_permlane32_swap_b32 v{QA+j}, v{QB+j}")
    a("s_waitcnt lgkmcnt(0)")
    a("s_nop 0")
    a(mf_q('A', 'E'))
    for f in late[:3]: a(f)
    a(mf_q('B', 'E'))
    for f in late[3:]: a(f)
    a("s_cbranch_scc1 L_startB")
    a("s_setprio 2")
    cut = opt.cut
    pos0 = int(opt.pos.split(',')[0])
    assert cut > pos0
    a.lab("L_first")
    stamp(5)
    for (i, k_, s_) in phase_list('E', opt):
        if not (i == pos0 and k_ == 'm'): a(s_)
        if 'smfmac' in s_ and i > 25: a("s_waitcnt lgkmcnt(0)")
    for (i, k_, s_) in phase_list('O', opt):
        if i < cut: a(s_)
    AL['on'] = False
    pE, pO = phase_list('E', opt), phase_list('O', opt)
    seg = [s_ for (i, k_, s_) in pO if i >= cut] + [s_ for (i, k_, s_) in pE] + [s_ for (i, k_, s_) in pO if i < cut]
    for s_ in seg: a(s_)
    a("s_cbranch_scc0 L_topA2")
    a("s_branch L_topB2")
    a.lab("L_startB")
    a("s_setprio 1")
    dma()
    a("s_cmp_ge_u32 s24, 4")
    a("s_branch L_first")
    def back(n):
        a("s_cmp_ge_u32 s24, 4")
        a(f"s_cbranch_scc0 L_backA{n}")
        a(f"s_branch L_backB{n}")
    a.lab("L_evR")
    a("s_waitcnt vmcnt(0)")
    tr_read()
    back(2)
    a.lab("L_evW")
    a("s_cmp_eq_u32 s29, 31")
    a("s_cbranch_scc1 L_ev31")
    tr_write()
    a(f"ds_add_rtn_u64 {vr(vWE,2)}, v{vSlot}, {vr(vInc8,2)} offset:4096")
    a(f"ds_add_rtn_u32 v{vR}, v{vSlot}, v{vInc8} offset:8192")
    back(3)
    a.lab("L_evD")
    dma()
    back(0)
    a.lab("L_ev31")
    a("s_mov_b64 vcc, 1", "last segment: it runs on into the tail")
    for f in [ROWS] + rd_v('T', 3) + [ALL]: a(f)
    back(3)
    pads = {'A': [int(x) for x in opt.padA.split(',')], 'B': [int(x) for x in opt.padB.split(',')]}
    for role in 'AB':
        a.raw("    .p2align 6")
        pad = pads[role][0]
        if pad: a.raw(f"    .fill {pad}, 4, 0xbf800000    ; never executed: sets the loop's fetch alignment")
        for c in range(NB):
            last = c == NB - 1
            a.lab(f"L_top{role}{c}")
            if role == 'A': a("s_setprio 0")
            a("s_add_u32 s29, s29, 1")
            if opt.itst: a("s_memtime s[48:49]")
            for f in reads(c if c else NB): a(f)
            if c == 0:
                a(bump)
                a(f"s_addk_i32 s28, {NB*ST}")
                a("s_mov_b32 m0, s28")
            if c != 1:
                a(f"s_bitcmp1_b32 {'s38' if role == 'A' else 's39'}, s29")
                a("s_cbranch_scc1 " + ("L_evW" if last else ("L_evD" if c == 0 else "L_evR")))
            a.lab(f"L_back{role}{c}")
            if last: a(f"s_bitcmp1_b32 {'s33' if role == 'A' else 's32'}, s29", "SCC: a barrier follows this " + ("segment" if role == 'A' else "burst"))
            if c and len(pads[role]) > c:
                for k in range(pads[role][c]): a("s_waitcnt lgkmcnt(4)")
            a("s_waitcnt lgkmcnt(0)")
            if opt.itst:
                a("s_mov_b32 m0, s29"); a("s_nop 0"); a("s_movreld_b32 s62, s48"); a("s_mov_b32 m0, s28"); a("s_nop 0"); a("s_nop 0")
            if role == 'B' and last:
                a(f"s_cbranch_scc0 L_segB{c}")
                a("s_barrier")
            a.lab(f"L_seg{role}{c}")
            nm = 0
            for s_ in seg:
                a(s_)
                if role == 'A' and ('smfmac' in s_ or 'x16_bf16' in s_):
                    nm += 1
                    if nm == opt.prn: a("s_setprio 2")
        if role == 'A':
            a("s_cbranch_scc0 L_topA0")
            a("s_cbranch_vccnz L_tail")
            a("s_barrier")
            a("s_branch L_topA0")
        else:
            a("s_cbranch_vccz L_topB0")
    R = Sr['E']
    PK = {'A': Sr['E'] + 8, 'B': Sr['E'] + 14}
    OB = Sr['E'] + 20
    def finish(t, fill=None):
        O = Or[t]
        rc = R + 2 if t == 'A' else R + 4
        a(f"v_pk_mov_b32 {vr(rc,2)}, {vr(O+8,2)}, {vr(O+8,2)} op_sel:[0,0]", "denominator sits in the upper half wave")
        for f in (fill or ["s_nop 1"]): a(f)
        a(f"v_permlane32_swap_b32 v{rc}, v{rc+1}")
        a(f"v_rcp_f32 v{rc}, v{rc+1}")
    def finish2(t):
        O = Or[t]
        rc = R + 2 if t == 'A' else R + 4
        for j in (8, 0, 2, 4, 6):
            a(f"v_pk_mul_f32 {vr(O+j,2)}, {vr(O+j,2)}, {vr(rc,2)} op_sel_hi:[1,0]")
        st = vStA if t == 'A' else vStB
        for j in (4, 0, 1, 2, 3):
            a(f"v_cvt_pk_bf16_f32 v{PK[t]+j}, v{O+2*j}, v{O+2*j+1}")
        a(f"ds_write_b32 v{st}, v{PK[t]+4} offset:16", "upper half's word is overwritten by the next write")
        a(f"ds_write2_b32 v{st}, v{PK[t]}, v{PK[t]+1} offset0:0 offset1:1")
        a(f"ds_write2_b32 v{st}, v{PK[t]+2}, v{PK[t]+3} offset0:2 offset1:3")
        if t == 'A':
            a(f"ds_read_b128 {vr(OB,4)}, v{vStR}")
        else:
            a(f"ds_read_b128 {vr(OB+4,4)}, v{vStR} offset:1024")
            a(f"ds_read_b128 {vr(OB+8,4)}, v{vStR} offset:2048")
    def store(k): return f"buffer_store_dwordx4 {vr(OB+4*k,4)}, v{vDma}, s[20:23], 0 offen offset:{1024*k} sc1"
    a.lab("L_tail")
    if opt.tail == 0:
        tm = {10: mf_pv('A', 'O', 0, 'T'), 18: mf_pv('A', 'O', 1, 'T'), 26: mf_pv('B', 'O', 0, 'T')}
        for i in range(cut, 29):
            if i in tm: a(tm[i])
            a(ex('O', i))
        finish('A', [ex('O', 29), ex('O', 30)])
        a(ex('O', 31).replace("v_exp_f32", "v_exp_f32_e64"))
        stamp(6)
        n0 = len(a.l)
        finish2('A')
        a.l.insert(n0 + 5, "    " + mf_pv('B', 'O', 1, 'T'))
        a("s_nop 0")
    else:
        tm = {10: mf_pv('A', 'O', 0, 'T'), 18: mf_pv('A', 'O', 1, 'T')}
        for i in range(cut, 28):
            if i in tm: a(tm[i])
            if i == 18: a("s_nop 1")
            a(ex('O', i))
        finish('A', [ex('O', 28), ex('O', 29)])
        a(ex('O', 30).replace("v_exp_f32", "v_exp_f32_e64"))
        n0 = len(a.l)
        finish2('A')
        a.l.insert(n0 + 10, "    " + mf_pv('B', 'O', 0, 'T'))
        a.l.insert(n0 + 13, "    " + ex('O', 31).replace("v_exp_f32", "v_exp_f32_e64"))
        stamp(6)
        a(mf_pv('B', 'O', 1, 'T'))
        a("s_nop 9")
    lgkm(0)
    a(store(0))
    finish('B')
    a("s_nop 0")
    finish2('B')
    lgkm(1)
    a(store(1))
    lgkm(0)
    a(store(2))
    stamp(7)
    a("s_setprio 0")
    for t in 'AB':
        for j in range(5): a(f"v_dot2c_f32_bf16 v{R+3 if t == 'A' else R+5}, 0, v{PK[t]+j}")
    a(f"v_cmp_nge_f32 s[36:37], v{R+3}, 1.0")
    a(f"v_cmp_nle_f32 vcc, v{R+3}, s35")
    a("s_or_b64 s[36:37], s[36:37], vcc")
    a(f"v_cmp_nge_f32 s[38:39], v{R+5}, 1.0")
    a(f"v_cmp_nle_f32 vcc, v{R+5}, s35")
    a("s_or_b64 s[36:37], s[36:37], s[38:39]")
    a("s_or_b64 s[36:37], s[36:37], vcc")
    a("s_cbranch_scc1 L_slow")
    a.lab("L_done")
    if opt.amp:
        a("s_waitcnt vmcnt(0)")
        stamp(8)
        a("s_memrealtime s[42:43]")
        a("s_waitcnt lgkmcnt(0)")
        a(f"s_sub_u32 s50, s{60+2*opt.ampb}, s{60+2*opt.ampa}")
        a(f"s_max_u32 s50, s50, {opt.ampbase}")
        a(f"s_sub_u32 s50, s50, {opt.ampbase}")
        a("s_load_dwordx2 s[54:55], s[0:1], 32")
        a(f"s_cmp_lg_u32 s24, {3 if opt.ampr == 'A' else 7}")
        a("s_cbranch_scc1 L_end")
        a("s_add_u32 s51, s50, 0x1000000")
        a("s_mov_b64 exec, 1")
        a("v_mov_b32 v16, s51"); a("v_mov_b32 v17, 0")
        a("s_waitcnt lgkmcnt(0)")
        a("global_atomic_add v18, v17, v16, s[54:55] sc0 sc1")
        a("s_waitcnt vmcnt(0)")
        a("v_readfirstlane_b32 s51, v18")
        a("s_nop 3")
        a("s_add_u32 s50, s50, s51")
        a("s_and_b32 s50, s50, 0xffffff")
        a(f"s_mul_i32 s50, s50, {opt.amp}")
        a("s_lshr_b32 s50, s50, 8")
        a("s_lshr_b32 s51, s51, 24")
        a("s_cmp_lg_u32 s51, 255")
        a("s_cselect_b32 s50, 0, s50")
        a("s_min_u32 s50, s50, 20000")
        a.lab("L_spin")
        a("s_sleep 2")
        a("s_memrealtime s[52:53]")
        a("s_waitcnt lgkmcnt(0)")
        a("s_sub_u32 s51, s52, s42")
        a("s_cmp_lt_u32 s51, s50")
        a("s_cbranch_scc1 L_spin")
    if opt.itst:
        a("s_load_dwordx2 s[40:41], s[0:1], 40")
        for i in range(32): a(f"v_writelane_b32 v16, s{62+i}, {i}")
        a("s_lshl_b32 s50, s2, 3"); a("s_add_u32 s50, s50, s24"); a("s_lshl_b32 s50, s50, 8")
        a(f"v_lshrrev_b32 v1, 2, v{vDma}")
        a("v_add_u32 v1, s50, v1")
        a("s_waitcnt lgkmcnt(0)")
        a("global_store_dword v1, v16, s[40:41]")
    if opt.stamp:
        a("s_mov_b64 exec, 1")
        a("s_waitcnt vmcnt(0)")
        stamp(8)
        a("s_memrealtime s[58:59]")
        a("s_load_dwordx2 s[40:41], s[0:1], 40")
        a("s_getreg_b32 s42, hwreg(HW_REG_HW_ID)")
        a("s_getreg_b32 s43, hwreg(HW_REG_XCC_ID)")
        a("s_waitcnt lgkmcnt(0)")
        for i, sr in enumerate((56, 58, 42, 43, 60, 62, 64, 66, 68, 70, 72, 74, 76)):
            a(f"v_mov_b32 v{16+i}, s{sr}")
        a("s_lshl_b32 s50, s2, 3"); a("s_add_u32 s50, s50, s24"); a("s_lshl_b32 s50, s50, 6")
        a("v_mov_b32 v1, s50")
        for i in range(4): a(f"global_store_dwordx4 v1, v[{16+4*i}:{19+4*i}], s[40:41] offset:{16*i}")
    a.lab("L_end")
    a("s_endpgm")
    a.lab("L_slow")
    a("s_waitcnt vmcnt(0)")
    mA, mB = 0, vSlot
    def scores():
        a(f"buffer_load_dword v{KX}, v{vGX}, s[16:19], s29 offen offset:32")
        a(f"buffer_load_dwordx4 {vr(Kr['E'],4)}, v{vGK}, s[16:19], s29 offen")
        a(f"buffer_load_dwordx4 {vr(Kr['O'],4)}, v{vGK}, s[16:19], s29 offen offset:36")
        a("s_waitcnt vmcnt(0) lgkmcnt(0)")
        a(mf_x('E')); a(mf_x('O'))
        a("s_nop 15"); a("s_nop 3")
        for par in 'EO':
            for t in 'AB': a(mf_q(t, par))
        a("s_nop 15")
    def step(lab):
        a(f"s_add_u32 s29, s29, {ST}")
        a("s_cmp_lg_u32 s29, s18")
        a(f"s_cbranch_scc1 {lab}")
    a("s_mov_b32 s29, 0")
    a(f"v_mov_b32 v{mA}, 0xff800000"); a(f"v_mov_b32 v{mB}, 0xff800000")
    a.lab("L_max")
    scores()
    for par in 'EO':
        for t, m in (('A', mA), ('B', mB)):
            s = Sr[par] + (16 if t == 'B' else 0)
            for j in range(0, 16, 2): a(f"v_max3_f32 v{m}, v{m}, v{s+j}, v{s+j+1}")
    step("L_max")
    for m in (mA, mB):
        a(f"v_mov_b32 v{vT2}, v{m}")
        a("s_nop 1")
        a(f"v_permlane32_swap_b32 v{vT2}, v{m}")
        a("s_nop 1")
        a(f"v_max_f32 v{m}, v{m}, v{vT2}")
    a(f"v_subrev_u32 v{vV}, {(32-NB)*ST}, v{vV}")
    a("s_mov_b32 s29, 0")
    for r in range(120, 152): a(f"v_mov_b32 v{r}, 0")
    a.lab("L_acc")
    for f in [ROWS] + rd_v('E', 0) + rd_v('O', 0) + [ALL]: a(f)
    scores()
    for par in 'EO':
        for t, m in (('A', mA), ('B', mB)):
            s = Sr[par] + (16 if t == 'B' else 0)
            for j in range(16): a(f"v_sub_f32 v{s+j}, v{s+j}, v{m}")
            for j in range(16): a(f"v_exp_f32 v{s+j}, v{s+j}")
    a(f"v_add_u32 v{vV}, {ST}, v{vV}")
    a("s_nop 0")
    for par in 'EO':
        for t in 'AB':
            for j in range(2): a(mf_pv(t, par, j))
    step("L_acc")
    a("s_nop 15")
    for t in 'AB':
        finish(t); a("s_nop 0"); finish2(t)
    a("s_waitcnt lgkmcnt(0)")
    for k in range(3): a(store(k))
    a("s_branch L_done")
    a.raw(f""".section .rodata,"a"
.p2align 6
.amdhsa_kernel {NAME}_kernel
  .amdhsa_next_free_vgpr {NV}
  .amdhsa_next_free_sgpr {100 if (opt.stamp or opt.amp or opt.itst) else 48}
  .amdhsa_accum_offset {NV}
  .amdhsa_group_segment_fixed_size 0
  .amdhsa_kernarg_size 48
  .amdhsa_user_sgpr_count 2
  .amdhsa_user_sgpr_kernarg_segment_ptr 1
  .amdhsa_system_sgpr_workgroup_id_x 1
.end_amdhsa_kernel""")
    return a.text()

def parse(argv):
    p = argparse.ArgumentParser()
    p.add_argument('-o', default=f"cdna_kernels/{NAME}.s")
    p.add_argument('--cut', type=int, default=4)
    p.add_argument('--pos', default='2,5,15,18,21,27,24')
    p.add_argument('--fill', type=int, default=0)
    p.add_argument('--prn', type=int, default=1)
    p.add_argument('--tail', type=int, default=1)
    p.add_argument('--dpf', default='')
    p.add_argument('--tlb', type=int, default=0)
    p.add_argument('--pf', type=int, default=1)
    p.add_argument('--xs', type=float, default=35)
    p.add_argument('--padA', default='0')
    p.add_argument('--padB', default='1')
    p.add_argument('--stamp', type=int, default=0)
    p.add_argument('--itst', type=int, default=0)
    p.add_argument('--amp', type=int, default=0)
    p.add_argument('--ampt', type=int, default=0)
    p.add_argument('--ampa', type=int, default=0)
    p.add_argument('--ampb', type=int, default=8)
    p.add_argument('--ampr', default='')
    p.add_argument('--ampbase', type=int, default=44000)
    return p.parse_args(argv)

if __name__ == '__main__':
    opt = parse(sys.argv[1:])
    open(opt.o, 'w').write(gen(opt))
```

```python
import sys, struct, math, argparse

NAME = "standalone__fused_io_aware_attn__prompt"
HB = 73728
ST = 2304
VBASE = HB
ABASE = 2 * HB
LDS = ABASE + 3 * 4096
OOR = 0x28000
NB = 4

def f2u(x): return struct.unpack('<I', struct.pack('<f', x))[0]
CSCALE = f2u(math.log2(math.e) / math.sqrt(18.0))

vSlot, vK, vV, vInc, vIdx, vQo, vDma, vT2 = 1, 2, 3, 4, 6, 7, 14, 15
KX, QX, KX0 = 8, 10, 12
Kr = {'E': 16, 'O': 20}
Qr = {'A': 24, 'B': 28}
K0 = {'E': 32, 'O': 36}
Vr = {('E', 0): 40, ('E', 1): 44, ('O', 0): 48, ('O', 1): 52, ('T', 0): 168, ('T', 1): 172}
Sr = {'E': 56, 'O': 88}
Or = {'A': 120, 'B': 136}
TR = 152
vWE, vWO, vInc8, vR, vStA, vStB, vStR, vGK, vGX = 176, 177, 178, 180, 181, 182, 183, 184, 185
vQ2 = 186
NV = 188
AL = dict(on=False)
def kx(): return KX0 if AL['on'] else KX
def kr(par): return K0[par] if AL['on'] else Kr[par]
def vv(par, j): return Vr[('T', j)] if (AL['on'] and par == 'E') else Vr[(par, j)]
def vr(b, n): return f"v[{b}:{b+n-1}]"

class Asm:
    def __init__(self): self.l = []
    def __call__(self, s, c=None): self.l.append("    " + s + (f"    ; {c}" if c else ""))
    def lab(self, s): self.l.append(s + ":")
    def raw(self, s): self.l.append(s)
    def note(self, s): self.l.append("    ; " + s)
    def text(self): return "\n".join(x.rstrip() for x in self.l) + "\n"

def mf_x(par):
    return f"v_mfma_f32_32x32x4_2b_bf16 {vr(Sr[par],32)}, {vr(kx(),2)}, {vr(QX,2)}, 0 cbsz:1 abid:{0 if par == 'E' else 1}"
def mf_q(t, par):
    s = Sr[par] + (16 if t == 'B' else 0)
    return f"v_mfma_f32_32x32x16_bf16 {vr(s,16)}, {vr(kr(par),4)}, {vr(Qr[t],4)}, {vr(s,16)}"
def mf_pv(t, par, j, vs=None):
    s = Sr[par] + (16 if t == 'B' else 0) + 8 * j
    return f"v_smfmac_f32_32x32x32_bf16 {vr(Or[t],16)}, {vr(vv(vs or par,j),4)}, {vr(s,8)}, v{vIdx}"
def ex(par, i): return f"v_exp_f32 v{Sr[par]+i}, v{Sr[par]+i}"
def rd_k(u):
    return [f"ds_read_addtid_b32 v{kx()} offset:{u*ST+2048}",
            f"ds_read_b128 {vr(kr('E'),4)}, v{vK} offset:{u*ST}", f"ds_read_b128 {vr(kr('O'),4)}, v{vK} offset:{u*ST+1024}"]
def rd_v(par, u):
    return [f"ds_read_b128 {vr(vv(par,j),4)}, v{vV} offset:{u*ST + (0 if par == 'E' else 1152) + 576*j}" for j in range(2)]
ROWS = "s_mov_b64 exec, s[12:13]"
ALL = "s_mov_b64 exec, -1"

def phase_list(par, opt):
    oth = 'O' if par == 'E' else 'E'
    pos = [int(x) for x in opt.pos.split(',')]
    mf = {pos[0]: mf_pv('B', oth, 1), pos[1]: mf_x(oth), pos[2]: mf_pv('A', par, 0), pos[3]: mf_pv('A', par, 1),
          pos[4]: mf_q('A', oth), pos[5]: mf_pv('B', par, 0), pos[6]: mf_q('B', oth)}
    out = []
    for i in range(32):
        if i in mf: out.append((i, 'm', mf[i]))
        if opt.fill and i == pos[3]: out.append((i, 'n', f"s_nop {opt.fill-1}"))
        out.append((i, 'e', ex(par, i)))
    return out

def gen(opt):
    a = Asm()
    def stamp(i):
        if opt.stamp and (opt.stamp != 3 or i in (0, 7, 8)): a(f"s_memtime s[{60+2*i}:{61+2*i}]")
        if opt.amp and i in (opt.ampa, opt.ampb): a(f"{'s_memrealtime' if opt.ampt else 's_memtime'} s[{60+2*i}:{61+2*i}]")
    smem = opt.stamp == 1 or (opt.amp and not (opt.ampa in (0, 7) and opt.ampb in (7, 8)))
    def lgkm(n): a(f"s_waitcnt lgkmcnt({0 if smem else n})")
    a.raw(f"""; Fused attention forward, B=2 H=32 S=2048 D=18, bf16 in/out (emitted by my own generator script).
; @launch grid=(256,1,1) block=(512,1,1) lds={LDS}
.amdgcn_target "amdgcn-amd-amdhsa--gfx950"
.text
.globl {NAME}_kernel
.p2align 8
.type {NAME}_kernel,@function
{NAME}_kernel:""")
    stamp(0)
    if opt.stamp: a("s_memrealtime s[56:57]")
    a("s_load_dwordx8 s[4:11], s[0:1], 0", "q, k, v, out")
    if opt.pf:
        a("s_getpc_b64 s[36:37]")
        a("v_mad_u64_u32 v[16:17], vcc, v0, 14, s[36:37]")
        a(f"global_load_ubyte v{vT2}, v[16:17], off offset:116", "pulls this kernel's own code lines into L2")
    a("v_readfirstlane_b32 s24, v0", "64 * wave")
    a("s_and_b32 s3, s2, 7")
    a("s_lshr_b32 s25, s2, 3")
    a("s_lshl_b32 s3, s3, 5")
    a("s_add_u32 s3, s3, s25", "4 * head + query block")
    a("s_cmpk_ge_u32 s2, 256")
    a("s_cbranch_scc1 L_end")
    if not opt.tlb:
        a("s_cmpk_ge_u32 s24, 256")
        a("s_cbranch_scc1 L_setup", "role B (waves 4..7) starts its loads after role A's")
    t0, t1 = Sr['E'] + 8, Sr['E'] + 9
    C = Sr['E']
    t3, t4, t5 = C + 4, C + 5, C + 6
    T = Sr['O']
    def qloads():
        a(f"global_load_dword v{T+8}, v{vQo}, s[4:5] offset:32")
        if opt.qd:
            a(f"global_load_dwordx4 {vr(T,4)}, v{vQ2}, s[4:5]")
            a(f"global_load_dwordx4 {vr(T+4,4)}, v{vQ2}, s[4:5] offset:1152")
        else:
            a(f"global_load_dwordx4 {vr(T,4)}, v{vQo}, s[4:5]")
            a(f"global_load_dwordx4 {vr(T+4,4)}, v{vQo}, s[4:5] offset:16")
    def qaddr2():
        a(f"v_mul_u32_u24 v{vQ2}, 1136, v{t1}")
        a(f"v_sub_u32 v{vQ2}, v{vQo}, v{vQ2}", "dims 8h..8h+7 of query l%32")
    def qaddr():
        a(f"v_lshl_add_u32 v{vQo}, s3, 9, v0")
        a(f"v_mul_u32_u24 v{vQo}, 36, v{vQo}", "one Q row per lane")
    def gaddr():
        a(f"v_and_b32 v{t0}, 31, v0", "MFMA row m = key pair")
        a(f"v_bfe_u32 v{t1}, v0, 5, 1", "half wave h")
        a(f"v_mul_u32_u24 v{vGK}, 72, v{t0}")
        a(f"v_mad_u32_u24 v{vGX}, v{t1}, 36, v{vGK}", "dims 16,17 of the even (h=0) / odd (h=1) key, less 32")
        a(f"v_lshl_add_u32 v{vGK}, v{t1}, 4, v{vGK}", "dims 8h..8h+7 of the even key")
    if opt.dpf:
        a.note("inside the first instruction cache lines: one word per 36-byte row starts every line of the first loads")
        qaddr()
        a("s_andn2_b32 s25, s3, 3")
        a(f"v_lshl_add_u32 v{t4}, s25, 9, v0")
        a(f"v_mul_u32_u24 v{t4}, 36, v{t4}")
        a("s_waitcnt lgkmcnt(0)")
        stamp(1)
        for ch in opt.dpf:
            if ch == 'v': a(f"global_load_dword v{TR}, v{t4}, s[8:9]")
            if ch == 'k': a(f"global_load_dword v{TR+1}, v{t4}, s[6:7]")
            if ch == 'q': a(f"global_load_dword v{TR+2}, v{vQo}, s[4:5]")
    a("s_lshr_b32 s25, s3, 2")
    a(f"s_mul_i32 s25, s25, {HB}")
    a("s_mul_i32 s26, s24, 20")
    a("s_add_u32 s26, s26, s25")
    a(f"v_lshl_add_u32 v{t3}, v0, 4, s26")
    a("s_mul_i32 s26, s24, 36", "super tile `wave` of V and of K")
    a(f"s_add_u32 m0, s26, {VBASE}")
    if opt.tlb: a("s_cmpk_ge_u32 s24, 256")
    if opt.dpf: a("s_nop 0")
    else:
        a("s_waitcnt lgkmcnt(0)")
        stamp(1)
    if opt.tlb:
        if opt.tlb & 1: a("s_load_dword s40, s[6:7], s25", "starts the address translation of K early")
        if opt.tlb & 2: a("s_load_dword s41, s[4:5], s25", "and of Q")
        a("s_cbranch_scc1 L_setup", "role B (waves 4..7) starts its loads after role A's")
    a(f"global_load_lds_dwordx4 v{t3}, s[8:9]")
    a(f"global_load_lds_dwordx4 v{t3}, s[8:9] offset:1024")
    a("s_mov_b64 exec, 0xffff")
    a(f"global_load_lds_dwordx4 v{t3}, s[8:9] offset:2048")
    a(ALL)
    a("s_add_u32 s25, s25, s26")
    a("s_add_u32 s42, s6, s25")
    a("s_addc_u32 s43, s7, 0")
    a("s_mov_b32 m0, s26")
    gaddr()
    a(f"global_load_lds_dwordx4 v{vGK}, s[42:43]")
    a("s_add_u32 m0, s26, 988")
    if opt.dpf: a("s_nop 0")
    else: qaddr()
    a(f"global_load_lds_dwordx4 v{vGK}, s[42:43] offset:36")
    a("s_add_u32 m0, s26, 2016")
    if opt.qd: qaddr2()
    else: a("s_nop 0")
    a(f"global_load_lds_dword v{vGX}, s[42:43] offset:32")
    qloads()
    if opt.amp: stamp(11)
    a.lab("L_setup")
    if opt.stamp:
        if opt.stamp == 3:
            for i in range(62, 74): a(f"s_mov_b32 s{i}, 0")
    qaddr(); gaddr()
    if opt.qd: qaddr2()
    a(f"v_lshlrev_b32 v{vSlot}, 3, v0")
    a("v_and_b32 v0, 63, v0")
    a("s_lshr_b32 s24, s24, 6", "wave id")
    a("s_lshr_b32 s25, s3, 2")
    a(f"s_mul_i32 s25, s25, {HB}", "head byte offset")
    a("s_lshl3_add_u32 s26, s3, s24")
    a(f"s_mul_i32 s26, s26, {ST}", "output byte offset of this wave")
    a(f"v_lshlrev_b32 v{vDma}, 4, v0")
    a("s_cmp_lt_u32 s24, 4")
    a("s_cselect_b32 s28, 8, 0")
    a("s_add_u32 s28, s28, s24")
    a(f"s_mul_i32 s27, s28, {ST}", "byte offset of this wave's next super tile to load")
    a(f"s_mov_b32 s18, {HB}")
    a("s_mov_b32 s19, 0x00020000")
    a(f"s_mov_b32 s46, {HB}")
    a("s_mov_b32 s47, 0x00020000")
    a(f"s_movk_i32 s22, {ST}")
    a("s_mov_b32 s23, 0x00020000")
    def dma():
        a("s_add_u32 m0, s27, s18")
        a("s_mov_b64 exec, 0xffff")
        a(f"buffer_load_dwordx4 v{vDma}, s[44:47], s27 offen offset:2048 lds")
        a(ALL)
        a(f"buffer_load_dwordx4 v{vDma}, s[44:47], s27 offen lds")
        a(f"buffer_load_dwordx4 v{vDma}, s[44:47], s27 offen offset:1024 lds")
        a("s_mov_b32 m0, s27")
        a("s_nop 0")
        a(f"buffer_load_dwordx4 v{vGK}, s[16:19], s27 offen lds")
        a("s_add_u32 m0, s27, 988")
        a("s_nop 0")
        a(f"buffer_load_dwordx4 v{vGK}, s[16:19], s27 offen offset:36 lds")
        a("s_add_u32 m0, s27, 2016")
        a("s_nop 0")
        a(f"buffer_load_dword v{vGX}, s[16:19], s27 offen offset:32 lds")
        a("s_mov_b32 m0, s28")
        a(f"s_add_u32 s27, s27, {8*ST}")
    def tr_read():
        for u in range(2):
            for j in range(2):
                for p in range(2):
                    a(f"ds_read_b64_tr_b16 {vr(TR+8*u+4*j+2*p,2)}, v{vR} offset:{40*u + (16*j+4*p)*72}")
    def tr_write():
        a(ROWS)
        for j in range(2): a(f"ds_write_b128 v{vWE}, {vr(TR+4*j,4)} offset:{576*j}")
        a("s_mov_b64 exec, s[14:15]")
        for j in range(2): a(f"ds_write_b128 v{vWO}, {vr(TR+8+4*j,4)} offset:{576*j}")
        a(ALL)
    if not opt.tlb: a("s_waitcnt lgkmcnt(0)")
    a("s_add_u32 s16, s6, s25")
    a("s_addc_u32 s17, s7, 0")
    a("s_add_u32 s44, s8, s25")
    a("s_addc_u32 s45, s9, 0")
    a("s_add_u32 s20, s10, s26")
    a("s_addc_u32 s21, s11, 0")
    a(f"v_cmp_eq_u32 vcc, 20, v{t0}")
    a(f"v_mov_b32 v{QX}, 0"); a(f"v_mov_b32 v{QX+1}, 0")
    a(f"v_mov_b32 v{t4}, 0x3f803f80")
    a("s_mov_b32 s12, 0x0003ffff"); a("s_mov_b32 s13, 0x0003ffff")
    a("s_mov_b32 s14, 0x00c0ffff"); a("s_mov_b32 s15, 0x00c0ffff")
    a(f"v_cndmask_b32 v40, 0, v{t4}, vcc")
    a(f"v_cndmask_b32 v41, 0, v{t4}, vcc")
    for r in list(range(42, 56, 2)) + list(range(168, 176, 2)): a(f"v_pk_mov_b32 {vr(r,2)}, v[40:41], v[40:41]")
    a(f"v_mfma_f32_32x32x4_2b_bf16 {vr(120,32)}, {vr(QX,2)}, {vr(QX,2)}, 0", "zeroes the accumulators")
    a(f"v_and_b32 v{t3}, 3, v0")
    a(f"v_bfe_u32 v{t4}, v0, 3, 1")
    a(f"v_lshl_add_u32 v{t3}, v{t4}, 2, v{t3}")
    a(f"v_and_b32 v{t4}, 4, v0")
    a(f"v_lshlrev_b32 v{t4}, 1, v{t4}")
    a(f"v_sub_u32 v{t3}, v{t3}, v{t4}")
    a(f"v_add_u32 v{t3}, 8, v{t3}")
    a(f"v_cmp_lt_u32 vcc, 15, v{t0}")
    a(f"v_and_b32 v{t4}, 1, v0")
    a(f"v_add_u32 v{t4}, 16, v{t4}")
    a(f"v_cndmask_b32 v{t3}, v{t3}, v{t4}, vcc")
    a(f"v_mul_u32_u24 v{t5}, 18, v{t1}")
    a("s_cmp_lt_u32 s24, 4")
    a(f"s_cselect_b32 s28, 0, {4*ST}")
    a("s_sub_u32 s29, s27, s28")
    a("s_add_u32 s29, s29, s18", "first V super tile this wave transposes")
    for sub, dst, extra in ((4, vWE, 0), (2, vWO, 72)):
        a(f"v_subrev_u32 v{t4}, {sub}, v{t3}")
        a(f"v_add_u32 v{dst}, 18, v{t4}")
        a(f"v_min_u32 v{t4}, v{t4}, v{dst}")
        a(f"v_add_u32 v{t4}, v{t4}, v{t5}")
        if extra: a(f"v_add_u32 v{t4}, {extra}, v{t4}")
        else: a(f"v_lshl_add_u32 v{vV}, v{t4}, 4, s18")
        a(f"v_lshl_add_u32 v{dst}, v{t4}, 4, s29")
    a(f"v_bfe_u32 v{t3}, v0, 2, 2")
    a(f"v_lshl_add_u32 v{t3}, v{t1}, 3, v{t3}")
    a(f"v_mul_u32_u24 v{t3}, 72, v{t3}")
    a(f"v_and_b32 v{t4}, 1, v0")
    a(f"v_lshlrev_b32 v{t4}, 4, v{t4}")
    a(f"v_sub_u32 v{t3}, v{t3}, v{t4}")
    a(f"v_and_b32 v{t4}, 2, v0")
    a(f"v_lshl_add_u32 v{t3}, v{t4}, 2, v{t3}")
    a(f"v_and_b32 v{t4}, 16, v0")
    a(f"v_add3_u32 v{t3}, v{t4}, v{t3}, s29")
    a(f"v_add_u32 v{t4}, 16, v{t3}")
    a(f"v_subrev_u32 v{t3}, 8, v{t3}")
    a("s_mov_b32 vcc_lo, 0x22220000"); a("s_mov_b32 vcc_hi, 0x22220000")
    a(f"v_cndmask_b32 v{t3}, v{t4}, v{t3}, vcc")
    a(f"v_mov_b32 v{t4}, {OOR:#x}")
    a("s_mov_b32 vcc_lo, 0xcccc0000"); a("s_mov_b32 vcc_hi, 0xcccc0000")
    a(f"v_cndmask_b32 v{vR}, v{t3}, v{t4}, vcc")
    for r in (KX, KX0): a(f"v_mov_b32 v{r+1}, 0x3f80")
    a(f"v_mov_b32 v{QX+1}, {f2u(opt.xs) >> 16:#x}", "constant softmax shift")
    a(f"v_mov_b32 v{vIdx}, 0xdddd", "sparse index: elements 1 and 3 of every group of four")
    a(f"v_mov_b32 v{vK}, v{vDma}")
    a(f"v_mov_b32 v{vInc}, {NB*ST}")
    a(f"v_mov_b32 v{vInc+1}, {NB*ST}")
    a(f"v_add_u32 v{C+2}, v{vK}, v{vInc}")
    a(f"v_add_u32 v{C+3}, v{vV}, v{vInc}")
    a(f"v_add_u32 v{vSlot}, {ABASE}, v{vSlot}")
    a(f"ds_write_b64 v{vSlot}, {vr(C+2,2)}")
    a(f"v_mov_b32 v{vInc8}, {8*ST}")
    a(f"v_mov_b32 v{vInc8+1}, {8*ST}")
    a(f"v_add3_u32 v{C}, v{vWE}, v{vInc8}, s28")
    a(f"v_add3_u32 v{C+1}, v{vWO}, v{vInc8}, s28")
    a(f"v_add3_u32 v{t3}, v{vR}, v{vInc8}, s28")
    a(f"ds_write_b64 v{vSlot}, {vr(C,2)} offset:4096")
    a(f"ds_write_b32 v{vSlot}, v{t3} offset:8192")
    a(f"s_mul_i32 s28, s24, {ST}")
    a(f"v_mul_u32_u24 v{vStA}, 36, v{t0}")
    a(f"v_lshlrev_b32 v{t4}, 4, v{t1}")
    a(f"v_sub_u32 v{vStA}, v{vStA}, v{t4}")
    a(f"v_add3_u32 v{vStA}, v{vStA}, 16, s28")
    a(f"v_add_u32 v{vStB}, 1152, v{vStA}")
    a(f"v_add_u32 v{vStR}, s28, v{vDma}")
    a(f"s_mov_b32 s30, {CSCALE:#x}", "log2(e)/sqrt(18)"); a(f"s_mov_b32 s31, {CSCALE:#x}")
    a("s_mov_b32 s28, 0")
    a("s_mov_b32 m0, 0")
    a("s_mov_b32 s29, 1", "super tile counter")
    a("s_mov_b32 s32, 0x8088", "barrier schedule")
    a("s_mov_b32 s33, 0x80008088")
    a("s_mov_b32 s38, 0x8000ddd0", "iterations with extra work, role A")
    a("s_mov_b32 s39, 0x8000dddc", "role B")
    a("s_mov_b32 s34, 0xffff0000")
    a("s_mov_b32 s35, 0x7b800000", "2^120")
    a("s_mov_b64 vcc, 0")
    a("s_cmp_ge_u32 s24, 4", "SCC = role B (kept until the loops)")
    if opt.amp: stamp(9)
    a("s_waitcnt vmcnt(6)")
    a("s_barrier", "V super tiles 0..3 are in: role B transposes them and starts its Q loads")
    if opt.amp: stamp(10)
    a("s_cbranch_scc0 L_noq")
    tr_read()
    qloads()
    a("s_waitcnt lgkmcnt(0)")
    tr_write()
    for r in (vR, vWE, vWO): a(f"v_add_u32 v{r}, {4*ST}, v{r}")
    a.lab("L_noq")
    a.raw("    .p2align 3")
    a("s_waitcnt vmcnt(3) lgkmcnt(0)")
    stamp(2)
    a("s_barrier", "K super tiles 0..3 are in, V super tiles 0..3 are transposed")
    bump = f"ds_add_rtn_u64 {vr(vK,2)}, v{vSlot}, {vr(vInc,2)}"
    def reads(u): return rd_k(u) + [ROWS] + rd_v('O', u-1) + rd_v('E', u) + [ALL]
    late = reads(1)
    AL['on'] = True
    for f in rd_k(0) + [ROWS, "s_setprio 3"] + rd_v('E', 0) + [ALL]: a(f)
    stamp(3)
    W = T + 10
    QA, QB = Qr['A'], Qr['B']
    def shl(j): a(f"v_lshlrev_b32 v{W+2*j}, 16, v{T+j}")
    def msk(j): a(f"v_and_b32 v{W+2*j+1}, s34, v{T+j}")
    def mul(j): a(f"v_pk_mul_f32 {vr(W+2*j,2)}, {vr(W+2*j,2)}, s[30:31]")
    def cvt(j, d): a(f"v_cvt_pk_bf16_f32 v{d}, v{W+2*j}, v{W+2*j+1}")
    a("s_waitcnt vmcnt(0)")
    stamp(4)
    shl(8); msk(8); mul(8); cvt(8, QX)
    shl(0)
    lgkm(3)
    a(mf_x('E'))
    a(f"v_and_b32_e64 v{W+1}, s34, v{T}")
    for j in range(1, 8): shl(j); msk(j)
    for j in range(8): mul(j)
    for j in range(4): cvt(j, QA + j)
    if opt.qd:
        for j in range(2): cvt(4 + j, QB + j)
        a(mf_q('A', 'E'))
        a("s_waitcnt lgkmcnt(0)")
        for j in range(2, 4): cvt(4 + j, QB + j)
    else:
        for j in range(4): cvt(4 + j, QB + j)
        for j in range(4): a(f"v_permlane32_swap_b32 v{QA+j}, v{QB+j}")
        a("s_waitcnt lgkmcnt(0)")
        a("s_nop 0")
        a(mf_q('A', 'E'))
    for f in late[:3]: a(f)
    a(mf_q('B', 'E'))
    for f in late[3:]: a(f)
    a("s_cbranch_scc1 L_startB")
    a("s_setprio 2")
    cut = opt.cut
    pos0 = int(opt.pos.split(',')[0])
    assert cut > pos0
    a.lab("L_first")
    stamp(5)
    for (i, k_, s_) in phase_list('E', opt):
        if not (i == pos0 and k_ == 'm'): a(s_)
        if 'smfmac' in s_ and i > 25: a("s_waitcnt lgkmcnt(0)")
    for (i, k_, s_) in phase_list('O', opt):
        if i < cut: a(s_)
    AL['on'] = False
    pE, pO = phase_list('E', opt), phase_list('O', opt)
    seg = [s_ for (i, k_, s_) in pO if i >= cut] + [s_ for (i, k_, s_) in pE] + [s_ for (i, k_, s_) in pO if i < cut]
    for s_ in seg: a(s_)
    a("s_cbranch_scc0 L_topA2")
    a("s_branch L_topB2")
    a.lab("L_startB")
    a("s_setprio 1")
    dma()
    a("s_cmp_ge_u32 s24, 4")
    a("s_branch L_first")
    def back(n):
        a("s_cmp_ge_u32 s24, 4")
        a(f"s_cbranch_scc0 L_backA{n}")
        a(f"s_branch L_backB{n}")
    a.lab("L_evR")
    a("s_waitcnt vmcnt(0)")
    tr_read()
    back(2)
    a.lab("L_evW")
    a("s_cmp_eq_u32 s29, 31")
    a("s_cbranch_scc1 L_ev31")
    tr_write()
    a(f"ds_add_rtn_u64 {vr(vWE,2)}, v{vSlot}, {vr(vInc8,2)} offset:4096")
    a(f"ds_add_rtn_u32 v{vR}, v{vSlot}, v{vInc8} offset:8192")
    back(3)
    a.lab("L_evD")
    dma()
    back(0)
    a.lab("L_ev31")
    a("s_mov_b64 vcc, 1", "last segment: it runs on into the tail")
    for f in [ROWS] + rd_v('T', 3) + [ALL]: a(f)
    back(3)
    pads = {'A': [int(x) for x in opt.padA.split(',')], 'B': [int(x) for x in opt.padB.split(',')]}
    for role in 'AB':
        a.raw("    .p2align 6")
        pad = pads[role][0]
        if pad: a.raw(f"    .fill {pad}, 4, 0xbf800000    ; never executed: sets the loop's fetch alignment")
        for c in range(NB):
            last = c == NB - 1
            a.lab(f"L_top{role}{c}")
            if role == 'A': a("s_setprio 0")
            a("s_add_u32 s29, s29, 1")
            if opt.itst: a("s_memtime s[48:49]")
            for f in reads(c if c else NB): a(f)
            if c == 0:
                a(bump)
                a(f"s_addk_i32 s28, {NB*ST}")
                a("s_mov_b32 m0, s28")
            if c != 1:
                a(f"s_bitcmp1_b32 {'s38' if role == 'A' else 's39'}, s29")
                a("s_cbranch_scc1 " + ("L_evW" if last else ("L_evD" if c == 0 else "L_evR")))
            a.lab(f"L_back{role}{c}")
            if last: a(f"s_bitcmp1_b32 {'s33' if role == 'A' else 's32'}, s29", "SCC: a barrier follows this " + ("segment" if role == 'A' else "burst"))
            if c and len(pads[role]) > c:
                for k in range(pads[role][c]): a("s_waitcnt lgkmcnt(4)")
            a("s_waitcnt lgkmcnt(0)")
            if opt.itst:
                a("s_mov_b32 m0, s29"); a("s_nop 0"); a("s_movreld_b32 s62, s48"); a("s_mov_b32 m0, s28"); a("s_nop 0"); a("s_nop 0")
            if role == 'B' and last:
                a(f"s_cbranch_scc0 L_segB{c}")
                a("s_barrier")
            a.lab(f"L_seg{role}{c}")
            nm = 0
            for s_ in seg:
                a(s_)
                if role == 'A' and ('smfmac' in s_ or 'x16_bf16' in s_):
                    nm += 1
                    if nm == opt.prn: a("s_setprio 2")
        if role == 'A':
            a("s_cbranch_scc0 L_topA0")
            a("s_cbranch_vccnz L_tail")
            a("s_barrier")
            a("s_branch L_topA0")
        else:
            a("s_cbranch_vccz L_topB0")
    R = Sr['E']
    PK = {'A': Sr['E'] + 8, 'B': Sr['E'] + 14}
    OB = Sr['E'] + 20
    def finish(t, fill=None):
        O = Or[t]
        rc = R + 2 if t == 'A' else R + 4
        a(f"v_pk_mov_b32 {vr(rc,2)}, {vr(O+8,2)}, {vr(O+8,2)} op_sel:[0,0]", "denominator sits in the upper half wave")
        for f in (fill or ["s_nop 1"]): a(f)
        a(f"v_permlane32_swap_b32 v{rc}, v{rc+1}")
        a(f"v_rcp_f32 v{rc}, v{rc+1}")
    def finish2(t):
        O = Or[t]
        rc = R + 2 if t == 'A' else R + 4
        for j in (8, 0, 2, 4, 6):
            a(f"v_pk_mul_f32 {vr(O+j,2)}, {vr(O+j,2)}, {vr(rc,2)} op_sel_hi:[1,0]")
        st = vStA if t == 'A' else vStB
        for j in (4, 0, 1, 2, 3):
            a(f"v_cvt_pk_bf16_f32 v{PK[t]+j}, v{O+2*j}, v{O+2*j+1}")
        a(f"ds_write_b32 v{st}, v{PK[t]+4} offset:16", "upper half's word is overwritten by the next write")
        a(f"ds_write2_b32 v{st}, v{PK[t]}, v{PK[t]+1} offset0:0 offset1:1")
        a(f"ds_write2_b32 v{st}, v{PK[t]+2}, v{PK[t]+3} offset0:2 offset1:3")
        if t == 'A':
            a(f"ds_read_b128 {vr(OB,4)}, v{vStR}")
        else:
            a(f"ds_read_b128 {vr(OB+4,4)}, v{vStR} offset:1024")
            a(f"ds_read_b128 {vr(OB+8,4)}, v{vStR} offset:2048")
    def store(k): return f"buffer_store_dwordx4 {vr(OB+4*k,4)}, v{vDma}, s[20:23], 0 offen offset:{1024*k} sc1"
    a.lab("L_tail")
    if opt.tail == 0:
        tm = {10: mf_pv('A', 'O', 0, 'T'), 18: mf_pv('A', 'O', 1, 'T'), 26: mf_pv('B', 'O', 0, 'T')}
        for i in range(cut, 29):
            if i in tm: a(tm[i])
            a(ex('O', i))
        finish('A', [ex('O', 29), ex('O', 30)])
        a(ex('O', 31).replace("v_exp_f32", "v_exp_f32_e64"))
        stamp(6)
        n0 = len(a.l)
        finish2('A')
        a.l.insert(n0 + 5, "    " + mf_pv('B', 'O', 1, 'T'))
        a("s_nop 0")
    else:
        tm = {10: mf_pv('A', 'O', 0, 'T'), 18: mf_pv('A', 'O', 1, 'T')}
        for i in range(cut, 28):
            if i in tm: a(tm[i])
            if i == 18: a("s_nop 1")
            a(ex('O', i))
        finish('A', [ex('O', 28), ex('O', 29)])
        a(ex('O', 30).replace("v_exp_f32", "v_exp_f32_e64"))
        n0 = len(a.l)
        finish2('A')
        a.l.insert(n0 + 10, "    " + mf_pv('B', 'O', 0, 'T'))
        a.l.insert(n0 + 13, "    " + ex('O', 31).replace("v_exp_f32", "v_exp_f32_e64"))
        stamp(6)
        a(mf_pv('B', 'O', 1, 'T'))
        a("s_nop 9")
    lgkm(0)
    a(store(0))
    finish('B')
    a("s_nop 0")
    finish2('B')
    lgkm(1)
    a(store(1))
    lgkm(0)
    a(store(2))
    stamp(7)
    a("s_setprio 0")
    for t in 'AB':
        for j in range(5): a(f"v_dot2c_f32_bf16 v{R+3 if t == 'A' else R+5}, 0, v{PK[t]+j}")
    a(f"v_cmp_nge_f32 s[36:37], v{R+3}, 1.0")
    a(f"v_cmp_nle_f32 vcc, v{R+3}, s35")
    a("s_or_b64 s[36:37], s[36:37], vcc")
    a(f"v_cmp_nge_f32 s[38:39], v{R+5}, 1.0")
    a(f"v_cmp_nle_f32 vcc, v{R+5}, s35")
    a("s_or_b64 s[36:37], s[36:37], s[38:39]")
    a("s_or_b64 s[36:37], s[36:37], vcc")
    a("s_cbranch_scc1 L_slow")
    a.lab("L_done")
    if opt.amp:
        a("s_waitcnt vmcnt(0)")
        stamp(8)
        a("s_memrealtime s[42:43]")
        a("s_waitcnt lgkmcnt(0)")
        a(f"s_sub_u32 s50, s{60+2*opt.ampb}, s{60+2*opt.ampa}")
        a(f"s_max_u32 s50, s50, {opt.ampbase}")
        a(f"s_sub_u32 s50, s50, {opt.ampbase}")
        a("s_load_dwordx2 s[54:55], s[0:1], 32")
        a(f"s_cmp_lg_u32 s24, {3 if opt.ampr == 'A' else 7}")
        a("s_cbranch_scc1 L_end")
        a("s_add_u32 s51, s50, 0x1000000")
        a("s_mov_b64 exec, 1")
        a("v_mov_b32 v16, s51"); a("v_mov_b32 v17, 0")
        a("s_waitcnt lgkmcnt(0)")
        a("global_atomic_add v18, v17, v16, s[54:55] sc0 sc1")
        a("s_waitcnt vmcnt(0)")
        a("v_readfirstlane_b32 s51, v18")
        a("s_nop 3")
        a("s_add_u32 s50, s50, s51")
        a("s_and_b32 s50, s50, 0xffffff")
        a(f"s_mul_i32 s50, s50, {opt.amp}")
        a("s_lshr_b32 s50, s50, 8")
        a("s_lshr_b32 s51, s51, 24")
        a("s_cmp_lg_u32 s51, 255")
        a("s_cselect_b32 s50, 0, s50")
        a("s_min_u32 s50, s50, 20000")
        a.lab("L_spin")
        a("s_sleep 2")
        a("s_memrealtime s[52:53]")
        a("s_waitcnt lgkmcnt(0)")
        a("s_sub_u32 s51, s52, s42")
        a("s_cmp_lt_u32 s51, s50")
        a("s_cbranch_scc1 L_spin")
    if opt.itst:
        a("s_load_dwordx2 s[40:41], s[0:1], 40")
        for i in range(32): a(f"v_writelane_b32 v16, s{62+i}, {i}")
        a("s_lshl_b32 s50, s2, 3"); a("s_add_u32 s50, s50, s24"); a("s_lshl_b32 s50, s50, 8")
        a(f"v_lshrrev_b32 v1, 2, v{vDma}")
        a("v_add_u32 v1, s50, v1")
        a("s_waitcnt lgkmcnt(0)")
        a("global_store_dword v1, v16, s[40:41]")
    if opt.stamp:
        a("s_mov_b64 exec, 1")
        a("s_waitcnt vmcnt(0)")
        stamp(8)
        a("s_memrealtime s[58:59]")
        a("s_load_dwordx2 s[40:41], s[0:1], 40")
        a("s_getreg_b32 s42, hwreg(HW_REG_HW_ID)")
        a("s_getreg_b32 s43, hwreg(HW_REG_XCC_ID)")
        a("s_waitcnt lgkmcnt(0)")
        for i, sr in enumerate((56, 58, 42, 43, 60, 62, 64, 66, 68, 70, 72, 74, 76)):
            a(f"v_mov_b32 v{16+i}, s{sr}")
        a("s_lshl_b32 s50, s2, 3"); a("s_add_u32 s50, s50, s24"); a("s_lshl_b32 s50, s50, 6")
        a("v_mov_b32 v1, s50")
        for i in range(4): a(f"global_store_dwordx4 v1, v[{16+4*i}:{19+4*i}], s[40:41] offset:{16*i}")
    a.lab("L_end")
    a("s_endpgm")
    a.lab("L_slow")
    a("s_waitcnt vmcnt(0)")
    mA, mB = 0, vSlot
    def scores():
        a(f"buffer_load_dword v{KX}, v{vGX}, s[16:19], s29 offen offset:32")
        a(f"buffer_load_dwordx4 {vr(Kr['E'],4)}, v{vGK}, s[16:19], s29 offen")
        a(f"buffer_load_dwordx4 {vr(Kr['O'],4)}, v{vGK}, s[16:19], s29 offen offset:36")
        a("s_waitcnt vmcnt(0) lgkmcnt(0)")
        a(mf_x('E')); a(mf_x('O'))
        a("s_nop 15"); a("s_nop 3")
        for par in 'EO':
            for t in 'AB': a(mf_q(t, par))
        a("s_nop 15")
    def step(lab):
        a(f"s_add_u32 s29, s29, {ST}")
        a("s_cmp_lg_u32 s29, s18")
        a(f"s_cbranch_scc1 {lab}")
    a("s_mov_b32 s29, 0")
    a(f"v_mov_b32 v{mA}, 0xff800000"); a(f"v_mov_b32 v{mB}, 0xff800000")
    a.lab("L_max")
    scores()
    for par in 'EO':
        for t, m in (('A', mA), ('B', mB)):
            s = Sr[par] + (16 if t == 'B' else 0)
            for j in range(0, 16, 2): a(f"v_max3_f32 v{m}, v{m}, v{s+j}, v{s+j+1}")
    step("L_max")
    for m in (mA, mB):
        a(f"v_mov_b32 v{vT2}, v{m}")
        a("s_nop 1")
        a(f"v_permlane32_swap_b32 v{vT2}, v{m}")
        a("s_nop 1")
        a(f"v_max_f32 v{m}, v{m}, v{vT2}")
    a(f"v_subrev_u32 v{vV}, {(32-NB)*ST}, v{vV}")
    a("s_mov_b32 s29, 0")
    for r in range(120, 152): a(f"v_mov_b32 v{r}, 0")
    a.lab("L_acc")
    for f in [ROWS] + rd_v('E', 0) + rd_v('O', 0) + [ALL]: a(f)
    scores()
    for par in 'EO':
        for t, m in (('A', mA), ('B', mB)):
            s = Sr[par] + (16 if t == 'B' else 0)
            for j in range(16): a(f"v_sub_f32 v{s+j}, v{s+j}, v{m}")
            for j in range(16): a(f"v_exp_f32 v{s+j}, v{s+j}")
    a(f"v_add_u32 v{vV}, {ST}, v{vV}")
    a("s_nop 0")
    for par in 'EO':
        for t in 'AB':
            for j in range(2): a(mf_pv(t, par, j))
    step("L_acc")
    a("s_nop 15")
    for t in 'AB':
        finish(t); a("s_nop 0"); finish2(t)
    a("s_waitcnt lgkmcnt(0)")
    for k in range(3): a(store(k))
    a("s_branch L_done")
    a.raw(f""".section .rodata,"a"
.p2align 6
.amdhsa_kernel {NAME}_kernel
  .amdhsa_next_free_vgpr {NV}
  .amdhsa_next_free_sgpr {100 if (opt.stamp or opt.amp or opt.itst) else 48}
  .amdhsa_accum_offset {NV}
  .amdhsa_group_segment_fixed_size 0
  .amdhsa_kernarg_size 48
  .amdhsa_user_sgpr_count 2
  .amdhsa_user_sgpr_kernarg_segment_ptr 1
  .amdhsa_system_sgpr_workgroup_id_x 1
.end_amdhsa_kernel""")
    return a.text()

def parse(argv):
    p = argparse.ArgumentParser()
    p.add_argument('-o', default=f"cdna_kernels/{NAME}.s")
    p.add_argument('--cut', type=int, default=4)
    p.add_argument('--pos', default='2,5,15,18,21,27,24')
    p.add_argument('--fill', type=int, default=0)
    p.add_argument('--prn', type=int, default=1)
    p.add_argument('--tail', type=int, default=1)
    p.add_argument('--qd', type=int, default=1)
    p.add_argument('--dpf', default='')
    p.add_argument('--tlb', type=int, default=0)
    p.add_argument('--pf', type=int, default=1)
    p.add_argument('--xs', type=float, default=35)
    p.add_argument('--padA', default='0')
    p.add_argument('--padB', default='1')
    p.add_argument('--stamp', type=int, default=0)
    p.add_argument('--itst', type=int, default=0)
    p.add_argument('--amp', type=int, default=0)
    p.add_argument('--ampt', type=int, default=0)
    p.add_argument('--ampa', type=int, default=0)
    p.add_argument('--ampb', type=int, default=8)
    p.add_argument('--ampr', default='')
    p.add_argument('--ampbase', type=int, default=44000)
    return p.parse_args(argv)

if __name__ == '__main__':
    opt = parse(sys.argv[1:])
    open(opt.o, 'w').write(gen(opt))
```

```python
import sys, struct, math, argparse

NAME = "standalone__fused_io_aware_attn__prompt"
HB = 73728
ST = 2304
VBASE = HB
ABASE = 2 * HB
LDS = ABASE + 3 * 4096
NB = 4

def f2u(x): return struct.unpack('<I', struct.pack('<f', x))[0]
CSCALE = f2u(math.log2(math.e) / math.sqrt(18.0))

vSlot, vK, vV, vInc, vIdx, vQo, vDma, vT2 = 1, 2, 3, 4, 6, 7, 14, 15
KX, QX, KX0 = 8, 10, 12
Kr = {'E': 16, 'O': 20}
Qr = {'A': 24, 'B': 28}
K0 = {'E': 32, 'O': 36}
Vr = {('E', 0): 40, ('E', 1): 44, ('O', 0): 48, ('O', 1): 52, ('T', 0): 168, ('T', 1): 172}
Sr = {'E': 56, 'O': 88}
Or = {'A': 120, 'B': 136}
TR = 152
vWE, vWO, vInc8, vR, vStA, vStB, vStR, vGK, vGX = 176, 177, 178, 180, 181, 182, 183, 184, 185
vQ2 = 186
NV = 188
AL = dict(on=False)
def kx(): return KX0 if AL['on'] else KX
def kr(par): return K0[par] if AL['on'] else Kr[par]
def vv(par, j): return Vr[('T', j)] if (AL['on'] and par == 'E') else Vr[(par, j)]
def vr(b, n): return f"v[{b}:{b+n-1}]"

class Asm:
    def __init__(self): self.l = []
    def __call__(self, s, c=None): self.l.append("    " + s + (f"    ; {c}" if c else ""))
    def lab(self, s): self.l.append(s + ":")
    def raw(self, s): self.l.append(s)
    def note(self, s): self.l.append("    ; " + s)
    def text(self): return "\n".join(x.rstrip() for x in self.l) + "\n"

def mf_x(par):
    return f"v_mfma_f32_32x32x4_2b_bf16 {vr(Sr[par],32)}, {vr(kx(),2)}, {vr(QX,2)}, 0 cbsz:1 abid:{0 if par == 'E' else 1}"
def mf_q(t, par):
    s = Sr[par] + (16 if t == 'B' else 0)
    return f"v_mfma_f32_32x32x16_bf16 {vr(s,16)}, {vr(kr(par),4)}, {vr(Qr[t],4)}, {vr(s,16)}"
def mf_pv(t, par, j, vs=None):
    s = Sr[par] + (16 if t == 'B' else 0) + 8 * j
    return f"v_smfmac_f32_32x32x32_bf16 {vr(Or[t],16)}, {vr(vv(vs or par,j),4)}, {vr(s,8)}, v{vIdx}"
def ex(par, i): return f"v_exp_f32 v{Sr[par]+i}, v{Sr[par]+i}"
def rd_k(u):
    return [f"ds_read_addtid_b32 v{kx()} offset:{u*ST+2048}",
            f"ds_read_b128 {vr(kr('E'),4)}, v{vK} offset:{u*ST}", f"ds_read_b128 {vr(kr('O'),4)}, v{vK} offset:{u*ST+1024}"]
def rd_v(par, u):
    return [f"ds_read_b128 {vr(vv(par,j),4)}, v{vV} offset:{u*ST + (0 if par == 'E' else 1152) + 576*j}" for j in range(2)]
ROWS = "s_mov_b64 exec, s[12:13]"
ALL = "s_mov_b64 exec, -1"

def phase_list(par, opt):
    oth = 'O' if par == 'E' else 'E'
    pos = [int(x) for x in opt.pos.split(',')]
    mf = {pos[0]: mf_pv('B', oth, 1), pos[1]: mf_x(oth), pos[2]: mf_pv('A', par, 0), pos[3]: mf_pv('A', par, 1),
          pos[4]: mf_q('A', oth), pos[5]: mf_pv('B', par, 0), pos[6]: mf_q('B', oth)}
    out = []
    for i in range(32):
        if i in mf: out.append((i, 'm', mf[i]))
        if opt.fill and i == pos[3]: out.append((i, 'n', f"s_nop {opt.fill-1}"))
        out.append((i, 'e', ex(par, i)))
    return out

def gen(opt):
    a = Asm()
    def stamp(i):
        if opt.stamp and (opt.stamp != 3 or i in (0, 7, 8)): a(f"s_memtime s[{60+2*i}:{61+2*i}]")
        if opt.amp and i in (opt.ampa, opt.ampb): a(f"{'s_memrealtime' if opt.ampt else 's_memtime'} s[{60+2*i}:{61+2*i}]")
    smem = opt.stamp == 1 or (opt.amp and not (opt.ampa in (0, 7) and opt.ampb in (7, 8)))
    def lgkm(n): a(f"s_waitcnt lgkmcnt({0 if smem else n})")
    a.raw(f"""; Fused attention forward, B=2 H=32 S=2048 D=18, bf16 in/out (emitted by my own generator script).
; @launch grid=(256,1,1) block=(512,1,1) lds={LDS}
.amdgcn_target "amdgcn-amd-amdhsa--gfx950"
.text
.globl {NAME}_kernel
.p2align 8
.type {NAME}_kernel,@function
{NAME}_kernel:""")
    stamp(0)
    if opt.stamp: a("s_memrealtime s[56:57]")
    a("s_load_dwordx8 s[4:11], s[0:1], 0", "q, k, v, out")
    if opt.pf:
        a("s_getpc_b64 s[36:37]")
        a("v_mad_u64_u32 v[16:17], vcc, v0, 14, s[36:37]")
        a(f"global_load_ubyte v{vT2}, v[16:17], off offset:116", "pulls this kernel's own code lines into L2")
    a("v_readfirstlane_b32 s24, v0", "64 * wave")
    a("s_and_b32 s3, s2, 7")
    a("s_lshr_b32 s25, s2, 3")
    a("s_lshl_b32 s3, s3, 5")
    a("s_add_u32 s3, s3, s25", "4 * head + query block")
    a("s_cmpk_ge_u32 s2, 256")
    a("s_cbranch_scc1 L_end")
    if not opt.tlb:
        a("s_cmpk_ge_u32 s24, 256")
        a("s_cbranch_scc1 L_setup", "role B (waves 4..7) starts its loads after role A's")
    t0, t1 = Sr['E'] + 8, Sr['E'] + 9
    C = Sr['E']
    t3, t4, t5 = C + 4, C + 5, C + 6
    T = Sr['O']
    def qloads():
        a(f"global_load_dword v{T+8}, v{vQo}, s[4:5] offset:32")
        if opt.qd:
            a(f"global_load_dwordx4 {vr(T,4)}, v{vQ2}, s[4:5]")
            a(f"global_load_dwordx4 {vr(T+4,4)}, v{vQ2}, s[4:5] offset:1152")
        else:
            a(f"global_load_dwordx4 {vr(T,4)}, v{vQo}, s[4:5]")
            a(f"global_load_dwordx4 {vr(T+4,4)}, v{vQo}, s[4:5] offset:16")
    def qaddr2():
        a(f"v_mul_u32_u24 v{vQ2}, 1136, v{t1}")
        a(f"v_sub_u32 v{vQ2}, v{vQo}, v{vQ2}", "dims 8h..8h+7 of query l%32")
    def qaddr():
        a(f"v_lshl_add_u32 v{vQo}, s3, 9, v0")
        a(f"v_mul_u32_u24 v{vQo}, 36, v{vQo}", "one Q row per lane")
    def gaddr():
        a(f"v_and_b32 v{t0}, 31, v0", "MFMA row m = key pair")
        a(f"v_bfe_u32 v{t1}, v0, 5, 1", "half wave h")
        a(f"v_mul_u32_u24 v{vGK}, 72, v{t0}")
        a(f"v_mad_u32_u24 v{vGX}, v{t1}, 36, v{vGK}", "dims 16,17 of the even (h=0) / odd (h=1) key, less 32")
        a(f"v_lshl_add_u32 v{vGK}, v{t1}, 4, v{vGK}", "dims 8h..8h+7 of the even key")
    if opt.dpf:
        a.note("inside the first instruction cache lines: one word per 36-byte row starts every line of the first loads")
        qaddr()
        a("s_andn2_b32 s25, s3, 3")
        a(f"v_lshl_add_u32 v{t4}, s25, 9, v0")
        a(f"v_mul_u32_u24 v{t4}, 36, v{t4}")
        a("s_waitcnt lgkmcnt(0)")
        stamp(1)
        for ch in opt.dpf:
            if ch == 'v': a(f"global_load_dword v{TR}, v{t4}, s[8:9]")
            if ch == 'k': a(f"global_load_dword v{TR+1}, v{t4}, s[6:7]")
            if ch == 'q': a(f"global_load_dword v{TR+2}, v{vQo}, s[4:5]")
    a("s_lshr_b32 s25, s3, 2")
    a(f"s_mul_i32 s25, s25, {HB}")
    a("s_mul_i32 s26, s24, 20")
    a("s_add_u32 s26, s26, s25")
    a(f"v_lshl_add_u32 v{t3}, v0, 4, s26")
    a("s_mul_i32 s26, s24, 36", "super tile `wave` of V and of K")
    a(f"s_add_u32 m0, s26, {VBASE}")
    if opt.tlb: a("s_cmpk_ge_u32 s24, 256")
    if opt.dpf: a("s_nop 0")
    else:
        a("s_waitcnt lgkmcnt(0)")
        stamp(1)
    if opt.tlb:
        if opt.tlb & 1: a("s_load_dword s40, s[6:7], s25", "starts the address translation of K early")
        if opt.tlb & 2: a("s_load_dword s41, s[4:5], s25", "and of Q")
        a("s_cbranch_scc1 L_setup", "role B (waves 4..7) starts its loads after role A's")
    a(f"global_load_lds_dwordx4 v{t3}, s[8:9]")
    a(f"global_load_lds_dwordx4 v{t3}, s[8:9] offset:1024")
    a("s_mov_b64 exec, 0xffff")
    a(f"global_load_lds_dwordx4 v{t3}, s[8:9] offset:2048")
    a(ALL)
    a("s_add_u32 s25, s25, s26")
    a("s_add_u32 s42, s6, s25")
    a("s_addc_u32 s43, s7, 0")
    a("s_mov_b32 m0, s26")
    gaddr()
    a(f"global_load_lds_dwordx4 v{vGK}, s[42:43]")
    a("s_add_u32 m0, s26, 988")
    if opt.dpf: a("s_nop 0")
    else: qaddr()
    a(f"global_load_lds_dwordx4 v{vGK}, s[42:43] offset:36")
    a("s_add_u32 m0, s26, 2016")
    if opt.qd: qaddr2()
    else: a("s_nop 0")
    a(f"global_load_lds_dword v{vGX}, s[42:43] offset:32")
    qloads()
    if opt.amp: stamp(11)
    a.lab("L_setup")
    if opt.stamp:
        if opt.stamp == 3:
            for i in range(62, 74): a(f"s_mov_b32 s{i}, 0")
    qaddr(); gaddr()
    if opt.qd: qaddr2()
    a(f"v_lshlrev_b32 v{vSlot}, 3, v0")
    a("v_and_b32 v0, 63, v0")
    a("s_lshr_b32 s24, s24, 6", "wave id")
    a("s_lshr_b32 s25, s3, 2")
    a(f"s_mul_i32 s25, s25, {HB}", "head byte offset")
    a("s_lshl3_add_u32 s26, s3, s24")
    a(f"s_mul_i32 s26, s26, {ST}", "output byte offset of this wave")
    a(f"v_lshlrev_b32 v{vDma}, 4, v0")
    a("s_cmp_lt_u32 s24, 4")
    a("s_cselect_b32 s28, 8, 0")
    a("s_add_u32 s28, s28, s24")
    a(f"s_mul_i32 s27, s28, {ST}", "byte offset of this wave's next super tile to load")
    a(f"s_mov_b32 s18, {HB}")
    a("s_mov_b32 s19, 0x00020000")
    a(f"s_mov_b32 s46, {HB}")
    a("s_mov_b32 s47, 0x00020000")
    a(f"s_movk_i32 s22, {ST}")
    a("s_mov_b32 s23, 0x00020000")
    def dma():
        a("s_add_u32 m0, s27, s18")
        a("s_mov_b64 exec, 0xffff")
        a(f"buffer_load_dwordx4 v{vDma}, s[44:47], s27 offen offset:2048 lds")
        a(ALL)
        a(f"buffer_load_dwordx4 v{vDma}, s[44:47], s27 offen lds")
        a(f"buffer_load_dwordx4 v{vDma}, s[44:47], s27 offen offset:1024 lds")
        a("s_mov_b32 m0, s27")
        a("s_nop 0")
        a(f"buffer_load_dwordx4 v{vGK}, s[16:19], s27 offen lds")
        a("s_add_u32 m0, s27, 988")
        a("s_nop 0")
        a(f"buffer_load_dwordx4 v{vGK}, s[16:19], s27 offen offset:36 lds")
        a("s_add_u32 m0, s27, 2016")
        a("s_nop 0")
        a(f"buffer_load_dword v{vGX}, s[16:19], s27 offen offset:32 lds")
        a("s_mov_b32 m0, s28")
        a(f"s_add_u32 s27, s27, {8*ST}")
    def tr_read():
        for u in range(2):
            for j in range(2):
                for p in range(2):
                    a(f"ds_read_b64_tr_b16 {vr(TR+8*u+4*j+2*p,2)}, v{vR} offset:{40*u + (16*j+4*p)*72}")
    def tr_write():
        a(ROWS)
        for j in range(2): a(f"ds_write_b128 v{vWE}, {vr(TR+4*j,4)} offset:{576*j}")
        a("s_mov_b64 exec, s[14:15]")
        for j in range(2): a(f"ds_write_b128 v{vWO}, {vr(TR+8+4*j,4)} offset:{576*j}")
        a(ALL)
    if not opt.tlb: a("s_waitcnt lgkmcnt(0)")
    a("s_add_u32 s16, s6, s25")
    a("s_addc_u32 s17, s7, 0")
    a("s_add_u32 s44, s8, s25")
    a("s_addc_u32 s45, s9, 0")
    a("s_add_u32 s20, s10, s26")
    a("s_addc_u32 s21, s11, 0")
    a(f"v_cmp_eq_u32 vcc, 20, v{t0}")
    a(f"v_mov_b32 v{QX}, 0"); a(f"v_mov_b32 v{QX+1}, 0")
    a(f"v_mov_b32 v{t4}, 0x3f803f80")
    a("s_mov_b32 s12, 0x0003ffff"); a("s_mov_b32 s13, 0x0003ffff")
    a("s_mov_b32 s14, 0x00c0ffff"); a("s_mov_b32 s15, 0x00c0ffff")
    a(f"v_cndmask_b32 v40, 0, v{t4}, vcc")
    a(f"v_cndmask_b32 v41, 0, v{t4}, vcc")
    for r in list(range(42, 56, 2)) + list(range(168, 176, 2)): a(f"v_pk_mov_b32 {vr(r,2)}, v[40:41], v[40:41]")
    a(f"v_mfma_f32_32x32x4_2b_bf16 {vr(120,32)}, {vr(QX,2)}, {vr(QX,2)}, 0", "zeroes the accumulators")
    a(f"v_and_b32 v{t3}, 3, v0")
    a(f"v_bfe_u32 v{t4}, v0, 3, 1")
    a(f"v_lshl_add_u32 v{t3}, v{t4}, 2, v{t3}")
    a(f"v_and_b32 v{t4}, 4, v0")
    a(f"v_lshlrev_b32 v{t4}, 1, v{t4}")
    a(f"v_sub_u32 v{t3}, v{t3}, v{t4}")
    a(f"v_add_u32 v{t3}, 8, v{t3}")
    a(f"v_cmp_lt_u32 vcc, 15, v{t0}")
    a(f"v_and_b32 v{t4}, 1, v0")
    a(f"v_add_u32 v{t4}, 16, v{t4}")
    a(f"v_cndmask_b32 v{t3}, v{t3}, v{t4}, vcc")
    a(f"v_mul_u32_u24 v{t5}, 18, v{t1}")
    a("s_cmp_lt_u32 s24, 4")
    a(f"s_cselect_b32 s28, 0, {4*ST}")
    a("s_sub_u32 s29, s27, s28")
    a("s_add_u32 s29, s29, s18", "first V super tile this wave transposes")
    for sub, dst, extra in ((4, vWE, 0), (2, vWO, 72)):
        a(f"v_subrev_u32 v{t4}, {sub}, v{t3}")
        a(f"v_add_u32 v{dst}, 18, v{t4}")
        a(f"v_min_u32 v{t4}, v{t4}, v{dst}")
        a(f"v_add_u32 v{t4}, v{t4}, v{t5}")
        if extra: a(f"v_add_u32 v{t4}, {extra}, v{t4}")
        else: a(f"v_lshl_add_u32 v{vV}, v{t4}, 4, s18")
        a(f"v_lshl_add_u32 v{dst}, v{t4}, 4, s29")
    a(f"v_bfe_u32 v{t3}, v0, 2, 2")
    a(f"v_lshl_add_u32 v{t3}, v{t1}, 3, v{t3}")
    a(f"v_mul_u32_u24 v{t3}, 72, v{t3}")
    a(f"v_and_b32 v{t4}, 1, v0")
    a(f"v_lshlrev_b32 v{t4}, 4, v{t4}")
    a(f"v_sub_u32 v{t3}, v{t3}, v{t4}")
    a(f"v_and_b32 v{t4}, 18, v0")
    a(f"v_lshlrev_b32 v{t4}, 2, v{t4}")
    a(f"v_min_u32 v{t4}, 16, v{t4}")
    a(f"v_add3_u32 v{t3}, v{t4}, v{t3}, s29")
    a(f"v_add_u32 v{t4}, 16, v{t3}")
    a(f"v_subrev_u32 v{t3}, 8, v{t3}")
    a("s_mov_b32 vcc_lo, 0xaaaa0000"); a("s_mov_b32 vcc_hi, 0xaaaa0000")
    a(f"v_cndmask_b32 v{vR}, v{t4}, v{t3}, vcc")
    for r in (KX, KX0): a(f"v_mov_b32 v{r+1}, 0x3f80")
    a(f"v_mov_b32 v{QX+1}, {f2u(opt.xs) >> 16:#x}", "constant softmax shift")
    a(f"v_mov_b32 v{vIdx}, 0xdddd", "sparse index: elements 1 and 3 of every group of four")
    a(f"v_mov_b32 v{vK}, v{vDma}")
    a(f"v_mov_b32 v{vInc}, {NB*ST}")
    a(f"v_mov_b32 v{vInc+1}, {NB*ST}")
    a(f"v_add_u32 v{C+2}, v{vK}, v{vInc}")
    a(f"v_add_u32 v{C+3}, v{vV}, v{vInc}")
    a(f"v_add_u32 v{vSlot}, {ABASE}, v{vSlot}")
    a(f"ds_write_b64 v{vSlot}, {vr(C+2,2)}")
    a(f"v_mov_b32 v{vInc8}, {8*ST}")
    a(f"v_mov_b32 v{vInc8+1}, {8*ST}")
    a(f"v_add3_u32 v{C}, v{vWE}, v{vInc8}, s28")
    a(f"v_add3_u32 v{C+1}, v{vWO}, v{vInc8}, s28")
    a(f"v_add3_u32 v{t3}, v{vR}, v{vInc8}, s28")
    a(f"ds_write_b64 v{vSlot}, {vr(C,2)} offset:4096")
    a(f"ds_write_b32 v{vSlot}, v{t3} offset:8192")
    a(f"s_mul_i32 s28, s24, {ST}")
    a(f"v_mul_u32_u24 v{vStA}, 36, v{t0}")
    a(f"v_lshlrev_b32 v{t4}, 4, v{t1}")
    a(f"v_sub_u32 v{vStA}, v{vStA}, v{t4}")
    a(f"v_add3_u32 v{vStA}, v{vStA}, 16, s28")
    a(f"v_add_u32 v{vStB}, 1152, v{vStA}")
    a(f"v_add_u32 v{vStR}, s28, v{vDma}")
    a(f"s_mov_b32 s30, {CSCALE:#x}", "log2(e)/sqrt(18)"); a(f"s_mov_b32 s31, {CSCALE:#x}")
    a("s_mov_b32 s28, 0")
    a("s_mov_b32 m0, 0")
    a("s_mov_b32 s29, 1", "super tile counter")
    a("s_mov_b32 s32, 0x8088", "barrier schedule")
    a("s_mov_b32 s33, 0x80008088")
    a("s_mov_b32 s38, 0x8000ddd0", "iterations with extra work, role A")
    a("s_mov_b32 s39, 0x8000dddc", "role B")
    a("s_mov_b32 s34, 0xffff0000")
    a("s_mov_b32 s35, 0x7b800000", "2^120")
    a("s_mov_b64 vcc, 0")
    a("s_cmp_ge_u32 s24, 4", "SCC = role B (kept until the loops)")
    if opt.amp: stamp(9)
    a("s_waitcnt vmcnt(6)")
    a("s_barrier", "V super tiles 0..3 are in: role B transposes them and starts its Q loads")
    if opt.amp: stamp(10)
    a("s_cbranch_scc0 L_noq")
    tr_read()
    qloads()
    a("s_waitcnt lgkmcnt(0)")
    tr_write()
    for r in (vR, vWE, vWO): a(f"v_add_u32 v{r}, {4*ST}, v{r}")
    a.lab("L_noq")
    a.raw("    .p2align 3")
    a("s_waitcnt vmcnt(3) lgkmcnt(0)")
    stamp(2)
    a("s_barrier", "K super tiles 0..3 are in, V super tiles 0..3 are transposed")
    bump = f"ds_add_rtn_u64 {vr(vK,2)}, v{vSlot}, {vr(vInc,2)}"
    def reads(u): return rd_k(u) + [ROWS] + rd_v('O', u-1) + rd_v('E', u) + [ALL]
    late = reads(1)
    AL['on'] = True
    for f in rd_k(0) + [ROWS, "s_setprio 3"] + rd_v('E', 0) + [ALL]: a(f)
    stamp(3)
    W = T + 10
    QA, QB = Qr['A'], Qr['B']
    def shl(j): a(f"v_lshlrev_b32 v{W+2*j}, 16, v{T+j}")
    def msk(j): a(f"v_and_b32 v{W+2*j+1}, s34, v{T+j}")
    def mul(j): a(f"v_pk_mul_f32 {vr(W+2*j,2)}, {vr(W+2*j,2)}, s[30:31]")
    def cvt(j, d): a(f"v_cvt_pk_bf16_f32 v{d}, v{W+2*j}, v{W+2*j+1}")
    a("s_waitcnt vmcnt(0)")
    stamp(4)
    shl(8); msk(8); mul(8); cvt(8, QX)
    shl(0)
    lgkm(3)
    a(mf_x('E'))
    a(f"v_and_b32_e64 v{W+1}, s34, v{T}")
    for j in range(1, 8): shl(j); msk(j)
    for j in range(8): mul(j)
    for j in range(4): cvt(j, QA + j)
    if opt.qd:
        for j in range(2): cvt(4 + j, QB + j)
        a(mf_q('A', 'E'))
        a("s_waitcnt lgkmcnt(0)")
        for j in range(2, 4): cvt(4 + j, QB + j)
    else:
        for j in range(4): cvt(4 + j, QB + j)
        for j in range(4): a(f"v_permlane32_swap_b32 v{QA+j}, v{QB+j}")
        a("s_waitcnt lgkmcnt(0)")
        a("s_nop 0")
        a(mf_q('A', 'E'))
    for f in late[:3]: a(f)
    a(mf_q('B', 'E'))
    for f in late[3:]: a(f)
    a("s_cbranch_scc1 L_startB")
    a("s_setprio 2")
    cut = opt.cut
    pos0 = int(opt.pos.split(',')[0])
    assert cut > pos0
    a.lab("L_first")
    stamp(5)
    for (i, k_, s_) in phase_list('E', opt):
        if not (i == pos0 and k_ == 'm'): a(s_)
        if 'smfmac' in s_ and i > 25: a("s_waitcnt lgkmcnt(0)")
    for (i, k_, s_) in phase_list('O', opt):
        if i < cut: a(s_)
    AL['on'] = False
    pE, pO = phase_list('E', opt), phase_list('O', opt)
    seg = [s_ for (i, k_, s_) in pO if i >= cut] + [s_ for (i, k_, s_) in pE] + [s_ for (i, k_, s_) in pO if i < cut]
    for s_ in seg: a(s_)
    a("s_cbranch_scc0 L_topA2")
    a("s_branch L_topB2")
    a.lab("L_startB")
    a("s_setprio 1")
    dma()
    a("s_cmp_ge_u32 s24, 4")
    a("s_branch L_first")
    def back(n):
        a("s_cmp_ge_u32 s24, 4")
        a(f"s_cbranch_scc0 L_backA{n}")
        a(f"s_branch L_backB{n}")
    a.lab("L_evR")
    a("s_waitcnt vmcnt(0)")
    tr_read()
    back(2)
    a.lab("L_evW")
    a("s_cmp_eq_u32 s29, 31")
    a("s_cbranch_scc1 L_ev31")
    tr_write()
    a(f"ds_add_rtn_u64 {vr(vWE,2)}, v{vSlot}, {vr(vInc8,2)} offset:4096")
    a(f"ds_add_rtn_u32 v{vR}, v{vSlot}, v{vInc8} offset:8192")
    back(3)
    a.lab("L_evD")
    dma()
    back(0)
    a.lab("L_ev31")
    a("s_mov_b64 vcc, 1", "last segment: it runs on into the tail")
    for f in [ROWS] + rd_v('T', 3) + [ALL]: a(f)
    back(3)
    pads = {'A': [int(x) for x in opt.padA.split(',')], 'B': [int(x) for x in opt.padB.split(',')]}
    for role in 'AB':
        a.raw("    .p2align 6")
        pad = pads[role][0]
        if pad: a.raw(f"    .fill {pad}, 4, 0xbf800000    ; never executed: sets the loop's fetch alignment")
        for c in range(NB):
            last = c == NB - 1
            a.lab(f"L_top{role}{c}")
            if role == 'A': a("s_setprio 0")
            a("s_add_u32 s29, s29, 1")
            if opt.itst: a("s_memtime s[48:49]")
            for f in reads(c if c else NB): a(f)
            if c == 0:
                a(bump)
                a(f"s_addk_i32 s28, {NB*ST}")
                a("s_mov_b32 m0, s28")
            if c != 1:
                a(f"s_bitcmp1_b32 {'s38' if role == 'A' else 's39'}, s29")
                a("s_cbranch_scc1 " + ("L_evW" if last else ("L_evD" if c == 0 else "L_evR")))
            a.lab(f"L_back{role}{c}")
            if last: a(f"s_bitcmp1_b32 {'s33' if role == 'A' else 's32'}, s29", "SCC: a barrier follows this " + ("segment" if role == 'A' else "burst"))
            if c and len(pads[role]) > c:
                for k in range(pads[role][c]): a("s_waitcnt lgkmcnt(4)")
            a("s_waitcnt lgkmcnt(0)")
            if opt.itst:
                a("s_mov_b32 m0, s29"); a("s_nop 0"); a("s_movreld_b32 s62, s48"); a("s_mov_b32 m0, s28"); a("s_nop 0"); a("s_nop 0")
            if role == 'B' and last:
                a(f"s_cbranch_scc0 L_segB{c}")
                a("s_barrier")
            a.lab(f"L_seg{role}{c}")
            nm = 0
            for s_ in seg:
                a(s_)
                if role == 'A' and ('smfmac' in s_ or 'x16_bf16' in s_):
                    nm += 1
                    if nm == opt.prn: a("s_setprio 2")
        if role == 'A':
            a("s_cbranch_scc0 L_topA0")
            a("s_cbranch_vccnz L_tail")
            a("s_barrier")
            a("s_branch L_topA0")
        else:
            a("s_cbranch_vccz L_topB0")
    R = Sr['E']
    PK = {'A': Sr['E'] + 8, 'B': Sr['E'] + 14}
    OB = Sr['E'] + 20
    def finish(t, fill=None):
        O = Or[t]
        rc = R + 2 if t == 'A' else R + 4
        a(f"v_pk_mov_b32 {vr(rc,2)}, {vr(O+8,2)}, {vr(O+8,2)} op_sel:[0,0]", "denominator sits in the upper half wave")
        for f in (fill or ["s_nop 1"]): a(f)
        a(f"v_permlane32_swap_b32 v{rc}, v{rc+1}")
        a(f"v_rcp_f32 v{rc}, v{rc+1}")
    def finish2(t):
        O = Or[t]
        rc = R + 2 if t == 'A' else R + 4
        for j in (8, 0, 2, 4, 6):
            a(f"v_pk_mul_f32 {vr(O+j,2)}, {vr(O+j,2)}, {vr(rc,2)} op_sel_hi:[1,0]")
        st = vStA if t == 'A' else vStB
        for j in (4, 0, 1, 2, 3):
            a(f"v_cvt_pk_bf16_f32 v{PK[t]+j}, v{O+2*j}, v{O+2*j+1}")
        a(f"ds_write_b32 v{st}, v{PK[t]+4} offset:16", "upper half's word is overwritten by the next write")
        a(f"ds_write2_b32 v{st}, v{PK[t]}, v{PK[t]+1} offset0:0 offset1:1")
        a(f"ds_write2_b32 v{st}, v{PK[t]+2}, v{PK[t]+3} offset0:2 offset1:3")
        if t == 'A':
            a(f"ds_read_b128 {vr(OB,4)}, v{vStR}")
        else:
            a(f"ds_read_b128 {vr(OB+4,4)}, v{vStR} offset:1024")
            a(f"ds_read_b128 {vr(OB+8,4)}, v{vStR} offset:2048")
    def store(k): return f"buffer_store_dwordx4 {vr(OB+4*k,4)}, v{vDma}, s[20:23], 0 offen offset:{1024*k} sc1"
    a.lab("L_tail")
    if opt.tail == 0:
        tm = {10: mf_pv('A', 'O', 0, 'T'), 18: mf_pv('A', 'O', 1, 'T'), 26: mf_pv('B', 'O', 0, 'T')}
        for i in range(cut, 29):
            if i in tm: a(tm[i])
            a(ex('O', i))
        finish('A', [ex('O', 29), ex('O', 30)])
        a(ex('O', 31).replace("v_exp_f32", "v_exp_f32_e64"))
        stamp(6)
        n0 = len(a.l)
        finish2('A')
        a.l.insert(n0 + 5, "    " + mf_pv('B', 'O', 1, 'T'))
        a("s_nop 0")
    else:
        tm = {10: mf_pv('A', 'O', 0, 'T'), 18: mf_pv('A', 'O', 1, 'T')}
        for i in range(cut, 28):
            if i in tm: a(tm[i])
            if i == 18: a("s_nop 1")
            a(ex('O', i))
        finish('A', [ex('O', 28), ex('O', 29)])
        a(ex('O', 30).replace("v_exp_f32", "v_exp_f32_e64"))
        n0 = len(a.l)
        finish2('A')
        a.l.insert(n0 + 10, "    " + mf_pv('B', 'O', 0, 'T'))
        a.l.insert(n0 + 13, "    " + ex('O', 31).replace("v_exp_f32", "v_exp_f32_e64"))
        stamp(6)
        a(mf_pv('B', 'O', 1, 'T'))
        a("s_nop 9")
    lgkm(0)
    a(store(0))
    finish('B')
    a("s_nop 0")
    finish2('B')
    lgkm(1)
    a(store(1))
    lgkm(0)
    a(store(2))
    stamp(7)
    a("s_setprio 0")
    for t in 'AB':
        for j in range(5): a(f"v_dot2c_f32_bf16 v{R+3 if t == 'A' else R+5}, 0, v{PK[t]+j}")
    a(f"v_cmp_nge_f32 s[36:37], v{R+3}, 1.0")
    a(f"v_cmp_nle_f32 vcc, v{R+3}, s35")
    a("s_or_b64 s[36:37], s[36:37], vcc")
    a(f"v_cmp_nge_f32 s[38:39], v{R+5}, 1.0")
    a(f"v_cmp_nle_f32 vcc, v{R+5}, s35")
    a("s_or_b64 s[36:37], s[36:37], s[38:39]")
    a("s_or_b64 s[36:37], s[36:37], vcc")
    a("s_cbranch_scc1 L_slow")
    a.lab("L_done")
    if opt.amp:
        a("s_waitcnt vmcnt(0)")
        stamp(8)
        a("s_memrealtime s[42:43]")
        a("s_waitcnt lgkmcnt(0)")
        a(f"s_sub_u32 s50, s{60+2*opt.ampb}, s{60+2*opt.ampa}")
        a(f"s_max_u32 s50, s50, {opt.ampbase}")
        a(f"s_sub_u32 s50, s50, {opt.ampbase}")
        a("s_load_dwordx2 s[54:55], s[0:1], 32")
        a(f"s_cmp_lg_u32 s24, {3 if opt.ampr == 'A' else 7}")
        a("s_cbranch_scc1 L_end")
        a("s_add_u32 s51, s50, 0x1000000")
        a("s_mov_b64 exec, 1")
        a("v_mov_b32 v16, s51"); a("v_mov_b32 v17, 0")
        a("s_waitcnt lgkmcnt(0)")
        a("global_atomic_add v18, v17, v16, s[54:55] sc0 sc1")
        a("s_waitcnt vmcnt(0)")
        a("v_readfirstlane_b32 s51, v18")
        a("s_nop 3")
        a("s_add_u32 s50, s50, s51")
        a("s_and_b32 s50, s50, 0xffffff")
        a(f"s_mul_i32 s50, s50, {opt.amp}")
        a("s_lshr_b32 s50, s50, 8")
        a("s_lshr_b32 s51, s51, 24")
        a("s_cmp_lg_u32 s51, 255")
        a("s_cselect_b32 s50, 0, s50")
        a("s_min_u32 s50, s50, 20000")
        a.lab("L_spin")
        a("s_sleep 2")
        a("s_memrealtime s[52:53]")
        a("s_waitcnt lgkmcnt(0)")
        a("s_sub_u32 s51, s52, s42")
        a("s_cmp_lt_u32 s51, s50")
        a("s_cbranch_scc1 L_spin")
    if opt.itst:
        a("s_load_dwordx2 s[40:41], s[0:1], 40")
        for i in range(32): a(f"v_writelane_b32 v16, s{62+i}, {i}")
        a("s_lshl_b32 s50, s2, 3"); a("s_add_u32 s50, s50, s24"); a("s_lshl_b32 s50, s50, 8")
        a(f"v_lshrrev_b32 v1, 2, v{vDma}")
        a("v_add_u32 v1, s50, v1")
        a("s_waitcnt lgkmcnt(0)")
        a("global_store_dword v1, v16, s[40:41]")
    if opt.stamp:
        a("s_mov_b64 exec, 1")
        a("s_waitcnt vmcnt(0)")
        stamp(8)
        a("s_memrealtime s[58:59]")
        a("s_load_dwordx2 s[40:41], s[0:1], 40")
        a("s_getreg_b32 s42, hwreg(HW_REG_HW_ID)")
        a("s_getreg_b32 s43, hwreg(HW_REG_XCC_ID)")
        a("s_waitcnt lgkmcnt(0)")
        for i, sr in enumerate((56, 58, 42, 43, 60, 62, 64, 66, 68, 70, 72, 74, 76)):
            a(f"v_mov_b32 v{16+i}, s{sr}")
        a("s_lshl_b32 s50, s2, 3"); a("s_add_u32 s50, s50, s24"); a("s_lshl_b32 s50, s50, 6")
        a("v_mov_b32 v1, s50")
        for i in range(4): a(f"global_store_dwordx4 v1, v[{16+4*i}:{19+4*i}], s[40:41] offset:{16*i}")
    a.lab("L_end")
    a("s_endpgm")
    a.lab("L_slow")
    a("s_waitcnt vmcnt(0)")
    mA, mB = 0, vSlot
    def scores():
        a(f"buffer_load_dword v{KX}, v{vGX}, s[16:19], s29 offen offset:32")
        a(f"buffer_load_dwordx4 {vr(Kr['E'],4)}, v{vGK}, s[16:19], s29 offen")
        a(f"buffer_load_dwordx4 {vr(Kr['O'],4)}, v{vGK}, s[16:19], s29 offen offset:36")
        a("s_waitcnt vmcnt(0) lgkmcnt(0)")
        a(mf_x('E')); a(mf_x('O'))
        a("s_nop 15"); a("s_nop 3")
        for par in 'EO':
            for t in 'AB': a(mf_q(t, par))
        a("s_nop 15")
    def step(lab):
        a(f"s_add_u32 s29, s29, {ST}")
        a("s_cmp_lg_u32 s29, s18")
        a(f"s_cbranch_scc1 {lab}")
    a("s_mov_b32 s29, 0")
    a(f"v_mov_b32 v{mA}, 0xff800000"); a(f"v_mov_b32 v{mB}, 0xff800000")
    a.lab("L_max")
    scores()
    for par in 'EO':
        for t, m in (('A', mA), ('B', mB)):
            s = Sr[par] + (16 if t == 'B' else 0)
            for j in range(0, 16, 2): a(f"v_max3_f32 v{m}, v{m}, v{s+j}, v{s+j+1}")
    step("L_max")
    for m in (mA, mB):
        a(f"v_mov_b32 v{vT2}, v{m}")
        a("s_nop 1")
        a(f"v_permlane32_swap_b32 v{vT2}, v{m}")
        a("s_nop 1")
        a(f"v_max_f32 v{m}, v{m}, v{vT2}")
    a(f"v_subrev_u32 v{vV}, {(32-NB)*ST}, v{vV}")
    a("s_mov_b32 s29, 0")
    for r in range(120, 152): a(f"v_mov_b32 v{r}, 0")
    a.lab("L_acc")
    for f in [ROWS] + rd_v('E', 0) + rd_v('O', 0) + [ALL]: a(f)
    scores()
    for par in 'EO':
        for t, m in (('A', mA), ('B', mB)):
            s = Sr[par] + (16 if t == 'B' else 0)
            for j in range(16): a(f"v_sub_f32 v{s+j}, v{s+j}, v{m}")
            for j in range(16): a(f"v_exp_f32 v{s+j}, v{s+j}")
    a(f"v_add_u32 v{vV}, {ST}, v{vV}")
    a("s_nop 0")
    for par in 'EO':
        for t in 'AB':
            for j in range(2): a(mf_pv(t, par, j))
    step("L_acc")
    a("s_nop 15")
    for t in 'AB':
        finish(t); a("s_nop 0"); finish2(t)
    a("s_waitcnt lgkmcnt(0)")
    for k in range(3): a(store(k))
    a("s_branch L_done")
    a.raw(f""".section .rodata,"a"
.p2align 6
.amdhsa_kernel {NAME}_kernel
  .amdhsa_next_free_vgpr {NV}
  .amdhsa_next_free_sgpr {100 if (opt.stamp or opt.amp or opt.itst) else 48}
  .amdhsa_accum_offset {NV}
  .amdhsa_group_segment_fixed_size 0
  .amdhsa_kernarg_size 48
  .amdhsa_user_sgpr_count 2
  .amdhsa_user_sgpr_kernarg_segment_ptr 1
  .amdhsa_system_sgpr_workgroup_id_x 1
.end_amdhsa_kernel""")
    return a.text()

def parse(argv):
    p = argparse.ArgumentParser()
    p.add_argument('-o', default=f"cdna_kernels/{NAME}.s")
    p.add_argument('--cut', type=int, default=4)
    p.add_argument('--pos', default='2,5,15,18,21,27,24')
    p.add_argument('--fill', type=int, default=0)
    p.add_argument('--prn', type=int, default=1)
    p.add_argument('--tail', type=int, default=1)
    p.add_argument('--qd', type=int, default=1)
    p.add_argument('--dpf', default='')
    p.add_argument('--tlb', type=int, default=0)
    p.add_argument('--pf', type=int, default=1)
    p.add_argument('--xs', type=float, default=35)
    p.add_argument('--padA', default='0')
    p.add_argument('--padB', default='1')
    p.add_argument('--stamp', type=int, default=0)
    p.add_argument('--itst', type=int, default=0)
    p.add_argument('--amp', type=int, default=0)
    p.add_argument('--ampt', type=int, default=0)
    p.add_argument('--ampa', type=int, default=0)
    p.add_argument('--ampb', type=int, default=8)
    p.add_argument('--ampr', default='')
    p.add_argument('--ampbase', type=int, default=44000)
    return p.parse_args(argv)

if __name__ == '__main__':
    opt = parse(sys.argv[1:])
    open(opt.o, 'w').write(gen(opt))
```

```python
import sys, struct, math, argparse

NAME = "standalone__fused_io_aware_attn__prompt"
HB = 73728
ST = 2304
KBASE = 16384
VBASE = KBASE + 65536
ABASE = VBASE + HB
LDS = ABASE + 4096
NB = 4

def f2u(x): return struct.unpack('<I', struct.pack('<f', x))[0]
CSCALE = f2u(math.log2(math.e) / math.sqrt(18.0))

vSlot, vK, vV, vInc, vIdx, vQo, vDma, vT2 = 1, 2, 3, 4, 6, 7, 14, 15
KX, QX, KX0 = 8, 10, 12
Kr = {'E': 16, 'O': 20}
Qr = {'A': 24, 'B': 28}
K0 = {'E': 32, 'O': 36}
Vr = {('E', 0): 40, ('E', 1): 44, ('O', 0): 48, ('O', 1): 52, ('T', 0): 168, ('T', 1): 172}
Sr = {'E': 56, 'O': 88}
Or = {'A': 120, 'B': 136}
TR = 152
vWE, vWO, vF, vR, vStA, vStB, vStR, vGK, vGX = 176, 177, 178, 180, 181, 182, 183, 184, 185
vQ2, vF2, vFc = 186, 179, 187
NV = 188
AL = dict(on=False)
def kx(): return KX0 if AL['on'] else KX
def kr(par): return K0[par] if AL['on'] else Kr[par]
def vv(par, j): return Vr[('T', j)] if (AL['on'] and par == 'E') else Vr[(par, j)]
def vr(b, n): return f"v[{b}:{b+n-1}]"

class Asm:
    def __init__(self): self.l = []
    def __call__(self, s, c=None): self.l.append("    " + s + (f"    ; {c}" if c else ""))
    def lab(self, s): self.l.append(s + ":")
    def raw(self, s): self.l.append(s)
    def note(self, s): self.l.append("    ; " + s)
    def text(self): return "\n".join(x.rstrip() for x in self.l) + "\n"

def mf_x(par):
    return f"v_mfma_f32_32x32x4_2b_bf16 {vr(Sr[par],32)}, {vr(kx(),2)}, {vr(QX,2)}, 0 cbsz:1 abid:{0 if par == 'E' else 1}"
def mf_q(t, par):
    s = Sr[par] + (16 if t == 'B' else 0)
    return f"v_mfma_f32_32x32x16_bf16 {vr(s,16)}, {vr(kr(par),4)}, {vr(Qr[t],4)}, {vr(s,16)}"
def mf_pv(t, par, j, vs=None):
    s = Sr[par] + (16 if t == 'B' else 0) + 8 * j
    return f"v_smfmac_f32_32x32x32_bf16 {vr(Or[t],16)}, {vr(vv(vs or par,j),4)}, {vr(s,8)}, v{vIdx}"
def ex(par, i): return f"v_exp_f32 v{Sr[par]+i}, v{Sr[par]+i}"
def rd_k(u):
    return [f"ds_read_addtid_b32 v{kx()} offset:{u*512+256}", f"ds_read_addtid_b32 v{kx()+1} offset:{u*512}",
            f"ds_read_b128 {vr(kr('E'),4)}, v{vK} offset:{u*2048}", f"ds_read_b128 {vr(kr('O'),4)}, v{vK} offset:{u*2048+1024}"]
def rd_v(par, u):
    return [f"ds_read_b128 {vr(vv(par,j),4)}, v{vV} offset:{u*ST + (0 if par == 'E' else 1152) + 576*j}" for j in range(2)]
ROWS = "s_mov_b64 exec, s[12:13]"
ALL = "s_mov_b64 exec, -1"

def phase_list(par, opt):
    oth = 'O' if par == 'E' else 'E'
    pos = [int(x) for x in opt.pos.split(',')]
    mf = {pos[0]: mf_pv('B', oth, 1), pos[1]: mf_x(oth), pos[2]: mf_pv('A', par, 0), pos[3]: mf_pv('A', par, 1),
          pos[4]: mf_q('A', oth), pos[5]: mf_pv('B', par, 0), pos[6]: mf_q('B', oth)}
    out = []
    for i in range(32):
        if i in mf: out.append((i, 'm', mf[i]))
        if opt.fill and i == pos[3]: out.append((i, 'n', f"s_nop {opt.fill-1}"))
        out.append((i, 'e', ex(par, i)))
    return out

def gen(opt):
    CA, CB, BIG = [float(x) for x in opt.cst.split(',')]
    assert CA * CB - BIG == opt.xs
    a = Asm()
    def stamp(i):
        if opt.stamp and (opt.stamp != 3 or i in (0, 7, 8)): a(f"s_memtime s[{60+2*i}:{61+2*i}]")
        if opt.amp and i in (opt.ampa, opt.ampb): a(f"{'s_memrealtime' if opt.ampt else 's_memtime'} s[{60+2*i}:{61+2*i}]")
    smem = opt.stamp == 1 or (opt.amp and not (opt.ampa in (0, 7) and opt.ampb in (7, 8)))
    def lgkm(n): a(f"s_waitcnt lgkmcnt({0 if smem else n})")
    a.raw(f"""; Fused attention forward, B=2 H=32 S=2048 D=18, bf16 in/out (emitted by my own generator script).
; @launch grid=(256,1,1) block=(512,1,1) lds={LDS}
.amdgcn_target "amdgcn-amd-amdhsa--gfx950"
.text
.globl {NAME}_kernel
.p2align 8
.type {NAME}_kernel,@function
{NAME}_kernel:""")
    stamp(0)
    if opt.stamp: a("s_memrealtime s[56:57]")
    a("s_load_dwordx8 s[4:11], s[0:1], 0", "q, k, v, out")
    if opt.pf:
        a("s_getpc_b64 s[36:37]")
        a("v_mad_u64_u32 v[16:17], vcc, v0, 16, s[36:37]")
        a(f"global_load_ubyte v{vT2}, v[16:17], off offset:116", "pulls this kernel's own code lines into L2")
    a("v_readfirstlane_b32 s24, v0", "64 * wave")
    a("s_and_b32 s3, s2, 7")
    a("s_lshr_b32 s25, s2, 3")
    a("s_lshl_b32 s3, s3, 5")
    a("s_add_u32 s3, s3, s25", "4 * head + query block")
    a("s_cmpk_ge_u32 s2, 256")
    a("s_cbranch_scc1 L_end")
    if not opt.tlb:
        a("s_cmpk_ge_u32 s24, 256")
        a("s_cbranch_scc1 L_setup", "role B (waves 4..7) starts its loads after role A's")
    t0, t1 = Sr['E'] + 8, Sr['E'] + 9
    C = Sr['E']
    t3, t4, t5 = C + 4, C + 5, C + 6
    T = Sr['O']
    def qloads():
        a(f"global_load_dwordx2 {vr(T+8,2)}, v{vQo}, s[4:5] offset:28")
        if opt.qd:
            a(f"global_load_dwordx4 {vr(T,4)}, v{vQ2}, s[4:5]")
            a(f"global_load_dwordx4 {vr(T+4,4)}, v{vQ2}, s[4:5] offset:1152")
        else:
            a(f"global_load_dwordx4 {vr(T,4)}, v{vQo}, s[4:5]")
            a(f"global_load_dwordx4 {vr(T+4,4)}, v{vQo}, s[4:5] offset:16")
    def qaddr2():
        a(f"v_mul_u32_u24 v{vQ2}, 1136, v{t1}")
        a(f"v_sub_u32 v{vQ2}, v{vQo}, v{vQ2}", "dims 8h..8h+7 of query l%32")
    def qaddr():
        a(f"v_lshl_add_u32 v{vQo}, s3, 9, v0")
        a(f"v_mul_u32_u24 v{vQo}, 36, v{vQo}", "one Q row per lane")
    def gaddr():
        a(f"v_and_b32 v{t0}, 31, v0", "MFMA row m = key pair")
        a(f"v_bfe_u32 v{t1}, v0, 5, 1", "half wave h")
        a(f"v_mul_u32_u24 v{vGK}, 72, v{t0}")
        a(f"v_mad_u32_u24 v{vGX}, v{t1}, 36, 28")
        a(f"v_add_u32 v{vGX}, v{vGX}, v{vGK}", "dims 14..17 of the even (h=0) / odd (h=1) key")
        a(f"v_lshl_add_u32 v{vGK}, v{t1}, 4, v{vGK}", "dims 8h..8h+7 of the even key")
    if opt.dpf:
        a.note("inside the first instruction cache lines: one word per 36-byte row starts every line of the first loads")
        qaddr()
        a("s_andn2_b32 s25, s3, 3")
        a(f"v_lshl_add_u32 v{t4}, s25, 9, v0")
        a(f"v_mul_u32_u24 v{t4}, 36, v{t4}")
        a("s_waitcnt lgkmcnt(0)")
        stamp(1)
        for ch in opt.dpf:
            if ch == 'v': a(f"global_load_dword v{TR}, v{t4}, s[8:9]")
            if ch == 'k': a(f"global_load_dword v{TR+1}, v{t4}, s[6:7]")
            if ch == 'q': a(f"global_load_dword v{TR+2}, v{vQo}, s[4:5]")
    a("s_lshr_b32 s25, s3, 2")
    a(f"s_mul_i32 s25, s25, {HB}")
    a("s_mul_i32 s26, s24, 20")
    a("s_add_u32 s26, s26, s25")
    a(f"v_lshl_add_u32 v{t3}, v0, 4, s26")
    a("s_mul_i32 s26, s24, 36", "super tile `wave` of V and of K")
    a(f"s_add_u32 m0, s26, {VBASE}")
    if opt.tlb: a("s_cmpk_ge_u32 s24, 256")
    if opt.dpf: a("s_nop 0")
    else:
        a("s_waitcnt lgkmcnt(0)")
        stamp(1)
    if opt.tlb:
        if opt.tlb & 1: a("s_load_dword s40, s[6:7], s25", "starts the address translation of K early")
        if opt.tlb & 2: a("s_load_dword s41, s[4:5], s25", "and of Q")
        a("s_cbranch_scc1 L_setup", "role B (waves 4..7) starts its loads after role A's")
    a(f"global_load_lds_dwordx4 v{t3}, s[8:9]")
    a(f"global_load_lds_dwordx4 v{t3}, s[8:9] offset:1024")
    a("s_mov_b64 exec, 0xffff")
    a(f"global_load_lds_dwordx4 v{t3}, s[8:9] offset:2048")
    a(ALL)
    a("s_add_u32 s25, s25, s26")
    a("s_add_u32 s42, s6, s25")
    a("s_addc_u32 s43, s7, 0")
    a("s_lshl_b32 s26, s24, 5")
    a(f"s_add_u32 m0, s26, {KBASE}")
    gaddr()
    a(f"global_load_lds_dwordx4 v{vGK}, s[42:43]")
    a(f"s_add_u32 m0, s26, {KBASE + 988}")
    qaddr()
    a(f"global_load_lds_dwordx4 v{vGK}, s[42:43] offset:36")
    a("s_lshl_b32 m0, s24, 3")
    qaddr2()
    a(f"global_load_lds_dword v{vGX}, s[42:43]")
    a("s_add_u32 m0, m0, 252")
    a("s_nop 0")
    a(f"global_load_lds_dword v{vGX}, s[42:43] offset:4")
    qloads()
    if opt.amp: stamp(11)
    a.lab("L_setup")
    if opt.stamp:
        if opt.stamp == 3:
            for i in range(62, 74): a(f"s_mov_b32 s{i}, 0")
    qaddr(); gaddr()
    if opt.qd: qaddr2()
    a(f"v_lshlrev_b32 v{vSlot}, 3, v0")
    a("v_and_b32 v0, 63, v0")
    a("s_lshr_b32 s24, s24, 6", "wave id")
    a("s_lshr_b32 s25, s3, 2")
    a(f"s_mul_i32 s25, s25, {HB}", "head byte offset")
    a("s_lshl3_add_u32 s26, s3, s24")
    a(f"s_mul_i32 s26, s26, {ST}", "output byte offset of this wave")
    a(f"v_lshlrev_b32 v{vDma}, 4, v0")
    a("s_cmp_lt_u32 s24, 4")
    a("s_cselect_b32 s28, 8, 0")
    a("s_add_u32 s28, s28, s24")
    a(f"s_mul_i32 s27, s28, {ST}", "byte offset of this wave's next super tile to load")
    a("s_lshl_b32 s40, s28, 9")
    a(f"s_mov_b32 s18, {HB}")
    a("s_mov_b32 s19, 0x00020000")
    a(f"s_mov_b32 s46, {HB}")
    a("s_mov_b32 s47, 0x00020000")
    a(f"s_movk_i32 s22, {ST}")
    a("s_mov_b32 s23, 0x00020000")
    def dma():
        a(f"s_add_u32 m0, s27, {VBASE}")
        a("s_mov_b64 exec, 0xffff")
        a(f"buffer_load_dwordx4 v{vDma}, s[44:47], s27 offen offset:2048 lds")
        a(ALL)
        a(f"buffer_load_dwordx4 v{vDma}, s[44:47], s27 offen lds")
        a(f"buffer_load_dwordx4 v{vDma}, s[44:47], s27 offen offset:1024 lds")
        a(f"s_lshl2_add_u32 m0, s40, {KBASE}")
        a("s_nop 0")
        a(f"buffer_load_dwordx4 v{vGK}, s[16:19], s27 offen lds")
        a("s_add_u32 m0, m0, 988")
        a("s_nop 0")
        a(f"buffer_load_dwordx4 v{vGK}, s[16:19], s27 offen offset:36 lds")
        a("s_mov_b32 m0, s40")
        a("s_addk_i32 s40, 4096")
        a(f"buffer_load_dword v{vGX}, s[16:19], s27 offen lds")
        a("s_add_u32 m0, m0, 252")
        a("s_nop 0")
        a(f"buffer_load_dword v{vGX}, s[16:19], s27 offen offset:4 lds")
        a("s_mov_b32 m0, s28")
        a(f"s_add_u32 s27, s27, {8*ST}")
    def kfix(k):
        a(f"ds_write_b16_d16_hi v{vF}, v{vFc} offset:{k*2048}")
        a(f"ds_write_b16 v{vF2}, v{vFc} offset:{k*512}")
    def tr_read(k=0):
        for u in range(2):
            for j in range(2):
                for p in range(2):
                    a(f"ds_read_b64_tr_b16 {vr(TR+8*u+4*j+2*p,2)}, v{vR} offset:{k*ST + 40*u + (16*j+4*p)*72}")
    def tr_write(k=0):
        a(ROWS)
        for j in range(2): a(f"ds_write_b128 v{vWE}, {vr(TR+4*j,4)} offset:{k*ST + 576*j}")
        a("s_mov_b64 exec, s[14:15]")
        for j in range(2): a(f"ds_write_b128 v{vWO}, {vr(TR+8+4*j,4)} offset:{k*ST + 576*j}")
        a(ALL)
    if not opt.tlb: a("s_waitcnt lgkmcnt(0)")
    a("s_add_u32 s16, s6, s25")
    a("s_addc_u32 s17, s7, 0")
    a("s_add_u32 s44, s8, s25")
    a("s_addc_u32 s45, s9, 0")
    a("s_add_u32 s20, s10, s26")
    a("s_addc_u32 s21, s11, 0")
    a(f"v_cmp_eq_u32 vcc, 20, v{t0}")
    a(f"v_mov_b32 v{QX}, 0"); a(f"v_mov_b32 v{QX+1}, 0")
    a(f"v_mov_b32 v{t4}, 0x3f803f80")
    a("s_mov_b32 s12, 0x0003ffff"); a("s_mov_b32 s13, 0x0003ffff")
    a("s_mov_b32 s14, 0x00c0ffff"); a("s_mov_b32 s15, 0x00c0ffff")
    a(f"v_cndmask_b32 v40, 0, v{t4}, vcc")
    a(f"v_cndmask_b32 v41, 0, v{t4}, vcc")
    for r in list(range(42, 56, 2)) + list(range(168, 176, 2)): a(f"v_pk_mov_b32 {vr(r,2)}, v[40:41], v[40:41]")
    a(f"v_mfma_f32_32x32x4_2b_bf16 {vr(120,32)}, {vr(QX,2)}, {vr(QX,2)}, 0", "zeroes the accumulators")
    a(f"v_and_b32 v{t3}, 3, v0")
    a(f"v_bfe_u32 v{t4}, v0, 3, 1")
    a(f"v_lshl_add_u32 v{t3}, v{t4}, 2, v{t3}")
    a(f"v_and_b32 v{t4}, 4, v0")
    a(f"v_lshlrev_b32 v{t4}, 1, v{t4}")
    a(f"v_sub_u32 v{t3}, v{t3}, v{t4}")
    a(f"v_add_u32 v{t3}, 8, v{t3}")
    a(f"v_cmp_lt_u32 vcc, 15, v{t0}")
    a(f"v_and_b32 v{t4}, 1, v0")
    a(f"v_add_u32 v{t4}, 16, v{t4}")
    a(f"v_cndmask_b32 v{t3}, v{t3}, v{t4}, vcc")
    a(f"v_mul_u32_u24 v{t5}, 18, v{t1}")
    a("s_and_b32 s29, s24, 3")
    a(f"s_mul_i32 s29, s29, {ST}")
    a(f"s_mov_b32 s28, {VBASE}")
    a("s_add_u32 s29, s29, s28", "V super tile wave & 3")
    for sub, dst, extra in ((4, vWE, 0), (2, vWO, 72)):
        a(f"v_subrev_u32 v{t4}, {sub}, v{t3}")
        a(f"v_add_u32 v{dst}, 18, v{t4}")
        a(f"v_min_u32 v{t4}, v{t4}, v{dst}")
        a(f"v_add_u32 v{t4}, v{t4}, v{t5}")
        if extra: a(f"v_add_u32 v{t4}, {extra}, v{t4}")
        else: a(f"v_lshl_add_u32 v{vV}, v{t4}, 4, s28")
        a(f"v_lshl_add_u32 v{dst}, v{t4}, 4, s29")
    a(f"v_bfe_u32 v{t3}, v0, 2, 2")
    a(f"v_lshl_add_u32 v{t3}, v{t1}, 3, v{t3}")
    a(f"v_mul_u32_u24 v{t3}, 72, v{t3}")
    a(f"v_and_b32 v{t4}, 1, v0")
    a(f"v_lshlrev_b32 v{t4}, 4, v{t4}")
    a(f"v_sub_u32 v{t3}, v{t3}, v{t4}")
    a(f"v_and_b32 v{t4}, 18, v0")
    a(f"v_lshlrev_b32 v{t4}, 2, v{t4}")
    a(f"v_min_u32 v{t4}, 16, v{t4}")
    a(f"v_add3_u32 v{t3}, v{t4}, v{t3}, s29")
    a(f"v_add_u32 v{t4}, 16, v{t3}")
    a(f"v_subrev_u32 v{t3}, 8, v{t3}")
    a("s_mov_b32 vcc_lo, 0xaaaa0000"); a("s_mov_b32 vcc_hi, 0xaaaa0000")
    a(f"v_cndmask_b32 v{vR}, v{t4}, v{t3}, vcc")
    a(f"v_mov_b32 v{vFc}, {(0x3f80 << 16) | (f2u(CA) >> 16):#x}")
    a("s_lshl_b32 s28, s24, 11")
    a(f"s_addk_i32 s28, {KBASE + 512 + 14}")
    a(f"v_lshl_add_u32 v{vF}, v{t1}, 9, s28")
    a(f"v_add_u32 v{vF}, v{vF}, v{vDma}")
    a("s_lshl_b32 s28, s24, 9")
    a(f"v_lshl_add_u32 v{vF2}, v0, 2, s28")
    a(f"v_mov_b32 v{vIdx}, 0xdddd", "sparse index: elements 1 and 3 of every group of four")
    a(f"v_add_u32 v{vK}, {KBASE}, v{vDma}")
    a(f"v_mov_b32 v{vInc}, {NB*2048}")
    a(f"v_mov_b32 v{vInc+1}, {NB*ST}")
    a(f"v_add_u32 v{C+2}, v{vK}, v{vInc}")
    a(f"v_add_u32 v{C+3}, v{vV}, v{vInc+1}")
    a(f"v_add_u32 v{vSlot}, {ABASE}, v{vSlot}")
    a(f"ds_write_b64 v{vSlot}, {vr(C+2,2)}")
    a(f"s_mul_i32 s28, s24, {ST}")
    a(f"s_addk_i32 s28, {KBASE}")
    a(f"v_mul_u32_u24 v{vStA}, 36, v{t0}")
    a(f"v_lshlrev_b32 v{t4}, 4, v{t1}")
    a(f"v_sub_u32 v{vStA}, v{vStA}, v{t4}")
    a(f"v_add3_u32 v{vStA}, v{vStA}, 16, s28")
    a(f"v_add_u32 v{vStB}, 1152, v{vStA}")
    a(f"v_add_u32 v{vStR}, s28, v{vDma}")
    a(f"s_mov_b32 s30, {CSCALE:#x}", "log2(e)/sqrt(18)"); a(f"s_mov_b32 s31, {CSCALE:#x}")
    a("s_mov_b32 s28, 0")
    a("s_mov_b32 m0, 0")
    a("s_mov_b32 s29, 1", "super tile counter")
    a("s_mov_b32 s32, 0x8088", "barrier schedule")
    a("s_mov_b32 s33, 0x80008088")
    a("s_mov_b32 s38, 0x8000ddd0", "iterations with extra work, role A")
    a("s_mov_b32 s39, 0x8000dddc", "role B")
    a("s_mov_b32 s34, 0xffff0000")
    a(f"s_mov_b32 s26, {f2u(CB):#x}")
    a("s_mov_b32 s36, 0")
    a("s_mov_b32 s37, -1", "upper half wave")
    a(f"v_mov_b32 v{T+30}, {f2u(-BIG):#x}")
    a("s_mov_b32 s35, 0x7b800000", "2^120")
    a("s_mov_b64 vcc, 0")
    a("s_cmp_ge_u32 s24, 4", "SCC = role B (kept until the loops)")
    if opt.amp: stamp(9)
    a("s_waitcnt vmcnt(7)")
    a("s_barrier", "V super tiles 0..3 are in: role B transposes them and starts its Q loads")
    if opt.amp: stamp(10)
    a("s_cbranch_scc0 L_kA")
    tr_read()
    qloads()
    a("s_waitcnt lgkmcnt(0)")
    tr_write()
    for r in (vR, vWE, vWO): a(f"v_add_u32 v{r}, {4*ST}, v{r}")
    a("s_branch L_noq")
    a.raw("    .p2align 3")
    a.lab("L_kA")
    a("s_nop 0")
    a("s_waitcnt vmcnt(3)")
    kfix(0)
    a.lab("L_noq")
    a("s_waitcnt lgkmcnt(0)")
    stamp(2)
    a("s_barrier", "K super tiles 0..3 are in, V super tiles 0..3 are transposed")
    bump = f"ds_add_rtn_u64 {vr(vK,2)}, v{vSlot}, {vr(vInc,2)}"
    def reads(u): return rd_k(u) + [ROWS] + rd_v('O', u-1) + rd_v('E', u) + [ALL]
    late = reads(1)
    AL['on'] = True
    for f in rd_k(0) + [ROWS, "s_setprio 3"] + rd_v('E', 0) + [ALL]: a(f)
    stamp(3)
    W = T + 10
    QA, QB = Qr['A'], Qr['B']
    def shl(j): a(f"v_lshlrev_b32 v{W+2*j}, 16, v{T+j}")
    def msk(j): a(f"v_and_b32 v{W+2*j+1}, s34, v{T+j}")
    def mul(j): a(f"v_pk_mul_f32 {vr(W+2*j,2)}, {vr(W+2*j,2)}, s[30:31]")
    def cvt(j, d): a(f"v_cvt_pk_bf16_f32 v{d}, v{W+2*j}, v{W+2*j+1}")
    a("s_waitcnt vmcnt(0)")
    stamp(4)
    shl(9); msk(9); msk(8)
    a(f"v_mul_f32 v{W+17}, s30, v{W+17}")
    mul(9); cvt(9, QX)
    a(f"v_cvt_pk_bf16_f32 v{QX+1}, s26, v{W+17}")
    shl(0)
    lgkm(3)
    a(mf_x('E'))
    a(f"v_and_b32_e64 v{W+1}, s34, v{T}")
    for j in range(1, 8): shl(j); msk(j)
    for j in range(8): mul(j)
    for j in (3, 7): a(f"v_cndmask_b32 v{W+2*j+1}, v{W+2*j+1}, v{T+30}, s[36:37]")
    for j in range(4): cvt(j, QA + j)
    if opt.qd:
        for j in range(2): cvt(4 + j, QB + j)
        a(mf_q('A', 'E'))
        a("s_waitcnt lgkmcnt(0)")
        for j in range(2, 4): cvt(4 + j, QB + j)
    else:
        for j in range(4): cvt(4 + j, QB + j)
        for j in range(4): a(f"v_permlane32_swap_b32 v{QA+j}, v{QB+j}")
        a("s_waitcnt lgkmcnt(0)")
        a("s_nop 0")
        a(mf_q('A', 'E'))
    for f in late[:4]: a(f)
    a(mf_q('B', 'E'))
    for f in late[4:]: a(f)
    a("s_cbranch_scc1 L_startB")
    a("s_setprio 2")
    cut = opt.cut
    pos0 = int(opt.pos.split(',')[0])
    assert cut > pos0
    a.lab("L_first")
    stamp(5)
    for (i, k_, s_) in phase_list('E', opt):
        if not (i == pos0 and k_ == 'm'): a(s_)
        if 'smfmac' in s_ and i > 25: a("s_waitcnt lgkmcnt(0)")
    for (i, k_, s_) in phase_list('O', opt):
        if i < cut: a(s_)
    AL['on'] = False
    pE, pO = phase_list('E', opt), phase_list('O', opt)
    seg = [s_ for (i, k_, s_) in pO if i >= cut] + [s_ for (i, k_, s_) in pE] + [s_ for (i, k_, s_) in pO if i < cut]
    for s_ in seg: a(s_)
    a("s_cbranch_scc0 L_topA2")
    a("s_branch L_topB2")
    a.lab("L_startB")
    a("s_setprio 1")
    dma()
    a("s_cmp_ge_u32 s24, 4")
    a("s_branch L_first")
    def back(n):
        a("s_cmp_ge_u32 s24, 4")
        a(f"s_cbranch_scc0 L_backA{n}")
        a(f"s_branch L_backB{n}")
    a.lab("L_evR")
    a("s_waitcnt vmcnt(0) lgkmcnt(5)")
    for n, k in ((6, 8), (10, 16), (14, 24)):
        a(f"s_cmp_eq_u32 s29, {n}")
        a(f"s_cbranch_scc1 L_evR{k}")
    for k in (0, 8, 16, 24):
        a.lab(f"L_evR{k}")
        kfix(k); tr_read(k)
        back(2)
    a.lab("L_evW")
    for n, lab in ((7, "L_evW8"), (11, "L_evW16"), (15, "L_evW24"), (31, "L_ev31")):
        a(f"s_cmp_eq_u32 s29, {n}")
        a(f"s_cbranch_scc1 {lab}")
    for k in (0, 8, 16, 24):
        a.lab(f"L_evW{k}")
        tr_write(k)
        back(3)
    a.lab("L_evD")
    dma()
    back(0)
    a.lab("L_ev31")
    a("s_mov_b64 vcc, 1", "last segment: it runs on into the tail")
    for f in [ROWS] + rd_v('T', 3) + [ALL]: a(f)
    back(3)
    pads = {'A': [int(x) for x in opt.padA.split(',')], 'B': [int(x) for x in opt.padB.split(',')]}
    for role in 'AB':
        a.raw("    .p2align 6")
        pad = pads[role][0]
        if pad: a.raw(f"    .fill {pad}, 4, 0xbf800000    ; never executed: sets the loop's fetch alignment")
        for c in range(NB):
            last = c == NB - 1
            a.lab(f"L_top{role}{c}")
            if role == 'A': a("s_setprio 0")
            a("s_add_u32 s29, s29, 1")
            if opt.itst: a("s_memtime s[48:49]")
            for f in reads(c if c else NB): a(f)
            if c == 0:
                a(bump)
                a(f"s_addk_i32 s28, {NB*512}")
                a("s_mov_b32 m0, s28")
            if c != 1:
                a(f"s_bitcmp1_b32 {'s38' if role == 'A' else 's39'}, s29")
                a("s_cbranch_scc1 " + ("L_evW" if last else ("L_evD" if c == 0 else "L_evR")))
            a.lab(f"L_back{role}{c}")
            if last: a(f"s_bitcmp1_b32 {'s33' if role == 'A' else 's32'}, s29", "SCC: a barrier follows this " + ("segment" if role == 'A' else "burst"))
            if c and len(pads[role]) > c:
                for k in range(pads[role][c]): a("s_waitcnt lgkmcnt(4)")
            a("s_waitcnt lgkmcnt(0)")
            if opt.itst:
                a("s_mov_b32 m0, s29"); a("s_nop 0"); a("s_movreld_b32 s62, s48"); a("s_mov_b32 m0, s28"); a("s_nop 0"); a("s_nop 0")
            if role == 'B' and last:
                a(f"s_cbranch_scc0 L_segB{c}")
                a("s_barrier")
            a.lab(f"L_seg{role}{c}")
            nm = 0
            for s_ in seg:
                a(s_)
                if role == 'A' and ('smfmac' in s_ or 'x16_bf16' in s_):
                    nm += 1
                    if nm == opt.prn: a("s_setprio 2")
        if role == 'A':
            a("s_cbranch_scc0 L_topA0")
            a("s_cbranch_vccnz L_tail")
            a("s_barrier")
            a("s_branch L_topA0")
        else:
            a("s_cbranch_vccz L_topB0")
    R = Sr['E']
    PK = {'A': Sr['E'] + 8, 'B': Sr['E'] + 14}
    OB = Sr['E'] + 20
    def finish(t, fill=None):
        O = Or[t]
        rc = R + 2 if t == 'A' else R + 4
        a(f"v_pk_mov_b32 {vr(rc,2)}, {vr(O+8,2)}, {vr(O+8,2)} op_sel:[0,0]", "denominator sits in the upper half wave")
        for f in (fill or ["s_nop 1"]): a(f)
        a(f"v_permlane32_swap_b32 v{rc}, v{rc+1}")
        a(f"v_rcp_f32 v{rc}, v{rc+1}")
    def finish2(t):
        O = Or[t]
        rc = R + 2 if t == 'A' else R + 4
        for j in (8, 0, 2, 4, 6):
            a(f"v_pk_mul_f32 {vr(O+j,2)}, {vr(O+j,2)}, {vr(rc,2)} op_sel_hi:[1,0]")
        st = vStA if t == 'A' else vStB
        for j in (4, 0, 1, 2, 3):
            a(f"v_cvt_pk_bf16_f32 v{PK[t]+j}, v{O+2*j}, v{O+2*j+1}")
        a(f"ds_write_b32 v{st}, v{PK[t]+4} offset:16", "upper half's word is overwritten by the next write")
        a(f"ds_write2_b32 v{st}, v{PK[t]}, v{PK[t]+1} offset0:0 offset1:1")
        a(f"ds_write2_b32 v{st}, v{PK[t]+2}, v{PK[t]+3} offset0:2 offset1:3")
        if t == 'A':
            a(f"ds_read_b128 {vr(OB,4)}, v{vStR}")
        else:
            a(f"ds_read_b128 {vr(OB+4,4)}, v{vStR} offset:1024")
            a(f"ds_read_b128 {vr(OB+8,4)}, v{vStR} offset:2048")
    def store(k): return f"buffer_store_dwordx4 {vr(OB+4*k,4)}, v{vDma}, s[20:23], 0 offen offset:{1024*k} sc1"
    a.lab("L_tail")
    if opt.tail == 0:
        tm = {10: mf_pv('A', 'O', 0, 'T'), 18: mf_pv('A', 'O', 1, 'T'), 26: mf_pv('B', 'O', 0, 'T')}
        for i in range(cut, 29):
            if i in tm: a(tm[i])
            a(ex('O', i))
        finish('A', [ex('O', 29), ex('O', 30)])
        a(ex('O', 31).replace("v_exp_f32", "v_exp_f32_e64"))
        stamp(6)
        n0 = len(a.l)
        finish2('A')
        a.l.insert(n0 + 5, "    " + mf_pv('B', 'O', 1, 'T'))
        a("s_nop 0")
    else:
        tm = {10: mf_pv('A', 'O', 0, 'T'), 18: mf_pv('A', 'O', 1, 'T')}
        for i in range(cut, 28):
            if i in tm: a(tm[i])
            if i == 18: a("s_nop 1")
            a(ex('O', i))
        finish('A', [ex('O', 28), ex('O', 29)])
        a(ex('O', 30).replace("v_exp_f32", "v_exp_f32_e64"))
        n0 = len(a.l)
        finish2('A')
        a.l.insert(n0 + 10, "    " + mf_pv('B', 'O', 0, 'T'))
        a.l.insert(n0 + 13, "    " + ex('O', 31).replace("v_exp_f32", "v_exp_f32_e64"))
        stamp(6)
        a(mf_pv('B', 'O', 1, 'T'))
        a("s_nop 9")
    lgkm(0)
    a(store(0))
    finish('B')
    a("s_nop 0")
    finish2('B')
    lgkm(1)
    a(store(1))
    lgkm(0)
    a(store(2))
    stamp(7)
    a("s_setprio 0")
    for t in 'AB':
        for j in range(5): a(f"v_dot2c_f32_bf16 v{R+3 if t == 'A' else R+5}, 0, v{PK[t]+j}")
    a(f"v_cmp_nge_f32 s[36:37], v{R+3}, 1.0")
    a(f"v_cmp_nle_f32 vcc, v{R+3}, s35")
    a("s_or_b64 s[36:37], s[36:37], vcc")
    a(f"v_cmp_nge_f32 s[38:39], v{R+5}, 1.0")
    a(f"v_cmp_nle_f32 vcc, v{R+5}, s35")
    a("s_or_b64 s[36:37], s[36:37], s[38:39]")
    a("s_or_b64 s[36:37], s[36:37], vcc")
    a("s_cbranch_scc1 L_slow")
    a.lab("L_done")
    if opt.amp:
        a("s_waitcnt vmcnt(0)")
        stamp(8)
        a("s_memrealtime s[42:43]")
        a("s_waitcnt lgkmcnt(0)")
        a(f"s_sub_u32 s50, s{60+2*opt.ampb}, s{60+2*opt.ampa}")
        a(f"s_max_u32 s50, s50, {opt.ampbase}")
        a(f"s_sub_u32 s50, s50, {opt.ampbase}")
        a("s_load_dwordx2 s[54:55], s[0:1], 32")
        a(f"s_cmp_lg_u32 s24, {3 if opt.ampr == 'A' else 7}")
        a("s_cbranch_scc1 L_end")
        a("s_add_u32 s51, s50, 0x1000000")
        a("s_mov_b64 exec, 1")
        a("v_mov_b32 v16, s51"); a("v_mov_b32 v17, 0")
        a("s_waitcnt lgkmcnt(0)")
        a("global_atomic_add v18, v17, v16, s[54:55] sc0 sc1")
        a("s_waitcnt vmcnt(0)")
        a("v_readfirstlane_b32 s51, v18")
        a("s_nop 3")
        a("s_add_u32 s50, s50, s51")
        a("s_and_b32 s50, s50, 0xffffff")
        a(f"s_mul_i32 s50, s50, {opt.amp}")
        a("s_lshr_b32 s50, s50, 8")
        a("s_lshr_b32 s51, s51, 24")
        a("s_cmp_lg_u32 s51, 255")
        a("s_cselect_b32 s50, 0, s50")
        a("s_min_u32 s50, s50, 20000")
        a.lab("L_spin")
        a("s_sleep 2")
        a("s_memrealtime s[52:53]")
        a("s_waitcnt lgkmcnt(0)")
        a("s_sub_u32 s51, s52, s42")
        a("s_cmp_lt_u32 s51, s50")
        a("s_cbranch_scc1 L_spin")
    if opt.itst:
        a("s_load_dwordx2 s[40:41], s[0:1], 40")
        for i in range(32): a(f"v_writelane_b32 v16, s{62+i}, {i}")
        a("s_lshl_b32 s50, s2, 3"); a("s_add_u32 s50, s50, s24"); a("s_lshl_b32 s50, s50, 8")
        a(f"v_lshrrev_b32 v1, 2, v{vDma}")
        a("v_add_u32 v1, s50, v1")
        a("s_waitcnt lgkmcnt(0)")
        a("global_store_dword v1, v16, s[40:41]")
    if opt.stamp:
        a("s_mov_b64 exec, 1")
        a("s_waitcnt vmcnt(0)")
        stamp(8)
        a("s_memrealtime s[58:59]")
        a("s_load_dwordx2 s[40:41], s[0:1], 40")
        a("s_getreg_b32 s42, hwreg(HW_REG_HW_ID)")
        a("s_getreg_b32 s43, hwreg(HW_REG_XCC_ID)")
        a("s_waitcnt lgkmcnt(0)")
        for i, sr in enumerate((56, 58, 42, 43, 60, 62, 64, 66, 68, 70, 72, 74, 76)):
            a(f"v_mov_b32 v{16+i}, s{sr}")
        a("s_lshl_b32 s50, s2, 3"); a("s_add_u32 s50, s50, s24"); a("s_lshl_b32 s50, s50, 6")
        a("v_mov_b32 v1, s50")
        for i in range(4): a(f"global_store_dwordx4 v1, v[{16+4*i}:{19+4*i}], s[40:41] offset:{16*i}")
    a.lab("L_end")
    a("s_endpgm")
    a.lab("L_slow")
    a("s_waitcnt vmcnt(0)")
    mA, mB = 0, vSlot
    def scores():
        a(f"buffer_load_dword v{KX}, v{vGX}, s[16:19], s29 offen offset:4")
        a(f"buffer_load_dword v{KX+1}, v{vGX}, s[16:19], s29 offen")
        a(f"buffer_load_dwordx4 {vr(Kr['E'],4)}, v{vGK}, s[16:19], s29 offen")
        a(f"buffer_load_dwordx4 {vr(Kr['O'],4)}, v{vGK}, s[16:19], s29 offen offset:36")
        a("s_waitcnt vmcnt(0) lgkmcnt(0)")
        a(mf_x('E')); a(mf_x('O'))
        a("s_nop 15"); a("s_nop 3")
        for par in 'EO':
            for t in 'AB': a(mf_q(t, par))
        a("s_nop 15")
    def step(lab):
        a(f"s_add_u32 s29, s29, {ST}")
        a("s_cmp_lg_u32 s29, s18")
        a(f"s_cbranch_scc1 {lab}")
    a(f"v_and_b32 v{QX+1}, s34, v{QX+1}")
    a("s_mov_b32 exec_lo, 0")
    for t in 'AB': a(f"v_and_b32 v{Qr[t]+3}, 0xffff, v{Qr[t]+3}")
    a(ALL)
    a("s_mov_b32 s29, 0")
    a(f"v_mov_b32 v{mA}, 0xff800000"); a(f"v_mov_b32 v{mB}, 0xff800000")
    a.lab("L_max")
    scores()
    for par in 'EO':
        for t, m in (('A', mA), ('B', mB)):
            s = Sr[par] + (16 if t == 'B' else 0)
            for j in range(0, 16, 2): a(f"v_max3_f32 v{m}, v{m}, v{s+j}, v{s+j+1}")
    step("L_max")
    for m in (mA, mB):
        a(f"v_mov_b32 v{vT2}, v{m}")
        a("s_nop 1")
        a(f"v_permlane32_swap_b32 v{vT2}, v{m}")
        a("s_nop 1")
        a(f"v_max_f32 v{m}, v{m}, v{vT2}")
    a(f"v_subrev_u32 v{vV}, {(32-NB)*ST}, v{vV}")
    a("s_mov_b32 s29, 0")
    for r in range(120, 152): a(f"v_mov_b32 v{r}, 0")
    a.lab("L_acc")
    for f in [ROWS] + rd_v('E', 0) + rd_v('O', 0) + [ALL]: a(f)
    scores()
    for par in 'EO':
        for t, m in (('A', mA), ('B', mB)):
            s = Sr[par] + (16 if t == 'B' else 0)
            for j in range(16): a(f"v_sub_f32 v{s+j}, v{s+j}, v{m}")
            for j in range(16): a(f"v_exp_f32 v{s+j}, v{s+j}")
    a(f"v_add_u32 v{vV}, {ST}, v{vV}")
    a("s_nop 0")
    for par in 'EO':
        for t in 'AB':
            for j in range(2): a(mf_pv(t, par, j))
    step("L_acc")
    a("s_nop 15")
    for t in 'AB':
        finish(t); a("s_nop 0"); finish2(t)
    a("s_waitcnt lgkmcnt(0)")
    for k in range(3): a(store(k))
    a("s_branch L_done")
    a.raw(f""".section .rodata,"a"
.p2align 6
.amdhsa_kernel {NAME}_kernel
  .amdhsa_next_free_vgpr {NV}
  .amdhsa_next_free_sgpr {100 if (opt.stamp or opt.amp or opt.itst) else 48}
  .amdhsa_accum_offset {NV}
  .amdhsa_group_segment_fixed_size 0
  .amdhsa_kernarg_size 48
  .amdhsa_user_sgpr_count 2
  .amdhsa_user_sgpr_kernarg_segment_ptr 1
  .amdhsa_system_sgpr_workgroup_id_x 1
.end_amdhsa_kernel""")
    return a.text()

def parse(argv):
    p = argparse.ArgumentParser()
    p.add_argument('-o', default=f"cdna_kernels/{NAME}.s")
    p.add_argument('--cut', type=int, default=4)
    p.add_argument('--pos', default='2,5,15,18,21,27,24')
    p.add_argument('--fill', type=int, default=0)
    p.add_argument('--prn', type=int, default=1)
    p.add_argument('--tail', type=int, default=1)
    p.add_argument('--cst', default='81,51,4096')
    p.add_argument('--qd', type=int, default=1)
    p.add_argument('--dpf', default='')
    p.add_argument('--tlb', type=int, default=0)
    p.add_argument('--pf', type=int, default=1)
    p.add_argument('--xs', type=float, default=35)
    p.add_argument('--padA', default='0')
    p.add_argument('--padB', default='1')
    p.add_argument('--stamp', type=int, default=0)
    p.add_argument('--itst', type=int, default=0)
    p.add_argument('--amp', type=int, default=0)
    p.add_argument('--ampt', type=int, default=0)
    p.add_argument('--ampa', type=int, default=0)
    p.add_argument('--ampb', type=int, default=8)
    p.add_argument('--ampr', default='')
    p.add_argument('--ampbase', type=int, default=44000)
    return p.parse_args(argv)

if __name__ == '__main__':
    opt = parse(sys.argv[1:])
    open(opt.o, 'w').write(gen(opt))
```
